```python
import torch

def _softmax(x, axis=-1):
    return torch.softmax(x, dim=axis)
def _gelu(x):
    return torch.nn.functional.gelu(x, approximate="tanh")
def _silu(x):
    return torch.nn.functional.silu(x)
def _sigmoid(x):
    return torch.sigmoid(x)
def _layernorm(x, axis=-1, eps=1e-5):
    m = x.mean(dim=axis, keepdim=True)
    v = x.var(dim=axis, keepdim=True, unbiased=False)
    return (x - m) / torch.sqrt(v + eps)
def _scatter_add(tgt, idx, src, axis=0):
    return tgt.clone().index_add_(axis, idx, src)
def _segment_sum(src, seg, n):
    out = torch.zeros((n,) + src.shape[1:], dtype=src.dtype)
    return out.index_add_(0, seg, src)
def _pad(x, pw):
    flat = tuple(v for pair in reversed(pw) for v in pair)
    return torch.nn.functional.pad(x, flat)

kernel_name = 'concat_heads__ssm_conv_s4d__linear_kernel_hedgehog__prompt'

def setup_inputs():

    _w = (lambda a: (lambda t: t.to(torch.bfloat16) if t.is_floating_point() else t)(torch.as_tensor(a)))
    def _A_setup():
        Bsz, L, D, N = 1, 2048, 640, 128
        return {
            "u": _w((lambda *s: torch.randn(*s, dtype=torch.bfloat16) * 0.05)(Bsz, L, D)),
            "log_A_real": _w((lambda *s: torch.randn(*s, dtype=torch.bfloat16) * 3.2)(D, N) * 0.5),
            "A_imag": _w((lambda *s: torch.randn(*s, dtype=torch.bfloat16) * 0.1)(D, N) * 3.14),
            "C_real": _w((lambda *s: torch.randn(*s, dtype=torch.bfloat16) * 1.6)(D, N) / N ** 0.5),
            "C_imag": _w((lambda *s: torch.randn(*s, dtype=torch.bfloat16) * 1.6)(D, N) / N ** 0.5),
            "log_dt": _w((lambda *s: torch.randn(*s, dtype=torch.bfloat16) * 0.1)(D) * 0.5 - 4.0),
            "D_skip": _w((lambda *s: torch.randn(*s, dtype=torch.bfloat16) * 0.1)(D)),
        }
    _A_in = _A_setup()

    def _B_setup():
        B, S, D, H = 1, 2048, 640, 32
        Dh = D // H
        return {
            "x": _w((lambda *s: torch.randn(*s, dtype=torch.bfloat16) * 0.4)(B, S, D)),
            "wqkv": _w((lambda *s: torch.randn(*s, dtype=torch.bfloat16) * 0.4)(D, 3 * D)),
            "w_phi": _w((lambda *s: torch.randn(*s, dtype=torch.bfloat16) * 0.4)(H, Dh, Dh) * (Dh ** -0.5)),
            "wo": _w((lambda *s: torch.randn(*s, dtype=torch.bfloat16) * 0.05)(D, D)),
        }
    _B_in = _B_setup()

    return {
        "A_u": _A_in["u"],
        "A_log_A_real": _A_in["log_A_real"],
        "A_A_imag": _A_in["A_imag"],
        "A_C_real": _A_in["C_real"],
        "A_C_imag": _A_in["C_imag"],
        "A_log_dt": _A_in["log_dt"],
        "A_D_skip": _A_in["D_skip"],
        "B_x": _B_in["x"],
        "B_wqkv": _B_in["wqkv"],
        "B_w_phi": _B_in["w_phi"],
        "B_wo": _B_in["wo"],
    }

def reference(A_u, A_log_A_real, A_A_imag, A_C_real, A_C_imag, A_log_dt, A_D_skip, B_x, B_wqkv, B_w_phi, B_wo):
    def _A_ref(u, log_A_real, A_imag, C_real, C_imag, log_dt, D_skip):
        L = u.shape[1]
        dt = torch.exp(log_dt)
        A = -torch.exp(log_A_real) + 1j * A_imag
        C = (C_real + 1j * C_imag) * dt[:, None]
        pos = (lambda x, dt: x.to(dt))(torch.arange(L), log_dt.dtype)
        P = torch.exp((A * dt[:, None])[:, :, None] * pos[None, None, :])
        K = 2.0 * torch.einsum("dn,dnl->dl", C, P).real
        L2 = 2 * L
        u_t = (lambda x, *d: x.permute(*d))(u, 0, 2, 1)
        Kf = (lambda x, *a, **k: torch.fft.rfft(x.float(), *a, **k))(K, L2)
        Uf = (lambda x, *a, **k: torch.fft.rfft(x.float(), *a, **k))(u_t, L2)
        y = (lambda x, *a, **k: torch.fft.irfft(x, *a, **k).to(torch.bfloat16))(Uf * Kf[None, :, :], L2)[:, :, :L]
        y = (lambda x, *d: x.permute(*d))(y, 0, 2, 1)
        return y + u * D_skip[None, None, :]

    def _B_ref(x, wqkv, w_phi, wo):
        B, S, D = x.shape
        H = 32; Dh = D // H
        qkv = (lambda x, *d: x.permute(*d))((x @ wqkv).reshape(B, S, 3, H, Dh), 2, 0, 3, 1, 4)
        q, k, v = qkv[0], qkv[1], qkv[2]
        pq = torch.einsum("bhsd,hdf->bhsf", q, w_phi)
        pk = torch.einsum("bhsd,hdf->bhsf", k, w_phi)
        phi_q = torch.concatenate([_softmax(pq, axis=-1), _softmax(-pq, axis=-1)], axis=-1)
        phi_k = torch.concatenate([_softmax(pk, axis=-1), _softmax(-pk, axis=-1)], axis=-1)
        kv = torch.einsum("bhsf,bhsd->bhfd", phi_k, v)
        z  = torch.einsum("bhsf->bhf", phi_k)
        num = torch.einsum("bhqf,bhfd->bhqd", phi_q, kv)
        den = torch.einsum("bhqf,bhf->bhq", phi_q, z)[..., None] + 1e-6
        o = num / den
        return (lambda x, *d: x.permute(*d))(o, 0, 2, 1, 3).reshape(B, S, D) @ wo

    a = _A_ref(A_u, A_log_A_real, A_A_imag, A_C_real, A_C_imag, A_log_dt, A_D_skip)
    b = _B_ref(B_x, B_wqkv, B_w_phi, B_wo)
    return torch.concatenate([a, b], axis=-1)
```

```python
from emit import *

NAME = "concat_heads__ssm_conv_s4d__linear_kernel_hedgehog__prompt"
KNAME = NAME + "_kernel"

S_U, S_LAR, S_AIM, S_CRE, S_CIM, S_LDT, S_DSK, S_X = 4, 6, 8, 10, 12, 14, 16, 18
S_WQKV, S_WPHI, S_WO, S_OUT = 20, 22, 24, 26
S_DBG, S_WS = 28, 30

N_B = 176
N_WG = 256
LDS_BYTES = 163840

LOG2E = 0x3FB8AA3B
LOG2E_LO = 0x32A57060
LN2 = 0x3F317218

def header_text():
    return f"""; Kernarg layout (112 bytes, pointers only): u, log_A_real, A_imag, C_real, C_imag, log_dt, D_skip,
; @launch grid=({N_WG},1,1) block=(512,1,1) lds={LDS_BYTES}
.amdgcn_target "amdgcn-amd-amdhsa--gfx950"
.text
.globl {KNAME}
.p2align 8
.type {KNAME},@function
{KNAME}:
"""

def footer_text(vgpr=256, sgpr=102):
    acc = min(256, (vgpr + 3) // 4 * 4)
    return f"""
.section .rodata,"a"
.p2align 6
.amdhsa_kernel {KNAME}
  .amdhsa_next_free_vgpr {vgpr}
  .amdhsa_next_free_sgpr {sgpr}
  .amdhsa_accum_offset {acc}
  .amdhsa_group_segment_fixed_size 0
  .amdhsa_kernarg_size 112
  .amdhsa_user_sgpr_count 2
  .amdhsa_user_sgpr_kernarg_segment_ptr 1
  .amdhsa_system_sgpr_workgroup_id_x 1
.end_amdhsa_kernel
"""

def srd(p, dst, ptr, size):
    p(f"""
    s_mov_b32 s{dst}, s{ptr}
    s_and_b32 s{dst+1}, s{ptr+1}, 0xffff
    s_mov_b32 s{dst+2}, {size}
    s_mov_b32 s{dst+3}, 0x00020000
    """)

DIAG = False
DUMP = False
S_STAMP = 64
DIAG_OFF = 16 << 20
class Stamps:
    n = 0
def stamp(p, idx=None):
    import common
    if not common.DIAG: return
    if idx is not None: Stamps.n = idx
    i = Stamps.n; Stamps.n += 1
    assert i < 16
    p(f"s_memrealtime s[98:99]\n s_waitcnt lgkmcnt(0)\n s_mov_b32 s{S_STAMP+i}, s98")
def stamps_reset(n=0):
    Stamps.n = n
def stamps_flush(p, vt0, vt1):
    import common
    if not common.DIAG: return
    p(f"""
    v_lshrrev_b32 v{vt0}, 6, v0
    s_lshl_b32 s98, s2, 3
    v_add_u32 v{vt0}, s98, v{vt0}
    v_lshlrev_b32 v{vt0}, 6, v{vt0}
    v_add_u32 v{vt0}, {DIAG_OFF}, v{vt0}
    """)
    for i in range(16):
        p(f"v_mov_b32 v{vt1}, s{S_STAMP+i}")
        p(f"global_store_dword v{vt0}, v{vt1}, s[{S_WS}:{S_WS+1}] offset:{4*i}")
```

```python
import re

TRANS = ("v_exp_f32", "v_log_f32", "v_rcp_f32", "v_rsq_f32", "v_sqrt_f32", "v_sin_f32", "v_cos_f32", "v_rcp_iflag_f32")

def _regs(tok):
    tok = tok.strip()
    tok = re.sub(r"^(neg|abs)\((.*)\)$", r"\2", tok)
    tok = tok.lstrip("-").strip("|")
    m = re.fullmatch(r"([vsa])(\d+)", tok)
    if m:
        return {(m.group(1), int(m.group(2)))}
    m = re.fullmatch(r"([vsa])\[(\d+):(\d+)\]", tok)
    if m:
        return {(m.group(1), i) for i in range(int(m.group(2)), int(m.group(3)) + 1)}
    if tok == "vcc":
        return {("s", 106), ("s", 107)}
    if tok == "vcc_lo":
        return {("s", 106)}
    if tok == "vcc_hi":
        return {("s", 107)}
    if tok == "exec":
        return {("s", 126), ("s", 127)}
    if tok == "exec_lo":
        return {("s", 126)}
    if tok == "exec_hi":
        return {("s", 127)}
    if tok == "m0":
        return {("s", 124)}
    return set()

class Ins:
    __slots__ = ("text", "mn", "ops", "cls", "vw", "vr", "sw", "sr", "passes", "A", "B", "C", "D", "dpp", "lds", "storedata", "ws")
    def __init__(self, text):
        self.text = text
        t = text.split(";")[0].split("//")[0].strip()
        self.mn = t.split()[0] if t else ""
        rest = t[len(self.mn):].strip()
        ops = []
        if rest:
            parts = [p.strip() for p in re.split(r",(?![^\[]*\])", rest)]
            last = parts[-1].split()
            if last:
                parts[-1] = last[0]
                mods = last[1:]
            else:
                mods = []
            ops = parts
        else:
            mods = []
        self.ops = ops
        mn = self.mn
        self.vw = set(); self.vr = set(); self.sw = set(); self.sr = set()
        self.passes = 0; self.A = self.B = self.C = self.D = set()
        self.dpp = ("_dpp" in mn) or any(m.startswith(("quad_perm", "row_", "wave_")) for m in mods)
        self.lds = "lds" in mods
        self.storedata = set()
        self.ws = 1
        R = [_regs(o) for o in ops]
        def split(regsets, w=False):
            for rs in regsets:
                for r in rs:
                    if r[0] in "va":
                        (self.vw if w else self.vr).add(r)
                    else:
                        (self.sw if w else self.sr).add(r)
        if mn.startswith("v_mfma"):
            self.cls = "mfma"
            self.passes = 8 if "32x32x16" in mn else 4 if "16x16x32" in mn else None
            assert self.passes, mn
            self.D, self.A, self.B = R[0], R[1], R[2]
            self.C = R[3]
            split([R[0]], True); split(R[1:])
        elif mn.startswith("v_"):
            self.cls = "trans" if mn.replace("_e32", "").replace("_e64", "") in TRANS else "valu"
            if mn.startswith("v_permlane") and "swap" in mn:
                split(R[:2], True); split(R[:2])
            elif mn.startswith(("v_add_co", "v_sub_co", "v_addc_co", "v_subb_co", "v_subrev_co")):
                split(R[:2], True); split(R[2:])
            elif mn.startswith("v_cmpx"):
                split(R[:1], True); self.sw |= {("s", 126), ("s", 127)}; split(R[1:])
            else:
                split(R[:1], True); split(R[1:])
                if mn.startswith(("v_fmac", "v_pk_fmac", "v_dot2c", "v_mac")) or "d16" in mn:
                    split(R[:1])
                if self.dpp:
                    split(R[:1])
        elif mn.startswith("ds_"):
            self.cls = "ds"
            if mn.startswith(("ds_read", "ds_bpermute", "ds_permute", "ds_swizzle")):
                split(R[:1], True); split(R[1:])
                if "d16" in mn: split(R[:1])
            else:
                split(R)
        elif mn.startswith(("buffer_", "global_", "flat_")):
            self.cls = "vmem"
            if mn in ("buffer_wbl2", "buffer_inv"):
                pass
            elif "load" in mn:
                if self.lds or "_lds_" in mn:
                    split(R)
                    self.lds = True
                    self.sr.add(("s", 124))
                else:
                    split(R[:1], True); split(R[1:])
                    if "d16" in mn: split(R[:1])
            elif "store" in mn:
                split(R)
                data = R[0] if mn.startswith("buffer_") else R[1]
                if "x3" in mn or "x4" in mn:
                    self.storedata = set(data)
            elif "atomic" in mn:
                split(R)
                if "sc0" in mods:
                    split(R[:1], True)
            else:
                raise ValueError(text)
        elif mn.startswith("s_"):
            self.cls = "salu"
            if mn == "s_nop":
                self.ws = int(ops[0], 0) + 1
            elif mn.startswith(("s_cmp", "s_bitcmp", "s_waitcnt", "s_barrier", "s_branch", "s_cbranch", "s_setprio", "s_sleep", "s_endpgm", "s_setreg")):
                split(R)
            elif mn.startswith(("s_load", "s_buffer_load", "s_memtime", "s_memrealtime")):
                self.cls = "smem"
                split(R[:1], True); split(R[1:])
            else:
                split(R[:1], True); split(R[1:])
                if "saveexec" in mn:
                    self.sw |= {("s", 126), ("s", 127)}
        else:
            raise ValueError("unknown instr: " + text)

def need(p, c):
    n = 0
    pv = p.cls in ("valu", "trans")
    cv = c.cls in ("valu", "trans")
    if pv:
        w = p.vw
        if c.cls == "mfma" and (w & c.vr):
            n = max(n, 2)
        if cv and c.mn.startswith("v_permlane") and (w & c.vr):
            n = max(n, 2)
        if cv and c.dpp and (w & c.vr):
            n = max(n, 2)
        if cv and c.mn.startswith(("v_readlane", "v_readfirstlane")) and (w & c.vr):
            n = max(n, 1)
        if p.cls == "trans" and (w & c.vr) and c.cls != "trans":
            n = max(n, 1)
        sw = p.sw
        if sw:
            if cv and (sw & c.sr):
                n = max(n, 2)
                if c.mn.startswith(("v_readlane", "v_writelane")):
                    n = max(n, 4)
            if c.cls == "vmem" and (sw & c.sr):
                n = max(n, 5)
            if c.cls in ("salu", "smem") and (sw & c.sr):
                n = max(n, 4)
            if (("s", 126) in sw):
                if c.cls == "mfma": n = max(n, 4)
                if c.dpp: n = max(n, 5)
                if c.mn.startswith("v_permlane"): n = max(n, 4)
    if p.cls == "mfma":
        P = p.passes
        t_raw = {4: 8, 8: 12}[P]
        t_ovl = {4: 6, 8: 10}[P]
        t_war = {4: 3, 8: 7}[P]
        if c.cls == "mfma":
            if p.D & (c.A | c.B):
                n = max(n, t_raw)
            if p.D & c.C:
                if not (p.D == c.C and p.passes == c.passes):
                    n = max(n, t_ovl)
            if (p.D & c.D) and not (p.D & c.C):
                n = max(n, t_raw)
        else:
            if p.D & (c.vr | c.vw):
                n = max(n, t_raw)
            if cv and (p.C & c.vw):
                n = max(n, t_war)
            if c.cls in ("ds", "vmem") and (p.C & c.vw):
                n = max(n, t_war)
    if p.cls == "salu" and (("s", 124) in p.sw) and c.cls == "vmem" and c.lds:
        n = max(n, 1)
    if p.storedata and (p.storedata & c.vw):
        n = max(n, 2 if cv else 1)
    return n

WINDOW = 24

class Prog:
    def __init__(self):
        self.items = []
    def __call__(self, s):
        for l in s.split("\n"):
            t = l.strip()
            if not t:
                continue
            if t.startswith(";"):
                self.items.append(("c", t)); continue
            if re.fullmatch(r"[\w.$]+:", t):
                self.items.append(("l", t[:-1])); continue
            if t.startswith("."):
                self.items.append(("c", t)); continue
            self.items.append(("i", Ins(t)))
    def label(self, name):
        self.items.append(("l", name))
    def finalize(self, verbose=False):
        out = []
        hist = []
        nnop = 0
        for kind, x in self.items:
            if kind != "i":
                out.append((kind, x)); continue
            req = 0
            dist = 0
            for p in reversed(hist[-WINDOW:]):
                r = need(p, x) - dist
                if r > req: req = r
                dist += p.ws
                if dist > 20: break
            if req > 0:
                nop = Ins(f"s_nop {req-1}")
                out.append(("i", nop)); hist.append(nop); nnop += req
            out.append(("i", x)); hist.append(x)
            if x.mn in ("s_branch", "s_endpgm"):
                hist = []
        self.final = out
        self._check_seams()
        if verbose: print("inserted wait states:", nnop)
        lines = []
        for kind, x in out:
            if kind == "i": lines.append("    " + x.text)
            elif kind == "l": lines.append(x + ":")
            else: lines.append(x)
        return "\n".join(lines) + "\n"
    def _check_seams(self):
        out = self.final
        pos = {x: i for i, (k, x) in enumerate(out) if k == "l"}
        for i, (k, x) in enumerate(out):
            if k == "i" and x.mn.startswith(("s_branch", "s_cbranch")):
                tgt = x.ops[0]
                if tgt not in pos:
                    raise ValueError("unknown label " + tgt)
                tail = [y for kk, y in out[max(0, i - 60):i + 1] if kk == "i"][-WINDOW:]
                head = []
                for kk, y in out[pos[tgt]:pos[tgt] + 60]:
                    if kk == "i":
                        head.append(y)
                        if y.mn in ("s_branch", "s_endpgm"): break
                head = head[:WINDOW]
                seq = list(tail)
                for c in head:
                    dist = 0
                    for p in reversed(seq):
                        if need(p, c) > dist:
                            raise ValueError(f"hazard across branch '{x.text}': {p.text}  ->  {c.text} needs {need(p,c)} has {dist}")
                        dist += p.ws
                        if dist > 20: break
                    seq.append(c)

class VAlloc:
    def __init__(self, limit=256, start=1):
        self.free = [True] * limit
        for i in range(start): self.free[i] = False
        self.limit = limit
        self.high = start
        self.names = {}
    def alloc(self, n=1, align=None, name=None):
        if align is None:
            align = 2 if n >= 2 else 1
        i = 0
        while i + n <= self.limit:
            if i % align == 0 and all(self.free[i:i + n]):
                for j in range(i, i + n): self.free[j] = False
                self.high = max(self.high, i + n)
                if name: self.names[name] = (i, n)
                return i
            i += 1
        raise RuntimeError(f"out of registers allocating {n} ({name})")
    def release(self, base, n=1):
        for j in range(base, base + n):
            assert not self.free[j], (base, n)
            self.free[j] = True
    def used(self):
        return sum(1 for f in self.free if not f)

def vr(b, n=1):
    return f"v{b}" if n == 1 else f"v[{b}:{b+n-1}]"
def sr(b, n=1):
    return f"s{b}" if n == 1 else f"s[{b}:{b+n-1}]"
```

```python
from common import *
import common

REG = 20416
K1OFF = 4224
UOFF = 8384
U1D = 4576
TB = 8448 + 128

def cmul(p, z, x, y):
    p(f"v_pk_mul_f32 v[{z}:{z+1}], v[{x}:{x+1}], v[{y}:{y+1}] op_sel:[0,0] op_sel_hi:[1,0]")
    p(f"v_pk_fma_f32 v[{z}:{z+1}], v[{x}:{x+1}], v[{y}:{y+1}], v[{z}:{z+1}] op_sel:[1,1,0] op_sel_hi:[0,1,1] neg_lo:[1,0,0]")

def exp_bf16(p, V, dst, x, sL, sLlo, sLn2):
    t = V.alloc(); e = V.alloc()
    p(f"v_mul_f32 v{t}, s{sL}, v{x}")
    p(f"v_fma_f32 v{e}, v{x}, s{sL}, -v{t}")
    p(f"v_fma_f32 v{e}, v{x}, s{sLlo}, v{e}")
    p(f"v_exp_f32 v{t}, v{t}")
    p(f"v_mul_f32 v{e}, s{sLn2}, v{e}")
    p(f"v_fma_f32 v{t}, v{t}, v{e}, v{t}")
    p(f"v_cvt_pk_bf16_f32 v{t}, v{t}, v{t}")
    p(f"v_lshlrev_b32 v{dst}, 16, v{t}")
    V.release(t); V.release(e)

def gen_part_a(p, final_hook=None):
    V = VAlloc(256, start=1)
    sA, sJ, sCG, sW, sC = 32, 33, 34, 35, 36
    sREG = 37
    sL, sLlo, sLn2 = 38, 39, 40
    sSEL = 41
    SRD_U = 44; SRD_O = 48
    sT0, sT1 = 52, 53
    p(f"""
    s_sub_u32 s{sA}, s2, {N_B}
    s_and_b32 s{sJ}, s{sA}, 7
    s_lshr_b32 s{sT0}, s{sA}, 3
    s_mul_i32 s{sCG}, s{sJ}, 10
    s_add_u32 s{sCG}, s{sCG}, s{sT0}
    """)
    vLane = V.alloc(name="lane")
    vT = V.alloc()
    p(f"""
    v_lshrrev_b32 v{vT}, 6, v0
    v_and_b32 v{vLane}, 63, v0
    v_readfirstlane_b32 s{sW}, v{vT}
    s_mov_b32 s{sL}, {LOG2E:#x}
    s_mov_b32 s{sLlo}, {LOG2E_LO:#x}
    s_mov_b32 s{sLn2}, {LN2:#x}
    s_mov_b32 s{sSEL}, 0x07060100
    s_lshl_b32 s{sC}, s{sCG}, 3
    s_add_u32 s{sC}, s{sC}, s{sW}
    s_mul_i32 s{sREG}, s{sW}, {REG}
    """)
    p("s_waitcnt lgkmcnt(0)")
    srd(p, SRD_U, S_U, 2048 * 1280)
    srd(p, SRD_O, S_OUT, 2048 * 2560)
    vLA = V.alloc(); vAI = V.alloc(); vCR = V.alloc(); vCI = V.alloc(); vDT = V.alloc(); vD = V.alloc(name="D")
    vA = V.alloc()
    p(f"""
    s_lshl_b32 s{sT0}, s{sC}, 8
    v_lshl_add_u32 v{vA}, v{vLane}, 2, s{sT0}
    s_lshl_b32 s{sT1}, s{sC}, 1
    v_mov_b32 v{vT}, s{sT1}
    global_load_ushort v{vDT}, v{vT}, s[{S_LDT}:{S_LDT+1}]
    global_load_dword v{vLA}, v{vA}, s[{S_LAR}:{S_LAR+1}]
    global_load_dword v{vAI}, v{vA}, s[{S_AIM}:{S_AIM+1}]
    global_load_dword v{vCR}, v{vA}, s[{S_CRE}:{S_CRE+1}]
    global_load_dword v{vCI}, v{vA}, s[{S_CIM}:{S_CIM+1}]
    global_load_ushort v{vD}, v{vT}, s[{S_DSK}:{S_DSK+1}]
    """)
    V.release(vA)
    vU = V.alloc(20, align=4, name="U")
    vUa = V.alloc(); vUb = V.alloc()
    p(f"""
    v_mul_u32_u24 v{vUa}, 5120, v0
    s_lshl_b32 s{sT0}, s{sCG}, 4
    v_add_u32 v{vUa}, s{sT0}, v{vUa}
    v_subrev_u32 v{vUb}, 1280, v{vUa}
    buffer_load_dwordx4 v[{vU}:{vU+3}], v{vUb}, s[{SRD_U}:{SRD_U+3}], 0 offen
    buffer_load_dwordx4 v[{vU+4}:{vU+7}], v{vUa}, s[{SRD_U}:{SRD_U+3}], 0 offen
    buffer_load_dwordx4 v[{vU+8}:{vU+11}], v{vUa}, s[{SRD_U}:{SRD_U+3}], 0 offen offset:1280
    buffer_load_dwordx4 v[{vU+12}:{vU+15}], v{vUa}, s[{SRD_U}:{SRD_U+3}], 0 offen offset:2560
    buffer_load_dwordx4 v[{vU+16}:{vU+19}], v{vUa}, s[{SRD_U}:{SRD_U+3}], 0 offen offset:3840
    """)
    V.release(vUa); V.release(vUb)
    stamp(p)
    vWA = V.alloc(16, align=1)
    vL4 = V.alloc()
    p(f"v_lshlrev_b32 v{vL4}, 2, v{vLane}")
    for i in range(16):
        p(f"v_xor_b32 v{vWA+i}, {i << 4}, v{vL4}")
        p(f"v_add_u32 v{vWA+i}, s{sREG}, v{vWA+i}")
    vRA = V.alloc(4, align=1)
    vI = V.alloc(); vG = V.alloc(name="g"); vN = vI
    p(f"""
    v_and_b32 v{vI}, 15, v{vLane}
    v_lshrrev_b32 v{vG}, 4, v{vLane}
    """)
    for ks in range(4):
        p(f"""
        v_add_u32 v{vT}, {4*ks}, v{vG}
        v_xor_b32 v{vT}, v{vT}, v{vI}
        v_lshlrev_b32 v{vT}, 4, v{vT}
        v_lshl_add_u32 v{vT}, v{vI}, 8, v{vT}
        v_add_u32 v{vRA+ks}, s{sREG}, v{vT}
        """)
    V.release(vL4)
    p("s_waitcnt vmcnt(10)")
    p(f"v_lshlrev_b32 v{vDT}, 16, v{vDT}")
    exp_bf16(p, V, vDT, vDT, sL, sLlo, sLn2)
    p("s_waitcnt vmcnt(5)")
    p(f"v_lshlrev_b32 v{vD}, 16, v{vD}")
    stamp(p)
    vAcc = V.alloc(12, align=4, name="acc")
    vAl = V.alloc(); vBe = V.alloc()
    w1 = V.alloc(2); w2 = V.alloc(2); w4 = V.alloc(2); w8 = V.alloc(2); w128 = V.alloc(2)
    G = [V.alloc(2), V.alloc(2)]
    X = [V.alloc(2), V.alloc(2)]
    Y = [V.alloc(2), V.alloc(2)]
    tmp = [V.alloc() for _ in range(4)]
    fr = V.alloc(16, align=4)
    tc = [0]
    def store(val, row, tile, negim=False):
        t = tmp[tc[0] % 4]; tc[0] += 1
        p(f"v_cvt_pk_bf16_f32 v{t}, v{val}, {'-' if negim else ''}v{val+1}")
        p(f"ds_write_b32 v{vWA+row}, v{t} offset:{tile*4096 + row*256}")
    def cexp(dst, pw):
        a, b = tmp[0], tmp[1]
        p(f"""
        v_mul_f32 v{a}, {float(pw)}, v{vAl}
        v_mul_f32 v{b}, {float(pw)}, v{vBe}
        """ if pw in (1, 2, 4) else f"""
        v_mul_f32 v{a}, {hex(f32bits(pw))}, v{vAl}
        v_mul_f32 v{b}, {hex(f32bits(pw))}, v{vBe}
        """)
        p(f"""
        v_fract_f32 v{b}, v{b}
        v_exp_f32 v{a}, v{a}
        v_cos_f32 v{dst}, v{b}
        v_sin_f32 v{dst+1}, v{b}
        v_mul_f32 v{dst}, v{dst}, v{a}
        v_mul_f32 v{dst+1}, v{dst+1}, v{a}
        """)
    for ps in range(2):
        p(f"; ---- K-gen pass {ps}")
        t0, t1, t2, t3 = tmp
        if ps == 0:
            p(f"""
            v_lshlrev_b32 v{t0}, 16, v{vLA}
            v_lshlrev_b32 v{t1}, 16, v{vAI}
            v_lshlrev_b32 v{t2}, 16, v{vCR}
            v_lshlrev_b32 v{t3}, 16, v{vCI}
            """)
        else:
            p(f"""
            v_and_b32 v{t0}, 0xffff0000, v{vLA}
            v_and_b32 v{t1}, 0xffff0000, v{vAI}
            v_and_b32 v{t2}, 0xffff0000, v{vCR}
            v_and_b32 v{t3}, 0xffff0000, v{vCI}
            """)
        exp_bf16(p, V, t0, t0, sL, sLlo, sLn2)
        p(f"""
        v_mul_f32 v{t0}, v{t0}, v{vDT}
        v_mul_f32 v{t1}, v{t1}, v{vDT}
        v_mul_f32 v{vAl}, s{sL}, v{t0}
        v_mul_f32 v{vBe}, 0.15915494, v{t1}
        v_sub_f32 v{vAl}, 0, v{vAl}
        v_mul_f32 v{t2}, v{t2}, v{vDT}
        v_mul_f32 v{t3}, v{t3}, v{vDT}
        v_add_f32 v{G[0]}, v{t2}, v{t2}
        v_add_f32 v{G[0]+1}, v{t3}, v{t3}
        """)
        cexp(w1, 1); cexp(w8, 8); cexp(w128, 128)
        cmul(p, w2, w1, w1); cmul(p, w4, w2, w2)
        p(f"v_mov_b32 v{tmp[0]}, 0x00003f80")
        p(f"ds_write_b32 v{vWA}, v{tmp[0]}")
        tc[0] = 1
        store(w8, 1, 0, True)
        cur = w8
        for j in range(2, 16):
            nx = X[j % 2]
            cmul(p, nx, cur, w8)
            store(nx, j, 0, True)
            cur = nx
        g = G[0]
        for t in range(17):
            if t > 0:
                ng = G[t % 2]
                cmul(p, ng, g, w128)
                g = ng
            if t < 2:
                store(g, 8*t, 1)
                cur = g
                for k in range(1, 8):
                    nx = Y[k % 2]; cmul(p, nx, cur, w1); store(nx, 8*t + k, 1); cur = nx
            elif t < 4:
                store(g, 4*(t-2), 2)
                cur = g
                for k in range(1, 4):
                    nx = Y[k % 2]; cmul(p, nx, cur, w2); store(nx, 4*(t-2) + k, 2); cur = nx
            elif t < 8:
                store(g, 8 + 2*(t-4), 2)
                cmul(p, Y[0], g, w4); store(Y[0], 8 + 2*(t-4) + 1, 2)
            else:
                store(g, t - 8, 3)
        for ks in range(4):
            for t in range(4):
                p(f"ds_read_b128 v[{fr+4*t}:{fr+4*t+3}], v{vRA+ks} offset:{4096*t}")
            p("s_waitcnt lgkmcnt(0)")
            for t in range(3):
                c = "0" if (ps == 0 and ks == 0) else f"v[{vAcc+4*t}:{vAcc+4*t+3}]"
                p(f"v_mfma_f32_16x16x32_bf16 v[{vAcc+4*t}:{vAcc+4*t+3}], v[{fr+4*(t+1)}:{fr+4*(t+1)+3}], v[{fr}:{fr+3}], {c}")
    for r in (vAl, vBe, vLA, vAI, vCR, vCI, vDT): V.release(r)
    for r in (w1, w2, w4, w8, w128, G[0], G[1], X[0], X[1], Y[0], Y[1]): V.release(r, 2)
    V.release(vWA, 16); V.release(vRA, 4)
    stamp(p)
    d = fr
    a0 = V.alloc(); a1 = V.alloc(); a2 = V.alloc(); a3 = V.alloc()
    t0, t1, t2, t3 = tmp
    p(f"""
    v_and_b32 v{t0}, 1, v{vG}
    v_lshrrev_b32 v{t1}, 1, v{vG}
    v_lshlrev_b32 v{a0}, 5, v{vI}
    v_lshl_add_u32 v{a0}, v{t0}, 4, v{a0}
    v_lshl_add_u32 v{a0}, v{t1}, 9, v{a0}
    v_add_u32 v{a0}, s{sREG}, v{a0}
    v_lshlrev_b32 v{a1}, 4, v{vI}
    v_lshl_add_u32 v{a1}, v{vG}, 8, v{a1}
    v_add_u32 v{a1}, 1024, v{a1}
    v_add_u32 v{a2}, 8, v{a1}
    v_lshlrev_b32 v{t2}, 3, v{vI}
    v_lshl_add_u32 v{t2}, v{t0}, 8, v{t2}
    v_add_u32 v{t2}, 1536, v{t2}
    v_add_u32 v{t3}, 128, v{t2}
    v_cmp_gt_u32 vcc, 2, v{vG}
    v_cndmask_b32 v{a1}, v{t2}, v{a1}, vcc
    v_cndmask_b32 v{a2}, v{t3}, v{a2}, vcc
    v_add_u32 v{a1}, s{sREG}, v{a1}
    v_add_u32 v{a2}, s{sREG}, v{a2}
    ; tile2: 4*(512 + j + 64 g) + 64 r
    v_lshlrev_b32 v{a3}, 2, v{vI}
    v_lshl_add_u32 v{a3}, v{vG}, 8, v{a3}
    v_add_u32 v{a3}, s{sREG}, v{a3}
    v_mov_b32 v{t0}, 0
    v_lshl_add_u32 v{t1}, v{vLane}, 2, s{sREG}
    """)
    p(f"""
    s_mov_b32 exec_lo, -1
    s_mov_b32 exec_hi, 0
    ds_write_b32 v{t1}, v{t0} offset:{TB-128}
    s_mov_b64 exec, -1
    """)
    for k in range(12):
        p(f"v_cvt_pk_bf16_f32 v{d+k}, v{vAcc+k}, v{vAcc+k}")
    p(f"ds_write_b128 v{a0}, v[{d}:{d+3}] offset:{TB}")
    p(f"ds_write_b64 v{a1}, v[{d+4}:{d+5}] offset:{TB}")
    p(f"ds_write_b64 v{a2}, v[{d+6}:{d+7}] offset:{TB}")
    for r in range(4):
        p(f"ds_write_b32 v{a3}, v{d+8+r} offset:{TB + 4*512 + 64*r}")
    V.release(vAcc, 12)
    for r in (a0, a1, a2, a3): V.release(r)
    e = V.alloc(12, align=4)
    cc = V.alloc(); ra = V.alloc(); k0 = V.alloc(); k1 = V.alloc(); m1 = V.alloc(); m2 = V.alloc(); m3 = V.alloc(); m4 = V.alloc(); m5 = V.alloc(); sel = V.alloc()
    def kaddr():
        p(f"""
        v_lshlrev_b32 v{k0}, 4, v{cc}
        v_sub_u32 v{k0}, 4096, v{k0}
        v_add_u32 v{k0}, s{sREG}, v{k0}
        v_add_u32 v{k1}, {K1OFF}, v{k0}
        """)
    def kwrite(A, B, C, D, E):
        p(f"""
        ds_write2_b32 v{k0}, v{A}, v{B} offset0:0 offset1:1
        ds_write2_b32 v{k0}, v{C}, v{D} offset0:2 offset1:3
        ds_write2_b32 v{k1}, v{B}, v{C} offset0:0 offset1:1
        ds_write2_b32 v{k1}, v{D}, v{E} offset0:2 offset1:3
        """)
    def mix(dst, lo, hi):
        p(f"v_perm_b32 v{dst}, v{hi}, v{lo}, s{sSEL}")
    p(f"""
    v_add_u32 v{cc}, 129, v{vLane}
    v_and_b32 v{t0}, 1, v{cc}
    v_mov_b32 v{t1}, 0x03020100
    v_mov_b32 v{t2}, 0x07060100
    v_cmp_eq_u32 vcc, 0, v{t0}
    v_cndmask_b32 v{sel}, v{t2}, v{t1}, vcc
    """)
    for h in range(2):
        if h: p(f"v_add_u32 v{cc}, 64, v{cc}")
        p(f"v_lshl_add_u32 v{ra}, v{cc}, 2, s{sREG}")
        p(f"ds_read2_b32 v[{e}:{e+1}], v{ra} offset0:0 offset1:1".replace(f"v{ra} offset0", f"v{ra} offset0") )
        p.items.pop()
        p(f"v_add_u32 v{ra}, {TB + 4*383}, v{ra}")
        p(f"ds_read2_b32 v[{e}:{e+1}], v{ra} offset0:0 offset1:1")
        kaddr()
        p("s_waitcnt lgkmcnt(0)")
        p(f"v_perm_b32 v{m1}, v{e}, v{e+1}, v{sel}")
        kwrite(e+1, e+1, m1, e, e)
    p(f"""
    v_add_u32 v{cc}, 65, v{vLane}
    v_lshl_add_u32 v{ra}, v{cc}, 3, s{sREG}
    v_add_u32 v{ra}, {TB + 4*254}, v{ra}
    ds_read2_b32 v[{e}:{e+1}], v{ra} offset0:0 offset1:1
    ds_read_b32 v{e+2}, v{ra} offset:8
    """)
    kaddr()
    p("s_waitcnt lgkmcnt(0)")
    mix(m1, e+1, e)
    kwrite(e+2, e+2, e+1, m1, e)
    p(f"""
    s_mov_b32 exec_lo, -1
    s_mov_b32 exec_hi, 0
    v_add_u32 v{cc}, 33, v{vLane}
    v_lshl_add_u32 v{ra}, v{cc}, 4, s{sREG}
    v_add_u32 v{ra}, {TB + 4*124}, v{ra}
    ds_read_b128 v[{e}:{e+3}], v{ra}
    ds_read_b32 v{e+4}, v{ra} offset:16
    """)
    kaddr()
    p("s_waitcnt lgkmcnt(0)")
    mix(m1, e+4, e+3); mix(m2, e+2, e+1)
    kwrite(e+4, m1, e+2, m2, e)
    p(f"""
    s_mov_b32 exec_lo, -1
    s_mov_b32 exec_hi, 15
    v_subrev_u32 v{cc}, 3, v{vLane}
    v_lshlrev_b32 v{ra}, 5, v{cc}
    v_add_u32 v{ra}, {TB - 32}, v{ra}
    v_add_u32 v{ra}, s{sREG}, v{ra}
    ds_read_b128 v[{e}:{e+3}], v{ra}
    ds_read_b128 v[{e+4}:{e+7}], v{ra} offset:16
    ds_read_b32 v{e+8}, v{ra} offset:32
    v_lshlrev_b32 v{t0}, 3, v{cc}
    v_add_u32 v{t0}, 1, v{t0}
    v_min_i32 v{t0}, 256, v{t0}
    v_lshlrev_b32 v{t0}, 2, v{t0}
    v_add_u32 v{t0}, {TB}, v{t0}
    v_add_u32 v{t0}, s{sREG}, v{t0}
    ds_read_b32 v{e+9}, v{t0}
    """)
    kaddr()
    p("s_waitcnt lgkmcnt(0)")
    mix(m1, e+9, e+8); mix(m2, e+7, e+6); mix(m3, e+5, e+4); mix(m4, e+3, e+2); mix(m5, e+1, e)
    kwrite(m1, m2, m3, m4, m5)
    p("s_mov_b64 exec, -1")
    V.release(e, 12)
    for r in (cc, ra, k0, k1, m1, m2, m3, m4, m5, sel): V.release(r)
    z = V.alloc(4, align=4)
    p(f"""
    v_mov_b32 v{z}, 0
    v_mov_b32 v{z+1}, 0
    v_mov_b32 v{z+2}, 0
    v_mov_b32 v{z+3}, 0
    v_lshl_add_u32 v{t0}, v{vLane}, 4, s{sREG}
    s_waitcnt lgkmcnt(0)
    s_mov_b32 exec_lo, 0xfffffff
    s_mov_b32 exec_hi, 0
    ds_write_b128 v{t0}, v[{z}:{z+3}] offset:{UOFF}
    ds_write_b128 v{t0}, v[{z}:{z+3}] offset:{UOFF+U1D}
    s_mov_b64 exec, -1
    s_waitcnt vmcnt(0) lgkmcnt(0)
    s_barrier
    """)
    V.release(z, 4)
    stamp(p)
    q = V.alloc(8, align=2)
    sS0, sS1 = 54, 55
    p(f"""
    s_mov_b32 s{sS0}, 0x05040100
    s_mov_b32 s{sS1}, 0x07060302
    v_lshlrev_b32 v{t0}, 3, v0
    v_add_u32 v{t0}, {UOFF + 448}, v{t0}
    """)
    for ch in range(8):
        j = ch >> 1; s = sS1 if ch & 1 else sS0
        b = q + 4 * (ch & 1)
        R = lambda row: vU + 4 * (row + 1) + j
        p(f"""
        v_perm_b32 v{b}, v{R(1)}, v{R(0)}, s{s}
        v_perm_b32 v{b+1}, v{R(3)}, v{R(2)}, s{s}
        v_perm_b32 v{b+2}, v{R(0)}, v{R(-1)}, s{s}
        v_perm_b32 v{b+3}, v{R(2)}, v{R(1)}, s{s}
        ds_write_b64 v{t0}, v[{b}:{b+1}]
        ds_write_b64 v{t0}, v[{b+2}:{b+3}] offset:{U1D}
        """)
        if ch < 7: p(f"v_add_u32 v{t0}, {REG}, v{t0}")
    V.release(q, 8); V.release(vU, 20); V.release(fr, 16)
    p("s_waitcnt lgkmcnt(0)\n s_barrier")
    stamp(p)
    acc = V.alloc(32, align=4); A = V.alloc(32, align=4); B = V.alloc(32, align=4)
    vB = V.alloc(); vB0 = V.alloc(); vAa = V.alloc()
    p(f"""
    v_and_b32 v{t0}, 1, v{vN}
    v_xor_b32 v{t0}, 1, v{t0}
    v_mul_u32_u24 v{t0}, {U1D}, v{t0}
    v_lshrrev_b32 v{t1}, 1, v{vN}
    v_lshlrev_b32 v{t1}, 6, v{t1}
    v_lshl_add_u32 v{t1}, v{vG}, 4, v{t1}
    v_add3_u32 v{vB}, v{t0}, v{t1}, s{sREG}
    v_add_u32 v{vB}, {UOFF + 448}, v{vB}
    v_mov_b32 v{vB0}, v{vB}
    v_and_b32 v{t0}, 1, v{vN}
    v_mul_u32_u24 v{t0}, {K1OFF - 4}, v{t0}
    v_lshlrev_b32 v{t1}, 2, v{vN}
    v_sub_u32 v{t0}, v{t0}, v{t1}
    v_lshl_add_u32 v{t0}, v{vG}, 4, v{t0}
    v_add_u32 v{t0}, {4096 - 3584}, v{t0}
    v_add_u32 v{vAa}, s{sREG}, v{t0}
    """)
    def ldA(t):
        p(f"ds_read_b64 v[{A+4*t}:{A+4*t+1}], v{vAa} offset:{512*(7-t)}")
        p(f"ds_read_b64 v[{A+4*t+2}:{A+4*t+3}], v{vAa} offset:{512*(7-t)+8}")
    def ldB(i):
        p(f"ds_read_b128 v[{B+4*i}:{B+4*i+3}], v{vB} offset:{512*i}")
    for k in range(32): p(f"v_mov_b32 v{acc+k}, 0")
    for t in range(8):
        ldA(t); ldB(7 - t)
    sR = 56
    p(f"s_mov_b32 s{sR}, 0")
    p.label("L_conv")
    p(f"v_subrev_u32 v{vB}, 64, v{vB}\n v_subrev_u32 v{vAa}, 64, v{vAa}")
    for t in range(8):
        order = list(range(7, t - 1, -1))
        for k, i in enumerate(order):
            if t == 0:
                if k == 0: p("s_waitcnt lgkmcnt(9)")
                if k == 5: p("s_waitcnt lgkmcnt(0)")
            p(f"v_mfma_f32_16x16x32_bf16 v[{acc+4*i}:{acc+4*i+3}], v[{A+4*t}:{A+4*t+3}], v[{B+4*(i-t)}:{B+4*(i-t)+3}], v[{acc+4*i}:{acc+4*i+3}]")
        ldA(t); ldB(7 - t)
    p(f"""
    s_add_u32 s{sR}, s{sR}, 1
    s_cmp_lt_u32 s{sR}, 8
    s_cbranch_scc1 L_conv
    """)
    stamp(p)
    p("s_waitcnt lgkmcnt(0)")
    for i in range(8):
        p(f"ds_read_b128 v[{B+4*i}:{B+4*i+3}], v{vB0} offset:{512*i}")
    s0 = V.alloc(); s1 = V.alloc(); ya = V.alloc()
    sM = 57
    p(f"""
    s_mov_b32 s{sM}, 0xffff0000
    v_and_b32 v{t0}, 1, v{vN}
    v_cmp_eq_u32 vcc, 0, v{t0}
    v_mov_b32 v{t1}, 0x05040100
    v_mov_b32 v{t2}, 0x01000504
    v_cndmask_b32 v{s0}, v{t2}, v{t1}, vcc
    v_mov_b32 v{t1}, 0x07060302
    v_mov_b32 v{t2}, 0x03020706
    v_cndmask_b32 v{s1}, v{t2}, v{t1}, vcc
    v_lshrrev_b32 v{t1}, 1, v{vN}
    v_lshlrev_b32 v{t1}, 6, v{t1}
    v_lshl_add_u32 v{t1}, v{vG}, 4, v{t1}
    v_lshl_add_u32 v{t1}, v{t0}, 3, v{t1}
    v_add_u32 v{ya}, s{sREG}, v{t1}
    s_waitcnt lgkmcnt(0)
    """)
    for i in range(8):
        a = acc + 4 * i; b = B + 4 * i; pk = A + 4 * i
        for r in range(4):
            p(f"v_and_b32 v{b+r}, s{sM}, v{b+r}")
        for r in range(4):
            p(f"v_fma_f32 v{a+r}, v{b+r}, v{V.names['D'][0]}, v{a+r}")
        p(f"""
        v_cvt_pk_bf16_f32 v{pk}, v{a}, v{a+1}
        v_cvt_pk_bf16_f32 v{pk+1}, v{a+2}, v{a+3}
        v_cndmask_b32 v{pk+2}, v{pk+1}, v{pk}, vcc
        v_cndmask_b32 v{pk+3}, v{pk}, v{pk+1}, vcc
        """)
        p(f"v_mov_b32_dpp v{pk}, v{pk+3} quad_perm:[1,0,3,2] row_mask:0xf bank_mask:0xf")
        p(f"""
        v_perm_b32 v{a}, v{pk}, v{pk+2}, v{s0}
        v_perm_b32 v{a+1}, v{pk}, v{pk+2}, v{s1}
        ds_write_b64 v{ya}, v[{a}:{a+1}] offset:{512*i}
        """)
    p("s_waitcnt lgkmcnt(0)\n s_barrier")
    stamp(p)
    ta = V.alloc(); tb = V.alloc(); go = V.alloc()
    p(f"""
    v_lshrrev_b32 v{t0}, 2, v{vI}
    v_mul_u32_u24 v{t0}, {REG}, v{t0}
    v_and_b32 v{t1}, 3, v{vI}
    v_lshlrev_b32 v{t1}, 3, v{t1}
    v_lshl_add_u32 v{t1}, v{vG}, 5, v{t1}
    s_lshl_b32 s{sT0}, s{sW}, 9
    v_add3_u32 v{ta}, v{t0}, v{t1}, s{sT0}
    v_add_u32 v{tb}, {4*REG}, v{ta}
    s_lshl_b32 s{sT0}, s{sW}, 8
    v_add_u32 v{go}, s{sT0}, v{vLane}
    v_mul_u32_u24 v{go}, 2560, v{go}
    s_lshl_b32 s{sT0}, s{sCG}, 4
    v_add_u32 v{go}, s{sT0}, v{go}
    """)
    for it in range(4):
        o = A + 4 * it
        p(f"ds_read_b64_tr_b16 v[{o}:{o+1}], v{ta} offset:{128*it}")
        p(f"ds_read_b64_tr_b16 v[{o+2}:{o+3}], v{tb} offset:{128*it}")
    for it in range(4):
        o = A + 4 * it
        p(f"s_waitcnt lgkmcnt({6-2*it})")
        p(f"s_mov_b32 s{sT0}, {it*64*2560}")
        p(f"buffer_store_dwordx4 v[{o}:{o+3}], v{go}, s[{SRD_O}:{SRD_O+3}], s{sT0} offen")
    dbgmax(p, 13, t0, t1, sW)
    stamp(p)
    if common.DIAG:
        p('s_waitcnt vmcnt(0)')
        stamp(p)
        stamps_flush(p, t0, t1)
    return V

import struct
def f32bits(x):
    return struct.unpack("<I", struct.pack("<f", float(x)))[0]
```

```python
from common import *
import common

SLOT = 40960
WOFF = 24576
WO_IMG = 0
PHI = 81920
RS = 296
AST = 139264
RED = 81920
OTR = 114688
WS_NONCE = 0
WS_F1 = 4096
WS_F2 = 8192
WS_PART = 65536
PART_STRIDE = 3456
WS_O = 1 << 20
O_STRIDE = 15360
WS_SIZE = 16 << 20
SPIN_MAX = 1 << 16

def gen_part_b(p):
    V = VAlloc(256, start=1)
    sJ, sI, sT, sRB, sHP, sW, sWR, sTY = 32, 33, 34, 35, 36, 37, 38, 39
    SRD_X, SRD_W, SRD_WS, SRD_WO, SRD_O = 40, 44, 48, 52, 56
    sT0, sT1, sT2 = 60, 61, 62
    sNONCE = 80; sKC = 81; sS = 82; sSLOTD = 83; sXO = 84; sWO = 85; sM0 = 86; sROW0 = 87; sCNT = 88
    sL2E = 89; sEX = 90
    sRT, sCG = 92, 93
    sDSLOT = 94
    p(f"""
    s_and_b32 s{sJ}, s2, 7
    s_lshr_b32 s{sI}, s2, 3
    s_lshr_b32 s{sT0}, s{sJ}, 2
    s_mul_i32 s{sT0}, s{sT0}, 22
    s_add_u32 s{sT}, s{sT0}, s{sI}
    s_lshr_b32 s{sRB}, s{sT}, 2
    s_and_b32 s{sT0}, s{sT}, 3
    s_and_b32 s{sT1}, s{sJ}, 3
    s_lshl_b32 s{sT1}, s{sT1}, 2
    s_add_u32 s{sHP}, s{sT1}, s{sT0}
    s_mul_i32 s{sROW0}, s{sRB}, 192
    s_mul_i32 s{sT1}, s{sT0}, 3
    s_lshl_b32 s{sT2}, s{sRB}, 1
    s_add_u32 s{sKC}, s{sT1}, s{sT2}
    s_mul_i32 s{sT1}, s{sKC}, 205
    s_lshr_b32 s{sT1}, s{sT1}, 11
    s_mul_i32 s{sT1}, s{sT1}, 10
    s_sub_u32 s{sKC}, s{sKC}, s{sT1}
    s_mov_b32 s{sL2E}, {LOG2E:#x}
    s_mov_b32 s100, {-3*SLOT & 0xffffffff:#x}
    """)
    vLane = V.alloc(); vI = V.alloc(); vG = V.alloc(); t0 = V.alloc(); t1 = V.alloc(); t2 = V.alloc(); t3 = V.alloc()
    p(f"""
    v_lshrrev_b32 v{t0}, 6, v0
    v_and_b32 v{vLane}, 63, v0
    v_readfirstlane_b32 s{sW}, v{t0}
    v_and_b32 v{vI}, 15, v{vLane}
    v_lshrrev_b32 v{vG}, 4, v{vLane}
    s_and_b32 s{sWR}, s{sW}, 3
    s_lshr_b32 s{sTY}, s{sW}, 2
    s_waitcnt lgkmcnt(0)
    """)
    srd(p, SRD_X, S_X, 2048 * 1280)
    srd(p, SRD_W, S_WQKV, 640 * 3840)
    srd(p, SRD_WS, S_WS, WS_SIZE)
    srd(p, SRD_WO, S_WO, 640 * 1280)
    srd(p, SRD_O, S_OUT, 2048 * 2560)
    vNon = V.alloc()
    p(f"""
    s_cmp_lg_u32 s2, 0
    s_cbranch_scc1 L_b_nononce
    s_cmp_lg_u32 s{sW}, 0
    s_cbranch_scc1 L_b_nononce
    v_mov_b32 v{t0}, 0
    global_load_dword v{vNon}, v{t0}, s[{S_WS}:{S_WS+1}] sc1
    s_waitcnt vmcnt(0)
    v_add_u32 v{vNon}, 1, v{vNon}
    v_max_u32 v{vNon}, 1, v{vNon}
    global_store_dword v{t0}, v{vNon}, s[{S_DBG}:{S_DBG+1}] sc1
    global_store_dword v{t0}, v{vNon}, s[{S_WS}:{S_WS+1}] sc1
    s_waitcnt vmcnt(0)
    """)
    p.label("L_b_nononce")
    vWp = V.alloc(4, align=4)
    p(f"""
    s_mul_i32 s{sT0}, s{sHP}, 1600
    v_lshlrev_b32 v{t0}, 4, v{vLane}
    v_add_u32 v{t0}, s{sT0}, v{t0}
    v_add_u32 v{t1}, 1024, v{t0}
    """)
    vWp2 = V.alloc(4, align=4)
    p(f"""
    global_load_dwordx4 v[{vWp}:{vWp+3}], v{t0}, s[{S_WPHI}:{S_WPHI+1}]
    s_mov_b32 exec_lo, -1
    s_mov_b32 exec_hi, 15
    global_load_dwordx4 v[{vWp2}:{vWp2+3}], v{t1}, s[{S_WPHI}:{S_WPHI+1}]
    s_mov_b64 exec, -1
    """)
    vXo = V.alloc(3, align=1); vWo = V.alloc()
    for e in range(3):
        p(f"""
        s_mul_i32 s{sT0}, s{sW}, 24
        s_add_u32 s{sT0}, s{sT0}, {8*e}
        v_lshrrev_b32 v{t0}, 3, v{vLane}
        v_add_u32 v{t0}, s{sT0}, v{t0}
        v_bfe_u32 v{t1}, v{t0}, 1, 3
        v_and_b32 v{t2}, 7, v{vLane}
        v_xor_b32 v{t1}, v{t1}, v{t2}
        v_add_u32 v{t0}, s{sROW0}, v{t0}
        v_mul_u32_u24 v{t0}, 1280, v{t0}
        v_lshl_add_u32 v{vXo+e}, v{t1}, 4, v{t0}
        """)
    p(f"""
    s_and_b32 s{sT0}, s{sW}, 1
    s_lshl_b32 s{sT0}, s{sT0}, 3
    v_lshlrev_b32 v{t0}, 1, v{vG}
    v_add_u32 v{t0}, s{sT0}, v{t0}
    v_xor_b32 v{t0}, v{t0}, v{vI}
    v_min_u32 v{t0}, 14, v{t0}
    ; c<5: 1280+16c ; c<8: 2560+16(c-5) ; c<13: 16(c-8) ; else 2560+16(c-10)
    v_lshlrev_b32 v{t1}, 4, v{t0}
    v_add_u32 v{t2}, {2560-160}, v{t1}
    v_subrev_u32 v{t3}, 128, v{t1}
    v_cmp_gt_u32 vcc, 13, v{t0}
    v_cndmask_b32 v{t2}, v{t2}, v{t3}, vcc
    v_add_u32 v{t3}, {2560-80}, v{t1}
    v_cmp_gt_u32 vcc, 8, v{t0}
    v_cndmask_b32 v{t2}, v{t2}, v{t3}, vcc
    v_add_u32 v{t3}, 1280, v{t1}
    v_cmp_gt_u32 vcc, 5, v{t0}
    v_cndmask_b32 v{t2}, v{t2}, v{t3}, vcc
    s_mul_i32 s{sT0}, s{sHP}, 80
    s_mul_i32 s{sT1}, s{sW}, {8*3840}
    s_add_u32 s{sT0}, s{sT0}, s{sT1}
    v_mul_u32_u24 v{t0}, 3840, v{vG}
    v_add3_u32 v{vWo}, v{t0}, v{t2}, s{sT0}
    """)
    def dma_stage(slot_sgpr_or_const, const=True):
        L = []
        L.append(f"s_lshl_b32 s{sXO}, s{sKC}, 7")
        L.append(f"s_mul_i32 s{sWO}, s{sKC}, {64*3840}")
        if const:
            L.append(f"s_mul_i32 s{sM0}, s{sW}, 3072")
            L.append(f"s_add_u32 s{sM0}, s{sM0}, {slot_sgpr_or_const}")
        else:
            L.append(f"s_mul_i32 s{sM0}, s{sW}, 3072")
            L.append(f"s_add_u32 s{sM0}, s{sM0}, s{slot_sgpr_or_const}")
        grp = []
        for e in range(3):
            grp.append([f"s_add_u32 m0, s{sM0}, {1024*e}", f"buffer_load_dwordx4 v{vXo+e}, s[{SRD_X}:{SRD_X+3}], s{sXO} offen lds"])
        pre = [f"s_lshl_b32 s{sT2}, s{sW}, 10", f"s_sub_u32 s{sM0}, s{sM0}, s{sT2}"]
        grp.append(pre + [f"s_add_u32 m0, s{sM0}, {WOFF}", f"buffer_load_dwordx4 v{vWo}, s[{SRD_W}:{SRD_W+3}], s{sWO} offen lds"])
        grp.append([f"s_add_u32 s{sWO}, s{sWO}, {4*3840}", f"s_add_u32 m0, s{sM0}, {WOFF+1024}", f"buffer_load_dwordx4 v{vWo}, s[{SRD_W}:{SRD_W+3}], s{sWO} offen lds"])
        post = [f"s_add_u32 s{sKC}, s{sKC}, 1", f"s_cmp_eq_u32 s{sKC}, 10", f"s_cselect_b32 s{sKC}, 0, s{sKC}"]
        return L, grp, post
    def emit_dma(slot, const=True):
        L, grp, post = dma_stage(slot, const)
        for x in L: p(x)
        for g in grp:
            for x in g: p(x)
        for x in post: p(x)
    for s in range(3):
        emit_dma(s * SLOT)
    stamp(p, 1)
    WPB = 3 * SLOT
    vFA = V.alloc(16, align=4)
    FA, FB, FC0, FC1 = vFA, vFA + 4, vFA + 8, vFA + 12
    p(f"""
    s_lshl_b32 s{sT0}, s{sW}, 11
    s_add_u32 s{sT0}, s{sT0}, {WPB}
    v_lshl_add_u32 v{t0}, v{vLane}, 4, s{sT0}
    s_waitcnt vmcnt(15)
    ds_write_b128 v{t0}, v[{vWp}:{vWp+3}]
    s_mov_b32 exec_lo, -1
    s_mov_b32 exec_hi, 15
    ds_write_b128 v{t0}, v[{vWp2}:{vWp2+3}] offset:1024
    s_mov_b64 exec, -1
    v_lshrrev_b32 v{t1}, 2, v{vI}
    v_mul_u32_u24 v{t1}, 5, v{t1}
    v_and_b32 v{t2}, 3, v{vI}
    v_add_u32 v{t2}, v{t1}, v{t2}
    v_lshlrev_b32 v{t2}, 1, v{t2}
    v_mul_u32_u24 v{t3}, 160, v{vG}
    v_add3_u32 v{t2}, v{t2}, v{t3}, s{sT0}      ; t2: f = 5(m>>2)+(m&3)
    v_add_u32 v{t1}, 4, v{t1}
    v_lshlrev_b32 v{t1}, 1, v{t1}
    v_add3_u32 v{t1}, v{t1}, v{t3}, s{sT0}      ; t1: f = 5(m>>2)+4
    s_waitcnt lgkmcnt(0)
    """)
    GT = V.alloc(32, align=1)
    for k in range(32): p(f"v_mov_b32 v{GT+k}, 0")
    def gather(dst, addr, off, mask):
        p(f"s_mov_b32 exec_lo, {mask & 0xffffffff:#x}\n s_mov_b32 exec_hi, {mask >> 32:#x}")
        for e in range(4):
            p(f"ds_read_u16 v{GT + 2*(dst - vFA) + e}, v{addr} offset:{off + 40*e}")
    G0 = 0xFFFF; G01 = 0xFFFFFFFF; G123 = 0xFFFFFFFFFFFF0000; ALL = (1 << 64) - 1
    R0 = 0x1111111111111111; R1 = 0x2222222222222222
    gather(FA, t2, 0, ALL);            gather(FA + 2, t2, 16*40, G0)
    gather(FB, t2, 800 - 160, G123);   gather(FB + 2, t2, 800 + 12*40, G01)
    gather(FC0, t1, 0, R0);            gather(FC0 + 2, t1, 16*40, G0 & R0)
    gather(FC1, t1, 800 - 160, G123 & R1); gather(FC1 + 2, t1, 800 + 12*40, G01 & R1)
    p("s_mov_b64 exec, -1\n s_waitcnt lgkmcnt(0)")
    for k in range(16):
        p(f"v_lshl_or_b32 v{vFA+k}, v{GT+2*k+1}, 16, v{GT+2*k}")
    V.release(GT, 32)
    V.release(vWp, 4); V.release(vWp2, 4)
    vXa = V.alloc(2, align=1); vWa = V.alloc(4, align=1)
    for ks in range(2):
        p(f"""
        v_add_u32 v{t0}, {4*ks}, v{vG}
        v_lshrrev_b32 v{t1}, 1, v{vI}
        v_xor_b32 v{t0}, v{t0}, v{t1}
        v_lshlrev_b32 v{t0}, 4, v{t0}
        s_mul_i32 s{sT0}, s{sWR}, 48
        v_add_u32 v{t1}, s{sT0}, v{vI}
        v_lshl_add_u32 v{vXa+ks}, v{t1}, 7, v{t0}
        """)
    for mt in range(4):
        p(f"""
        v_and_b32 v{t0}, 1, v{vG}
        v_xor_b32 v{t0}, s{sTY}, v{t0}
        v_lshlrev_b32 v{t0}, 3, v{t0}
        v_lshrrev_b32 v{t1}, 2, v{vI}
        v_xor_b32 v{t2}, {mt}, v{t1}
        v_lshl_add_u32 v{t0}, v{t2}, 1, v{t0}
        v_bfe_u32 v{t2}, v{vI}, 1, 1
        v_add_u32 v{t0}, v{t0}, v{t2}
        v_lshlrev_b32 v{t0}, 4, v{t0}
        v_and_b32 v{t2}, 1, v{vI}
        v_lshl_add_u32 v{t0}, v{t2}, 3, v{t0}
        v_lshl_add_u32 v{t1}, v{vG}, 3, v{t1}
        v_lshl_add_u32 v{t0}, v{t1}, 8, v{t0}
        v_add_u32 v{vWa+mt}, {WOFF}, v{t0}
        """)
    acc = V.alloc(48, align=4)
    XF = [V.alloc(12, align=4), V.alloc(12, align=4)]
    WF = [V.alloc(16, align=4), V.alloc(16, align=4)]
    def reads(ks):
        L = []
        for mt in range(4):
            for h in range(2):
                L.append(f"ds_read_b64_tr_b16 v[{WF[ks]+4*mt+2*h}:{WF[ks]+4*mt+2*h+1}], v{vWa+mt} offset:{8192*ks + 1024*h}")
        X = [f"ds_read_b128 v[{XF[ks]+4*nt}:{XF[ks]+4*nt+3}], v{vXa+ks} offset:{2048*nt}" for nt in range(3)]
        return [L[0], L[1], X[0], X[1], X[2]] + L[2:]
    def mfmas(ks, first=False):
        L = []
        for mt in range(4):
            for nt in range(3):
                a = acc + 16*nt + 4*mt
                c = "0" if first else f"v[{a}:{a+3}]"
                L.append(f"v_mfma_f32_16x16x32_bf16 v[{a}:{a+3}], v[{WF[ks]+4*mt}:{WF[ks]+4*mt+3}], v[{XF[ks]+4*nt}:{XF[ks]+4*nt+3}], {c}")
        return L
    def interleave(main, fill):
        n = len(main); k = len(fill); j = 0
        for i, m in enumerate(main):
            p(m)
            while j < k and (j + 1) * n <= (i + 1) * k + 0:
                for x in fill[j]: p(x)
                j += 1
        while j < k:
            for x in fill[j]: p(x)
            j += 1
    def advance():
        return [[f"v_add_u32 v{r}, s{sSLOTD}, v{r}"] for r in (vXa, vXa+1, vWa, vWa+1, vWa+2, vWa+3)]
    for k in range(48): p(f"v_mov_b32 v{acc+k}, 0")
    p("s_waitcnt vmcnt(10) lgkmcnt(0)\n s_barrier")
    stamp(p, 2)
    emit_dma(3 * SLOT)
    for x in reads(0): p(x)
    p(f"s_mov_b32 s{sS}, 0\n s_mov_b32 s{sDSLOT}, 0")
    def half0():
        p("s_waitcnt lgkmcnt(0)")
        interleave(mfmas(0), [[x] for x in reads(1)])
    def slot_delta():
        p(f"""
        s_and_b32 s{sT0}, s{sS}, 3
        s_cmp_eq_u32 s{sT0}, 3
        s_cselect_b32 s{sSLOTD}, s100, {SLOT}
        """)
    def half1(vm, dma, nxt=True, extra=None):
        slot_delta()
        p(f"s_waitcnt vmcnt({vm}) lgkmcnt(0)" if vm is not None else "s_waitcnt lgkmcnt(0)")
        if nxt:
            p("s_barrier")
            for g in advance():
                for x in g: p(x)
            fill = [[x] for x in reads(0)]
            if dma:
                L, grp, post = dma_stage(sDSLOT, const=False)
                for x in L: p(x)
                fill = fill[:3] + [grp[0]] + fill[3:5] + [grp[1]] + fill[5:7] + [grp[2]] + fill[7:9] + [grp[3]] + fill[9:] + [grp[4]]
                fill.append(post)
                fill.append([f"s_add_u32 s{sDSLOT}, s{sDSLOT}, {SLOT}", f"s_cmp_eq_u32 s{sDSLOT}, {4*SLOT}", f"s_cselect_b32 s{sDSLOT}, 0, s{sDSLOT}"])
            if extra: fill.append(extra)
            interleave(mfmas(1), fill)
        else:
            for m in mfmas(1): p(m)
    p.label("L_b_main")
    half0(); half1(10, True)
    p(f"s_add_u32 s{sS}, s{sS}, 1\n s_cmp_lt_u32 s{sS}, 6\n s_cbranch_scc1 L_b_main")
    half0(); half1(10, False, extra=[f"v_mov_b32 v{t0}, 0", f"global_load_dword v{vNon}, v{t0}, s[{S_DBG}:{S_DBG+1}] sc1"])
    p(f"s_add_u32 s{sS}, s{sS}, 1")
    half0(); half1(6, False); p(f"s_add_u32 s{sS}, s{sS}, 1")
    half0(); half1(1, False); p(f"s_add_u32 s{sS}, s{sS}, 1")
    half0(); half1(None, False, nxt=False)
    stamp(p, 3)
    V.release(XF[0], 12); V.release(XF[1], 12); V.release(WF[0], 16); V.release(WF[1], 16)
    V.release(vXa, 2); V.release(vWa, 4); V.release(vXo, 3); V.release(vWo)
    p(f"""
    s_waitcnt vmcnt(0)
    s_mov_b32 s{sCNT}, 0
    """)
    p.label("L_b_nonce")
    p(f"""
    v_readfirstlane_b32 s{sNONCE}, v{vNon}
    s_cmp_lg_u32 s{sNONCE}, 0
    s_cbranch_scc1 L_b_nonce_ok
    s_add_u32 s{sCNT}, s{sCNT}, 1
    s_cmp_gt_u32 s{sCNT}, {SPIN_MAX}
    s_cbranch_scc1 L_b_nonce_ok
    v_mov_b32 v{t0}, 0
    global_load_dword v{vNon}, v{t0}, s[{S_DBG}:{S_DBG+1}] sc1
    s_waitcnt vmcnt(0)
    s_branch L_b_nonce
    """)
    p.label("L_b_nonce_ok")
    P = V.alloc(3 * 8, align=2)
    vRow = V.alloc()
    vV2 = V.alloc(); vV3 = V.alloc()
    p(f"""
    s_mul_i32 s{sT0}, s{sWR}, 48
    v_add_u32 v{t0}, s{sT0}, v{vI}
    v_mul_u32_u24 v{vRow}, {RS}, v{t0}
    v_add_u32 v{vRow}, {PHI}, v{vRow}
    s_mul_i32 s{sT0}, s{sTY}, 48
    v_lshlrev_b32 v{t1}, 3, v{vG}
    v_add3_u32 v{vV2}, v{t1}, v{vRow}, s{sT0}
    v_add_u32 v{vV2}, {192 - 16}, v{vV2}
    ; t3 part: K: 192 + 2*(8+4g) ; Q: g<2: 192+2*(32+4g), g>=2: 280 + 8(g-2)
    v_add_u32 v{t2}, {192 + 16}, v{t1}
    v_add_u32 v{t3}, {192 + 64}, v{t1}
    v_cmp_gt_u32 vcc, 2, v{vG}
    v_add_u32 v{vV3}, {280 - 16}, v{t1}
    v_cndmask_b32 v{t3}, v{vV3}, v{t3}, vcc
    s_cmp_eq_u32 s{sTY}, 0
    s_cselect_b64 vcc, -1, 0
    v_cndmask_b32 v{t3}, v{t3}, v{t2}, vcc
    v_add_u32 v{vV3}, v{t3}, v{vRow}
    """)
    def cvtP(nt, mts):
        for mt in mts:
            a = acc + 16*nt + 4*mt
            p(f"v_cvt_pk_bf16_f32 v{P+8*nt+2*mt}, v{a}, v{a+1}")
            p(f"v_cvt_pk_bf16_f32 v{P+8*nt+2*mt+1}, v{a+2}, v{a+3}")
    for nt in range(3):
        cvtP(nt, (2, 3))
        p(f"""
        s_mov_b32 exec_lo, 0
        ds_write_b64 v{vV2}, v[{P+8*nt+4}:{P+8*nt+5}] offset:{16*RS*nt}
        s_mov_b32 exec_lo, -1
        ds_write_b64 v{vV3}, v[{P+8*nt+6}:{P+8*nt+7}] offset:{16*RS*nt}
        """)
    for nt in range(3):
        cvtP(nt, (0, 1))
    if common.DUMP:
        p(f"""
        s_lshl_b32 s{sT0}, s2, 3
        s_add_u32 s{sT0}, s{sT0}, s{sW}
        s_mul_i32 s{sT0}, s{sT0}, {24*256}
        s_add_u32 s{sT0}, s{sT0}, {4<<20}
        v_lshl_add_u32 v{t0}, v{vLane}, 2, s{sT0}
        """)
        for k in range(24):
            p(f"buffer_store_dword v{P+k}, v{t0}, s[{SRD_WS}:{SRD_WS+3}], 0 offen offset:{256*(k%16)}")
            if k == 15: p(f"v_add_u32 v{t0}, 4096, v{t0}")
        p("s_waitcnt vmcnt(0)")
    V.release(acc, 48)
    T = V.alloc(12, align=4)
    E = V.alloc(20, align=2)
    S = V.alloc(8, align=2)
    def softmax(nt, outs):
        X01 = P + 8*nt; X12 = P + 8*nt + 2
        p(f"""
        v_mfma_f32_16x16x32_bf16 v[{T}:{T+3}], v[{FA}:{FA+3}], v[{X01}:{X01+3}], 0
        v_mfma_f32_16x16x32_bf16 v[{T+4}:{T+7}], v[{FB}:{FB+3}], v[{X12}:{X12+3}], 0
        v_mfma_f32_16x16x32_bf16 v[{T+8}:{T+11}], v[{FC0}:{FC0+3}], v[{X01}:{X01+3}], 0
        v_mfma_f32_16x16x32_bf16 v[{T+8}:{T+11}], v[{FC1}:{FC1+3}], v[{X12}:{X12+3}], v[{T+8}:{T+11}]
        """)
        x = [[T, T+1, T+2, T+3, T+8], [T+4, T+5, T+6, T+7, T+9]]
        a0, b0, a1, b1, c, d = S, S+1, S+2, S+3, S+4, S+5
        for h, (a, b) in enumerate(((a0, b0), (a1, b1))):
            xs = x[h]
            p(f"v_max3_f32 v{a}, v{xs[0]}, v{xs[1]}, v{xs[2]}")
            p(f"v_max3_f32 v{b}, -v{xs[0]}, -v{xs[1]}, -v{xs[2]}")
            p(f"v_max3_f32 v{a}, v{a}, v{xs[3]}, v{xs[4]}")
            p(f"v_max3_f32 v{b}, v{b}, -v{xs[3]}, -v{xs[4]}")
        def allred(op):
            p(f"""
            v_permlane16_swap_b32 v{a0}, v{b0}
            v_permlane16_swap_b32 v{a1}, v{b1}
            {op} v{a0}, v{a0}, v{b0}
            {op} v{a1}, v{a1}, v{b1}
            v_permlane32_swap_b32 v{a0}, v{a1}
            {op} v{c}, v{a0}, v{a1}
            """)
        def bcast():
            p(f"""
            v_mov_b32 v{d}, v{c}
            v_permlane32_swap_b32 v{c}, v{d}
            v_mov_b32 v{a0}, v{c}
            v_mov_b32 v{a1}, v{d}
            v_permlane16_swap_b32 v{a0}, v{c}
            v_permlane16_swap_b32 v{a1}, v{d}
            """)
        allred("v_max_f32")
        p(f"v_mul_f32 v{c}, s{sL2E}, v{c}")
        bcast()
        M = [(a0, c), (a1, d)]
        for h in range(2):
            mp, mn = M[h]
            for j in range(5):
                p(f"v_fma_f32 v{E+10*h+j}, v{x[h][j]}, s{sL2E}, -v{mp}")
                p(f"v_fma_f32 v{E+10*h+5+j}, -v{x[h][j]}, s{sL2E}, -v{mn}")
        for k in range(20):
            p(f"v_exp_f32 v{E+k}, v{E+k}")
        for h, (a, b) in enumerate(((a0, b0), (a1, b1))):
            e = E + 10*h
            p(f"v_add_f32 v{a}, v{e}, v{e+1}")
            p(f"v_add_f32 v{b}, v{e+5}, v{e+6}")
            for j in range(2, 5):
                p(f"v_add_f32 v{a}, v{a}, v{e+j}")
                p(f"v_add_f32 v{b}, v{b}, v{e+5+j}")
        allred("v_add_f32")
        p(f"v_rcp_f32 v{c}, v{c}")
        bcast()
        for h in range(2):
            rp, rn = M[h]
            e = E + 10*h
            for j in range(5):
                p(f"v_mul_f32 v{e+j}, v{e+j}, v{rp}")
                p(f"v_mul_f32 v{e+5+j}, v{e+5+j}, v{rn}")
            for k in range(5):
                p(f"v_cvt_pk_bf16_f32 v{outs[h]+k}, v{e+2*k}, v{e+2*k+1}")
    p(f"s_cmp_eq_u32 s{sTY}, 0\n s_cbranch_scc0 L_b_qtype")
    stamp(p, 4)
    O = V.alloc(12, align=2)
    p(f"""
    s_mul_i32 s{sT0}, s{sWR}, 48
    s_add_u32 s{sT0}, s{sT0}, s{sROW0}
    v_add_u32 v{t0}, s{sT0}, v{vI}
    v_mov_b32 v{t3}, 0
    v_mov_b32 v{t1}, 0x3f80
    """)
    on = V.alloc(2, align=2)
    for nt in range(3):
        p(f"""
        v_cmp_gt_u32 vcc, 0x800, v{t0}
        v_cndmask_b32 v{on}, v{t3}, v{t1}, vcc
        v_mov_b32 v{on+1}, 0
        ds_write_b64 v{vRow}, v[{on}:{on+1}] offset:{16*RS*nt + 272}
        v_add_u32 v{t0}, 16, v{t0}
        """)
    V.release(on, 2)
    vPh = V.alloc()
    p(f"v_mul_u32_u24 v{t0}, 24, v{vG}\n v_add_u32 v{vPh}, v{t0}, v{vRow}")
    for nt in range(3):
        softmax(nt, [O, O+6])
        for h in range(2):
            o = O + 6*h; off = 16*RS*nt + 96*h
            p(f"""
            ds_write_b64 v{vPh}, v[{o}:{o+1}] offset:{off}
            ds_write_b64 v{vPh}, v[{o+2}:{o+3}] offset:{off+8}
            ds_write_b32 v{vPh}, v{o+4} offset:{off+16}
            """)
    p("s_waitcnt lgkmcnt(0)\n s_barrier")
    stamp(p, 5)
    sHD, sHF = 95, 96
    vAa = V.alloc(); vA2 = V.alloc(); vB0 = V.alloc(); vB1 = V.alloc()
    p(f"""
    s_and_b32 s{sHD}, s{sWR}, 1
    s_lshr_b32 s{sHF}, s{sWR}, 1
    v_lshrrev_b32 v{t0}, 2, v{vI}
    v_lshl_add_u32 v{t0}, v{vG}, 3, v{t0}
    v_mul_u32_u24 v{t0}, {RS}, v{t0}
    v_add_u32 v{t0}, {PHI}, v{t0}
    v_and_b32 v{t1}, 3, v{vI}
    v_mul_u32_u24 v{t2}, 24, v{t1}
    s_mul_i32 s{sT0}, s{sHD}, 96
    v_add3_u32 v{vA2}, v{t0}, v{t2}, s{sT0}
    s_lshl_b32 s{sT1}, s{sHF}, 3
    v_add_u32 v{vAa}, s{sT1}, v{vA2}
    v_add_u32 v{vA2}, 16, v{vA2}              ; mt = 2
    s_mul_i32 s{sT0}, s{sHD}, 40
    v_lshlrev_b32 v{t2}, 3, v{t1}
    v_add3_u32 v{vB0}, v{t0}, v{t2}, s{sT0}
    v_add_u32 v{vB0}, 192, v{vB0}
    s_add_u32 s{sT0}, s{sT0}, 224
    v_mov_b32 v{t2}, 272
    v_mov_b32 v{t3}, s{sT0}
    v_cmp_eq_u32 vcc, s{sHD}, v{t1}
    v_cndmask_b32 v{t2}, v{t2}, v{t3}, vcc
    v_add_u32 v{vB1}, v{t0}, v{t2}
    """)
    KA = V.alloc(8, align=4); KB = V.alloc(8, align=4); KD = V.alloc(12, align=4)
    for ks in range(6):
        off = 32 * RS * ks
        for h in range(2):
            p(f"ds_read_b64_tr_b16 v[{KA+2*h}:{KA+2*h+1}], v{vAa} offset:{off + 4*RS*h}")
            p(f"ds_read_b64_tr_b16 v[{KA+4+2*h}:{KA+4+2*h+1}], v{vA2} offset:{off + 4*RS*h}")
            p(f"ds_read_b64_tr_b16 v[{KB+2*h}:{KB+2*h+1}], v{vB0} offset:{off + 4*RS*h}")
            p(f"ds_read_b64_tr_b16 v[{KB+4+2*h}:{KB+4+2*h+1}], v{vB1} offset:{off + 4*RS*h}")
        p("s_waitcnt lgkmcnt(0)")
        c = lambda k: "0" if ks == 0 else f"v[{KD+4*k}:{KD+4*k+3}]"
        p(f"v_mfma_f32_16x16x32_bf16 v[{KD}:{KD+3}], v[{KA}:{KA+3}], v[{KB}:{KB+3}], {c(0)}")
        p(f"v_mfma_f32_16x16x32_bf16 v[{KD+4}:{KD+7}], v[{KA}:{KA+3}], v[{KB+4}:{KB+7}], {c(1)}")
        p(f"s_cmp_eq_u32 s{sHF}, 0\n s_cbranch_scc0 L_b_kv1_{ks}")
        p(f"v_mfma_f32_16x16x32_bf16 v[{KD+8}:{KD+11}], v[{KA+4}:{KA+7}], v[{KB}:{KB+3}], {c(2)}")
        p(f"s_branch L_b_kv2_{ks}")
        p.label(f"L_b_kv1_{ks}")
        p(f"v_mfma_f32_16x16x32_bf16 v[{KD+8}:{KD+11}], v[{KA+4}:{KA+7}], v[{KB+4}:{KB+7}], {c(2)}")
        p.label(f"L_b_kv2_{ks}")
        p("s_nop 0")
    vP0 = V.alloc(); vP1 = V.alloc()
    sMK = 90
    p(f"""
    s_lshl_b32 s{sT0}, s{sRB}, 4
    s_add_u32 s{sT0}, s{sT0}, s{sHP}
    s_mul_i32 s{sT0}, s{sT0}, {PART_STRIDE}
    s_mul_i32 s{sT1}, s{sHD}, 1680
    s_add_u32 s{sT0}, s{sT0}, s{sT1}
    s_add_u32 s{sT0}, s{sT0}, {WS_PART}
    v_mul_u32_u24 v{t0}, 20, v{vG}
    v_mul_u32_u24 v{t1}, 80, v{vI}
    v_add3_u32 v{vP0}, v{t0}, v{t1}, s{sT0}
    v_and_b32 v{t1}, 3, v{vI}
    v_add_u32 v{t1}, 16, v{t1}
    v_lshrrev_b32 v{t2}, 2, v{vI}
    v_cmp_eq_u32 vcc, s{sHD}, v{t2}
    v_mov_b32 v{t3}, 20
    v_cndmask_b32 v{t1}, v{t3}, v{t1}, vcc
    v_mul_u32_u24 v{t1}, 80, v{t1}
    v_add3_u32 v{vP1}, v{t0}, v{t1}, s{sT0}
    s_lshl_b32 s{sT1}, s{sHD}, 2
    s_xor_b32 s{sT1}, s{sT1}, 4
    v_cmp_eq_u32 s[{sMK}:{sMK+1}], s{sT1}, v{vI}
    s_or_b64 s[{sMK}:{sMK+1}], s[{sMK}:{sMK+1}], vcc
    """)
    q = V.alloc(6, align=2)
    p(f"""
    v_cvt_pk_bf16_f32 v{q}, v{KD}, v{KD+1}
    v_cvt_pk_bf16_f32 v{q+1}, v{KD+2}, v{KD+3}
    v_cvt_pk_bf16_f32 v{q+2}, v{KD+4}, v{KD+5}
    v_cvt_pk_bf16_f32 v{q+3}, v{KD+6}, v{KD+7}
    v_cvt_pk_bf16_f32 v{q+4}, v{KD+8}, v{KD+9}
    s_lshl_b32 s{sT1}, s{sHF}, 3
    buffer_store_dwordx2 v[{q}:{q+1}], v{vP0}, s[{SRD_WS}:{SRD_WS+3}], s{sT1} offen sc1
    s_mov_b64 exec, s[{sMK}:{sMK+1}]
    buffer_store_dwordx2 v[{q+2}:{q+3}], v{vP1}, s[{SRD_WS}:{SRD_WS+3}], s{sT1} offen sc1
    s_mov_b64 exec, -1
    s_cmp_eq_u32 s{sHF}, 0
    s_cbranch_scc0 L_b_st1
    buffer_store_dword v{q+4}, v{vP0}, s[{SRD_WS}:{SRD_WS+3}], 0 offen offset:16 sc1
    s_branch L_b_st2
    """)
    p.label("L_b_st1")
    p(f"""
    s_mov_b64 exec, s[{sMK}:{sMK+1}]
    buffer_store_dword v{q+4}, v{vP1}, s[{SRD_WS}:{SRD_WS+3}], 0 offen offset:16 sc1
    s_mov_b64 exec, -1
    """)
    p.label("L_b_st2")
    p(f"""
    s_lshl_b32 s{sT0}, s{sHP}, 8
    s_lshl_b32 s{sT1}, s{sRB}, 4
    s_add_u32 s{sT0}, s{sT0}, s{sT1}
    s_lshl_b32 s{sT1}, s{sWR}, 2
    s_add_u32 s{sT0}, s{sT0}, s{sT1}
    s_add_u32 s{sT0}, s{sT0}, {WS_F1}
    v_mov_b32 v{t0}, s{sT0}
    v_mov_b32 v{t1}, s{sNONCE}
    s_waitcnt vmcnt(0)
    s_mov_b32 exec_lo, 1
    s_mov_b32 exec_hi, 0
    buffer_store_dword v{t1}, v{t0}, s[{SRD_WS}:{SRD_WS+3}], 0 offen sc1
    s_mov_b64 exec, -1
    """)
    stamp(p, 6)
    p(f"""
    s_lshl_b32 s{sT0}, s{sHP}, 8
    s_add_u32 s{sT0}, s{sT0}, {WS_F1}
    v_min_u32 v{t0}, 43, v{vLane}
    v_lshl_add_u32 v{t0}, v{t0}, 2, s{sT0}
    s_mov_b32 s{sCNT}, 0
    """)
    p.label("L_b_poll1")
    p(f"""
    buffer_load_dword v{t1}, v{t0}, s[{SRD_WS}:{SRD_WS+3}], 0 offen sc1
    s_add_u32 s{sCNT}, s{sCNT}, 1
    s_cmp_gt_u32 s{sCNT}, {SPIN_MAX}
    s_cbranch_scc1 L_b_poll1_ok
    s_waitcnt vmcnt(0)
    v_cmp_ne_u32 vcc, s{sNONCE}, v{t1}
    s_cbranch_vccnz L_b_poll1
    """)
    p.label("L_b_poll1_ok")
    p("s_waitcnt vmcnt(0)")
    stamp(p, 7)
    L = V.alloc(56, align=4)
    A10 = V.alloc(10, align=2)
    p(f"""
    s_cmp_eq_u32 s{sHF}, 0
    s_cselect_b64 vcc, -1, 0
    v_cndmask_b32 v{t0}, v{vP1}, v{vP0}, vcc
    s_mul_i32 s{sT0}, s{sRB}, {16*PART_STRIDE}
    v_subrev_u32 v{t0}, s{sT0}, v{t0}
    s_mov_b32 s{sT0}, 0
    """)
    for r in range(11):
        p(f"buffer_load_dwordx4 v[{L+4*r}:{L+4*r+3}], v{t0}, s[{SRD_WS}:{SRD_WS+3}], s{sT0} offen sc1")
        p(f"buffer_load_dword v{L+44+r}, v{t0}, s[{SRD_WS}:{SRD_WS+3}], s{sT0} offen offset:16 sc1")
        if r < 10: p(f"s_add_u32 s{sT0}, s{sT0}, {16*PART_STRIDE}")
    sHI = 97
    p(f"s_mov_b32 s{sHI}, 0xffff0000")
    u = V.alloc(2, align=2)
    for r in range(11):
        p(f"s_waitcnt vmcnt({2*(10-r)})")
        for k in range(5):
            src = L + 4*r + k if k < 4 else L + 44 + r
            if r == 0:
                p(f"v_lshlrev_b32 v{A10+2*k}, 16, v{src}")
                p(f"v_and_b32 v{A10+2*k+1}, s{sHI}, v{src}")
            else:
                p(f"v_lshlrev_b32 v{u}, 16, v{src}")
                p(f"v_and_b32 v{u+1}, s{sHI}, v{src}")
                p(f"v_pk_add_f32 v[{A10+2*k}:{A10+2*k+1}], v[{A10+2*k}:{A10+2*k+1}], v[{u}:{u+1}]")
    for k in range(5):
        p(f"v_cvt_pk_bf16_f32 v{L+k}, v{A10+2*k}, v{A10+2*k+1}")
    p(f"""
    s_lshl_b32 s{sT0}, s{sHD}, 1
    s_add_u32 s{sT0}, s{sT0}, s{sHF}
    s_lshl_b32 s{sT1}, s{sT0}, 10
    s_add_u32 s{sT1}, s{sT1}, {AST}
    v_lshl_add_u32 v{t0}, v{vLane}, 4, s{sT1}
    ds_write_b128 v{t0}, v[{L}:{L+3}]
    s_lshl_b32 s{sT1}, s{sT0}, 8
    s_add_u32 s{sT1}, s{sT1}, {AST + 4096}
    v_lshl_add_u32 v{t1}, v{vLane}, 2, s{sT1}
    ds_write_b32 v{t1}, v{L+4}
    s_waitcnt lgkmcnt(0)
    s_barrier
    """)
    stamp(p, 8)
    p("s_branch L_b_final")
    for r, n in ((O, 12), (vPh, 1), (vAa, 1), (vA2, 1), (vB0, 1), (vB1, 1), (KA, 8), (KB, 8), (KD, 12), (vP0, 1), (vP1, 1), (q, 6), (L, 56), (A10, 10), (u, 2)):
        V.release(r, n)
    p.label("L_b_qtype")
    p("s_waitcnt lgkmcnt(0)\n s_barrier")
    p(f"""
    s_lshr_b32 s{sT0}, s2, 3               ; i
    s_cmp_ge_u32 s{sT0}, 10
    s_cselect_b32 s{sT1}, 1, 0
    s_and_b32 s{sT2}, s2, 7
    s_lshl_b32 s{sT2}, s{sT2}, 1
    s_add_u32 s{sRT}, s{sT2}, s{sT1}
    s_mul_i32 s{sT1}, s{sT1}, 10
    s_sub_u32 s{sCG}, s{sT0}, s{sT1}
    s_cmp_ge_u32 s2, 160
    s_cbranch_scc1 L_b_nowo
    v_lshrrev_b32 v{t0}, 3, v{vLane}
    v_bfe_u32 v{t1}, v{t0}, 1, 1
    s_and_b32 s{sT0}, s{sWR}, 1
    s_lshl_b32 s{sT0}, s{sT0}, 1
    v_add_u32 v{t1}, s{sT0}, v{t1}
    v_lshlrev_b32 v{t1}, 1, v{t1}
    v_and_b32 v{t2}, 7, v{vLane}
    v_xor_b32 v{t1}, v{t1}, v{t2}
    s_lshl_b32 s{sT0}, s{sWR}, 3
    v_add_u32 v{t0}, s{sT0}, v{t0}
    v_mul_u32_u24 v{t0}, 1280, v{t0}
    v_lshl_add_u32 v{t0}, v{t1}, 4, v{t0}
    s_lshl_b32 s{sT0}, s{sCG}, 7
    v_add_u32 v{t0}, s{sT0}, v{t0}
    s_lshl_b32 s{sM0}, s{sWR}, 10
    s_mov_b32 s{sT1}, 0
    """)
    for i in range(20):
        p(f"s_add_u32 m0, s{sM0}, {WO_IMG + 4096*i}")
        p(f"buffer_load_dwordx4 v{t0}, s[{SRD_WO}:{SRD_WO+3}], s{sT1} offen lds")
        if i < 19: p(f"s_add_u32 s{sT1}, s{sT1}, {32*1280}")
    p.label("L_b_nowo")
    stamp(p, 4)
    PQ = V.alloc(3*2*6 + 2, align=2)
    for k in range(3*2*6 + 2):
        if k % 6 == 5 or k >= 36: p(f"v_mov_b32 v{PQ+k}, 0")
    for nt in range(3):
        softmax(nt, [PQ + 12*nt, PQ + 12*nt + 6])
    stamp(p, 5)
    p("s_waitcnt lgkmcnt(0)\n s_barrier")
    stamp(p, 6)
    AF = V.alloc(32, align=4)
    p(f"""
    v_lshlrev_b32 v{t0}, 4, v{vLane}
    v_add_u32 v{t0}, {AST}, v{t0}
    v_lshlrev_b32 v{t1}, 2, v{vLane}
    v_add_u32 v{t1}, {AST+4096}, v{t1}
    """)
    for k in range(4):
        p(f"ds_read_b128 v[{AF+8*k}:{AF+8*k+3}], v{t0} offset:{1024*k}")
        p(f"ds_read_b32 v{AF+8*k+4}, v{t1} offset:{256*k}")
        for z in (5, 6, 7): p(f"v_mov_b32 v{AF+8*k+z}, 0")
    vOa = V.alloc(); OD = V.alloc(16, align=4); w = V.alloc(6, align=2)
    sEPS = 97
    p(f"""
    s_mov_b32 s{sEPS}, 0x358637bd
    s_lshl_b32 s{sT0}, s{sRB}, 4
    s_add_u32 s{sT0}, s{sT0}, s{sHP}
    s_mul_i32 s{sT0}, s{sT0}, {O_STRIDE}
    s_add_u32 s{sT0}, s{sT0}, {WS_O}
    s_mul_i32 s{sT1}, s{sWR}, {48*80}
    s_add_u32 s{sT0}, s{sT0}, s{sT1}
    v_mul_u32_u24 v{t0}, 80, v{vI}
    v_lshl_add_u32 v{t0}, v{vG}, 3, v{t0}
    v_add_u32 v{vOa}, s{sT0}, v{t0}
    s_waitcnt lgkmcnt(0)
    """)
    vOb = V.alloc()
    p(f"""
    v_lshlrev_b32 v{t1}, 3, v{vG}
    v_sub_u32 v{vOb}, v{vOa}, v{t1}
    """)
    for nt in range(3):
        for h in range(2):
            b = PQ + 12*nt + 6*h
            a = AF + 16*h
            o0 = OD + 8*h; o1 = o0 + 4
            p(f"""
            v_mfma_f32_16x16x32_bf16 v[{o0}:{o0+3}], v[{a}:{a+3}], v[{b}:{b+3}], 0
            v_mfma_f32_16x16x32_bf16 v[{o1}:{o1+3}], v[{a+8}:{a+11}], v[{b}:{b+3}], 0
            v_mfma_f32_16x16x32_bf16 v[{o0}:{o0+3}], v[{a+4}:{a+7}], v[{b+4}:{b+7}], v[{o0}:{o0+3}]
            v_mfma_f32_16x16x32_bf16 v[{o1}:{o1+3}], v[{a+12}:{a+15}], v[{b+4}:{b+7}], v[{o1}:{o1+3}]
            """)
        for h in range(2):
            o0 = OD + 8*h; o1 = o0 + 4
            y = w + h
            p(f"v_mov_b32 v{y}, v{o1}")
            if h == 0:
                p(f"s_nop 1\n v_permlane16_swap_b32 v{o1}, v{y}")
            else:
                p(f"s_nop 1\n v_permlane16_swap_b32 v{y}, v{o1}")
            p(f"v_add_f32 v{y}, s{sEPS}, v{y}")
            p(f"v_rcp_f32 v{y}, v{y}")
            for r in range(8):
                p(f"v_mul_f32 v{o0+r}, v{o0+r}, v{y}")
            p(f"""
            v_cvt_pk_bf16_f32 v{o0}, v{o0}, v{o0+1}
            v_cvt_pk_bf16_f32 v{o0+1}, v{o0+2}, v{o0+3}
            v_cvt_pk_bf16_f32 v{o0+2}, v{o1}, v{o1+1}
            v_cvt_pk_bf16_f32 v{o0+3}, v{o1+2}, v{o1+3}
            buffer_store_dwordx2 v[{o0}:{o0+1}], v{vOa}, s[{SRD_WS}:{SRD_WS+3}], 0 offen offset:{16*80*nt + 40*h} sc1
            s_mov_b32 exec_lo, {0xffff if h == 0 else 0xffff0000:#x}
            s_mov_b32 exec_hi, 0
            buffer_store_dwordx2 v[{o0+2}:{o0+3}], v{vOb}, s[{SRD_WS}:{SRD_WS+3}], 0 offen offset:{16*80*nt + 40*h + 32} sc1
            s_mov_b64 exec, -1
            """)
    p(f"""
    s_lshl_b32 s{sT0}, s{sRB}, 2
    s_add_u32 s{sT0}, s{sT0}, s{sWR}
    s_lshl_b32 s{sT0}, s{sT0}, 6
    s_lshl_b32 s{sT1}, s{sHP}, 2
    s_add_u32 s{sT0}, s{sT0}, s{sT1}
    s_add_u32 s{sT0}, s{sT0}, {WS_F2}
    v_mov_b32 v{t0}, s{sT0}
    v_mov_b32 v{t1}, s{sNONCE}
    s_waitcnt vmcnt(0)
    s_mov_b32 exec_lo, 1
    s_mov_b32 exec_hi, 0
    buffer_store_dword v{t1}, v{t0}, s[{SRD_WS}:{SRD_WS+3}], 0 offen sc1
    s_mov_b64 exec, -1
    """)
    stamp(p, 7)
    for r, n in ((PQ, 38), (AF, 32), (vOa, 1), (vOb, 1), (OD, 16), (w, 6)):
        V.release(r, n)
    for r, n in ((P, 24), (T, 12), (E, 20), (S, 8), (vRow, 1), (vV2, 1), (vV3, 1), (vFA, 16)):
        V.release(r, n)
    p.label("L_b_final")
    p(f"""
    s_cmp_ge_u32 s2, 160
    s_cbranch_scc1 L_b_done
    s_lshr_b32 s{sT0}, s2, 3
    s_cmp_ge_u32 s{sT0}, 10
    s_cselect_b32 s{sT1}, 1, 0
    s_and_b32 s{sT2}, s2, 7
    s_lshl_b32 s{sT2}, s{sT2}, 1
    s_add_u32 s{sRT}, s{sT2}, s{sT1}
    s_mul_i32 s{sT1}, s{sT1}, 10
    s_sub_u32 s{sCG}, s{sT0}, s{sT1}
    s_lshl_b32 s{sT0}, s{sRT}, 7
    s_mul_i32 s{sT1}, s{sT0}, 43691
    s_lshr_b32 s{sT1}, s{sT1}, 21
    s_add_u32 s{sT0}, s{sT0}, 127
    s_mul_i32 s{sT0}, s{sT0}, 43691
    s_lshr_b32 s{sT0}, s{sT0}, 21
    v_add_u32 v{t0}, s{sT1}, v{vG}
    v_min_u32 v{t0}, s{sT0}, v{t0}
    v_lshlrev_b32 v{t0}, 6, v{t0}
    v_lshl_add_u32 v{t0}, v{vI}, 2, v{t0}
    v_add_u32 v{t0}, {WS_F2}, v{t0}
    s_mov_b32 s{sCNT}, 0
    """)
    p.label("L_b_poll2")
    p(f"""
    buffer_load_dword v{t1}, v{t0}, s[{SRD_WS}:{SRD_WS+3}], 0 offen sc1
    s_add_u32 s{sCNT}, s{sCNT}, 1
    s_cmp_gt_u32 s{sCNT}, {SPIN_MAX}
    s_cbranch_scc1 L_b_poll2_ok
    s_waitcnt vmcnt(0)
    v_cmp_ne_u32 vcc, s{sNONCE}, v{t1}
    s_cbranch_vccnz L_b_poll2
    """)
    p.label("L_b_poll2_ok")
    p("s_waitcnt vmcnt(0)")
    stamp(p, 9)
    sRQ, sKH = 95, 96
    OF = V.alloc(80, align=4)
    vR = V.alloc(2, align=1); vC = V.alloc(5, align=1)
    p(f"""
    s_and_b32 s{sRQ}, s{sW}, 3
    s_lshr_b32 s{sKH}, s{sW}, 2
    s_lshl_b32 s{sT0}, s{sRT}, 7
    s_lshl_b32 s{sT1}, s{sRQ}, 5
    s_add_u32 s{sT0}, s{sT0}, s{sT1}
    """)
    for nt in range(2):
        p(f"""
        v_add_u32 v{t0}, s{sT0}, v{vI}
        v_add_u32 v{t0}, {16*nt}, v{t0}
        v_mul_u32_u24 v{t1}, 43691, v{t0}
        v_lshrrev_b32 v{t1}, 23, v{t1}
        v_mul_u32_u24 v{t2}, 192, v{t1}
        v_sub_u32 v{t0}, v{t0}, v{t2}
        v_mul_u32_u24 v{t0}, 80, v{t0}
        s_mov_b32 s{sT1}, {16*O_STRIDE}
        v_mul_lo_u32 v{t1}, v{t1}, s{sT1}
        v_add3_u32 v{vR+nt}, v{t0}, v{t1}, 0
        v_add_u32 v{vR+nt}, {WS_O}, v{vR+nt}
        """)
    for k5 in range(5):
        p(f"""
        v_add_u32 v{t0}, {4*k5}, v{vG}
        v_mul_u32_u24 v{t1}, 52, v{t0}
        v_lshrrev_b32 v{t1}, 8, v{t1}
        v_mul_u32_u24 v{t2}, 5, v{t1}
        v_sub_u32 v{t0}, v{t0}, v{t2}
        v_mul_u32_u24 v{t1}, {O_STRIDE}, v{t1}
        v_lshl_add_u32 v{vC+k5}, v{t0}, 4, v{t1}
        """)
    p(f"s_mul_i32 s{sT0}, s{sKH}, {8*O_STRIDE}")
    for ks in range(10):
        if ks == 5: p(f"s_add_u32 s{sT0}, s{sT0}, {4*O_STRIDE}")
        for nt in range(2):
            p(f"v_add_u32 v{t0+nt}, v{vR+nt}, v{vC+ks%5}")
            p(f"buffer_load_dwordx4 v[{OF+8*ks+4*nt}:{OF+8*ks+4*nt+3}], v{t0+nt}, s[{SRD_WS}:{SRD_WS+3}], s{sT0} offen sc1")
    vA = V.alloc(4, align=1)
    for mt in range(4):
        p(f"""
        v_lshrrev_b32 v{t2}, 2, v{vI}
        v_bfe_u32 v{t3}, v{t2}, 1, 1
        v_and_b32 v{t0}, 1, v{vG}
        v_lshl_add_u32 v{t3}, v{t0}, 1, v{t3}        ; psi
        v_xor_b32 v{t3}, {mt}, v{t3}
        v_lshlrev_b32 v{t3}, 1, v{t3}
        v_bfe_u32 v{t0}, v{vI}, 1, 1
        v_add_u32 v{t3}, v{t3}, v{t0}
        v_lshlrev_b32 v{t3}, 4, v{t3}
        v_and_b32 v{t0}, 1, v{vI}
        v_lshl_add_u32 v{t3}, v{t0}, 3, v{t3}
        v_lshl_add_u32 v{t2}, v{vG}, 3, v{t2}
        v_lshl_add_u32 v{t3}, v{t2}, 7, v{t3}
        s_mul_i32 s{sT1}, s{sKH}, {320*128}
        v_add_u32 v{vA+mt}, s{sT1}, v{t3}
        """)
    FAc = V.alloc(32, align=4); WA = [V.alloc(16, align=4), V.alloc(16, align=4)]
    p("s_barrier")
    def wreads(ks):
        b = WA[ks & 1]
        for mt in range(4):
            for h in range(2):
                p(f"ds_read_b64_tr_b16 v[{b+4*mt+2*h}:{b+4*mt+2*h+1}], v{vA+mt} offset:{WO_IMG + 4096*ks + 512*h}")
    wreads(0)
    for ks in range(10):
        if ks < 9:
            wreads(ks + 1)
            p(f"s_waitcnt vmcnt({2*(9-ks)}) lgkmcnt(8)")
        else:
            p("s_waitcnt vmcnt(0) lgkmcnt(0)")
        for mt in range(4):
            for nt in range(2):
                a = FAc + 16*nt + 4*mt
                c = "0" if ks == 0 else f"v[{a}:{a+3}]"
                p(f"v_mfma_f32_16x16x32_bf16 v[{a}:{a+3}], v[{WA[ks&1]+4*mt}:{WA[ks&1]+4*mt+3}], v[{OF+8*ks+4*nt}:{OF+8*ks+4*nt+3}], {c}")
    stamp(p, 10)
    p(f"""
    s_lshl_b32 s{sT0}, s{sRQ}, 13
    s_add_u32 s{sT0}, s{sT0}, {RED}
    v_lshl_add_u32 v{t0}, v{vLane}, 4, s{sT0}
    s_cmp_eq_u32 s{sKH}, 0
    s_cbranch_scc1 L_b_red0
    """)
    for k in range(8):
        p(f"ds_write_b128 v{t0}, v[{FAc+4*k}:{FAc+4*k+3}] offset:{1024*k}")
    p("s_waitcnt lgkmcnt(0)\n s_barrier\n s_branch L_b_red1")
    p.label("L_b_red0")
    p("s_barrier")
    for k in range(8):
        p(f"ds_read_b128 v[{OF+4*k}:{OF+4*k+3}], v{t0} offset:{1024*k}")
    p(f"""
    s_lshl_b32 s{sT0}, s{sRT}, 7
    s_lshl_b32 s{sT1}, s{sRQ}, 5
    s_add_u32 s{sT0}, s{sT0}, s{sT1}
    v_add_u32 v{t1}, s{sT0}, v{vI}
    v_mul_u32_u24 v{t1}, 2560, v{t1}
    v_lshl_add_u32 v{t1}, v{vG}, 3, v{t1}
    s_lshl_b32 s{sT0}, s{sCG}, 7
    s_add_u32 s{sT0}, s{sT0}, 1280
    v_add_u32 v{t1}, s{sT0}, v{t1}
    s_mov_b32 s{sT1}, {16*2560}
    """)
    for nt in range(2):
        for mt in range(4):
            k = 4*nt + mt
            a = FAc + 4*k; b = OF + 4*k
            p(f"s_waitcnt lgkmcnt({7-k})")
            p(f"v_pk_add_f32 v[{a}:{a+1}], v[{a}:{a+1}], v[{b}:{b+1}]")
            p(f"v_pk_add_f32 v[{a+2}:{a+3}], v[{a+2}:{a+3}], v[{b+2}:{b+3}]")
            p(f"v_cvt_pk_bf16_f32 v{a}, v{a}, v{a+1}")
            p(f"v_cvt_pk_bf16_f32 v{a+1}, v{a+2}, v{a+3}")
            so = "0" if nt == 0 else f"s{sT1}"
            p(f"buffer_store_dwordx2 v[{a}:{a+1}], v{t1}, s[{SRD_O}:{SRD_O+3}], {so} offen offset:{32*mt}")
    p.label("L_b_red1")
    p.label("L_b_done")
    stamp(p, 11)
    if common.DIAG:
        p('s_waitcnt vmcnt(0)')
        stamp(p, 12)
        stamps_flush(p, t0, t1)
    return V
```

```python
import sys
from common import *
import common
from part_a import gen_part_a
from part_b import gen_part_b

def build(out, diag=False):
    common.DIAG = diag
    p = Prog()
    stamps_reset()
    if diag:
        p('s_memrealtime s[98:99]\n s_waitcnt lgkmcnt(0)\n s_mov_b32 s64, s98')
        stamps_reset(1)
    p(f"""
    s_cmp_ge_u32 s2, {N_WG}
    s_cbranch_scc1 L_end
    s_load_dwordx16 s[4:19], s[0:1], 0
    s_load_dwordx8 s[20:27], s[0:1], 64
    s_load_dwordx4 s[28:31], s[0:1], 96
    s_cmp_lt_u32 s2, {N_B}
    s_cbranch_scc1 L_partb
    """)
    V = gen_part_a(p)
    print("part A vgpr high", V.high)
    p("s_endpgm")
    p.label("L_partb")
    stamps_reset(1 if diag else 0)
    V = gen_part_b(p)
    print("part B vgpr high", V.high)
    p.label("L_end")
    p("s_endpgm")
    txt = header_text() + p.finalize(True) + footer_text()
    open(out, "w").write(txt)

if __name__ == "__main__":
    build("k.s")
    build("kd.s", True)
    common.DUMP = True
    build("kdump.s")
```

```python
from emit import *

NAME = "concat_heads__ssm_conv_s4d__linear_kernel_hedgehog__prompt"
KNAME = NAME + "_kernel"

S_U, S_LAR, S_AIM, S_CRE, S_CIM, S_LDT, S_DSK, S_X = 4, 6, 8, 10, 12, 14, 16, 18
S_WQKV, S_WPHI, S_WO, S_OUT = 20, 22, 24, 26
S_DBG, S_WS = 28, 30

N_B = 176
N_WG = 256
LDS_BYTES = 163840

LOG2E = 0x3FB8AA3B
LOG2E_LO = 0x32A57060
LN2 = 0x3F317218

def header_text():
    return f"""; Kernarg layout (112 bytes, pointers only): u, log_A_real, A_imag, C_real, C_imag, log_dt, D_skip,
; @launch grid=({N_WG},1,1) block=(512,1,1) lds={LDS_BYTES}
.amdgcn_target "amdgcn-amd-amdhsa--gfx950"
.text
.globl {KNAME}
.p2align 8
.type {KNAME},@function
{KNAME}:
"""

def footer_text(vgpr=256, sgpr=102):
    acc = min(256, (vgpr + 3) // 4 * 4)
    return f"""
.section .rodata,"a"
.p2align 6
.amdhsa_kernel {KNAME}
  .amdhsa_next_free_vgpr {vgpr}
  .amdhsa_next_free_sgpr {sgpr}
  .amdhsa_accum_offset {acc}
  .amdhsa_group_segment_fixed_size 0
  .amdhsa_kernarg_size 112
  .amdhsa_user_sgpr_count 2
  .amdhsa_user_sgpr_kernarg_segment_ptr 1
  .amdhsa_system_sgpr_workgroup_id_x 1
.end_amdhsa_kernel
"""

def srd(p, dst, ptr, size):
    p(f"""
    s_mov_b32 s{dst}, s{ptr}
    s_and_b32 s{dst+1}, s{ptr+1}, 0xffff
    s_mov_b32 s{dst+2}, {size}
    s_mov_b32 s{dst+3}, 0x00020000
    """)

DIAG = False
DUMP = False
import os
OPT = set(os.environ.get('KOPT', '').split(','))
S_STAMP = 64
DIAG_OFF = 16 << 20
class Stamps:
    n = 0
def stamp(p, idx=None):
    import common
    if not common.DIAG: return
    if idx is not None: Stamps.n = idx
    i = Stamps.n; Stamps.n += 1
    assert i < 16
    p(f"s_memrealtime s[98:99]\n s_waitcnt lgkmcnt(0)\n s_mov_b32 s{S_STAMP+i}, s98")
def cstamp(p, idx):
    import common
    if not common.DIAG: return
    p(f"s_memtime s[98:99]\n s_waitcnt lgkmcnt(0)\n s_mov_b32 s{S_STAMP+idx}, s98")
def stamps_reset(n=0):
    Stamps.n = n
def stamps_flush(p, vt0, vt1):
    import common
    if not common.DIAG: return
    p(f"""
    v_lshrrev_b32 v{vt0}, 6, v0
    s_lshl_b32 s98, s2, 3
    v_add_u32 v{vt0}, s98, v{vt0}
    v_lshlrev_b32 v{vt0}, 6, v{vt0}
    v_add_u32 v{vt0}, {DIAG_OFF}, v{vt0}
    """)
    for i in range(16):
        p(f"v_mov_b32 v{vt1}, s{S_STAMP+i}")
        p(f"global_store_dword v{vt0}, v{vt1}, s[{S_WS}:{S_WS+1}] offset:{4*i}")
```

```python
from common import *
import common

SLOT = 40960
WOFF = 24576
WO_IMG = 0
PHI = 81920
RS = 296
AST = 139264
RED = 81920
OTR = 114688
WS_NONCE = 0
WS_F1 = 4096
WS_F2 = 8192
WS_PART = 65536
PART_STRIDE = 5120
WS_O = 1 << 20
O_TILE = 20480
WS_SIZE = 16 << 20
SPIN_MAX = 1 << 16

def gen_part_b(p):
    V = VAlloc(256, start=1)
    sJ, sI, sT, sRB, sHP, sW, sWR, sTY = 32, 33, 34, 35, 36, 37, 38, 39
    SRD_X, SRD_W, SRD_WS, SRD_WO, SRD_O = 40, 44, 48, 52, 56
    sT0, sT1, sT2 = 60, 61, 62
    sNONCE = 80; sKC = 81; sS = 82; sSLOTD = 83; sXO = 84; sWO = 85; sM0 = 86; sROW0 = 87; sCNT = 88
    sL2E = 89; sEX = 90
    sRT, sCG = 92, 93
    sDSLOT = 94
    p(f"""
    s_and_b32 s{sJ}, s2, 7
    s_lshr_b32 s{sI}, s2, 3
    s_lshr_b32 s{sT0}, s{sJ}, 2
    s_mul_i32 s{sT0}, s{sT0}, 22
    s_add_u32 s{sT}, s{sT0}, s{sI}
    s_lshr_b32 s{sRB}, s{sT}, 2
    s_and_b32 s{sT0}, s{sT}, 3
    s_and_b32 s{sT1}, s{sJ}, 3
    s_lshl_b32 s{sT1}, s{sT1}, 2
    s_add_u32 s{sHP}, s{sT1}, s{sT0}
    s_mul_i32 s{sROW0}, s{sRB}, 192
    s_mul_i32 s{sT1}, s{sT0}, 3
    s_lshl_b32 s{sT2}, s{sRB}, 1
    s_add_u32 s{sKC}, s{sT1}, s{sT2}
    s_mul_i32 s{sT1}, s{sKC}, 205
    s_lshr_b32 s{sT1}, s{sT1}, 11
    s_mul_i32 s{sT1}, s{sT1}, 10
    s_sub_u32 s{sKC}, s{sKC}, s{sT1}
    s_mov_b32 s{sL2E}, {LOG2E:#x}
    s_mov_b32 s100, {-3*SLOT & 0xffffffff:#x}
    """)
    vLane = V.alloc(); vI = V.alloc(); vG = V.alloc(); t0 = V.alloc(); t1 = V.alloc(); t2 = V.alloc(); t3 = V.alloc()
    p(f"""
    v_lshrrev_b32 v{t0}, 6, v0
    v_and_b32 v{vLane}, 63, v0
    v_readfirstlane_b32 s{sW}, v{t0}
    v_and_b32 v{vI}, 15, v{vLane}
    v_lshrrev_b32 v{vG}, 4, v{vLane}
    s_and_b32 s{sWR}, s{sW}, 3
    s_lshr_b32 s{sTY}, s{sW}, 2
    s_waitcnt lgkmcnt(0)
    """)
    srd(p, SRD_X, S_X, 2048 * 1280)
    srd(p, SRD_W, S_WQKV, 640 * 3840)
    srd(p, SRD_WS, S_WS, WS_SIZE)
    srd(p, SRD_WO, S_WO, 640 * 1280)
    srd(p, SRD_O, S_OUT, 2048 * 2560)
    vNon = V.alloc()
    p(f"""
    s_cmp_lg_u32 s2, 0
    s_cbranch_scc1 L_b_nononce
    s_cmp_lg_u32 s{sW}, 0
    s_cbranch_scc1 L_b_nononce
    v_mov_b32 v{t0}, 0
    global_load_dword v{vNon}, v{t0}, s[{S_WS}:{S_WS+1}] sc1
    s_waitcnt vmcnt(0)
    v_add_u32 v{vNon}, 1, v{vNon}
    v_max_u32 v{vNon}, 1, v{vNon}
    global_store_dword v{t0}, v{vNon}, s[{S_DBG}:{S_DBG+1}] sc1
    global_store_dword v{t0}, v{vNon}, s[{S_WS}:{S_WS+1}] sc1
    s_waitcnt vmcnt(0)
    """)
    p.label("L_b_nononce")
    vXo = V.alloc(3, align=1); vWo = V.alloc()
    for e in range(3):
        p(f"""
        s_mul_i32 s{sT0}, s{sW}, 24
        s_add_u32 s{sT0}, s{sT0}, {8*e}
        v_lshrrev_b32 v{t0}, 3, v{vLane}
        v_add_u32 v{t0}, s{sT0}, v{t0}
        v_bfe_u32 v{t1}, v{t0}, 1, 3
        v_and_b32 v{t2}, 7, v{vLane}
        v_xor_b32 v{t1}, v{t1}, v{t2}
        v_add_u32 v{t0}, s{sROW0}, v{t0}
        v_mul_u32_u24 v{t0}, 1280, v{t0}
        v_lshl_add_u32 v{vXo+e}, v{t1}, 4, v{t0}
        """)
    p(f"""
    s_and_b32 s{sT0}, s{sW}, 1
    s_lshl_b32 s{sT0}, s{sT0}, 3
    v_lshlrev_b32 v{t0}, 1, v{vG}
    v_add_u32 v{t0}, s{sT0}, v{t0}
    v_xor_b32 v{t0}, v{t0}, v{vI}
    v_min_u32 v{t0}, 14, v{t0}
    ; c<5: 1280+16c ; c<8: 2560+16(c-5) ; c<13: 16(c-8) ; else 2560+16(c-10)
    v_lshlrev_b32 v{t1}, 4, v{t0}
    v_add_u32 v{t2}, {2560-160}, v{t1}
    v_subrev_u32 v{t3}, 128, v{t1}
    v_cmp_gt_u32 vcc, 13, v{t0}
    v_cndmask_b32 v{t2}, v{t2}, v{t3}, vcc
    v_add_u32 v{t3}, {2560-80}, v{t1}
    v_cmp_gt_u32 vcc, 8, v{t0}
    v_cndmask_b32 v{t2}, v{t2}, v{t3}, vcc
    v_add_u32 v{t3}, 1280, v{t1}
    v_cmp_gt_u32 vcc, 5, v{t0}
    v_cndmask_b32 v{t2}, v{t2}, v{t3}, vcc
    s_mul_i32 s{sT0}, s{sHP}, 80
    s_mul_i32 s{sT1}, s{sW}, {8*3840}
    s_add_u32 s{sT0}, s{sT0}, s{sT1}
    v_mul_u32_u24 v{t0}, 3840, v{vG}
    v_add3_u32 v{vWo}, v{t0}, v{t2}, s{sT0}
    """)
    def dma_stage(slot_sgpr_or_const, const=True):
        L = []
        L.append(f"s_lshl_b32 s{sXO}, s{sKC}, 7")
        L.append(f"s_mul_i32 s{sWO}, s{sKC}, {64*3840}")
        if const:
            L.append(f"s_mul_i32 s{sM0}, s{sW}, 3072")
            L.append(f"s_add_u32 s{sM0}, s{sM0}, {slot_sgpr_or_const}")
        else:
            L.append(f"s_mul_i32 s{sM0}, s{sW}, 3072")
            L.append(f"s_add_u32 s{sM0}, s{sM0}, s{slot_sgpr_or_const}")
        grp = []
        for e in range(3):
            grp.append([f"s_add_u32 m0, s{sM0}, {1024*e}", f"buffer_load_dwordx4 v{vXo+e}, s[{SRD_X}:{SRD_X+3}], s{sXO} offen lds"])
        pre = [f"s_lshl_b32 s{sT2}, s{sW}, 10", f"s_sub_u32 s{sM0}, s{sM0}, s{sT2}"]
        grp.append(pre + [f"s_add_u32 m0, s{sM0}, {WOFF}", f"buffer_load_dwordx4 v{vWo}, s[{SRD_W}:{SRD_W+3}], s{sWO} offen lds"])
        grp.append([f"s_add_u32 s{sWO}, s{sWO}, {4*3840}", f"s_add_u32 m0, s{sM0}, {WOFF+1024}", f"buffer_load_dwordx4 v{vWo}, s[{SRD_W}:{SRD_W+3}], s{sWO} offen lds"])
        post = [f"s_add_u32 s{sKC}, s{sKC}, 1", f"s_cmp_eq_u32 s{sKC}, 10", f"s_cselect_b32 s{sKC}, 0, s{sKC}"]
        return L, grp, post
    def emit_dma(slot, const=True):
        L, grp, post = dma_stage(slot, const)
        for x in L: p(x)
        for g in grp:
            for x in g: p(x)
        for x in post: p(x)
    emit_dma(0)
    vWp = V.alloc(4, align=4)
    p(f"""
    s_mul_i32 s{sT0}, s{sHP}, 1600
    v_lshlrev_b32 v{t0}, 4, v{vLane}
    v_add_u32 v{t0}, s{sT0}, v{t0}
    v_add_u32 v{t1}, 1024, v{t0}
    """)
    vWp2 = V.alloc(4, align=4)
    p(f"""
    global_load_dwordx4 v[{vWp}:{vWp+3}], v{t0}, s[{S_WPHI}:{S_WPHI+1}]
    s_mov_b32 exec_lo, -1
    s_mov_b32 exec_hi, 15
    global_load_dwordx4 v[{vWp2}:{vWp2+3}], v{t1}, s[{S_WPHI}:{S_WPHI+1}]
    s_mov_b64 exec, -1
    """)
    emit_dma(SLOT)
    stamp(p, 1)
    WPB = 3 * SLOT
    vFA = V.alloc(16, align=4)
    FA, FB, FC0, FC1 = vFA, vFA + 4, vFA + 8, vFA + 12
    p(f"""
    s_lshl_b32 s{sT0}, s{sW}, 11
    s_add_u32 s{sT0}, s{sT0}, {WPB}
    v_lshl_add_u32 v{t0}, v{vLane}, 4, s{sT0}
    s_waitcnt vmcnt(5)
    ds_write_b128 v{t0}, v[{vWp}:{vWp+3}]
    s_mov_b32 exec_lo, -1
    s_mov_b32 exec_hi, 15
    ds_write_b128 v{t0}, v[{vWp2}:{vWp2+3}] offset:1024
    s_mov_b64 exec, -1
    v_lshrrev_b32 v{t1}, 2, v{vI}
    v_mul_u32_u24 v{t1}, 5, v{t1}
    v_and_b32 v{t2}, 3, v{vI}
    v_add_u32 v{t2}, v{t1}, v{t2}
    v_lshlrev_b32 v{t2}, 1, v{t2}
    v_mul_u32_u24 v{t3}, 160, v{vG}
    v_add3_u32 v{t2}, v{t2}, v{t3}, s{sT0}      ; t2: f = 5(m>>2)+(m&3)
    v_add_u32 v{t1}, 4, v{t1}
    v_lshlrev_b32 v{t1}, 1, v{t1}
    v_add3_u32 v{t1}, v{t1}, v{t3}, s{sT0}      ; t1: f = 5(m>>2)+4
    s_waitcnt lgkmcnt(0)
    """)
    GT = V.alloc(32, align=1)
    for k in range(32): p(f"v_mov_b32 v{GT+k}, 0")
    def gather(dst, addr, off, mask):
        p(f"s_mov_b32 exec_lo, {mask & 0xffffffff:#x}\n s_mov_b32 exec_hi, {mask >> 32:#x}")
        for e in range(4):
            p(f"ds_read_u16 v{GT + 2*(dst - vFA) + e}, v{addr} offset:{off + 40*e}")
    G0 = 0xFFFF; G01 = 0xFFFFFFFF; G123 = 0xFFFFFFFFFFFF0000; ALL = (1 << 64) - 1
    R0 = 0x1111111111111111; R1 = 0x2222222222222222
    gather(FA, t2, 0, ALL);            gather(FA + 2, t2, 16*40, G0)
    gather(FB, t2, 800 - 160, G123);   gather(FB + 2, t2, 800 + 12*40, G01)
    gather(FC0, t1, 0, R0);            gather(FC0 + 2, t1, 16*40, G0 & R0)
    gather(FC1, t1, 800 - 160, G123 & R1); gather(FC1 + 2, t1, 800 + 12*40, G01 & R1)
    p("s_mov_b64 exec, -1\n s_waitcnt lgkmcnt(0)")
    for k in range(16):
        p(f"v_lshl_or_b32 v{vFA+k}, v{GT+2*k+1}, 16, v{GT+2*k}")
    V.release(GT, 32)
    V.release(vWp, 4); V.release(vWp2, 4)
    vXa = V.alloc(2, align=1); vWa = V.alloc(4, align=1)
    for ks in range(2):
        p(f"""
        v_add_u32 v{t0}, {4*ks}, v{vG}
        v_lshrrev_b32 v{t1}, 1, v{vI}
        v_xor_b32 v{t0}, v{t0}, v{t1}
        v_lshlrev_b32 v{t0}, 4, v{t0}
        s_mul_i32 s{sT0}, s{sWR}, 48
        v_add_u32 v{t1}, s{sT0}, v{vI}
        v_lshl_add_u32 v{vXa+ks}, v{t1}, 7, v{t0}
        """)
    for mt in range(4):
        p(f"""
        v_and_b32 v{t0}, 1, v{vG}
        v_xor_b32 v{t0}, s{sTY}, v{t0}
        v_lshlrev_b32 v{t0}, 3, v{t0}
        v_lshrrev_b32 v{t1}, 2, v{vI}
        v_xor_b32 v{t2}, {mt}, v{t1}
        v_lshl_add_u32 v{t0}, v{t2}, 1, v{t0}
        v_bfe_u32 v{t2}, v{vI}, 1, 1
        v_add_u32 v{t0}, v{t0}, v{t2}
        v_lshlrev_b32 v{t0}, 4, v{t0}
        v_and_b32 v{t2}, 1, v{vI}
        v_lshl_add_u32 v{t0}, v{t2}, 3, v{t0}
        v_lshl_add_u32 v{t1}, v{vG}, 3, v{t1}
        v_lshl_add_u32 v{t0}, v{t1}, 8, v{t0}
        v_add_u32 v{vWa+mt}, {WOFF}, v{t0}
        """)
    acc = V.alloc(48, align=4)
    XF = [V.alloc(12, align=4), V.alloc(12, align=4)]
    WF = [V.alloc(16, align=4), V.alloc(16, align=4)]
    def reads(ks):
        L = []
        for mt in range(4):
            for h in range(2):
                L.append(f"ds_read_b64_tr_b16 v[{WF[ks]+4*mt+2*h}:{WF[ks]+4*mt+2*h+1}], v{vWa+mt} offset:{8192*ks + 1024*h}")
        X = [f"ds_read_b128 v[{XF[ks]+4*nt}:{XF[ks]+4*nt+3}], v{vXa+ks} offset:{2048*nt}" for nt in range(3)]
        return [L[0], L[1], X[0], X[1], X[2]] + L[2:]
    def mfmas(ks, first=False):
        L = []
        for mt in range(4):
            for nt in range(3):
                a = acc + 16*nt + 4*mt
                c = "0" if first else f"v[{a}:{a+3}]"
                L.append(f"v_mfma_f32_16x16x32_bf16 v[{a}:{a+3}], v[{WF[ks]+4*mt}:{WF[ks]+4*mt+3}], v[{XF[ks]+4*nt}:{XF[ks]+4*nt+3}], {c}")
        return L
    def sched(main, slots):
        for i, m in enumerate(main):
            if 'nomfma' not in common.OPT: p(m)
            for x in slots.get(i, []):
                if ('nomfma' in common.OPT or 'nords' in common.OPT) and x.startswith('ds_read'): continue
                if 'notr' in common.OPT and x.startswith('ds_read_b64_tr'): continue
                if 'nox' in common.OPT and x.startswith('ds_read_b128'): continue
                if 'nodma' in common.OPT and x.startswith('buffer_load'): continue
                p(x)
    def advance():
        return [f"v_add_u32 v{r}, s{sSLOTD}, v{r}" for r in (vWa, vXa, vWa+1, vWa+2, vWa+3, vXa+1)]
    for k in range(48): p(f"v_mov_b32 v{acc+k}, 0")
    p("s_waitcnt vmcnt(5) lgkmcnt(0)\n s_barrier")
    stamp(p, 2)
    cstamp(p, 13)
    for x in reads(0): p(x)
    emit_dma(2 * SLOT)
    p(f"s_mov_b32 s{sS}, 0\n s_mov_b32 s{sDSLOT}, 0")
    def slot_delta():
        return [f"s_and_b32 s{sT0}, s{sS}, 3", f"s_cmp_eq_u32 s{sT0}, 3", f"s_cselect_b32 s{sSLOTD}, s100, {SLOT}"]
    def half0(dma3=False):
        p("s_waitcnt lgkmcnt(0)")
        r = reads(1)
        slots = {0: r[0:3], 1: r[3:6], 2: r[6:9], 3: r[9:11], 4: slot_delta()}
        if dma3:
            L, grp, post = dma_stage(3 * SLOT)
            slots[5] = L + grp[0]; slots[6] = grp[1]; slots[7] = grp[2]; slots[8] = grp[3]; slots[9] = grp[4]; slots[10] = post
        sched(mfmas(0), slots)
    def half1(vm, dma, nxt=True, extra=None):
        p(f"s_waitcnt vmcnt({vm}) lgkmcnt(0)" if vm is not None else "s_waitcnt lgkmcnt(0)")
        if nxt:
            if 'nobar' not in common.OPT: p("s_barrier")
            r = reads(0)
            slots = {0: advance(), 1: r[0:3], 2: r[3:6], 3: r[6:9], 4: r[9:11]}
            if dma:
                L, grp, post = dma_stage(sDSLOT, const=False)
                slots[5] = L + grp[0]; slots[6] = grp[1]; slots[7] = grp[2]; slots[8] = grp[3]; slots[9] = grp[4]
                slots[10] = post + [f"s_add_u32 s{sDSLOT}, s{sDSLOT}, {SLOT}", f"s_cmp_eq_u32 s{sDSLOT}, {4*SLOT}", f"s_cselect_b32 s{sDSLOT}, 0, s{sDSLOT}"]
            if extra: slots[5] = extra
            sched(mfmas(1), slots)
        else:
            sched(mfmas(1), {})
    half0(True); half1(10, True)
    p(f"s_mov_b32 s{sS}, 1")
    p.label("L_b_main")
    half0(); half1(10, True)
    p(f"s_add_u32 s{sS}, s{sS}, 1\n s_cmp_lt_u32 s{sS}, 6\n s_cbranch_scc1 L_b_main")
    half0(); half1(10, False, extra=[f"v_mov_b32 v{t0}, 0", f"global_load_dword v{vNon}, v{t0}, s[{S_DBG}:{S_DBG+1}] sc1"])
    p(f"s_add_u32 s{sS}, s{sS}, 1")
    half0(); half1(6, False); p(f"s_add_u32 s{sS}, s{sS}, 1")
    half0(); half1(1, False); p(f"s_add_u32 s{sS}, s{sS}, 1")
    half0(); half1(None, False, nxt=False)
    stamp(p, 3)
    cstamp(p, 14)
    V.release(XF[0], 12); V.release(XF[1], 12); V.release(WF[0], 16); V.release(WF[1], 16)
    V.release(vXa, 2); V.release(vWa, 4); V.release(vXo, 3); V.release(vWo)
    p(f"""
    s_waitcnt vmcnt(0)
    s_mov_b32 s{sCNT}, 0
    """)
    p.label("L_b_nonce")
    p(f"""
    v_readfirstlane_b32 s{sNONCE}, v{vNon}
    s_cmp_lg_u32 s{sNONCE}, 0
    s_cbranch_scc1 L_b_nonce_ok
    s_add_u32 s{sCNT}, s{sCNT}, 1
    s_cmp_gt_u32 s{sCNT}, {SPIN_MAX}
    s_cbranch_scc1 L_b_nonce_ok
    v_mov_b32 v{t0}, 0
    global_load_dword v{vNon}, v{t0}, s[{S_DBG}:{S_DBG+1}] sc1
    s_waitcnt vmcnt(0)
    s_branch L_b_nonce
    """)
    p.label("L_b_nonce_ok")
    P = V.alloc(3 * 8, align=2)
    vRow = V.alloc()
    vV2 = V.alloc(); vV3 = V.alloc()
    p(f"""
    s_mul_i32 s{sT0}, s{sWR}, 48
    v_add_u32 v{t0}, s{sT0}, v{vI}
    v_mul_u32_u24 v{vRow}, {RS}, v{t0}
    v_add_u32 v{vRow}, {PHI}, v{vRow}
    s_mul_i32 s{sT0}, s{sTY}, 48
    v_lshlrev_b32 v{t1}, 3, v{vG}
    v_add3_u32 v{vV2}, v{t1}, v{vRow}, s{sT0}
    v_add_u32 v{vV2}, {192 - 16}, v{vV2}
    ; t3 part: K: 192 + 2*(8+4g) ; Q: g<2: 192+2*(32+4g), g>=2: 280 + 8(g-2)
    v_add_u32 v{t2}, {192 + 16}, v{t1}
    v_add_u32 v{t3}, {192 + 64}, v{t1}
    v_cmp_gt_u32 vcc, 2, v{vG}
    v_add_u32 v{vV3}, {280 - 16}, v{t1}
    v_cndmask_b32 v{t3}, v{vV3}, v{t3}, vcc
    s_cmp_eq_u32 s{sTY}, 0
    s_cselect_b64 vcc, -1, 0
    v_cndmask_b32 v{t3}, v{t3}, v{t2}, vcc
    v_add_u32 v{vV3}, v{t3}, v{vRow}
    """)
    def cvtP(nt, mts):
        for mt in mts:
            a = acc + 16*nt + 4*mt
            p(f"v_cvt_pk_bf16_f32 v{P+8*nt+2*mt}, v{a}, v{a+1}")
            p(f"v_cvt_pk_bf16_f32 v{P+8*nt+2*mt+1}, v{a+2}, v{a+3}")
    for nt in range(3):
        cvtP(nt, (2, 3))
        p(f"""
        s_mov_b32 exec_lo, 0
        ds_write_b64 v{vV2}, v[{P+8*nt+4}:{P+8*nt+5}] offset:{16*RS*nt}
        s_mov_b32 exec_lo, -1
        ds_write_b64 v{vV3}, v[{P+8*nt+6}:{P+8*nt+7}] offset:{16*RS*nt}
        """)
    for nt in range(3):
        cvtP(nt, (0, 1))
    if common.DUMP:
        p(f"""
        s_lshl_b32 s{sT0}, s2, 3
        s_add_u32 s{sT0}, s{sT0}, s{sW}
        s_mul_i32 s{sT0}, s{sT0}, {24*256}
        s_add_u32 s{sT0}, s{sT0}, {4<<20}
        v_lshl_add_u32 v{t0}, v{vLane}, 2, s{sT0}
        """)
        for k in range(24):
            p(f"buffer_store_dword v{P+k}, v{t0}, s[{SRD_WS}:{SRD_WS+3}], 0 offen offset:{256*(k%16)}")
            if k == 15: p(f"v_add_u32 v{t0}, 4096, v{t0}")
        p("s_waitcnt vmcnt(0)")
    V.release(acc, 48)
    T = V.alloc(12, align=4)
    E = V.alloc(20, align=2)
    S = V.alloc(8, align=2)
    def softmax(nt, outs):
        X01 = P + 8*nt; X12 = P + 8*nt + 2
        p(f"""
        v_mfma_f32_16x16x32_bf16 v[{T}:{T+3}], v[{FA}:{FA+3}], v[{X01}:{X01+3}], 0
        v_mfma_f32_16x16x32_bf16 v[{T+4}:{T+7}], v[{FB}:{FB+3}], v[{X12}:{X12+3}], 0
        v_mfma_f32_16x16x32_bf16 v[{T+8}:{T+11}], v[{FC0}:{FC0+3}], v[{X01}:{X01+3}], 0
        v_mfma_f32_16x16x32_bf16 v[{T+8}:{T+11}], v[{FC1}:{FC1+3}], v[{X12}:{X12+3}], v[{T+8}:{T+11}]
        """)
        x = [[T, T+1, T+2, T+3, T+8], [T+4, T+5, T+6, T+7, T+9]]
        a0, b0, a1, b1, c, d = S, S+1, S+2, S+3, S+4, S+5
        for h, (a, b) in enumerate(((a0, b0), (a1, b1))):
            xs = x[h]
            p(f"v_max3_f32 v{a}, v{xs[0]}, v{xs[1]}, v{xs[2]}")
            p(f"v_max3_f32 v{b}, -v{xs[0]}, -v{xs[1]}, -v{xs[2]}")
            p(f"v_max3_f32 v{a}, v{a}, v{xs[3]}, v{xs[4]}")
            p(f"v_max3_f32 v{b}, v{b}, -v{xs[3]}, -v{xs[4]}")
        def allred(op):
            p(f"""
            v_permlane16_swap_b32 v{a0}, v{b0}
            v_permlane16_swap_b32 v{a1}, v{b1}
            {op} v{a0}, v{a0}, v{b0}
            {op} v{a1}, v{a1}, v{b1}
            v_permlane32_swap_b32 v{a0}, v{a1}
            {op} v{c}, v{a0}, v{a1}
            """)
        def bcast():
            p(f"""
            v_mov_b32 v{d}, v{c}
            v_permlane32_swap_b32 v{c}, v{d}
            v_mov_b32 v{a0}, v{c}
            v_mov_b32 v{a1}, v{d}
            v_permlane16_swap_b32 v{a0}, v{c}
            v_permlane16_swap_b32 v{a1}, v{d}
            """)
        allred("v_max_f32")
        p(f"v_mul_f32 v{c}, s{sL2E}, v{c}")
        bcast()
        M = [(a0, c), (a1, d)]
        for h in range(2):
            mp, mn = M[h]
            for j in range(5):
                p(f"v_fma_f32 v{E+10*h+j}, v{x[h][j]}, s{sL2E}, -v{mp}")
                p(f"v_fma_f32 v{E+10*h+5+j}, -v{x[h][j]}, s{sL2E}, -v{mn}")
        for k in range(20):
            p(f"v_exp_f32 v{E+k}, v{E+k}")
        for h, (a, b) in enumerate(((a0, b0), (a1, b1))):
            e = E + 10*h
            p(f"v_add_f32 v{a}, v{e}, v{e+1}")
            p(f"v_add_f32 v{b}, v{e+5}, v{e+6}")
            for j in range(2, 5):
                p(f"v_add_f32 v{a}, v{a}, v{e+j}")
                p(f"v_add_f32 v{b}, v{b}, v{e+5+j}")
        allred("v_add_f32")
        p(f"v_rcp_f32 v{c}, v{c}")
        bcast()
        for h in range(2):
            rp, rn = M[h]
            e = E + 10*h
            for j in range(5):
                p(f"v_mul_f32 v{e+j}, v{e+j}, v{rp}")
                p(f"v_mul_f32 v{e+5+j}, v{e+5+j}, v{rn}")
            for k in range(5):
                p(f"v_cvt_pk_bf16_f32 v{outs[h]+k}, v{e+2*k}, v{e+2*k+1}")
    p(f"s_cmp_eq_u32 s{sTY}, 0\n s_cbranch_scc0 L_b_qtype")
    stamp(p, 4)
    O = V.alloc(12, align=2)
    p(f"""
    s_mul_i32 s{sT0}, s{sWR}, 48
    s_add_u32 s{sT0}, s{sT0}, s{sROW0}
    v_add_u32 v{t0}, s{sT0}, v{vI}
    v_mov_b32 v{t3}, 0
    v_mov_b32 v{t1}, 0x3f80
    """)
    on = V.alloc(2, align=2)
    for nt in range(3):
        p(f"""
        v_cmp_gt_u32 vcc, 0x800, v{t0}
        v_cndmask_b32 v{on}, v{t3}, v{t1}, vcc
        v_mov_b32 v{on+1}, 0
        ds_write_b64 v{vRow}, v[{on}:{on+1}] offset:{16*RS*nt + 272}
        v_add_u32 v{t0}, 16, v{t0}
        """)
    V.release(on, 2)
    vPh = V.alloc()
    p(f"v_mul_u32_u24 v{t0}, 24, v{vG}\n v_add_u32 v{vPh}, v{t0}, v{vRow}")
    for nt in range(3):
        softmax(nt, [O, O+6])
        for h in range(2):
            o = O + 6*h; off = 16*RS*nt + 96*h
            p(f"""
            ds_write_b64 v{vPh}, v[{o}:{o+1}] offset:{off}
            ds_write_b64 v{vPh}, v[{o+2}:{o+3}] offset:{off+8}
            ds_write_b32 v{vPh}, v{o+4} offset:{off+16}
            """)
    p("s_waitcnt lgkmcnt(0)\n s_barrier")
    stamp(p, 5)
    sHD, sHF = 95, 96
    vAa = V.alloc(); vB0 = V.alloc()
    p(f"""
    s_and_b32 s{sHD}, s{sWR}, 1
    s_lshr_b32 s{sHF}, s{sWR}, 1
    v_lshrrev_b32 v{t0}, 2, v{vI}
    v_lshl_add_u32 v{t0}, v{vG}, 3, v{t0}
    v_mul_u32_u24 v{t0}, {RS}, v{t0}
    v_add_u32 v{t0}, {PHI}, v{t0}
    v_and_b32 v{t1}, 3, v{vI}
    v_mul_u32_u24 v{t2}, 24, v{t1}
    s_mul_i32 s{sT0}, s{sHD}, 96
    v_add3_u32 v{vAa}, v{t0}, v{t2}, s{sT0}
    s_mul_i32 s{sT0}, s{sHD}, 40
    v_lshlrev_b32 v{t2}, 3, v{t1}
    v_add_u32 v{t2}, s{sT0}, v{t2}
    v_add_u32 v{vB0}, 192, v{t2}
    s_add_u32 s{sT0}, s{sT0}, 224
    v_mov_b32 v{t2}, 272
    v_mov_b32 v{t3}, s{sT0}
    v_cmp_eq_u32 vcc, s{sHD}, v{t1}
    v_cndmask_b32 v{t2}, v{t2}, v{t3}, vcc
    s_cmp_eq_u32 s{sHF}, 0
    s_cselect_b64 vcc, -1, 0
    v_cndmask_b32 v{t2}, v{t2}, v{vB0}, vcc
    v_add_u32 v{vB0}, v{t0}, v{t2}
    """)
    KF = V.alloc(48, align=4); KD = V.alloc(12, align=4)
    def kvreads(ks):
        b = KF + 16 * (ks % 3); off = 32 * RS * ks
        for h in range(2):
            p(f"ds_read_b64_tr_b16 v[{b+12+2*h}:{b+12+2*h+1}], v{vB0} offset:{off + 4*RS*h}")
        for mt in range(3):
            for h in range(2):
                p(f"ds_read_b64_tr_b16 v[{b+4*mt+2*h}:{b+4*mt+2*h+1}], v{vAa} offset:{off + 4*RS*h + 8*mt}")
    kvreads(0); kvreads(1)
    vP0 = V.alloc(); vP1 = V.alloc()
    p(f"""
    s_lshl_b32 s{sT0}, s{sRB}, 4
    s_add_u32 s{sT0}, s{sT0}, s{sHP}
    s_mul_i32 s{sT0}, s{sT0}, {PART_STRIDE}
    s_lshl_b32 s{sT1}, s{sHD}, 1
    s_add_u32 s{sT1}, s{sT1}, s{sHF}
    s_mul_i32 s{sT1}, s{sT1}, 1280
    s_add_u32 s{sT0}, s{sT0}, s{sT1}
    s_add_u32 s{sT0}, s{sT0}, {WS_PART}
    v_lshl_add_u32 v{vP0}, v{vLane}, 4, s{sT0}
    s_add_u32 s{sT0}, s{sT0}, 1024
    v_lshl_add_u32 v{vP1}, v{vLane}, 2, s{sT0}
    """)
    for ks in range(6):
        p(f"s_waitcnt lgkmcnt({8 if ks < 5 else 0})")
        b = KF + 16 * (ks % 3)
        for mt in range(3):
            c = "0" if ks == 0 else f"v[{KD+4*mt}:{KD+4*mt+3}]"
            p(f"v_mfma_f32_16x16x32_bf16 v[{KD+4*mt}:{KD+4*mt+3}], v[{b+4*mt}:{b+4*mt+3}], v[{b+12}:{b+15}], {c}")
        if ks + 2 < 6: kvreads(ks + 2)
        elif ks == 4: pass
    q = V.alloc(6, align=4)
    p(f"""
    v_cvt_pk_bf16_f32 v{q}, v{KD}, v{KD+1}
    v_cvt_pk_bf16_f32 v{q+1}, v{KD+2}, v{KD+3}
    v_cvt_pk_bf16_f32 v{q+2}, v{KD+4}, v{KD+5}
    v_cvt_pk_bf16_f32 v{q+3}, v{KD+6}, v{KD+7}
    v_cvt_pk_bf16_f32 v{q+4}, v{KD+8}, v{KD+9}
    buffer_store_dwordx4 v[{q}:{q+3}], v{vP0}, s[{SRD_WS}:{SRD_WS+3}], 0 offen sc1
    buffer_store_dword v{q+4}, v{vP1}, s[{SRD_WS}:{SRD_WS+3}], 0 offen sc1
    """)
    p(f"""
    s_lshl_b32 s{sT0}, s{sHP}, 8
    s_lshl_b32 s{sT1}, s{sRB}, 4
    s_add_u32 s{sT0}, s{sT0}, s{sT1}
    s_lshl_b32 s{sT1}, s{sWR}, 2
    s_add_u32 s{sT0}, s{sT0}, s{sT1}
    s_add_u32 s{sT0}, s{sT0}, {WS_F1}
    v_mov_b32 v{t0}, s{sT0}
    v_mov_b32 v{t1}, s{sNONCE}
    s_waitcnt vmcnt(0)
    s_mov_b32 exec_lo, 1
    s_mov_b32 exec_hi, 0
    buffer_store_dword v{t1}, v{t0}, s[{SRD_WS}:{SRD_WS+3}], 0 offen sc1
    s_mov_b64 exec, -1
    """)
    stamp(p, 6)
    p(f"""
    s_lshl_b32 s{sT0}, s{sHP}, 8
    s_add_u32 s{sT0}, s{sT0}, {WS_F1}
    v_min_u32 v{t0}, 43, v{vLane}
    v_lshl_add_u32 v{t0}, v{t0}, 2, s{sT0}
    s_mov_b32 s{sCNT}, 0
    """)
    p.label("L_b_poll1")
    p(f"""
    buffer_load_dword v{t1}, v{t0}, s[{SRD_WS}:{SRD_WS+3}], 0 offen sc1
    s_add_u32 s{sCNT}, s{sCNT}, 1
    s_cmp_gt_u32 s{sCNT}, {SPIN_MAX}
    s_cbranch_scc1 L_b_poll1_ok
    s_waitcnt vmcnt(0)
    v_cmp_ne_u32 vcc, s{sNONCE}, v{t1}
    s_cbranch_vccnz L_b_poll1
    """)
    p.label("L_b_poll1_ok")
    p("s_waitcnt vmcnt(0)")
    stamp(p, 7)
    L = V.alloc(56, align=4)
    A10 = V.alloc(10, align=2)
    p(f"""
    s_mul_i32 s{sT0}, s{sRB}, {16*PART_STRIDE}
    v_subrev_u32 v{t0}, s{sT0}, v{vP0}
    v_subrev_u32 v{t1}, s{sT0}, v{vP1}
    s_mov_b32 s{sT0}, 0
    """)
    for r in range(11):
        p(f"buffer_load_dwordx4 v[{L+4*r}:{L+4*r+3}], v{t0}, s[{SRD_WS}:{SRD_WS+3}], s{sT0} offen sc1")
        p(f"buffer_load_dword v{L+44+r}, v{t1}, s[{SRD_WS}:{SRD_WS+3}], s{sT0} offen sc1")
        if r < 10: p(f"s_add_u32 s{sT0}, s{sT0}, {16*PART_STRIDE}")
    sHI = 97
    p(f"s_mov_b32 s{sHI}, 0xffff0000")
    u = V.alloc(2, align=2)
    for r in range(11):
        p(f"s_waitcnt vmcnt({2*(10-r)})")
        for k in range(5):
            src = L + 4*r + k if k < 4 else L + 44 + r
            if r == 0:
                p(f"v_lshlrev_b32 v{A10+2*k}, 16, v{src}")
                p(f"v_and_b32 v{A10+2*k+1}, s{sHI}, v{src}")
            else:
                p(f"v_lshlrev_b32 v{u}, 16, v{src}")
                p(f"v_and_b32 v{u+1}, s{sHI}, v{src}")
                p(f"v_pk_add_f32 v[{A10+2*k}:{A10+2*k+1}], v[{A10+2*k}:{A10+2*k+1}], v[{u}:{u+1}]")
    for k in range(5):
        p(f"v_cvt_pk_bf16_f32 v{L+k}, v{A10+2*k}, v{A10+2*k+1}")
    p(f"""
    s_lshl_b32 s{sT0}, s{sHD}, 1
    s_add_u32 s{sT0}, s{sT0}, s{sHF}
    s_lshl_b32 s{sT1}, s{sT0}, 10
    s_add_u32 s{sT1}, s{sT1}, {AST}
    v_lshl_add_u32 v{t0}, v{vLane}, 4, s{sT1}
    ds_write_b128 v{t0}, v[{L}:{L+3}]
    s_lshl_b32 s{sT1}, s{sT0}, 8
    s_add_u32 s{sT1}, s{sT1}, {AST + 4096}
    v_lshl_add_u32 v{t1}, v{vLane}, 2, s{sT1}
    ds_write_b32 v{t1}, v{L+4}
    s_waitcnt lgkmcnt(0)
    s_barrier
    """)
    stamp(p, 8)
    p("s_branch L_b_final")
    for r, n in ((O, 12), (vPh, 1), (vAa, 1), (vB0, 1), (KF, 48), (KD, 12), (vP0, 1), (vP1, 1), (q, 6), (L, 56), (A10, 10), (u, 2)):
        V.release(r, n)
    p.label("L_b_qtype")
    p("s_waitcnt lgkmcnt(0)\n s_barrier")
    p(f"""
    s_lshr_b32 s{sT0}, s2, 3               ; i
    s_cmp_ge_u32 s{sT0}, 10
    s_cselect_b32 s{sT1}, 1, 0
    s_and_b32 s{sT2}, s2, 7
    s_lshl_b32 s{sT2}, s{sT2}, 1
    s_add_u32 s{sRT}, s{sT2}, s{sT1}
    s_mul_i32 s{sT1}, s{sT1}, 10
    s_sub_u32 s{sCG}, s{sT0}, s{sT1}
    s_cmp_ge_u32 s2, 160
    s_cbranch_scc1 L_b_nowo
    ; LDS row k' = 8 z + e holds wo row 40 (z/5) + 4 (z%5) + 20 (e>>2) + (e&3);  z = 20 wr + i'
    v_lshrrev_b32 v{t0}, 3, v{vLane}            ; e
    v_bfe_u32 v{t1}, v{t0}, 1, 1
    v_lshlrev_b32 v{t1}, 1, v{t1}
    v_and_b32 v{t2}, 7, v{vLane}
    v_xor_b32 v{t1}, v{t1}, v{t2}
    v_xor_b32 v{t2}, 4, v{t1}
    v_lshrrev_b32 v{t3}, 2, v{t0}
    v_mul_u32_u24 v{t3}, 20, v{t3}
    v_and_b32 v{t0}, 3, v{t0}
    v_add_u32 v{t0}, v{t0}, v{t3}
    s_mul_i32 s{sT0}, s{sWR}, 160
    v_add_u32 v{t0}, s{sT0}, v{t0}
    v_mul_u32_u24 v{t0}, 1280, v{t0}
    s_lshl_b32 s{sT0}, s{sCG}, 7
    v_add_u32 v{t0}, s{sT0}, v{t0}
    v_lshl_add_u32 v{t3}, v{t2}, 4, v{t0}
    v_lshl_add_u32 v{t0}, v{t1}, 4, v{t0}
    s_mul_i32 s{sM0}, s{sWR}, 20480
    """)
    for i in range(20):
        p(f"s_mov_b32 s{sT1}, {(40*(i//5) + 4*(i%5))*1280}")
        p(f"s_add_u32 m0, s{sM0}, {WO_IMG + 1024*i}")
        p(f"buffer_load_dwordx4 v{t3 if i & 1 else t0}, s[{SRD_WO}:{SRD_WO+3}], s{sT1} offen lds")
    p.label("L_b_nowo")
    stamp(p, 4)
    PQ = V.alloc(3*2*6 + 2, align=2)
    for k in range(3*2*6 + 2):
        if k % 6 == 5 or k >= 36: p(f"v_mov_b32 v{PQ+k}, 0")
    for nt in range(3):
        softmax(nt, [PQ + 12*nt, PQ + 12*nt + 6])
    stamp(p, 5)
    p("s_waitcnt lgkmcnt(0)\n s_barrier")
    stamp(p, 6)
    AF = V.alloc(32, align=4)
    p(f"""
    v_lshlrev_b32 v{t0}, 4, v{vLane}
    v_add_u32 v{t0}, {AST}, v{t0}
    v_lshlrev_b32 v{t1}, 2, v{vLane}
    v_add_u32 v{t1}, {AST+4096}, v{t1}
    """)
    for k in range(4):
        p(f"ds_read_b128 v[{AF+8*k}:{AF+8*k+3}], v{t0} offset:{1024*k}")
        p(f"ds_read_b32 v{AF+8*k+4}, v{t1} offset:{256*k}")
        for z in (5, 6, 7): p(f"v_mov_b32 v{AF+8*k+z}, 0")
    vOa = V.alloc(); vOb = V.alloc(); OD = V.alloc(16, align=4); w = V.alloc(8, align=4)
    sEPS = 97
    p(f"""
    s_mov_b32 s{sEPS}, 0x358637bd
    s_mul_i32 s{sT0}, s{sRB}, 12
    s_mul_i32 s{sT1}, s{sWR}, 3
    s_add_u32 s{sT0}, s{sT0}, s{sT1}
    s_mul_i32 s{sT0}, s{sT0}, {O_TILE}
    s_mul_i32 s{sT1}, s{sHP}, 1280
    s_add_u32 s{sT0}, s{sT0}, s{sT1}
    s_add_u32 s{sT0}, s{sT0}, {WS_O}
    v_lshl_add_u32 v{vOa}, v{vLane}, 4, s{sT0}
    v_lshlrev_b32 v{t0}, 4, v{vI}
    v_lshl_add_u32 v{t0}, v{vG}, 3, v{t0}
    s_add_u32 s{sT0}, s{sT0}, 1024
    v_add_u32 v{vOb}, s{sT0}, v{t0}
    v_cmp_gt_u32 vcc, 16, v{vLane}
    s_waitcnt lgkmcnt(0)
    """)
    for nt in range(3):
        for h in range(2):
            b = PQ + 12*nt + 6*h
            a = AF + 16*h
            o0 = OD + 8*h; o1 = o0 + 4
            p(f"""
            v_mfma_f32_16x16x32_bf16 v[{o0}:{o0+3}], v[{a}:{a+3}], v[{b}:{b+3}], 0
            v_mfma_f32_16x16x32_bf16 v[{o1}:{o1+3}], v[{a+8}:{a+11}], v[{b}:{b+3}], 0
            v_mfma_f32_16x16x32_bf16 v[{o0}:{o0+3}], v[{a+4}:{a+7}], v[{b+4}:{b+7}], v[{o0}:{o0+3}]
            v_mfma_f32_16x16x32_bf16 v[{o1}:{o1+3}], v[{a+12}:{a+15}], v[{b+4}:{b+7}], v[{o1}:{o1+3}]
            """)
        y = [w + 6, w + 7]
        p(f"v_mov_b32 v{y[0]}, v{OD+4}")
        p(f"v_mov_b32 v{y[1]}, v{OD+12}")
        p(f"v_permlane16_swap_b32 v{OD+4}, v{y[0]}")
        p(f"v_permlane16_swap_b32 v{y[1]}, v{OD+12}")
        p(f"v_add_f32 v{y[0]}, s{sEPS}, v{y[0]}")
        p(f"v_add_f32 v{y[1]}, s{sEPS}, v{y[1]}")
        p(f"v_rcp_f32 v{y[0]}, v{y[0]}")
        p(f"v_rcp_f32 v{y[1]}, v{y[1]}")
        for h in range(2):
            for r in range(0, 8, 2):
                a = OD + 8*h + r
                p(f"v_pk_mul_f32 v[{a}:{a+1}], v[{a}:{a+1}], v[{w+6}:{w+7}] op_sel:[0,{h}] op_sel_hi:[1,{h}]")
        p(f"""
        v_cvt_pk_bf16_f32 v{w}, v{OD}, v{OD+1}
        v_cvt_pk_bf16_f32 v{w+1}, v{OD+2}, v{OD+3}
        v_cvt_pk_bf16_f32 v{w+2}, v{OD+8}, v{OD+9}
        v_cvt_pk_bf16_f32 v{w+3}, v{OD+10}, v{OD+11}
        v_cvt_pk_bf16_f32 v{OD+4}, v{OD+4}, v{OD+5}
        v_cvt_pk_bf16_f32 v{OD+5}, v{OD+6}, v{OD+7}
        v_cvt_pk_bf16_f32 v{OD+12}, v{OD+12}, v{OD+13}
        v_cvt_pk_bf16_f32 v{OD+13}, v{OD+14}, v{OD+15}
        s_mov_b32 s{sT1}, {O_TILE*nt}
        buffer_store_dwordx4 v[{w}:{w+3}], v{vOa}, s[{SRD_WS}:{SRD_WS+3}], s{sT1} offen sc1
        v_cndmask_b32 v{w+4}, v{OD+12}, v{OD+4}, vcc
        v_cndmask_b32 v{w+5}, v{OD+13}, v{OD+5}, vcc
        s_mov_b32 exec_hi, 0
        buffer_store_dwordx2 v[{w+4}:{w+5}], v{vOb}, s[{SRD_WS}:{SRD_WS+3}], s{sT1} offen sc1
        s_mov_b32 exec_hi, -1
        """)
    p(f"""
    s_lshl_b32 s{sT0}, s{sRB}, 2
    s_add_u32 s{sT0}, s{sT0}, s{sWR}
    s_lshl_b32 s{sT0}, s{sT0}, 6
    s_lshl_b32 s{sT1}, s{sHP}, 2
    s_add_u32 s{sT0}, s{sT0}, s{sT1}
    s_add_u32 s{sT0}, s{sT0}, {WS_F2}
    v_mov_b32 v{t0}, s{sT0}
    v_mov_b32 v{t1}, s{sNONCE}
    s_waitcnt vmcnt(0)
    s_mov_b32 exec_lo, 1
    s_mov_b32 exec_hi, 0
    buffer_store_dword v{t1}, v{t0}, s[{SRD_WS}:{SRD_WS+3}], 0 offen sc1
    s_mov_b64 exec, -1
    """)
    stamp(p, 7)
    for r, n in ((PQ, 38), (AF, 32), (vOa, 1), (vOb, 1), (OD, 16), (w, 8)):
        V.release(r, n)
    for r, n in ((P, 24), (T, 12), (E, 20), (S, 8), (vRow, 1), (vV2, 1), (vV3, 1), (vFA, 16)):
        V.release(r, n)
    p.label("L_b_final")
    p(f"""
    s_cmp_ge_u32 s2, 160
    s_cbranch_scc1 L_b_done
    s_lshr_b32 s{sT0}, s2, 3
    s_cmp_ge_u32 s{sT0}, 10
    s_cselect_b32 s{sT1}, 1, 0
    s_and_b32 s{sT2}, s2, 7
    s_lshl_b32 s{sT2}, s{sT2}, 1
    s_add_u32 s{sRT}, s{sT2}, s{sT1}
    s_mul_i32 s{sT1}, s{sT1}, 10
    s_sub_u32 s{sCG}, s{sT0}, s{sT1}
    s_lshl_b32 s{sT0}, s{sRT}, 7
    s_mul_i32 s{sT1}, s{sT0}, 43691
    s_lshr_b32 s{sT1}, s{sT1}, 21
    s_add_u32 s{sT0}, s{sT0}, 127
    s_mul_i32 s{sT0}, s{sT0}, 43691
    s_lshr_b32 s{sT0}, s{sT0}, 21
    v_add_u32 v{t0}, s{sT1}, v{vG}
    v_min_u32 v{t0}, s{sT0}, v{t0}
    v_lshlrev_b32 v{t0}, 6, v{t0}
    v_lshl_add_u32 v{t0}, v{vI}, 2, v{t0}
    v_add_u32 v{t0}, {WS_F2}, v{t0}
    s_mov_b32 s{sCNT}, 0
    """)
    p.label("L_b_poll2")
    p(f"""
    buffer_load_dword v{t1}, v{t0}, s[{SRD_WS}:{SRD_WS+3}], 0 offen sc1
    s_add_u32 s{sCNT}, s{sCNT}, 1
    s_cmp_gt_u32 s{sCNT}, {SPIN_MAX}
    s_cbranch_scc1 L_b_poll2_ok
    s_waitcnt vmcnt(0)
    v_cmp_ne_u32 vcc, s{sNONCE}, v{t1}
    s_cbranch_vccnz L_b_poll2
    """)
    p.label("L_b_poll2_ok")
    p("s_waitcnt vmcnt(0)")
    stamp(p, 9)
    sRQ, sKH = 95, 96
    OF = V.alloc(80, align=4)
    vR = V.alloc()
    p(f"""
    s_and_b32 s{sRQ}, s{sW}, 3
    s_lshr_b32 s{sKH}, s{sW}, 2
    s_lshl_b32 s{sT0}, s{sRT}, 3
    s_lshl_b32 s{sT1}, s{sRQ}, 1
    s_add_u32 s{sT0}, s{sT0}, s{sT1}
    s_mul_i32 s{sT0}, s{sT0}, {O_TILE}
    s_mul_i32 s{sT1}, s{sKH}, 10240
    s_add_u32 s{sT0}, s{sT0}, s{sT1}
    s_add_u32 s{sT0}, s{sT0}, {WS_O}
    v_lshl_add_u32 v{vR}, v{vLane}, 4, s{sT0}
    """)
    for ks in range(10):
        for nt in range(2):
            p(f"s_mov_b32 s{sT1}, {O_TILE*nt + 4096*(ks >> 2)}")
            p(f"buffer_load_dwordx4 v[{OF+8*ks+4*nt}:{OF+8*ks+4*nt+3}], v{vR}, s[{SRD_WS}:{SRD_WS+3}], s{sT1} offen offset:{1024*(ks & 3)} sc1")
    vA = V.alloc(4, align=1)
    for mt in range(4):
        p(f"""
        v_lshrrev_b32 v{t2}, 2, v{vI}
        v_bfe_u32 v{t3}, v{t2}, 1, 1
        v_and_b32 v{t0}, 1, v{vG}
        v_lshl_add_u32 v{t3}, v{t0}, 1, v{t3}        ; psi
        v_xor_b32 v{t3}, {mt}, v{t3}
        v_lshlrev_b32 v{t3}, 1, v{t3}
        v_bfe_u32 v{t0}, v{vI}, 1, 1
        v_add_u32 v{t3}, v{t3}, v{t0}
        v_lshlrev_b32 v{t3}, 4, v{t3}
        v_and_b32 v{t0}, 1, v{vI}
        v_lshl_add_u32 v{t3}, v{t0}, 3, v{t3}
        v_lshl_add_u32 v{t2}, v{vG}, 3, v{t2}
        v_lshl_add_u32 v{t3}, v{t2}, 7, v{t3}
        s_mul_i32 s{sT1}, s{sKH}, {320*128}
        v_add_u32 v{vA+mt}, s{sT1}, v{t3}
        """)
    FAc = V.alloc(32, align=4); WA = [V.alloc(16, align=4), V.alloc(16, align=4)]
    p("s_barrier")
    def wreads(ks):
        b = WA[ks & 1]
        for mt in range(4):
            for h in range(2):
                p(f"ds_read_b64_tr_b16 v[{b+4*mt+2*h}:{b+4*mt+2*h+1}], v{vA+mt} offset:{WO_IMG + 4096*ks + 512*h}")
    wreads(0)
    for ks in range(10):
        if ks < 9:
            wreads(ks + 1)
            p(f"s_waitcnt vmcnt({2*(9-ks)}) lgkmcnt(8)")
        else:
            p("s_waitcnt vmcnt(0) lgkmcnt(0)")
        for mt in range(4):
            for nt in range(2):
                a = FAc + 16*nt + 4*mt
                c = "0" if ks == 0 else f"v[{a}:{a+3}]"
                p(f"v_mfma_f32_16x16x32_bf16 v[{a}:{a+3}], v[{WA[ks&1]+4*mt}:{WA[ks&1]+4*mt+3}], v[{OF+8*ks+4*nt}:{OF+8*ks+4*nt+3}], {c}")
    stamp(p, 10)
    p(f"""
    s_lshl_b32 s{sT0}, s{sW}, 12
    s_add_u32 s{sT0}, s{sT0}, {RED}
    v_lshl_add_u32 v{t0}, v{vLane}, 4, s{sT0}
    s_xor_b32 s{sT1}, s{sW}, 4
    s_lshl_b32 s{sT1}, s{sT1}, 12
    s_add_u32 s{sT1}, s{sT1}, {RED}
    v_lshl_add_u32 v{t1}, v{vLane}, 4, s{sT1}
    s_cmp_eq_u32 s{sKH}, 0
    s_cbranch_scc1 L_b_red0
    """)
    for k in range(4):
        p(f"ds_write_b128 v{t0}, v[{FAc+4*k}:{FAc+4*k+3}] offset:{1024*k}")
    for k in range(16):
        p(f"v_mov_b32 v{OF+16+k}, v{FAc+16+k}")
    p("s_branch L_b_red2")
    p.label("L_b_red0")
    for k in range(4):
        p(f"ds_write_b128 v{t0}, v[{FAc+16+4*k}:{FAc+16+4*k+3}] offset:{1024*k}")
    for k in range(16):
        p(f"v_mov_b32 v{OF+16+k}, v{FAc+k}")
    p.label("L_b_red2")
    p("s_waitcnt lgkmcnt(0)\n s_barrier")
    for k in range(4):
        p(f"ds_read_b128 v[{OF+4*k}:{OF+4*k+3}], v{t1} offset:{1024*k}")
    p(f"""
    s_lshl_b32 s{sT0}, s{sRT}, 7
    s_lshl_b32 s{sT1}, s{sRQ}, 5
    s_add_u32 s{sT0}, s{sT0}, s{sT1}
    s_lshl_b32 s{sT1}, s{sKH}, 4
    s_add_u32 s{sT0}, s{sT0}, s{sT1}
    v_add_u32 v{t2}, s{sT0}, v{vI}
    v_mul_u32_u24 v{t2}, 2560, v{t2}
    v_and_b32 v{t3}, 1, v{vG}
    v_lshl_add_u32 v{t2}, v{t3}, 5, v{t2}
    v_lshrrev_b32 v{t3}, 1, v{vG}
    v_lshl_add_u32 v{t2}, v{t3}, 4, v{t2}
    s_lshl_b32 s{sT0}, s{sCG}, 7
    s_add_u32 s{sT0}, s{sT0}, 1280
    v_add_u32 v{t2}, s{sT0}, v{t2}
    """)
    for a2 in range(2):
        for mt in (2*a2, 2*a2 + 1):
            a = OF + 16 + 4*mt; b = OF + 4*mt
            p(f"s_waitcnt lgkmcnt({3-mt})")
            p(f"v_pk_add_f32 v[{a}:{a+1}], v[{a}:{a+1}], v[{b}:{b+1}]")
            p(f"v_pk_add_f32 v[{a+2}:{a+3}], v[{a+2}:{a+3}], v[{b+2}:{b+3}]")
        A = OF + 16 + 8*a2; B = A + 4; d = FAc + 4*a2
        p(f"""
        v_cvt_pk_bf16_f32 v{d}, v{A}, v{A+1}
        v_cvt_pk_bf16_f32 v{d+1}, v{A+2}, v{A+3}
        v_cvt_pk_bf16_f32 v{d+2}, v{B}, v{B+1}
        v_cvt_pk_bf16_f32 v{d+3}, v{B+2}, v{B+3}
        v_permlane16_swap_b32 v{d}, v{d+2}
        v_permlane16_swap_b32 v{d+1}, v{d+3}
        buffer_store_dwordx4 v[{d}:{d+3}], v{t2}, s[{SRD_O}:{SRD_O+3}], 0 offen offset:{64*a2}
        """)
    p.label("L_b_red1")
    p.label("L_b_done")
    stamp(p, 11)
    if common.DIAG:
        p('s_waitcnt vmcnt(0)')
        stamp(p, 12)
        stamps_flush(p, t0, t1)
    return V
```

```python
import sys
from common import *
import common
from part_a import gen_part_a
from part_b import gen_part_b

def build(out, diag=False):
    common.DIAG = diag
    p = Prog()
    stamps_reset()
    if diag:
        p('s_memrealtime s[98:99]\n s_waitcnt lgkmcnt(0)\n s_mov_b32 s64, s98')
        stamps_reset(1)
    p(f"""
    s_cmp_ge_u32 s2, {N_WG}
    s_cbranch_scc1 L_end
    s_load_dwordx16 s[4:19], s[0:1], 0
    s_load_dwordx8 s[20:27], s[0:1], 64
    s_load_dwordx4 s[28:31], s[0:1], 96
    s_cmp_lt_u32 s2, {N_B}
    s_cbranch_scc1 L_partb
    """)
    if 'noa' in common.OPT: p("s_endpgm")
    V = gen_part_a(p)
    print("part A vgpr high", V.high)
    p("s_endpgm")
    p.label("L_partb")
    stamps_reset(1 if diag else 0)
    V = gen_part_b(p)
    print("part B vgpr high", V.high)
    p.label("L_end")
    p("s_endpgm")
    txt = header_text() + p.finalize(True) + footer_text()
    open(out, "w").write(txt)

if __name__ == "__main__":
    tag = sys.argv[1] if len(sys.argv) > 1 else ""
    if not tag: build("k.s")
    build(f"kd{tag}.s", True)
```

```python
from common import *
import common

SLOT = 40960
WOFF = 24576
WO_IMG = 0
PHI = 81920
RS = 296
AST = 139264
RED = 81920
WS_PART = 65536
PART_STRIDE = 5120
WS_O = 1 << 20
O_TILE = 20480
WS_SIZE = 16 << 20
SPIN_MAX = 1 << 14
DBG_CNT = 4

def merge(streams):
    out = []
    n = max(len(s) for s in streams)
    for j in range(n):
        for s in streams:
            if j < len(s): out.append(s[j])
    return out

def gen_part_b(p):
    V = VAlloc(256, start=1)
    sJ, sI, sT, sRB, sHP, sW, sWR, sTY = 32, 33, 34, 35, 36, 37, 38, 39
    SRD_X, SRD_W, SRD_WS, SRD_WO, SRD_O = 40, 44, 48, 52, 56
    sT0, sT1, sT2, sT3 = 60, 61, 62, 63
    sKC = 81; sS = 82; sSLOTD = 83; sXO = 84; sWO = 85; sM0 = 86; sROW0 = 87
    sL = 88
    sRT, sCG, sDSLOT = 92, 93, 94
    sNEG = 100; sCNT = 101
    OPT = common.OPT
    p(f"""
    s_and_b32 s{sJ}, s2, 7
    s_lshr_b32 s{sI}, s2, 3
    s_lshr_b32 s{sT0}, s{sJ}, 2
    s_mul_i32 s{sT0}, s{sT0}, 22
    s_add_u32 s{sT}, s{sT0}, s{sI}
    s_lshr_b32 s{sRB}, s{sT}, 2
    s_and_b32 s{sT0}, s{sT}, 3
    s_and_b32 s{sT1}, s{sJ}, 3
    s_lshl_b32 s{sT1}, s{sT1}, 2
    s_add_u32 s{sHP}, s{sT1}, s{sT0}
    s_mul_i32 s{sROW0}, s{sRB}, 192
    s_mul_i32 s{sT1}, s{sT0}, 3
    s_lshl_b32 s{sT2}, s{sRB}, 1
    s_add_u32 s{sKC}, s{sT1}, s{sT2}
    s_mul_i32 s{sT1}, s{sKC}, 205
    s_lshr_b32 s{sT1}, s{sT1}, 11
    s_mul_i32 s{sT1}, s{sT1}, 10
    s_sub_u32 s{sKC}, s{sKC}, s{sT1}
    """)
    vLane = V.alloc(); vI = V.alloc(); vG = V.alloc(); t0 = V.alloc(); t1 = V.alloc(); t2 = V.alloc(); t3 = V.alloc()
    p(f"""
    v_lshrrev_b32 v{t0}, 6, v0
    v_and_b32 v{vLane}, 63, v0
    v_readfirstlane_b32 s{sW}, v{t0}
    v_and_b32 v{vI}, 15, v{vLane}
    v_lshrrev_b32 v{vG}, 4, v{vLane}
    s_and_b32 s{sWR}, s{sW}, 3
    s_lshr_b32 s{sTY}, s{sW}, 2
    """)
    vXo = V.alloc(3, align=1); vWo = V.alloc()
    p(f"""
    s_mul_i32 s{sT0}, s{sW}, 24
    v_lshrrev_b32 v{t0}, 3, v{vLane}
    v_add_u32 v{t0}, s{sT0}, v{t0}
    v_and_b32 v{t2}, 7, v{vLane}
    v_add_u32 v{t3}, s{sROW0}, v{t0}
    v_mul_u32_u24 v{t3}, 1280, v{t3}
    """)
    for e in range(3):
        p(f"""
        v_add_u32 v{t1}, {8*e}, v{t0}
        v_bfe_u32 v{t1}, v{t1}, 1, 3
        v_xor_b32 v{t1}, v{t1}, v{t2}
        v_lshl_add_u32 v{vXo+e}, v{t1}, 4, v{t3}
        """)
        if e: p(f"v_add_u32 v{vXo+e}, {8*e*1280}, v{vXo+e}")
    p(f"""
    s_and_b32 s{sT0}, s{sW}, 1
    s_lshl_b32 s{sT0}, s{sT0}, 3
    v_lshlrev_b32 v{t0}, 1, v{vG}
    v_add_u32 v{t0}, s{sT0}, v{t0}
    v_xor_b32 v{t0}, v{t0}, v{vI}
    v_min_u32 v{t0}, 14, v{t0}
    ; c<5: 1280+16c ; c<8: 2560+16(c-5) ; c<13: 16(c-8) ; else 2560+16(c-10)
    v_lshlrev_b32 v{t1}, 4, v{t0}
    v_add_u32 v{t2}, {2560-160}, v{t1}
    v_subrev_u32 v{t3}, 128, v{t1}
    v_cmp_gt_u32 vcc, 13, v{t0}
    v_cndmask_b32 v{t2}, v{t2}, v{t3}, vcc
    v_add_u32 v{t3}, {2560-80}, v{t1}
    v_cmp_gt_u32 vcc, 8, v{t0}
    v_cndmask_b32 v{t2}, v{t2}, v{t3}, vcc
    v_add_u32 v{t3}, 1280, v{t1}
    v_cmp_gt_u32 vcc, 5, v{t0}
    v_cndmask_b32 v{t2}, v{t2}, v{t3}, vcc
    s_mul_i32 s{sT0}, s{sHP}, 80
    s_mul_i32 s{sT1}, s{sW}, {8*3840}
    s_add_u32 s{sT0}, s{sT0}, s{sT1}
    v_mul_u32_u24 v{t0}, 3840, v{vG}
    v_add3_u32 v{vWo}, v{t0}, v{t2}, s{sT0}
    s_mul_i32 s{sT0}, s{sHP}, 1600
    v_lshlrev_b32 v{t0}, 4, v{vLane}
    v_add_u32 v{t0}, s{sT0}, v{t0}
    v_add_u32 v{t1}, 1024, v{t0}
    s_waitcnt lgkmcnt(0)
    """)
    srd(p, SRD_X, S_X, 2048 * 1280)
    srd(p, SRD_W, S_WQKV, 640 * 3840)
    def dma_stage(slot, const=True):
        L = [f"s_lshl_b32 s{sXO}, s{sKC}, 7", f"s_mul_i32 s{sWO}, s{sKC}, {64*3840}", f"s_mul_i32 s{sM0}, s{sW}, 3072",
             f"s_add_u32 s{sM0}, s{sM0}, {slot}" if const else f"s_add_u32 s{sM0}, s{sM0}, s{slot}"]
        grp = []
        for e in range(3):
            grp.append([f"s_add_u32 m0, s{sM0}, {1024*e}", f"buffer_load_dwordx4 v{vXo+e}, s[{SRD_X}:{SRD_X+3}], s{sXO} offen lds"])
        grp.append([f"s_lshl_b32 s{sT2}, s{sW}, 10", f"s_sub_u32 s{sM0}, s{sM0}, s{sT2}", f"s_add_u32 m0, s{sM0}, {WOFF}",
                    f"buffer_load_dwordx4 v{vWo}, s[{SRD_W}:{SRD_W+3}], s{sWO} offen lds"])
        grp.append([f"s_add_u32 s{sWO}, s{sWO}, {4*3840}", f"s_add_u32 m0, s{sM0}, {WOFF+1024}",
                    f"buffer_load_dwordx4 v{vWo}, s[{SRD_W}:{SRD_W+3}], s{sWO} offen lds"])
        post = [f"s_add_u32 s{sKC}, s{sKC}, 1", f"s_cmp_eq_u32 s{sKC}, 10", f"s_cselect_b32 s{sKC}, 0, s{sKC}"]
        return L, grp, post
    def emit_dma(slot):
        L, grp, post = dma_stage(slot)
        for x in L + sum(grp, []) + post: p(x)
    emit_dma(0)
    vWp = V.alloc(4, align=4); vWp2 = V.alloc(4, align=4)
    p(f"""
    global_load_dwordx4 v[{vWp}:{vWp+3}], v{t0}, s[{S_WPHI}:{S_WPHI+1}]
    s_mov_b32 exec_hi, 15
    global_load_dwordx4 v[{vWp2}:{vWp2+3}], v{t1}, s[{S_WPHI}:{S_WPHI+1}]
    s_mov_b32 exec_hi, -1
    """)
    emit_dma(SLOT)
    srd(p, SRD_WS, S_WS, WS_SIZE)
    on4 = V.alloc(4, align=4); vC0 = V.alloc(); vC1 = V.alloc()
    p(f"""
    v_mov_b32 v{on4}, -1
    v_mov_b32 v{on4+1}, -1
    v_mov_b32 v{on4+2}, -1
    v_mov_b32 v{on4+3}, -1
    s_cmp_eq_u32 s{sTY}, 0
    s_cbranch_scc0 L_b_clrq
    s_lshl_b32 s{sT0}, s{sRB}, 4
    s_add_u32 s{sT0}, s{sT0}, s{sHP}
    s_mul_i32 s{sT0}, s{sT0}, {PART_STRIDE}
    s_mul_i32 s{sT1}, s{sWR}, 1280
    s_add_u32 s{sT0}, s{sT0}, s{sT1}
    s_add_u32 s{sT0}, s{sT0}, {WS_PART}
    v_lshl_add_u32 v{vC0}, v{vLane}, 4, s{sT0}
    s_add_u32 s{sT0}, s{sT0}, 1024
    v_lshl_add_u32 v{vC1}, v{vLane}, 2, s{sT0}
    buffer_store_dwordx4 v[{on4}:{on4+3}], v{vC0}, s[{SRD_WS}:{SRD_WS+3}], 0 offen sc1
    buffer_store_dword v{on4}, v{vC1}, s[{SRD_WS}:{SRD_WS+3}], 0 offen sc1
    s_branch L_b_clrd
    """)
    p.label("L_b_clrq")
    p(f"""
    s_mul_i32 s{sT0}, s{sRB}, 12
    s_mul_i32 s{sT1}, s{sWR}, 3
    s_add_u32 s{sT0}, s{sT0}, s{sT1}
    s_mul_i32 s{sT0}, s{sT0}, {O_TILE}
    s_mul_i32 s{sT1}, s{sHP}, 1280
    s_add_u32 s{sT0}, s{sT0}, s{sT1}
    s_add_u32 s{sT0}, s{sT0}, {WS_O}
    v_lshl_add_u32 v{vC0}, v{vLane}, 4, s{sT0}
    s_add_u32 s{sT0}, s{sT0}, 1024
    v_lshl_add_u32 v{vC1}, v{vLane}, 2, s{sT0}
    """)
    for nt in range(3):
        p(f"s_mov_b32 s{sT1}, {O_TILE*nt}")
        p(f"buffer_store_dwordx4 v[{on4}:{on4+3}], v{vC0}, s[{SRD_WS}:{SRD_WS+3}], s{sT1} offen sc1")
        p(f"buffer_store_dword v{on4}, v{vC1}, s[{SRD_WS}:{SRD_WS+3}], s{sT1} offen sc1")
    p.label("L_b_clrd")
    stamp(p, 1)
    srd(p, SRD_WO, S_WO, 640 * 1280)
    srd(p, SRD_O, S_OUT, 2048 * 2560)
    p(f"""
    s_mov_b32 s{sL}, {LOG2E:#x}
    s_mov_b32 s{sL+1}, {LOG2E:#x}
    s_mov_b32 s{sNEG}, {-3*SLOT & 0xffffffff:#x}
    """)
    vXa = V.alloc(2, align=1); vWa = V.alloc(4, align=1)
    for ks in range(2):
        p(f"""
        v_add_u32 v{t0}, {4*ks}, v{vG}
        v_lshrrev_b32 v{t1}, 1, v{vI}
        v_xor_b32 v{t0}, v{t0}, v{t1}
        v_lshlrev_b32 v{t0}, 4, v{t0}
        s_mul_i32 s{sT0}, s{sWR}, 48
        v_add_u32 v{t1}, s{sT0}, v{vI}
        v_lshl_add_u32 v{vXa+ks}, v{t1}, 7, v{t0}
        """)
    p(f"""
    v_and_b32 v{t0}, 1, v{vG}
    v_xor_b32 v{t0}, s{sTY}, v{t0}
    v_lshlrev_b32 v{t0}, 7, v{t0}
    v_bfe_u32 v{t2}, v{vI}, 1, 1
    v_lshl_add_u32 v{t0}, v{t2}, 4, v{t0}
    v_and_b32 v{t2}, 1, v{vI}
    v_lshl_add_u32 v{t0}, v{t2}, 3, v{t0}
    v_lshrrev_b32 v{t1}, 2, v{vI}
    v_lshl_add_u32 v{t2}, v{vG}, 3, v{t1}
    v_lshl_add_u32 v{t0}, v{t2}, 8, v{t0}
    v_add_u32 v{t0}, {WOFF}, v{t0}
    """)
    for mt in range(4):
        p(f"v_xor_b32 v{t2}, {mt}, v{t1}\n v_lshl_add_u32 v{vWa+mt}, v{t2}, 5, v{t0}")
    acc = V.alloc(48, align=4)
    for k in range(48): p(f"v_mov_b32 v{acc+k}, 0")
    WPB = 3 * SLOT
    vFA = V.alloc(16, align=4)
    FA, FB, FC0, FC1 = vFA, vFA + 4, vFA + 8, vFA + 12
    GT = V.alloc(32, align=1)
    for k in range(32): p(f"v_mov_b32 v{GT+k}, 0")
    p(f"""
    s_lshl_b32 s{sT0}, s{sW}, 11
    s_add_u32 s{sT0}, s{sT0}, {WPB}
    v_lshl_add_u32 v{t0}, v{vLane}, 4, s{sT0}
    v_lshrrev_b32 v{t1}, 2, v{vI}
    v_mul_u32_u24 v{t1}, 5, v{t1}
    v_and_b32 v{t2}, 3, v{vI}
    v_add_u32 v{t2}, v{t1}, v{t2}
    v_lshlrev_b32 v{t2}, 1, v{t2}
    v_mul_u32_u24 v{t3}, 160, v{vG}
    v_add3_u32 v{t2}, v{t2}, v{t3}, s{sT0}      ; t2: f = 5(m>>2)+(m&3)
    v_add_u32 v{t1}, 4, v{t1}
    v_lshlrev_b32 v{t1}, 1, v{t1}
    v_add3_u32 v{t1}, v{t1}, v{t3}, s{sT0}      ; t1: f = 5(m>>2)+4
    s_cmp_eq_u32 s{sTY}, 0
    s_cbranch_scc0 L_b_w1q
    s_waitcnt vmcnt(7)
    s_branch L_b_w1d
    """)
    p.label("L_b_w1q")
    p("s_waitcnt vmcnt(11)")
    p.label("L_b_w1d")
    p(f"""
    ds_write_b128 v{t0}, v[{vWp}:{vWp+3}]
    s_mov_b32 exec_hi, 15
    ds_write_b128 v{t0}, v[{vWp2}:{vWp2+3}] offset:1024
    s_mov_b32 exec_hi, -1
    s_waitcnt lgkmcnt(0)
    """)
    def gather(dst, addr, off, mask):
        p(f"s_mov_b32 exec_lo, {mask & 0xffffffff:#x}\n s_mov_b32 exec_hi, {mask >> 32:#x}")
        for e in range(4):
            p(f"ds_read_u16 v{GT + 2*(dst - vFA) + e}, v{addr} offset:{off + 40*e}")
    G0 = 0xFFFF; G01 = 0xFFFFFFFF; G123 = 0xFFFFFFFFFFFF0000; ALL = (1 << 64) - 1
    R0 = 0x1111111111111111; R1 = 0x2222222222222222
    gather(FA, t2, 0, ALL);            gather(FA + 2, t2, 16*40, G0)
    gather(FB, t2, 800 - 160, G123);   gather(FB + 2, t2, 800 + 12*40, G01)
    gather(FC0, t1, 0, R0);            gather(FC0 + 2, t1, 16*40, G0 & R0)
    gather(FC1, t1, 800 - 160, G123 & R1); gather(FC1 + 2, t1, 800 + 12*40, G01 & R1)
    p("s_mov_b64 exec, -1\n s_waitcnt lgkmcnt(0)")
    for k in range(16):
        p(f"v_lshl_or_b32 v{vFA+k}, v{GT+2*k+1}, 16, v{GT+2*k}")
    V.release(GT, 32); V.release(vWp, 4); V.release(vWp2, 4); V.release(on4, 4); V.release(vC0); V.release(vC1)
    XF = [V.alloc(12, align=4), V.alloc(12, align=4)]
    WF = [V.alloc(16, align=4), V.alloc(16, align=4)]
    def reads(ks):
        L = []
        for mt in range(4):
            for h in range(2):
                L.append(f"ds_read_b64_tr_b16 v[{WF[ks]+4*mt+2*h}:{WF[ks]+4*mt+2*h+1}], v{vWa+mt} offset:{8192*ks + 1024*h}")
        X = [f"ds_read_b128 v[{XF[ks]+4*nt}:{XF[ks]+4*nt+3}], v{vXa+ks} offset:{2048*nt}" for nt in range(3)]
        return [L[0], L[1], X[0], X[1], X[2]] + L[2:]
    def mfmas(ks):
        L = []
        for mt in range(4):
            for nt in range(3):
                a = acc + 16*nt + 4*mt
                L.append(f"v_mfma_f32_16x16x32_bf16 v[{a}:{a+3}], v[{WF[ks]+4*mt}:{WF[ks]+4*mt+3}], v[{XF[ks]+4*nt}:{XF[ks]+4*nt+3}], v[{a}:{a+3}]")
        return L
    def sched(main, slots):
        for i, m in enumerate(main):
            if 'nomfma' not in OPT: p(m)
            for x in slots.get(i, []):
                if ('nomfma' in OPT or 'nords' in OPT) and x.startswith('ds_read'): continue
                if 'nodma' in OPT and x.startswith('buffer_load'): continue
                p(x)
    def advance():
        return [f"v_add_u32 v{r}, s{sSLOTD}, v{r}" for r in (vWa, vXa, vWa+1, vWa+2, vWa+3, vXa+1)]
    p("s_barrier")
    stamp(p, 2); cstamp(p, 13)
    for x in reads(0): p(x)
    emit_dma(2 * SLOT)
    p(f"s_mov_b32 s{sS}, 0\n s_mov_b32 s{sDSLOT}, 0")
    def slot_delta():
        return [f"s_and_b32 s{sT0}, s{sS}, 3", f"s_cmp_eq_u32 s{sT0}, 3", f"s_cselect_b32 s{sSLOTD}, s{sNEG}, {SLOT}"]
    RSP = int(common.os.environ.get("RSP", "2"))
    def read_slots(r, first):
        d = {}
        k = first
        while r:
            d[k] = r[:RSP]; r = r[RSP:]; k += 1
        return d
    def add(d, k, x): d[k] = d.get(k, []) + x
    def half0(tail=False, dma3=False):
        p("s_waitcnt lgkmcnt(0)")
        slots = read_slots(reads(1), 0)
        add(slots, 2, slot_delta())
        if dma3:
            L, grp, post = dma_stage(3 * SLOT)
            add(slots, 6, L + grp[0]); add(slots, 7, grp[1]); add(slots, 8, grp[2]); add(slots, 9, grp[3]); add(slots, 10, grp[4] + post)
        if tail:
            L, grp, post = dma_stage(sDSLOT, const=False)
            add(slots, 6, grp[2]); add(slots, 8, grp[3]); add(slots, 10, grp[4] + post +
                [f"s_add_u32 s{sDSLOT}, s{sDSLOT}, {SLOT}", f"s_cmp_eq_u32 s{sDSLOT}, {4*SLOT}", f"s_cselect_b32 s{sDSLOT}, 0, s{sDSLOT}"])
        sched(mfmas(0), slots)
    def half1(vm, head, nxt=True, extra=None):
        p(f"s_waitcnt vmcnt({vm}) lgkmcnt(0)" if vm is not None else "s_waitcnt lgkmcnt(0)")
        if nxt:
            if 'nobar' not in OPT: p("s_barrier")
            slots = read_slots(reads(0), 1)
            slots[0] = advance()
            if head:
                L, grp, post = dma_stage(sDSLOT, const=False)
                add(slots, 7, L + grp[0]); add(slots, 9, grp[1])
            if extra: add(slots, 8, extra)
            sched(mfmas(1), slots)
        else:
            sched(mfmas(1), {})
    half0(dma3=True)
    cnt = [f"s_cmp_lg_u32 s{sW}, 0", "s_cbranch_scc1 L_b_nocnt", f"v_mov_b32 v{t0}, {DBG_CNT}", f"v_mov_b32 v{t1}, 1",
           "s_mov_b32 exec_lo, 1", "s_mov_b32 exec_hi, 0",
           f"global_atomic_add v{t0}, v{t1}, s[{S_DBG}:{S_DBG+1}] sc1", "s_mov_b64 exec, -1"]
    half1(10, True)
    for x in cnt: p(x)
    p.label("L_b_nocnt")
    p(f"s_mov_b32 s{sS}, 1")
    p.label("L_b_main")
    half0(tail=True); half1(10, True)
    p(f"s_add_u32 s{sS}, s{sS}, 1\n s_cmp_lt_u32 s{sS}, 6\n s_cbranch_scc1 L_b_main")
    vNon = V.alloc()
    half0(tail=True); half1(10, False, extra=[f"v_mov_b32 v{t0}, {DBG_CNT}", f"global_load_dword v{vNon}, v{t0}, s[{S_DBG}:{S_DBG+1}] sc1"])
    p(f"s_add_u32 s{sS}, s{sS}, 1")
    half0(); half1(6, False); p(f"s_add_u32 s{sS}, s{sS}, 1")
    half0(); half1(1, False); p(f"s_add_u32 s{sS}, s{sS}, 1")
    half0(); half1(None, False, nxt=False)
    stamp(p, 3); cstamp(p, 14)
    V.release(XF[0], 12); V.release(XF[1], 12); V.release(WF[0], 16); V.release(WF[1], 16)
    V.release(vXa, 2); V.release(vWa, 4); V.release(vXo, 3); V.release(vWo)
    p(f"s_waitcnt vmcnt(0)\n s_mov_b32 s{sCNT}, 0")
    p.label("L_b_clr")
    p(f"""
    v_readfirstlane_b32 s{sT0}, v{vNon}
    s_cmp_ge_u32 s{sT0}, {N_B}
    s_cbranch_scc1 L_b_clr_ok
    s_add_u32 s{sCNT}, s{sCNT}, 1
    s_cmp_gt_u32 s{sCNT}, {SPIN_MAX}
    s_cbranch_scc1 L_b_clr_ok
    v_mov_b32 v{t0}, {DBG_CNT}
    global_load_dword v{vNon}, v{t0}, s[{S_DBG}:{S_DBG+1}] sc1
    s_waitcnt vmcnt(0)
    s_branch L_b_clr
    """)
    p.label("L_b_clr_ok")
    V.release(vNon)
    P = V.alloc(3 * 8, align=2)
    vRow = V.alloc()
    vV2 = V.alloc(); vV3 = V.alloc()
    p(f"""
    s_mul_i32 s{sT0}, s{sWR}, 48
    v_add_u32 v{t0}, s{sT0}, v{vI}
    v_mul_u32_u24 v{vRow}, {RS}, v{t0}
    v_add_u32 v{vRow}, {PHI}, v{vRow}
    s_mul_i32 s{sT0}, s{sTY}, 48
    v_lshlrev_b32 v{t1}, 3, v{vG}
    v_add3_u32 v{vV2}, v{t1}, v{vRow}, s{sT0}
    v_add_u32 v{vV2}, {192 - 16}, v{vV2}
    v_add_u32 v{t2}, {192 + 16}, v{t1}
    v_add_u32 v{t3}, {192 + 64}, v{t1}
    v_cmp_gt_u32 vcc, 2, v{vG}
    v_add_u32 v{vV3}, {280 - 16}, v{t1}
    v_cndmask_b32 v{t3}, v{vV3}, v{t3}, vcc
    s_cmp_eq_u32 s{sTY}, 0
    s_cselect_b64 vcc, -1, 0
    v_cndmask_b32 v{t3}, v{t3}, v{t2}, vcc
    v_add_u32 v{vV3}, v{t3}, v{vRow}
    """)
    def cvtP(nt, mts):
        for mt in mts:
            a = acc + 16*nt + 4*mt
            p(f"v_cvt_pk_bf16_f32 v{P+8*nt+2*mt}, v{a}, v{a+1}")
            p(f"v_cvt_pk_bf16_f32 v{P+8*nt+2*mt+1}, v{a+2}, v{a+3}")
    for nt in range(3): cvtP(nt, (2, 3))
    p("s_mov_b32 exec_lo, 0")
    for nt in range(3): p(f"ds_write_b64 v{vV2}, v[{P+8*nt+4}:{P+8*nt+5}] offset:{16*RS*nt}")
    p("s_mov_b32 exec_lo, -1")
    for nt in range(3): p(f"ds_write_b64 v{vV3}, v[{P+8*nt+6}:{P+8*nt+7}] offset:{16*RS*nt}")
    for nt in range(3): cvtP(nt, (0, 1))
    if common.DUMP:
        p(f"""
        s_lshl_b32 s{sT0}, s2, 3
        s_add_u32 s{sT0}, s{sT0}, s{sW}
        s_mul_i32 s{sT0}, s{sT0}, {24*256}
        s_add_u32 s{sT0}, s{sT0}, {4<<20}
        v_lshl_add_u32 v{t0}, v{vLane}, 2, s{sT0}
        """)
        for k in range(24):
            p(f"buffer_store_dword v{P+k}, v{t0}, s[{SRD_WS}:{SRD_WS+3}], 0 offen offset:{256*(k%16)}")
            if k == 15: p(f"v_add_u32 v{t0}, 4096, v{t0}")
        p("s_waitcnt vmcnt(0)")
    V.release(acc, 48)
    TT = [V.alloc(12, align=4) for _ in range(3)]
    EE = [V.alloc(20, align=2) for _ in range(3)]
    SS = [V.alloc(6, align=2) for _ in range(3)]
    def softmax(nt, outs):
        T, E, S = TT[nt], EE[nt], SS[nt]
        X01 = P + 8*nt; X12 = P + 8*nt + 2
        a0, a1, b0, b1, c, d = S, S+1, S+2, S+3, S+4, S+5
        L = [f"v_mfma_f32_16x16x32_bf16 v[{T}:{T+3}], v[{FA}:{FA+3}], v[{X01}:{X01+3}], 0",
             f"v_mfma_f32_16x16x32_bf16 v[{T+8}:{T+11}], v[{FC0}:{FC0+3}], v[{X01}:{X01+3}], 0",
             f"v_mfma_f32_16x16x32_bf16 v[{T+4}:{T+7}], v[{FB}:{FB+3}], v[{X12}:{X12+3}], 0",
             f"v_mfma_f32_16x16x32_bf16 v[{T+8}:{T+11}], v[{FC1}:{FC1+3}], v[{X12}:{X12+3}], v[{T+8}:{T+11}]"]
        x = [[T, T+1, T+2, T+3, T+8], [T+4, T+5, T+6, T+7, T+9]]
        for h, (a, b) in enumerate(((a0, b0), (a1, b1))):
            xs = x[h]
            L += [f"v_max3_f32 v{a}, v{xs[0]}, v{xs[1]}, v{xs[2]}", f"v_max3_f32 v{b}, -v{xs[0]}, -v{xs[1]}, -v{xs[2]}"]
        for h, (a, b) in enumerate(((a0, b0), (a1, b1))):
            xs = x[h]
            L += [f"v_max3_f32 v{a}, v{a}, v{xs[3]}, v{xs[4]}", f"v_max3_f32 v{b}, v{b}, -v{xs[3]}, -v{xs[4]}"]
        def allred(op):
            return [f"v_permlane16_swap_b32 v{a0}, v{b0}", f"v_permlane16_swap_b32 v{a1}, v{b1}",
                    f"{op} v{a0}, v{a0}, v{b0}", f"{op} v{a1}, v{a1}, v{b1}",
                    f"v_permlane32_swap_b32 v{a0}, v{a1}", f"{op} v{c}, v{a0}, v{a1}"]
        bc = [f"v_mov_b32 v{d}, v{c}", f"v_permlane32_swap_b32 v{c}, v{d}", f"v_mov_b32 v{a0}, v{c}", f"v_mov_b32 v{a1}, v{d}",
              f"v_permlane16_swap_b32 v{a0}, v{c}", f"v_permlane16_swap_b32 v{a1}, v{d}"]
        L += allred("v_max_f32") + [f"v_mul_f32 v{c}, s{sL}, v{c}"] + bc
        sel = [(0, 0), (0, 0), (1, 1), (1, 1), (0, 1)]
        for k in range(5):
            lo, hi = sel[k]
            L.append(f"v_pk_fma_f32 v[{E+2*k}:{E+2*k+1}], v[{T+2*k}:{T+2*k+1}], s[{sL}:{sL+1}], v[{a0}:{a1}] op_sel:[0,0,{lo}] op_sel_hi:[1,1,{hi}] neg_lo:[0,0,1] neg_hi:[0,0,1]")
            L.append(f"v_pk_fma_f32 v[{E+10+2*k}:{E+10+2*k+1}], v[{T+2*k}:{T+2*k+1}], s[{sL}:{sL+1}], v[{c}:{d}] op_sel:[0,0,{lo}] op_sel_hi:[1,1,{hi}] neg_lo:[1,0,1] neg_hi:[1,0,1]")
        L += [f"v_exp_f32 v{E+k}, v{E+k}" for k in range(20)]
        L += [f"v_pk_add_f32 v[{T}:{T+1}], v[{E}:{E+1}], v[{E+2}:{E+3}]",
              f"v_pk_add_f32 v[{T+2}:{T+3}], v[{E+4}:{E+5}], v[{E+6}:{E+7}]",
              f"v_pk_add_f32 v[{T+4}:{T+5}], v[{E+10}:{E+11}], v[{E+12}:{E+13}]",
              f"v_pk_add_f32 v[{T+6}:{T+7}], v[{E+14}:{E+15}], v[{E+16}:{E+17}]",
              f"v_add_f32 v{a0}, v{T}, v{T+1}", f"v_add_f32 v{a1}, v{T+2}, v{T+3}",
              f"v_add_f32 v{b0}, v{T+4}, v{T+5}", f"v_add_f32 v{b1}, v{T+6}, v{T+7}",
              f"v_pk_add_f32 v[{a0}:{a1}], v[{a0}:{a1}], v[{E+8}:{E+9}]",
              f"v_pk_add_f32 v[{b0}:{b1}], v[{b0}:{b1}], v[{E+18}:{E+19}]"]
        L += allred("v_add_f32") + [f"v_rcp_f32 v{c}, v{c}"] + bc
        for k in range(5):
            lo, hi = sel[k]
            L.append(f"v_pk_mul_f32 v[{E+2*k}:{E+2*k+1}], v[{E+2*k}:{E+2*k+1}], v[{a0}:{a1}] op_sel:[0,{lo}] op_sel_hi:[1,{hi}]")
            L.append(f"v_pk_mul_f32 v[{E+10+2*k}:{E+10+2*k+1}], v[{E+10+2*k}:{E+10+2*k+1}], v[{c}:{d}] op_sel:[0,{lo}] op_sel_hi:[1,{hi}]")
        pairs = [[(0, 1), (2, 3), (8, 10), (11, 12), (13, 18)], [(4, 5), (6, 7), (9, 14), (15, 16), (17, 19)]]
        for h in range(2):
            for k, (u, w) in enumerate(pairs[h]):
                L.append(f"v_cvt_pk_bf16_f32 v{outs[h]+k}, v{E+u}, v{E+w}")
        return L
    p(f"s_cmp_eq_u32 s{sTY}, 0\n s_cbranch_scc0 L_b_qtype")
    stamp(p, 4)
    p(f"""
    s_mul_i32 s{sT0}, s{sWR}, 48
    s_add_u32 s{sT0}, s{sT0}, s{sROW0}
    v_add_u32 v{t0}, s{sT0}, v{vI}
    v_mov_b32 v{t1}, 0x3f80
    """)
    on = V.alloc(2, align=2)
    p(f"v_mov_b32 v{on+1}, 0")
    for nt in range(3):
        p(f"""
        v_cmp_gt_u32 vcc, 0x800, v{t0}
        v_cndmask_b32 v{on}, 0, v{t1}, vcc
        ds_write_b64 v{vRow}, v[{on}:{on+1}] offset:{16*RS*nt + 272}
        v_add_u32 v{t0}, 16, v{t0}
        """)
    V.release(on, 2)
    vPh = V.alloc()
    p(f"v_mul_u32_u24 v{t0}, 24, v{vG}\n v_add_u32 v{vPh}, v{t0}, v{vRow}")
    streams = []
    for nt in range(3):
        T = TT[nt]
        L = softmax(nt, [T, T + 6])
        for h in range(2):
            o = T + 6*h; off = 16*RS*nt + 96*h
            L += [f"ds_write_b64 v{vPh}, v[{o}:{o+1}] offset:{off}", f"ds_write_b64 v{vPh}, v[{o+2}:{o+3}] offset:{off+8}",
                  f"ds_write_b32 v{vPh}, v{o+4} offset:{off+16}"]
        streams.append(L)
    for x in merge(streams): p(x)
    p("s_waitcnt lgkmcnt(0)\n s_barrier")
    stamp(p, 5)
    sHD, sHF = 95, 96
    vAa = V.alloc(); vB0 = V.alloc()
    p(f"""
    s_and_b32 s{sHD}, s{sWR}, 1
    s_lshr_b32 s{sHF}, s{sWR}, 1
    v_lshrrev_b32 v{t0}, 2, v{vI}
    v_lshl_add_u32 v{t0}, v{vG}, 3, v{t0}
    v_mul_u32_u24 v{t0}, {RS}, v{t0}
    v_add_u32 v{t0}, {PHI}, v{t0}
    v_and_b32 v{t1}, 3, v{vI}
    v_mul_u32_u24 v{t2}, 24, v{t1}
    s_mul_i32 s{sT0}, s{sHD}, 96
    v_add3_u32 v{vAa}, v{t0}, v{t2}, s{sT0}
    s_mul_i32 s{sT0}, s{sHD}, 40
    v_lshlrev_b32 v{t2}, 3, v{t1}
    v_add_u32 v{t2}, s{sT0}, v{t2}
    v_add_u32 v{vB0}, 192, v{t2}
    s_add_u32 s{sT0}, s{sT0}, 224
    v_mov_b32 v{t2}, 272
    v_mov_b32 v{t3}, s{sT0}
    v_cmp_eq_u32 vcc, s{sHD}, v{t1}
    v_cndmask_b32 v{t2}, v{t2}, v{t3}, vcc
    s_cmp_eq_u32 s{sHF}, 0
    s_cselect_b64 vcc, -1, 0
    v_cndmask_b32 v{t2}, v{t2}, v{vB0}, vcc
    v_add_u32 v{vB0}, v{t0}, v{t2}
    """)
    KF = V.alloc(48, align=4); KD = V.alloc(12, align=4)
    def kvreads(ks):
        b = KF + 16 * (ks % 3); off = 32 * RS * ks
        for h in range(2):
            p(f"ds_read_b64_tr_b16 v[{b+12+2*h}:{b+12+2*h+1}], v{vB0} offset:{off + 4*RS*h}")
        for mt in range(3):
            for h in range(2):
                p(f"ds_read_b64_tr_b16 v[{b+4*mt+2*h}:{b+4*mt+2*h+1}], v{vAa} offset:{off + 4*RS*h + 8*mt}")
    kvreads(0); kvreads(1)
    vP0 = V.alloc(); vP1 = V.alloc()
    p(f"""
    s_lshl_b32 s{sT0}, s{sRB}, 4
    s_add_u32 s{sT0}, s{sT0}, s{sHP}
    s_mul_i32 s{sT0}, s{sT0}, {PART_STRIDE}
    s_mul_i32 s{sT1}, s{sWR}, 1280
    s_add_u32 s{sT0}, s{sT0}, s{sT1}
    s_add_u32 s{sT0}, s{sT0}, {WS_PART}
    v_lshl_add_u32 v{vP0}, v{vLane}, 4, s{sT0}
    s_add_u32 s{sT0}, s{sT0}, 1024
    v_lshl_add_u32 v{vP1}, v{vLane}, 2, s{sT0}
    """)
    for ks in range(6):
        p(f"s_waitcnt lgkmcnt({8 if ks < 5 else 0})")
        b = KF + 16 * (ks % 3)
        for mt in range(3):
            c = "0" if ks == 0 else f"v[{KD+4*mt}:{KD+4*mt+3}]"
            p(f"v_mfma_f32_16x16x32_bf16 v[{KD+4*mt}:{KD+4*mt+3}], v[{b+4*mt}:{b+4*mt+3}], v[{b+12}:{b+15}], {c}")
        if ks + 2 < 6: kvreads(ks + 2)
    q = V.alloc(6, align=4)
    p(f"""
    v_cvt_pk_bf16_f32 v{q}, v{KD}, v{KD+1}
    v_cvt_pk_bf16_f32 v{q+1}, v{KD+2}, v{KD+3}
    v_cvt_pk_bf16_f32 v{q+2}, v{KD+4}, v{KD+5}
    v_cvt_pk_bf16_f32 v{q+3}, v{KD+6}, v{KD+7}
    v_cvt_pk_bf16_f32 v{q+4}, v{KD+8}, v{KD+9}
    buffer_store_dwordx4 v[{q}:{q+3}], v{vP0}, s[{SRD_WS}:{SRD_WS+3}], 0 offen sc1
    buffer_store_dword v{q+4}, v{vP1}, s[{SRD_WS}:{SRD_WS+3}], 0 offen sc1
    """)
    stamp(p, 6)
    V.release(KF, 48); V.release(KD, 12)
    L = V.alloc(56, align=4)
    A10 = V.alloc(10, align=2); mx = V.alloc()
    p(f"""
    s_mul_i32 s{sT0}, s{sRB}, {16*PART_STRIDE}
    v_subrev_u32 v{t0}, s{sT0}, v{vP0}
    v_subrev_u32 v{t1}, s{sT0}, v{vP1}
    s_mov_b32 s{sCNT}, 0
    """)
    def ld_small():
        p(f"s_mov_b32 s{sT0}, 0")
        for r in range(11):
            p(f"buffer_load_dword v{L+44+r}, v{t1}, s[{SRD_WS}:{SRD_WS+3}], s{sT0} offen sc1")
            if r < 10: p(f"s_add_u32 s{sT0}, s{sT0}, {16*PART_STRIDE}")
    def chk_small():
        p(f"v_max3_u32 v{mx}, v{L+44}, v{L+45}, v{L+46}")
        for r in range(3, 11, 2):
            p(f"v_max3_u32 v{mx}, v{mx}, v{L+44+r}, v{L+44+r+1}")
        p(f"v_cmp_eq_u32 vcc, -1, v{mx}")
    p.label("L_b_att1")
    ld_small()
    p(f"s_mov_b32 s{sT0}, 0")
    for r in range(11):
        p(f"buffer_load_dwordx4 v[{L+4*r}:{L+4*r+3}], v{t0}, s[{SRD_WS}:{SRD_WS+3}], s{sT0} offen sc1")
        if r < 10: p(f"s_add_u32 s{sT0}, s{sT0}, {16*PART_STRIDE}")
    p("s_waitcnt vmcnt(11)")
    chk_small()
    p("s_cbranch_vccz L_b_got1")
    p("s_waitcnt vmcnt(0)")
    p.label("L_b_spin1")
    p(f"s_add_u32 s{sCNT}, s{sCNT}, 1\n s_cmp_gt_u32 s{sCNT}, {SPIN_MAX}\n s_cbranch_scc1 L_b_got1")
    ld_small()
    p("s_waitcnt vmcnt(0)")
    chk_small()
    p("s_cbranch_vccnz L_b_spin1\n s_branch L_b_att1")
    p.label("L_b_got1")
    stamp(p, 7)
    sHI = 97
    p(f"s_mov_b32 s{sHI}, 0xffff0000")
    u = V.alloc(4, align=2)
    p(f"v_mov_b32 v{mx}, 0")
    for r in range(11):
        p(f"s_waitcnt vmcnt({10-r})")
        p(f"v_max3_u32 v{mx}, v{mx}, v{L+4*r}, v{L+4*r+1}")
        p(f"v_max3_u32 v{mx}, v{mx}, v{L+4*r+2}, v{L+4*r+3}")
        for k in range(5):
            src = L + 4*r + k if k < 4 else L + 44 + r
            if r == 0:
                p(f"v_lshlrev_b32 v{A10+2*k}, 16, v{src}")
                p(f"v_and_b32 v{A10+2*k+1}, s{sHI}, v{src}")
            else:
                uu = u + 2 * (k & 1)
                p(f"v_lshlrev_b32 v{uu}, 16, v{src}")
                p(f"v_and_b32 v{uu+1}, s{sHI}, v{src}")
                p(f"v_pk_add_f32 v[{A10+2*k}:{A10+2*k+1}], v[{A10+2*k}:{A10+2*k+1}], v[{uu}:{uu+1}]")
    p(f"""
    v_cmp_eq_u32 vcc, -1, v{mx}
    s_cbranch_vccz L_b_sum1
    s_add_u32 s{sCNT}, s{sCNT}, 1
    s_cmp_gt_u32 s{sCNT}, {SPIN_MAX}
    s_cbranch_scc0 L_b_att1
    """)
    p.label("L_b_sum1")
    for k in range(5):
        p(f"v_cvt_pk_bf16_f32 v{L+k}, v{A10+2*k}, v{A10+2*k+1}")
    p(f"""
    s_lshl_b32 s{sT1}, s{sWR}, 10
    s_add_u32 s{sT1}, s{sT1}, {AST}
    v_lshl_add_u32 v{t0}, v{vLane}, 4, s{sT1}
    ds_write_b128 v{t0}, v[{L}:{L+3}]
    s_lshl_b32 s{sT1}, s{sWR}, 8
    s_add_u32 s{sT1}, s{sT1}, {AST + 4096}
    v_lshl_add_u32 v{t1}, v{vLane}, 2, s{sT1}
    ds_write_b32 v{t1}, v{L+4}
    s_waitcnt lgkmcnt(0)
    s_barrier
    """)
    stamp(p, 8)
    p("s_branch L_b_final")
    for r, n in ((vPh, 1), (vAa, 1), (vB0, 1), (vP0, 1), (vP1, 1), (q, 6), (L, 56), (A10, 10), (mx, 1), (u, 4)):
        V.release(r, n)
    p.label("L_b_qtype")
    p("s_waitcnt lgkmcnt(0)\n s_barrier")
    p(f"""
    s_lshr_b32 s{sT0}, s2, 3               ; i
    s_cmp_ge_u32 s{sT0}, 10
    s_cselect_b32 s{sT1}, 1, 0
    s_mul_i32 s{sT1}, s{sT1}, 10
    s_sub_u32 s{sCG}, s{sT0}, s{sT1}
    s_cmp_ge_u32 s2, 160
    s_cbranch_scc1 L_b_nowo
    ; LDS row k' = 8 z + e holds wo row 40 (z/5) + 4 (z%5) + 20 (e>>2) + (e&3);  z = 20 wr + i'
    v_lshrrev_b32 v{t0}, 3, v{vLane}            ; e
    v_bfe_u32 v{t1}, v{t0}, 1, 1
    v_lshlrev_b32 v{t1}, 1, v{t1}
    v_and_b32 v{t2}, 7, v{vLane}
    v_xor_b32 v{t1}, v{t1}, v{t2}
    v_xor_b32 v{t2}, 4, v{t1}
    v_lshrrev_b32 v{t3}, 2, v{t0}
    v_mul_u32_u24 v{t3}, 20, v{t3}
    v_and_b32 v{t0}, 3, v{t0}
    v_add_u32 v{t0}, v{t0}, v{t3}
    s_mul_i32 s{sT0}, s{sWR}, 160
    v_add_u32 v{t0}, s{sT0}, v{t0}
    v_mul_u32_u24 v{t0}, 1280, v{t0}
    s_lshl_b32 s{sT0}, s{sCG}, 7
    v_add_u32 v{t0}, s{sT0}, v{t0}
    v_lshl_add_u32 v{t3}, v{t2}, 4, v{t0}
    v_lshl_add_u32 v{t0}, v{t1}, 4, v{t0}
    s_mul_i32 s{sM0}, s{sWR}, 20480
    """)
    PQ = V.alloc(3*2*6 + 2, align=2)
    wod = []
    for i in range(20):
        wod.append([f"s_mov_b32 s{sT1}, {(40*(i//5) + 4*(i%5))*1280}", f"s_add_u32 m0, s{sM0}, {WO_IMG + 1024*i}",
                    f"buffer_load_dwordx4 v{t3 if i & 1 else t0}, s[{SRD_WO}:{SRD_WO+3}], s{sT1} offen lds"])
    for g in wod:
        for x in g: p(x)
    p.label("L_b_nowo")
    stamp(p, 4)
    for k in range(3*2*6 + 2):
        if k % 6 == 5 or k >= 36: p(f"v_mov_b32 v{PQ+k}, 0")
    for x in merge([softmax(nt, [PQ + 12*nt, PQ + 12*nt + 6]) for nt in range(3)]): p(x)
    stamp(p, 5)
    for r, n in [(P, 24), (vRow, 1), (vV2, 1), (vV3, 1), (vFA, 16)] + [(x, 12) for x in TT] + [(x, 20) for x in EE] + [(x, 6) for x in SS]:
        V.release(r, n)
    p("s_waitcnt vmcnt(0) lgkmcnt(0)\n s_barrier")
    stamp(p, 6)
    AF = V.alloc(32, align=4)
    p(f"""
    v_lshlrev_b32 v{t0}, 4, v{vLane}
    v_add_u32 v{t0}, {AST}, v{t0}
    v_lshlrev_b32 v{t1}, 2, v{vLane}
    v_add_u32 v{t1}, {AST+4096}, v{t1}
    """)
    for k in range(4):
        p(f"ds_read_b128 v[{AF+8*k}:{AF+8*k+3}], v{t0} offset:{1024*k}")
        p(f"ds_read_b32 v{AF+8*k+4}, v{t1} offset:{256*k}")
    for k in range(4):
        for z in (5, 6, 7): p(f"v_mov_b32 v{AF+8*k+z}, 0")
    vOa = V.alloc(); vOb = V.alloc()
    ODs = [V.alloc(16, align=4) for _ in range(3)]; ws_ = [V.alloc(8, align=4) for _ in range(3)]
    sEPS = 97
    p(f"""
    s_mov_b32 s{sEPS}, 0x358637bd
    s_mul_i32 s{sT0}, s{sRB}, 12
    s_mul_i32 s{sT1}, s{sWR}, 3
    s_add_u32 s{sT0}, s{sT0}, s{sT1}
    s_mul_i32 s{sT0}, s{sT0}, {O_TILE}
    s_mul_i32 s{sT1}, s{sHP}, 1280
    s_add_u32 s{sT0}, s{sT0}, s{sT1}
    s_add_u32 s{sT0}, s{sT0}, {WS_O}
    v_lshl_add_u32 v{vOa}, v{vLane}, 4, s{sT0}
    v_lshlrev_b32 v{t0}, 4, v{vI}
    v_lshl_add_u32 v{t0}, v{vG}, 3, v{t0}
    s_add_u32 s{sT0}, s{sT0}, 1024
    v_add_u32 v{vOb}, s{sT0}, v{t0}
    v_cmp_gt_u32 vcc, 16, v{vLane}
    s_mov_b32 s{sT2}, {O_TILE}
    s_mov_b32 s{sT3}, {2*O_TILE}
    s_waitcnt lgkmcnt(0)
    """)
    streams = []
    for nt in range(3):
        OD = ODs[nt]; w = ws_[nt]
        L = []
        for h in range(2):
            b = PQ + 12*nt + 6*h
            a0_ = AF + 8*h; a1_ = AF + 8*(h + 2)
            o0 = OD + 8*h; o1 = o0 + 4
            L += [f"v_mfma_f32_16x16x32_bf16 v[{o0}:{o0+3}], v[{a0_}:{a0_+3}], v[{b}:{b+3}], 0",
                  f"v_mfma_f32_16x16x32_bf16 v[{o1}:{o1+3}], v[{a1_}:{a1_+3}], v[{b}:{b+3}], 0",
                  f"v_mfma_f32_16x16x32_bf16 v[{o0}:{o0+3}], v[{a0_+4}:{a0_+7}], v[{b+4}:{b+7}], v[{o0}:{o0+3}]",
                  f"v_mfma_f32_16x16x32_bf16 v[{o1}:{o1+3}], v[{a1_+4}:{a1_+7}], v[{b+4}:{b+7}], v[{o1}:{o1+3}]"]
        y = [w + 6, w + 7]
        L += [f"v_mov_b32 v{y[0]}, v{OD+4}", f"v_mov_b32 v{y[1]}, v{OD+12}",
              f"v_permlane16_swap_b32 v{OD+4}, v{y[0]}", f"v_permlane16_swap_b32 v{y[1]}, v{OD+12}",
              f"v_add_f32 v{y[0]}, s{sEPS}, v{y[0]}", f"v_add_f32 v{y[1]}, s{sEPS}, v{y[1]}",
              f"v_rcp_f32 v{y[0]}, v{y[0]}", f"v_rcp_f32 v{y[1]}, v{y[1]}"]
        for h in range(2):
            for r in range(0, 8, 2):
                a = OD + 8*h + r
                L.append(f"v_pk_mul_f32 v[{a}:{a+1}], v[{a}:{a+1}], v[{w+6}:{w+7}] op_sel:[0,{h}] op_sel_hi:[1,{h}]")
        L += [f"v_cvt_pk_bf16_f32 v{w}, v{OD}, v{OD+1}", f"v_cvt_pk_bf16_f32 v{w+1}, v{OD+2}, v{OD+3}",
              f"v_cvt_pk_bf16_f32 v{w+2}, v{OD+8}, v{OD+9}", f"v_cvt_pk_bf16_f32 v{w+3}, v{OD+10}, v{OD+11}",
              f"v_cvt_pk_bf16_f32 v{OD+4}, v{OD+4}, v{OD+5}", f"v_cvt_pk_bf16_f32 v{OD+5}, v{OD+6}, v{OD+7}",
              f"v_cvt_pk_bf16_f32 v{OD+12}, v{OD+12}, v{OD+13}", f"v_cvt_pk_bf16_f32 v{OD+13}, v{OD+14}, v{OD+15}",
              f"v_cndmask_b32 v{w+4}, v{OD+12}, v{OD+4}, vcc", f"v_cndmask_b32 v{w+5}, v{OD+13}, v{OD+5}, vcc"]
        streams.append(L)
    for x in merge(streams): p(x)
    so = ["0", f"s{sT2}", f"s{sT3}"]
    for nt in range(3):
        p(f"buffer_store_dwordx4 v[{ws_[nt]}:{ws_[nt]+3}], v{vOa}, s[{SRD_WS}:{SRD_WS+3}], {so[nt]} offen sc1")
    p("s_mov_b32 exec_hi, 0")
    for nt in range(3):
        p(f"buffer_store_dwordx2 v[{ws_[nt]+4}:{ws_[nt]+5}], v{vOb}, s[{SRD_WS}:{SRD_WS+3}], {so[nt]} offen sc1")
    p("s_mov_b32 exec_hi, -1")
    stamp(p, 7)
    for r, n in [(PQ, 38), (AF, 32), (vOa, 1), (vOb, 1)] + [(x, 16) for x in ODs] + [(x, 8) for x in ws_]:
        V.release(r, n)
    p.label("L_b_final")
    sRQ, sKH = 95, 96
    OF = V.alloc(80, align=4)
    vR = V.alloc(); vPl = V.alloc(); mx = V.alloc(); pv = V.alloc()
    p(f"""
    s_cmp_ge_u32 s2, 160
    s_cbranch_scc1 L_b_done
    s_lshr_b32 s{sT0}, s2, 3
    s_cmp_ge_u32 s{sT0}, 10
    s_cselect_b32 s{sT1}, 1, 0
    s_and_b32 s{sT2}, s2, 7
    s_lshl_b32 s{sT2}, s{sT2}, 1
    s_add_u32 s{sRT}, s{sT2}, s{sT1}
    s_mul_i32 s{sT1}, s{sT1}, 10
    s_sub_u32 s{sCG}, s{sT0}, s{sT1}
    s_and_b32 s{sRQ}, s{sW}, 3
    s_lshr_b32 s{sKH}, s{sW}, 2
    s_lshl_b32 s{sT0}, s{sRT}, 3
    s_lshl_b32 s{sT1}, s{sRQ}, 1
    s_add_u32 s{sT0}, s{sT0}, s{sT1}
    s_mul_i32 s{sT0}, s{sT0}, {O_TILE}
    s_mul_i32 s{sT1}, s{sKH}, 10240
    s_add_u32 s{sT0}, s{sT0}, s{sT1}
    s_add_u32 s{sT0}, s{sT0}, {WS_O}
    v_lshl_add_u32 v{vR}, v{vLane}, 4, s{sT0}
    v_lshrrev_b32 v{t0}, 5, v{vLane}
    v_mul_u32_u24 v{t0}, {O_TILE}, v{t0}
    v_bfe_u32 v{t1}, v{vLane}, 2, 3
    v_mul_u32_u24 v{t1}, 1280, v{t1}
    v_and_b32 v{t2}, 3, v{vLane}
    v_lshlrev_b32 v{t2}, 6, v{t2}
    v_add3_u32 v{vPl}, v{t0}, v{t1}, v{t2}
    s_add_u32 s{sT0}, s{sT0}, {1024 + 60}
    v_add_u32 v{vPl}, s{sT0}, v{vPl}
    s_mov_b32 s{sCNT}, 0
    """)
    vA = V.alloc(4, align=1)
    p(f"""
    v_lshrrev_b32 v{t2}, 2, v{vI}
    v_bfe_u32 v{t3}, v{t2}, 1, 1
    v_and_b32 v{t0}, 1, v{vG}
    v_lshl_add_u32 v{t3}, v{t0}, 1, v{t3}        ; psi
    v_bfe_u32 v{t0}, v{vI}, 1, 1
    v_lshlrev_b32 v{t0}, 4, v{t0}
    v_and_b32 v{t1}, 1, v{vI}
    v_lshl_add_u32 v{t0}, v{t1}, 3, v{t0}
    v_lshl_add_u32 v{t2}, v{vG}, 3, v{t2}
    v_lshl_add_u32 v{t0}, v{t2}, 7, v{t0}
    s_mul_i32 s{sT1}, s{sKH}, {320*128}
    v_add_u32 v{t0}, s{sT1}, v{t0}
    """)
    for mt in range(4):
        p(f"v_xor_b32 v{t1}, {mt}, v{t3}\n v_lshl_add_u32 v{vA+mt}, v{t1}, 5, v{t0}")
    FAc = V.alloc(32, align=4); WA = [V.alloc(16, align=4), V.alloc(16, align=4)]
    def wreads(ks):
        b = WA[ks & 1]
        return [f"ds_read_b64_tr_b16 v[{b+4*mt+2*h}:{b+4*mt+2*h+1}], v{vA+mt} offset:{WO_IMG + 4096*ks + 512*h}" for mt in range(4) for h in range(2)]
    p.label("L_b_att2")
    p(f"buffer_load_dword v{pv}, v{vPl}, s[{SRD_WS}:{SRD_WS+3}], 0 offen sc1")
    for ks in range(10):
        for nt in range(2):
            p(f"s_mov_b32 s{sT1}, {O_TILE*nt + 4096*(ks >> 2)}")
            p(f"buffer_load_dwordx4 v[{OF+8*ks+4*nt}:{OF+8*ks+4*nt+3}], v{vR}, s[{SRD_WS}:{SRD_WS+3}], s{sT1} offen offset:{1024*(ks & 3)} sc1")
    for x in wreads(0): p(x)
    p(f"""
    s_waitcnt vmcnt(20)
    v_cmp_eq_u32 vcc, -1, v{pv}
    s_cbranch_vccz L_b_got2
    s_waitcnt vmcnt(0)
    """)
    p.label("L_b_spin2")
    p(f"""
    s_add_u32 s{sCNT}, s{sCNT}, 1
    s_cmp_gt_u32 s{sCNT}, {SPIN_MAX}
    s_cbranch_scc1 L_b_got2
    buffer_load_dword v{pv}, v{vPl}, s[{SRD_WS}:{SRD_WS+3}], 0 offen sc1
    s_waitcnt vmcnt(0)
    v_cmp_eq_u32 vcc, -1, v{pv}
    s_cbranch_vccnz L_b_spin2
    s_waitcnt lgkmcnt(0)
    s_branch L_b_att2
    """)
    p.label("L_b_got2")
    stamp(p, 9)
    p(f"v_mov_b32 v{mx}, 0")
    for ks in range(10):
        nxt = wreads(ks + 1) if ks < 9 else []
        p(f"s_waitcnt vmcnt({2*(9-ks)}) lgkmcnt(0)")
        k = 0
        for mt in range(4):
            for nt in range(2):
                a = FAc + 16*nt + 4*mt
                c = "0" if ks == 0 else f"v[{a}:{a+3}]"
                p(f"v_mfma_f32_16x16x32_bf16 v[{a}:{a+3}], v[{WA[ks&1]+4*mt}:{WA[ks&1]+4*mt+3}], v[{OF+8*ks+4*nt}:{OF+8*ks+4*nt+3}], {c}")
                if k < 4 and nxt:
                    p(nxt[2*k]); p(nxt[2*k+1])
                if k >= 4:
                    o = OF + 8*ks + 2*(k - 4)
                    p(f"v_max3_u32 v{mx}, v{mx}, v{o}, v{o+1}")
                k += 1
    p(f"""
    v_cmp_eq_u32 vcc, -1, v{mx}
    s_cbranch_vccz L_b_ok2
    s_add_u32 s{sCNT}, s{sCNT}, 1
    s_cmp_gt_u32 s{sCNT}, {SPIN_MAX}
    s_cbranch_scc0 L_b_att2
    """)
    p.label("L_b_ok2")
    stamp(p, 10)
    p(f"""
    s_lshl_b32 s{sT0}, s{sW}, 12
    s_add_u32 s{sT0}, s{sT0}, {RED}
    v_lshl_add_u32 v{t0}, v{vLane}, 4, s{sT0}
    s_xor_b32 s{sT1}, s{sW}, 4
    s_lshl_b32 s{sT1}, s{sT1}, 12
    s_add_u32 s{sT1}, s{sT1}, {RED}
    v_lshl_add_u32 v{t1}, v{vLane}, 4, s{sT1}
    s_lshl_b32 s{sT0}, s{sRT}, 7
    s_lshl_b32 s{sT1}, s{sRQ}, 5
    s_add_u32 s{sT0}, s{sT0}, s{sT1}
    s_lshl_b32 s{sT1}, s{sKH}, 4
    s_add_u32 s{sT0}, s{sT0}, s{sT1}
    v_add_u32 v{t2}, s{sT0}, v{vI}
    v_mul_u32_u24 v{t2}, 2560, v{t2}
    v_and_b32 v{t3}, 1, v{vG}
    v_lshl_add_u32 v{t2}, v{t3}, 5, v{t2}
    v_lshrrev_b32 v{t3}, 1, v{vG}
    v_lshl_add_u32 v{t2}, v{t3}, 4, v{t2}
    s_lshl_b32 s{sT0}, s{sCG}, 7
    s_add_u32 s{sT0}, s{sT0}, 1280
    v_add_u32 v{t2}, s{sT0}, v{t2}
    s_cmp_eq_u32 s{sKH}, 0
    s_cbranch_scc1 L_b_red0
    """)
    def finish(keep):
        p("s_waitcnt lgkmcnt(0)\n s_barrier")
        for k in range(4):
            p(f"ds_read_b128 v[{OF+4*k}:{OF+4*k+3}], v{t1} offset:{1024*k}")
        for a2 in range(2):
            for mt in (2*a2, 2*a2 + 1):
                a = keep + 4*mt; b = OF + 4*mt
                p(f"s_waitcnt lgkmcnt({3-mt})")
                p(f"v_pk_add_f32 v[{a}:{a+1}], v[{a}:{a+1}], v[{b}:{b+1}]")
                p(f"v_pk_add_f32 v[{a+2}:{a+3}], v[{a+2}:{a+3}], v[{b+2}:{b+3}]")
            A = keep + 8*a2; B = A + 4; d = OF + 16 + 4*a2
            p(f"""
            v_cvt_pk_bf16_f32 v{d}, v{A}, v{A+1}
            v_cvt_pk_bf16_f32 v{d+1}, v{A+2}, v{A+3}
            v_cvt_pk_bf16_f32 v{d+2}, v{B}, v{B+1}
            v_cvt_pk_bf16_f32 v{d+3}, v{B+2}, v{B+3}
            v_permlane16_swap_b32 v{d}, v{d+2}
            v_permlane16_swap_b32 v{d+1}, v{d+3}
            buffer_store_dwordx4 v[{d}:{d+3}], v{t2}, s[{SRD_O}:{SRD_O+3}], 0 offen offset:{64*a2}
            """)
    for k in range(4):
        p(f"ds_write_b128 v{t0}, v[{FAc+4*k}:{FAc+4*k+3}] offset:{1024*k}")
    finish(FAc + 16)
    p("s_branch L_b_done")
    p.label("L_b_red0")
    for k in range(4):
        p(f"ds_write_b128 v{t0}, v[{FAc+16+4*k}:{FAc+16+4*k+3}] offset:{1024*k}")
    finish(FAc)
    p.label("L_b_done")
    stamp(p, 11)
    if common.DIAG:
        p('s_waitcnt vmcnt(0)')
        stamp(p, 12)
        stamps_flush(p, t0, t1)
    return V
```

```python
from emit import *

NAME = "concat_heads__ssm_conv_s4d__linear_kernel_hedgehog__prompt"
KNAME = NAME + "_kernel"

S_U, S_LAR, S_AIM, S_CRE, S_CIM, S_LDT, S_DSK, S_X = 4, 6, 8, 10, 12, 14, 16, 18
S_WQKV, S_WPHI, S_WO, S_OUT = 20, 22, 24, 26
S_DBG, S_WS = 28, 30

N_B = 176
N_WG = 256
LDS_BYTES = 163840

LOG2E = 0x3FB8AA3B
LOG2E_LO = 0x32A57060
LN2 = 0x3F317218

def header_text():
    return f"""; Kernarg layout (112 bytes, pointers only): u, log_A_real, A_imag, C_real, C_imag, log_dt, D_skip,
; @launch grid=({N_WG},1,1) block=(512,1,1) lds={LDS_BYTES}
.amdgcn_target "amdgcn-amd-amdhsa--gfx950"
.text
.globl {KNAME}
.p2align 8
.type {KNAME},@function
{KNAME}:
"""

def footer_text(vgpr=256, sgpr=102):
    acc = min(256, (vgpr + 3) // 4 * 4)
    return f"""
.section .rodata,"a"
.p2align 6
.amdhsa_kernel {KNAME}
  .amdhsa_next_free_vgpr {vgpr}
  .amdhsa_next_free_sgpr {sgpr}
  .amdhsa_accum_offset {acc}
  .amdhsa_group_segment_fixed_size 0
  .amdhsa_kernarg_size 112
  .amdhsa_user_sgpr_count 2
  .amdhsa_user_sgpr_kernarg_segment_ptr 1
  .amdhsa_system_sgpr_workgroup_id_x 1
.end_amdhsa_kernel
"""

def srd(p, dst, ptr, size):
    p(f"""
    s_mov_b32 s{dst}, s{ptr}
    s_and_b32 s{dst+1}, s{ptr+1}, 0xffff
    s_mov_b32 s{dst+2}, {size}
    s_mov_b32 s{dst+3}, 0x00020000
    """)

DIAG = False
DUMP = False
import os
OPT = set(os.environ.get('KOPT', '').split(','))
S_STAMP = 64
DIAG_OFF = 16 << 20
class Stamps:
    n = 0
def stamp(p, idx=None):
    import common
    if not common.DIAG: return
    if idx is not None: Stamps.n = idx
    i = Stamps.n; Stamps.n += 1
    assert i < 16
    p(f"s_memrealtime s[98:99]\n s_waitcnt lgkmcnt(0)\n s_mov_b32 s{S_STAMP+i}, s98")
def cstamp(p, idx):
    import common
    if not common.DIAG: return
    p(f"s_memtime s[98:99]\n s_waitcnt lgkmcnt(0)\n s_mov_b32 s{S_STAMP+idx}, s98")
def dbgmax(p, word, vt0, vt1, invert=False):
    import common
    if 'hdiag' not in common.OPT: return
    p(f"s_memrealtime s[98:99]\n s_waitcnt lgkmcnt(0)")
    if invert: p("s_not_b32 s98, s98")
    p(f"""
    v_mov_b32 v{vt0}, {4*word}
    v_mov_b32 v{vt1}, s98
    s_mov_b64 s[98:99], exec
    s_mov_b32 exec_lo, 1
    s_mov_b32 exec_hi, 0
    global_atomic_umax v{vt0}, v{vt1}, s[{S_DBG}:{S_DBG+1}] sc1
    s_mov_b64 exec, s[98:99]
    """)
def stamps_reset(n=0):
    Stamps.n = n
def stamps_flush(p, vt0, vt1):
    import common
    if not common.DIAG: return
    p(f"""
    v_lshrrev_b32 v{vt0}, 6, v0
    s_lshl_b32 s98, s2, 3
    v_add_u32 v{vt0}, s98, v{vt0}
    v_lshlrev_b32 v{vt0}, 6, v{vt0}
    v_add_u32 v{vt0}, {DIAG_OFF}, v{vt0}
    """)
    for i in range(16):
        p(f"v_mov_b32 v{vt1}, s{S_STAMP+i}")
        p(f"global_store_dword v{vt0}, v{vt1}, s[{S_WS}:{S_WS+1}] offset:{4*i}")
```

```python
from common import *
import common

SLOT = 40960
WOFF = 24576
WO_IMG = 0
PHI = 81920
RS = 296
AST = 139264
RED = 81920
WS_PART = 65536
PART_STRIDE = 5120
WS_O = 1 << 20
O_TILE = 20480
WS_SIZE = 16 << 20
SPIN_MAX = 1 << 14
DBG_CNT = 4

def merge(streams):
    out = []
    n = max(len(s) for s in streams)
    for j in range(n):
        for s in streams:
            if j < len(s): out.append(s[j])
    return out

def gen_part_b(p):
    V = VAlloc(256, start=1)
    sJ, sI, sT, sRB, sHP, sW, sWR, sTY = 32, 33, 34, 35, 36, 37, 38, 39
    SRD_X, SRD_W, SRD_WS, SRD_WO, SRD_O = 40, 44, 48, 52, 56
    sT0, sT1, sT2, sT3 = 60, 61, 62, 63
    sKC = 81; sS = 82; sSLOTD = 83; sXO = 84; sWO = 85; sM0 = 86; sROW0 = 87
    sL = 88
    sRT, sCG, sDSLOT = 92, 93, 94
    sNEG = 100; sCNT = 101
    OPT = common.OPT
    p(f"""
    s_and_b32 s{sJ}, s2, 7
    s_lshr_b32 s{sI}, s2, 3
    s_lshr_b32 s{sT0}, s{sJ}, 2
    s_mul_i32 s{sT0}, s{sT0}, 22
    s_add_u32 s{sT}, s{sT0}, s{sI}
    s_lshr_b32 s{sRB}, s{sT}, 2
    s_and_b32 s{sT0}, s{sT}, 3
    s_and_b32 s{sT1}, s{sJ}, 3
    s_lshl_b32 s{sT1}, s{sT1}, 2
    s_add_u32 s{sHP}, s{sT1}, s{sT0}
    s_mul_i32 s{sROW0}, s{sRB}, 192
    s_mul_i32 s{sT1}, s{sT0}, 3
    s_lshl_b32 s{sT2}, s{sRB}, 1
    s_add_u32 s{sKC}, s{sT1}, s{sT2}
    s_mul_i32 s{sT1}, s{sKC}, 205
    s_lshr_b32 s{sT1}, s{sT1}, 11
    s_mul_i32 s{sT1}, s{sT1}, 10
    s_sub_u32 s{sKC}, s{sKC}, s{sT1}
    """)
    vLane = V.alloc(); vI = V.alloc(); vG = V.alloc(); t0 = V.alloc(); t1 = V.alloc(); t2 = V.alloc(); t3 = V.alloc()
    p(f"""
    v_lshrrev_b32 v{t0}, 6, v0
    v_and_b32 v{vLane}, 63, v0
    v_readfirstlane_b32 s{sW}, v{t0}
    v_and_b32 v{vI}, 15, v{vLane}
    v_lshrrev_b32 v{vG}, 4, v{vLane}
    s_and_b32 s{sWR}, s{sW}, 3
    s_lshr_b32 s{sTY}, s{sW}, 2
    """)
    vXo = V.alloc(3, align=1); vWo = V.alloc()
    p(f"""
    s_mul_i32 s{sT0}, s{sW}, 24
    v_lshrrev_b32 v{t0}, 3, v{vLane}
    v_add_u32 v{t0}, s{sT0}, v{t0}
    v_and_b32 v{t2}, 7, v{vLane}
    v_add_u32 v{t3}, s{sROW0}, v{t0}
    v_mul_u32_u24 v{t3}, 1280, v{t3}
    """)
    for e in range(3):
        p(f"""
        v_add_u32 v{t1}, {8*e}, v{t0}
        v_bfe_u32 v{t1}, v{t1}, 1, 3
        v_xor_b32 v{t1}, v{t1}, v{t2}
        v_lshl_add_u32 v{vXo+e}, v{t1}, 4, v{t3}
        """)
        if e: p(f"v_add_u32 v{vXo+e}, {8*e*1280}, v{vXo+e}")
    p(f"""
    s_and_b32 s{sT0}, s{sW}, 1
    s_lshl_b32 s{sT0}, s{sT0}, 3
    v_lshlrev_b32 v{t0}, 1, v{vG}
    v_add_u32 v{t0}, s{sT0}, v{t0}
    v_xor_b32 v{t0}, v{t0}, v{vI}
    v_min_u32 v{t0}, 14, v{t0}
    ; c<5: 1280+16c ; c<8: 2560+16(c-5) ; c<13: 16(c-8) ; else 2560+16(c-10)
    v_lshlrev_b32 v{t1}, 4, v{t0}
    v_add_u32 v{t2}, {2560-160}, v{t1}
    v_subrev_u32 v{t3}, 128, v{t1}
    v_cmp_gt_u32 vcc, 13, v{t0}
    v_cndmask_b32 v{t2}, v{t2}, v{t3}, vcc
    v_add_u32 v{t3}, {2560-80}, v{t1}
    v_cmp_gt_u32 vcc, 8, v{t0}
    v_cndmask_b32 v{t2}, v{t2}, v{t3}, vcc
    v_add_u32 v{t3}, 1280, v{t1}
    v_cmp_gt_u32 vcc, 5, v{t0}
    v_cndmask_b32 v{t2}, v{t2}, v{t3}, vcc
    s_mul_i32 s{sT0}, s{sHP}, 80
    s_mul_i32 s{sT1}, s{sW}, {8*3840}
    s_add_u32 s{sT0}, s{sT0}, s{sT1}
    v_mul_u32_u24 v{t0}, 3840, v{vG}
    v_add3_u32 v{vWo}, v{t0}, v{t2}, s{sT0}
    s_mul_i32 s{sT0}, s{sHP}, 1600
    v_lshlrev_b32 v{t0}, 4, v{vLane}
    v_add_u32 v{t0}, s{sT0}, v{t0}
    v_add_u32 v{t1}, 1024, v{t0}
    s_waitcnt lgkmcnt(0)
    """)
    srd(p, SRD_X, S_X, 2048 * 1280)
    srd(p, SRD_W, S_WQKV, 640 * 3840)
    if 'hdiag' in OPT:
        p(f"""
        s_not_b32 s79, s79
        v_mov_b32 v{t2}, 32
        v_mov_b32 v{t3}, s79
        s_mov_b32 exec_lo, 1
        s_mov_b32 exec_hi, 0
        global_atomic_umax v{t2}, v{t3}, s[{S_DBG}:{S_DBG+1}] sc1
        s_mov_b64 exec, -1
        s_waitcnt vmcnt(0)
        """)
    def dma_stage(slot, const=True):
        L = [f"s_lshl_b32 s{sXO}, s{sKC}, 7", f"s_mul_i32 s{sWO}, s{sKC}, {64*3840}", f"s_mul_i32 s{sM0}, s{sW}, 3072",
             f"s_add_u32 s{sM0}, s{sM0}, {slot}" if const else f"s_add_u32 s{sM0}, s{sM0}, s{slot}"]
        grp = []
        for e in range(3):
            grp.append([f"s_add_u32 m0, s{sM0}, {1024*e}", f"buffer_load_dwordx4 v{vXo+e}, s[{SRD_X}:{SRD_X+3}], s{sXO} offen lds"])
        grp.append([f"s_lshl_b32 s{sT2}, s{sW}, 10", f"s_sub_u32 s{sM0}, s{sM0}, s{sT2}", f"s_add_u32 m0, s{sM0}, {WOFF}",
                    f"buffer_load_dwordx4 v{vWo}, s[{SRD_W}:{SRD_W+3}], s{sWO} offen lds"])
        grp.append([f"s_add_u32 s{sWO}, s{sWO}, {4*3840}", f"s_add_u32 m0, s{sM0}, {WOFF+1024}",
                    f"buffer_load_dwordx4 v{vWo}, s[{SRD_W}:{SRD_W+3}], s{sWO} offen lds"])
        post = [f"s_add_u32 s{sKC}, s{sKC}, 1", f"s_cmp_eq_u32 s{sKC}, 10", f"s_cselect_b32 s{sKC}, 0, s{sKC}"]
        return L, grp, post
    def emit_dma(slot):
        L, grp, post = dma_stage(slot)
        for x in L + sum(grp, []) + post: p(x)
    emit_dma(0)
    vWp = V.alloc(4, align=4); vWp2 = V.alloc(4, align=4)
    p(f"""
    global_load_dwordx4 v[{vWp}:{vWp+3}], v{t0}, s[{S_WPHI}:{S_WPHI+1}]
    s_mov_b32 exec_hi, 15
    global_load_dwordx4 v[{vWp2}:{vWp2+3}], v{t1}, s[{S_WPHI}:{S_WPHI+1}]
    s_mov_b32 exec_hi, -1
    """)
    emit_dma(SLOT)
    srd(p, SRD_WS, S_WS, WS_SIZE)
    on4 = V.alloc(4, align=4); vC0 = V.alloc(); vC1 = V.alloc()
    p(f"""
    v_mov_b32 v{on4}, -1
    v_mov_b32 v{on4+1}, -1
    v_mov_b32 v{on4+2}, -1
    v_mov_b32 v{on4+3}, -1
    s_cmp_eq_u32 s{sTY}, 0
    s_cbranch_scc0 L_b_clrq
    s_lshl_b32 s{sT0}, s{sRB}, 4
    s_add_u32 s{sT0}, s{sT0}, s{sHP}
    s_mul_i32 s{sT0}, s{sT0}, {PART_STRIDE}
    s_mul_i32 s{sT1}, s{sWR}, 1280
    s_add_u32 s{sT0}, s{sT0}, s{sT1}
    s_add_u32 s{sT0}, s{sT0}, {WS_PART}
    v_lshl_add_u32 v{vC0}, v{vLane}, 4, s{sT0}
    s_add_u32 s{sT0}, s{sT0}, 1024
    v_lshl_add_u32 v{vC1}, v{vLane}, 2, s{sT0}
    buffer_store_dwordx4 v[{on4}:{on4+3}], v{vC0}, s[{SRD_WS}:{SRD_WS+3}], 0 offen sc1
    buffer_store_dword v{on4}, v{vC1}, s[{SRD_WS}:{SRD_WS+3}], 0 offen sc1
    s_branch L_b_clrd
    """)
    p.label("L_b_clrq")
    p(f"""
    s_mul_i32 s{sT0}, s{sRB}, 12
    s_mul_i32 s{sT1}, s{sWR}, 3
    s_add_u32 s{sT0}, s{sT0}, s{sT1}
    s_mul_i32 s{sT0}, s{sT0}, {O_TILE}
    s_mul_i32 s{sT1}, s{sHP}, 1280
    s_add_u32 s{sT0}, s{sT0}, s{sT1}
    s_add_u32 s{sT0}, s{sT0}, {WS_O}
    v_lshl_add_u32 v{vC0}, v{vLane}, 4, s{sT0}
    s_add_u32 s{sT0}, s{sT0}, 1024
    v_lshl_add_u32 v{vC1}, v{vLane}, 2, s{sT0}
    """)
    for nt in range(3):
        p(f"s_mov_b32 s{sT1}, {O_TILE*nt}")
        p(f"buffer_store_dwordx4 v[{on4}:{on4+3}], v{vC0}, s[{SRD_WS}:{SRD_WS+3}], s{sT1} offen sc1")
        p(f"buffer_store_dword v{on4}, v{vC1}, s[{SRD_WS}:{SRD_WS+3}], s{sT1} offen sc1")
    p.label("L_b_clrd")
    stamp(p, 1)
    srd(p, SRD_WO, S_WO, 640 * 1280)
    srd(p, SRD_O, S_OUT, 2048 * 2560)
    p(f"""
    s_mov_b32 s{sL}, {LOG2E:#x}
    s_mov_b32 s{sL+1}, {LOG2E:#x}
    s_mov_b32 s{sNEG}, {-3*SLOT & 0xffffffff:#x}
    """)
    vXa = V.alloc(2, align=1); vWa = V.alloc(4, align=1)
    for ks in range(2):
        p(f"""
        v_add_u32 v{t0}, {4*ks}, v{vG}
        v_lshrrev_b32 v{t1}, 1, v{vI}
        v_xor_b32 v{t0}, v{t0}, v{t1}
        v_lshlrev_b32 v{t0}, 4, v{t0}
        s_mul_i32 s{sT0}, s{sWR}, 48
        v_add_u32 v{t1}, s{sT0}, v{vI}
        v_lshl_add_u32 v{vXa+ks}, v{t1}, 7, v{t0}
        """)
    p(f"""
    v_and_b32 v{t0}, 1, v{vG}
    v_xor_b32 v{t0}, s{sTY}, v{t0}
    v_lshlrev_b32 v{t0}, 7, v{t0}
    v_bfe_u32 v{t2}, v{vI}, 1, 1
    v_lshl_add_u32 v{t0}, v{t2}, 4, v{t0}
    v_and_b32 v{t2}, 1, v{vI}
    v_lshl_add_u32 v{t0}, v{t2}, 3, v{t0}
    v_lshrrev_b32 v{t1}, 2, v{vI}
    v_lshl_add_u32 v{t2}, v{vG}, 3, v{t1}
    v_lshl_add_u32 v{t0}, v{t2}, 8, v{t0}
    v_add_u32 v{t0}, {WOFF}, v{t0}
    """)
    for mt in range(4):
        p(f"v_xor_b32 v{t2}, {mt}, v{t1}\n v_lshl_add_u32 v{vWa+mt}, v{t2}, 5, v{t0}")
    acc = V.alloc(48, align=4)
    for k in range(48): p(f"v_mov_b32 v{acc+k}, 0")
    WPB = 3 * SLOT
    vFA = V.alloc(16, align=4)
    FA, FB, FC0, FC1 = vFA, vFA + 4, vFA + 8, vFA + 12
    GT = V.alloc(32, align=1)
    for k in range(32): p(f"v_mov_b32 v{GT+k}, 0")
    p(f"""
    s_lshl_b32 s{sT0}, s{sW}, 11
    s_add_u32 s{sT0}, s{sT0}, {WPB}
    v_lshl_add_u32 v{t0}, v{vLane}, 4, s{sT0}
    v_lshrrev_b32 v{t1}, 2, v{vI}
    v_mul_u32_u24 v{t1}, 5, v{t1}
    v_and_b32 v{t2}, 3, v{vI}
    v_add_u32 v{t2}, v{t1}, v{t2}
    v_lshlrev_b32 v{t2}, 1, v{t2}
    v_mul_u32_u24 v{t3}, 160, v{vG}
    v_add3_u32 v{t2}, v{t2}, v{t3}, s{sT0}      ; t2: f = 5(m>>2)+(m&3)
    v_add_u32 v{t1}, 4, v{t1}
    v_lshlrev_b32 v{t1}, 1, v{t1}
    v_add3_u32 v{t1}, v{t1}, v{t3}, s{sT0}      ; t1: f = 5(m>>2)+4
    s_cmp_eq_u32 s{sTY}, 0
    s_cbranch_scc0 L_b_w1q
    s_waitcnt vmcnt(7)
    s_branch L_b_w1d
    """)
    p.label("L_b_w1q")
    p("s_waitcnt vmcnt(11)")
    p.label("L_b_w1d")
    p(f"""
    ds_write_b128 v{t0}, v[{vWp}:{vWp+3}]
    s_mov_b32 exec_hi, 15
    ds_write_b128 v{t0}, v[{vWp2}:{vWp2+3}] offset:1024
    s_mov_b32 exec_hi, -1
    s_waitcnt lgkmcnt(0)
    """)
    def gather(dst, addr, off, mask):
        p(f"s_mov_b32 exec_lo, {mask & 0xffffffff:#x}\n s_mov_b32 exec_hi, {mask >> 32:#x}")
        for e in range(4):
            p(f"ds_read_u16 v{GT + 2*(dst - vFA) + e}, v{addr} offset:{off + 40*e}")
    G0 = 0xFFFF; G01 = 0xFFFFFFFF; G123 = 0xFFFFFFFFFFFF0000; ALL = (1 << 64) - 1
    R0 = 0x1111111111111111; R1 = 0x2222222222222222
    gather(FA, t2, 0, ALL);            gather(FA + 2, t2, 16*40, G0)
    gather(FB, t2, 800 - 160, G123);   gather(FB + 2, t2, 800 + 12*40, G01)
    gather(FC0, t1, 0, R0);            gather(FC0 + 2, t1, 16*40, G0 & R0)
    gather(FC1, t1, 800 - 160, G123 & R1); gather(FC1 + 2, t1, 800 + 12*40, G01 & R1)
    p("s_mov_b64 exec, -1\n s_waitcnt lgkmcnt(0)")
    for k in range(16):
        p(f"v_lshl_or_b32 v{vFA+k}, v{GT+2*k+1}, 16, v{GT+2*k}")
    V.release(GT, 32); V.release(vWp, 4); V.release(vWp2, 4); V.release(on4, 4); V.release(vC0); V.release(vC1)
    XF = [V.alloc(12, align=4), V.alloc(12, align=4)]
    WF = [V.alloc(16, align=4), V.alloc(16, align=4)]
    def reads(ks):
        L = []
        for mt in range(4):
            for h in range(2):
                L.append(f"ds_read_b64_tr_b16 v[{WF[ks]+4*mt+2*h}:{WF[ks]+4*mt+2*h+1}], v{vWa+mt} offset:{8192*ks + 1024*h}")
        X = [f"ds_read_b128 v[{XF[ks]+4*nt}:{XF[ks]+4*nt+3}], v{vXa+ks} offset:{2048*nt}" for nt in range(3)]
        return [L[0], L[1], X[0], X[1], X[2]] + L[2:]
    def mfmas(ks):
        L = []
        for mt in range(4):
            for nt in range(3):
                a = acc + 16*nt + 4*mt
                L.append(f"v_mfma_f32_16x16x32_bf16 v[{a}:{a+3}], v[{WF[ks]+4*mt}:{WF[ks]+4*mt+3}], v[{XF[ks]+4*nt}:{XF[ks]+4*nt+3}], v[{a}:{a+3}]")
        return L
    def sched(main, slots):
        for i, m in enumerate(main):
            if 'nomfma' not in OPT: p(m)
            for x in slots.get(i, []):
                if ('nomfma' in OPT or 'nords' in OPT) and x.startswith('ds_read'): continue
                if 'nodma' in OPT and x.startswith('buffer_load'): continue
                p(x)
    def advance():
        return [f"v_add_u32 v{r}, s{sSLOTD}, v{r}" for r in (vWa, vXa, vWa+1, vWa+2, vWa+3, vXa+1)]
    p("s_barrier")
    dbgmax(p, 11, t2, t3)
    stamp(p, 2); cstamp(p, 13)
    for x in reads(0): p(x)
    emit_dma(2 * SLOT)
    p(f"s_mov_b32 s{sS}, 0\n s_mov_b32 s{sDSLOT}, 0")
    def slot_delta():
        return [f"s_and_b32 s{sT0}, s{sS}, 3", f"s_cmp_eq_u32 s{sT0}, 3", f"s_cselect_b32 s{sSLOTD}, s{sNEG}, {SLOT}"]
    RSP = int(common.os.environ.get("RSP", "2"))
    def read_slots(r, first):
        d = {}
        k = first
        while r:
            d[k] = r[:RSP]; r = r[RSP:]; k += 1
        return d
    def add(d, k, x): d[k] = d.get(k, []) + x
    def half0(tail=False, dma3=False):
        p("s_waitcnt lgkmcnt(0)")
        slots = read_slots(reads(1), 0)
        add(slots, 2, slot_delta())
        if dma3:
            L, grp, post = dma_stage(3 * SLOT)
            add(slots, 6, L + grp[0]); add(slots, 7, grp[1]); add(slots, 8, grp[2]); add(slots, 9, grp[3]); add(slots, 10, grp[4] + post)
        if tail:
            L, grp, post = dma_stage(sDSLOT, const=False)
            add(slots, 6, grp[2]); add(slots, 8, grp[3]); add(slots, 10, grp[4] + post +
                [f"s_add_u32 s{sDSLOT}, s{sDSLOT}, {SLOT}", f"s_cmp_eq_u32 s{sDSLOT}, {4*SLOT}", f"s_cselect_b32 s{sDSLOT}, 0, s{sDSLOT}"])
        sched(mfmas(0), slots)
    def half1(vm, head, nxt=True, extra=None):
        p(f"s_waitcnt vmcnt({vm}) lgkmcnt(0)" if vm is not None else "s_waitcnt lgkmcnt(0)")
        if nxt:
            if 'nobar' not in OPT: p("s_barrier")
            slots = read_slots(reads(0), 1)
            slots[0] = advance()
            if head:
                L, grp, post = dma_stage(sDSLOT, const=False)
                add(slots, 7, L + grp[0]); add(slots, 9, grp[1])
            if extra: add(slots, 8, extra)
            sched(mfmas(1), slots)
        else:
            sched(mfmas(1), {})
    half0(dma3=True)
    cnt = [f"s_cmp_lg_u32 s{sW}, 0", "s_cbranch_scc1 L_b_nocnt", f"v_mov_b32 v{t0}, {DBG_CNT}", f"v_mov_b32 v{t1}, 1",
           "s_mov_b32 exec_lo, 1", "s_mov_b32 exec_hi, 0",
           f"global_atomic_add v{t0}, v{t1}, s[{S_DBG}:{S_DBG+1}] sc1", "s_mov_b64 exec, -1"]
    half1(10, True)
    for x in cnt: p(x)
    p.label("L_b_nocnt")
    p(f"s_mov_b32 s{sS}, 1")
    p.label("L_b_main")
    half0(tail=True); half1(10, True)
    p(f"s_add_u32 s{sS}, s{sS}, 1\n s_cmp_lt_u32 s{sS}, 6\n s_cbranch_scc1 L_b_main")
    vNon = V.alloc()
    half0(tail=True); half1(10, False, extra=[f"v_mov_b32 v{t0}, {DBG_CNT}", f"global_load_dword v{vNon}, v{t0}, s[{S_DBG}:{S_DBG+1}] sc1"])
    p(f"s_add_u32 s{sS}, s{sS}, 1")
    half0(); half1(6, False); p(f"s_add_u32 s{sS}, s{sS}, 1")
    half0(); half1(1, False); p(f"s_add_u32 s{sS}, s{sS}, 1")
    half0(); half1(None, False, nxt=False)
    stamp(p, 3); cstamp(p, 14)
    V.release(XF[0], 12); V.release(XF[1], 12); V.release(WF[0], 16); V.release(WF[1], 16)
    V.release(vXa, 2); V.release(vWa, 4); V.release(vXo, 3); V.release(vWo)
    dbgmax(p, 10, t2, t3)
    p(f"s_waitcnt vmcnt(0)\n s_mov_b32 s{sCNT}, 0")
    p.label("L_b_clr")
    p(f"""
    v_readfirstlane_b32 s{sT0}, v{vNon}
    s_cmp_ge_u32 s{sT0}, {N_B}
    s_cbranch_scc1 L_b_clr_ok
    s_add_u32 s{sCNT}, s{sCNT}, 1
    s_cmp_gt_u32 s{sCNT}, {SPIN_MAX}
    s_cbranch_scc1 L_b_clr_ok
    v_mov_b32 v{t0}, {DBG_CNT}
    global_load_dword v{vNon}, v{t0}, s[{S_DBG}:{S_DBG+1}] sc1
    s_waitcnt vmcnt(0)
    s_branch L_b_clr
    """)
    p.label("L_b_clr_ok")
    V.release(vNon)
    P = V.alloc(3 * 8, align=2)
    vRow = V.alloc()
    vV2 = V.alloc(); vV3 = V.alloc()
    p(f"""
    s_mul_i32 s{sT0}, s{sWR}, 48
    v_add_u32 v{t0}, s{sT0}, v{vI}
    v_mul_u32_u24 v{vRow}, {RS}, v{t0}
    v_add_u32 v{vRow}, {PHI}, v{vRow}
    s_mul_i32 s{sT0}, s{sTY}, 48
    v_lshlrev_b32 v{t1}, 3, v{vG}
    v_add3_u32 v{vV2}, v{t1}, v{vRow}, s{sT0}
    v_add_u32 v{vV2}, {192 - 16}, v{vV2}
    v_add_u32 v{t2}, {192 + 16}, v{t1}
    v_add_u32 v{t3}, {192 + 64}, v{t1}
    v_cmp_gt_u32 vcc, 2, v{vG}
    v_add_u32 v{vV3}, {280 - 16}, v{t1}
    v_cndmask_b32 v{t3}, v{vV3}, v{t3}, vcc
    s_cmp_eq_u32 s{sTY}, 0
    s_cselect_b64 vcc, -1, 0
    v_cndmask_b32 v{t3}, v{t3}, v{t2}, vcc
    v_add_u32 v{vV3}, v{t3}, v{vRow}
    """)
    def cvtP(nt, mts):
        for mt in mts:
            a = acc + 16*nt + 4*mt
            p(f"v_cvt_pk_bf16_f32 v{P+8*nt+2*mt}, v{a}, v{a+1}")
            p(f"v_cvt_pk_bf16_f32 v{P+8*nt+2*mt+1}, v{a+2}, v{a+3}")
    for nt in range(3): cvtP(nt, (2, 3))
    p("s_mov_b32 exec_lo, 0")
    for nt in range(3): p(f"ds_write_b64 v{vV2}, v[{P+8*nt+4}:{P+8*nt+5}] offset:{16*RS*nt}")
    p("s_mov_b32 exec_lo, -1")
    for nt in range(3): p(f"ds_write_b64 v{vV3}, v[{P+8*nt+6}:{P+8*nt+7}] offset:{16*RS*nt}")
    for nt in range(3): cvtP(nt, (0, 1))
    if common.DUMP:
        p(f"""
        s_lshl_b32 s{sT0}, s2, 3
        s_add_u32 s{sT0}, s{sT0}, s{sW}
        s_mul_i32 s{sT0}, s{sT0}, {24*256}
        s_add_u32 s{sT0}, s{sT0}, {4<<20}
        v_lshl_add_u32 v{t0}, v{vLane}, 2, s{sT0}
        """)
        for k in range(24):
            p(f"buffer_store_dword v{P+k}, v{t0}, s[{SRD_WS}:{SRD_WS+3}], 0 offen offset:{256*(k%16)}")
            if k == 15: p(f"v_add_u32 v{t0}, 4096, v{t0}")
        p("s_waitcnt vmcnt(0)")
    V.release(acc, 48)
    TT = [V.alloc(12, align=4) for _ in range(3)]
    EE = [V.alloc(20, align=2) for _ in range(3)]
    SS = [V.alloc(6, align=2) for _ in range(3)]
    def softmax(nt, outs):
        T, E, S = TT[nt], EE[nt], SS[nt]
        X01 = P + 8*nt; X12 = P + 8*nt + 2
        a0, a1, b0, b1, c, d = S, S+1, S+2, S+3, S+4, S+5
        L = [f"v_mfma_f32_16x16x32_bf16 v[{T}:{T+3}], v[{FA}:{FA+3}], v[{X01}:{X01+3}], 0",
             f"v_mfma_f32_16x16x32_bf16 v[{T+8}:{T+11}], v[{FC0}:{FC0+3}], v[{X01}:{X01+3}], 0",
             f"v_mfma_f32_16x16x32_bf16 v[{T+4}:{T+7}], v[{FB}:{FB+3}], v[{X12}:{X12+3}], 0",
             f"v_mfma_f32_16x16x32_bf16 v[{T+8}:{T+11}], v[{FC1}:{FC1+3}], v[{X12}:{X12+3}], v[{T+8}:{T+11}]"]
        x = [[T, T+1, T+2, T+3, T+8], [T+4, T+5, T+6, T+7, T+9]]
        for h, (a, b) in enumerate(((a0, b0), (a1, b1))):
            xs = x[h]
            L += [f"v_max3_f32 v{a}, v{xs[0]}, v{xs[1]}, v{xs[2]}", f"v_max3_f32 v{b}, -v{xs[0]}, -v{xs[1]}, -v{xs[2]}"]
        for h, (a, b) in enumerate(((a0, b0), (a1, b1))):
            xs = x[h]
            L += [f"v_max3_f32 v{a}, v{a}, v{xs[3]}, v{xs[4]}", f"v_max3_f32 v{b}, v{b}, -v{xs[3]}, -v{xs[4]}"]
        def allred(op):
            return [f"v_permlane16_swap_b32 v{a0}, v{b0}", f"v_permlane16_swap_b32 v{a1}, v{b1}",
                    f"{op} v{a0}, v{a0}, v{b0}", f"{op} v{a1}, v{a1}, v{b1}",
                    f"v_permlane32_swap_b32 v{a0}, v{a1}", f"{op} v{c}, v{a0}, v{a1}"]
        bc = [f"v_mov_b32 v{d}, v{c}", f"v_permlane32_swap_b32 v{c}, v{d}", f"v_mov_b32 v{a0}, v{c}", f"v_mov_b32 v{a1}, v{d}",
              f"v_permlane16_swap_b32 v{a0}, v{c}", f"v_permlane16_swap_b32 v{a1}, v{d}"]
        L += allred("v_max_f32") + [f"v_mul_f32 v{c}, s{sL}, v{c}"] + bc
        sel = [(0, 0), (0, 0), (1, 1), (1, 1), (0, 1)]
        for k in range(5):
            lo, hi = sel[k]
            L.append(f"v_pk_fma_f32 v[{E+2*k}:{E+2*k+1}], v[{T+2*k}:{T+2*k+1}], s[{sL}:{sL+1}], v[{a0}:{a1}] op_sel:[0,0,{lo}] op_sel_hi:[1,1,{hi}] neg_lo:[0,0,1] neg_hi:[0,0,1]")
            L.append(f"v_pk_fma_f32 v[{E+10+2*k}:{E+10+2*k+1}], v[{T+2*k}:{T+2*k+1}], s[{sL}:{sL+1}], v[{c}:{d}] op_sel:[0,0,{lo}] op_sel_hi:[1,1,{hi}] neg_lo:[1,0,1] neg_hi:[1,0,1]")
        L += [f"v_exp_f32 v{E+k}, v{E+k}" for k in range(20)]
        L += [f"v_pk_add_f32 v[{T}:{T+1}], v[{E}:{E+1}], v[{E+2}:{E+3}]",
              f"v_pk_add_f32 v[{T+2}:{T+3}], v[{E+4}:{E+5}], v[{E+6}:{E+7}]",
              f"v_pk_add_f32 v[{T+4}:{T+5}], v[{E+10}:{E+11}], v[{E+12}:{E+13}]",
              f"v_pk_add_f32 v[{T+6}:{T+7}], v[{E+14}:{E+15}], v[{E+16}:{E+17}]",
              f"v_add_f32 v{a0}, v{T}, v{T+1}", f"v_add_f32 v{a1}, v{T+2}, v{T+3}",
              f"v_add_f32 v{b0}, v{T+4}, v{T+5}", f"v_add_f32 v{b1}, v{T+6}, v{T+7}",
              f"v_pk_add_f32 v[{a0}:{a1}], v[{a0}:{a1}], v[{E+8}:{E+9}]",
              f"v_pk_add_f32 v[{b0}:{b1}], v[{b0}:{b1}], v[{E+18}:{E+19}]"]
        L += allred("v_add_f32") + [f"v_rcp_f32 v{c}, v{c}"] + bc
        for k in range(5):
            lo, hi = sel[k]
            L.append(f"v_pk_mul_f32 v[{E+2*k}:{E+2*k+1}], v[{E+2*k}:{E+2*k+1}], v[{a0}:{a1}] op_sel:[0,{lo}] op_sel_hi:[1,{hi}]")
            L.append(f"v_pk_mul_f32 v[{E+10+2*k}:{E+10+2*k+1}], v[{E+10+2*k}:{E+10+2*k+1}], v[{c}:{d}] op_sel:[0,{lo}] op_sel_hi:[1,{hi}]")
        pairs = [[(0, 1), (2, 3), (8, 10), (11, 12), (13, 18)], [(4, 5), (6, 7), (9, 14), (15, 16), (17, 19)]]
        for h in range(2):
            for k, (u, w) in enumerate(pairs[h]):
                L.append(f"v_cvt_pk_bf16_f32 v{outs[h]+k}, v{E+u}, v{E+w}")
        return L
    p(f"s_cmp_eq_u32 s{sTY}, 0\n s_cbranch_scc0 L_b_qtype")
    stamp(p, 4)
    p(f"""
    s_mul_i32 s{sT0}, s{sWR}, 48
    s_add_u32 s{sT0}, s{sT0}, s{sROW0}
    v_add_u32 v{t0}, s{sT0}, v{vI}
    v_mov_b32 v{t1}, 0x3f80
    """)
    on = V.alloc(2, align=2)
    p(f"v_mov_b32 v{on+1}, 0")
    for nt in range(3):
        p(f"""
        v_cmp_gt_u32 vcc, 0x800, v{t0}
        v_cndmask_b32 v{on}, 0, v{t1}, vcc
        ds_write_b64 v{vRow}, v[{on}:{on+1}] offset:{16*RS*nt + 272}
        v_add_u32 v{t0}, 16, v{t0}
        """)
    V.release(on, 2)
    vPh = V.alloc()
    p(f"v_mul_u32_u24 v{t0}, 24, v{vG}\n v_add_u32 v{vPh}, v{t0}, v{vRow}")
    streams = []
    for nt in range(3):
        T = TT[nt]
        L = softmax(nt, [T, T + 6])
        for h in range(2):
            o = T + 6*h; off = 16*RS*nt + 96*h
            L += [f"ds_write_b64 v{vPh}, v[{o}:{o+1}] offset:{off}", f"ds_write_b64 v{vPh}, v[{o+2}:{o+3}] offset:{off+8}",
                  f"ds_write_b32 v{vPh}, v{o+4} offset:{off+16}"]
        streams.append(L)
    for x in merge(streams): p(x)
    p("s_waitcnt lgkmcnt(0)\n s_barrier")
    stamp(p, 5)
    sHD, sHF = 95, 96
    vAa = V.alloc(); vB0 = V.alloc()
    p(f"""
    s_and_b32 s{sHD}, s{sWR}, 1
    s_lshr_b32 s{sHF}, s{sWR}, 1
    v_lshrrev_b32 v{t0}, 2, v{vI}
    v_lshl_add_u32 v{t0}, v{vG}, 3, v{t0}
    v_mul_u32_u24 v{t0}, {RS}, v{t0}
    v_add_u32 v{t0}, {PHI}, v{t0}
    v_and_b32 v{t1}, 3, v{vI}
    v_mul_u32_u24 v{t2}, 24, v{t1}
    s_mul_i32 s{sT0}, s{sHD}, 96
    v_add3_u32 v{vAa}, v{t0}, v{t2}, s{sT0}
    s_mul_i32 s{sT0}, s{sHD}, 40
    v_lshlrev_b32 v{t2}, 3, v{t1}
    v_add_u32 v{t2}, s{sT0}, v{t2}
    v_add_u32 v{vB0}, 192, v{t2}
    s_add_u32 s{sT0}, s{sT0}, 224
    v_mov_b32 v{t2}, 272
    v_mov_b32 v{t3}, s{sT0}
    v_cmp_eq_u32 vcc, s{sHD}, v{t1}
    v_cndmask_b32 v{t2}, v{t2}, v{t3}, vcc
    s_cmp_eq_u32 s{sHF}, 0
    s_cselect_b64 vcc, -1, 0
    v_cndmask_b32 v{t2}, v{t2}, v{vB0}, vcc
    v_add_u32 v{vB0}, v{t0}, v{t2}
    """)
    KF = V.alloc(48, align=4); KD = V.alloc(12, align=4)
    def kvreads(ks):
        b = KF + 16 * (ks % 3); off = 32 * RS * ks
        for h in range(2):
            p(f"ds_read_b64_tr_b16 v[{b+12+2*h}:{b+12+2*h+1}], v{vB0} offset:{off + 4*RS*h}")
        for mt in range(3):
            for h in range(2):
                p(f"ds_read_b64_tr_b16 v[{b+4*mt+2*h}:{b+4*mt+2*h+1}], v{vAa} offset:{off + 4*RS*h + 8*mt}")
    kvreads(0); kvreads(1)
    vP0 = V.alloc(); vP1 = V.alloc()
    p(f"""
    s_lshl_b32 s{sT0}, s{sRB}, 4
    s_add_u32 s{sT0}, s{sT0}, s{sHP}
    s_mul_i32 s{sT0}, s{sT0}, {PART_STRIDE}
    s_mul_i32 s{sT1}, s{sWR}, 1280
    s_add_u32 s{sT0}, s{sT0}, s{sT1}
    s_add_u32 s{sT0}, s{sT0}, {WS_PART}
    v_lshl_add_u32 v{vP0}, v{vLane}, 4, s{sT0}
    s_add_u32 s{sT0}, s{sT0}, 1024
    v_lshl_add_u32 v{vP1}, v{vLane}, 2, s{sT0}
    """)
    for ks in range(6):
        p(f"s_waitcnt lgkmcnt({8 if ks < 5 else 0})")
        b = KF + 16 * (ks % 3)
        for mt in range(3):
            c = "0" if ks == 0 else f"v[{KD+4*mt}:{KD+4*mt+3}]"
            p(f"v_mfma_f32_16x16x32_bf16 v[{KD+4*mt}:{KD+4*mt+3}], v[{b+4*mt}:{b+4*mt+3}], v[{b+12}:{b+15}], {c}")
        if ks + 2 < 6: kvreads(ks + 2)
    q = V.alloc(6, align=4)
    p(f"""
    v_cvt_pk_bf16_f32 v{q}, v{KD}, v{KD+1}
    v_cvt_pk_bf16_f32 v{q+1}, v{KD+2}, v{KD+3}
    v_cvt_pk_bf16_f32 v{q+2}, v{KD+4}, v{KD+5}
    v_cvt_pk_bf16_f32 v{q+3}, v{KD+6}, v{KD+7}
    v_cvt_pk_bf16_f32 v{q+4}, v{KD+8}, v{KD+9}
    buffer_store_dwordx4 v[{q}:{q+3}], v{vP0}, s[{SRD_WS}:{SRD_WS+3}], 0 offen sc1
    buffer_store_dword v{q+4}, v{vP1}, s[{SRD_WS}:{SRD_WS+3}], 0 offen sc1
    """)
    stamp(p, 6)
    V.release(KF, 48); V.release(KD, 12)
    L = V.alloc(56, align=4)
    A10 = V.alloc(10, align=2); mx = V.alloc()
    p(f"""
    s_mul_i32 s{sT0}, s{sRB}, {16*PART_STRIDE}
    v_subrev_u32 v{t0}, s{sT0}, v{vP0}
    v_subrev_u32 v{t1}, s{sT0}, v{vP1}
    s_mov_b32 s{sCNT}, 0
    """)
    def ld_small():
        p(f"s_mov_b32 s{sT0}, 0")
        for r in range(11):
            p(f"buffer_load_dword v{L+44+r}, v{t1}, s[{SRD_WS}:{SRD_WS+3}], s{sT0} offen sc1")
            if r < 10: p(f"s_add_u32 s{sT0}, s{sT0}, {16*PART_STRIDE}")
    def chk_small():
        p(f"v_max3_u32 v{mx}, v{L+44}, v{L+45}, v{L+46}")
        for r in range(3, 11, 2):
            p(f"v_max3_u32 v{mx}, v{mx}, v{L+44+r}, v{L+44+r+1}")
        p(f"v_cmp_eq_u32 vcc, -1, v{mx}")
    p.label("L_b_att1")
    ld_small()
    p(f"s_mov_b32 s{sT0}, 0")
    for r in range(11):
        p(f"buffer_load_dwordx4 v[{L+4*r}:{L+4*r+3}], v{t0}, s[{SRD_WS}:{SRD_WS+3}], s{sT0} offen sc1")
        if r < 10: p(f"s_add_u32 s{sT0}, s{sT0}, {16*PART_STRIDE}")
    p("s_waitcnt vmcnt(11)")
    chk_small()
    p("s_cbranch_vccz L_b_got1")
    p("s_waitcnt vmcnt(0)")
    p.label("L_b_spin1")
    p(f"s_add_u32 s{sCNT}, s{sCNT}, 1\n s_cmp_gt_u32 s{sCNT}, {SPIN_MAX}\n s_cbranch_scc1 L_b_got1")
    ld_small()
    p("s_waitcnt vmcnt(0)")
    chk_small()
    p("s_cbranch_vccnz L_b_spin1\n s_branch L_b_att1")
    p.label("L_b_got1")
    stamp(p, 7)
    sHI = 97
    p(f"s_mov_b32 s{sHI}, 0xffff0000")
    u = V.alloc(4, align=2)
    p(f"v_mov_b32 v{mx}, 0")
    for r in range(11):
        p(f"s_waitcnt vmcnt({10-r})")
        p(f"v_max3_u32 v{mx}, v{mx}, v{L+4*r}, v{L+4*r+1}")
        p(f"v_max3_u32 v{mx}, v{mx}, v{L+4*r+2}, v{L+4*r+3}")
        for k in range(5):
            src = L + 4*r + k if k < 4 else L + 44 + r
            if r == 0:
                p(f"v_lshlrev_b32 v{A10+2*k}, 16, v{src}")
                p(f"v_and_b32 v{A10+2*k+1}, s{sHI}, v{src}")
            else:
                uu = u + 2 * (k & 1)
                p(f"v_lshlrev_b32 v{uu}, 16, v{src}")
                p(f"v_and_b32 v{uu+1}, s{sHI}, v{src}")
                p(f"v_pk_add_f32 v[{A10+2*k}:{A10+2*k+1}], v[{A10+2*k}:{A10+2*k+1}], v[{uu}:{uu+1}]")
    p(f"""
    v_cmp_eq_u32 vcc, -1, v{mx}
    s_cbranch_vccz L_b_sum1
    s_add_u32 s{sCNT}, s{sCNT}, 1
    s_cmp_gt_u32 s{sCNT}, {SPIN_MAX}
    s_cbranch_scc0 L_b_att1
    """)
    p.label("L_b_sum1")
    for k in range(5):
        p(f"v_cvt_pk_bf16_f32 v{L+k}, v{A10+2*k}, v{A10+2*k+1}")
    p(f"""
    s_lshl_b32 s{sT1}, s{sWR}, 10
    s_add_u32 s{sT1}, s{sT1}, {AST}
    v_lshl_add_u32 v{t0}, v{vLane}, 4, s{sT1}
    ds_write_b128 v{t0}, v[{L}:{L+3}]
    s_lshl_b32 s{sT1}, s{sWR}, 8
    s_add_u32 s{sT1}, s{sT1}, {AST + 4096}
    v_lshl_add_u32 v{t1}, v{vLane}, 2, s{sT1}
    ds_write_b32 v{t1}, v{L+4}
    s_waitcnt lgkmcnt(0)
    s_barrier
    """)
    stamp(p, 8)
    p("s_branch L_b_final")
    for r, n in ((vPh, 1), (vAa, 1), (vB0, 1), (vP0, 1), (vP1, 1), (q, 6), (L, 56), (A10, 10), (mx, 1), (u, 4)):
        V.release(r, n)
    p.label("L_b_qtype")
    p("s_waitcnt lgkmcnt(0)\n s_barrier")
    p(f"""
    s_lshr_b32 s{sT0}, s2, 3               ; i
    s_cmp_ge_u32 s{sT0}, 10
    s_cselect_b32 s{sT1}, 1, 0
    s_mul_i32 s{sT1}, s{sT1}, 10
    s_sub_u32 s{sCG}, s{sT0}, s{sT1}
    s_cmp_ge_u32 s2, 160
    s_cbranch_scc1 L_b_nowo
    ; LDS row k' = 8 z + e holds wo row 40 (z/5) + 4 (z%5) + 20 (e>>2) + (e&3);  z = 20 wr + i'
    v_lshrrev_b32 v{t0}, 3, v{vLane}            ; e
    v_bfe_u32 v{t1}, v{t0}, 1, 1
    v_lshlrev_b32 v{t1}, 1, v{t1}
    v_and_b32 v{t2}, 7, v{vLane}
    v_xor_b32 v{t1}, v{t1}, v{t2}
    v_xor_b32 v{t2}, 4, v{t1}
    v_lshrrev_b32 v{t3}, 2, v{t0}
    v_mul_u32_u24 v{t3}, 20, v{t3}
    v_and_b32 v{t0}, 3, v{t0}
    v_add_u32 v{t0}, v{t0}, v{t3}
    s_mul_i32 s{sT0}, s{sWR}, 160
    v_add_u32 v{t0}, s{sT0}, v{t0}
    v_mul_u32_u24 v{t0}, 1280, v{t0}
    s_lshl_b32 s{sT0}, s{sCG}, 7
    v_add_u32 v{t0}, s{sT0}, v{t0}
    v_lshl_add_u32 v{t3}, v{t2}, 4, v{t0}
    v_lshl_add_u32 v{t0}, v{t1}, 4, v{t0}
    s_mul_i32 s{sM0}, s{sWR}, 20480
    """)
    PQ = V.alloc(3*2*6 + 2, align=2)
    wod = []
    for i in range(20):
        wod.append([f"s_mov_b32 s{sT1}, {(40*(i//5) + 4*(i%5))*1280}", f"s_add_u32 m0, s{sM0}, {WO_IMG + 1024*i}",
                    f"buffer_load_dwordx4 v{t3 if i & 1 else t0}, s[{SRD_WO}:{SRD_WO+3}], s{sT1} offen lds"])
    for g in wod:
        for x in g: p(x)
    p.label("L_b_nowo")
    stamp(p, 4)
    for k in range(3*2*6 + 2):
        if k % 6 == 5 or k >= 36: p(f"v_mov_b32 v{PQ+k}, 0")
    for x in merge([softmax(nt, [PQ + 12*nt, PQ + 12*nt + 6]) for nt in range(3)]): p(x)
    stamp(p, 5)
    for r, n in [(P, 24), (vRow, 1), (vV2, 1), (vV3, 1), (vFA, 16)] + [(x, 12) for x in TT] + [(x, 20) for x in EE] + [(x, 6) for x in SS]:
        V.release(r, n)
    p("s_waitcnt vmcnt(0) lgkmcnt(0)\n s_barrier")
    stamp(p, 6)
    AF = V.alloc(32, align=4)
    p(f"""
    v_lshlrev_b32 v{t0}, 4, v{vLane}
    v_add_u32 v{t0}, {AST}, v{t0}
    v_lshlrev_b32 v{t1}, 2, v{vLane}
    v_add_u32 v{t1}, {AST+4096}, v{t1}
    """)
    for k in range(4):
        p(f"ds_read_b128 v[{AF+8*k}:{AF+8*k+3}], v{t0} offset:{1024*k}")
        p(f"ds_read_b32 v{AF+8*k+4}, v{t1} offset:{256*k}")
    for k in range(4):
        for z in (5, 6, 7): p(f"v_mov_b32 v{AF+8*k+z}, 0")
    vOa = V.alloc(); vOb = V.alloc()
    ODs = [V.alloc(16, align=4) for _ in range(3)]; ws_ = [V.alloc(8, align=4) for _ in range(3)]
    sEPS = 97
    p(f"""
    s_mov_b32 s{sEPS}, 0x358637bd
    s_mul_i32 s{sT0}, s{sRB}, 12
    s_mul_i32 s{sT1}, s{sWR}, 3
    s_add_u32 s{sT0}, s{sT0}, s{sT1}
    s_mul_i32 s{sT0}, s{sT0}, {O_TILE}
    s_mul_i32 s{sT1}, s{sHP}, 1280
    s_add_u32 s{sT0}, s{sT0}, s{sT1}
    s_add_u32 s{sT0}, s{sT0}, {WS_O}
    v_lshl_add_u32 v{vOa}, v{vLane}, 4, s{sT0}
    v_lshlrev_b32 v{t0}, 4, v{vI}
    v_lshl_add_u32 v{t0}, v{vG}, 3, v{t0}
    s_add_u32 s{sT0}, s{sT0}, 1024
    v_add_u32 v{vOb}, s{sT0}, v{t0}
    v_cmp_gt_u32 vcc, 16, v{vLane}
    s_mov_b32 s{sT2}, {O_TILE}
    s_mov_b32 s{sT3}, {2*O_TILE}
    s_waitcnt lgkmcnt(0)
    """)
    streams = []
    for nt in range(3):
        OD = ODs[nt]; w = ws_[nt]
        L = []
        for h in range(2):
            b = PQ + 12*nt + 6*h
            a0_ = AF + 8*h; a1_ = AF + 8*(h + 2)
            o0 = OD + 8*h; o1 = o0 + 4
            L += [f"v_mfma_f32_16x16x32_bf16 v[{o0}:{o0+3}], v[{a0_}:{a0_+3}], v[{b}:{b+3}], 0",
                  f"v_mfma_f32_16x16x32_bf16 v[{o1}:{o1+3}], v[{a1_}:{a1_+3}], v[{b}:{b+3}], 0",
                  f"v_mfma_f32_16x16x32_bf16 v[{o0}:{o0+3}], v[{a0_+4}:{a0_+7}], v[{b+4}:{b+7}], v[{o0}:{o0+3}]",
                  f"v_mfma_f32_16x16x32_bf16 v[{o1}:{o1+3}], v[{a1_+4}:{a1_+7}], v[{b+4}:{b+7}], v[{o1}:{o1+3}]"]
        y = [w + 6, w + 7]
        L += [f"v_mov_b32 v{y[0]}, v{OD+4}", f"v_mov_b32 v{y[1]}, v{OD+12}",
              f"v_permlane16_swap_b32 v{OD+4}, v{y[0]}", f"v_permlane16_swap_b32 v{y[1]}, v{OD+12}",
              f"v_add_f32 v{y[0]}, s{sEPS}, v{y[0]}", f"v_add_f32 v{y[1]}, s{sEPS}, v{y[1]}",
              f"v_rcp_f32 v{y[0]}, v{y[0]}", f"v_rcp_f32 v{y[1]}, v{y[1]}"]
        for h in range(2):
            for r in range(0, 8, 2):
                a = OD + 8*h + r
                L.append(f"v_pk_mul_f32 v[{a}:{a+1}], v[{a}:{a+1}], v[{w+6}:{w+7}] op_sel:[0,{h}] op_sel_hi:[1,{h}]")
        L += [f"v_cvt_pk_bf16_f32 v{w}, v{OD}, v{OD+1}", f"v_cvt_pk_bf16_f32 v{w+1}, v{OD+2}, v{OD+3}",
              f"v_cvt_pk_bf16_f32 v{w+2}, v{OD+8}, v{OD+9}", f"v_cvt_pk_bf16_f32 v{w+3}, v{OD+10}, v{OD+11}",
              f"v_cvt_pk_bf16_f32 v{OD+4}, v{OD+4}, v{OD+5}", f"v_cvt_pk_bf16_f32 v{OD+5}, v{OD+6}, v{OD+7}",
              f"v_cvt_pk_bf16_f32 v{OD+12}, v{OD+12}, v{OD+13}", f"v_cvt_pk_bf16_f32 v{OD+13}, v{OD+14}, v{OD+15}",
              f"v_cndmask_b32 v{w+4}, v{OD+12}, v{OD+4}, vcc", f"v_cndmask_b32 v{w+5}, v{OD+13}, v{OD+5}, vcc"]
        streams.append(L)
    for x in merge(streams): p(x)
    so = ["0", f"s{sT2}", f"s{sT3}"]
    for nt in range(3):
        p(f"buffer_store_dwordx4 v[{ws_[nt]}:{ws_[nt]+3}], v{vOa}, s[{SRD_WS}:{SRD_WS+3}], {so[nt]} offen sc1")
    p("s_mov_b32 exec_hi, 0")
    for nt in range(3):
        p(f"buffer_store_dwordx2 v[{ws_[nt]+4}:{ws_[nt]+5}], v{vOb}, s[{SRD_WS}:{SRD_WS+3}], {so[nt]} offen sc1")
    p("s_mov_b32 exec_hi, -1")
    stamp(p, 7)
    for r, n in [(PQ, 38), (AF, 32), (vOa, 1), (vOb, 1)] + [(x, 16) for x in ODs] + [(x, 8) for x in ws_]:
        V.release(r, n)
    p.label("L_b_final")
    sRQ, sKH = 95, 96
    OF = V.alloc(80, align=4)
    vR = V.alloc(); vPl = V.alloc(); mx = V.alloc(); pv = V.alloc()
    p(f"""
    s_cmp_ge_u32 s2, 160
    s_cbranch_scc1 L_b_done
    s_lshr_b32 s{sT0}, s2, 3
    s_cmp_ge_u32 s{sT0}, 10
    s_cselect_b32 s{sT1}, 1, 0
    s_and_b32 s{sT2}, s2, 7
    s_lshl_b32 s{sT2}, s{sT2}, 1
    s_add_u32 s{sRT}, s{sT2}, s{sT1}
    s_mul_i32 s{sT1}, s{sT1}, 10
    s_sub_u32 s{sCG}, s{sT0}, s{sT1}
    s_and_b32 s{sRQ}, s{sW}, 3
    s_lshr_b32 s{sKH}, s{sW}, 2
    s_lshl_b32 s{sT0}, s{sRT}, 3
    s_lshl_b32 s{sT1}, s{sRQ}, 1
    s_add_u32 s{sT0}, s{sT0}, s{sT1}
    s_mul_i32 s{sT0}, s{sT0}, {O_TILE}
    s_mul_i32 s{sT1}, s{sKH}, 10240
    s_add_u32 s{sT0}, s{sT0}, s{sT1}
    s_add_u32 s{sT0}, s{sT0}, {WS_O}
    v_lshl_add_u32 v{vR}, v{vLane}, 4, s{sT0}
    v_lshrrev_b32 v{t0}, 5, v{vLane}
    v_mul_u32_u24 v{t0}, {O_TILE}, v{t0}
    v_bfe_u32 v{t1}, v{vLane}, 2, 3
    v_mul_u32_u24 v{t1}, 1280, v{t1}
    v_and_b32 v{t2}, 3, v{vLane}
    v_lshlrev_b32 v{t2}, 6, v{t2}
    v_add3_u32 v{vPl}, v{t0}, v{t1}, v{t2}
    s_add_u32 s{sT0}, s{sT0}, {1024 + 60}
    v_add_u32 v{vPl}, s{sT0}, v{vPl}
    s_mov_b32 s{sCNT}, 0
    """)
    vA = V.alloc(4, align=1)
    p(f"""
    v_lshrrev_b32 v{t2}, 2, v{vI}
    v_bfe_u32 v{t3}, v{t2}, 1, 1
    v_and_b32 v{t0}, 1, v{vG}
    v_lshl_add_u32 v{t3}, v{t0}, 1, v{t3}        ; psi
    v_bfe_u32 v{t0}, v{vI}, 1, 1
    v_lshlrev_b32 v{t0}, 4, v{t0}
    v_and_b32 v{t1}, 1, v{vI}
    v_lshl_add_u32 v{t0}, v{t1}, 3, v{t0}
    v_lshl_add_u32 v{t2}, v{vG}, 3, v{t2}
    v_lshl_add_u32 v{t0}, v{t2}, 7, v{t0}
    s_mul_i32 s{sT1}, s{sKH}, {320*128}
    v_add_u32 v{t0}, s{sT1}, v{t0}
    """)
    for mt in range(4):
        p(f"v_xor_b32 v{t1}, {mt}, v{t3}\n v_lshl_add_u32 v{vA+mt}, v{t1}, 5, v{t0}")
    FAc = V.alloc(32, align=4); WA = [V.alloc(16, align=4), V.alloc(16, align=4)]
    def wreads(ks):
        b = WA[ks & 1]
        return [f"ds_read_b64_tr_b16 v[{b+4*mt+2*h}:{b+4*mt+2*h+1}], v{vA+mt} offset:{WO_IMG + 4096*ks + 512*h}" for mt in range(4) for h in range(2)]
    p.label("L_b_att2")
    p(f"buffer_load_dword v{pv}, v{vPl}, s[{SRD_WS}:{SRD_WS+3}], 0 offen sc1")
    for ks in range(10):
        for nt in range(2):
            p(f"s_mov_b32 s{sT1}, {O_TILE*nt + 4096*(ks >> 2)}")
            p(f"buffer_load_dwordx4 v[{OF+8*ks+4*nt}:{OF+8*ks+4*nt+3}], v{vR}, s[{SRD_WS}:{SRD_WS+3}], s{sT1} offen offset:{1024*(ks & 3)} sc1")
    for x in wreads(0): p(x)
    p(f"""
    s_waitcnt vmcnt(20)
    v_cmp_eq_u32 vcc, -1, v{pv}
    s_cbranch_vccz L_b_got2
    s_waitcnt vmcnt(0)
    """)
    p.label("L_b_spin2")
    p(f"""
    s_add_u32 s{sCNT}, s{sCNT}, 1
    s_cmp_gt_u32 s{sCNT}, {SPIN_MAX}
    s_cbranch_scc1 L_b_got2
    buffer_load_dword v{pv}, v{vPl}, s[{SRD_WS}:{SRD_WS+3}], 0 offen sc1
    s_waitcnt vmcnt(0)
    v_cmp_eq_u32 vcc, -1, v{pv}
    s_cbranch_vccnz L_b_spin2
    s_waitcnt lgkmcnt(0)
    s_branch L_b_att2
    """)
    p.label("L_b_got2")
    dbgmax(p, 12, t2, t3)
    stamp(p, 9)
    p(f"v_mov_b32 v{mx}, 0")
    for ks in range(10):
        nxt = wreads(ks + 1) if ks < 9 else []
        p(f"s_waitcnt vmcnt({2*(9-ks)}) lgkmcnt(0)")
        k = 0
        for mt in range(4):
            for nt in range(2):
                a = FAc + 16*nt + 4*mt
                c = "0" if ks == 0 else f"v[{a}:{a+3}]"
                p(f"v_mfma_f32_16x16x32_bf16 v[{a}:{a+3}], v[{WA[ks&1]+4*mt}:{WA[ks&1]+4*mt+3}], v[{OF+8*ks+4*nt}:{OF+8*ks+4*nt+3}], {c}")
                if k < 4 and nxt:
                    p(nxt[2*k]); p(nxt[2*k+1])
                if k >= 4:
                    o = OF + 8*ks + 2*(k - 4)
                    p(f"v_max3_u32 v{mx}, v{mx}, v{o}, v{o+1}")
                k += 1
    p(f"""
    v_cmp_eq_u32 vcc, -1, v{mx}
    s_cbranch_vccz L_b_ok2
    s_add_u32 s{sCNT}, s{sCNT}, 1
    s_cmp_gt_u32 s{sCNT}, {SPIN_MAX}
    s_cbranch_scc0 L_b_att2
    """)
    p.label("L_b_ok2")
    stamp(p, 10)
    p(f"""
    s_lshl_b32 s{sT0}, s{sW}, 12
    s_add_u32 s{sT0}, s{sT0}, {RED}
    v_lshl_add_u32 v{t0}, v{vLane}, 4, s{sT0}
    s_xor_b32 s{sT1}, s{sW}, 4
    s_lshl_b32 s{sT1}, s{sT1}, 12
    s_add_u32 s{sT1}, s{sT1}, {RED}
    v_lshl_add_u32 v{t1}, v{vLane}, 4, s{sT1}
    s_lshl_b32 s{sT0}, s{sRT}, 7
    s_lshl_b32 s{sT1}, s{sRQ}, 5
    s_add_u32 s{sT0}, s{sT0}, s{sT1}
    s_lshl_b32 s{sT1}, s{sKH}, 4
    s_add_u32 s{sT0}, s{sT0}, s{sT1}
    v_add_u32 v{t2}, s{sT0}, v{vI}
    v_mul_u32_u24 v{t2}, 2560, v{t2}
    v_and_b32 v{t3}, 1, v{vG}
    v_lshl_add_u32 v{t2}, v{t3}, 5, v{t2}
    v_lshrrev_b32 v{t3}, 1, v{vG}
    v_lshl_add_u32 v{t2}, v{t3}, 4, v{t2}
    s_lshl_b32 s{sT0}, s{sCG}, 7
    s_add_u32 s{sT0}, s{sT0}, 1280
    v_add_u32 v{t2}, s{sT0}, v{t2}
    s_cmp_eq_u32 s{sKH}, 0
    s_cbranch_scc1 L_b_red0
    """)
    def finish(keep):
        p("s_waitcnt lgkmcnt(0)\n s_barrier")
        for k in range(4):
            p(f"ds_read_b128 v[{OF+4*k}:{OF+4*k+3}], v{t1} offset:{1024*k}")
        for a2 in range(2):
            for mt in (2*a2, 2*a2 + 1):
                a = keep + 4*mt; b = OF + 4*mt
                p(f"s_waitcnt lgkmcnt({3-mt})")
                p(f"v_pk_add_f32 v[{a}:{a+1}], v[{a}:{a+1}], v[{b}:{b+1}]")
                p(f"v_pk_add_f32 v[{a+2}:{a+3}], v[{a+2}:{a+3}], v[{b+2}:{b+3}]")
            A = keep + 8*a2; B = A + 4; d = OF + 16 + 4*a2
            p(f"""
            v_cvt_pk_bf16_f32 v{d}, v{A}, v{A+1}
            v_cvt_pk_bf16_f32 v{d+1}, v{A+2}, v{A+3}
            v_cvt_pk_bf16_f32 v{d+2}, v{B}, v{B+1}
            v_cvt_pk_bf16_f32 v{d+3}, v{B+2}, v{B+3}
            v_permlane16_swap_b32 v{d}, v{d+2}
            v_permlane16_swap_b32 v{d+1}, v{d+3}
            buffer_store_dwordx4 v[{d}:{d+3}], v{t2}, s[{SRD_O}:{SRD_O+3}], 0 offen offset:{64*a2}
            """)
    for k in range(4):
        p(f"ds_write_b128 v{t0}, v[{FAc+4*k}:{FAc+4*k+3}] offset:{1024*k}")
    finish(FAc + 16)
    p("s_branch L_b_done")
    p.label("L_b_red0")
    for k in range(4):
        p(f"ds_write_b128 v{t0}, v[{FAc+16+4*k}:{FAc+16+4*k+3}] offset:{1024*k}")
    finish(FAc)
    p.label("L_b_done")
    dbgmax(p, 9, t2, t3)
    stamp(p, 11)
    if common.DIAG:
        p('s_waitcnt vmcnt(0)')
        stamp(p, 12)
        stamps_flush(p, t0, t1)
    return V
```

```python
from emit import *

NAME = "concat_heads__ssm_conv_s4d__linear_kernel_hedgehog__prompt"
KNAME = NAME + "_kernel"

S_U, S_LAR, S_AIM, S_CRE, S_CIM, S_LDT, S_DSK, S_X = 4, 6, 8, 10, 12, 14, 16, 18
S_WQKV, S_WPHI, S_WO, S_OUT = 20, 22, 24, 26
S_DBG, S_WS = 28, 30

N_B = 176
N_WG = 256
LDS_BYTES = 163840

LOG2E = 0x3FB8AA3B
LOG2E_LO = 0x32A57060
LN2 = 0x3F317218

def header_text():
    return f"""; Kernarg layout (112 bytes, pointers only): u, log_A_real, A_imag, C_real, C_imag, log_dt, D_skip,
; @launch grid=({N_WG},1,1) block=(512,1,1) lds={LDS_BYTES}
.amdgcn_target "amdgcn-amd-amdhsa--gfx950"
.text
.globl {KNAME}
.p2align 8
.type {KNAME},@function
{KNAME}:
"""

def footer_text(vgpr=256, sgpr=102):
    acc = min(256, (vgpr + 3) // 4 * 4)
    return f"""
.section .rodata,"a"
.p2align 6
.amdhsa_kernel {KNAME}
  .amdhsa_next_free_vgpr {vgpr}
  .amdhsa_next_free_sgpr {sgpr}
  .amdhsa_accum_offset {acc}
  .amdhsa_group_segment_fixed_size 0
  .amdhsa_kernarg_size 112
  .amdhsa_user_sgpr_count 2
  .amdhsa_user_sgpr_kernarg_segment_ptr 1
  .amdhsa_system_sgpr_workgroup_id_x 1
.end_amdhsa_kernel
"""

def srd(p, dst, ptr, size):
    p(f"""
    s_mov_b32 s{dst}, s{ptr}
    s_and_b32 s{dst+1}, s{ptr+1}, 0xffff
    s_mov_b32 s{dst+2}, {size}
    s_mov_b32 s{dst+3}, 0x00020000
    """)

DIAG = False
DUMP = False
import os
OPT = set(os.environ.get('KOPT', '').split(','))
S_STAMP = 64
DIAG_OFF = 16 << 20
class Stamps:
    n = 0
def stamp(p, idx=None):
    import common
    if not common.DIAG: return
    if idx is not None: Stamps.n = idx
    i = Stamps.n; Stamps.n += 1
    assert i < 16
    p(f"s_memrealtime s[98:99]\n s_waitcnt lgkmcnt(0)\n s_mov_b32 s{S_STAMP+i}, s98")
def cstamp(p, idx):
    import common
    if not common.DIAG: return
    p(f"s_memtime s[98:99]\n s_waitcnt lgkmcnt(0)\n s_mov_b32 s{S_STAMP+idx}, s98")
_dm = [0]
def dbgmax(p, word, vt0, vt1, sW):
    import common
    if 'hdiag' not in common.OPT: return
    _dm[0] += 1
    p(f"s_cmp_lg_u32 s{sW}, 0\n s_cbranch_scc1 L_dm{_dm[0]}")
    p(f"s_memrealtime s[98:99]\n s_waitcnt lgkmcnt(0)")
    p(f"""
    v_mov_b32 v{vt0}, {4*word}
    v_mov_b32 v{vt1}, s98
    s_mov_b64 s[98:99], exec
    s_mov_b32 exec_lo, 1
    s_mov_b32 exec_hi, 0
    global_atomic_umax v{vt0}, v{vt1}, s[{S_DBG}:{S_DBG+1}] sc1
    s_mov_b64 exec, s[98:99]
    """)
    p.label(f"L_dm{_dm[0]}")
def stamps_reset(n=0):
    Stamps.n = n
def stamps_flush(p, vt0, vt1):
    import common
    if not common.DIAG: return
    p(f"""
    v_lshrrev_b32 v{vt0}, 6, v0
    s_lshl_b32 s98, s2, 3
    v_add_u32 v{vt0}, s98, v{vt0}
    v_lshlrev_b32 v{vt0}, 6, v{vt0}
    v_add_u32 v{vt0}, {DIAG_OFF}, v{vt0}
    """)
    for i in range(16):
        p(f"v_mov_b32 v{vt1}, s{S_STAMP+i}")
        p(f"global_store_dword v{vt0}, v{vt1}, s[{S_WS}:{S_WS+1}] offset:{4*i}")
```

```python
from common import *
import common

SLOT = 40960
WOFF = 24576
WO_IMG = 0
PHI = 81920
RS = 296
AST = 139264
RED = 81920
WS_PART = 65536
PART_STRIDE = 5120
WS_O = 1 << 20
O_TILE = 20480
WS_SIZE = 16 << 20
SPIN_MAX = 1 << 14
DBG_CNT = 4

def merge(streams):
    out = []
    n = max(len(s) for s in streams)
    for j in range(n):
        for s in streams:
            if j < len(s): out.append(s[j])
    return out

def gen_part_b(p):
    V = VAlloc(256, start=1)
    sJ, sI, sT, sRB, sHP, sW, sWR, sTY = 32, 33, 34, 35, 36, 37, 38, 39
    SRD_X, SRD_W, SRD_WS, SRD_WO, SRD_O = 40, 44, 48, 52, 56
    sT0, sT1, sT2, sT3 = 60, 61, 62, 63
    sKC = 81; sS = 82; sSLOTD = 83; sXO = 84; sWO = 85; sM0 = 86; sROW0 = 87
    sL = 88
    sRT, sCG, sDSLOT = 92, 93, 94
    sNEG = 100; sCNT = 101
    OPT = common.OPT
    p(f"""
    s_and_b32 s{sJ}, s2, 7
    s_lshr_b32 s{sI}, s2, 3
    s_lshr_b32 s{sT0}, s{sJ}, 2
    s_mul_i32 s{sT0}, s{sT0}, 22
    s_add_u32 s{sT}, s{sT0}, s{sI}
    s_lshr_b32 s{sRB}, s{sT}, 2
    s_and_b32 s{sT0}, s{sT}, 3
    s_and_b32 s{sT1}, s{sJ}, 3
    s_lshl_b32 s{sT1}, s{sT1}, 2
    s_add_u32 s{sHP}, s{sT1}, s{sT0}
    s_mul_i32 s{sROW0}, s{sRB}, 192
    s_mul_i32 s{sT1}, s{sT0}, 3
    s_lshl_b32 s{sT2}, s{sRB}, 1
    s_add_u32 s{sKC}, s{sT1}, s{sT2}
    s_mul_i32 s{sT1}, s{sKC}, 205
    s_lshr_b32 s{sT1}, s{sT1}, 11
    s_mul_i32 s{sT1}, s{sT1}, 10
    s_sub_u32 s{sKC}, s{sKC}, s{sT1}
    """)
    vLane = V.alloc(); vI = V.alloc(); vG = V.alloc(); t0 = V.alloc(); t1 = V.alloc(); t2 = V.alloc(); t3 = V.alloc()
    p(f"""
    v_lshrrev_b32 v{t0}, 6, v0
    v_and_b32 v{vLane}, 63, v0
    v_readfirstlane_b32 s{sW}, v{t0}
    v_and_b32 v{vI}, 15, v{vLane}
    v_lshrrev_b32 v{vG}, 4, v{vLane}
    s_and_b32 s{sWR}, s{sW}, 3
    s_lshr_b32 s{sTY}, s{sW}, 2
    """)
    vXo = V.alloc(3, align=1); vWo = V.alloc()
    p(f"""
    s_mul_i32 s{sT0}, s{sW}, 24
    v_lshrrev_b32 v{t0}, 3, v{vLane}
    v_add_u32 v{t0}, s{sT0}, v{t0}
    v_and_b32 v{t2}, 7, v{vLane}
    v_add_u32 v{t3}, s{sROW0}, v{t0}
    v_mul_u32_u24 v{t3}, 1280, v{t3}
    """)
    for e in range(3):
        p(f"""
        v_add_u32 v{t1}, {8*e}, v{t0}
        v_bfe_u32 v{t1}, v{t1}, 1, 3
        v_xor_b32 v{t1}, v{t1}, v{t2}
        v_lshl_add_u32 v{vXo+e}, v{t1}, 4, v{t3}
        """)
        if e: p(f"v_add_u32 v{vXo+e}, {8*e*1280}, v{vXo+e}")
    p(f"""
    s_and_b32 s{sT0}, s{sW}, 1
    s_lshl_b32 s{sT0}, s{sT0}, 3
    v_lshlrev_b32 v{t0}, 1, v{vG}
    v_add_u32 v{t0}, s{sT0}, v{t0}
    v_xor_b32 v{t0}, v{t0}, v{vI}
    v_min_u32 v{t0}, 14, v{t0}
    ; c<5: 1280+16c ; c<8: 2560+16(c-5) ; c<13: 16(c-8) ; else 2560+16(c-10)
    v_lshlrev_b32 v{t1}, 4, v{t0}
    v_add_u32 v{t2}, {2560-160}, v{t1}
    v_subrev_u32 v{t3}, 128, v{t1}
    v_cmp_gt_u32 vcc, 13, v{t0}
    v_cndmask_b32 v{t2}, v{t2}, v{t3}, vcc
    v_add_u32 v{t3}, {2560-80}, v{t1}
    v_cmp_gt_u32 vcc, 8, v{t0}
    v_cndmask_b32 v{t2}, v{t2}, v{t3}, vcc
    v_add_u32 v{t3}, 1280, v{t1}
    v_cmp_gt_u32 vcc, 5, v{t0}
    v_cndmask_b32 v{t2}, v{t2}, v{t3}, vcc
    s_mul_i32 s{sT0}, s{sHP}, 80
    s_mul_i32 s{sT1}, s{sW}, {8*3840}
    s_add_u32 s{sT0}, s{sT0}, s{sT1}
    v_mul_u32_u24 v{t0}, 3840, v{vG}
    v_add3_u32 v{vWo}, v{t0}, v{t2}, s{sT0}
    s_mul_i32 s{sT0}, s{sHP}, 1600
    v_lshlrev_b32 v{t0}, 4, v{vLane}
    v_add_u32 v{t0}, s{sT0}, v{t0}
    v_add_u32 v{t1}, 1024, v{t0}
    s_waitcnt lgkmcnt(0)
    """)
    srd(p, SRD_X, S_X, 2048 * 1280)
    srd(p, SRD_W, S_WQKV, 640 * 3840)
    if 'hdiag' in OPT:
        p(f"""
        s_cmp_lg_u32 s{sW}, 0
        s_cbranch_scc1 L_dmstart
        s_not_b32 s79, s79
        v_mov_b32 v{t2}, 32
        v_mov_b32 v{t3}, s79
        s_mov_b32 exec_lo, 1
        s_mov_b32 exec_hi, 0
        global_atomic_umax v{t2}, v{t3}, s[{S_DBG}:{S_DBG+1}] sc1
        s_mov_b64 exec, -1
        """)
        p.label("L_dmstart")
    def dma_stage(slot, const=True):
        L = [f"s_lshl_b32 s{sXO}, s{sKC}, 7", f"s_mul_i32 s{sWO}, s{sKC}, {64*3840}", f"s_mul_i32 s{sM0}, s{sW}, 3072",
             f"s_add_u32 s{sM0}, s{sM0}, {slot}" if const else f"s_add_u32 s{sM0}, s{sM0}, s{slot}"]
        grp = []
        for e in range(3):
            grp.append([f"s_add_u32 m0, s{sM0}, {1024*e}", f"buffer_load_dwordx4 v{vXo+e}, s[{SRD_X}:{SRD_X+3}], s{sXO} offen lds"])
        grp.append([f"s_lshl_b32 s{sT2}, s{sW}, 10", f"s_sub_u32 s{sM0}, s{sM0}, s{sT2}", f"s_add_u32 m0, s{sM0}, {WOFF}",
                    f"buffer_load_dwordx4 v{vWo}, s[{SRD_W}:{SRD_W+3}], s{sWO} offen lds"])
        grp.append([f"s_add_u32 s{sWO}, s{sWO}, {4*3840}", f"s_add_u32 m0, s{sM0}, {WOFF+1024}",
                    f"buffer_load_dwordx4 v{vWo}, s[{SRD_W}:{SRD_W+3}], s{sWO} offen lds"])
        post = [f"s_add_u32 s{sKC}, s{sKC}, 1", f"s_cmp_eq_u32 s{sKC}, 10", f"s_cselect_b32 s{sKC}, 0, s{sKC}"]
        return L, grp, post
    def emit_dma(slot):
        L, grp, post = dma_stage(slot)
        for x in L + sum(grp, []) + post: p(x)
    emit_dma(0)
    vWp = V.alloc(4, align=4); vWp2 = V.alloc(4, align=4)
    p(f"""
    global_load_dwordx4 v[{vWp}:{vWp+3}], v{t0}, s[{S_WPHI}:{S_WPHI+1}]
    s_mov_b32 exec_hi, 15
    global_load_dwordx4 v[{vWp2}:{vWp2+3}], v{t1}, s[{S_WPHI}:{S_WPHI+1}]
    s_mov_b32 exec_hi, -1
    """)
    emit_dma(SLOT)
    srd(p, SRD_WS, S_WS, WS_SIZE)
    on4 = V.alloc(4, align=4); vC0 = V.alloc(); vC1 = V.alloc()
    p(f"""
    v_mov_b32 v{on4}, -1
    v_mov_b32 v{on4+1}, -1
    v_mov_b32 v{on4+2}, -1
    v_mov_b32 v{on4+3}, -1
    s_cmp_eq_u32 s{sTY}, 0
    s_cbranch_scc0 L_b_clrq
    s_lshl_b32 s{sT0}, s{sRB}, 4
    s_add_u32 s{sT0}, s{sT0}, s{sHP}
    s_mul_i32 s{sT0}, s{sT0}, {PART_STRIDE}
    s_mul_i32 s{sT1}, s{sWR}, 1280
    s_add_u32 s{sT0}, s{sT0}, s{sT1}
    s_add_u32 s{sT0}, s{sT0}, {WS_PART}
    v_lshl_add_u32 v{vC0}, v{vLane}, 4, s{sT0}
    s_add_u32 s{sT0}, s{sT0}, 1024
    v_lshl_add_u32 v{vC1}, v{vLane}, 2, s{sT0}
    buffer_store_dwordx4 v[{on4}:{on4+3}], v{vC0}, s[{SRD_WS}:{SRD_WS+3}], 0 offen sc1
    buffer_store_dword v{on4}, v{vC1}, s[{SRD_WS}:{SRD_WS+3}], 0 offen sc1
    s_branch L_b_clrd
    """)
    p.label("L_b_clrq")
    p(f"""
    s_mul_i32 s{sT0}, s{sRB}, 12
    s_mul_i32 s{sT1}, s{sWR}, 3
    s_add_u32 s{sT0}, s{sT0}, s{sT1}
    s_mul_i32 s{sT0}, s{sT0}, {O_TILE}
    s_mul_i32 s{sT1}, s{sHP}, 1280
    s_add_u32 s{sT0}, s{sT0}, s{sT1}
    s_add_u32 s{sT0}, s{sT0}, {WS_O}
    v_lshl_add_u32 v{vC0}, v{vLane}, 4, s{sT0}
    s_add_u32 s{sT0}, s{sT0}, 1024
    v_lshl_add_u32 v{vC1}, v{vLane}, 2, s{sT0}
    """)
    for nt in range(3):
        p(f"s_mov_b32 s{sT1}, {O_TILE*nt}")
        p(f"buffer_store_dwordx4 v[{on4}:{on4+3}], v{vC0}, s[{SRD_WS}:{SRD_WS+3}], s{sT1} offen sc1")
        p(f"buffer_store_dword v{on4}, v{vC1}, s[{SRD_WS}:{SRD_WS+3}], s{sT1} offen sc1")
    p.label("L_b_clrd")
    stamp(p, 1)
    srd(p, SRD_WO, S_WO, 640 * 1280)
    srd(p, SRD_O, S_OUT, 2048 * 2560)
    p(f"""
    s_mov_b32 s{sL}, {LOG2E:#x}
    s_mov_b32 s{sL+1}, {LOG2E:#x}
    s_mov_b32 s{sNEG}, {-3*SLOT & 0xffffffff:#x}
    """)
    vXa = V.alloc(2, align=1); vWa = V.alloc(4, align=1)
    for ks in range(2):
        p(f"""
        v_add_u32 v{t0}, {4*ks}, v{vG}
        v_lshrrev_b32 v{t1}, 1, v{vI}
        v_xor_b32 v{t0}, v{t0}, v{t1}
        v_lshlrev_b32 v{t0}, 4, v{t0}
        s_mul_i32 s{sT0}, s{sWR}, 48
        v_add_u32 v{t1}, s{sT0}, v{vI}
        v_lshl_add_u32 v{vXa+ks}, v{t1}, 7, v{t0}
        """)
    p(f"""
    v_and_b32 v{t0}, 1, v{vG}
    v_xor_b32 v{t0}, s{sTY}, v{t0}
    v_lshlrev_b32 v{t0}, 7, v{t0}
    v_bfe_u32 v{t2}, v{vI}, 1, 1
    v_lshl_add_u32 v{t0}, v{t2}, 4, v{t0}
    v_and_b32 v{t2}, 1, v{vI}
    v_lshl_add_u32 v{t0}, v{t2}, 3, v{t0}
    v_lshrrev_b32 v{t1}, 2, v{vI}
    v_lshl_add_u32 v{t2}, v{vG}, 3, v{t1}
    v_lshl_add_u32 v{t0}, v{t2}, 8, v{t0}
    v_add_u32 v{t0}, {WOFF}, v{t0}
    """)
    for mt in range(4):
        p(f"v_xor_b32 v{t2}, {mt}, v{t1}\n v_lshl_add_u32 v{vWa+mt}, v{t2}, 5, v{t0}")
    acc = V.alloc(48, align=4)
    for k in range(48): p(f"v_mov_b32 v{acc+k}, 0")
    WPB = 3 * SLOT
    vFA = V.alloc(16, align=4)
    FA, FB, FC0, FC1 = vFA, vFA + 4, vFA + 8, vFA + 12
    GT = V.alloc(32, align=1)
    for k in range(32): p(f"v_mov_b32 v{GT+k}, 0")
    p(f"""
    s_lshl_b32 s{sT0}, s{sW}, 11
    s_add_u32 s{sT0}, s{sT0}, {WPB}
    v_lshl_add_u32 v{t0}, v{vLane}, 4, s{sT0}
    v_lshrrev_b32 v{t1}, 2, v{vI}
    v_mul_u32_u24 v{t1}, 5, v{t1}
    v_and_b32 v{t2}, 3, v{vI}
    v_add_u32 v{t2}, v{t1}, v{t2}
    v_lshlrev_b32 v{t2}, 1, v{t2}
    v_mul_u32_u24 v{t3}, 160, v{vG}
    v_add3_u32 v{t2}, v{t2}, v{t3}, s{sT0}      ; t2: f = 5(m>>2)+(m&3)
    v_add_u32 v{t1}, 4, v{t1}
    v_lshlrev_b32 v{t1}, 1, v{t1}
    v_add3_u32 v{t1}, v{t1}, v{t3}, s{sT0}      ; t1: f = 5(m>>2)+4
    s_cmp_eq_u32 s{sTY}, 0
    s_cbranch_scc0 L_b_w1q
    s_waitcnt vmcnt(7)
    s_branch L_b_w1d
    """)
    p.label("L_b_w1q")
    p("s_waitcnt vmcnt(11)")
    p.label("L_b_w1d")
    p(f"""
    ds_write_b128 v{t0}, v[{vWp}:{vWp+3}]
    s_mov_b32 exec_hi, 15
    ds_write_b128 v{t0}, v[{vWp2}:{vWp2+3}] offset:1024
    s_mov_b32 exec_hi, -1
    s_waitcnt lgkmcnt(0)
    """)
    def gather(dst, addr, off, mask):
        p(f"s_mov_b32 exec_lo, {mask & 0xffffffff:#x}\n s_mov_b32 exec_hi, {mask >> 32:#x}")
        for e in range(4):
            p(f"ds_read_u16 v{GT + 2*(dst - vFA) + e}, v{addr} offset:{off + 40*e}")
    G0 = 0xFFFF; G01 = 0xFFFFFFFF; G123 = 0xFFFFFFFFFFFF0000; ALL = (1 << 64) - 1
    R0 = 0x1111111111111111; R1 = 0x2222222222222222
    gather(FA, t2, 0, ALL);            gather(FA + 2, t2, 16*40, G0)
    gather(FB, t2, 800 - 160, G123);   gather(FB + 2, t2, 800 + 12*40, G01)
    gather(FC0, t1, 0, R0);            gather(FC0 + 2, t1, 16*40, G0 & R0)
    gather(FC1, t1, 800 - 160, G123 & R1); gather(FC1 + 2, t1, 800 + 12*40, G01 & R1)
    p("s_mov_b64 exec, -1\n s_waitcnt lgkmcnt(0)")
    for k in range(16):
        p(f"v_lshl_or_b32 v{vFA+k}, v{GT+2*k+1}, 16, v{GT+2*k}")
    V.release(GT, 32); V.release(vWp, 4); V.release(vWp2, 4); V.release(on4, 4); V.release(vC0); V.release(vC1)
    XF = [V.alloc(12, align=4), V.alloc(12, align=4)]
    WF = [V.alloc(16, align=4), V.alloc(16, align=4)]
    def reads(ks):
        L = []
        for mt in range(4):
            for h in range(2):
                L.append(f"ds_read_b64_tr_b16 v[{WF[ks]+4*mt+2*h}:{WF[ks]+4*mt+2*h+1}], v{vWa+mt} offset:{8192*ks + 1024*h}")
        X = [f"ds_read_b128 v[{XF[ks]+4*nt}:{XF[ks]+4*nt+3}], v{vXa+ks} offset:{2048*nt}" for nt in range(3)]
        return [L[0], L[1], X[0], X[1], X[2]] + L[2:]
    def mfmas(ks):
        L = []
        for mt in range(4):
            for nt in range(3):
                a = acc + 16*nt + 4*mt
                L.append(f"v_mfma_f32_16x16x32_bf16 v[{a}:{a+3}], v[{WF[ks]+4*mt}:{WF[ks]+4*mt+3}], v[{XF[ks]+4*nt}:{XF[ks]+4*nt+3}], v[{a}:{a+3}]")
        return L
    def sched(main, slots):
        for i, m in enumerate(main):
            if 'nomfma' not in OPT: p(m)
            for x in slots.get(i, []):
                if ('nomfma' in OPT or 'nords' in OPT) and x.startswith('ds_read'): continue
                if 'nodma' in OPT and x.startswith('buffer_load'): continue
                p(x)
    def advance():
        return [f"v_add_u32 v{r}, s{sSLOTD}, v{r}" for r in (vWa, vXa, vWa+1, vWa+2, vWa+3, vXa+1)]
    p("s_barrier")
    dbgmax(p, 11, t2, t3, sW)
    stamp(p, 2); cstamp(p, 13)
    for x in reads(0): p(x)
    emit_dma(2 * SLOT)
    p(f"s_mov_b32 s{sS}, 0\n s_mov_b32 s{sDSLOT}, 0")
    def slot_delta():
        return [f"s_and_b32 s{sT0}, s{sS}, 3", f"s_cmp_eq_u32 s{sT0}, 3", f"s_cselect_b32 s{sSLOTD}, s{sNEG}, {SLOT}"]
    RSP = int(common.os.environ.get("RSP", "2"))
    def read_slots(r, first):
        d = {}
        k = first
        while r:
            d[k] = r[:RSP]; r = r[RSP:]; k += 1
        return d
    def add(d, k, x): d[k] = d.get(k, []) + x
    def half0(tail=False, dma3=False):
        p("s_waitcnt lgkmcnt(0)")
        slots = read_slots(reads(1), 0)
        add(slots, 2, slot_delta())
        if dma3:
            L, grp, post = dma_stage(3 * SLOT)
            add(slots, 6, L + grp[0]); add(slots, 7, grp[1]); add(slots, 8, grp[2]); add(slots, 9, grp[3]); add(slots, 10, grp[4] + post)
        if tail:
            L, grp, post = dma_stage(sDSLOT, const=False)
            add(slots, 6, grp[2]); add(slots, 8, grp[3]); add(slots, 10, grp[4] + post +
                [f"s_add_u32 s{sDSLOT}, s{sDSLOT}, {SLOT}", f"s_cmp_eq_u32 s{sDSLOT}, {4*SLOT}", f"s_cselect_b32 s{sDSLOT}, 0, s{sDSLOT}"])
        sched(mfmas(0), slots)
    def half1(vm, head, nxt=True, extra=None):
        p(f"s_waitcnt vmcnt({vm}) lgkmcnt(0)" if vm is not None else "s_waitcnt lgkmcnt(0)")
        if nxt:
            if 'nobar' not in OPT: p("s_barrier")
            slots = read_slots(reads(0), 1)
            slots[0] = advance()
            if head:
                L, grp, post = dma_stage(sDSLOT, const=False)
                add(slots, 7, L + grp[0]); add(slots, 9, grp[1])
            if extra: add(slots, 8, extra)
            sched(mfmas(1), slots)
        else:
            sched(mfmas(1), {})
    half0(dma3=True)
    cnt = [f"s_cmp_lg_u32 s{sW}, 0", "s_cbranch_scc1 L_b_nocnt", f"v_mov_b32 v{t0}, {DBG_CNT}", f"v_mov_b32 v{t1}, 1",
           "s_mov_b32 exec_lo, 1", "s_mov_b32 exec_hi, 0",
           f"global_atomic_add v{t0}, v{t1}, s[{S_DBG}:{S_DBG+1}] sc1", "s_mov_b64 exec, -1"]
    half1(10, True)
    for x in cnt: p(x)
    p.label("L_b_nocnt")
    p(f"s_mov_b32 s{sS}, 1")
    p.label("L_b_main")
    half0(tail=True); half1(10, True)
    p(f"s_add_u32 s{sS}, s{sS}, 1\n s_cmp_lt_u32 s{sS}, 6\n s_cbranch_scc1 L_b_main")
    vNon = V.alloc()
    half0(tail=True); half1(10, False, extra=[f"v_mov_b32 v{t0}, {DBG_CNT}", f"global_load_dword v{vNon}, v{t0}, s[{S_DBG}:{S_DBG+1}] sc1"])
    p(f"s_add_u32 s{sS}, s{sS}, 1")
    half0(); half1(6, False); p(f"s_add_u32 s{sS}, s{sS}, 1")
    half0(); half1(1, False); p(f"s_add_u32 s{sS}, s{sS}, 1")
    half0(); half1(None, False, nxt=False)
    stamp(p, 3); cstamp(p, 14)
    V.release(XF[0], 12); V.release(XF[1], 12); V.release(WF[0], 16); V.release(WF[1], 16)
    V.release(vXa, 2); V.release(vWa, 4); V.release(vXo, 3); V.release(vWo)
    dbgmax(p, 10, t2, t3, sW)
    p(f"s_waitcnt vmcnt(0)\n s_mov_b32 s{sCNT}, 0")
    p.label("L_b_clr")
    p(f"""
    v_readfirstlane_b32 s{sT0}, v{vNon}
    s_cmp_ge_u32 s{sT0}, {N_B}
    s_cbranch_scc1 L_b_clr_ok
    s_add_u32 s{sCNT}, s{sCNT}, 1
    s_cmp_gt_u32 s{sCNT}, {SPIN_MAX}
    s_cbranch_scc1 L_b_clr_ok
    v_mov_b32 v{t0}, {DBG_CNT}
    global_load_dword v{vNon}, v{t0}, s[{S_DBG}:{S_DBG+1}] sc1
    s_waitcnt vmcnt(0)
    s_branch L_b_clr
    """)
    p.label("L_b_clr_ok")
    V.release(vNon)
    P = V.alloc(3 * 8, align=2)
    vRow = V.alloc()
    vV2 = V.alloc(); vV3 = V.alloc()
    p(f"""
    s_mul_i32 s{sT0}, s{sWR}, 48
    v_add_u32 v{t0}, s{sT0}, v{vI}
    v_mul_u32_u24 v{vRow}, {RS}, v{t0}
    v_add_u32 v{vRow}, {PHI}, v{vRow}
    s_mul_i32 s{sT0}, s{sTY}, 48
    v_lshlrev_b32 v{t1}, 3, v{vG}
    v_add3_u32 v{vV2}, v{t1}, v{vRow}, s{sT0}
    v_add_u32 v{vV2}, {192 - 16}, v{vV2}
    v_add_u32 v{t2}, {192 + 16}, v{t1}
    v_add_u32 v{t3}, {192 + 64}, v{t1}
    v_cmp_gt_u32 vcc, 2, v{vG}
    v_add_u32 v{vV3}, {280 - 16}, v{t1}
    v_cndmask_b32 v{t3}, v{vV3}, v{t3}, vcc
    s_cmp_eq_u32 s{sTY}, 0
    s_cselect_b64 vcc, -1, 0
    v_cndmask_b32 v{t3}, v{t3}, v{t2}, vcc
    v_add_u32 v{vV3}, v{t3}, v{vRow}
    """)
    def cvtP(nt, mts):
        for mt in mts:
            a = acc + 16*nt + 4*mt
            p(f"v_cvt_pk_bf16_f32 v{P+8*nt+2*mt}, v{a}, v{a+1}")
            p(f"v_cvt_pk_bf16_f32 v{P+8*nt+2*mt+1}, v{a+2}, v{a+3}")
    for nt in range(3): cvtP(nt, (2, 3))
    p("s_mov_b32 exec_lo, 0")
    for nt in range(3): p(f"ds_write_b64 v{vV2}, v[{P+8*nt+4}:{P+8*nt+5}] offset:{16*RS*nt}")
    p("s_mov_b32 exec_lo, -1")
    for nt in range(3): p(f"ds_write_b64 v{vV3}, v[{P+8*nt+6}:{P+8*nt+7}] offset:{16*RS*nt}")
    for nt in range(3): cvtP(nt, (0, 1))
    if common.DUMP:
        p(f"""
        s_lshl_b32 s{sT0}, s2, 3
        s_add_u32 s{sT0}, s{sT0}, s{sW}
        s_mul_i32 s{sT0}, s{sT0}, {24*256}
        s_add_u32 s{sT0}, s{sT0}, {4<<20}
        v_lshl_add_u32 v{t0}, v{vLane}, 2, s{sT0}
        """)
        for k in range(24):
            p(f"buffer_store_dword v{P+k}, v{t0}, s[{SRD_WS}:{SRD_WS+3}], 0 offen offset:{256*(k%16)}")
            if k == 15: p(f"v_add_u32 v{t0}, 4096, v{t0}")
        p("s_waitcnt vmcnt(0)")
    V.release(acc, 48)
    TT = [V.alloc(12, align=4) for _ in range(3)]
    EE = [V.alloc(20, align=2) for _ in range(3)]
    SS = [V.alloc(6, align=2) for _ in range(3)]
    def softmax(nt, outs):
        T, E, S = TT[nt], EE[nt], SS[nt]
        X01 = P + 8*nt; X12 = P + 8*nt + 2
        a0, a1, b0, b1, c, d = S, S+1, S+2, S+3, S+4, S+5
        L = [f"v_mfma_f32_16x16x32_bf16 v[{T}:{T+3}], v[{FA}:{FA+3}], v[{X01}:{X01+3}], 0",
             f"v_mfma_f32_16x16x32_bf16 v[{T+8}:{T+11}], v[{FC0}:{FC0+3}], v[{X01}:{X01+3}], 0",
             f"v_mfma_f32_16x16x32_bf16 v[{T+4}:{T+7}], v[{FB}:{FB+3}], v[{X12}:{X12+3}], 0",
             f"v_mfma_f32_16x16x32_bf16 v[{T+8}:{T+11}], v[{FC1}:{FC1+3}], v[{X12}:{X12+3}], v[{T+8}:{T+11}]"]
        x = [[T, T+1, T+2, T+3, T+8], [T+4, T+5, T+6, T+7, T+9]]
        for h, (a, b) in enumerate(((a0, b0), (a1, b1))):
            xs = x[h]
            L += [f"v_max3_f32 v{a}, v{xs[0]}, v{xs[1]}, v{xs[2]}", f"v_max3_f32 v{b}, -v{xs[0]}, -v{xs[1]}, -v{xs[2]}"]
        for h, (a, b) in enumerate(((a0, b0), (a1, b1))):
            xs = x[h]
            L += [f"v_max3_f32 v{a}, v{a}, v{xs[3]}, v{xs[4]}", f"v_max3_f32 v{b}, v{b}, -v{xs[3]}, -v{xs[4]}"]
        def allred(op):
            return [f"v_permlane16_swap_b32 v{a0}, v{b0}", f"v_permlane16_swap_b32 v{a1}, v{b1}",
                    f"{op} v{a0}, v{a0}, v{b0}", f"{op} v{a1}, v{a1}, v{b1}",
                    f"v_permlane32_swap_b32 v{a0}, v{a1}", f"{op} v{c}, v{a0}, v{a1}"]
        bc = [f"v_mov_b32 v{d}, v{c}", f"v_permlane32_swap_b32 v{c}, v{d}", f"v_mov_b32 v{a0}, v{c}", f"v_mov_b32 v{a1}, v{d}",
              f"v_permlane16_swap_b32 v{a0}, v{c}", f"v_permlane16_swap_b32 v{a1}, v{d}"]
        L += allred("v_max_f32") + [f"v_mul_f32 v{c}, s{sL}, v{c}"] + bc
        sel = [(0, 0), (0, 0), (1, 1), (1, 1), (0, 1)]
        for k in range(5):
            lo, hi = sel[k]
            L.append(f"v_pk_fma_f32 v[{E+2*k}:{E+2*k+1}], v[{T+2*k}:{T+2*k+1}], s[{sL}:{sL+1}], v[{a0}:{a1}] op_sel:[0,0,{lo}] op_sel_hi:[1,1,{hi}] neg_lo:[0,0,1] neg_hi:[0,0,1]")
            L.append(f"v_pk_fma_f32 v[{E+10+2*k}:{E+10+2*k+1}], v[{T+2*k}:{T+2*k+1}], s[{sL}:{sL+1}], v[{c}:{d}] op_sel:[0,0,{lo}] op_sel_hi:[1,1,{hi}] neg_lo:[1,0,1] neg_hi:[1,0,1]")
        L += [f"v_exp_f32 v{E+k}, v{E+k}" for k in range(20)]
        L += [f"v_pk_add_f32 v[{T}:{T+1}], v[{E}:{E+1}], v[{E+2}:{E+3}]",
              f"v_pk_add_f32 v[{T+2}:{T+3}], v[{E+4}:{E+5}], v[{E+6}:{E+7}]",
              f"v_pk_add_f32 v[{T+4}:{T+5}], v[{E+10}:{E+11}], v[{E+12}:{E+13}]",
              f"v_pk_add_f32 v[{T+6}:{T+7}], v[{E+14}:{E+15}], v[{E+16}:{E+17}]",
              f"v_add_f32 v{a0}, v{T}, v{T+1}", f"v_add_f32 v{a1}, v{T+2}, v{T+3}",
              f"v_add_f32 v{b0}, v{T+4}, v{T+5}", f"v_add_f32 v{b1}, v{T+6}, v{T+7}",
              f"v_pk_add_f32 v[{a0}:{a1}], v[{a0}:{a1}], v[{E+8}:{E+9}]",
              f"v_pk_add_f32 v[{b0}:{b1}], v[{b0}:{b1}], v[{E+18}:{E+19}]"]
        L += allred("v_add_f32") + [f"v_rcp_f32 v{c}, v{c}"] + bc
        for k in range(5):
            lo, hi = sel[k]
            L.append(f"v_pk_mul_f32 v[{E+2*k}:{E+2*k+1}], v[{E+2*k}:{E+2*k+1}], v[{a0}:{a1}] op_sel:[0,{lo}] op_sel_hi:[1,{hi}]")
            L.append(f"v_pk_mul_f32 v[{E+10+2*k}:{E+10+2*k+1}], v[{E+10+2*k}:{E+10+2*k+1}], v[{c}:{d}] op_sel:[0,{lo}] op_sel_hi:[1,{hi}]")
        pairs = [[(0, 1), (2, 3), (8, 10), (11, 12), (13, 18)], [(4, 5), (6, 7), (9, 14), (15, 16), (17, 19)]]
        for h in range(2):
            for k, (u, w) in enumerate(pairs[h]):
                L.append(f"v_cvt_pk_bf16_f32 v{outs[h]+k}, v{E+u}, v{E+w}")
        return L
    p(f"s_cmp_eq_u32 s{sTY}, 0\n s_cbranch_scc0 L_b_qtype")
    stamp(p, 4)
    p(f"""
    s_mul_i32 s{sT0}, s{sWR}, 48
    s_add_u32 s{sT0}, s{sT0}, s{sROW0}
    v_add_u32 v{t0}, s{sT0}, v{vI}
    v_mov_b32 v{t1}, 0x3f80
    """)
    on = V.alloc(2, align=2)
    p(f"v_mov_b32 v{on+1}, 0")
    for nt in range(3):
        p(f"""
        v_cmp_gt_u32 vcc, 0x800, v{t0}
        v_cndmask_b32 v{on}, 0, v{t1}, vcc
        ds_write_b64 v{vRow}, v[{on}:{on+1}] offset:{16*RS*nt + 272}
        v_add_u32 v{t0}, 16, v{t0}
        """)
    V.release(on, 2)
    vPh = V.alloc()
    p(f"v_mul_u32_u24 v{t0}, 24, v{vG}\n v_add_u32 v{vPh}, v{t0}, v{vRow}")
    streams = []
    for nt in range(3):
        T = TT[nt]
        L = softmax(nt, [T, T + 6])
        for h in range(2):
            o = T + 6*h; off = 16*RS*nt + 96*h
            L += [f"ds_write_b64 v{vPh}, v[{o}:{o+1}] offset:{off}", f"ds_write_b64 v{vPh}, v[{o+2}:{o+3}] offset:{off+8}",
                  f"ds_write_b32 v{vPh}, v{o+4} offset:{off+16}"]
        streams.append(L)
    for x in merge(streams): p(x)
    p("s_waitcnt lgkmcnt(0)\n s_barrier")
    stamp(p, 5)
    sHD, sHF = 95, 96
    vAa = V.alloc(); vB0 = V.alloc()
    p(f"""
    s_and_b32 s{sHD}, s{sWR}, 1
    s_lshr_b32 s{sHF}, s{sWR}, 1
    v_lshrrev_b32 v{t0}, 2, v{vI}
    v_lshl_add_u32 v{t0}, v{vG}, 3, v{t0}
    v_mul_u32_u24 v{t0}, {RS}, v{t0}
    v_add_u32 v{t0}, {PHI}, v{t0}
    v_and_b32 v{t1}, 3, v{vI}
    v_mul_u32_u24 v{t2}, 24, v{t1}
    s_mul_i32 s{sT0}, s{sHD}, 96
    v_add3_u32 v{vAa}, v{t0}, v{t2}, s{sT0}
    s_mul_i32 s{sT0}, s{sHD}, 40
    v_lshlrev_b32 v{t2}, 3, v{t1}
    v_add_u32 v{t2}, s{sT0}, v{t2}
    v_add_u32 v{vB0}, 192, v{t2}
    s_add_u32 s{sT0}, s{sT0}, 224
    v_mov_b32 v{t2}, 272
    v_mov_b32 v{t3}, s{sT0}
    v_cmp_eq_u32 vcc, s{sHD}, v{t1}
    v_cndmask_b32 v{t2}, v{t2}, v{t3}, vcc
    s_cmp_eq_u32 s{sHF}, 0
    s_cselect_b64 vcc, -1, 0
    v_cndmask_b32 v{t2}, v{t2}, v{vB0}, vcc
    v_add_u32 v{vB0}, v{t0}, v{t2}
    """)
    KF = V.alloc(48, align=4); KD = V.alloc(12, align=4)
    def kvreads(ks):
        b = KF + 16 * (ks % 3); off = 32 * RS * ks
        for h in range(2):
            p(f"ds_read_b64_tr_b16 v[{b+12+2*h}:{b+12+2*h+1}], v{vB0} offset:{off + 4*RS*h}")
        for mt in range(3):
            for h in range(2):
                p(f"ds_read_b64_tr_b16 v[{b+4*mt+2*h}:{b+4*mt+2*h+1}], v{vAa} offset:{off + 4*RS*h + 8*mt}")
    kvreads(0); kvreads(1)
    vP0 = V.alloc(); vP1 = V.alloc()
    p(f"""
    s_lshl_b32 s{sT0}, s{sRB}, 4
    s_add_u32 s{sT0}, s{sT0}, s{sHP}
    s_mul_i32 s{sT0}, s{sT0}, {PART_STRIDE}
    s_mul_i32 s{sT1}, s{sWR}, 1280
    s_add_u32 s{sT0}, s{sT0}, s{sT1}
    s_add_u32 s{sT0}, s{sT0}, {WS_PART}
    v_lshl_add_u32 v{vP0}, v{vLane}, 4, s{sT0}
    s_add_u32 s{sT0}, s{sT0}, 1024
    v_lshl_add_u32 v{vP1}, v{vLane}, 2, s{sT0}
    """)
    for ks in range(6):
        p(f"s_waitcnt lgkmcnt({8 if ks < 5 else 0})")
        b = KF + 16 * (ks % 3)
        for mt in range(3):
            c = "0" if ks == 0 else f"v[{KD+4*mt}:{KD+4*mt+3}]"
            p(f"v_mfma_f32_16x16x32_bf16 v[{KD+4*mt}:{KD+4*mt+3}], v[{b+4*mt}:{b+4*mt+3}], v[{b+12}:{b+15}], {c}")
        if ks + 2 < 6: kvreads(ks + 2)
    q = V.alloc(6, align=4)
    p(f"""
    v_cvt_pk_bf16_f32 v{q}, v{KD}, v{KD+1}
    v_cvt_pk_bf16_f32 v{q+1}, v{KD+2}, v{KD+3}
    v_cvt_pk_bf16_f32 v{q+2}, v{KD+4}, v{KD+5}
    v_cvt_pk_bf16_f32 v{q+3}, v{KD+6}, v{KD+7}
    v_cvt_pk_bf16_f32 v{q+4}, v{KD+8}, v{KD+9}
    buffer_store_dwordx4 v[{q}:{q+3}], v{vP0}, s[{SRD_WS}:{SRD_WS+3}], 0 offen sc1
    buffer_store_dword v{q+4}, v{vP1}, s[{SRD_WS}:{SRD_WS+3}], 0 offen sc1
    """)
    stamp(p, 6)
    V.release(KF, 48); V.release(KD, 12)
    L = V.alloc(56, align=4)
    A10 = V.alloc(10, align=2); mx = V.alloc()
    p(f"""
    s_mul_i32 s{sT0}, s{sRB}, {16*PART_STRIDE}
    v_subrev_u32 v{t0}, s{sT0}, v{vP0}
    v_subrev_u32 v{t1}, s{sT0}, v{vP1}
    s_mov_b32 s{sCNT}, 0
    """)
    def ld_small():
        p(f"s_mov_b32 s{sT0}, 0")
        for r in range(11):
            p(f"buffer_load_dword v{L+44+r}, v{t1}, s[{SRD_WS}:{SRD_WS+3}], s{sT0} offen sc1")
            if r < 10: p(f"s_add_u32 s{sT0}, s{sT0}, {16*PART_STRIDE}")
    def chk_small():
        p(f"v_max3_u32 v{mx}, v{L+44}, v{L+45}, v{L+46}")
        for r in range(3, 11, 2):
            p(f"v_max3_u32 v{mx}, v{mx}, v{L+44+r}, v{L+44+r+1}")
        p(f"v_cmp_eq_u32 vcc, -1, v{mx}")
    p.label("L_b_att1")
    ld_small()
    p(f"s_mov_b32 s{sT0}, 0")
    for r in range(11):
        p(f"buffer_load_dwordx4 v[{L+4*r}:{L+4*r+3}], v{t0}, s[{SRD_WS}:{SRD_WS+3}], s{sT0} offen sc1")
        if r < 10: p(f"s_add_u32 s{sT0}, s{sT0}, {16*PART_STRIDE}")
    p("s_waitcnt vmcnt(11)")
    chk_small()
    p("s_cbranch_vccz L_b_got1")
    p("s_waitcnt vmcnt(0)")
    p.label("L_b_spin1")
    p(f"s_add_u32 s{sCNT}, s{sCNT}, 1\n s_cmp_gt_u32 s{sCNT}, {SPIN_MAX}\n s_cbranch_scc1 L_b_got1")
    ld_small()
    p("s_waitcnt vmcnt(0)")
    chk_small()
    p("s_cbranch_vccnz L_b_spin1\n s_branch L_b_att1")
    p.label("L_b_got1")
    stamp(p, 7)
    sHI = 97
    p(f"s_mov_b32 s{sHI}, 0xffff0000")
    u = V.alloc(4, align=2)
    p(f"v_mov_b32 v{mx}, 0")
    for r in range(11):
        p(f"s_waitcnt vmcnt({10-r})")
        p(f"v_max3_u32 v{mx}, v{mx}, v{L+4*r}, v{L+4*r+1}")
        p(f"v_max3_u32 v{mx}, v{mx}, v{L+4*r+2}, v{L+4*r+3}")
        for k in range(5):
            src = L + 4*r + k if k < 4 else L + 44 + r
            if r == 0:
                p(f"v_lshlrev_b32 v{A10+2*k}, 16, v{src}")
                p(f"v_and_b32 v{A10+2*k+1}, s{sHI}, v{src}")
            else:
                uu = u + 2 * (k & 1)
                p(f"v_lshlrev_b32 v{uu}, 16, v{src}")
                p(f"v_and_b32 v{uu+1}, s{sHI}, v{src}")
                p(f"v_pk_add_f32 v[{A10+2*k}:{A10+2*k+1}], v[{A10+2*k}:{A10+2*k+1}], v[{uu}:{uu+1}]")
    p(f"""
    v_cmp_eq_u32 vcc, -1, v{mx}
    s_cbranch_vccz L_b_sum1
    s_add_u32 s{sCNT}, s{sCNT}, 1
    s_cmp_gt_u32 s{sCNT}, {SPIN_MAX}
    s_cbranch_scc0 L_b_att1
    """)
    p.label("L_b_sum1")
    for k in range(5):
        p(f"v_cvt_pk_bf16_f32 v{L+k}, v{A10+2*k}, v{A10+2*k+1}")
    p(f"""
    s_lshl_b32 s{sT1}, s{sWR}, 10
    s_add_u32 s{sT1}, s{sT1}, {AST}
    v_lshl_add_u32 v{t0}, v{vLane}, 4, s{sT1}
    ds_write_b128 v{t0}, v[{L}:{L+3}]
    s_lshl_b32 s{sT1}, s{sWR}, 8
    s_add_u32 s{sT1}, s{sT1}, {AST + 4096}
    v_lshl_add_u32 v{t1}, v{vLane}, 2, s{sT1}
    ds_write_b32 v{t1}, v{L+4}
    s_waitcnt lgkmcnt(0)
    s_barrier
    """)
    stamp(p, 8)
    p("s_branch L_b_final")
    for r, n in ((vPh, 1), (vAa, 1), (vB0, 1), (vP0, 1), (vP1, 1), (q, 6), (L, 56), (A10, 10), (mx, 1), (u, 4)):
        V.release(r, n)
    p.label("L_b_qtype")
    p("s_waitcnt lgkmcnt(0)\n s_barrier")
    p(f"""
    s_lshr_b32 s{sT0}, s2, 3               ; i
    s_cmp_ge_u32 s{sT0}, 10
    s_cselect_b32 s{sT1}, 1, 0
    s_mul_i32 s{sT1}, s{sT1}, 10
    s_sub_u32 s{sCG}, s{sT0}, s{sT1}
    s_cmp_ge_u32 s2, 160
    s_cbranch_scc1 L_b_nowo
    ; LDS row k' = 8 z + e holds wo row 40 (z/5) + 4 (z%5) + 20 (e>>2) + (e&3);  z = 20 wr + i'
    v_lshrrev_b32 v{t0}, 3, v{vLane}            ; e
    v_bfe_u32 v{t1}, v{t0}, 1, 1
    v_lshlrev_b32 v{t1}, 1, v{t1}
    v_and_b32 v{t2}, 7, v{vLane}
    v_xor_b32 v{t1}, v{t1}, v{t2}
    v_xor_b32 v{t2}, 4, v{t1}
    v_lshrrev_b32 v{t3}, 2, v{t0}
    v_mul_u32_u24 v{t3}, 20, v{t3}
    v_and_b32 v{t0}, 3, v{t0}
    v_add_u32 v{t0}, v{t0}, v{t3}
    s_mul_i32 s{sT0}, s{sWR}, 160
    v_add_u32 v{t0}, s{sT0}, v{t0}
    v_mul_u32_u24 v{t0}, 1280, v{t0}
    s_lshl_b32 s{sT0}, s{sCG}, 7
    v_add_u32 v{t0}, s{sT0}, v{t0}
    v_lshl_add_u32 v{t3}, v{t2}, 4, v{t0}
    v_lshl_add_u32 v{t0}, v{t1}, 4, v{t0}
    s_mul_i32 s{sM0}, s{sWR}, 20480
    """)
    PQ = V.alloc(3*2*6 + 2, align=2)
    wod = []
    for i in range(20):
        wod.append([f"s_mov_b32 s{sT1}, {(40*(i//5) + 4*(i%5))*1280}", f"s_add_u32 m0, s{sM0}, {WO_IMG + 1024*i}",
                    f"buffer_load_dwordx4 v{t3 if i & 1 else t0}, s[{SRD_WO}:{SRD_WO+3}], s{sT1} offen lds"])
    for g in wod:
        for x in g: p(x)
    p.label("L_b_nowo")
    stamp(p, 4)
    for k in range(3*2*6 + 2):
        if k % 6 == 5 or k >= 36: p(f"v_mov_b32 v{PQ+k}, 0")
    for x in merge([softmax(nt, [PQ + 12*nt, PQ + 12*nt + 6]) for nt in range(3)]): p(x)
    stamp(p, 5)
    for r, n in [(P, 24), (vRow, 1), (vV2, 1), (vV3, 1), (vFA, 16)] + [(x, 12) for x in TT] + [(x, 20) for x in EE] + [(x, 6) for x in SS]:
        V.release(r, n)
    p("s_waitcnt vmcnt(0) lgkmcnt(0)\n s_barrier")
    stamp(p, 6)
    AF = V.alloc(32, align=4)
    p(f"""
    v_lshlrev_b32 v{t0}, 4, v{vLane}
    v_add_u32 v{t0}, {AST}, v{t0}
    v_lshlrev_b32 v{t1}, 2, v{vLane}
    v_add_u32 v{t1}, {AST+4096}, v{t1}
    """)
    for k in range(4):
        p(f"ds_read_b128 v[{AF+8*k}:{AF+8*k+3}], v{t0} offset:{1024*k}")
        p(f"ds_read_b32 v{AF+8*k+4}, v{t1} offset:{256*k}")
    for k in range(4):
        for z in (5, 6, 7): p(f"v_mov_b32 v{AF+8*k+z}, 0")
    vOa = V.alloc(); vOb = V.alloc()
    ODs = [V.alloc(16, align=4) for _ in range(3)]; ws_ = [V.alloc(8, align=4) for _ in range(3)]
    sEPS = 97
    p(f"""
    s_mov_b32 s{sEPS}, 0x358637bd
    s_mul_i32 s{sT0}, s{sRB}, 12
    s_mul_i32 s{sT1}, s{sWR}, 3
    s_add_u32 s{sT0}, s{sT0}, s{sT1}
    s_mul_i32 s{sT0}, s{sT0}, {O_TILE}
    s_mul_i32 s{sT1}, s{sHP}, 1280
    s_add_u32 s{sT0}, s{sT0}, s{sT1}
    s_add_u32 s{sT0}, s{sT0}, {WS_O}
    v_lshl_add_u32 v{vOa}, v{vLane}, 4, s{sT0}
    v_lshlrev_b32 v{t0}, 4, v{vI}
    v_lshl_add_u32 v{t0}, v{vG}, 3, v{t0}
    s_add_u32 s{sT0}, s{sT0}, 1024
    v_add_u32 v{vOb}, s{sT0}, v{t0}
    v_cmp_gt_u32 vcc, 16, v{vLane}
    s_mov_b32 s{sT2}, {O_TILE}
    s_mov_b32 s{sT3}, {2*O_TILE}
    s_waitcnt lgkmcnt(0)
    """)
    streams = []
    for nt in range(3):
        OD = ODs[nt]; w = ws_[nt]
        L = []
        for h in range(2):
            b = PQ + 12*nt + 6*h
            a0_ = AF + 8*h; a1_ = AF + 8*(h + 2)
            o0 = OD + 8*h; o1 = o0 + 4
            L += [f"v_mfma_f32_16x16x32_bf16 v[{o0}:{o0+3}], v[{a0_}:{a0_+3}], v[{b}:{b+3}], 0",
                  f"v_mfma_f32_16x16x32_bf16 v[{o1}:{o1+3}], v[{a1_}:{a1_+3}], v[{b}:{b+3}], 0",
                  f"v_mfma_f32_16x16x32_bf16 v[{o0}:{o0+3}], v[{a0_+4}:{a0_+7}], v[{b+4}:{b+7}], v[{o0}:{o0+3}]",
                  f"v_mfma_f32_16x16x32_bf16 v[{o1}:{o1+3}], v[{a1_+4}:{a1_+7}], v[{b+4}:{b+7}], v[{o1}:{o1+3}]"]
        y = [w + 6, w + 7]
        L += [f"v_mov_b32 v{y[0]}, v{OD+4}", f"v_mov_b32 v{y[1]}, v{OD+12}",
              f"v_permlane16_swap_b32 v{OD+4}, v{y[0]}", f"v_permlane16_swap_b32 v{y[1]}, v{OD+12}",
              f"v_add_f32 v{y[0]}, s{sEPS}, v{y[0]}", f"v_add_f32 v{y[1]}, s{sEPS}, v{y[1]}",
              f"v_rcp_f32 v{y[0]}, v{y[0]}", f"v_rcp_f32 v{y[1]}, v{y[1]}"]
        for h in range(2):
            for r in range(0, 8, 2):
                a = OD + 8*h + r
                L.append(f"v_pk_mul_f32 v[{a}:{a+1}], v[{a}:{a+1}], v[{w+6}:{w+7}] op_sel:[0,{h}] op_sel_hi:[1,{h}]")
        L += [f"v_cvt_pk_bf16_f32 v{w}, v{OD}, v{OD+1}", f"v_cvt_pk_bf16_f32 v{w+1}, v{OD+2}, v{OD+3}",
              f"v_cvt_pk_bf16_f32 v{w+2}, v{OD+8}, v{OD+9}", f"v_cvt_pk_bf16_f32 v{w+3}, v{OD+10}, v{OD+11}",
              f"v_cvt_pk_bf16_f32 v{OD+4}, v{OD+4}, v{OD+5}", f"v_cvt_pk_bf16_f32 v{OD+5}, v{OD+6}, v{OD+7}",
              f"v_cvt_pk_bf16_f32 v{OD+12}, v{OD+12}, v{OD+13}", f"v_cvt_pk_bf16_f32 v{OD+13}, v{OD+14}, v{OD+15}",
              f"v_cndmask_b32 v{w+4}, v{OD+12}, v{OD+4}, vcc", f"v_cndmask_b32 v{w+5}, v{OD+13}, v{OD+5}, vcc"]
        streams.append(L)
    for x in merge(streams): p(x)
    so = ["0", f"s{sT2}", f"s{sT3}"]
    for nt in range(3):
        p(f"buffer_store_dwordx4 v[{ws_[nt]}:{ws_[nt]+3}], v{vOa}, s[{SRD_WS}:{SRD_WS+3}], {so[nt]} offen sc1")
    p("s_mov_b32 exec_hi, 0")
    for nt in range(3):
        p(f"buffer_store_dwordx2 v[{ws_[nt]+4}:{ws_[nt]+5}], v{vOb}, s[{SRD_WS}:{SRD_WS+3}], {so[nt]} offen sc1")
    p("s_mov_b32 exec_hi, -1")
    stamp(p, 7)
    for r, n in [(PQ, 38), (AF, 32), (vOa, 1), (vOb, 1)] + [(x, 16) for x in ODs] + [(x, 8) for x in ws_]:
        V.release(r, n)
    p.label("L_b_final")
    sRQ, sKH = 95, 96
    OF = V.alloc(80, align=4)
    vR = V.alloc(); vPl = V.alloc(); mx = V.alloc(); pv = V.alloc()
    p(f"""
    s_cmp_ge_u32 s2, 160
    s_cbranch_scc1 L_b_done
    s_lshr_b32 s{sT0}, s2, 3
    s_cmp_ge_u32 s{sT0}, 10
    s_cselect_b32 s{sT1}, 1, 0
    s_and_b32 s{sT2}, s2, 7
    s_lshl_b32 s{sT2}, s{sT2}, 1
    s_add_u32 s{sRT}, s{sT2}, s{sT1}
    s_mul_i32 s{sT1}, s{sT1}, 10
    s_sub_u32 s{sCG}, s{sT0}, s{sT1}
    s_and_b32 s{sRQ}, s{sW}, 3
    s_lshr_b32 s{sKH}, s{sW}, 2
    s_lshl_b32 s{sT0}, s{sRT}, 3
    s_lshl_b32 s{sT1}, s{sRQ}, 1
    s_add_u32 s{sT0}, s{sT0}, s{sT1}
    s_mul_i32 s{sT0}, s{sT0}, {O_TILE}
    s_mul_i32 s{sT1}, s{sKH}, 10240
    s_add_u32 s{sT0}, s{sT0}, s{sT1}
    s_add_u32 s{sT0}, s{sT0}, {WS_O}
    v_lshl_add_u32 v{vR}, v{vLane}, 4, s{sT0}
    v_lshrrev_b32 v{t0}, 5, v{vLane}
    v_mul_u32_u24 v{t0}, {O_TILE}, v{t0}
    v_bfe_u32 v{t1}, v{vLane}, 2, 3
    v_mul_u32_u24 v{t1}, 1280, v{t1}
    v_and_b32 v{t2}, 3, v{vLane}
    v_lshlrev_b32 v{t2}, 6, v{t2}
    v_add3_u32 v{vPl}, v{t0}, v{t1}, v{t2}
    s_add_u32 s{sT0}, s{sT0}, {1024 + 60}
    v_add_u32 v{vPl}, s{sT0}, v{vPl}
    s_mov_b32 s{sCNT}, 0
    """)
    vA = V.alloc(4, align=1)
    p(f"""
    v_lshrrev_b32 v{t2}, 2, v{vI}
    v_bfe_u32 v{t3}, v{t2}, 1, 1
    v_and_b32 v{t0}, 1, v{vG}
    v_lshl_add_u32 v{t3}, v{t0}, 1, v{t3}        ; psi
    v_bfe_u32 v{t0}, v{vI}, 1, 1
    v_lshlrev_b32 v{t0}, 4, v{t0}
    v_and_b32 v{t1}, 1, v{vI}
    v_lshl_add_u32 v{t0}, v{t1}, 3, v{t0}
    v_lshl_add_u32 v{t2}, v{vG}, 3, v{t2}
    v_lshl_add_u32 v{t0}, v{t2}, 7, v{t0}
    s_mul_i32 s{sT1}, s{sKH}, {320*128}
    v_add_u32 v{t0}, s{sT1}, v{t0}
    """)
    for mt in range(4):
        p(f"v_xor_b32 v{t1}, {mt}, v{t3}\n v_lshl_add_u32 v{vA+mt}, v{t1}, 5, v{t0}")
    FAc = V.alloc(32, align=4); WA = [V.alloc(16, align=4), V.alloc(16, align=4)]
    def wreads(ks):
        b = WA[ks & 1]
        return [f"ds_read_b64_tr_b16 v[{b+4*mt+2*h}:{b+4*mt+2*h+1}], v{vA+mt} offset:{WO_IMG + 4096*ks + 512*h}" for mt in range(4) for h in range(2)]
    p.label("L_b_att2")
    p(f"buffer_load_dword v{pv}, v{vPl}, s[{SRD_WS}:{SRD_WS+3}], 0 offen sc1")
    for ks in range(10):
        for nt in range(2):
            p(f"s_mov_b32 s{sT1}, {O_TILE*nt + 4096*(ks >> 2)}")
            p(f"buffer_load_dwordx4 v[{OF+8*ks+4*nt}:{OF+8*ks+4*nt+3}], v{vR}, s[{SRD_WS}:{SRD_WS+3}], s{sT1} offen offset:{1024*(ks & 3)} sc1")
    for x in wreads(0): p(x)
    p(f"""
    s_waitcnt vmcnt(20)
    v_cmp_eq_u32 vcc, -1, v{pv}
    s_cbranch_vccz L_b_got2
    s_waitcnt vmcnt(0)
    """)
    p.label("L_b_spin2")
    p(f"""
    s_add_u32 s{sCNT}, s{sCNT}, 1
    s_cmp_gt_u32 s{sCNT}, {SPIN_MAX}
    s_cbranch_scc1 L_b_got2
    buffer_load_dword v{pv}, v{vPl}, s[{SRD_WS}:{SRD_WS+3}], 0 offen sc1
    s_waitcnt vmcnt(0)
    v_cmp_eq_u32 vcc, -1, v{pv}
    s_cbranch_vccnz L_b_spin2
    s_waitcnt lgkmcnt(0)
    s_branch L_b_att2
    """)
    p.label("L_b_got2")
    dbgmax(p, 12, t2, t3, sW)
    stamp(p, 9)
    p(f"v_mov_b32 v{mx}, 0")
    for ks in range(10):
        nxt = wreads(ks + 1) if ks < 9 else []
        p(f"s_waitcnt vmcnt({2*(9-ks)}) lgkmcnt(0)")
        k = 0
        for mt in range(4):
            for nt in range(2):
                a = FAc + 16*nt + 4*mt
                c = "0" if ks == 0 else f"v[{a}:{a+3}]"
                p(f"v_mfma_f32_16x16x32_bf16 v[{a}:{a+3}], v[{WA[ks&1]+4*mt}:{WA[ks&1]+4*mt+3}], v[{OF+8*ks+4*nt}:{OF+8*ks+4*nt+3}], {c}")
                if k < 4 and nxt:
                    p(nxt[2*k]); p(nxt[2*k+1])
                if k >= 4:
                    o = OF + 8*ks + 2*(k - 4)
                    p(f"v_max3_u32 v{mx}, v{mx}, v{o}, v{o+1}")
                k += 1
    p(f"""
    v_cmp_eq_u32 vcc, -1, v{mx}
    s_cbranch_vccz L_b_ok2
    s_add_u32 s{sCNT}, s{sCNT}, 1
    s_cmp_gt_u32 s{sCNT}, {SPIN_MAX}
    s_cbranch_scc0 L_b_att2
    """)
    p.label("L_b_ok2")
    stamp(p, 10)
    p(f"""
    s_lshl_b32 s{sT0}, s{sW}, 12
    s_add_u32 s{sT0}, s{sT0}, {RED}
    v_lshl_add_u32 v{t0}, v{vLane}, 4, s{sT0}
    s_xor_b32 s{sT1}, s{sW}, 4
    s_lshl_b32 s{sT1}, s{sT1}, 12
    s_add_u32 s{sT1}, s{sT1}, {RED}
    v_lshl_add_u32 v{t1}, v{vLane}, 4, s{sT1}
    s_lshl_b32 s{sT0}, s{sRT}, 7
    s_lshl_b32 s{sT1}, s{sRQ}, 5
    s_add_u32 s{sT0}, s{sT0}, s{sT1}
    s_lshl_b32 s{sT1}, s{sKH}, 4
    s_add_u32 s{sT0}, s{sT0}, s{sT1}
    v_add_u32 v{t2}, s{sT0}, v{vI}
    v_mul_u32_u24 v{t2}, 2560, v{t2}
    v_and_b32 v{t3}, 1, v{vG}
    v_lshl_add_u32 v{t2}, v{t3}, 5, v{t2}
    v_lshrrev_b32 v{t3}, 1, v{vG}
    v_lshl_add_u32 v{t2}, v{t3}, 4, v{t2}
    s_lshl_b32 s{sT0}, s{sCG}, 7
    s_add_u32 s{sT0}, s{sT0}, 1280
    v_add_u32 v{t2}, s{sT0}, v{t2}
    s_cmp_eq_u32 s{sKH}, 0
    s_cbranch_scc1 L_b_red0
    """)
    def finish(keep):
        p("s_waitcnt lgkmcnt(0)\n s_barrier")
        for k in range(4):
            p(f"ds_read_b128 v[{OF+4*k}:{OF+4*k+3}], v{t1} offset:{1024*k}")
        for a2 in range(2):
            for mt in (2*a2, 2*a2 + 1):
                a = keep + 4*mt; b = OF + 4*mt
                p(f"s_waitcnt lgkmcnt({3-mt})")
                p(f"v_pk_add_f32 v[{a}:{a+1}], v[{a}:{a+1}], v[{b}:{b+1}]")
                p(f"v_pk_add_f32 v[{a+2}:{a+3}], v[{a+2}:{a+3}], v[{b+2}:{b+3}]")
            A = keep + 8*a2; B = A + 4; d = OF + 16 + 4*a2
            p(f"""
            v_cvt_pk_bf16_f32 v{d}, v{A}, v{A+1}
            v_cvt_pk_bf16_f32 v{d+1}, v{A+2}, v{A+3}
            v_cvt_pk_bf16_f32 v{d+2}, v{B}, v{B+1}
            v_cvt_pk_bf16_f32 v{d+3}, v{B+2}, v{B+3}
            v_permlane16_swap_b32 v{d}, v{d+2}
            v_permlane16_swap_b32 v{d+1}, v{d+3}
            buffer_store_dwordx4 v[{d}:{d+3}], v{t2}, s[{SRD_O}:{SRD_O+3}], 0 offen offset:{64*a2}
            """)
    for k in range(4):
        p(f"ds_write_b128 v{t0}, v[{FAc+4*k}:{FAc+4*k+3}] offset:{1024*k}")
    finish(FAc + 16)
    p("s_branch L_b_done")
    p.label("L_b_red0")
    for k in range(4):
        p(f"ds_write_b128 v{t0}, v[{FAc+16+4*k}:{FAc+16+4*k+3}] offset:{1024*k}")
    finish(FAc)
    p.label("L_b_done")
    dbgmax(p, 9, t2, t3, sW)
    stamp(p, 11)
    if common.DIAG:
        p('s_waitcnt vmcnt(0)')
        stamp(p, 12)
        stamps_flush(p, t0, t1)
    return V
```

```python
from emit import *

NAME = "concat_heads__ssm_conv_s4d__linear_kernel_hedgehog__prompt"
KNAME = NAME + "_kernel"

S_U, S_LAR, S_AIM, S_CRE, S_CIM, S_LDT, S_DSK, S_X = 4, 6, 8, 10, 12, 14, 16, 18
S_WQKV, S_WPHI, S_WO, S_OUT = 20, 22, 24, 26
S_DBG, S_WS = 28, 30

N_B = 176
N_WG = 256
LDS_BYTES = 163840
BLOCK = 768
VGPRS = 168

LOG2E = 0x3FB8AA3B
LOG2E_LO = 0x32A57060
LN2 = 0x3F317218

def header_text():
    return f"""; Kernarg layout (112 bytes, pointers only): u, log_A_real, A_imag, C_real, C_imag, log_dt, D_skip,
; @launch grid=({N_WG},1,1) block=({BLOCK},1,1) lds={LDS_BYTES}
.amdgcn_target "amdgcn-amd-amdhsa--gfx950"
.text
.globl {KNAME}
.p2align 8
.type {KNAME},@function
{KNAME}:
"""

def footer_text(vgpr=VGPRS, sgpr=102):
    acc = min(256, (vgpr + 3) // 4 * 4)
    return f"""
.section .rodata,"a"
.p2align 6
.amdhsa_kernel {KNAME}
  .amdhsa_next_free_vgpr {vgpr}
  .amdhsa_next_free_sgpr {sgpr}
  .amdhsa_accum_offset {acc}
  .amdhsa_group_segment_fixed_size 0
  .amdhsa_kernarg_size 112
  .amdhsa_user_sgpr_count 2
  .amdhsa_user_sgpr_kernarg_segment_ptr 1
  .amdhsa_system_sgpr_workgroup_id_x 1
.end_amdhsa_kernel
"""

def srd(p, dst, ptr, size):
    p(f"""
    s_mov_b32 s{dst}, s{ptr}
    s_and_b32 s{dst+1}, s{ptr+1}, 0xffff
    s_mov_b32 s{dst+2}, {size}
    s_mov_b32 s{dst+3}, 0x00020000
    """)

DIAG = False
DUMP = False
import os
OPT = set(os.environ.get('KOPT', '').split(',')) | {'noupf', 'up1', 'nopf'}
if 'up0' in OPT: OPT.discard('up1')
S_STAMP = 64
DIAG_OFF = 16 << 20
class Stamps:
    n = 0
def stamp(p, idx=None):
    import common
    if not common.DIAG: return
    if idx is not None: Stamps.n = idx
    i = Stamps.n; Stamps.n += 1
    assert i < 16
    p(f"s_memrealtime s[98:99]\n s_waitcnt lgkmcnt(0)\n s_mov_b32 s{S_STAMP+i}, s98")
def cstamp(p, idx):
    import common
    if not common.DIAG: return
    p(f"s_memtime s[98:99]\n s_waitcnt lgkmcnt(0)\n s_mov_b32 s{S_STAMP+idx}, s98")
_dm = [0]
def dbgmax(p, word, vt0, vt1, sW):
    import common
    if 'hdiag' not in common.OPT: return
    _dm[0] += 1
    p(f"s_cmp_lg_u32 s{sW}, 0\n s_cbranch_scc1 L_dm{_dm[0]}")
    p(f"s_memrealtime s[98:99]\n s_waitcnt lgkmcnt(0)")
    p(f"""
    v_mov_b32 v{vt0}, {4*word}
    v_mov_b32 v{vt1}, s98
    s_mov_b64 s[98:99], exec
    s_mov_b32 exec_lo, 1
    s_mov_b32 exec_hi, 0
    global_atomic_umax v{vt0}, v{vt1}, s[{S_DBG}:{S_DBG+1}] sc1
    s_mov_b64 exec, s[98:99]
    """)
    p.label(f"L_dm{_dm[0]}")
def stamps_reset(n=0):
    Stamps.n = n
def stamps_flush(p, vt0, vt1, loader=False):
    import common
    if not common.DIAG: return
    p(f"""
    v_lshrrev_b32 v{vt0}, 6, v0
    s_lshl_b32 s98, s2, 3
    v_add_u32 v{vt0}, s98, v{vt0}
    v_lshlrev_b32 v{vt0}, 6, v{vt0}
    v_add_u32 v{vt0}, {DIAG_OFF + ((1 << 20) - 8*64 if loader else 0)}, v{vt0}
    """)
    for i in range(16):
        p(f"v_mov_b32 v{vt1}, s{S_STAMP+i}")
        p(f"global_store_dword v{vt0}, v{vt1}, s[{S_WS}:{S_WS+1}] offset:{4*i}")
```

```python
from common import *
import common

REG = 20416
K1OFF = 4224
UOFF = 8384
U1D = 4576
TB = 8448 + 128

def cmul(p, z, x, y):
    p(f"v_pk_mul_f32 v[{z}:{z+1}], v[{x}:{x+1}], v[{y}:{y+1}] op_sel:[0,0] op_sel_hi:[1,0]")
    p(f"v_pk_fma_f32 v[{z}:{z+1}], v[{x}:{x+1}], v[{y}:{y+1}], v[{z}:{z+1}] op_sel:[1,1,0] op_sel_hi:[0,1,1] neg_lo:[1,0,0]")

def exp_bf16(p, V, dst, x, sL, sLlo, sLn2):
    t = V.alloc(); e = V.alloc()
    p(f"v_mul_f32 v{t}, s{sL}, v{x}")
    p(f"v_fma_f32 v{e}, v{x}, s{sL}, -v{t}")
    p(f"v_fma_f32 v{e}, v{x}, s{sLlo}, v{e}")
    p(f"v_exp_f32 v{t}, v{t}")
    p(f"v_mul_f32 v{e}, s{sLn2}, v{e}")
    p(f"v_fma_f32 v{t}, v{t}, v{e}, v{t}")
    p(f"v_cvt_pk_bf16_f32 v{t}, v{t}, v{t}")
    p(f"v_lshlrev_b32 v{dst}, 16, v{t}")
    V.release(t); V.release(e)

def gen_part_a(p, final_hook=None):
    V = VAlloc(VGPRS - 2, start=1)
    sA, sJ, sCG, sW, sC = 32, 33, 34, 35, 36
    sREG = 37
    sL, sLlo, sLn2 = 38, 39, 40
    sSEL = 41
    SRD_U = 44; SRD_O = 48
    sT0, sT1 = 52, 53
    p(f"""
    s_sub_u32 s{sA}, s2, {N_B}
    s_and_b32 s{sJ}, s{sA}, 7
    s_lshr_b32 s{sT0}, s{sA}, 3
    s_mul_i32 s{sCG}, s{sJ}, 10
    s_add_u32 s{sCG}, s{sCG}, s{sT0}
    """)
    vLane = V.alloc(name="lane")
    vT = V.alloc()
    p(f"""
    v_lshrrev_b32 v{vT}, 6, v0
    v_and_b32 v{vLane}, 63, v0
    v_readfirstlane_b32 s{sW}, v{vT}
    s_cmp_ge_u32 s{sW}, 8
    s_cbranch_scc1 L_end
    s_mov_b32 s{sL}, {LOG2E:#x}
    s_mov_b32 s{sLlo}, {LOG2E_LO:#x}
    s_mov_b32 s{sLn2}, {LN2:#x}
    s_mov_b32 s{sSEL}, 0x07060100
    s_lshl_b32 s{sC}, s{sCG}, 3
    s_add_u32 s{sC}, s{sC}, s{sW}
    s_mul_i32 s{sREG}, s{sW}, {REG}
    """)
    p("s_waitcnt lgkmcnt(0)")
    srd(p, SRD_U, S_U, 2048 * 1280)
    srd(p, SRD_O, S_OUT, 2048 * 2560)
    if 'noupf' not in common.OPT:
        vPf = V.alloc()
        p(f"""
        s_lshr_b32 s{sT0}, s{sA}, 3
        s_mul_i32 s{sT0}, s{sT0}, 205
        v_lshrrev_b32 v{vPf}, 1, v0
        v_add_u32 v{vPf}, s{sT0}, v{vPf}
        v_mul_u32_u24 v{vPf}, 1280, v{vPf}
        s_mul_i32 s{sT0}, s{sJ}, 160
        s_and_b32 s{sT0}, s{sT0}, 0xffffff80
        v_and_b32 v{vT}, 1, v0
        v_lshlrev_b32 v{vT}, 7, v{vT}
        v_add3_u32 v{vPf}, v{vPf}, v{vT}, s{sT0}
        v_cmp_gt_u32 vcc, 410, v0
        s_and_saveexec_b64 s[60:61], vcc
        s_cbranch_execz L_a_nopf
        buffer_load_dword v{VGPRS-2}, v{vPf}, s[{SRD_U}:{SRD_U+3}], 0 offen
        """)
        p.label("L_a_nopf")
        p("s_mov_b64 exec, s[60:61]")
        V.release(vPf)
    vLA = V.alloc(); vAI = V.alloc(); vCR = V.alloc(); vCI = V.alloc(); vDT = V.alloc(); vD = V.alloc(name="D")
    vA = V.alloc()
    p(f"""
    s_lshl_b32 s{sT0}, s{sC}, 8
    v_lshl_add_u32 v{vA}, v{vLane}, 2, s{sT0}
    s_lshl_b32 s{sT1}, s{sC}, 1
    v_mov_b32 v{vT}, s{sT1}
    global_load_ushort v{vDT}, v{vT}, s[{S_LDT}:{S_LDT+1}]
    global_load_dword v{vLA}, v{vA}, s[{S_LAR}:{S_LAR+1}]
    global_load_dword v{vAI}, v{vA}, s[{S_AIM}:{S_AIM+1}]
    global_load_dword v{vCR}, v{vA}, s[{S_CRE}:{S_CRE+1}]
    global_load_dword v{vCI}, v{vA}, s[{S_CIM}:{S_CIM+1}]
    global_load_ushort v{vD}, v{vT}, s[{S_DSK}:{S_DSK+1}]
    """)
    V.release(vA)
    vU = V.alloc(20, align=4, name="U")
    vUa = V.alloc(); vUb = V.alloc()
    p(f"""
    v_mul_u32_u24 v{vUa}, 5120, v0
    s_lshl_b32 s{sT0}, s{sCG}, 4
    v_add_u32 v{vUa}, s{sT0}, v{vUa}
    v_subrev_u32 v{vUb}, 1280, v{vUa}
    """)
    uloads = [f"buffer_load_dwordx4 v[{vU}:{vU+3}], v{vUb}, s[{SRD_U}:{SRD_U+3}], 0 offen"] + \
             [f"buffer_load_dwordx4 v[{vU+4+4*k}:{vU+7+4*k}], v{vUa}, s[{SRD_U}:{SRD_U+3}], 0 offen offset:{1280*k}" for k in range(4)]
    stamp(p)
    vWA = V.alloc(16, align=1)
    vL4 = V.alloc()
    p(f"v_lshlrev_b32 v{vL4}, 2, v{vLane}")
    for i in range(16):
        p(f"v_xor_b32 v{vWA+i}, {i << 4}, v{vL4}")
        p(f"v_add_u32 v{vWA+i}, s{sREG}, v{vWA+i}")
    vRA = V.alloc(4, align=1)
    vI = V.alloc(); vG = V.alloc(name="g"); vN = vI
    p(f"""
    v_and_b32 v{vI}, 15, v{vLane}
    v_lshrrev_b32 v{vG}, 4, v{vLane}
    """)
    for ks in range(4):
        p(f"""
        v_add_u32 v{vT}, {4*ks}, v{vG}
        v_xor_b32 v{vT}, v{vT}, v{vI}
        v_lshlrev_b32 v{vT}, 4, v{vT}
        v_lshl_add_u32 v{vT}, v{vI}, 8, v{vT}
        v_add_u32 v{vRA+ks}, s{sREG}, v{vT}
        """)
    V.release(vL4)
    p("s_waitcnt vmcnt(0)")
    p(f"v_lshlrev_b32 v{vDT}, 16, v{vDT}")
    exp_bf16(p, V, vDT, vDT, sL, sLlo, sLn2)
    p(f"v_lshlrev_b32 v{vD}, 16, v{vD}")
    stamp(p)
    vAcc = V.alloc(12, align=4, name="acc")
    vAl = V.alloc(); vBe = V.alloc()
    w1 = V.alloc(2); w2 = V.alloc(2); w4 = V.alloc(2); w8 = V.alloc(2); w128 = V.alloc(2)
    G = [V.alloc(2), V.alloc(2)]
    X = [V.alloc(2), V.alloc(2)]
    Y = [V.alloc(2), V.alloc(2)]
    tmp = [V.alloc() for _ in range(4)]
    fr = V.alloc(16, align=4)
    tc = [0]
    def store(val, row, tile, negim=False):
        t = tmp[tc[0] % 4]; tc[0] += 1
        p(f"v_cvt_pk_bf16_f32 v{t}, v{val}, {'-' if negim else ''}v{val+1}")
        p(f"ds_write_b32 v{vWA+row}, v{t} offset:{tile*4096 + row*256}")
    def cexp(dst, pw):
        a, b = tmp[0], tmp[1]
        p(f"""
        v_mul_f32 v{a}, {float(pw)}, v{vAl}
        v_mul_f32 v{b}, {float(pw)}, v{vBe}
        """ if pw in (1, 2, 4) else f"""
        v_mul_f32 v{a}, {hex(f32bits(pw))}, v{vAl}
        v_mul_f32 v{b}, {hex(f32bits(pw))}, v{vBe}
        """)
        p(f"""
        v_fract_f32 v{b}, v{b}
        v_exp_f32 v{a}, v{a}
        v_cos_f32 v{dst}, v{b}
        v_sin_f32 v{dst+1}, v{b}
        v_mul_f32 v{dst}, v{dst}, v{a}
        v_mul_f32 v{dst+1}, v{dst+1}, v{a}
        """)
    sPS = 58
    for k in range(12): p(f"v_mov_b32 v{vAcc+k}, 0")
    p(f"s_mov_b32 s{sPS}, 0")
    p.label("L_a_pass")
    ul = [0]
    def uload():
        k = ul[0]; ul[0] += 1
        p(f"s_cmp_lg_u32 s{sPS}, 0\n s_cbranch_scc1 L_a_nou{k}")
        p(uloads[k])
        p.label(f"L_a_nou{k}")
    t0, t1, t2, t3 = tmp
    p(f"""
    v_lshrrev_b32 v{t0}, s{sPS}, v{vLA}
    v_lshrrev_b32 v{t1}, s{sPS}, v{vAI}
    v_lshrrev_b32 v{t2}, s{sPS}, v{vCR}
    v_lshrrev_b32 v{t3}, s{sPS}, v{vCI}
    v_lshlrev_b32 v{t0}, 16, v{t0}
    v_lshlrev_b32 v{t1}, 16, v{t1}
    v_lshlrev_b32 v{t2}, 16, v{t2}
    v_lshlrev_b32 v{t3}, 16, v{t3}
    """)
    exp_bf16(p, V, t0, t0, sL, sLlo, sLn2)
    p(f"""
    v_mul_f32 v{t0}, v{t0}, v{vDT}
    v_mul_f32 v{t1}, v{t1}, v{vDT}
    v_mul_f32 v{vAl}, s{sL}, v{t0}
    v_mul_f32 v{vBe}, 0.15915494, v{t1}
    v_sub_f32 v{vAl}, 0, v{vAl}
    v_mul_f32 v{t2}, v{t2}, v{vDT}
    v_mul_f32 v{t3}, v{t3}, v{vDT}
    v_add_f32 v{G[0]}, v{t2}, v{t2}
    v_add_f32 v{G[0]+1}, v{t3}, v{t3}
    """)
    uload()
    cexp(w1, 1); cexp(w8, 8); cexp(w128, 128)
    cmul(p, w2, w1, w1); cmul(p, w4, w2, w2)
    p(f"v_mov_b32 v{tmp[0]}, 0x00003f80")
    p(f"ds_write_b32 v{vWA}, v{tmp[0]}")
    tc[0] = 1
    store(w8, 1, 0, True)
    cur = w8
    for j in range(2, 16):
        nx = X[j % 2]
        cmul(p, nx, cur, w8)
        store(nx, j, 0, True)
        cur = nx
    uload()
    g = G[0]
    for t in range(17):
        if t > 0:
            ng = G[t % 2]
            cmul(p, ng, g, w128)
            g = ng
        if t < 2:
            store(g, 8*t, 1)
            cur = g
            for k in range(1, 8):
                nx = Y[k % 2]; cmul(p, nx, cur, w1); store(nx, 8*t + k, 1); cur = nx
            uload()
        elif t < 4:
            store(g, 4*(t-2), 2)
            cur = g
            for k in range(1, 4):
                nx = Y[k % 2]; cmul(p, nx, cur, w2); store(nx, 4*(t-2) + k, 2); cur = nx
        elif t < 8:
            store(g, 8 + 2*(t-4), 2)
            cmul(p, Y[0], g, w4); store(Y[0], 8 + 2*(t-4) + 1, 2)
        else:
            store(g, t - 8, 3)
        if t == 7: uload()
    fr2 = V.alloc(48, align=4)
    bufs = [fr, fr2, fr2 + 16, fr2 + 32]
    for ks in range(4):
        for t in range(4):
            p(f"ds_read_b128 v[{bufs[ks]+4*t}:{bufs[ks]+4*t+3}], v{vRA+ks} offset:{4096*t}")
    for ks in range(4):
        p(f"s_waitcnt lgkmcnt({4*(3-ks)})")
        for t in range(3):
            b = bufs[ks]
            p(f"v_mfma_f32_16x16x32_bf16 v[{vAcc+4*t}:{vAcc+4*t+3}], v[{b+4*(t+1)}:{b+4*(t+1)+3}], v[{b}:{b+3}], v[{vAcc+4*t}:{vAcc+4*t+3}]")
    p(f"s_add_u32 s{sPS}, s{sPS}, 16\n s_cmp_le_u32 s{sPS}, 16\n s_cbranch_scc1 L_a_pass")
    V.release(fr2, 48); V.release(vUa); V.release(vUb)
    for r in (vAl, vBe, vLA, vAI, vCR, vCI, vDT): V.release(r)
    for r in (w1, w2, w4, w8, w128, G[0], G[1], X[0], X[1], Y[0], Y[1]): V.release(r, 2)
    V.release(vWA, 16); V.release(vRA, 4)
    stamp(p)
    d = fr
    a0 = V.alloc(); a1 = V.alloc(); a2 = V.alloc(); a3 = V.alloc()
    t0, t1, t2, t3 = tmp
    p(f"""
    v_and_b32 v{t0}, 1, v{vG}
    v_lshrrev_b32 v{t1}, 1, v{vG}
    v_lshlrev_b32 v{a0}, 5, v{vI}
    v_lshl_add_u32 v{a0}, v{t0}, 4, v{a0}
    v_lshl_add_u32 v{a0}, v{t1}, 9, v{a0}
    v_add_u32 v{a0}, s{sREG}, v{a0}
    v_lshlrev_b32 v{a1}, 4, v{vI}
    v_lshl_add_u32 v{a1}, v{vG}, 8, v{a1}
    v_add_u32 v{a1}, 1024, v{a1}
    v_add_u32 v{a2}, 8, v{a1}
    v_lshlrev_b32 v{t2}, 3, v{vI}
    v_lshl_add_u32 v{t2}, v{t0}, 8, v{t2}
    v_add_u32 v{t2}, 1536, v{t2}
    v_add_u32 v{t3}, 128, v{t2}
    v_cmp_gt_u32 vcc, 2, v{vG}
    v_cndmask_b32 v{a1}, v{t2}, v{a1}, vcc
    v_cndmask_b32 v{a2}, v{t3}, v{a2}, vcc
    v_add_u32 v{a1}, s{sREG}, v{a1}
    v_add_u32 v{a2}, s{sREG}, v{a2}
    ; tile2: 4*(512 + j + 64 g) + 64 r
    v_lshlrev_b32 v{a3}, 2, v{vI}
    v_lshl_add_u32 v{a3}, v{vG}, 8, v{a3}
    v_add_u32 v{a3}, s{sREG}, v{a3}
    v_mov_b32 v{t0}, 0
    v_lshl_add_u32 v{t1}, v{vLane}, 2, s{sREG}
    """)
    p(f"""
    s_mov_b32 exec_lo, -1
    s_mov_b32 exec_hi, 0
    ds_write_b32 v{t1}, v{t0} offset:{TB-128}
    s_mov_b64 exec, -1
    """)
    for k in range(12):
        p(f"v_cvt_pk_bf16_f32 v{d+k}, v{vAcc+k}, v{vAcc+k}")
    p(f"ds_write_b128 v{a0}, v[{d}:{d+3}] offset:{TB}")
    p(f"ds_write_b64 v{a1}, v[{d+4}:{d+5}] offset:{TB}")
    p(f"ds_write_b64 v{a2}, v[{d+6}:{d+7}] offset:{TB}")
    for r in range(4):
        p(f"ds_write_b32 v{a3}, v{d+8+r} offset:{TB + 4*512 + 64*r}")
    V.release(vAcc, 12)
    for r in (a0, a1, a2, a3): V.release(r)
    e3 = V.alloc(4, align=2); e2 = V.alloc(4, align=2); e1 = V.alloc(6, align=4); e0 = V.alloc(10, align=4)
    ra = V.alloc(); cc = V.alloc(); sel = V.alloc()
    K0 = [V.alloc() for _ in range(5)]
    W = V.alloc(8, align=4)
    p(f"""
    v_lshl_add_u32 v{ra}, v{vLane}, 2, s{sREG}
    ds_read2_b32 v[{e3}:{e3+1}], v{ra} offset0:0 offset1:1
    """)
    p.items.pop()
    p(f"""
    v_add_u32 v{t0}, {TB + 4*(383+129)}, v{ra}
    ds_read2_b32 v[{e3}:{e3+1}], v{t0} offset0:0 offset1:1
    ds_read2_b32 v[{e3+2}:{e3+3}], v{t0} offset0:64 offset1:65
    v_lshl_add_u32 v{t0}, v{vLane}, 3, s{sREG}
    v_add_u32 v{t0}, {TB + 4*(254+130)}, v{t0}
    ds_read2_b32 v[{e2}:{e2+1}], v{t0} offset0:0 offset1:1
    ds_read_b32 v{e2+2}, v{t0} offset:8
    v_lshl_add_u32 v{t0}, v{vLane}, 4, s{sREG}
    v_add_u32 v{t0}, {TB + 4*(124+132)}, v{t0}
    ds_read_b128 v[{e1}:{e1+3}], v{t0}
    ds_read_b32 v{e1+4}, v{t0} offset:16
    v_lshl_add_u32 v{t0}, v{vLane}, 5, s{sREG}
    v_add_u32 v{t0}, {TB - 32 - 96}, v{t0}
    ds_read_b128 v[{e0}:{e0+3}], v{t0}
    ds_read_b128 v[{e0+4}:{e0+7}], v{t0} offset:16
    ds_read_b32 v{e0+8}, v{t0} offset:32
    v_lshlrev_b32 v{t1}, 3, v{vLane}
    v_subrev_u32 v{t1}, 23, v{t1}
    v_min_i32 v{t1}, 256, v{t1}
    v_lshlrev_b32 v{t1}, 2, v{t1}
    v_add_u32 v{t1}, {TB}, v{t1}
    v_add_u32 v{t1}, s{sREG}, v{t1}
    ds_read_b32 v{e0+9}, v{t1}
    v_lshlrev_b32 v{t0}, 4, v{vLane}
    v_sub_u32 v{t0}, s{sREG}, v{t0}
    v_add_u32 v{K0[0]}, {4096 - 16*129}, v{t0}
    v_add_u32 v{K0[1]}, {4096 - 16*193}, v{t0}
    v_add_u32 v{K0[2]}, {4096 - 16*65}, v{t0}
    v_add_u32 v{K0[3]}, {4096 - 16*33}, v{t0}
    v_add_u32 v{K0[4]}, {4096 + 16*3}, v{t0}
    v_and_b32 v{t0}, 1, v{vLane}
    v_mov_b32 v{t1}, 0x03020100
    v_mov_b32 v{t2}, 0x07060100
    v_cmp_eq_u32 vcc, 1, v{t0}
    v_cndmask_b32 v{sel}, v{t2}, v{t1}, vcc
    s_waitcnt lgkmcnt(0)
    """)
    def mixs(dst, lo, hi):
        return f"v_perm_b32 v{dst}, v{hi}, v{lo}, s{sSEL}"
    def kput(addr, A, B, C, D, E):
        for k, x in enumerate((A, B, C, D)): p(x(W + k))
        for k, x in enumerate((B, C, D, E)): p(x(W + 4 + k))
        p(f"ds_write_b128 v{addr}, v[{W}:{W+3}]")
        p(f"ds_write_b128 v{addr}, v[{W+4}:{W+7}] offset:{K1OFF}")
    mv = lambda r: (lambda d: f"v_mov_b32 v{d}, v{r}")
    mx = lambda lo, hi: (lambda d: mixs(d, lo, hi))
    for h in range(2):
        a, b = e3 + 2*h, e3 + 2*h + 1
        pm = lambda d, a=a, b=b: f"v_perm_b32 v{d}, v{a}, v{b}, v{sel}"
        kput(K0[h], mv(b), mv(b), pm, mv(a), mv(a))
    kput(K0[2], mv(e2+2), mv(e2+2), mv(e2+1), mx(e2+1, e2), mv(e2))
    p("s_mov_b32 exec_hi, 0")
    kput(K0[3], mv(e1+4), mx(e1+4, e1+3), mv(e1+2), mx(e1+2, e1+1), mv(e1))
    p("s_mov_b32 exec_hi, 15")
    kput(K0[4], mx(e0+9, e0+8), mx(e0+7, e0+6), mx(e0+5, e0+4), mx(e0+3, e0+2), mx(e0+1, e0))
    p("s_mov_b64 exec, -1")
    for r, n in ((e3, 4), (e2, 4), (e1, 6), (e0, 10), (ra, 1), (cc, 1), (sel, 1), (W, 8)): V.release(r, n)
    for r in K0: V.release(r)
    z = V.alloc(4, align=4)
    p(f"""
    v_mov_b32 v{z}, 0
    v_mov_b32 v{z+1}, 0
    v_mov_b32 v{z+2}, 0
    v_mov_b32 v{z+3}, 0
    v_lshl_add_u32 v{t0}, v{vLane}, 4, s{sREG}
    s_waitcnt lgkmcnt(0)
    s_mov_b32 exec_lo, 0xfffffff
    s_mov_b32 exec_hi, 0
    ds_write_b128 v{t0}, v[{z}:{z+3}] offset:{UOFF}
    ds_write_b128 v{t0}, v[{z}:{z+3}] offset:{UOFF+U1D}
    s_mov_b64 exec, -1
    s_waitcnt vmcnt(0) lgkmcnt(0)
    s_barrier
    """)
    V.release(z, 4)
    stamp(p)
    q = V.alloc(8, align=2)
    sS0, sS1 = 54, 55
    p(f"""
    s_mov_b32 s{sS0}, 0x05040100
    s_mov_b32 s{sS1}, 0x07060302
    v_lshlrev_b32 v{t0}, 3, v0
    v_add_u32 v{t0}, {UOFF + 448}, v{t0}
    """)
    for ch in range(8):
        j = ch >> 1; s = sS1 if ch & 1 else sS0
        b = q + 4 * (ch & 1)
        R = lambda row: vU + 4 * (row + 1) + j
        p(f"""
        v_perm_b32 v{b}, v{R(1)}, v{R(0)}, s{s}
        v_perm_b32 v{b+1}, v{R(3)}, v{R(2)}, s{s}
        v_perm_b32 v{b+2}, v{R(0)}, v{R(-1)}, s{s}
        v_perm_b32 v{b+3}, v{R(2)}, v{R(1)}, s{s}
        ds_write_b64 v{t0}, v[{b}:{b+1}]
        ds_write_b64 v{t0}, v[{b+2}:{b+3}] offset:{U1D}
        """)
        if ch < 7: p(f"v_add_u32 v{t0}, {REG}, v{t0}")
    V.release(q, 8); V.release(vU, 20); V.release(fr, 16)
    p("s_waitcnt lgkmcnt(0)\n s_barrier")
    stamp(p)
    acc = V.alloc(32, align=4); A = V.alloc(32, align=4); B = V.alloc(32, align=4)
    vB = V.alloc(); vB0 = V.alloc(); vAa = V.alloc()
    p(f"""
    v_and_b32 v{t0}, 1, v{vN}
    v_xor_b32 v{t0}, 1, v{t0}
    v_mul_u32_u24 v{t0}, {U1D}, v{t0}
    v_lshrrev_b32 v{t1}, 1, v{vN}
    v_lshlrev_b32 v{t1}, 6, v{t1}
    v_lshl_add_u32 v{t1}, v{vG}, 4, v{t1}
    v_add3_u32 v{vB}, v{t0}, v{t1}, s{sREG}
    v_add_u32 v{vB}, {UOFF + 448}, v{vB}
    v_mov_b32 v{vB0}, v{vB}
    v_and_b32 v{t0}, 1, v{vN}
    v_mul_u32_u24 v{t0}, {K1OFF - 4}, v{t0}
    v_lshlrev_b32 v{t1}, 2, v{vN}
    v_sub_u32 v{t0}, v{t0}, v{t1}
    v_lshl_add_u32 v{t0}, v{vG}, 4, v{t0}
    v_add_u32 v{t0}, {4096 - 3584}, v{t0}
    v_add_u32 v{vAa}, s{sREG}, v{t0}
    """)
    def ldA(t):
        p(f"ds_read_b64 v[{A+4*t}:{A+4*t+1}], v{vAa} offset:{512*(7-t)}")
        p(f"ds_read_b64 v[{A+4*t+2}:{A+4*t+3}], v{vAa} offset:{512*(7-t)+8}")
    def ldB(i):
        p(f"ds_read_b128 v[{B+4*i}:{B+4*i+3}], v{vB} offset:{512*i}")
    for k in range(32): p(f"v_mov_b32 v{acc+k}, 0")
    for t in range(8):
        ldA(t); ldB(7 - t)
    sR = 56
    p(f"s_mov_b32 s{sR}, 0")
    p.label("L_conv")
    p(f"v_subrev_u32 v{vB}, 64, v{vB}\n v_subrev_u32 v{vAa}, 64, v{vAa}")
    for t in range(8):
        order = list(range(7, t - 1, -1))
        for k, i in enumerate(order):
            if t == 0:
                if k == 0: p("s_waitcnt lgkmcnt(9)")
                if k == 5: p("s_waitcnt lgkmcnt(0)")
            p(f"v_mfma_f32_16x16x32_bf16 v[{acc+4*i}:{acc+4*i+3}], v[{A+4*t}:{A+4*t+3}], v[{B+4*(i-t)}:{B+4*(i-t)+3}], v[{acc+4*i}:{acc+4*i+3}]")
        ldA(t); ldB(7 - t)
    p(f"""
    s_add_u32 s{sR}, s{sR}, 1
    s_cmp_lt_u32 s{sR}, 8
    s_cbranch_scc1 L_conv
    """)
    stamp(p)
    p("s_waitcnt lgkmcnt(0)")
    for i in range(8):
        p(f"ds_read_b128 v[{B+4*i}:{B+4*i+3}], v{vB0} offset:{512*i}")
    s0 = V.alloc(); s1 = V.alloc(); ya = V.alloc()
    sM = 57
    p(f"""
    s_mov_b32 s{sM}, 0xffff0000
    v_and_b32 v{t0}, 1, v{vN}
    v_cmp_eq_u32 vcc, 0, v{t0}
    v_mov_b32 v{t1}, 0x05040100
    v_mov_b32 v{t2}, 0x01000504
    v_cndmask_b32 v{s0}, v{t2}, v{t1}, vcc
    v_mov_b32 v{t1}, 0x07060302
    v_mov_b32 v{t2}, 0x03020706
    v_cndmask_b32 v{s1}, v{t2}, v{t1}, vcc
    v_lshrrev_b32 v{t1}, 1, v{vN}
    v_lshlrev_b32 v{t1}, 6, v{t1}
    v_lshl_add_u32 v{t1}, v{vG}, 4, v{t1}
    v_lshl_add_u32 v{t1}, v{t0}, 3, v{t1}
    v_add_u32 v{ya}, s{sREG}, v{t1}
    s_waitcnt lgkmcnt(0)
    """)
    for i in range(8):
        a = acc + 4 * i; b = B + 4 * i; pk = A + 4 * i
        for r in range(4):
            p(f"v_and_b32 v{b+r}, s{sM}, v{b+r}")
        for r in range(4):
            p(f"v_fma_f32 v{a+r}, v{b+r}, v{V.names['D'][0]}, v{a+r}")
        p(f"""
        v_cvt_pk_bf16_f32 v{pk}, v{a}, v{a+1}
        v_cvt_pk_bf16_f32 v{pk+1}, v{a+2}, v{a+3}
        v_cndmask_b32 v{pk+2}, v{pk+1}, v{pk}, vcc
        v_cndmask_b32 v{pk+3}, v{pk}, v{pk+1}, vcc
        """)
        p(f"v_mov_b32_dpp v{pk}, v{pk+3} quad_perm:[1,0,3,2] row_mask:0xf bank_mask:0xf")
        p(f"""
        v_perm_b32 v{a}, v{pk}, v{pk+2}, v{s0}
        v_perm_b32 v{a+1}, v{pk}, v{pk+2}, v{s1}
        ds_write_b64 v{ya}, v[{a}:{a+1}] offset:{512*i}
        """)
    p("s_waitcnt lgkmcnt(0)\n s_barrier")
    stamp(p)
    ta = V.alloc(); tb = V.alloc(); go = V.alloc()
    p(f"""
    v_lshrrev_b32 v{t0}, 2, v{vI}
    v_mul_u32_u24 v{t0}, {REG}, v{t0}
    v_and_b32 v{t1}, 3, v{vI}
    v_lshlrev_b32 v{t1}, 3, v{t1}
    v_lshl_add_u32 v{t1}, v{vG}, 5, v{t1}
    s_lshl_b32 s{sT0}, s{sW}, 9
    v_add3_u32 v{ta}, v{t0}, v{t1}, s{sT0}
    v_add_u32 v{tb}, {4*REG}, v{ta}
    s_lshl_b32 s{sT0}, s{sW}, 8
    v_add_u32 v{go}, s{sT0}, v{vLane}
    v_mul_u32_u24 v{go}, 2560, v{go}
    s_lshl_b32 s{sT0}, s{sCG}, 4
    v_add_u32 v{go}, s{sT0}, v{go}
    """)
    for it in range(4):
        o = A + 4 * it
        p(f"ds_read_b64_tr_b16 v[{o}:{o+1}], v{ta} offset:{128*it}")
        p(f"ds_read_b64_tr_b16 v[{o+2}:{o+3}], v{tb} offset:{128*it}")
    for it in range(4):
        o = A + 4 * it
        p(f"s_waitcnt lgkmcnt({6-2*it})")
        p(f"s_mov_b32 s{sT0}, {it*64*2560}")
        p(f"buffer_store_dwordx4 v[{o}:{o+3}], v{go}, s[{SRD_O}:{SRD_O+3}], s{sT0} offen")
    dbgmax(p, 13, t0, t1, sW)
    stamp(p)
    if common.DIAG:
        p('s_waitcnt vmcnt(0)')
        stamp(p)
        stamps_flush(p, t0, t1)
    return V

import struct
def f32bits(x):
    return struct.unpack("<I", struct.pack("<f", float(x)))[0]
```

```python
from common import *
import common

SLOT = 40960
WOFF = 24576
WO_IMG = 0
PHI = 81920
RS = 296
AST = 139264
RED = 81920
WS_PART = 65536
PART_STRIDE = 5120
WS_O = 1 << 20
O_TILE = 20480
WS_SIZE = 16 << 20
SPIN_MAX = 1 << 14
DBG_CNT = 4

def merge(streams):
    out = []
    n = max(len(s) for s in streams)
    for j in range(n):
        for s in streams:
            if j < len(s): out.append(s[j])
    return out

def gen_part_b(p):
    V = VAlloc(VGPRS - 1, start=1)
    sJ, sI, sT, sRB, sHP, sW, sWR, sTY = 32, 33, 34, 35, 36, 37, 38, 39
    SRD_X, SRD_W, SRD_WS, SRD_WO, SRD_O = 40, 44, 48, 52, 56
    sT0, sT1, sT2, sT3 = 60, 61, 62, 63
    sKC = 81; sS = 82; sSLOTD = 83; sXO = 84; sWO = 85; sM0 = 86; sROW0 = 87
    sL = 88
    sRT, sCG, sDSLOT = 92, 93, 94
    sNEG = 100; sCNT = 101
    OPT = common.OPT
    p(f"""
    s_and_b32 s{sJ}, s2, 7
    s_lshr_b32 s{sI}, s2, 3
    s_lshr_b32 s{sT0}, s{sJ}, 2
    s_mul_i32 s{sT0}, s{sT0}, 22
    s_add_u32 s{sT}, s{sT0}, s{sI}
    s_lshr_b32 s{sRB}, s{sT}, 2
    s_and_b32 s{sT0}, s{sT}, 3
    s_and_b32 s{sT1}, s{sJ}, 3
    s_lshl_b32 s{sT1}, s{sT1}, 2
    s_add_u32 s{sHP}, s{sT1}, s{sT0}
    s_mul_i32 s{sROW0}, s{sRB}, 192
    s_mul_i32 s{sT1}, s{sT0}, 3
    s_lshl_b32 s{sT2}, s{sRB}, 1
    s_add_u32 s{sKC}, s{sT1}, s{sT2}
    s_mul_i32 s{sT1}, s{sKC}, 205
    s_lshr_b32 s{sT1}, s{sT1}, 11
    s_mul_i32 s{sT1}, s{sT1}, 10
    s_sub_u32 s{sKC}, s{sKC}, s{sT1}
    """)
    if 'rot0' in OPT: p(f"s_mov_b32 s{sKC}, 0")
    if 'rot2' in OPT: p(f"s_and_b32 s{sKC}, s{sT}, 1\n s_mul_i32 s{sKC}, s{sKC}, 5")
    vLane = V.alloc(); vI = V.alloc(); vG = V.alloc(); t0 = V.alloc(); t1 = V.alloc(); t2 = V.alloc(); t3 = V.alloc()
    p(f"""
    v_lshrrev_b32 v{t0}, 6, v0
    v_and_b32 v{vLane}, 63, v0
    v_readfirstlane_b32 s{sW}, v{t0}
    v_and_b32 v{vI}, 15, v{vLane}
    v_lshrrev_b32 v{vG}, 4, v{vLane}
    s_and_b32 s{sWR}, s{sW}, 3
    s_lshr_b32 s{sTY}, s{sW}, 2
    s_cmp_eq_u32 s{sTY}, 2
    s_cbranch_scc0 L_b_compute
    """)
    mark = list(V.free)
    vX = [V.alloc(), V.alloc()]; vW = [V.alloc(), V.alloc()]
    p(f"""
    s_mul_i32 s{sT0}, s{sWR}, 48
    s_add_u32 s{sT0}, s{sT0}, s{sROW0}
    v_lshrrev_b32 v{t0}, 3, v{vLane}
    v_add_u32 v{t0}, s{sT0}, v{t0}
    v_mul_u32_u24 v{t0}, 1280, v{t0}
    v_and_b32 v{t1}, 7, v{vLane}
    v_xor_b32 v{t2}, v{t1}, v{vG}
    v_lshl_add_u32 v{vX[0]}, v{t2}, 4, v{t0}
    v_xor_b32 v{t2}, 4, v{t2}
    v_lshl_add_u32 v{vX[1]}, v{t2}, 4, v{t0}
    """)
    for hv in range(2):
        p(f"""
        v_lshlrev_b32 v{t0}, 1, v{vG}
        v_add_u32 v{t0}, {8*hv}, v{t0}
        v_xor_b32 v{t0}, v{t0}, v{vI}
        v_min_u32 v{t0}, 14, v{t0}
        ; c<5: 1280+16c ; c<8: 2560+16(c-5) ; c<13: 16(c-8) ; else 2560+16(c-10)
        v_lshlrev_b32 v{t1}, 4, v{t0}
        v_add_u32 v{t2}, {2560-160}, v{t1}
        v_subrev_u32 v{t3}, 128, v{t1}
        v_cmp_gt_u32 vcc, 13, v{t0}
        v_cndmask_b32 v{t2}, v{t2}, v{t3}, vcc
        v_add_u32 v{t3}, {2560-80}, v{t1}
        v_cmp_gt_u32 vcc, 8, v{t0}
        v_cndmask_b32 v{t2}, v{t2}, v{t3}, vcc
        v_add_u32 v{t3}, 1280, v{t1}
        v_cmp_gt_u32 vcc, 5, v{t0}
        v_cndmask_b32 v{t2}, v{t2}, v{t3}, vcc
        s_mul_i32 s{sT0}, s{sHP}, 80
        s_mul_i32 s{sT1}, s{sWR}, {16*3840}
        s_add_u32 s{sT0}, s{sT0}, s{sT1}
        v_mul_u32_u24 v{t0}, 3840, v{vG}
        v_add3_u32 v{vW[hv]}, v{t0}, v{t2}, s{sT0}
        """)
    sMX, sMW = 90, 91
    p(f"""
    s_mul_i32 s{sMX}, s{sWR}, 6144
    s_lshl_b32 s{sMW}, s{sWR}, 12
    s_add_u32 s{sMW}, s{sMW}, {WOFF}
    s_mov_b32 s{sDSLOT}, 0
    s_waitcnt lgkmcnt(0)
    """)
    srd(p, SRD_X, S_X, 2048 * 1280)
    srd(p, SRD_W, S_WQKV, 640 * 3840)
    def dma_stage():
        p(f"s_lshl_b32 s{sXO}, s{sKC}, 7\n s_mul_i32 s{sWO}, s{sKC}, {64*3840}\n s_add_u32 s{sM0}, s{sMX}, s{sDSLOT}\n s_add_u32 s{sT2}, s{sMW}, s{sDSLOT}")
        order = [("x", 0), ("w", 0), ("x", 1), ("x", 2), ("w", 1), ("x", 3), ("w", 2), ("x", 4), ("x", 5), ("w", 3)]
        for kind, e in order:
            if 'nodma' in OPT: continue
            if kind == "x":
                p(f"s_add_u32 s{sT0}, s{sXO}, {8*e*1280}\n s_add_u32 m0, s{sM0}, {1024*e}")
                p(f"buffer_load_dwordx4 v{vX[e & 1]}, s[{SRD_X}:{SRD_X+3}], s{sT0} offen lds")
            else:
                p(f"s_add_u32 s{sT0}, s{sWO}, {4*e*3840}\n s_add_u32 m0, s{sT2}, {1024*e}")
                p(f"buffer_load_dwordx4 v{vW[e >> 1]}, s[{SRD_W}:{SRD_W+3}], s{sT0} offen lds")
        p(f"""
        s_add_u32 s{sKC}, s{sKC}, 1
        s_cmp_eq_u32 s{sKC}, 10
        s_cselect_b32 s{sKC}, 0, s{sKC}
        s_add_u32 s{sDSLOT}, s{sDSLOT}, {SLOT}
        s_cmp_eq_u32 s{sDSLOT}, {4*SLOT}
        s_cselect_b32 s{sDSLOT}, 0, s{sDSLOT}
        """)
    LA = 2 if ('la2' in OPT or 'st2' in OPT) else 3
    if 'st2' in OPT:
        dma_stage()
        p("s_barrier")
        stamp(p, 1)
        srd(p, SRD_WS, S_WS, WS_SIZE)
        srd(p, SRD_WO, S_WO, 640 * 1280)
        p("s_waitcnt vmcnt(0)")
        stamp(p, 2)
        p("s_barrier")
        stamp(p, 3)
        dma_stage()
    else:
        p(f"s_mov_b32 s{sS}, 0")
        p.label("L_p_pro")
        dma_stage()
        p(f"s_add_u32 s{sS}, s{sS}, 1\n s_cmp_lt_u32 s{sS}, {LA}\n s_cbranch_scc1 L_p_pro")
        stamp(p, 1)
        srd(p, SRD_WS, S_WS, WS_SIZE)
        srd(p, SRD_WO, S_WO, 640 * 1280)
        p(f"s_waitcnt vmcnt({10*(LA-1)})")
        stamp(p, 2)
        p("s_barrier")
        stamp(p, 3)
    p(f"s_mov_b32 s{sS}, {LA}")
    p.label("L_p_main")
    dma_stage()
    p(f"""
    s_waitcnt vmcnt({10*(LA-1)})
    s_add_u32 s{sS}, s{sS}, 1
    s_cmp_lt_u32 s{sS}, 10
    s_cbranch_scc0 L_p_tail
    s_barrier
    s_branch L_p_main
    """)
    p.label("L_p_tail")
    if LA == 3: p("s_barrier")
    on4 = V.alloc(4, align=4); vC0 = V.alloc(); vC1 = V.alloc()
    p(f"""
    v_mov_b32 v{on4}, -1
    v_mov_b32 v{on4+1}, -1
    v_mov_b32 v{on4+2}, -1
    v_mov_b32 v{on4+3}, -1
    s_lshl_b32 s{sT0}, s{sRB}, 4
    s_add_u32 s{sT0}, s{sT0}, s{sHP}
    s_mul_i32 s{sT0}, s{sT0}, {PART_STRIDE}
    s_mul_i32 s{sT1}, s{sWR}, 1280
    s_add_u32 s{sT0}, s{sT0}, s{sT1}
    s_add_u32 s{sT0}, s{sT0}, {WS_PART}
    v_lshl_add_u32 v{vC0}, v{vLane}, 4, s{sT0}
    s_add_u32 s{sT0}, s{sT0}, 1024
    v_lshl_add_u32 v{vC1}, v{vLane}, 2, s{sT0}
    buffer_store_dwordx4 v[{on4}:{on4+3}], v{vC0}, s[{SRD_WS}:{SRD_WS+3}], 0 offen sc1
    buffer_store_dword v{on4}, v{vC1}, s[{SRD_WS}:{SRD_WS+3}], 0 offen sc1
    s_mul_i32 s{sT0}, s{sRB}, 12
    s_mul_i32 s{sT1}, s{sWR}, 3
    s_add_u32 s{sT0}, s{sT0}, s{sT1}
    s_mul_i32 s{sT0}, s{sT0}, {O_TILE}
    s_mul_i32 s{sT1}, s{sHP}, 1280
    s_add_u32 s{sT0}, s{sT0}, s{sT1}
    s_add_u32 s{sT0}, s{sT0}, {WS_O}
    v_lshl_add_u32 v{vC0}, v{vLane}, 4, s{sT0}
    s_add_u32 s{sT0}, s{sT0}, 1024
    v_lshl_add_u32 v{vC1}, v{vLane}, 2, s{sT0}
    """)
    for nt in range(3):
        p(f"s_mov_b32 s{sT1}, {O_TILE*nt}")
        p(f"buffer_store_dwordx4 v[{on4}:{on4+3}], v{vC0}, s[{SRD_WS}:{SRD_WS+3}], s{sT1} offen sc1")
        p(f"buffer_store_dword v{on4}, v{vC1}, s[{SRD_WS}:{SRD_WS+3}], s{sT1} offen sc1")
    p(f"""
    s_lshr_b32 s{sT0}, s2, 3
    s_cmp_ge_u32 s{sT0}, 20
    s_cbranch_scc1 L_p_nopf
    s_mul_i32 s{sT0}, s{sT0}, 320
    s_mul_i32 s{sT1}, s{sWR}, 80
    s_add_u32 s{sT0}, s{sT0}, s{sT1}
    v_add_u32 v{t0}, s{sT0}, v{vLane}
    v_lshlrev_b32 v{t0}, 7, v{t0}
    buffer_load_dword v{t1}, v{t0}, s[{SRD_WO}:{SRD_WO+3}], 0 offen
    s_mov_b32 exec_lo, 0xffff
    s_mov_b32 exec_hi, 0
    v_add_u32 v{t0}, {64*128}, v{t0}
    buffer_load_dword v{t2}, v{t0}, s[{SRD_WO}:{SRD_WO+3}], 0 offen
    s_mov_b64 exec, -1
    """)
    p.label("L_p_nopf")
    p("s_waitcnt vmcnt(18)\n s_barrier")
    p("s_waitcnt vmcnt(0)\n s_barrier")
    p(f"""
    s_cmp_lg_u32 s{sWR}, 0
    s_cbranch_scc1 L_p_nocnt
    v_mov_b32 v{t0}, {DBG_CNT}
    v_mov_b32 v{t1}, 1
    s_mov_b32 exec_lo, 1
    s_mov_b32 exec_hi, 0
    global_atomic_add v{t0}, v{t1}, s[{S_DBG}:{S_DBG+1}] sc1
    s_mov_b64 exec, -1
    """)
    p.label("L_p_nocnt")
    p(f"""
    s_lshr_b32 s{sT0}, s2, 3               ; i
    s_cmp_ge_u32 s{sT0}, 10
    s_cselect_b32 s{sT1}, 1, 0
    s_mul_i32 s{sT1}, s{sT1}, 10
    s_sub_u32 s{sCG}, s{sT0}, s{sT1}
    ; LDS row k' = 8 z + e holds wo row 40 (z/5) + 4 (z%5) + 20 (e>>2) + (e&3);  z = 20 pw + i'
    v_lshrrev_b32 v{t0}, 3, v{vLane}            ; e
    v_bfe_u32 v{t1}, v{t0}, 1, 1
    v_lshlrev_b32 v{t1}, 1, v{t1}
    v_and_b32 v{t2}, 7, v{vLane}
    v_xor_b32 v{t1}, v{t1}, v{t2}
    v_xor_b32 v{t2}, 4, v{t1}
    v_lshrrev_b32 v{t3}, 2, v{t0}
    v_mul_u32_u24 v{t3}, 20, v{t3}
    v_and_b32 v{t0}, 3, v{t0}
    v_add_u32 v{t0}, v{t0}, v{t3}
    s_mul_i32 s{sT0}, s{sWR}, 160
    v_add_u32 v{t0}, s{sT0}, v{t0}
    v_mul_u32_u24 v{t0}, 1280, v{t0}
    s_lshl_b32 s{sT0}, s{sCG}, 7
    v_add_u32 v{t0}, s{sT0}, v{t0}
    v_lshl_add_u32 v{t3}, v{t2}, 4, v{t0}
    v_lshl_add_u32 v{t0}, v{t1}, 4, v{t0}
    s_mul_i32 s{sM0}, s{sWR}, 20480
    s_barrier
    s_cmp_ge_u32 s2, 160
    s_cbranch_scc1 L_p_nowo
    """)
    for i in range(20):
        p(f"s_mov_b32 s{sT1}, {(40*(i//5) + 4*(i%5))*1280}\n s_add_u32 m0, s{sM0}, {WO_IMG + 1024*i}")
        p(f"buffer_load_dwordx4 v{t3 if i & 1 else t0}, s[{SRD_WO}:{SRD_WO+3}], s{sT1} offen lds")
    p.label("L_p_nowo")
    stamp(p, 4)
    p("s_waitcnt vmcnt(0)")
    stamp(p, 5)
    p("s_barrier")
    stamp(p, 6)
    if common.DIAG:
        stamps_flush(p, t0, t1, loader=True)
    p("s_endpgm")
    V.free = list(mark)
    p.label("L_b_compute")
    vWp = V.alloc(4, align=4); vWp2 = V.alloc(4, align=4)
    p(f"""
    s_mul_i32 s{sT0}, s{sHP}, 1600
    v_lshlrev_b32 v{t0}, 4, v{vLane}
    v_add_u32 v{t0}, s{sT0}, v{t0}
    v_add_u32 v{t1}, 1024, v{t0}
    s_waitcnt lgkmcnt(0)
    global_load_dwordx4 v[{vWp}:{vWp+3}], v{t0}, s[{S_WPHI}:{S_WPHI+1}]
    s_mov_b32 exec_hi, 15
    global_load_dwordx4 v[{vWp2}:{vWp2+3}], v{t1}, s[{S_WPHI}:{S_WPHI+1}]
    s_mov_b32 exec_hi, -1
    """)
    PF0 = 1 if 'st2' in OPT else 3
    NPF = 0
    if 'l2pf' in OPT:
        NPF = 2
        a0 = V.alloc(); a1 = V.alloc(); a2 = V.alloc(); a3 = V.alloc(); d0 = V.alloc(); ad = V.alloc(2, align=2)
        p(f"""
        ; lane -> chunk PF0 + lane/10, item r = lane%10 ; it = min((i*8 + w)*10 + r, 1727)
        v_mul_u32_u24 v{a0}, 205, v{vLane}
        v_lshrrev_b32 v{a0}, 11, v{a0}               ; lane/10
        v_mul_u32_u24 v{a1}, 10, v{a0}
        v_sub_u32 v{a1}, v{vLane}, v{a1}             ; r
        s_lshl_b32 s{sT1}, s{sI}, 3
        s_add_u32 s{sT1}, s{sT1}, s{sW}
        s_mul_i32 s{sT1}, s{sT1}, 10
        v_add_u32 v{a1}, s{sT1}, v{a1}               ; it
        v_min_u32 v{a1}, 1727, v{a1}
        v_add_u32 v{a0}, {PF0}, v{a0}                ; chunk
        s_lshr_b32 s{sT2}, s{sJ}, 2
        s_mul_i32 s{sT2}, s{sT2}, 960
        v_add_u32 v{a2}, s{sT2}, v{a1}
        v_min_u32 v{a2}, 2047, v{a2}
        v_mul_u32_u24 v{a2}, 1280, v{a2}
        v_lshl_add_u32 v{a2}, v{a0}, 7, v{a2}
        ; W: u = it - 1152 ; krow = u/9 ; rem = u%9 ; seg = rem/3 ; ln = rem%3
        v_subrev_u32 v{a1}, 1152, v{a1}
        v_max_i32 v{d0}, 0, v{a1}
        v_mul_u32_u24 v{a3}, 7282, v{d0}
        v_lshrrev_b32 v{a3}, 16, v{a3}               ; krow
        v_mul_u32_u24 v{t3}, 9, v{a3}
        v_sub_u32 v{d0}, v{d0}, v{t3}                ; rem
        v_lshl_add_u32 v{a3}, v{a0}, 6, v{a3}
        v_mul_u32_u24 v{a3}, 3840, v{a3}
        v_mul_u32_u24 v{t3}, 86, v{d0}
        v_lshrrev_b32 v{t3}, 8, v{t3}                ; seg
        v_mul_u32_u24 v{a0}, 3, v{t3}
        v_sub_u32 v{d0}, v{d0}, v{a0}                ; ln
        v_mul_u32_u24 v{t3}, 1280, v{t3}
        v_lshl_add_u32 v{t3}, v{d0}, 7, v{t3}
        s_and_b32 s{sT2}, s{sJ}, 3
        s_mul_i32 s{sT2}, s{sT2}, 320
        s_and_b32 s{sT2}, s{sT2}, 0xffffff80
        v_add3_u32 v{a3}, v{a3}, v{t3}, s{sT2}
        v_cmp_gt_i32 vcc, 0, v{a1}                   ; x lanes
        v_cndmask_b32 v{a2}, v{a3}, v{a2}, vcc
        v_mov_b32 v{a0}, {6*64*3840}
        v_mov_b32 v{a1}, {6*128}
        v_cndmask_b32 v{a3}, v{a0}, v{a1}, vcc
        v_mov_b32 v{a0}, s{S_WQKV}
        v_mov_b32 v{a1}, s{S_X}
        v_cndmask_b32 v{ad}, v{a0}, v{a1}, vcc
        v_mov_b32 v{a0}, s{S_WQKV+1}
        v_mov_b32 v{a1}, s{S_X+1}
        v_cndmask_b32 v{ad+1}, v{a0}, v{a1}, vcc
        v_add_co_u32 v{ad}, vcc, v{ad}, v{a2}
        v_addc_co_u32 v{ad+1}, vcc, 0, v{ad+1}, vcc
        """)
        if 'st2' in OPT: p("s_barrier")
        p(f"""
        s_mov_b32 exec_hi, 0x0fffffff
        global_load_dword v{VGPRS-1}, v[{ad}:{ad+1}], off
        s_mov_b32 exec_hi, -1
        v_add_co_u32 v{ad}, vcc, v{ad}, v{a3}
        v_addc_co_u32 v{ad+1}, vcc, 0, v{ad+1}, vcc
        s_mov_b32 exec_lo, {0x3ff if PF0 == 3 else 0x3fffffff:#x}
        s_mov_b32 exec_hi, 0
        global_load_dword v{VGPRS-1}, v[{ad}:{ad+1}], off
        s_mov_b64 exec, -1
        """)
        for r in (a0, a1, a2, a3, d0): V.release(r)
        V.release(ad, 2)
    stamp(p, 1)
    srd(p, SRD_WS, S_WS, WS_SIZE)
    srd(p, SRD_O, S_OUT, 2048 * 2560)
    p(f"""
    s_mov_b32 s{sL}, {LOG2E:#x}
    s_mov_b32 s{sL+1}, {LOG2E:#x}
    s_mov_b32 s{sNEG}, {-3*SLOT & 0xffffffff:#x}
    """)
    vXa = V.alloc(2, align=1); vWa = V.alloc(4, align=1)
    for ks in range(2):
        p(f"""
        v_add_u32 v{t0}, {4*ks}, v{vG}
        v_lshrrev_b32 v{t1}, 1, v{vI}
        v_xor_b32 v{t0}, v{t0}, v{t1}
        v_lshlrev_b32 v{t0}, 4, v{t0}
        s_mul_i32 s{sT0}, s{sWR}, 48
        v_add_u32 v{t1}, s{sT0}, v{vI}
        v_lshl_add_u32 v{vXa+ks}, v{t1}, 7, v{t0}
        """)
    p(f"""
    v_and_b32 v{t0}, 1, v{vG}
    v_xor_b32 v{t0}, s{sTY}, v{t0}
    v_lshlrev_b32 v{t0}, 7, v{t0}
    v_bfe_u32 v{t2}, v{vI}, 1, 1
    v_lshl_add_u32 v{t0}, v{t2}, 4, v{t0}
    v_and_b32 v{t2}, 1, v{vI}
    v_lshl_add_u32 v{t0}, v{t2}, 3, v{t0}
    v_lshrrev_b32 v{t1}, 2, v{vI}
    v_lshl_add_u32 v{t2}, v{vG}, 3, v{t1}
    v_lshl_add_u32 v{t0}, v{t2}, 8, v{t0}
    v_add_u32 v{t0}, {WOFF}, v{t0}
    """)
    for mt in range(4):
        p(f"v_xor_b32 v{t2}, {mt}, v{t1}\n v_lshl_add_u32 v{vWa+mt}, v{t2}, 5, v{t0}")
    acc = V.alloc(48, align=4)
    for k in range(48): p(f"v_mov_b32 v{acc+k}, 0")
    WPB = 3 * SLOT
    vFA = V.alloc(16, align=4)
    FA, FB, FC0, FC1 = vFA, vFA + 4, vFA + 8, vFA + 12
    GT = V.alloc(32, align=1)
    for k in range(32): p(f"v_mov_b32 v{GT+k}, 0")
    p(f"""
    s_lshl_b32 s{sT0}, s{sW}, 11
    s_add_u32 s{sT0}, s{sT0}, {WPB}
    v_lshl_add_u32 v{t0}, v{vLane}, 4, s{sT0}
    v_lshrrev_b32 v{t1}, 2, v{vI}
    v_mul_u32_u24 v{t1}, 5, v{t1}
    v_and_b32 v{t2}, 3, v{vI}
    v_add_u32 v{t2}, v{t1}, v{t2}
    v_lshlrev_b32 v{t2}, 1, v{t2}
    v_mul_u32_u24 v{t3}, 160, v{vG}
    v_add3_u32 v{t2}, v{t2}, v{t3}, s{sT0}      ; t2: f = 5(m>>2)+(m&3)
    v_add_u32 v{t1}, 4, v{t1}
    v_lshlrev_b32 v{t1}, 1, v{t1}
    v_add3_u32 v{t1}, v{t1}, v{t3}, s{sT0}      ; t1: f = 5(m>>2)+4
    s_waitcnt vmcnt({NPF})
    """)
    p(f"""
    ds_write_b128 v{t0}, v[{vWp}:{vWp+3}]
    s_mov_b32 exec_hi, 15
    ds_write_b128 v{t0}, v[{vWp2}:{vWp2+3}] offset:1024
    s_mov_b32 exec_hi, -1
    s_waitcnt lgkmcnt(0)
    """)
    def gather(dst, addr, off, mask):
        p(f"s_mov_b32 exec_lo, {mask & 0xffffffff:#x}\n s_mov_b32 exec_hi, {mask >> 32:#x}")
        for e in range(4):
            p(f"ds_read_u16 v{GT + 2*(dst - vFA) + e}, v{addr} offset:{off + 40*e}")
    G0 = 0xFFFF; G01 = 0xFFFFFFFF; G123 = 0xFFFFFFFFFFFF0000; ALL = (1 << 64) - 1
    R0 = 0x1111111111111111; R1 = 0x2222222222222222
    gather(FA, t2, 0, ALL);            gather(FA + 2, t2, 16*40, G0)
    gather(FB, t2, 800 - 160, G123);   gather(FB + 2, t2, 800 + 12*40, G01)
    gather(FC0, t1, 0, R0);            gather(FC0 + 2, t1, 16*40, G0 & R0)
    gather(FC1, t1, 800 - 160, G123 & R1); gather(FC1 + 2, t1, 800 + 12*40, G01 & R1)
    p("s_mov_b64 exec, -1\n s_waitcnt lgkmcnt(0)")
    for k in range(16):
        p(f"v_lshl_or_b32 v{vFA+k}, v{GT+2*k+1}, 16, v{GT+2*k}")
    V.release(GT, 32); V.release(vWp, 4); V.release(vWp2, 4)
    XF = [V.alloc(12, align=4), V.alloc(12, align=4)]
    WF = [V.alloc(16, align=4), V.alloc(16, align=4)]
    def reads(ks):
        L = []
        for mt in range(4):
            for h in range(2):
                L.append(f"ds_read_b64_tr_b16 v[{WF[ks]+4*mt+2*h}:{WF[ks]+4*mt+2*h+1}], v{vWa+mt} offset:{8192*ks + 1024*h}")
        X = [f"ds_read_b128 v[{XF[ks]+4*nt}:{XF[ks]+4*nt+3}], v{vXa+ks} offset:{2048*nt}" for nt in range(3)]
        return [L[0], L[1], X[0], X[1], X[2]] + L[2:]
    def mfmas(ks):
        L = []
        for mt in range(4):
            for nt in range(3):
                a = acc + 16*nt + 4*mt
                L.append(f"v_mfma_f32_16x16x32_bf16 v[{a}:{a+3}], v[{WF[ks]+4*mt}:{WF[ks]+4*mt+3}], v[{XF[ks]+4*nt}:{XF[ks]+4*nt+3}], v[{a}:{a+3}]")
        return L
    def sched(main, slots):
        for i, m in enumerate(main):
            if 'nomfma' not in OPT: p(m)
            for x in slots.get(i, []):
                if ('nomfma' in OPT or 'nords' in OPT) and x.startswith('ds_read'): continue
                p(x)
    def advance():
        return [f"v_add_u32 v{r}, s{sSLOTD}, v{r}" for r in (vWa, vXa, vWa+1, vWa+2, vWa+3, vXa+1)]
    stamp(p, 15)
    p("s_barrier")
    stamp(p, 2); cstamp(p, 13)
    for x in reads(0): p(x)
    p(f"s_mov_b32 s{sS}, 0")
    def slot_delta():
        return [f"s_and_b32 s{sT0}, s{sS}, 3", f"s_cmp_eq_u32 s{sT0}, 3", f"s_cselect_b32 s{sSLOTD}, s{sNEG}, {SLOT}"]
    RSP = int(common.os.environ.get("RSP", "2"))
    def read_slots(r, first):
        d = {}
        k = first
        while r:
            d[k] = r[:RSP]; r = r[RSP:]; k += 1
        return d
    def half0():
        p("s_waitcnt lgkmcnt(0)")
        slots = read_slots(reads(1), 0)
        slots[7] = slot_delta()
        sched(mfmas(0), slots)
    def half1(nxt=True):
        p("s_waitcnt lgkmcnt(0)")
        if nxt:
            p("s_barrier")
            slots = read_slots(reads(0), 1)
            slots[0] = advance()
            sched(mfmas(1), slots)
        else:
            sched(mfmas(1), {})
    p.label("L_b_main")
    half0(); half1()
    p(f"s_add_u32 s{sS}, s{sS}, 1\n s_cmp_lt_u32 s{sS}, 9\n s_cbranch_scc1 L_b_main")
    half0(); half1(nxt=False)
    stamp(p, 3); cstamp(p, 14)
    V.release(XF[0], 12); V.release(XF[1], 12); V.release(WF[0], 16); V.release(WF[1], 16)
    V.release(vXa, 2); V.release(vWa, 4)
    def wait_cleared(name, vN, vm):
        p(f"s_mov_b32 s{sCNT}, 0\n s_waitcnt vmcnt({vm})")
        p.label(f"L_b_wc{name}")
        p(f"""
        v_readfirstlane_b32 s{sT0}, v{vN}
        s_cmp_ge_u32 s{sT0}, {N_B}
        s_cbranch_scc1 L_b_wc_ok{name}
        s_add_u32 s{sCNT}, s{sCNT}, 1
        s_cmp_gt_u32 s{sCNT}, {SPIN_MAX}
        s_cbranch_scc1 L_b_wc_ok{name}
        v_mov_b32 v{vN}, {DBG_CNT}
        global_load_dword v{vN}, v{vN}, s[{S_DBG}:{S_DBG+1}] sc1
        s_waitcnt vmcnt(0)
        s_branch L_b_wc{name}
        """)
        p.label(f"L_b_wc_ok{name}")
    P = V.alloc(3 * 8, align=2)
    vRow = V.alloc()
    vV2 = V.alloc(); vV3 = V.alloc()
    p(f"""
    s_mul_i32 s{sT0}, s{sWR}, 48
    v_add_u32 v{t0}, s{sT0}, v{vI}
    v_mul_u32_u24 v{vRow}, {RS}, v{t0}
    v_add_u32 v{vRow}, {PHI}, v{vRow}
    s_mul_i32 s{sT0}, s{sTY}, 48
    v_lshlrev_b32 v{t1}, 3, v{vG}
    v_add3_u32 v{vV2}, v{t1}, v{vRow}, s{sT0}
    v_add_u32 v{vV2}, {192 - 16}, v{vV2}
    v_add_u32 v{t2}, {192 + 16}, v{t1}
    v_add_u32 v{t3}, {192 + 64}, v{t1}
    v_cmp_gt_u32 vcc, 2, v{vG}
    v_add_u32 v{vV3}, {280 - 16}, v{t1}
    v_cndmask_b32 v{t3}, v{vV3}, v{t3}, vcc
    s_cmp_eq_u32 s{sTY}, 0
    s_cselect_b64 vcc, -1, 0
    v_cndmask_b32 v{t3}, v{t3}, v{t2}, vcc
    v_add_u32 v{vV3}, v{t3}, v{vRow}
    """)
    def cvtP(nt, mts):
        for mt in mts:
            a = acc + 16*nt + 4*mt
            p(f"v_cvt_pk_bf16_f32 v{P+8*nt+2*mt}, v{a}, v{a+1}")
            p(f"v_cvt_pk_bf16_f32 v{P+8*nt+2*mt+1}, v{a+2}, v{a+3}")
    for nt in range(3): cvtP(nt, (2, 3))
    p("s_mov_b32 exec_lo, 0")
    for nt in range(3): p(f"ds_write_b64 v{vV2}, v[{P+8*nt+4}:{P+8*nt+5}] offset:{16*RS*nt}")
    p("s_mov_b32 exec_lo, -1")
    for nt in range(3): p(f"ds_write_b64 v{vV3}, v[{P+8*nt+6}:{P+8*nt+7}] offset:{16*RS*nt}")
    for nt in range(3): cvtP(nt, (0, 1))
    V.release(vV2); V.release(vV3)
    if common.DUMP:
        p(f"""
        s_lshl_b32 s{sT0}, s2, 3
        s_add_u32 s{sT0}, s{sT0}, s{sW}
        s_mul_i32 s{sT0}, s{sT0}, {24*256}
        s_add_u32 s{sT0}, s{sT0}, {4<<20}
        v_lshl_add_u32 v{t0}, v{vLane}, 2, s{sT0}
        """)
        for k in range(24):
            p(f"buffer_store_dword v{P+k}, v{t0}, s[{SRD_WS}:{SRD_WS+3}], 0 offen offset:{256*(k%16)}")
            if k == 15: p(f"v_add_u32 v{t0}, 4096, v{t0}")
        p("s_waitcnt vmcnt(0)")
    V.release(acc, 48)
    if common.os.environ.get('RDBG'): print('free before softmax', [i for i,f in enumerate(V.free) if f])
    TTb = V.alloc(38, align=4)
    TT = [TTb, TTb + 12, TTb + 24]
    EE = [V.alloc(20, align=2) for _ in range(3)]
    SS = [[V.alloc(2, align=2) for _ in range(3)] for _ in range(3)]
    def softmax(nt, outs):
        T, E, S = TT[nt], EE[nt], SS[nt]
        X01 = P + 8*nt; X12 = P + 8*nt + 2
        a0, a1, b0, b1, c, d = S[0], S[0]+1, S[1], S[1]+1, S[2], S[2]+1
        L = [f"v_mfma_f32_16x16x32_bf16 v[{T}:{T+3}], v[{FA}:{FA+3}], v[{X01}:{X01+3}], 0",
             f"v_mfma_f32_16x16x32_bf16 v[{T+8}:{T+11}], v[{FC0}:{FC0+3}], v[{X01}:{X01+3}], 0",
             f"v_mfma_f32_16x16x32_bf16 v[{T+4}:{T+7}], v[{FB}:{FB+3}], v[{X12}:{X12+3}], 0",
             f"v_mfma_f32_16x16x32_bf16 v[{T+8}:{T+11}], v[{FC1}:{FC1+3}], v[{X12}:{X12+3}], v[{T+8}:{T+11}]"]
        x = [[T, T+1, T+2, T+3, T+8], [T+4, T+5, T+6, T+7, T+9]]
        for h, (a, b) in enumerate(((a0, b0), (a1, b1))):
            xs = x[h]
            L += [f"v_max3_f32 v{a}, v{xs[0]}, v{xs[1]}, v{xs[2]}", f"v_max3_f32 v{b}, -v{xs[0]}, -v{xs[1]}, -v{xs[2]}"]
        for h, (a, b) in enumerate(((a0, b0), (a1, b1))):
            xs = x[h]
            L += [f"v_max3_f32 v{a}, v{a}, v{xs[3]}, v{xs[4]}", f"v_max3_f32 v{b}, v{b}, -v{xs[3]}, -v{xs[4]}"]
        def allred(op):
            return [f"v_permlane16_swap_b32 v{a0}, v{b0}", f"v_permlane16_swap_b32 v{a1}, v{b1}",
                    f"{op} v{a0}, v{a0}, v{b0}", f"{op} v{a1}, v{a1}, v{b1}",
                    f"v_permlane32_swap_b32 v{a0}, v{a1}", f"{op} v{c}, v{a0}, v{a1}"]
        bc = [f"v_mov_b32 v{d}, v{c}", f"v_permlane32_swap_b32 v{c}, v{d}", f"v_mov_b32 v{a0}, v{c}", f"v_mov_b32 v{a1}, v{d}",
              f"v_permlane16_swap_b32 v{a0}, v{c}", f"v_permlane16_swap_b32 v{a1}, v{d}"]
        L += allred("v_max_f32") + [f"v_mul_f32 v{c}, s{sL}, v{c}"] + bc
        sel = [(0, 0), (0, 0), (1, 1), (1, 1), (0, 1)]
        for k in range(5):
            lo, hi = sel[k]
            L.append(f"v_pk_fma_f32 v[{E+2*k}:{E+2*k+1}], v[{T+2*k}:{T+2*k+1}], s[{sL}:{sL+1}], v[{a0}:{a1}] op_sel:[0,0,{lo}] op_sel_hi:[1,1,{hi}] neg_lo:[0,0,1] neg_hi:[0,0,1]")
            L.append(f"v_pk_fma_f32 v[{E+10+2*k}:{E+10+2*k+1}], v[{T+2*k}:{T+2*k+1}], s[{sL}:{sL+1}], v[{c}:{d}] op_sel:[0,0,{lo}] op_sel_hi:[1,1,{hi}] neg_lo:[1,0,1] neg_hi:[1,0,1]")
        L += [f"v_exp_f32 v{E+k}, v{E+k}" for k in range(20)]
        L += [f"v_pk_add_f32 v[{T}:{T+1}], v[{E}:{E+1}], v[{E+2}:{E+3}]",
              f"v_pk_add_f32 v[{T+2}:{T+3}], v[{E+4}:{E+5}], v[{E+6}:{E+7}]",
              f"v_pk_add_f32 v[{T+4}:{T+5}], v[{E+10}:{E+11}], v[{E+12}:{E+13}]",
              f"v_pk_add_f32 v[{T+6}:{T+7}], v[{E+14}:{E+15}], v[{E+16}:{E+17}]",
              f"v_add_f32 v{a0}, v{T}, v{T+1}", f"v_add_f32 v{a1}, v{T+2}, v{T+3}",
              f"v_add_f32 v{b0}, v{T+4}, v{T+5}", f"v_add_f32 v{b1}, v{T+6}, v{T+7}",
              f"v_pk_add_f32 v[{a0}:{a1}], v[{a0}:{a1}], v[{E+8}:{E+9}]",
              f"v_pk_add_f32 v[{b0}:{b1}], v[{b0}:{b1}], v[{E+18}:{E+19}]"]
        L += allred("v_add_f32") + [f"v_rcp_f32 v{c}, v{c}"] + bc
        for k in range(5):
            lo, hi = sel[k]
            L.append(f"v_pk_mul_f32 v[{E+2*k}:{E+2*k+1}], v[{E+2*k}:{E+2*k+1}], v[{a0}:{a1}] op_sel:[0,{lo}] op_sel_hi:[1,{hi}]")
            L.append(f"v_pk_mul_f32 v[{E+10+2*k}:{E+10+2*k+1}], v[{E+10+2*k}:{E+10+2*k+1}], v[{c}:{d}] op_sel:[0,{lo}] op_sel_hi:[1,{hi}]")
        pairs = [[(0, 1), (2, 3), (8, 10), (11, 12), (13, 18)], [(4, 5), (6, 7), (9, 14), (15, 16), (17, 19)]]
        for h in range(2):
            for k, (u, w) in enumerate(pairs[h]):
                L.append(f"v_cvt_pk_bf16_f32 v{outs[h]+k}, v{E+u}, v{E+w}")
        return L
    snap = list(V.free)
    p(f"s_cmp_eq_u32 s{sTY}, 0\n s_cbranch_scc0 L_b_qtype")
    stamp(p, 4)
    p(f"""
    s_mul_i32 s{sT0}, s{sWR}, 48
    s_add_u32 s{sT0}, s{sT0}, s{sROW0}
    v_add_u32 v{t0}, s{sT0}, v{vI}
    v_mov_b32 v{t1}, 0x3f80
    """)
    on = EE[0]
    p(f"v_mov_b32 v{on+1}, 0")
    for nt in range(3):
        p(f"""
        v_cmp_gt_u32 vcc, 0x800, v{t0}
        v_cndmask_b32 v{on}, 0, v{t1}, vcc
        ds_write_b64 v{vRow}, v[{on}:{on+1}] offset:{16*RS*nt + 272}
        v_add_u32 v{t0}, 16, v{t0}
        """)
    vPh = V.alloc()
    p(f"v_mul_u32_u24 v{t0}, 24, v{vG}\n v_add_u32 v{vPh}, v{t0}, v{vRow}")
    streams = []
    for nt in range(3):
        T = TT[nt]
        L = softmax(nt, [T, T + 6])
        for h in range(2):
            o = T + 6*h; off = 16*RS*nt + 96*h
            L += [f"ds_write_b64 v{vPh}, v[{o}:{o+1}] offset:{off}", f"ds_write_b64 v{vPh}, v[{o+2}:{o+3}] offset:{off+8}",
                  f"ds_write_b32 v{vPh}, v{o+4} offset:{off+16}"]
        streams.append(L)
    for x in merge(streams): p(x)
    p("s_waitcnt lgkmcnt(0)\n s_barrier")
    for r, n in [(P, 24), (vRow, 1), (vFA, 16), (TTb, 38), (vPh, 1)] + [(x, 20) for x in EE] + [(y, 2) for x in SS for y in x]:
        V.release(r, n)
    vN = V.alloc()
    p(f"v_mov_b32 v{vN}, {DBG_CNT}\n global_load_dword v{vN}, v{vN}, s[{S_DBG}:{S_DBG+1}] sc1")
    stamp(p, 5)
    sHD, sHF = 95, 96
    vAa = V.alloc(); vB0 = V.alloc()
    p(f"""
    s_and_b32 s{sHD}, s{sWR}, 1
    s_lshr_b32 s{sHF}, s{sWR}, 1
    v_lshrrev_b32 v{t0}, 2, v{vI}
    v_lshl_add_u32 v{t0}, v{vG}, 3, v{t0}
    v_mul_u32_u24 v{t0}, {RS}, v{t0}
    v_add_u32 v{t0}, {PHI}, v{t0}
    v_and_b32 v{t1}, 3, v{vI}
    v_mul_u32_u24 v{t2}, 24, v{t1}
    s_mul_i32 s{sT0}, s{sHD}, 96
    v_add3_u32 v{vAa}, v{t0}, v{t2}, s{sT0}
    s_mul_i32 s{sT0}, s{sHD}, 40
    v_lshlrev_b32 v{t2}, 3, v{t1}
    v_add_u32 v{t2}, s{sT0}, v{t2}
    v_add_u32 v{vB0}, 192, v{t2}
    s_add_u32 s{sT0}, s{sT0}, 224
    v_mov_b32 v{t2}, 272
    v_mov_b32 v{t3}, s{sT0}
    v_cmp_eq_u32 vcc, s{sHD}, v{t1}
    v_cndmask_b32 v{t2}, v{t2}, v{t3}, vcc
    s_cmp_eq_u32 s{sHF}, 0
    s_cselect_b64 vcc, -1, 0
    v_cndmask_b32 v{t2}, v{t2}, v{vB0}, vcc
    v_add_u32 v{vB0}, v{t0}, v{t2}
    """)
    KF = V.alloc(48, align=4); KD = V.alloc(12, align=4)
    def kvreads(ks):
        b = KF + 16 * (ks % 3); off = 32 * RS * ks
        for h in range(2):
            p(f"ds_read_b64_tr_b16 v[{b+12+2*h}:{b+12+2*h+1}], v{vB0} offset:{off + 4*RS*h}")
        for mt in range(3):
            for h in range(2):
                p(f"ds_read_b64_tr_b16 v[{b+4*mt+2*h}:{b+4*mt+2*h+1}], v{vAa} offset:{off + 4*RS*h + 8*mt}")
    kvreads(0); kvreads(1)
    vP0 = V.alloc(); vP1 = V.alloc()
    p(f"""
    s_lshl_b32 s{sT0}, s{sRB}, 4
    s_add_u32 s{sT0}, s{sT0}, s{sHP}
    s_mul_i32 s{sT0}, s{sT0}, {PART_STRIDE}
    s_mul_i32 s{sT1}, s{sWR}, 1280
    s_add_u32 s{sT0}, s{sT0}, s{sT1}
    s_add_u32 s{sT0}, s{sT0}, {WS_PART}
    v_lshl_add_u32 v{vP0}, v{vLane}, 4, s{sT0}
    s_add_u32 s{sT0}, s{sT0}, 1024
    v_lshl_add_u32 v{vP1}, v{vLane}, 2, s{sT0}
    """)
    for ks in range(6):
        p(f"s_waitcnt lgkmcnt({8 if ks < 5 else 0})")
        b = KF + 16 * (ks % 3)
        for mt in range(3):
            c = "0" if ks == 0 else f"v[{KD+4*mt}:{KD+4*mt+3}]"
            p(f"v_mfma_f32_16x16x32_bf16 v[{KD+4*mt}:{KD+4*mt+3}], v[{b+4*mt}:{b+4*mt+3}], v[{b+12}:{b+15}], {c}")
        if ks + 2 < 6: kvreads(ks + 2)
    q = V.alloc(6, align=4)
    p(f"""
    v_cvt_pk_bf16_f32 v{q}, v{KD}, v{KD+1}
    v_cvt_pk_bf16_f32 v{q+1}, v{KD+2}, v{KD+3}
    v_cvt_pk_bf16_f32 v{q+2}, v{KD+4}, v{KD+5}
    v_cvt_pk_bf16_f32 v{q+3}, v{KD+6}, v{KD+7}
    v_cvt_pk_bf16_f32 v{q+4}, v{KD+8}, v{KD+9}
    buffer_store_dwordx4 v[{q}:{q+3}], v{vP0}, s[{SRD_WS}:{SRD_WS+3}], 0 offen sc1
    buffer_store_dword v{q+4}, v{vP1}, s[{SRD_WS}:{SRD_WS+3}], 0 offen sc1
    """)
    stamp(p, 6)
    wait_cleared("k", vN, 2)
    V.release(vN)
    V.release(KF, 48); V.release(KD, 12)
    L = V.alloc(56, align=4)
    A10 = V.alloc(10, align=2); mx = V.alloc()
    p(f"""
    s_mul_i32 s{sT0}, s{sRB}, {16*PART_STRIDE}
    v_subrev_u32 v{t0}, s{sT0}, v{vP0}
    v_subrev_u32 v{t1}, s{sT0}, v{vP1}
    s_mov_b32 s{sCNT}, 0
    """)
    def ld_small():
        p(f"s_mov_b32 s{sT0}, 0")
        for r in range(11):
            p(f"buffer_load_dword v{L+44+r}, v{t1}, s[{SRD_WS}:{SRD_WS+3}], s{sT0} offen sc1")
            if r < 10: p(f"s_add_u32 s{sT0}, s{sT0}, {16*PART_STRIDE}")
    def chk_small():
        p(f"v_max3_u32 v{mx}, v{L+44}, v{L+45}, v{L+46}")
        for r in range(3, 11, 2):
            p(f"v_max3_u32 v{mx}, v{mx}, v{L+44+r}, v{L+44+r+1}")
        p(f"v_cmp_eq_u32 vcc, -1, v{mx}")
    p.label("L_b_att1")
    ld_small()
    p(f"s_mov_b32 s{sT0}, 0")
    for r in range(11):
        p(f"buffer_load_dwordx4 v[{L+4*r}:{L+4*r+3}], v{t0}, s[{SRD_WS}:{SRD_WS+3}], s{sT0} offen sc1")
        if r < 10: p(f"s_add_u32 s{sT0}, s{sT0}, {16*PART_STRIDE}")
    p("s_waitcnt vmcnt(11)")
    chk_small()
    p("s_cbranch_vccz L_b_got1")
    p("s_waitcnt vmcnt(0)")
    p.label("L_b_spin1")
    p(f"s_add_u32 s{sCNT}, s{sCNT}, 1\n s_cmp_gt_u32 s{sCNT}, {SPIN_MAX}\n s_cbranch_scc1 L_b_got1")
    ld_small()
    p("s_waitcnt vmcnt(0)")
    chk_small()
    p("s_cbranch_vccnz L_b_spin1\n s_branch L_b_att1")
    p.label("L_b_got1")
    stamp(p, 7)
    sHI = 97
    p(f"s_mov_b32 s{sHI}, 0xffff0000")
    u = V.alloc(4, align=2)
    p(f"v_mov_b32 v{mx}, 0")
    for r in range(11):
        p(f"s_waitcnt vmcnt({10-r})")
        p(f"v_max3_u32 v{mx}, v{mx}, v{L+4*r}, v{L+4*r+1}")
        p(f"v_max3_u32 v{mx}, v{mx}, v{L+4*r+2}, v{L+4*r+3}")
        for k in range(5):
            src = L + 4*r + k if k < 4 else L + 44 + r
            if r == 0:
                p(f"v_lshlrev_b32 v{A10+2*k}, 16, v{src}")
                p(f"v_and_b32 v{A10+2*k+1}, s{sHI}, v{src}")
            else:
                uu = u + 2 * (k & 1)
                p(f"v_lshlrev_b32 v{uu}, 16, v{src}")
                p(f"v_and_b32 v{uu+1}, s{sHI}, v{src}")
                p(f"v_pk_add_f32 v[{A10+2*k}:{A10+2*k+1}], v[{A10+2*k}:{A10+2*k+1}], v[{uu}:{uu+1}]")
    p(f"""
    v_cmp_eq_u32 vcc, -1, v{mx}
    s_cbranch_vccz L_b_sum1
    s_add_u32 s{sCNT}, s{sCNT}, 1
    s_cmp_gt_u32 s{sCNT}, {SPIN_MAX}
    s_cbranch_scc0 L_b_att1
    """)
    p.label("L_b_sum1")
    for k in range(5):
        p(f"v_cvt_pk_bf16_f32 v{L+k}, v{A10+2*k}, v{A10+2*k+1}")
    p(f"""
    s_lshl_b32 s{sT1}, s{sWR}, 10
    s_add_u32 s{sT1}, s{sT1}, {AST}
    v_lshl_add_u32 v{t0}, v{vLane}, 4, s{sT1}
    ds_write_b128 v{t0}, v[{L}:{L+3}]
    s_lshl_b32 s{sT1}, s{sWR}, 8
    s_add_u32 s{sT1}, s{sT1}, {AST + 4096}
    v_lshl_add_u32 v{t1}, v{vLane}, 2, s{sT1}
    ds_write_b32 v{t1}, v{L+4}
    s_waitcnt lgkmcnt(0)
    s_barrier
    """)
    stamp(p, 8)
    p("s_branch L_b_final")
    V.free = list(snap)
    p.label("L_b_qtype")
    p("s_waitcnt lgkmcnt(0)\n s_barrier")
    vNq = V.alloc()
    p(f"v_mov_b32 v{vNq}, {DBG_CNT}\n global_load_dword v{vNq}, v{vNq}, s[{S_DBG}:{S_DBG+1}] sc1")
    stamp(p, 4)
    for x in merge([softmax(nt, [TT[nt], TT[nt] + 6]) for nt in range(3)]): p(x)
    for nt in range(3):
        p(f"v_mov_b32 v{TT[nt]+5}, 0\n v_mov_b32 v{TT[nt]+11}, 0")
    p(f"v_mov_b32 v{TT[2]+12}, 0\n v_mov_b32 v{TT[2]+13}, 0")
    stamp(p, 5)
    for r, n in [(P, 24), (vRow, 1), (vFA, 16)] + [(x, 20) for x in EE] + [(y, 2) for x in SS for y in x]:
        V.release(r, n)
    wait_cleared("q", vNq, 0)
    V.release(vNq)
    p("s_waitcnt vmcnt(0) lgkmcnt(0)\n s_barrier")
    stamp(p, 6)
    AF = V.alloc(32, align=4)
    p(f"""
    v_lshlrev_b32 v{t0}, 4, v{vLane}
    v_add_u32 v{t0}, {AST}, v{t0}
    v_lshlrev_b32 v{t1}, 2, v{vLane}
    v_add_u32 v{t1}, {AST+4096}, v{t1}
    """)
    for k in range(4):
        p(f"ds_read_b128 v[{AF+8*k}:{AF+8*k+3}], v{t0} offset:{1024*k}")
        p(f"ds_read_b32 v{AF+8*k+4}, v{t1} offset:{256*k}")
    for k in range(4):
        for z in (5, 6, 7): p(f"v_mov_b32 v{AF+8*k+z}, 0")
    vOa = V.alloc(); vOb = V.alloc()
    ODs = [V.alloc(16, align=4) for _ in range(3)]; ws_ = [V.alloc(8, align=4) for _ in range(3)]
    sEPS = 97
    p(f"""
    s_mov_b32 s{sEPS}, 0x358637bd
    s_mul_i32 s{sT0}, s{sRB}, 12
    s_mul_i32 s{sT1}, s{sWR}, 3
    s_add_u32 s{sT0}, s{sT0}, s{sT1}
    s_mul_i32 s{sT0}, s{sT0}, {O_TILE}
    s_mul_i32 s{sT1}, s{sHP}, 1280
    s_add_u32 s{sT0}, s{sT0}, s{sT1}
    s_add_u32 s{sT0}, s{sT0}, {WS_O}
    v_lshl_add_u32 v{vOa}, v{vLane}, 4, s{sT0}
    v_lshlrev_b32 v{t0}, 4, v{vI}
    v_lshl_add_u32 v{t0}, v{vG}, 3, v{t0}
    s_add_u32 s{sT0}, s{sT0}, 1024
    v_add_u32 v{vOb}, s{sT0}, v{t0}
    v_cmp_gt_u32 vcc, 16, v{vLane}
    s_mov_b32 s{sT2}, {O_TILE}
    s_mov_b32 s{sT3}, {2*O_TILE}
    s_waitcnt lgkmcnt(0)
    """)
    streams = []
    for nt in range(3):
        OD = ODs[nt]; w = ws_[nt]
        L = []
        for h in range(2):
            b = TT[nt] + 6*h
            a0_ = AF + 8*h; a1_ = AF + 8*(h + 2)
            o0 = OD + 8*h; o1 = o0 + 4
            L += [f"v_mfma_f32_16x16x32_bf16 v[{o0}:{o0+3}], v[{a0_}:{a0_+3}], v[{b}:{b+3}], 0",
                  f"v_mfma_f32_16x16x32_bf16 v[{o1}:{o1+3}], v[{a1_}:{a1_+3}], v[{b}:{b+3}], 0",
                  f"v_mfma_f32_16x16x32_bf16 v[{o0}:{o0+3}], v[{a0_+4}:{a0_+7}], v[{b+4}:{b+7}], v[{o0}:{o0+3}]",
                  f"v_mfma_f32_16x16x32_bf16 v[{o1}:{o1+3}], v[{a1_+4}:{a1_+7}], v[{b+4}:{b+7}], v[{o1}:{o1+3}]"]
        y = [w + 6, w + 7]
        L += [f"v_mov_b32 v{y[0]}, v{OD+4}", f"v_mov_b32 v{y[1]}, v{OD+12}",
              f"v_permlane16_swap_b32 v{OD+4}, v{y[0]}", f"v_permlane16_swap_b32 v{y[1]}, v{OD+12}",
              f"v_add_f32 v{y[0]}, s{sEPS}, v{y[0]}", f"v_add_f32 v{y[1]}, s{sEPS}, v{y[1]}",
              f"v_rcp_f32 v{y[0]}, v{y[0]}", f"v_rcp_f32 v{y[1]}, v{y[1]}"]
        for h in range(2):
            for r in range(0, 8, 2):
                a = OD + 8*h + r
                L.append(f"v_pk_mul_f32 v[{a}:{a+1}], v[{a}:{a+1}], v[{w+6}:{w+7}] op_sel:[0,{h}] op_sel_hi:[1,{h}]")
        L += [f"v_cvt_pk_bf16_f32 v{w}, v{OD}, v{OD+1}", f"v_cvt_pk_bf16_f32 v{w+1}, v{OD+2}, v{OD+3}",
              f"v_cvt_pk_bf16_f32 v{w+2}, v{OD+8}, v{OD+9}", f"v_cvt_pk_bf16_f32 v{w+3}, v{OD+10}, v{OD+11}",
              f"v_cvt_pk_bf16_f32 v{OD+4}, v{OD+4}, v{OD+5}", f"v_cvt_pk_bf16_f32 v{OD+5}, v{OD+6}, v{OD+7}",
              f"v_cvt_pk_bf16_f32 v{OD+12}, v{OD+12}, v{OD+13}", f"v_cvt_pk_bf16_f32 v{OD+13}, v{OD+14}, v{OD+15}",
              f"v_cndmask_b32 v{w+4}, v{OD+12}, v{OD+4}, vcc", f"v_cndmask_b32 v{w+5}, v{OD+13}, v{OD+5}, vcc"]
        streams.append(L)
    for x in merge(streams): p(x)
    so = ["0", f"s{sT2}", f"s{sT3}"]
    for nt in range(3):
        p(f"buffer_store_dwordx4 v[{ws_[nt]}:{ws_[nt]+3}], v{vOa}, s[{SRD_WS}:{SRD_WS+3}], {so[nt]} offen sc1")
    p("s_mov_b32 exec_hi, 0")
    for nt in range(3):
        p(f"buffer_store_dwordx2 v[{ws_[nt]+4}:{ws_[nt]+5}], v{vOb}, s[{SRD_WS}:{SRD_WS+3}], {so[nt]} offen sc1")
    p("s_mov_b32 exec_hi, -1")
    stamp(p, 7)
    p.label("L_b_final")
    V.free = [i > t3 for i in range(V.limit)]
    sRQ, sKH = 95, 96
    OF = V.alloc(80, align=4)
    vR = V.alloc(); vPl = V.alloc(); mx = V.alloc(); pv = V.alloc()
    p(f"""
    s_cmp_ge_u32 s2, 160
    s_cbranch_scc1 L_b_done
    s_lshr_b32 s{sT0}, s2, 3
    s_cmp_ge_u32 s{sT0}, 10
    s_cselect_b32 s{sT1}, 1, 0
    s_and_b32 s{sT2}, s2, 7
    s_lshl_b32 s{sT2}, s{sT2}, 1
    s_add_u32 s{sRT}, s{sT2}, s{sT1}
    s_mul_i32 s{sT1}, s{sT1}, 10
    s_sub_u32 s{sCG}, s{sT0}, s{sT1}
    s_and_b32 s{sRQ}, s{sW}, 3
    s_lshr_b32 s{sKH}, s{sW}, 2
    s_lshl_b32 s{sT0}, s{sRT}, 3
    s_lshl_b32 s{sT1}, s{sRQ}, 1
    s_add_u32 s{sT0}, s{sT0}, s{sT1}
    s_mul_i32 s{sT0}, s{sT0}, {O_TILE}
    s_mul_i32 s{sT1}, s{sKH}, 10240
    s_add_u32 s{sT0}, s{sT0}, s{sT1}
    s_add_u32 s{sT0}, s{sT0}, {WS_O}
    v_lshl_add_u32 v{vR}, v{vLane}, 4, s{sT0}
    v_lshrrev_b32 v{t0}, 5, v{vLane}
    v_mul_u32_u24 v{t0}, {O_TILE}, v{t0}
    v_bfe_u32 v{t1}, v{vLane}, 2, 3
    v_mul_u32_u24 v{t1}, 1280, v{t1}
    v_and_b32 v{t2}, 3, v{vLane}
    v_lshlrev_b32 v{t2}, 6, v{t2}
    v_add3_u32 v{vPl}, v{t0}, v{t1}, v{t2}
    s_add_u32 s{sT0}, s{sT0}, {1024 + 60}
    v_add_u32 v{vPl}, s{sT0}, v{vPl}
    s_mov_b32 s{sCNT}, 0
    """)
    vA = V.alloc(4, align=1)
    p(f"""
    v_lshrrev_b32 v{t2}, 2, v{vI}
    v_bfe_u32 v{t3}, v{t2}, 1, 1
    v_and_b32 v{t0}, 1, v{vG}
    v_lshl_add_u32 v{t3}, v{t0}, 1, v{t3}        ; psi
    v_bfe_u32 v{t0}, v{vI}, 1, 1
    v_lshlrev_b32 v{t0}, 4, v{t0}
    v_and_b32 v{t1}, 1, v{vI}
    v_lshl_add_u32 v{t0}, v{t1}, 3, v{t0}
    v_lshl_add_u32 v{t2}, v{vG}, 3, v{t2}
    v_lshl_add_u32 v{t0}, v{t2}, 7, v{t0}
    s_mul_i32 s{sT1}, s{sKH}, {320*128}
    v_add_u32 v{t0}, s{sT1}, v{t0}
    """)
    for mt in range(4):
        p(f"v_xor_b32 v{t1}, {mt}, v{t3}\n v_lshl_add_u32 v{vA+mt}, v{t1}, 5, v{t0}")
    FAc = V.alloc(32, align=4); WA = [V.alloc(16, align=4), V.alloc(16, align=4)]
    def wreads(ks):
        b = WA[ks & 1]
        return [f"ds_read_b64_tr_b16 v[{b+4*mt+2*h}:{b+4*mt+2*h+1}], v{vA+mt} offset:{WO_IMG + 4096*ks + 512*h}" for mt in range(4) for h in range(2)]
    p.label("L_b_att2")
    p(f"buffer_load_dword v{pv}, v{vPl}, s[{SRD_WS}:{SRD_WS+3}], 0 offen sc1")
    for ks in range(10):
        for nt in range(2):
            p(f"s_mov_b32 s{sT1}, {O_TILE*nt + 4096*(ks >> 2)}")
            p(f"buffer_load_dwordx4 v[{OF+8*ks+4*nt}:{OF+8*ks+4*nt+3}], v{vR}, s[{SRD_WS}:{SRD_WS+3}], s{sT1} offen offset:{1024*(ks & 3)} sc1")
    for x in wreads(0): p(x)
    p(f"""
    s_waitcnt vmcnt(20)
    v_cmp_eq_u32 vcc, -1, v{pv}
    s_cbranch_vccz L_b_got2
    s_waitcnt vmcnt(0)
    """)
    p.label("L_b_spin2")
    p(f"""
    s_add_u32 s{sCNT}, s{sCNT}, 1
    s_cmp_gt_u32 s{sCNT}, {SPIN_MAX}
    s_cbranch_scc1 L_b_got2
    buffer_load_dword v{pv}, v{vPl}, s[{SRD_WS}:{SRD_WS+3}], 0 offen sc1
    s_waitcnt vmcnt(0)
    v_cmp_eq_u32 vcc, -1, v{pv}
    s_cbranch_vccnz L_b_spin2
    s_waitcnt lgkmcnt(0)
    s_branch L_b_att2
    """)
    p.label("L_b_got2")
    dbgmax(p, 12, t2, t3, sW)
    stamp(p, 9)
    p(f"v_mov_b32 v{mx}, 0")
    for ks in range(10):
        nxt = wreads(ks + 1) if ks < 9 else []
        p(f"s_waitcnt vmcnt({2*(9-ks)}) lgkmcnt(0)")
        k = 0
        for mt in range(4):
            for nt in range(2):
                a = FAc + 16*nt + 4*mt
                c = "0" if ks == 0 else f"v[{a}:{a+3}]"
                p(f"v_mfma_f32_16x16x32_bf16 v[{a}:{a+3}], v[{WA[ks&1]+4*mt}:{WA[ks&1]+4*mt+3}], v[{OF+8*ks+4*nt}:{OF+8*ks+4*nt+3}], {c}")
                if k < 4 and nxt:
                    p(nxt[2*k]); p(nxt[2*k+1])
                if k >= 4:
                    o = OF + 8*ks + 2*(k - 4)
                    p(f"v_max3_u32 v{mx}, v{mx}, v{o}, v{o+1}")
                k += 1
    p(f"""
    v_cmp_eq_u32 vcc, -1, v{mx}
    s_cbranch_vccz L_b_ok2
    s_add_u32 s{sCNT}, s{sCNT}, 1
    s_cmp_gt_u32 s{sCNT}, {SPIN_MAX}
    s_cbranch_scc0 L_b_att2
    """)
    p.label("L_b_ok2")
    stamp(p, 10)
    p(f"""
    s_lshl_b32 s{sT0}, s{sW}, 12
    s_add_u32 s{sT0}, s{sT0}, {RED}
    v_lshl_add_u32 v{t0}, v{vLane}, 4, s{sT0}
    s_xor_b32 s{sT1}, s{sW}, 4
    s_lshl_b32 s{sT1}, s{sT1}, 12
    s_add_u32 s{sT1}, s{sT1}, {RED}
    v_lshl_add_u32 v{t1}, v{vLane}, 4, s{sT1}
    s_lshl_b32 s{sT0}, s{sRT}, 7
    s_lshl_b32 s{sT1}, s{sRQ}, 5
    s_add_u32 s{sT0}, s{sT0}, s{sT1}
    s_lshl_b32 s{sT1}, s{sKH}, 4
    s_add_u32 s{sT0}, s{sT0}, s{sT1}
    v_add_u32 v{t2}, s{sT0}, v{vI}
    v_mul_u32_u24 v{t2}, 2560, v{t2}
    v_and_b32 v{t3}, 1, v{vG}
    v_lshl_add_u32 v{t2}, v{t3}, 5, v{t2}
    v_lshrrev_b32 v{t3}, 1, v{vG}
    v_lshl_add_u32 v{t2}, v{t3}, 4, v{t2}
    s_lshl_b32 s{sT0}, s{sCG}, 7
    s_add_u32 s{sT0}, s{sT0}, 1280
    v_add_u32 v{t2}, s{sT0}, v{t2}
    s_cmp_eq_u32 s{sKH}, 0
    s_cbranch_scc1 L_b_red0
    """)
    def finish(keep):
        p("s_waitcnt lgkmcnt(0)\n s_barrier")
        for k in range(4):
            p(f"ds_read_b128 v[{OF+4*k}:{OF+4*k+3}], v{t1} offset:{1024*k}")
        for a2 in range(2):
            for mt in (2*a2, 2*a2 + 1):
                a = keep + 4*mt; b = OF + 4*mt
                p(f"s_waitcnt lgkmcnt({3-mt})")
                p(f"v_pk_add_f32 v[{a}:{a+1}], v[{a}:{a+1}], v[{b}:{b+1}]")
                p(f"v_pk_add_f32 v[{a+2}:{a+3}], v[{a+2}:{a+3}], v[{b+2}:{b+3}]")
            A = keep + 8*a2; B = A + 4; d = OF + 16 + 4*a2
            p(f"""
            v_cvt_pk_bf16_f32 v{d}, v{A}, v{A+1}
            v_cvt_pk_bf16_f32 v{d+1}, v{A+2}, v{A+3}
            v_cvt_pk_bf16_f32 v{d+2}, v{B}, v{B+1}
            v_cvt_pk_bf16_f32 v{d+3}, v{B+2}, v{B+3}
            v_permlane16_swap_b32 v{d}, v{d+2}
            v_permlane16_swap_b32 v{d+1}, v{d+3}
            buffer_store_dwordx4 v[{d}:{d+3}], v{t2}, s[{SRD_O}:{SRD_O+3}], 0 offen offset:{64*a2}
            """)
    for k in range(4):
        p(f"ds_write_b128 v{t0}, v[{FAc+4*k}:{FAc+4*k+3}] offset:{1024*k}")
    finish(FAc + 16)
    p("s_branch L_b_done")
    p.label("L_b_red0")
    for k in range(4):
        p(f"ds_write_b128 v{t0}, v[{FAc+16+4*k}:{FAc+16+4*k+3}] offset:{1024*k}")
    finish(FAc)
    p.label("L_b_done")
    dbgmax(p, 9, t2, t3, sW)
    stamp(p, 11)
    if common.DIAG:
        p('s_waitcnt vmcnt(0)')
        stamp(p, 12)
        stamps_flush(p, t0, t1)
    return V
```

```python
from common import *
import common

REG = 20416
K1OFF = 4224
UOFF = 8384
U1D = 4576
TB = 8448 + 128

def cmul(p, z, x, y):
    p(f"v_pk_mul_f32 v[{z}:{z+1}], v[{x}:{x+1}], v[{y}:{y+1}] op_sel:[0,0] op_sel_hi:[1,0]")
    p(f"v_fma_f32 v{z}, -v{x+1}, v{y+1}, v{z}")
    p(f"v_fma_f32 v{z+1}, v{x}, v{y+1}, v{z+1}")

def exp_bf16(p, V, dst, x, sL, sLlo, sLn2):
    t = V.alloc(); e = V.alloc()
    p(f"v_mul_f32 v{t}, s{sL}, v{x}")
    p(f"v_fma_f32 v{e}, v{x}, s{sL}, -v{t}")
    p(f"v_fma_f32 v{e}, v{x}, s{sLlo}, v{e}")
    p(f"v_exp_f32 v{t}, v{t}")
    p(f"v_mul_f32 v{e}, s{sLn2}, v{e}")
    p(f"v_fma_f32 v{t}, v{t}, v{e}, v{t}")
    p(f"v_cvt_pk_bf16_f32 v{t}, v{t}, v{t}")
    p(f"v_lshlrev_b32 v{dst}, 16, v{t}")
    V.release(t); V.release(e)

def gen_part_a(p, final_hook=None):
    V = VAlloc(VGPRS - 2, start=1)
    sA, sJ, sCG, sW, sC = 32, 33, 34, 35, 36
    sREG = 37
    sL, sLlo, sLn2 = 38, 39, 40
    sSEL = 41
    SRD_U = 44; SRD_O = 48
    sT0, sT1 = 52, 53
    p(f"""
    s_sub_u32 s{sA}, s2, {N_B}
    s_and_b32 s{sJ}, s{sA}, 7
    s_lshr_b32 s{sT0}, s{sA}, 3
    s_mul_i32 s{sCG}, s{sJ}, 10
    s_add_u32 s{sCG}, s{sCG}, s{sT0}
    """)
    vLane = V.alloc(name="lane")
    vT = V.alloc()
    p(f"""
    v_lshrrev_b32 v{vT}, 6, v0
    v_and_b32 v{vLane}, 63, v0
    v_readfirstlane_b32 s{sW}, v{vT}
    s_cmp_ge_u32 s{sW}, 8
    s_cbranch_scc1 L_end
    s_mov_b32 s{sL}, {LOG2E:#x}
    s_mov_b32 s{sLlo}, {LOG2E_LO:#x}
    s_mov_b32 s{sLn2}, {LN2:#x}
    s_mov_b32 s{sSEL}, 0x07060100
    s_lshl_b32 s{sC}, s{sCG}, 3
    s_add_u32 s{sC}, s{sC}, s{sW}
    s_mul_i32 s{sREG}, s{sW}, {REG}
    """)
    p("s_waitcnt lgkmcnt(0)")
    srd(p, SRD_U, S_U, 2048 * 1280)
    srd(p, SRD_O, S_OUT, 2048 * 2560)
    if 'noupf' not in common.OPT:
        vPf = V.alloc()
        p(f"""
        s_lshr_b32 s{sT0}, s{sA}, 3
        s_mul_i32 s{sT0}, s{sT0}, 205
        v_lshrrev_b32 v{vPf}, 1, v0
        v_add_u32 v{vPf}, s{sT0}, v{vPf}
        v_mul_u32_u24 v{vPf}, 1280, v{vPf}
        s_mul_i32 s{sT0}, s{sJ}, 160
        s_and_b32 s{sT0}, s{sT0}, 0xffffff80
        v_and_b32 v{vT}, 1, v0
        v_lshlrev_b32 v{vT}, 7, v{vT}
        v_add3_u32 v{vPf}, v{vPf}, v{vT}, s{sT0}
        v_cmp_gt_u32 vcc, 410, v0
        s_and_saveexec_b64 s[60:61], vcc
        s_cbranch_execz L_a_nopf
        buffer_load_dword v{VGPRS-2}, v{vPf}, s[{SRD_U}:{SRD_U+3}], 0 offen
        """)
        p.label("L_a_nopf")
        p("s_mov_b64 exec, s[60:61]")
        V.release(vPf)
    vLA = V.alloc(); vAI = V.alloc(); vCR = V.alloc(); vCI = V.alloc(); vDT = V.alloc(); vD = V.alloc(name="D")
    vA = V.alloc()
    p(f"""
    s_lshl_b32 s{sT0}, s{sC}, 8
    v_lshl_add_u32 v{vA}, v{vLane}, 2, s{sT0}
    s_lshl_b32 s{sT1}, s{sC}, 1
    v_mov_b32 v{vT}, s{sT1}
    global_load_ushort v{vDT}, v{vT}, s[{S_LDT}:{S_LDT+1}]
    global_load_dword v{vLA}, v{vA}, s[{S_LAR}:{S_LAR+1}]
    global_load_dword v{vAI}, v{vA}, s[{S_AIM}:{S_AIM+1}]
    global_load_dword v{vCR}, v{vA}, s[{S_CRE}:{S_CRE+1}]
    global_load_dword v{vCI}, v{vA}, s[{S_CIM}:{S_CIM+1}]
    global_load_ushort v{vD}, v{vT}, s[{S_DSK}:{S_DSK+1}]
    """)
    V.release(vA)
    vU = V.alloc(20, align=4, name="U")
    vUa = V.alloc(); vUb = V.alloc()
    p(f"""
    v_mul_u32_u24 v{vUa}, 5120, v0
    s_lshl_b32 s{sT0}, s{sCG}, 4
    v_add_u32 v{vUa}, s{sT0}, v{vUa}
    v_subrev_u32 v{vUb}, 1280, v{vUa}
    """)
    uloads = [f"buffer_load_dwordx4 v[{vU}:{vU+3}], v{vUb}, s[{SRD_U}:{SRD_U+3}], 0 offen"] + \
             [f"buffer_load_dwordx4 v[{vU+4+4*k}:{vU+7+4*k}], v{vUa}, s[{SRD_U}:{SRD_U+3}], 0 offen offset:{1280*k}" for k in range(4)]
    stamp(p)
    vWA = V.alloc(16, align=1)
    vL4 = V.alloc()
    p(f"v_lshlrev_b32 v{vL4}, 2, v{vLane}")
    for i in range(16):
        p(f"v_xor_b32 v{vWA+i}, {i << 4}, v{vL4}")
        p(f"v_add_u32 v{vWA+i}, s{sREG}, v{vWA+i}")
    vRA = V.alloc(4, align=1)
    vI = V.alloc(); vG = V.alloc(name="g"); vN = vI
    p(f"""
    v_and_b32 v{vI}, 15, v{vLane}
    v_lshrrev_b32 v{vG}, 4, v{vLane}
    """)
    for ks in range(4):
        p(f"""
        v_add_u32 v{vT}, {4*ks}, v{vG}
        v_xor_b32 v{vT}, v{vT}, v{vI}
        v_lshlrev_b32 v{vT}, 4, v{vT}
        v_lshl_add_u32 v{vT}, v{vI}, 8, v{vT}
        v_add_u32 v{vRA+ks}, s{sREG}, v{vT}
        """)
    V.release(vL4)
    p("s_waitcnt vmcnt(0)")
    p(f"v_lshlrev_b32 v{vDT}, 16, v{vDT}")
    exp_bf16(p, V, vDT, vDT, sL, sLlo, sLn2)
    p(f"v_lshlrev_b32 v{vD}, 16, v{vD}")
    stamp(p)
    vAcc = V.alloc(12, align=4, name="acc")
    vAl = V.alloc(); vBe = V.alloc()
    w1 = V.alloc(2); w2 = V.alloc(2); w4 = V.alloc(2); w8 = V.alloc(2); w128 = V.alloc(2)
    G = [V.alloc(2), V.alloc(2)]
    X = [V.alloc(2), V.alloc(2)]
    Y = [V.alloc(2), V.alloc(2)]
    tmp = [V.alloc() for _ in range(4)]
    fr = V.alloc(16, align=4)
    tc = [0]
    def store(val, row, tile, negim=False):
        t = tmp[tc[0] % 4]; tc[0] += 1
        p(f"v_cvt_pk_bf16_f32 v{t}, v{val}, {'-' if negim else ''}v{val+1}")
        p(f"ds_write_b32 v{vWA+row}, v{t} offset:{tile*4096 + row*256}")
    def cexp(dst, pw):
        a, b = tmp[0], tmp[1]
        p(f"""
        v_mul_f32 v{a}, {float(pw)}, v{vAl}
        v_mul_f32 v{b}, {float(pw)}, v{vBe}
        """ if pw in (1, 2, 4) else f"""
        v_mul_f32 v{a}, {hex(f32bits(pw))}, v{vAl}
        v_mul_f32 v{b}, {hex(f32bits(pw))}, v{vBe}
        """)
        p(f"""
        v_fract_f32 v{b}, v{b}
        v_exp_f32 v{a}, v{a}
        v_cos_f32 v{dst}, v{b}
        v_sin_f32 v{dst+1}, v{b}
        v_mul_f32 v{dst}, v{dst}, v{a}
        v_mul_f32 v{dst+1}, v{dst+1}, v{a}
        """)
    sPS = 58
    for k in range(12): p(f"v_mov_b32 v{vAcc+k}, 0")
    p(f"s_mov_b32 s{sPS}, 0")
    p.label("L_a_pass")
    ul = [0]
    def uload():
        k = ul[0]; ul[0] += 1
        if 'ulate' in common.OPT: return
        if 'up1' in common.OPT:
            p(f"s_cmp_eq_u32 s{sPS}, 0\n s_cbranch_scc1 L_a_nou{k}")
            p(uloads[k])
            p.label(f"L_a_nou{k}")
            return
        p(f"s_cmp_lg_u32 s{sPS}, 0\n s_cbranch_scc1 L_a_nou{k}")
        p(uloads[k])
        p.label(f"L_a_nou{k}")
    t0, t1, t2, t3 = tmp
    p(f"""
    v_lshrrev_b32 v{t0}, s{sPS}, v{vLA}
    v_lshrrev_b32 v{t1}, s{sPS}, v{vAI}
    v_lshrrev_b32 v{t2}, s{sPS}, v{vCR}
    v_lshrrev_b32 v{t3}, s{sPS}, v{vCI}
    v_lshlrev_b32 v{t0}, 16, v{t0}
    v_lshlrev_b32 v{t1}, 16, v{t1}
    v_lshlrev_b32 v{t2}, 16, v{t2}
    v_lshlrev_b32 v{t3}, 16, v{t3}
    """)
    exp_bf16(p, V, t0, t0, sL, sLlo, sLn2)
    p(f"""
    v_mul_f32 v{t0}, v{t0}, v{vDT}
    v_mul_f32 v{t1}, v{t1}, v{vDT}
    v_mul_f32 v{vAl}, s{sL}, v{t0}
    v_mul_f32 v{vBe}, 0.15915494, v{t1}
    v_sub_f32 v{vAl}, 0, v{vAl}
    v_mul_f32 v{t2}, v{t2}, v{vDT}
    v_mul_f32 v{t3}, v{t3}, v{vDT}
    v_add_f32 v{G[0]}, v{t2}, v{t2}
    v_add_f32 v{G[0]+1}, v{t3}, v{t3}
    """)
    uload()
    cexp(w1, 1); cexp(w8, 8); cexp(w128, 128)
    cmul(p, w2, w1, w1); cmul(p, w4, w2, w2)
    p(f"v_mov_b32 v{tmp[0]}, 0x00003f80")
    p(f"ds_write_b32 v{vWA}, v{tmp[0]}")
    tc[0] = 1
    store(w8, 1, 0, True)
    cur = w8
    for j in range(2, 16):
        nx = X[j % 2]
        cmul(p, nx, cur, w8)
        store(nx, j, 0, True)
        cur = nx
    uload()
    g = G[0]
    for t in range(17):
        if t > 0:
            ng = G[t % 2]
            cmul(p, ng, g, w128)
            g = ng
        if t < 2:
            store(g, 8*t, 1)
            cur = g
            for k in range(1, 8):
                nx = Y[k % 2]; cmul(p, nx, cur, w1); store(nx, 8*t + k, 1); cur = nx
            uload()
        elif t < 4:
            store(g, 4*(t-2), 2)
            cur = g
            for k in range(1, 4):
                nx = Y[k % 2]; cmul(p, nx, cur, w2); store(nx, 4*(t-2) + k, 2); cur = nx
        elif t < 8:
            store(g, 8 + 2*(t-4), 2)
            cmul(p, Y[0], g, w4); store(Y[0], 8 + 2*(t-4) + 1, 2)
        else:
            store(g, t - 8, 3)
        if t == 7: uload()
    fr2 = V.alloc(48, align=4)
    bufs = [fr, fr2, fr2 + 16, fr2 + 32]
    for ks in range(4):
        for t in range(4):
            p(f"ds_read_b128 v[{bufs[ks]+4*t}:{bufs[ks]+4*t+3}], v{vRA+ks} offset:{4096*t}")
    for ks in range(4):
        p(f"s_waitcnt lgkmcnt({4*(3-ks)})")
        for t in range(3):
            b = bufs[ks]
            p(f"v_mfma_f32_16x16x32_bf16 v[{vAcc+4*t}:{vAcc+4*t+3}], v[{b+4*(t+1)}:{b+4*(t+1)+3}], v[{b}:{b+3}], v[{vAcc+4*t}:{vAcc+4*t+3}]")
    p(f"s_add_u32 s{sPS}, s{sPS}, 16\n s_cmp_le_u32 s{sPS}, 16\n s_cbranch_scc1 L_a_pass")
    if 'ulate' in common.OPT:
        for x in uloads: p(x)
    V.release(fr2, 48); V.release(vUa); V.release(vUb)
    for r in (vAl, vBe, vLA, vAI, vCR, vCI, vDT): V.release(r)
    for r in (w1, w2, w4, w8, w128, G[0], G[1], X[0], X[1], Y[0], Y[1]): V.release(r, 2)
    V.release(vWA, 16); V.release(vRA, 4)
    stamp(p)
    d = fr
    a0 = V.alloc(); a1 = V.alloc(); a2 = V.alloc(); a3 = V.alloc()
    t0, t1, t2, t3 = tmp
    p(f"""
    v_and_b32 v{t0}, 1, v{vG}
    v_lshrrev_b32 v{t1}, 1, v{vG}
    v_lshlrev_b32 v{a0}, 5, v{vI}
    v_lshl_add_u32 v{a0}, v{t0}, 4, v{a0}
    v_lshl_add_u32 v{a0}, v{t1}, 9, v{a0}
    v_add_u32 v{a0}, s{sREG}, v{a0}
    v_lshlrev_b32 v{a1}, 4, v{vI}
    v_lshl_add_u32 v{a1}, v{vG}, 8, v{a1}
    v_add_u32 v{a1}, 1024, v{a1}
    v_add_u32 v{a2}, 8, v{a1}
    v_lshlrev_b32 v{t2}, 3, v{vI}
    v_lshl_add_u32 v{t2}, v{t0}, 8, v{t2}
    v_add_u32 v{t2}, 1536, v{t2}
    v_add_u32 v{t3}, 128, v{t2}
    v_cmp_gt_u32 vcc, 2, v{vG}
    v_cndmask_b32 v{a1}, v{t2}, v{a1}, vcc
    v_cndmask_b32 v{a2}, v{t3}, v{a2}, vcc
    v_add_u32 v{a1}, s{sREG}, v{a1}
    v_add_u32 v{a2}, s{sREG}, v{a2}
    ; tile2: 4*(512 + j + 64 g) + 64 r
    v_lshlrev_b32 v{a3}, 2, v{vI}
    v_lshl_add_u32 v{a3}, v{vG}, 8, v{a3}
    v_add_u32 v{a3}, s{sREG}, v{a3}
    v_mov_b32 v{t0}, 0
    v_lshl_add_u32 v{t1}, v{vLane}, 2, s{sREG}
    """)
    p(f"""
    s_mov_b32 exec_lo, -1
    s_mov_b32 exec_hi, 0
    ds_write_b32 v{t1}, v{t0} offset:{TB-128}
    s_mov_b64 exec, -1
    """)
    for k in range(12):
        p(f"v_cvt_pk_bf16_f32 v{d+k}, v{vAcc+k}, v{vAcc+k}")
    p(f"ds_write_b128 v{a0}, v[{d}:{d+3}] offset:{TB}")
    p(f"ds_write_b64 v{a1}, v[{d+4}:{d+5}] offset:{TB}")
    p(f"ds_write_b64 v{a2}, v[{d+6}:{d+7}] offset:{TB}")
    for r in range(4):
        p(f"ds_write_b32 v{a3}, v{d+8+r} offset:{TB + 4*512 + 64*r}")
    V.release(vAcc, 12)
    for r in (a0, a1, a2, a3): V.release(r)
    e3 = V.alloc(4, align=2); e2 = V.alloc(4, align=2); e1 = V.alloc(6, align=4); e0 = V.alloc(10, align=4)
    ra = V.alloc(); cc = V.alloc(); sel = V.alloc()
    K0 = [V.alloc() for _ in range(5)]
    W = V.alloc(8, align=4)
    p(f"""
    v_lshl_add_u32 v{ra}, v{vLane}, 2, s{sREG}
    ds_read2_b32 v[{e3}:{e3+1}], v{ra} offset0:0 offset1:1
    """)
    p.items.pop()
    p(f"""
    v_add_u32 v{t0}, {TB + 4*(383+129)}, v{ra}
    ds_read2_b32 v[{e3}:{e3+1}], v{t0} offset0:0 offset1:1
    ds_read2_b32 v[{e3+2}:{e3+3}], v{t0} offset0:64 offset1:65
    v_lshl_add_u32 v{t0}, v{vLane}, 3, s{sREG}
    v_add_u32 v{t0}, {TB + 4*(254+130)}, v{t0}
    ds_read2_b32 v[{e2}:{e2+1}], v{t0} offset0:0 offset1:1
    ds_read_b32 v{e2+2}, v{t0} offset:8
    v_lshl_add_u32 v{t0}, v{vLane}, 4, s{sREG}
    v_add_u32 v{t0}, {TB + 4*(124+132)}, v{t0}
    ds_read_b128 v[{e1}:{e1+3}], v{t0}
    ds_read_b32 v{e1+4}, v{t0} offset:16
    v_lshl_add_u32 v{t0}, v{vLane}, 5, s{sREG}
    v_add_u32 v{t0}, {TB - 32 - 96}, v{t0}
    ds_read_b128 v[{e0}:{e0+3}], v{t0}
    ds_read_b128 v[{e0+4}:{e0+7}], v{t0} offset:16
    ds_read_b32 v{e0+8}, v{t0} offset:32
    v_lshlrev_b32 v{t1}, 3, v{vLane}
    v_subrev_u32 v{t1}, 23, v{t1}
    v_min_i32 v{t1}, 256, v{t1}
    v_lshlrev_b32 v{t1}, 2, v{t1}
    v_add_u32 v{t1}, {TB}, v{t1}
    v_add_u32 v{t1}, s{sREG}, v{t1}
    ds_read_b32 v{e0+9}, v{t1}
    v_lshlrev_b32 v{t0}, 4, v{vLane}
    v_sub_u32 v{t0}, s{sREG}, v{t0}
    v_add_u32 v{K0[0]}, {4096 - 16*129}, v{t0}
    v_add_u32 v{K0[1]}, {4096 - 16*193}, v{t0}
    v_add_u32 v{K0[2]}, {4096 - 16*65}, v{t0}
    v_add_u32 v{K0[3]}, {4096 - 16*33}, v{t0}
    v_add_u32 v{K0[4]}, {4096 + 16*3}, v{t0}
    v_and_b32 v{t0}, 1, v{vLane}
    v_mov_b32 v{t1}, 0x03020100
    v_mov_b32 v{t2}, 0x07060100
    v_cmp_eq_u32 vcc, 1, v{t0}
    v_cndmask_b32 v{sel}, v{t2}, v{t1}, vcc
    s_waitcnt lgkmcnt(0)
    """)
    def mixs(dst, lo, hi):
        return f"v_perm_b32 v{dst}, v{hi}, v{lo}, s{sSEL}"
    def kput(addr, A, B, C, D, E):
        for k, x in enumerate((A, B, C, D)): p(x(W + k))
        for k, x in enumerate((B, C, D, E)): p(x(W + 4 + k))
        p(f"ds_write_b128 v{addr}, v[{W}:{W+3}]")
        p(f"ds_write_b128 v{addr}, v[{W+4}:{W+7}] offset:{K1OFF}")
    mv = lambda r: (lambda d: f"v_mov_b32 v{d}, v{r}")
    mx = lambda lo, hi: (lambda d: mixs(d, lo, hi))
    for h in range(2):
        a, b = e3 + 2*h, e3 + 2*h + 1
        pm = lambda d, a=a, b=b: f"v_perm_b32 v{d}, v{a}, v{b}, v{sel}"
        kput(K0[h], mv(b), mv(b), pm, mv(a), mv(a))
    kput(K0[2], mv(e2+2), mv(e2+2), mv(e2+1), mx(e2+1, e2), mv(e2))
    p("s_mov_b32 exec_hi, 0")
    kput(K0[3], mv(e1+4), mx(e1+4, e1+3), mv(e1+2), mx(e1+2, e1+1), mv(e1))
    p("s_mov_b32 exec_hi, 15")
    kput(K0[4], mx(e0+9, e0+8), mx(e0+7, e0+6), mx(e0+5, e0+4), mx(e0+3, e0+2), mx(e0+1, e0))
    p("s_mov_b64 exec, -1")
    for r, n in ((e3, 4), (e2, 4), (e1, 6), (e0, 10), (ra, 1), (cc, 1), (sel, 1), (W, 8)): V.release(r, n)
    for r in K0: V.release(r)
    z = V.alloc(4, align=4)
    p(f"""
    v_mov_b32 v{z}, 0
    v_mov_b32 v{z+1}, 0
    v_mov_b32 v{z+2}, 0
    v_mov_b32 v{z+3}, 0
    v_lshl_add_u32 v{t0}, v{vLane}, 4, s{sREG}
    s_waitcnt lgkmcnt(0)
    s_mov_b32 exec_lo, 0xfffffff
    s_mov_b32 exec_hi, 0
    ds_write_b128 v{t0}, v[{z}:{z+3}] offset:{UOFF}
    ds_write_b128 v{t0}, v[{z}:{z+3}] offset:{UOFF+U1D}
    s_mov_b64 exec, -1
    s_waitcnt vmcnt(0) lgkmcnt(0)
    s_barrier
    """)
    V.release(z, 4)
    stamp(p)
    q = V.alloc(8, align=2)
    sS0, sS1 = 54, 55
    p(f"""
    s_mov_b32 s{sS0}, 0x05040100
    s_mov_b32 s{sS1}, 0x07060302
    v_lshlrev_b32 v{t0}, 3, v0
    v_add_u32 v{t0}, {UOFF + 448}, v{t0}
    """)
    for ch in range(8):
        j = ch >> 1; s = sS1 if ch & 1 else sS0
        b = q + 4 * (ch & 1)
        R = lambda row: vU + 4 * (row + 1) + j
        p(f"""
        v_perm_b32 v{b}, v{R(1)}, v{R(0)}, s{s}
        v_perm_b32 v{b+1}, v{R(3)}, v{R(2)}, s{s}
        v_perm_b32 v{b+2}, v{R(0)}, v{R(-1)}, s{s}
        v_perm_b32 v{b+3}, v{R(2)}, v{R(1)}, s{s}
        ds_write_b64 v{t0}, v[{b}:{b+1}]
        ds_write_b64 v{t0}, v[{b+2}:{b+3}] offset:{U1D}
        """)
        if ch < 7: p(f"v_add_u32 v{t0}, {REG}, v{t0}")
    V.release(q, 8); V.release(vU, 20); V.release(fr, 16)
    p("s_waitcnt lgkmcnt(0)\n s_barrier")
    stamp(p)
    acc = V.alloc(32, align=4); A = V.alloc(32, align=4); B = V.alloc(32, align=4)
    vB = V.alloc(); vB0 = V.alloc(); vAa = V.alloc()
    p(f"""
    v_and_b32 v{t0}, 1, v{vN}
    v_xor_b32 v{t0}, 1, v{t0}
    v_mul_u32_u24 v{t0}, {U1D}, v{t0}
    v_lshrrev_b32 v{t1}, 1, v{vN}
    v_lshlrev_b32 v{t1}, 6, v{t1}
    v_lshl_add_u32 v{t1}, v{vG}, 4, v{t1}
    v_add3_u32 v{vB}, v{t0}, v{t1}, s{sREG}
    v_add_u32 v{vB}, {UOFF + 448}, v{vB}
    v_mov_b32 v{vB0}, v{vB}
    v_and_b32 v{t0}, 1, v{vN}
    v_mul_u32_u24 v{t0}, {K1OFF - 4}, v{t0}
    v_lshlrev_b32 v{t1}, 2, v{vN}
    v_sub_u32 v{t0}, v{t0}, v{t1}
    v_lshl_add_u32 v{t0}, v{vG}, 4, v{t0}
    v_add_u32 v{t0}, {4096 - 3584}, v{t0}
    v_add_u32 v{vAa}, s{sREG}, v{t0}
    """)
    def ldA(t):
        p(f"ds_read_b64 v[{A+4*t}:{A+4*t+1}], v{vAa} offset:{512*(7-t)}")
        p(f"ds_read_b64 v[{A+4*t+2}:{A+4*t+3}], v{vAa} offset:{512*(7-t)+8}")
    def ldB(i):
        p(f"ds_read_b128 v[{B+4*i}:{B+4*i+3}], v{vB} offset:{512*i}")
    for k in range(32): p(f"v_mov_b32 v{acc+k}, 0")
    for t in range(8):
        ldA(t); ldB(7 - t)
    sR = 56
    p(f"s_mov_b32 s{sR}, 0")
    p.label("L_conv")
    p(f"v_subrev_u32 v{vB}, 64, v{vB}\n v_subrev_u32 v{vAa}, 64, v{vAa}")
    for t in range(8):
        order = list(range(7, t - 1, -1))
        for k, i in enumerate(order):
            if t == 0:
                if k == 0: p("s_waitcnt lgkmcnt(9)")
                if k == 5: p("s_waitcnt lgkmcnt(0)")
            p(f"v_mfma_f32_16x16x32_bf16 v[{acc+4*i}:{acc+4*i+3}], v[{A+4*t}:{A+4*t+3}], v[{B+4*(i-t)}:{B+4*(i-t)+3}], v[{acc+4*i}:{acc+4*i+3}]")
        ldA(t); ldB(7 - t)
    p(f"""
    s_add_u32 s{sR}, s{sR}, 1
    s_cmp_lt_u32 s{sR}, 8
    s_cbranch_scc1 L_conv
    """)
    stamp(p)
    p("s_waitcnt lgkmcnt(0)")
    for i in range(8):
        p(f"ds_read_b128 v[{B+4*i}:{B+4*i+3}], v{vB0} offset:{512*i}")
    s0 = V.alloc(); s1 = V.alloc(); ya = V.alloc()
    sM = 57
    p(f"""
    s_mov_b32 s{sM}, 0xffff0000
    v_and_b32 v{t0}, 1, v{vN}
    v_cmp_eq_u32 vcc, 0, v{t0}
    v_mov_b32 v{t1}, 0x05040100
    v_mov_b32 v{t2}, 0x01000504
    v_cndmask_b32 v{s0}, v{t2}, v{t1}, vcc
    v_mov_b32 v{t1}, 0x07060302
    v_mov_b32 v{t2}, 0x03020706
    v_cndmask_b32 v{s1}, v{t2}, v{t1}, vcc
    v_lshrrev_b32 v{t1}, 1, v{vN}
    v_lshlrev_b32 v{t1}, 6, v{t1}
    v_lshl_add_u32 v{t1}, v{vG}, 4, v{t1}
    v_lshl_add_u32 v{t1}, v{t0}, 3, v{t1}
    v_add_u32 v{ya}, s{sREG}, v{t1}
    s_waitcnt lgkmcnt(0)
    """)
    for i in range(8):
        a = acc + 4 * i; b = B + 4 * i; pk = A + 4 * i
        for r in range(4):
            p(f"v_and_b32 v{b+r}, s{sM}, v{b+r}")
        for r in range(4):
            p(f"v_fma_f32 v{a+r}, v{b+r}, v{V.names['D'][0]}, v{a+r}")
        p(f"""
        v_cvt_pk_bf16_f32 v{pk}, v{a}, v{a+1}
        v_cvt_pk_bf16_f32 v{pk+1}, v{a+2}, v{a+3}
        v_cndmask_b32 v{pk+2}, v{pk+1}, v{pk}, vcc
        v_cndmask_b32 v{pk+3}, v{pk}, v{pk+1}, vcc
        """)
        p(f"v_mov_b32_dpp v{pk}, v{pk+3} quad_perm:[1,0,3,2] row_mask:0xf bank_mask:0xf")
        p(f"""
        v_perm_b32 v{a}, v{pk}, v{pk+2}, v{s0}
        v_perm_b32 v{a+1}, v{pk}, v{pk+2}, v{s1}
        ds_write_b64 v{ya}, v[{a}:{a+1}] offset:{512*i}
        """)
    p("s_waitcnt lgkmcnt(0)\n s_barrier")
    stamp(p)
    ta = V.alloc(); tb = V.alloc(); go = V.alloc()
    p(f"""
    v_lshrrev_b32 v{t0}, 2, v{vI}
    v_mul_u32_u24 v{t0}, {REG}, v{t0}
    v_and_b32 v{t1}, 3, v{vI}
    v_lshlrev_b32 v{t1}, 3, v{t1}
    v_lshl_add_u32 v{t1}, v{vG}, 5, v{t1}
    s_lshl_b32 s{sT0}, s{sW}, 9
    v_add3_u32 v{ta}, v{t0}, v{t1}, s{sT0}
    v_add_u32 v{tb}, {4*REG}, v{ta}
    s_lshl_b32 s{sT0}, s{sW}, 8
    v_add_u32 v{go}, s{sT0}, v{vLane}
    v_mul_u32_u24 v{go}, 2560, v{go}
    s_lshl_b32 s{sT0}, s{sCG}, 4
    v_add_u32 v{go}, s{sT0}, v{go}
    """)
    for it in range(4):
        o = A + 4 * it
        p(f"ds_read_b64_tr_b16 v[{o}:{o+1}], v{ta} offset:{128*it}")
        p(f"ds_read_b64_tr_b16 v[{o+2}:{o+3}], v{tb} offset:{128*it}")
    for it in range(4):
        o = A + 4 * it
        p(f"s_waitcnt lgkmcnt({6-2*it})")
        p(f"s_mov_b32 s{sT0}, {it*64*2560}")
        p(f"buffer_store_dwordx4 v[{o}:{o+3}], v{go}, s[{SRD_O}:{SRD_O+3}], s{sT0} offen")
    dbgmax(p, 13, t0, t1, sW)
    stamp(p)
    if common.DIAG:
        p('s_waitcnt vmcnt(0)')
        stamp(p)
        stamps_flush(p, t0, t1)
    return V

import struct
def f32bits(x):
    return struct.unpack("<I", struct.pack("<f", float(x)))[0]
```

```python
from common import *
import common

SLOT = 40960
WOFF = 24576
WO_IMG = 0
PHI = 81920
RS = 296
AST = 139264
RED = 81920
WS_PART = 65536
PART_STRIDE = 5120
WS_O = 1 << 20
O_TILE = 20480
WS_SIZE = 16 << 20
SPIN_MAX = 1 << 14
DBG_CNT = 4

def merge(streams):
    out = []
    n = max(len(s) for s in streams)
    for j in range(n):
        for s in streams:
            if j < len(s): out.append(s[j])
    return out

def gen_part_b(p):
    V = VAlloc(VGPRS - 1, start=1)
    sJ, sI, sT, sRB, sHP, sW, sWR, sTY = 32, 33, 34, 35, 36, 37, 38, 39
    SRD_X, SRD_W, SRD_WS, SRD_WO, SRD_O = 40, 44, 48, 52, 56
    sT0, sT1, sT2, sT3 = 60, 61, 62, 63
    sKC = 81; sS = 82; sSLOTD = 83; sXO = 84; sWO = 85; sM0 = 86; sROW0 = 87
    sL = 88
    sRT, sCG, sDSLOT = 92, 93, 94
    sNEG = 100; sCNT = 101
    OPT = common.OPT
    p(f"""
    s_and_b32 s{sJ}, s2, 7
    s_lshr_b32 s{sI}, s2, 3
    s_lshr_b32 s{sT0}, s{sJ}, 2
    s_mul_i32 s{sT0}, s{sT0}, 22
    s_add_u32 s{sT}, s{sT0}, s{sI}
    s_lshr_b32 s{sRB}, s{sT}, 2
    s_and_b32 s{sT0}, s{sT}, 3
    s_and_b32 s{sT1}, s{sJ}, 3
    s_lshl_b32 s{sT1}, s{sT1}, 2
    s_add_u32 s{sHP}, s{sT1}, s{sT0}
    s_mul_i32 s{sROW0}, s{sRB}, 192
    s_mul_i32 s{sT1}, s{sT0}, 3
    s_lshl_b32 s{sT2}, s{sRB}, 1
    s_add_u32 s{sKC}, s{sT1}, s{sT2}
    s_mul_i32 s{sT1}, s{sKC}, 205
    s_lshr_b32 s{sT1}, s{sT1}, 11
    s_mul_i32 s{sT1}, s{sT1}, 10
    s_sub_u32 s{sKC}, s{sKC}, s{sT1}
    """)
    if 'rot0' in OPT: p(f"s_mov_b32 s{sKC}, 0")
    if 'rot2' in OPT: p(f"s_and_b32 s{sKC}, s{sT}, 1\n s_mul_i32 s{sKC}, s{sKC}, 5")
    vLane = V.alloc(); vI = V.alloc(); vG = V.alloc(); t0 = V.alloc(); t1 = V.alloc(); t2 = V.alloc(); t3 = V.alloc()
    p(f"""
    v_lshrrev_b32 v{t0}, 6, v0
    v_and_b32 v{vLane}, 63, v0
    v_readfirstlane_b32 s{sW}, v{t0}
    v_and_b32 v{vI}, 15, v{vLane}
    v_lshrrev_b32 v{vG}, 4, v{vLane}
    s_and_b32 s{sWR}, s{sW}, 3
    s_lshr_b32 s{sTY}, s{sW}, 2
    s_cmp_eq_u32 s{sTY}, 2
    s_cbranch_scc0 L_b_compute
    """)
    mark = list(V.free)
    vX = [V.alloc(), V.alloc()]; vW = [V.alloc(), V.alloc()]
    p(f"""
    s_mul_i32 s{sT0}, s{sWR}, 48
    s_add_u32 s{sT0}, s{sT0}, s{sROW0}
    v_lshrrev_b32 v{t0}, 3, v{vLane}
    v_add_u32 v{t0}, s{sT0}, v{t0}
    v_mul_u32_u24 v{t0}, 1280, v{t0}
    v_and_b32 v{t1}, 7, v{vLane}
    v_xor_b32 v{t2}, v{t1}, v{vG}
    v_lshl_add_u32 v{vX[0]}, v{t2}, 4, v{t0}
    v_xor_b32 v{t2}, 4, v{t2}
    v_lshl_add_u32 v{vX[1]}, v{t2}, 4, v{t0}
    """)
    for hv in range(2):
        p(f"""
        v_lshlrev_b32 v{t0}, 1, v{vG}
        v_add_u32 v{t0}, {8*hv}, v{t0}
        v_xor_b32 v{t0}, v{t0}, v{vI}
        v_min_u32 v{t0}, 14, v{t0}
        ; c<5: 1280+16c ; c<8: 2560+16(c-5) ; c<13: 16(c-8) ; else 2560+16(c-10)
        v_lshlrev_b32 v{t1}, 4, v{t0}
        v_add_u32 v{t2}, {2560-160}, v{t1}
        v_subrev_u32 v{t3}, 128, v{t1}
        v_cmp_gt_u32 vcc, 13, v{t0}
        v_cndmask_b32 v{t2}, v{t2}, v{t3}, vcc
        v_add_u32 v{t3}, {2560-80}, v{t1}
        v_cmp_gt_u32 vcc, 8, v{t0}
        v_cndmask_b32 v{t2}, v{t2}, v{t3}, vcc
        v_add_u32 v{t3}, 1280, v{t1}
        v_cmp_gt_u32 vcc, 5, v{t0}
        v_cndmask_b32 v{t2}, v{t2}, v{t3}, vcc
        s_mul_i32 s{sT0}, s{sHP}, 80
        s_mul_i32 s{sT1}, s{sWR}, {16*3840}
        s_add_u32 s{sT0}, s{sT0}, s{sT1}
        v_mul_u32_u24 v{t0}, 3840, v{vG}
        v_add3_u32 v{vW[hv]}, v{t0}, v{t2}, s{sT0}
        """)
    sMX, sMW = 90, 91
    p(f"""
    s_mul_i32 s{sMX}, s{sWR}, 6144
    s_lshl_b32 s{sMW}, s{sWR}, 12
    s_add_u32 s{sMW}, s{sMW}, {WOFF}
    s_mov_b32 s{sDSLOT}, 0
    s_waitcnt lgkmcnt(0)
    """)
    srd(p, SRD_X, S_X, 2048 * 1280)
    srd(p, SRD_W, S_WQKV, 640 * 3840)
    def dma_stage():
        p(f"s_lshl_b32 s{sXO}, s{sKC}, 7\n s_mul_i32 s{sWO}, s{sKC}, {64*3840}\n s_add_u32 s{sM0}, s{sMX}, s{sDSLOT}\n s_add_u32 s{sT2}, s{sMW}, s{sDSLOT}")
        order = [("x", 0), ("w", 0), ("x", 1), ("x", 2), ("w", 1), ("x", 3), ("w", 2), ("x", 4), ("x", 5), ("w", 3)]
        for kind, e in order:
            if 'nodma' in OPT: continue
            if kind == "x":
                p(f"s_add_u32 s{sT0}, s{sXO}, {8*e*1280}\n s_add_u32 m0, s{sM0}, {1024*e}")
                p(f"buffer_load_dwordx4 v{vX[e & 1]}, s[{SRD_X}:{SRD_X+3}], s{sT0} offen lds")
            else:
                p(f"s_add_u32 s{sT0}, s{sWO}, {4*e*3840}\n s_add_u32 m0, s{sT2}, {1024*e}")
                p(f"buffer_load_dwordx4 v{vW[e >> 1]}, s[{SRD_W}:{SRD_W+3}], s{sT0} offen lds")
        p(f"""
        s_add_u32 s{sKC}, s{sKC}, 1
        s_cmp_eq_u32 s{sKC}, 10
        s_cselect_b32 s{sKC}, 0, s{sKC}
        s_add_u32 s{sDSLOT}, s{sDSLOT}, {SLOT}
        s_cmp_eq_u32 s{sDSLOT}, {4*SLOT}
        s_cselect_b32 s{sDSLOT}, 0, s{sDSLOT}
        """)
    LA = 2 if ('la2' in OPT or 'st2' in OPT) else 3
    if 'st2' in OPT:
        dma_stage()
        p("s_barrier")
        stamp(p, 1)
        srd(p, SRD_WS, S_WS, WS_SIZE)
        srd(p, SRD_WO, S_WO, 640 * 1280)
        p("s_waitcnt vmcnt(0)")
        stamp(p, 2)
        p("s_barrier")
        stamp(p, 3)
        dma_stage()
    else:
        p(f"s_mov_b32 s{sS}, 0")
        p.label("L_p_pro")
        dma_stage()
        p(f"s_add_u32 s{sS}, s{sS}, 1\n s_cmp_lt_u32 s{sS}, {LA}\n s_cbranch_scc1 L_p_pro")
        stamp(p, 1)
        srd(p, SRD_WS, S_WS, WS_SIZE)
        srd(p, SRD_WO, S_WO, 640 * 1280)
        p(f"s_waitcnt vmcnt({10*(LA-1)})")
        stamp(p, 2)
        p("s_barrier")
        stamp(p, 3)
    p(f"s_mov_b32 s{sS}, {LA}")
    p.label("L_p_main")
    dma_stage()
    p(f"""
    s_waitcnt vmcnt({10*(LA-1)})
    s_add_u32 s{sS}, s{sS}, 1
    s_cmp_lt_u32 s{sS}, 10
    s_cbranch_scc0 L_p_tail
    s_barrier
    s_branch L_p_main
    """)
    p.label("L_p_tail")
    if LA == 3: p("s_barrier")
    on4 = V.alloc(4, align=4); vC0 = V.alloc(); vC1 = V.alloc()
    p(f"""
    v_mov_b32 v{on4}, -1
    v_mov_b32 v{on4+1}, -1
    v_mov_b32 v{on4+2}, -1
    v_mov_b32 v{on4+3}, -1
    s_lshl_b32 s{sT0}, s{sRB}, 4
    s_add_u32 s{sT0}, s{sT0}, s{sHP}
    s_mul_i32 s{sT0}, s{sT0}, {PART_STRIDE}
    s_mul_i32 s{sT1}, s{sWR}, 1280
    s_add_u32 s{sT0}, s{sT0}, s{sT1}
    s_add_u32 s{sT0}, s{sT0}, {WS_PART}
    v_lshl_add_u32 v{vC0}, v{vLane}, 4, s{sT0}
    s_add_u32 s{sT0}, s{sT0}, 1024
    v_lshl_add_u32 v{vC1}, v{vLane}, 2, s{sT0}
    buffer_store_dwordx4 v[{on4}:{on4+3}], v{vC0}, s[{SRD_WS}:{SRD_WS+3}], 0 offen sc1
    buffer_store_dword v{on4}, v{vC1}, s[{SRD_WS}:{SRD_WS+3}], 0 offen sc1
    s_mul_i32 s{sT0}, s{sRB}, 12
    s_mul_i32 s{sT1}, s{sWR}, 3
    s_add_u32 s{sT0}, s{sT0}, s{sT1}
    s_mul_i32 s{sT0}, s{sT0}, {O_TILE}
    s_mul_i32 s{sT1}, s{sHP}, 1280
    s_add_u32 s{sT0}, s{sT0}, s{sT1}
    s_add_u32 s{sT0}, s{sT0}, {WS_O}
    v_lshl_add_u32 v{vC0}, v{vLane}, 4, s{sT0}
    s_add_u32 s{sT0}, s{sT0}, 1024
    v_lshl_add_u32 v{vC1}, v{vLane}, 2, s{sT0}
    """)
    for nt in range(3):
        p(f"s_mov_b32 s{sT1}, {O_TILE*nt}")
        p(f"buffer_store_dwordx4 v[{on4}:{on4+3}], v{vC0}, s[{SRD_WS}:{SRD_WS+3}], s{sT1} offen sc1")
        p(f"buffer_store_dword v{on4}, v{vC1}, s[{SRD_WS}:{SRD_WS+3}], s{sT1} offen sc1")
    p(f"""
    s_lshr_b32 s{sT0}, s2, 3
    s_cmp_ge_u32 s{sT0}, 20
    s_cbranch_scc1 L_p_nopf
    s_mul_i32 s{sT0}, s{sT0}, 320
    s_mul_i32 s{sT1}, s{sWR}, 80
    s_add_u32 s{sT0}, s{sT0}, s{sT1}
    v_add_u32 v{t0}, s{sT0}, v{vLane}
    v_lshlrev_b32 v{t0}, 7, v{t0}
    buffer_load_dword v{t1}, v{t0}, s[{SRD_WO}:{SRD_WO+3}], 0 offen
    s_mov_b32 exec_lo, 0xffff
    s_mov_b32 exec_hi, 0
    v_add_u32 v{t0}, {64*128}, v{t0}
    buffer_load_dword v{t2}, v{t0}, s[{SRD_WO}:{SRD_WO+3}], 0 offen
    s_mov_b64 exec, -1
    """)
    p.label("L_p_nopf")
    p("s_waitcnt vmcnt(18)\n s_barrier")
    p("s_waitcnt vmcnt(0)\n s_barrier")
    p(f"""
    s_cmp_lg_u32 s{sWR}, 0
    s_cbranch_scc1 L_p_nocnt
    v_mov_b32 v{t0}, {DBG_CNT}
    v_mov_b32 v{t1}, 1
    s_mov_b32 exec_lo, 1
    s_mov_b32 exec_hi, 0
    global_atomic_add v{t0}, v{t1}, s[{S_DBG}:{S_DBG+1}] sc1
    s_mov_b64 exec, -1
    """)
    p.label("L_p_nocnt")
    p(f"""
    s_lshr_b32 s{sT0}, s2, 3               ; i
    s_cmp_ge_u32 s{sT0}, 10
    s_cselect_b32 s{sT1}, 1, 0
    s_mul_i32 s{sT1}, s{sT1}, 10
    s_sub_u32 s{sCG}, s{sT0}, s{sT1}
    ; LDS row k' = 8 z + e holds wo row 40 (z/5) + 4 (z%5) + 20 (e>>2) + (e&3);  z = 20 pw + i'
    v_lshrrev_b32 v{t0}, 3, v{vLane}            ; e
    v_bfe_u32 v{t1}, v{t0}, 1, 1
    v_lshlrev_b32 v{t1}, 1, v{t1}
    v_and_b32 v{t2}, 7, v{vLane}
    v_xor_b32 v{t1}, v{t1}, v{t2}
    v_xor_b32 v{t2}, 4, v{t1}
    v_lshrrev_b32 v{t3}, 2, v{t0}
    v_mul_u32_u24 v{t3}, 20, v{t3}
    v_and_b32 v{t0}, 3, v{t0}
    v_add_u32 v{t0}, v{t0}, v{t3}
    s_mul_i32 s{sT0}, s{sWR}, 160
    v_add_u32 v{t0}, s{sT0}, v{t0}
    v_mul_u32_u24 v{t0}, 1280, v{t0}
    s_lshl_b32 s{sT0}, s{sCG}, 7
    v_add_u32 v{t0}, s{sT0}, v{t0}
    v_lshl_add_u32 v{t3}, v{t2}, 4, v{t0}
    v_lshl_add_u32 v{t0}, v{t1}, 4, v{t0}
    s_mul_i32 s{sM0}, s{sWR}, 20480
    s_barrier
    s_cmp_ge_u32 s2, 160
    s_cbranch_scc1 L_p_nowo
    """)
    for i in range(20):
        p(f"s_mov_b32 s{sT1}, {(40*(i//5) + 4*(i%5))*1280}\n s_add_u32 m0, s{sM0}, {WO_IMG + 1024*i}")
        p(f"buffer_load_dwordx4 v{t3 if i & 1 else t0}, s[{SRD_WO}:{SRD_WO+3}], s{sT1} offen lds")
    p.label("L_p_nowo")
    stamp(p, 4)
    p("s_waitcnt vmcnt(0)")
    stamp(p, 5)
    p("s_barrier")
    stamp(p, 6)
    if common.DIAG:
        stamps_flush(p, t0, t1, loader=True)
    p("s_endpgm")
    V.free = list(mark)
    p.label("L_b_compute")
    vWp = V.alloc(4, align=4); vWp2 = V.alloc(4, align=4)
    p(f"""
    s_mul_i32 s{sT0}, s{sHP}, 1600
    v_lshlrev_b32 v{t0}, 4, v{vLane}
    v_add_u32 v{t0}, s{sT0}, v{t0}
    v_add_u32 v{t1}, 1024, v{t0}
    s_waitcnt lgkmcnt(0)
    global_load_dwordx4 v[{vWp}:{vWp+3}], v{t0}, s[{S_WPHI}:{S_WPHI+1}]
    s_mov_b32 exec_hi, 15
    global_load_dwordx4 v[{vWp2}:{vWp2+3}], v{t1}, s[{S_WPHI}:{S_WPHI+1}]
    s_mov_b32 exec_hi, -1
    """)
    PF0 = 1 if 'st2' in OPT else 3
    NPF = 0
    if 'l2pf' in OPT:
        NPF = 2
        a0 = V.alloc(); a1 = V.alloc(); a2 = V.alloc(); a3 = V.alloc(); d0 = V.alloc(); ad = V.alloc(2, align=2)
        p(f"""
        ; lane -> chunk PF0 + lane/10, item r = lane%10 ; it = min((i*8 + w)*10 + r, 1727)
        v_mul_u32_u24 v{a0}, 205, v{vLane}
        v_lshrrev_b32 v{a0}, 11, v{a0}               ; lane/10
        v_mul_u32_u24 v{a1}, 10, v{a0}
        v_sub_u32 v{a1}, v{vLane}, v{a1}             ; r
        s_lshl_b32 s{sT1}, s{sI}, 3
        s_add_u32 s{sT1}, s{sT1}, s{sW}
        s_mul_i32 s{sT1}, s{sT1}, 10
        v_add_u32 v{a1}, s{sT1}, v{a1}               ; it
        v_min_u32 v{a1}, 1727, v{a1}
        v_add_u32 v{a0}, {PF0}, v{a0}                ; chunk
        s_lshr_b32 s{sT2}, s{sJ}, 2
        s_mul_i32 s{sT2}, s{sT2}, 960
        v_add_u32 v{a2}, s{sT2}, v{a1}
        v_min_u32 v{a2}, 2047, v{a2}
        v_mul_u32_u24 v{a2}, 1280, v{a2}
        v_lshl_add_u32 v{a2}, v{a0}, 7, v{a2}
        ; W: u = it - 1152 ; krow = u/9 ; rem = u%9 ; seg = rem/3 ; ln = rem%3
        v_subrev_u32 v{a1}, 1152, v{a1}
        v_max_i32 v{d0}, 0, v{a1}
        v_mul_u32_u24 v{a3}, 7282, v{d0}
        v_lshrrev_b32 v{a3}, 16, v{a3}               ; krow
        v_mul_u32_u24 v{t3}, 9, v{a3}
        v_sub_u32 v{d0}, v{d0}, v{t3}                ; rem
        v_lshl_add_u32 v{a3}, v{a0}, 6, v{a3}
        v_mul_u32_u24 v{a3}, 3840, v{a3}
        v_mul_u32_u24 v{t3}, 86, v{d0}
        v_lshrrev_b32 v{t3}, 8, v{t3}                ; seg
        v_mul_u32_u24 v{a0}, 3, v{t3}
        v_sub_u32 v{d0}, v{d0}, v{a0}                ; ln
        v_mul_u32_u24 v{t3}, 1280, v{t3}
        v_lshl_add_u32 v{t3}, v{d0}, 7, v{t3}
        s_and_b32 s{sT2}, s{sJ}, 3
        s_mul_i32 s{sT2}, s{sT2}, 320
        s_and_b32 s{sT2}, s{sT2}, 0xffffff80
        v_add3_u32 v{a3}, v{a3}, v{t3}, s{sT2}
        v_cmp_gt_i32 vcc, 0, v{a1}                   ; x lanes
        v_cndmask_b32 v{a2}, v{a3}, v{a2}, vcc
        v_mov_b32 v{a0}, {6*64*3840}
        v_mov_b32 v{a1}, {6*128}
        v_cndmask_b32 v{a3}, v{a0}, v{a1}, vcc
        v_mov_b32 v{a0}, s{S_WQKV}
        v_mov_b32 v{a1}, s{S_X}
        v_cndmask_b32 v{ad}, v{a0}, v{a1}, vcc
        v_mov_b32 v{a0}, s{S_WQKV+1}
        v_mov_b32 v{a1}, s{S_X+1}
        v_cndmask_b32 v{ad+1}, v{a0}, v{a1}, vcc
        v_add_co_u32 v{ad}, vcc, v{ad}, v{a2}
        v_addc_co_u32 v{ad+1}, vcc, 0, v{ad+1}, vcc
        """)
        if 'st2' in OPT: p("s_barrier")
        p(f"""
        s_mov_b32 exec_hi, 0x0fffffff
        global_load_dword v{VGPRS-1}, v[{ad}:{ad+1}], off
        s_mov_b32 exec_hi, -1
        v_add_co_u32 v{ad}, vcc, v{ad}, v{a3}
        v_addc_co_u32 v{ad+1}, vcc, 0, v{ad+1}, vcc
        s_mov_b32 exec_lo, {0x3ff if PF0 == 3 else 0x3fffffff:#x}
        s_mov_b32 exec_hi, 0
        global_load_dword v{VGPRS-1}, v[{ad}:{ad+1}], off
        s_mov_b64 exec, -1
        """)
        for r in (a0, a1, a2, a3, d0): V.release(r)
        V.release(ad, 2)
    stamp(p, 1)
    srd(p, SRD_WS, S_WS, WS_SIZE)
    srd(p, SRD_O, S_OUT, 2048 * 2560)
    p(f"""
    s_mov_b32 s{sL}, {LOG2E:#x}
    s_mov_b32 s{sL+1}, {LOG2E:#x}
    s_mov_b32 s{sNEG}, {-3*SLOT & 0xffffffff:#x}
    """)
    vXa = V.alloc(2, align=1); vWa = V.alloc(4, align=1)
    for ks in range(2):
        p(f"""
        v_add_u32 v{t0}, {4*ks}, v{vG}
        v_lshrrev_b32 v{t1}, 1, v{vI}
        v_xor_b32 v{t0}, v{t0}, v{t1}
        v_lshlrev_b32 v{t0}, 4, v{t0}
        s_mul_i32 s{sT0}, s{sWR}, 48
        v_add_u32 v{t1}, s{sT0}, v{vI}
        v_lshl_add_u32 v{vXa+ks}, v{t1}, 7, v{t0}
        """)
    p(f"""
    v_and_b32 v{t0}, 1, v{vG}
    v_xor_b32 v{t0}, s{sTY}, v{t0}
    v_lshlrev_b32 v{t0}, 7, v{t0}
    v_bfe_u32 v{t2}, v{vI}, 1, 1
    v_lshl_add_u32 v{t0}, v{t2}, 4, v{t0}
    v_and_b32 v{t2}, 1, v{vI}
    v_lshl_add_u32 v{t0}, v{t2}, 3, v{t0}
    v_lshrrev_b32 v{t1}, 2, v{vI}
    v_lshl_add_u32 v{t2}, v{vG}, 3, v{t1}
    v_lshl_add_u32 v{t0}, v{t2}, 8, v{t0}
    v_add_u32 v{t0}, {WOFF}, v{t0}
    """)
    for mt in range(4):
        p(f"v_xor_b32 v{t2}, {mt}, v{t1}\n v_lshl_add_u32 v{vWa+mt}, v{t2}, 5, v{t0}")
    acc = V.alloc(48, align=4)
    for k in range(48): p(f"v_mov_b32 v{acc+k}, 0")
    WPB = 3 * SLOT
    vFA = V.alloc(16, align=4)
    FA, FB, FC0, FC1 = vFA, vFA + 4, vFA + 8, vFA + 12
    GT = V.alloc(32, align=1)
    for k in range(32): p(f"v_mov_b32 v{GT+k}, 0")
    p(f"""
    s_lshl_b32 s{sT0}, s{sW}, 11
    s_add_u32 s{sT0}, s{sT0}, {WPB}
    v_lshl_add_u32 v{t0}, v{vLane}, 4, s{sT0}
    v_lshrrev_b32 v{t1}, 2, v{vI}
    v_mul_u32_u24 v{t1}, 5, v{t1}
    v_and_b32 v{t2}, 3, v{vI}
    v_add_u32 v{t2}, v{t1}, v{t2}
    v_lshlrev_b32 v{t2}, 1, v{t2}
    v_mul_u32_u24 v{t3}, 160, v{vG}
    v_add3_u32 v{t2}, v{t2}, v{t3}, s{sT0}      ; t2: f = 5(m>>2)+(m&3)
    v_add_u32 v{t1}, 4, v{t1}
    v_lshlrev_b32 v{t1}, 1, v{t1}
    v_add3_u32 v{t1}, v{t1}, v{t3}, s{sT0}      ; t1: f = 5(m>>2)+4
    s_waitcnt vmcnt({NPF})
    """)
    p(f"""
    ds_write_b128 v{t0}, v[{vWp}:{vWp+3}]
    s_mov_b32 exec_hi, 15
    ds_write_b128 v{t0}, v[{vWp2}:{vWp2+3}] offset:1024
    s_mov_b32 exec_hi, -1
    s_waitcnt lgkmcnt(0)
    """)
    def gather(dst, addr, off, mask):
        p(f"s_mov_b32 exec_lo, {mask & 0xffffffff:#x}\n s_mov_b32 exec_hi, {mask >> 32:#x}")
        for e in range(4):
            p(f"ds_read_u16 v{GT + 2*(dst - vFA) + e}, v{addr} offset:{off + 40*e}")
    G0 = 0xFFFF; G01 = 0xFFFFFFFF; G123 = 0xFFFFFFFFFFFF0000; ALL = (1 << 64) - 1
    R0 = 0x1111111111111111; R1 = 0x2222222222222222
    gather(FA, t2, 0, ALL);            gather(FA + 2, t2, 16*40, G0)
    gather(FB, t2, 800 - 160, G123);   gather(FB + 2, t2, 800 + 12*40, G01)
    gather(FC0, t1, 0, R0);            gather(FC0 + 2, t1, 16*40, G0 & R0)
    gather(FC1, t1, 800 - 160, G123 & R1); gather(FC1 + 2, t1, 800 + 12*40, G01 & R1)
    p("s_mov_b64 exec, -1\n s_waitcnt lgkmcnt(0)")
    for k in range(16):
        p(f"v_lshl_or_b32 v{vFA+k}, v{GT+2*k+1}, 16, v{GT+2*k}")
    V.release(GT, 32); V.release(vWp, 4); V.release(vWp2, 4)
    XF = [V.alloc(12, align=4), V.alloc(12, align=4)]
    WF = [V.alloc(16, align=4), V.alloc(16, align=4)]
    def reads(ks):
        L = []
        for mt in range(4):
            for h in range(2):
                L.append(f"ds_read_b64_tr_b16 v[{WF[ks]+4*mt+2*h}:{WF[ks]+4*mt+2*h+1}], v{vWa+mt} offset:{8192*ks + 1024*h}")
        X = [f"ds_read_b128 v[{XF[ks]+4*nt}:{XF[ks]+4*nt+3}], v{vXa+ks} offset:{2048*nt}" for nt in range(3)]
        return [L[0], L[1], X[0], X[1], X[2]] + L[2:]
    def mfmas(ks):
        L = []
        for mt in range(4):
            for nt in range(3):
                a = acc + 16*nt + 4*mt
                L.append(f"v_mfma_f32_16x16x32_bf16 v[{a}:{a+3}], v[{WF[ks]+4*mt}:{WF[ks]+4*mt+3}], v[{XF[ks]+4*nt}:{XF[ks]+4*nt+3}], v[{a}:{a+3}]")
        return L
    def sched(main, slots):
        for i, m in enumerate(main):
            if 'nomfma' not in OPT: p(m)
            for x in slots.get(i, []):
                if ('nomfma' in OPT or 'nords' in OPT) and x.startswith('ds_read'): continue
                p(x)
    def advance():
        return [f"v_add_u32 v{r}, s{sSLOTD}, v{r}" for r in (vWa, vXa, vWa+1, vWa+2, vWa+3, vXa+1)]
    stamp(p, 15)
    p("s_barrier")
    stamp(p, 2); cstamp(p, 13)
    for x in reads(0): p(x)
    p(f"s_mov_b32 s{sS}, 0")
    def slot_delta():
        return [f"s_and_b32 s{sT0}, s{sS}, 3", f"s_cmp_eq_u32 s{sT0}, 3", f"s_cselect_b32 s{sSLOTD}, s{sNEG}, {SLOT}"]
    RSP = int(common.os.environ.get("RSP", "2"))
    def read_slots(r, first):
        d = {}
        k = first
        while r:
            d[k] = r[:RSP]; r = r[RSP:]; k += 1
        return d
    def half0():
        p("s_waitcnt lgkmcnt(0)")
        slots = read_slots(reads(1), 0)
        slots[7] = slot_delta()
        sched(mfmas(0), slots)
    def half1(nxt=True):
        p("s_waitcnt lgkmcnt(0)")
        if nxt:
            p("s_barrier")
            slots = read_slots(reads(0), 1)
            slots[0] = advance()
            sched(mfmas(1), slots)
        else:
            sched(mfmas(1), {})
    p.label("L_b_main")
    half0(); half1()
    p(f"s_add_u32 s{sS}, s{sS}, 1\n s_cmp_lt_u32 s{sS}, 9\n s_cbranch_scc1 L_b_main")
    half0(); half1(nxt=False)
    stamp(p, 3); cstamp(p, 14)
    V.release(XF[0], 12); V.release(XF[1], 12); V.release(WF[0], 16); V.release(WF[1], 16)
    V.release(vXa, 2); V.release(vWa, 4)
    def wait_cleared(name, vN, vm):
        p(f"s_mov_b32 s{sCNT}, 0\n s_waitcnt vmcnt({vm})")
        p.label(f"L_b_wc{name}")
        p(f"""
        v_readfirstlane_b32 s{sT0}, v{vN}
        s_cmp_ge_u32 s{sT0}, {N_B}
        s_cbranch_scc1 L_b_wc_ok{name}
        s_add_u32 s{sCNT}, s{sCNT}, 1
        s_cmp_gt_u32 s{sCNT}, {SPIN_MAX}
        s_cbranch_scc1 L_b_wc_ok{name}
        v_mov_b32 v{vN}, {DBG_CNT}
        global_load_dword v{vN}, v{vN}, s[{S_DBG}:{S_DBG+1}] sc1
        s_waitcnt vmcnt(0)
        s_branch L_b_wc{name}
        """)
        p.label(f"L_b_wc_ok{name}")
    P = V.alloc(3 * 8, align=2)
    vRow = V.alloc()
    vV2 = V.alloc(); vV3 = V.alloc()
    p(f"""
    s_mul_i32 s{sT0}, s{sWR}, 48
    v_add_u32 v{t0}, s{sT0}, v{vI}
    v_mul_u32_u24 v{vRow}, {RS}, v{t0}
    v_add_u32 v{vRow}, {PHI}, v{vRow}
    s_mul_i32 s{sT0}, s{sTY}, 48
    v_lshlrev_b32 v{t1}, 3, v{vG}
    v_add3_u32 v{vV2}, v{t1}, v{vRow}, s{sT0}
    v_add_u32 v{vV2}, {192 - 16}, v{vV2}
    v_add_u32 v{t2}, {192 + 16}, v{t1}
    v_add_u32 v{t3}, {192 + 64}, v{t1}
    v_cmp_gt_u32 vcc, 2, v{vG}
    v_add_u32 v{vV3}, {280 - 16}, v{t1}
    v_cndmask_b32 v{t3}, v{vV3}, v{t3}, vcc
    s_cmp_eq_u32 s{sTY}, 0
    s_cselect_b64 vcc, -1, 0
    v_cndmask_b32 v{t3}, v{t3}, v{t2}, vcc
    v_add_u32 v{vV3}, v{t3}, v{vRow}
    """)
    def cvtP(nt, mts):
        for mt in mts:
            a = acc + 16*nt + 4*mt
            p(f"v_cvt_pk_bf16_f32 v{P+8*nt+2*mt}, v{a}, v{a+1}")
            p(f"v_cvt_pk_bf16_f32 v{P+8*nt+2*mt+1}, v{a+2}, v{a+3}")
    for nt in range(3): cvtP(nt, (2, 3))
    p("s_mov_b32 exec_lo, 0")
    for nt in range(3): p(f"ds_write_b64 v{vV2}, v[{P+8*nt+4}:{P+8*nt+5}] offset:{16*RS*nt}")
    p("s_mov_b32 exec_lo, -1")
    for nt in range(3): p(f"ds_write_b64 v{vV3}, v[{P+8*nt+6}:{P+8*nt+7}] offset:{16*RS*nt}")
    for nt in range(3): cvtP(nt, (0, 1))
    V.release(vV2); V.release(vV3)
    if common.DUMP:
        p(f"""
        s_lshl_b32 s{sT0}, s2, 3
        s_add_u32 s{sT0}, s{sT0}, s{sW}
        s_mul_i32 s{sT0}, s{sT0}, {24*256}
        s_add_u32 s{sT0}, s{sT0}, {4<<20}
        v_lshl_add_u32 v{t0}, v{vLane}, 2, s{sT0}
        """)
        for k in range(24):
            p(f"buffer_store_dword v{P+k}, v{t0}, s[{SRD_WS}:{SRD_WS+3}], 0 offen offset:{256*(k%16)}")
            if k == 15: p(f"v_add_u32 v{t0}, 4096, v{t0}")
        p("s_waitcnt vmcnt(0)")
    V.release(acc, 48)
    if common.os.environ.get('RDBG'): print('free before softmax', [i for i,f in enumerate(V.free) if f])
    TTb = V.alloc(38, align=4)
    TT = [TTb, TTb + 12, TTb + 24]
    EE = [V.alloc(20, align=2) for _ in range(3)]
    SS = [[V.alloc(2, align=2) for _ in range(3)] for _ in range(3)]
    def softmax(nt, outs):
        T, E, S = TT[nt], EE[nt], SS[nt]
        X01 = P + 8*nt; X12 = P + 8*nt + 2
        a0, a1, b0, b1, c, d = S[0], S[0]+1, S[1], S[1]+1, S[2], S[2]+1
        L = [f"v_mfma_f32_16x16x32_bf16 v[{T}:{T+3}], v[{FA}:{FA+3}], v[{X01}:{X01+3}], 0",
             f"v_mfma_f32_16x16x32_bf16 v[{T+8}:{T+11}], v[{FC0}:{FC0+3}], v[{X01}:{X01+3}], 0",
             f"v_mfma_f32_16x16x32_bf16 v[{T+4}:{T+7}], v[{FB}:{FB+3}], v[{X12}:{X12+3}], 0",
             f"v_mfma_f32_16x16x32_bf16 v[{T+8}:{T+11}], v[{FC1}:{FC1+3}], v[{X12}:{X12+3}], v[{T+8}:{T+11}]"]
        x = [[T, T+1, T+2, T+3, T+8], [T+4, T+5, T+6, T+7, T+9]]
        for h, (a, b) in enumerate(((a0, b0), (a1, b1))):
            xs = x[h]
            L += [f"v_max3_f32 v{a}, v{xs[0]}, v{xs[1]}, v{xs[2]}", f"v_max3_f32 v{b}, -v{xs[0]}, -v{xs[1]}, -v{xs[2]}"]
        for h, (a, b) in enumerate(((a0, b0), (a1, b1))):
            xs = x[h]
            L += [f"v_max3_f32 v{a}, v{a}, v{xs[3]}, v{xs[4]}", f"v_max3_f32 v{b}, v{b}, -v{xs[3]}, -v{xs[4]}"]
        def allred(op):
            return [f"v_permlane16_swap_b32 v{a0}, v{b0}", f"v_permlane16_swap_b32 v{a1}, v{b1}",
                    f"{op} v{a0}, v{a0}, v{b0}", f"{op} v{a1}, v{a1}, v{b1}",
                    f"v_permlane32_swap_b32 v{a0}, v{a1}", f"{op} v{c}, v{a0}, v{a1}"]
        bc = [f"v_mov_b32 v{d}, v{c}", f"v_permlane32_swap_b32 v{c}, v{d}", f"v_mov_b32 v{a0}, v{c}", f"v_mov_b32 v{a1}, v{d}",
              f"v_permlane16_swap_b32 v{a0}, v{c}", f"v_permlane16_swap_b32 v{a1}, v{d}"]
        L += allred("v_max_f32") + [f"v_mul_f32 v{c}, s{sL}, v{c}"] + bc
        sel = [(0, 0), (0, 0), (1, 1), (1, 1), (0, 1)]
        for k in range(5):
            lo, hi = sel[k]
            L.append(f"v_pk_fma_f32 v[{E+2*k}:{E+2*k+1}], v[{T+2*k}:{T+2*k+1}], s[{sL}:{sL+1}], v[{a0}:{a1}] op_sel:[0,0,{lo}] op_sel_hi:[1,1,{hi}] neg_lo:[0,0,1] neg_hi:[0,0,1]")
            L.append(f"v_pk_fma_f32 v[{E+10+2*k}:{E+10+2*k+1}], v[{T+2*k}:{T+2*k+1}], s[{sL}:{sL+1}], v[{c}:{d}] op_sel:[0,0,{lo}] op_sel_hi:[1,1,{hi}] neg_lo:[1,0,1] neg_hi:[1,0,1]")
        L += [f"v_exp_f32 v{E+k}, v{E+k}" for k in range(20)]
        L += [f"v_pk_add_f32 v[{T}:{T+1}], v[{E}:{E+1}], v[{E+2}:{E+3}]",
              f"v_pk_add_f32 v[{T+2}:{T+3}], v[{E+4}:{E+5}], v[{E+6}:{E+7}]",
              f"v_pk_add_f32 v[{T+4}:{T+5}], v[{E+10}:{E+11}], v[{E+12}:{E+13}]",
              f"v_pk_add_f32 v[{T+6}:{T+7}], v[{E+14}:{E+15}], v[{E+16}:{E+17}]",
              f"v_add_f32 v{a0}, v{T}, v{T+1}", f"v_add_f32 v{a1}, v{T+2}, v{T+3}",
              f"v_add_f32 v{b0}, v{T+4}, v{T+5}", f"v_add_f32 v{b1}, v{T+6}, v{T+7}",
              f"v_pk_add_f32 v[{a0}:{a1}], v[{a0}:{a1}], v[{E+8}:{E+9}]",
              f"v_pk_add_f32 v[{b0}:{b1}], v[{b0}:{b1}], v[{E+18}:{E+19}]"]
        L += allred("v_add_f32") + [f"v_rcp_f32 v{c}, v{c}"] + bc
        for k in range(5):
            lo, hi = sel[k]
            L.append(f"v_pk_mul_f32 v[{E+2*k}:{E+2*k+1}], v[{E+2*k}:{E+2*k+1}], v[{a0}:{a1}] op_sel:[0,{lo}] op_sel_hi:[1,{hi}]")
            L.append(f"v_pk_mul_f32 v[{E+10+2*k}:{E+10+2*k+1}], v[{E+10+2*k}:{E+10+2*k+1}], v[{c}:{d}] op_sel:[0,{lo}] op_sel_hi:[1,{hi}]")
        pairs = [[(0, 1), (2, 3), (8, 10), (11, 12), (13, 18)], [(4, 5), (6, 7), (9, 14), (15, 16), (17, 19)]]
        for h in range(2):
            for k, (u, w) in enumerate(pairs[h]):
                L.append(f"v_cvt_pk_bf16_f32 v{outs[h]+k}, v{E+u}, v{E+w}")
        return L
    snap = list(V.free)
    p(f"s_cmp_eq_u32 s{sTY}, 0\n s_cbranch_scc0 L_b_qtype")
    stamp(p, 4)
    p(f"""
    s_mul_i32 s{sT0}, s{sWR}, 48
    s_add_u32 s{sT0}, s{sT0}, s{sROW0}
    v_add_u32 v{t0}, s{sT0}, v{vI}
    v_mov_b32 v{t1}, 0x3f80
    """)
    on = EE[0]
    p(f"v_mov_b32 v{on+1}, 0")
    for nt in range(3):
        p(f"""
        v_cmp_gt_u32 vcc, 0x800, v{t0}
        v_cndmask_b32 v{on}, 0, v{t1}, vcc
        ds_write_b64 v{vRow}, v[{on}:{on+1}] offset:{16*RS*nt + 272}
        v_add_u32 v{t0}, 16, v{t0}
        """)
    vPh = V.alloc()
    p(f"v_mul_u32_u24 v{t0}, 24, v{vG}\n v_add_u32 v{vPh}, v{t0}, v{vRow}")
    streams = []
    for nt in range(3):
        T = TT[nt]
        L = softmax(nt, [T, T + 6])
        for h in range(2):
            o = T + 6*h; off = 16*RS*nt + 96*h
            L += [f"ds_write_b64 v{vPh}, v[{o}:{o+1}] offset:{off}", f"ds_write_b64 v{vPh}, v[{o+2}:{o+3}] offset:{off+8}",
                  f"ds_write_b32 v{vPh}, v{o+4} offset:{off+16}"]
        streams.append(L)
    for x in merge(streams): p(x)
    p("s_waitcnt lgkmcnt(0)\n s_barrier")
    for r, n in [(P, 24), (vRow, 1), (vFA, 16), (TTb, 38), (vPh, 1)] + [(x, 20) for x in EE] + [(y, 2) for x in SS for y in x]:
        V.release(r, n)
    vN = V.alloc()
    p(f"v_mov_b32 v{vN}, {DBG_CNT}\n global_load_dword v{vN}, v{vN}, s[{S_DBG}:{S_DBG+1}] sc1")
    stamp(p, 5)
    sHD, sHF = 95, 96
    vAa = V.alloc(); vB0 = V.alloc()
    p(f"""
    s_and_b32 s{sHD}, s{sWR}, 1
    s_lshr_b32 s{sHF}, s{sWR}, 1
    v_lshrrev_b32 v{t0}, 2, v{vI}
    v_lshl_add_u32 v{t0}, v{vG}, 3, v{t0}
    v_mul_u32_u24 v{t0}, {RS}, v{t0}
    v_add_u32 v{t0}, {PHI}, v{t0}
    v_and_b32 v{t1}, 3, v{vI}
    v_mul_u32_u24 v{t2}, 24, v{t1}
    s_mul_i32 s{sT0}, s{sHD}, 96
    v_add3_u32 v{vAa}, v{t0}, v{t2}, s{sT0}
    s_mul_i32 s{sT0}, s{sHD}, 40
    v_lshlrev_b32 v{t2}, 3, v{t1}
    v_add_u32 v{t2}, s{sT0}, v{t2}
    v_add_u32 v{vB0}, 192, v{t2}
    s_add_u32 s{sT0}, s{sT0}, 224
    v_mov_b32 v{t2}, 272
    v_mov_b32 v{t3}, s{sT0}
    v_cmp_eq_u32 vcc, s{sHD}, v{t1}
    v_cndmask_b32 v{t2}, v{t2}, v{t3}, vcc
    s_cmp_eq_u32 s{sHF}, 0
    s_cselect_b64 vcc, -1, 0
    v_cndmask_b32 v{t2}, v{t2}, v{vB0}, vcc
    v_add_u32 v{vB0}, v{t0}, v{t2}
    """)
    KF = V.alloc(48, align=4); KD = V.alloc(12, align=4)
    def kvreads(ks):
        b = KF + 16 * (ks % 3); off = 32 * RS * ks
        for h in range(2):
            p(f"ds_read_b64_tr_b16 v[{b+12+2*h}:{b+12+2*h+1}], v{vB0} offset:{off + 4*RS*h}")
        for mt in range(3):
            for h in range(2):
                p(f"ds_read_b64_tr_b16 v[{b+4*mt+2*h}:{b+4*mt+2*h+1}], v{vAa} offset:{off + 4*RS*h + 8*mt}")
    kvreads(0); kvreads(1)
    vP0 = V.alloc(); vP1 = V.alloc()
    p(f"""
    s_lshl_b32 s{sT0}, s{sRB}, 4
    s_add_u32 s{sT0}, s{sT0}, s{sHP}
    s_mul_i32 s{sT0}, s{sT0}, {PART_STRIDE}
    s_mul_i32 s{sT1}, s{sWR}, 1280
    s_add_u32 s{sT0}, s{sT0}, s{sT1}
    s_add_u32 s{sT0}, s{sT0}, {WS_PART}
    v_lshl_add_u32 v{vP0}, v{vLane}, 4, s{sT0}
    s_add_u32 s{sT0}, s{sT0}, 1024
    v_lshl_add_u32 v{vP1}, v{vLane}, 2, s{sT0}
    """)
    for ks in range(6):
        p(f"s_waitcnt lgkmcnt({8 if ks < 5 else 0})")
        b = KF + 16 * (ks % 3)
        for mt in range(3):
            c = "0" if ks == 0 else f"v[{KD+4*mt}:{KD+4*mt+3}]"
            p(f"v_mfma_f32_16x16x32_bf16 v[{KD+4*mt}:{KD+4*mt+3}], v[{b+4*mt}:{b+4*mt+3}], v[{b+12}:{b+15}], {c}")
        if ks + 2 < 6: kvreads(ks + 2)
    q = V.alloc(6, align=4)
    p(f"""
    v_cvt_pk_bf16_f32 v{q}, v{KD}, v{KD+1}
    v_cvt_pk_bf16_f32 v{q+1}, v{KD+2}, v{KD+3}
    v_cvt_pk_bf16_f32 v{q+2}, v{KD+4}, v{KD+5}
    v_cvt_pk_bf16_f32 v{q+3}, v{KD+6}, v{KD+7}
    v_cvt_pk_bf16_f32 v{q+4}, v{KD+8}, v{KD+9}
    buffer_store_dwordx4 v[{q}:{q+3}], v{vP0}, s[{SRD_WS}:{SRD_WS+3}], 0 offen sc1
    buffer_store_dword v{q+4}, v{vP1}, s[{SRD_WS}:{SRD_WS+3}], 0 offen sc1
    """)
    stamp(p, 6)
    wait_cleared("k", vN, 2)
    V.release(vN)
    V.release(KF, 48); V.release(KD, 12)
    L = V.alloc(56, align=4)
    A10 = V.alloc(10, align=2); mx = V.alloc()
    p(f"""
    s_mul_i32 s{sT0}, s{sRB}, {16*PART_STRIDE}
    v_subrev_u32 v{t0}, s{sT0}, v{vP0}
    v_subrev_u32 v{t1}, s{sT0}, v{vP1}
    s_mov_b32 s{sCNT}, 0
    """)
    def ld_part(r):
        p(f"s_mov_b32 s{sT0}, {r*16*PART_STRIDE}")
        p(f"buffer_load_dwordx4 v[{L+4*r}:{L+4*r+3}], v{t0}, s[{SRD_WS}:{SRD_WS+3}], s{sT0} offen sc1")
        p(f"buffer_load_dword v{L+44+r}, v{t1}, s[{SRD_WS}:{SRD_WS+3}], s{sT0} offen sc1")
    for r in range(11): ld_part(r)
    sHI = 97
    p(f"s_mov_b32 s{sHI}, 0xffff0000")
    u = V.alloc(4, align=2)
    retry = []
    for r in range(11):
        p(f"s_waitcnt vmcnt({2*(10-r)})")
        p.label(f"L_b_chk1_{r}")
        p(f"""
        v_max3_u32 v{mx}, v{L+4*r}, v{L+4*r+1}, v{L+4*r+2}
        v_max3_u32 v{mx}, v{mx}, v{L+4*r+3}, v{L+44+r}
        v_cmp_eq_u32 vcc, -1, v{mx}
        s_cbranch_vccnz L_b_rty1_{r}
        """)
        p.label(f"L_b_ok1_{r}")
        if r == 0: stamp(p, 7)
        for k in range(5):
            src = L + 4*r + k if k < 4 else L + 44 + r
            if r == 0:
                p(f"v_lshlrev_b32 v{A10+2*k}, 16, v{src}")
                p(f"v_and_b32 v{A10+2*k+1}, s{sHI}, v{src}")
            else:
                uu = u + 2 * (k & 1)
                p(f"v_lshlrev_b32 v{uu}, 16, v{src}")
                p(f"v_and_b32 v{uu+1}, s{sHI}, v{src}")
                p(f"v_pk_add_f32 v[{A10+2*k}:{A10+2*k+1}], v[{A10+2*k}:{A10+2*k+1}], v[{uu}:{uu+1}]")
        retry.append(r)
    p("s_branch L_b_sum1")
    sRET = 90
    for r in retry:
        p.label(f"L_b_rty1_{r}")
        p(f"s_add_u32 s{sCNT}, s{sCNT}, 1\n s_cmp_gt_u32 s{sCNT}, {SPIN_MAX}\n s_cbranch_scc1 L_b_ok1_{r}")
        ld_part(r)
        p(f"""
        s_waitcnt vmcnt(0)
        v_max3_u32 v{mx}, v{L+4*r}, v{L+4*r+1}, v{L+4*r+2}
        v_max3_u32 v{mx}, v{mx}, v{L+4*r+3}, v{L+44+r}
        v_cmp_eq_u32 vcc, -1, v{mx}
        s_cbranch_vccnz L_b_rty1_{r}
        """)
        if r < 10:
            p(f"s_mov_b32 s{sRET}, {r}\n s_branch L_b_ref1_{r+1}")
        else:
            p(f"s_branch L_b_ok1_{r}")
    for r in range(1, 11):
        p.label(f"L_b_ref1_{r}")
        ld_part(r)
    for r in range(10):
        p(f"s_cmp_eq_u32 s{sRET}, {r}\n s_cbranch_scc1 L_b_ok1_{r}")
    p("s_branch L_b_ok1_9")
    p.label("L_b_sum1")
    for k in range(5):
        p(f"v_cvt_pk_bf16_f32 v{L+k}, v{A10+2*k}, v{A10+2*k+1}")
    p(f"""
    s_lshl_b32 s{sT1}, s{sWR}, 10
    s_add_u32 s{sT1}, s{sT1}, {AST}
    v_lshl_add_u32 v{t0}, v{vLane}, 4, s{sT1}
    ds_write_b128 v{t0}, v[{L}:{L+3}]
    s_lshl_b32 s{sT1}, s{sWR}, 8
    s_add_u32 s{sT1}, s{sT1}, {AST + 4096}
    v_lshl_add_u32 v{t1}, v{vLane}, 2, s{sT1}
    ds_write_b32 v{t1}, v{L+4}
    s_waitcnt lgkmcnt(0)
    s_barrier
    """)
    stamp(p, 8)
    p("s_branch L_b_final")
    V.free = list(snap)
    p.label("L_b_qtype")
    p("s_waitcnt lgkmcnt(0)\n s_barrier")
    vNq = V.alloc()
    p(f"v_mov_b32 v{vNq}, {DBG_CNT}\n global_load_dword v{vNq}, v{vNq}, s[{S_DBG}:{S_DBG+1}] sc1")
    stamp(p, 4)
    for x in merge([softmax(nt, [TT[nt], TT[nt] + 6]) for nt in range(3)]): p(x)
    for nt in range(3):
        p(f"v_mov_b32 v{TT[nt]+5}, 0\n v_mov_b32 v{TT[nt]+11}, 0")
    p(f"v_mov_b32 v{TT[2]+12}, 0\n v_mov_b32 v{TT[2]+13}, 0")
    stamp(p, 5)
    for r, n in [(P, 24), (vRow, 1), (vFA, 16)] + [(x, 20) for x in EE] + [(y, 2) for x in SS for y in x]:
        V.release(r, n)
    wait_cleared("q", vNq, 0)
    V.release(vNq)
    p("s_waitcnt vmcnt(0) lgkmcnt(0)\n s_barrier")
    stamp(p, 6)
    AF = V.alloc(32, align=4)
    p(f"""
    v_lshlrev_b32 v{t0}, 4, v{vLane}
    v_add_u32 v{t0}, {AST}, v{t0}
    v_lshlrev_b32 v{t1}, 2, v{vLane}
    v_add_u32 v{t1}, {AST+4096}, v{t1}
    """)
    for k in range(4):
        p(f"ds_read_b128 v[{AF+8*k}:{AF+8*k+3}], v{t0} offset:{1024*k}")
        p(f"ds_read_b32 v{AF+8*k+4}, v{t1} offset:{256*k}")
    for k in range(4):
        for z in (5, 6, 7): p(f"v_mov_b32 v{AF+8*k+z}, 0")
    vOa = V.alloc(); vOb = V.alloc()
    ODs = [V.alloc(16, align=4) for _ in range(3)]; ws_ = [V.alloc(8, align=4) for _ in range(3)]
    sEPS = 97
    p(f"""
    s_mov_b32 s{sEPS}, 0x358637bd
    s_mul_i32 s{sT0}, s{sRB}, 12
    s_mul_i32 s{sT1}, s{sWR}, 3
    s_add_u32 s{sT0}, s{sT0}, s{sT1}
    s_mul_i32 s{sT0}, s{sT0}, {O_TILE}
    s_mul_i32 s{sT1}, s{sHP}, 1280
    s_add_u32 s{sT0}, s{sT0}, s{sT1}
    s_add_u32 s{sT0}, s{sT0}, {WS_O}
    v_lshl_add_u32 v{vOa}, v{vLane}, 4, s{sT0}
    v_lshlrev_b32 v{t0}, 4, v{vI}
    v_lshl_add_u32 v{t0}, v{vG}, 3, v{t0}
    s_add_u32 s{sT0}, s{sT0}, 1024
    v_add_u32 v{vOb}, s{sT0}, v{t0}
    v_cmp_gt_u32 vcc, 16, v{vLane}
    s_mov_b32 s{sT2}, {O_TILE}
    s_mov_b32 s{sT3}, {2*O_TILE}
    s_waitcnt lgkmcnt(0)
    """)
    stamp(p, 8)
    streams = []
    for nt in range(3):
        OD = ODs[nt]; w = ws_[nt]
        L = []
        for h in range(2):
            b = TT[nt] + 6*h
            a0_ = AF + 8*h; a1_ = AF + 8*(h + 2)
            o0 = OD + 8*h; o1 = o0 + 4
            L += [f"v_mfma_f32_16x16x32_bf16 v[{o0}:{o0+3}], v[{a0_}:{a0_+3}], v[{b}:{b+3}], 0",
                  f"v_mfma_f32_16x16x32_bf16 v[{o1}:{o1+3}], v[{a1_}:{a1_+3}], v[{b}:{b+3}], 0",
                  f"v_mfma_f32_16x16x32_bf16 v[{o0}:{o0+3}], v[{a0_+4}:{a0_+7}], v[{b+4}:{b+7}], v[{o0}:{o0+3}]",
                  f"v_mfma_f32_16x16x32_bf16 v[{o1}:{o1+3}], v[{a1_+4}:{a1_+7}], v[{b+4}:{b+7}], v[{o1}:{o1+3}]"]
        y = [w + 6, w + 7]
        L += [f"v_mov_b32 v{y[0]}, v{OD+4}", f"v_mov_b32 v{y[1]}, v{OD+12}",
              f"v_permlane16_swap_b32 v{OD+4}, v{y[0]}", f"v_permlane16_swap_b32 v{y[1]}, v{OD+12}",
              f"v_add_f32 v{y[0]}, s{sEPS}, v{y[0]}", f"v_add_f32 v{y[1]}, s{sEPS}, v{y[1]}",
              f"v_rcp_f32 v{y[0]}, v{y[0]}", f"v_rcp_f32 v{y[1]}, v{y[1]}"]
        for h in range(2):
            for r in range(0, 8, 2):
                a = OD + 8*h + r
                L.append(f"v_pk_mul_f32 v[{a}:{a+1}], v[{a}:{a+1}], v[{w+6}:{w+7}] op_sel:[0,{h}] op_sel_hi:[1,{h}]")
        L += [f"v_cvt_pk_bf16_f32 v{w}, v{OD}, v{OD+1}", f"v_cvt_pk_bf16_f32 v{w+1}, v{OD+2}, v{OD+3}",
              f"v_cvt_pk_bf16_f32 v{w+2}, v{OD+8}, v{OD+9}", f"v_cvt_pk_bf16_f32 v{w+3}, v{OD+10}, v{OD+11}",
              f"v_cvt_pk_bf16_f32 v{OD+4}, v{OD+4}, v{OD+5}", f"v_cvt_pk_bf16_f32 v{OD+5}, v{OD+6}, v{OD+7}",
              f"v_cvt_pk_bf16_f32 v{OD+12}, v{OD+12}, v{OD+13}", f"v_cvt_pk_bf16_f32 v{OD+13}, v{OD+14}, v{OD+15}",
              f"v_cndmask_b32 v{w+4}, v{OD+12}, v{OD+4}, vcc", f"v_cndmask_b32 v{w+5}, v{OD+13}, v{OD+5}, vcc"]
        streams.append(L)
    for x in merge(streams): p(x)
    stamp(p, 15)
    so = ["0", f"s{sT2}", f"s{sT3}"]
    for nt in range(3):
        p(f"buffer_store_dwordx4 v[{ws_[nt]}:{ws_[nt]+3}], v{vOa}, s[{SRD_WS}:{SRD_WS+3}], {so[nt]} offen sc1")
    p("s_mov_b32 exec_hi, 0")
    for nt in range(3):
        p(f"buffer_store_dwordx2 v[{ws_[nt]+4}:{ws_[nt]+5}], v{vOb}, s[{SRD_WS}:{SRD_WS+3}], {so[nt]} offen sc1")
    p("s_mov_b32 exec_hi, -1")
    stamp(p, 7)
    p.label("L_b_final")
    V.free = [i > t3 for i in range(V.limit)]
    sRQ, sKH = 95, 96
    OF = V.alloc(80, align=4)
    vR = V.alloc(); vPl = V.alloc(); mx = V.alloc(); pv = V.alloc()
    p(f"""
    s_cmp_ge_u32 s2, 160
    s_cbranch_scc1 L_b_done
    s_lshr_b32 s{sT0}, s2, 3
    s_cmp_ge_u32 s{sT0}, 10
    s_cselect_b32 s{sT1}, 1, 0
    s_and_b32 s{sT2}, s2, 7
    s_lshl_b32 s{sT2}, s{sT2}, 1
    s_add_u32 s{sRT}, s{sT2}, s{sT1}
    s_mul_i32 s{sT1}, s{sT1}, 10
    s_sub_u32 s{sCG}, s{sT0}, s{sT1}
    s_and_b32 s{sRQ}, s{sW}, 3
    s_lshr_b32 s{sKH}, s{sW}, 2
    s_lshl_b32 s{sT0}, s{sRT}, 3
    s_lshl_b32 s{sT1}, s{sRQ}, 1
    s_add_u32 s{sT0}, s{sT0}, s{sT1}
    s_mul_i32 s{sT0}, s{sT0}, {O_TILE}
    s_mul_i32 s{sT1}, s{sKH}, 10240
    s_add_u32 s{sT0}, s{sT0}, s{sT1}
    s_add_u32 s{sT0}, s{sT0}, {WS_O}
    v_lshl_add_u32 v{vR}, v{vLane}, 4, s{sT0}
    s_mov_b32 s{sCNT}, 0
    """)
    vA = V.alloc(4, align=1)
    p(f"""
    v_lshrrev_b32 v{t2}, 2, v{vI}
    v_bfe_u32 v{t3}, v{t2}, 1, 1
    v_and_b32 v{t0}, 1, v{vG}
    v_lshl_add_u32 v{t3}, v{t0}, 1, v{t3}        ; psi
    v_bfe_u32 v{t0}, v{vI}, 1, 1
    v_lshlrev_b32 v{t0}, 4, v{t0}
    v_and_b32 v{t1}, 1, v{vI}
    v_lshl_add_u32 v{t0}, v{t1}, 3, v{t0}
    v_lshl_add_u32 v{t2}, v{vG}, 3, v{t2}
    v_lshl_add_u32 v{t0}, v{t2}, 7, v{t0}
    s_mul_i32 s{sT1}, s{sKH}, {320*128}
    v_add_u32 v{t0}, s{sT1}, v{t0}
    """)
    for mt in range(4):
        p(f"v_xor_b32 v{t1}, {mt}, v{t3}\n v_lshl_add_u32 v{vA+mt}, v{t1}, 5, v{t0}")
    FAc = V.alloc(32, align=4); WA = [V.alloc(16, align=4), V.alloc(16, align=4)]
    def wreads(ks):
        b = WA[ks & 1]
        return [f"ds_read_b64_tr_b16 v[{b+4*mt+2*h}:{b+4*mt+2*h+1}], v{vA+mt} offset:{WO_IMG + 4096*ks + 512*h}" for mt in range(4) for h in range(2)]
    def ld_o(ks):
        for nt in range(2):
            p(f"s_mov_b32 s{sT1}, {O_TILE*nt + 4096*(ks >> 2)}")
            p(f"buffer_load_dwordx4 v[{OF+8*ks+4*nt}:{OF+8*ks+4*nt+3}], v{vR}, s[{SRD_WS}:{SRD_WS+3}], s{sT1} offen offset:{1024*(ks & 3)} sc1")
    for ks in range(10): ld_o(ks)
    for x in wreads(0): p(x)
    for ks in range(10):
        nxt = wreads(ks + 1) if ks < 9 else []
        p(f"s_waitcnt vmcnt({2*(9-ks)})")
        p.label(f"L_b_chk2_{ks}")
        o = OF + 8*ks
        p(f"""
        v_max3_u32 v{mx}, v{o}, v{o+1}, v{o+2}
        v_max3_u32 v{pv}, v{o+3}, v{o+4}, v{o+5}
        v_max3_u32 v{mx}, v{mx}, v{o+6}, v{o+7}
        v_max_u32 v{mx}, v{mx}, v{pv}
        v_cmp_eq_u32 vcc, -1, v{mx}
        s_cbranch_vccnz L_b_rty2_{ks}
        """)
        p.label(f"L_b_ok2_{ks}")
        if ks == 0: stamp(p, 9)
        p("s_waitcnt lgkmcnt(0)")
        k = 0
        for mt in range(4):
            for nt in range(2):
                a = FAc + 16*nt + 4*mt
                c = "0" if ks == 0 else f"v[{a}:{a+3}]"
                p(f"v_mfma_f32_16x16x32_bf16 v[{a}:{a+3}], v[{WA[ks&1]+4*mt}:{WA[ks&1]+4*mt+3}], v[{OF+8*ks+4*nt}:{OF+8*ks+4*nt+3}], {c}")
                if k < 4 and nxt:
                    p(nxt[2*k]); p(nxt[2*k+1])
                k += 1
    p("s_branch L_b_ok2")
    sRET = 90
    for ks in range(10):
        p.label(f"L_b_rty2_{ks}")
        p(f"s_add_u32 s{sCNT}, s{sCNT}, 1\n s_cmp_gt_u32 s{sCNT}, {SPIN_MAX}\n s_cbranch_scc1 L_b_ok2_{ks}")
        ld_o(ks)
        o = OF + 8*ks
        p(f"""
        s_waitcnt vmcnt(0)
        v_max3_u32 v{mx}, v{o}, v{o+1}, v{o+2}
        v_max3_u32 v{pv}, v{o+3}, v{o+4}, v{o+5}
        v_max3_u32 v{mx}, v{mx}, v{o+6}, v{o+7}
        v_max_u32 v{mx}, v{mx}, v{pv}
        v_cmp_eq_u32 vcc, -1, v{mx}
        s_cbranch_vccnz L_b_rty2_{ks}
        """)
        if ks < 9:
            p(f"s_mov_b32 s{sRET}, {ks}\n s_branch L_b_ref2_{ks+1}")
        else:
            p(f"s_branch L_b_ok2_{ks}")
    for ks in range(1, 10):
        p.label(f"L_b_ref2_{ks}")
        ld_o(ks)
    for ks in range(9):
        p(f"s_cmp_eq_u32 s{sRET}, {ks}\n s_cbranch_scc1 L_b_ok2_{ks}")
    p("s_branch L_b_ok2_8")
    p.label("L_b_ok2")
    stamp(p, 10)
    p(f"""
    s_lshl_b32 s{sT0}, s{sW}, 12
    s_add_u32 s{sT0}, s{sT0}, {RED}
    v_lshl_add_u32 v{t0}, v{vLane}, 4, s{sT0}
    s_xor_b32 s{sT1}, s{sW}, 4
    s_lshl_b32 s{sT1}, s{sT1}, 12
    s_add_u32 s{sT1}, s{sT1}, {RED}
    v_lshl_add_u32 v{t1}, v{vLane}, 4, s{sT1}
    s_lshl_b32 s{sT0}, s{sRT}, 7
    s_lshl_b32 s{sT1}, s{sRQ}, 5
    s_add_u32 s{sT0}, s{sT0}, s{sT1}
    s_lshl_b32 s{sT1}, s{sKH}, 4
    s_add_u32 s{sT0}, s{sT0}, s{sT1}
    v_add_u32 v{t2}, s{sT0}, v{vI}
    v_mul_u32_u24 v{t2}, 2560, v{t2}
    v_and_b32 v{t3}, 1, v{vG}
    v_lshl_add_u32 v{t2}, v{t3}, 5, v{t2}
    v_lshrrev_b32 v{t3}, 1, v{vG}
    v_lshl_add_u32 v{t2}, v{t3}, 4, v{t2}
    s_lshl_b32 s{sT0}, s{sCG}, 7
    s_add_u32 s{sT0}, s{sT0}, 1280
    v_add_u32 v{t2}, s{sT0}, v{t2}
    s_cmp_eq_u32 s{sKH}, 0
    s_cbranch_scc1 L_b_red0
    """)
    def finish(keep):
        p("s_waitcnt lgkmcnt(0)\n s_barrier")
        for k in range(4):
            p(f"ds_read_b128 v[{OF+4*k}:{OF+4*k+3}], v{t1} offset:{1024*k}")
        for a2 in range(2):
            for mt in (2*a2, 2*a2 + 1):
                a = keep + 4*mt; b = OF + 4*mt
                p(f"s_waitcnt lgkmcnt({3-mt})")
                p(f"v_pk_add_f32 v[{a}:{a+1}], v[{a}:{a+1}], v[{b}:{b+1}]")
                p(f"v_pk_add_f32 v[{a+2}:{a+3}], v[{a+2}:{a+3}], v[{b+2}:{b+3}]")
            A = keep + 8*a2; B = A + 4; d = OF + 16 + 4*a2
            p(f"""
            v_cvt_pk_bf16_f32 v{d}, v{A}, v{A+1}
            v_cvt_pk_bf16_f32 v{d+1}, v{A+2}, v{A+3}
            v_cvt_pk_bf16_f32 v{d+2}, v{B}, v{B+1}
            v_cvt_pk_bf16_f32 v{d+3}, v{B+2}, v{B+3}
            v_permlane16_swap_b32 v{d}, v{d+2}
            v_permlane16_swap_b32 v{d+1}, v{d+3}
            buffer_store_dwordx4 v[{d}:{d+3}], v{t2}, s[{SRD_O}:{SRD_O+3}], 0 offen offset:{64*a2}
            """)
    for k in range(4):
        p(f"ds_write_b128 v{t0}, v[{FAc+4*k}:{FAc+4*k+3}] offset:{1024*k}")
    finish(FAc + 16)
    p("s_branch L_b_done")
    p.label("L_b_red0")
    for k in range(4):
        p(f"ds_write_b128 v{t0}, v[{FAc+16+4*k}:{FAc+16+4*k+3}] offset:{1024*k}")
    finish(FAc)
    p.label("L_b_done")
    dbgmax(p, 9, t2, t3, sW)
    stamp(p, 11)
    if common.DIAG:
        p('s_waitcnt vmcnt(0)')
        stamp(p, 12)
        stamps_flush(p, t0, t1)
    return V
```

```python
import re

TRANS = ("v_exp_f32", "v_log_f32", "v_rcp_f32", "v_rsq_f32", "v_sqrt_f32", "v_sin_f32", "v_cos_f32", "v_rcp_iflag_f32")

def _regs(tok):
    tok = tok.strip()
    tok = re.sub(r"^(neg|abs)\((.*)\)$", r"\2", tok)
    tok = tok.lstrip("-").strip("|")
    m = re.fullmatch(r"([vsa])(\d+)", tok)
    if m:
        return {(m.group(1), int(m.group(2)))}
    m = re.fullmatch(r"([vsa])\[(\d+):(\d+)\]", tok)
    if m:
        return {(m.group(1), i) for i in range(int(m.group(2)), int(m.group(3)) + 1)}
    if tok == "vcc":
        return {("s", 106), ("s", 107)}
    if tok == "vcc_lo":
        return {("s", 106)}
    if tok == "vcc_hi":
        return {("s", 107)}
    if tok == "exec":
        return {("s", 126), ("s", 127)}
    if tok == "exec_lo":
        return {("s", 126)}
    if tok == "exec_hi":
        return {("s", 127)}
    if tok == "m0":
        return {("s", 124)}
    return set()

class Ins:
    __slots__ = ("text", "mn", "ops", "cls", "vw", "vr", "sw", "sr", "passes", "A", "B", "C", "D", "dpp", "lds", "storedata", "ws")
    def __init__(self, text):
        self.text = text
        t = text.split(";")[0].split("//")[0].strip()
        self.mn = t.split()[0] if t else ""
        rest = t[len(self.mn):].strip()
        ops = []
        if rest:
            parts = [p.strip() for p in re.split(r",(?![^\[]*\])", rest)]
            last = parts[-1].split()
            if last:
                parts[-1] = last[0]
                mods = last[1:]
            else:
                mods = []
            ops = parts
        else:
            mods = []
        self.ops = ops
        mn = self.mn
        self.vw = set(); self.vr = set(); self.sw = set(); self.sr = set()
        self.passes = 0; self.A = self.B = self.C = self.D = set()
        self.dpp = ("_dpp" in mn) or any(m.startswith(("quad_perm", "row_", "wave_")) for m in mods)
        self.lds = "lds" in mods
        self.storedata = set()
        self.ws = 1
        R = [_regs(o) for o in ops]
        def split(regsets, w=False):
            for rs in regsets:
                for r in rs:
                    if r[0] in "va":
                        (self.vw if w else self.vr).add(r)
                    else:
                        (self.sw if w else self.sr).add(r)
        if mn.startswith("v_mfma"):
            self.cls = "mfma"
            self.passes = 8 if "32x32x16" in mn else 4 if "16x16x32" in mn else None
            assert self.passes, mn
            self.D, self.A, self.B = R[0], R[1], R[2]
            self.C = R[3]
            split([R[0]], True); split(R[1:])
        elif mn.startswith("v_"):
            self.cls = "trans" if mn.replace("_e32", "").replace("_e64", "") in TRANS else "valu"
            if mn.startswith("v_permlane") and "swap" in mn:
                split(R[:2], True); split(R[:2])
            elif mn.startswith(("v_add_co", "v_sub_co", "v_addc_co", "v_subb_co", "v_subrev_co")):
                split(R[:2], True); split(R[2:])
            elif mn.startswith("v_cmpx"):
                split(R[:1], True); self.sw |= {("s", 126), ("s", 127)}; split(R[1:])
            else:
                split(R[:1], True); split(R[1:])
                if mn.startswith(("v_fmac", "v_pk_fmac", "v_dot2c", "v_mac")) or "d16" in mn:
                    split(R[:1])
                if self.dpp:
                    split(R[:1])
        elif mn.startswith("ds_"):
            self.cls = "ds"
            if mn.startswith(("ds_read", "ds_bpermute", "ds_permute", "ds_swizzle")):
                split(R[:1], True); split(R[1:])
                if "d16" in mn: split(R[:1])
            else:
                split(R)
        elif mn.startswith(("buffer_", "global_", "flat_")):
            self.cls = "vmem"
            if mn in ("buffer_wbl2", "buffer_inv"):
                pass
            elif "load" in mn:
                if self.lds or "_lds_" in mn:
                    split(R)
                    self.lds = True
                    self.sr.add(("s", 124))
                else:
                    split(R[:1], True); split(R[1:])
                    if "d16" in mn: split(R[:1])
            elif "store" in mn:
                split(R)
                data = R[0] if mn.startswith("buffer_") else R[1]
                if "x3" in mn or "x4" in mn:
                    self.storedata = set(data)
            elif "atomic" in mn:
                split(R)
                if "sc0" in mods:
                    split(R[:1], True)
            else:
                raise ValueError(text)
        elif mn.startswith("s_"):
            self.cls = "salu"
            if mn == "s_nop":
                self.ws = int(ops[0], 0) + 1
            elif mn.startswith(("s_cmp", "s_bitcmp", "s_waitcnt", "s_barrier", "s_branch", "s_cbranch", "s_setprio", "s_sleep", "s_endpgm", "s_setreg")):
                split(R)
            elif mn.startswith(("s_load", "s_buffer_load", "s_memtime", "s_memrealtime")):
                self.cls = "smem"
                split(R[:1], True); split(R[1:])
            else:
                split(R[:1], True); split(R[1:])
                if "saveexec" in mn:
                    self.sw |= {("s", 126), ("s", 127)}
        else:
            raise ValueError("unknown instr: " + text)

def need(p, c):
    n = 0
    pv = p.cls in ("valu", "trans")
    cv = c.cls in ("valu", "trans")
    if pv:
        w = p.vw
        if c.cls == "mfma" and (w & c.vr):
            n = max(n, 2)
        if cv and c.mn.startswith("v_permlane") and (w & c.vr):
            n = max(n, 2)
        if cv and c.dpp and (w & c.vr):
            n = max(n, 2)
        if cv and c.mn.startswith(("v_readlane", "v_readfirstlane")) and (w & c.vr):
            n = max(n, 1)
        if p.cls == "trans" and (w & c.vr) and c.cls != "trans":
            n = max(n, 1)
        sw = p.sw
        if sw:
            if cv and (sw & c.sr):
                n = max(n, 2)
                if c.mn.startswith(("v_readlane", "v_writelane")):
                    n = max(n, 4)
            if c.cls == "vmem" and (sw & c.sr):
                n = max(n, 5)
            if c.cls in ("salu", "smem") and (sw & c.sr):
                n = max(n, 4)
            if (("s", 126) in sw):
                if c.cls == "mfma": n = max(n, 4)
                if c.dpp: n = max(n, 5)
                if c.mn.startswith("v_permlane"): n = max(n, 4)
    if p.mn.startswith("v_dot") and (p.vw & (c.vr | c.vw)):
        same_c = c.mn == p.mn and len(c.ops) == 4 and (p.vw & _regs(c.ops[3])) and not (p.vw & (_regs(c.ops[1]) | _regs(c.ops[2])))
        if not same_c: n = max(n, 3)
    if p.cls == "mfma":
        P = p.passes
        t_raw = {4: 8, 8: 12}[P]
        t_ovl = {4: 6, 8: 10}[P]
        t_war = {4: 3, 8: 7}[P]
        if c.cls == "mfma":
            if p.D & (c.A | c.B):
                n = max(n, t_raw)
            if p.D & c.C:
                if not (p.D == c.C and p.passes == c.passes):
                    n = max(n, t_ovl)
            if (p.D & c.D) and not (p.D & c.C):
                n = max(n, t_raw)
        else:
            if p.D & (c.vr | c.vw):
                n = max(n, t_raw)
            if cv and (p.C & c.vw):
                n = max(n, t_war)
            if c.cls in ("ds", "vmem") and (p.C & c.vw):
                n = max(n, t_war)
    if p.cls == "salu" and (("s", 124) in p.sw) and c.cls == "vmem" and c.lds:
        n = max(n, 1)
    if p.storedata and (p.storedata & c.vw):
        n = max(n, 2 if cv else 1)
    return n

WINDOW = 24

class Prog:
    def __init__(self):
        self.items = []
    def __call__(self, s):
        for l in s.split("\n"):
            t = l.strip()
            if not t:
                continue
            if t.startswith(";"):
                self.items.append(("c", t)); continue
            if re.fullmatch(r"[\w.$]+:", t):
                self.items.append(("l", t[:-1])); continue
            if t.startswith("."):
                self.items.append(("c", t)); continue
            self.items.append(("i", Ins(t)))
    def label(self, name):
        self.items.append(("l", name))
    def finalize(self, verbose=False):
        out = []
        hist = []
        nnop = 0
        for kind, x in self.items:
            if kind != "i":
                out.append((kind, x)); continue
            req = 0
            dist = 0
            for p in reversed(hist[-WINDOW:]):
                r = need(p, x) - dist
                if r > req: req = r
                dist += p.ws
                if dist > 20: break
            if req > 0:
                nop = Ins(f"s_nop {req-1}")
                out.append(("i", nop)); hist.append(nop); nnop += req
            out.append(("i", x)); hist.append(x)
            if x.mn in ("s_branch", "s_endpgm"):
                hist = []
        self.final = out
        self._check_seams()
        self._check_pending()
        if verbose: print("inserted wait states:", nnop)
        lines = []
        for kind, x in out:
            if kind == "i": lines.append("    " + x.text)
            elif kind == "l": lines.append(x + ":")
            else: lines.append(x)
        return "\n".join(lines) + "\n"
    def _check_pending(self):
        vm, lg = [], []
        warn = 0
        for kind, x in self.final:
            if kind != "i": continue
            if x.mn in ("s_endpgm", "s_branch"):
                vm, lg = [], []
                continue
            if x.mn == "s_waitcnt":
                t = x.text
                m = re.search(r"vmcnt\((\d+)\)", t)
                if m:
                    n = int(m.group(1))
                    while len(vm) > n: vm.pop(0)
                m = re.search(r"lgkmcnt\((\d+)\)", t)
                if m:
                    n = int(m.group(1))
                    while len(lg) > n: lg.pop(0)
                continue
            touch = {r for r in (x.vr | x.vw) if r[0] == "v"}
            for q, nm in ((vm, "vm"), (lg, "lgkm")):
                for dst, txt in q:
                    hit = dst & touch
                    if hit and not (x.cls in ("vmem", "ds") and hit <= x.vw and not (hit & x.vr)):
                        if ("v", 167) in hit: continue
                        warn += 1
                        if warn < 20: print(f"PENDING[{nm}] {x.text.strip()}   <- outstanding: {txt.strip()}")
            if x.cls == "vmem":
                vm.append((set(x.vw), x.text))
            elif x.cls == "ds":
                lg.append((set(x.vw), x.text))
            elif x.cls == "smem":
                lg.append((set(), x.text))
        if warn: print("pending-load warnings:", warn)
    def _check_seams(self):
        out = self.final
        pos = {x: i for i, (k, x) in enumerate(out) if k == "l"}
        for i, (k, x) in enumerate(out):
            if k == "i" and x.mn.startswith(("s_branch", "s_cbranch")):
                tgt = x.ops[0]
                if tgt not in pos:
                    raise ValueError("unknown label " + tgt)
                tail = [y for kk, y in out[max(0, i - 60):i + 1] if kk == "i"][-WINDOW:]
                head = []
                for kk, y in out[pos[tgt]:pos[tgt] + 60]:
                    if kk == "i":
                        head.append(y)
                        if y.mn in ("s_branch", "s_endpgm"): break
                head = head[:WINDOW]
                seq = list(tail)
                for c in head:
                    dist = 0
                    for p in reversed(seq):
                        if need(p, c) > dist:
                            raise ValueError(f"hazard across branch '{x.text}': {p.text}  ->  {c.text} needs {need(p,c)} has {dist}")
                        dist += p.ws
                        if dist > 20: break
                    seq.append(c)

class VAlloc:
    def __init__(self, limit=256, start=1):
        self.free = [True] * limit
        for i in range(start): self.free[i] = False
        self.limit = limit
        self.high = start
        self.names = {}
    def alloc(self, n=1, align=None, name=None):
        if align is None:
            align = 2 if n >= 2 else 1
        i = 0
        while i + n <= self.limit:
            if i % align == 0 and all(self.free[i:i + n]):
                for j in range(i, i + n): self.free[j] = False
                self.high = max(self.high, i + n)
                if name: self.names[name] = (i, n)
                return i
            i += 1
        raise RuntimeError(f"out of registers allocating {n} ({name})")
    def release(self, base, n=1):
        for j in range(base, base + n):
            assert not self.free[j], (base, n)
            self.free[j] = True
    def used(self):
        return sum(1 for f in self.free if not f)

def vr(b, n=1):
    return f"v{b}" if n == 1 else f"v[{b}:{b+n-1}]"
def sr(b, n=1):
    return f"s{b}" if n == 1 else f"s[{b}:{b+n-1}]"
```

```python
from common import *
import common

SLOT = 40960
WOFF = 24576
WO_IMG = 0
PHI = 81920
RS = 296
AST = 139264
RED = 81920
WS_PART = 65536
PART_STRIDE = 5120
WS_O = 1 << 20
O_TILE = 20480
WS_SIZE = 16 << 20
SPIN_MAX = 1 << 14
DBG_CNT = 4

def merge(streams):
    out = []
    n = max(len(s) for s in streams)
    for j in range(n):
        for s in streams:
            if j < len(s): out.append(s[j])
    return out

def gen_part_b(p):
    V = VAlloc(VGPRS - 1, start=1)
    sJ, sI, sT, sRB, sHP, sW, sWR, sTY = 32, 33, 34, 35, 36, 37, 38, 39
    SRD_X, SRD_W, SRD_WS, SRD_WO, SRD_O = 40, 44, 48, 52, 56
    sT0, sT1, sT2, sT3 = 60, 61, 62, 63
    sKC = 81; sS = 82; sSLOTD = 83; sXO = 84; sWO = 85; sM0 = 86; sROW0 = 87
    sL = 88
    sRT, sCG, sDSLOT = 92, 93, 94
    sNEG = 100; sCNT = 101
    OPT = common.OPT
    p(f"""
    s_and_b32 s{sJ}, s2, 7
    s_lshr_b32 s{sI}, s2, 3
    s_lshr_b32 s{sT0}, s{sJ}, 2
    s_mul_i32 s{sT0}, s{sT0}, 22
    s_add_u32 s{sT}, s{sT0}, s{sI}
    s_lshr_b32 s{sRB}, s{sT}, 2
    s_and_b32 s{sT0}, s{sT}, 3
    s_and_b32 s{sT1}, s{sJ}, 3
    s_lshl_b32 s{sT1}, s{sT1}, 2
    s_add_u32 s{sHP}, s{sT1}, s{sT0}
    s_mul_i32 s{sROW0}, s{sRB}, 192
    s_mul_i32 s{sT1}, s{sT0}, 3
    s_lshl_b32 s{sT2}, s{sRB}, 1
    s_add_u32 s{sKC}, s{sT1}, s{sT2}
    s_mul_i32 s{sT1}, s{sKC}, 205
    s_lshr_b32 s{sT1}, s{sT1}, 11
    s_mul_i32 s{sT1}, s{sT1}, 10
    s_sub_u32 s{sKC}, s{sKC}, s{sT1}
    """)
    if 'rot0' in OPT: p(f"s_mov_b32 s{sKC}, 0")
    if 'rot2' in OPT: p(f"s_and_b32 s{sKC}, s{sT}, 1\n s_mul_i32 s{sKC}, s{sKC}, 5")
    vLane = V.alloc(); vI = V.alloc(); vG = V.alloc(); t0 = V.alloc(); t1 = V.alloc(); t2 = V.alloc(); t3 = V.alloc()
    p(f"""
    v_lshrrev_b32 v{t0}, 6, v0
    v_and_b32 v{vLane}, 63, v0
    v_readfirstlane_b32 s{sW}, v{t0}
    v_and_b32 v{vI}, 15, v{vLane}
    v_lshrrev_b32 v{vG}, 4, v{vLane}
    s_and_b32 s{sWR}, s{sW}, 3
    s_lshr_b32 s{sTY}, s{sW}, 2
    s_cmp_eq_u32 s{sTY}, 2
    s_cbranch_scc0 L_b_compute
    """)
    mark = list(V.free)
    vX = [V.alloc(), V.alloc()]; vW = [V.alloc(), V.alloc()]
    p(f"""
    s_mul_i32 s{sT0}, s{sWR}, 48
    s_add_u32 s{sT0}, s{sT0}, s{sROW0}
    v_lshrrev_b32 v{t0}, 3, v{vLane}
    v_add_u32 v{t0}, s{sT0}, v{t0}
    v_mul_u32_u24 v{t0}, 1280, v{t0}
    v_and_b32 v{t1}, 7, v{vLane}
    v_xor_b32 v{t2}, v{t1}, v{vG}
    v_lshl_add_u32 v{vX[0]}, v{t2}, 4, v{t0}
    v_xor_b32 v{t2}, 4, v{t2}
    v_lshl_add_u32 v{vX[1]}, v{t2}, 4, v{t0}
    """)
    for hv in range(2):
        p(f"""
        v_lshlrev_b32 v{t0}, 1, v{vG}
        v_add_u32 v{t0}, {8*hv}, v{t0}
        v_xor_b32 v{t0}, v{t0}, v{vI}
        v_min_u32 v{t0}, 14, v{t0}
        ; c<5: 1280+16c ; c<8: 2560+16(c-5) ; c<13: 16(c-8) ; else 2560+16(c-10)
        v_lshlrev_b32 v{t1}, 4, v{t0}
        v_add_u32 v{t2}, {2560-160}, v{t1}
        v_subrev_u32 v{t3}, 128, v{t1}
        v_cmp_gt_u32 vcc, 13, v{t0}
        v_cndmask_b32 v{t2}, v{t2}, v{t3}, vcc
        v_add_u32 v{t3}, {2560-80}, v{t1}
        v_cmp_gt_u32 vcc, 8, v{t0}
        v_cndmask_b32 v{t2}, v{t2}, v{t3}, vcc
        v_add_u32 v{t3}, 1280, v{t1}
        v_cmp_gt_u32 vcc, 5, v{t0}
        v_cndmask_b32 v{t2}, v{t2}, v{t3}, vcc
        s_mul_i32 s{sT0}, s{sHP}, 80
        s_mul_i32 s{sT1}, s{sWR}, {16*3840}
        s_add_u32 s{sT0}, s{sT0}, s{sT1}
        v_mul_u32_u24 v{t0}, 3840, v{vG}
        v_add3_u32 v{vW[hv]}, v{t0}, v{t2}, s{sT0}
        """)
    sMX, sMW = 90, 91
    p(f"""
    s_mul_i32 s{sMX}, s{sWR}, 6144
    s_lshl_b32 s{sMW}, s{sWR}, 12
    s_add_u32 s{sMW}, s{sMW}, {WOFF}
    s_mov_b32 s{sDSLOT}, 0
    s_waitcnt lgkmcnt(0)
    """)
    srd(p, SRD_X, S_X, 2048 * 1280)
    srd(p, SRD_W, S_WQKV, 640 * 3840)
    def dma_stage():
        p(f"s_lshl_b32 s{sXO}, s{sKC}, 7\n s_mul_i32 s{sWO}, s{sKC}, {64*3840}\n s_add_u32 s{sM0}, s{sMX}, s{sDSLOT}\n s_add_u32 s{sT2}, s{sMW}, s{sDSLOT}")
        order = [("x", 0), ("w", 0), ("x", 1), ("x", 2), ("w", 1), ("x", 3), ("w", 2), ("x", 4), ("x", 5), ("w", 3)]
        for kind, e in order:
            if 'nodma' in OPT: continue
            if kind == "x":
                p(f"s_add_u32 s{sT0}, s{sXO}, {8*e*1280}\n s_add_u32 m0, s{sM0}, {1024*e}")
                p(f"buffer_load_dwordx4 v{vX[e & 1]}, s[{SRD_X}:{SRD_X+3}], s{sT0} offen lds")
            else:
                p(f"s_add_u32 s{sT0}, s{sWO}, {4*e*3840}\n s_add_u32 m0, s{sT2}, {1024*e}")
                p(f"buffer_load_dwordx4 v{vW[e >> 1]}, s[{SRD_W}:{SRD_W+3}], s{sT0} offen lds")
        p(f"""
        s_add_u32 s{sKC}, s{sKC}, 1
        s_cmp_eq_u32 s{sKC}, 10
        s_cselect_b32 s{sKC}, 0, s{sKC}
        s_add_u32 s{sDSLOT}, s{sDSLOT}, {SLOT}
        s_cmp_eq_u32 s{sDSLOT}, {4*SLOT}
        s_cselect_b32 s{sDSLOT}, 0, s{sDSLOT}
        """)
    LA = 2 if ('la2' in OPT or 'st2' in OPT) else 3
    if 'st2' in OPT:
        dma_stage()
        p("s_barrier")
        stamp(p, 1)
        srd(p, SRD_WS, S_WS, WS_SIZE)
        srd(p, SRD_WO, S_WO, 640 * 1280)
        p("s_waitcnt vmcnt(0)")
        stamp(p, 2)
        p("s_barrier")
        stamp(p, 3)
        dma_stage()
    else:
        p(f"s_mov_b32 s{sS}, 0")
        p.label("L_p_pro")
        dma_stage()
        p(f"s_add_u32 s{sS}, s{sS}, 1\n s_cmp_lt_u32 s{sS}, {LA}\n s_cbranch_scc1 L_p_pro")
        stamp(p, 1)
        srd(p, SRD_WS, S_WS, WS_SIZE)
        srd(p, SRD_WO, S_WO, 640 * 1280)
        p(f"s_waitcnt vmcnt({10*(LA-1)})")
        stamp(p, 2)
        p("s_barrier")
        stamp(p, 3)
    assert LA == 3
    on4 = V.alloc(4, align=4); vC0 = V.alloc(); vC1 = V.alloc()
    def clear_part():
        p(f"""
        v_mov_b32 v{on4}, -1
        v_mov_b32 v{on4+1}, -1
        v_mov_b32 v{on4+2}, -1
        v_mov_b32 v{on4+3}, -1
        s_lshl_b32 s{sT0}, s{sRB}, 4
        s_add_u32 s{sT0}, s{sT0}, s{sHP}
        s_mul_i32 s{sT0}, s{sT0}, {PART_STRIDE}
        s_mul_i32 s{sT1}, s{sWR}, 1280
        s_add_u32 s{sT0}, s{sT0}, s{sT1}
        s_add_u32 s{sT0}, s{sT0}, {WS_PART}
        v_lshl_add_u32 v{vC0}, v{vLane}, 4, s{sT0}
        s_add_u32 s{sT0}, s{sT0}, 1024
        v_lshl_add_u32 v{vC1}, v{vLane}, 2, s{sT0}
        buffer_store_dwordx4 v[{on4}:{on4+3}], v{vC0}, s[{SRD_WS}:{SRD_WS+3}], 0 offen sc1
        buffer_store_dword v{on4}, v{vC1}, s[{SRD_WS}:{SRD_WS+3}], 0 offen sc1
        """)
    def clear_o():
        p(f"""
        s_mul_i32 s{sT0}, s{sRB}, 12
        s_mul_i32 s{sT1}, s{sWR}, 3
        s_add_u32 s{sT0}, s{sT0}, s{sT1}
        s_mul_i32 s{sT0}, s{sT0}, {O_TILE}
        s_mul_i32 s{sT1}, s{sHP}, 1280
        s_add_u32 s{sT0}, s{sT0}, s{sT1}
        s_add_u32 s{sT0}, s{sT0}, {WS_O}
        v_lshl_add_u32 v{vC0}, v{vLane}, 4, s{sT0}
        s_add_u32 s{sT0}, s{sT0}, 1024
        v_lshl_add_u32 v{vC1}, v{vLane}, 2, s{sT0}
        """)
        for nt in range(3):
            p(f"s_mov_b32 s{sT1}, {O_TILE*nt}")
            p(f"buffer_store_dwordx4 v[{on4}:{on4+3}], v{vC0}, s[{SRD_WS}:{SRD_WS+3}], s{sT1} offen sc1")
            p(f"buffer_store_dword v{on4}, v{vC1}, s[{SRD_WS}:{SRD_WS+3}], s{sT1} offen sc1")
    def count(word, name):
        p(f"""
        s_cmp_lg_u32 s{sWR}, 0
        s_cbranch_scc1 L_p_nocnt{name}
        v_mov_b32 v{t0}, {word}
        v_mov_b32 v{t1}, 1
        s_mov_b32 exec_lo, 1
        s_mov_b32 exec_hi, 0
        global_atomic_add v{t0}, v{t1}, s[{S_DBG}:{S_DBG+1}] sc1
        s_mov_b64 exec, -1
        """)
        p.label(f"L_p_nocnt{name}")
    def check(word, name):
        p(f"""
        s_cmp_lg_u32 s{sWR}, 0
        s_cbranch_scc1 L_p_clr_ok{name}
        s_mov_b32 s{sCNT}, 0
        s_mov_b32 exec_lo, 1
        s_mov_b32 exec_hi, 0
        v_mov_b32 v{t0}, {word}
        """)
        p.label(f"L_p_clr{name}")
        p(f"""
        global_load_dword v{t1}, v{t0}, s[{S_DBG}:{S_DBG+1}] sc1
        s_waitcnt vmcnt(0)
        v_readfirstlane_b32 s{sT0}, v{t1}
        s_cmp_ge_u32 s{sT0}, {N_B}
        s_cbranch_scc1 L_p_clr_ok{name}
        s_add_u32 s{sCNT}, s{sCNT}, 1
        s_cmp_gt_u32 s{sCNT}, {1 << 12}
        s_cbranch_scc1 L_p_clr_ok{name}
        s_sleep 16
        s_branch L_p_clr{name}
        """)
        p.label(f"L_p_clr_ok{name}")
        p("s_mov_b64 exec, -1")
    def wo_prefetch():
        p(f"""
        s_lshr_b32 s{sT0}, s2, 3
        s_cmp_ge_u32 s{sT0}, 20
        s_cbranch_scc1 L_p_nopf
        s_mul_i32 s{sT0}, s{sT0}, 320
        s_mul_i32 s{sT1}, s{sWR}, 80
        s_add_u32 s{sT0}, s{sT0}, s{sT1}
        v_add_u32 v{t0}, s{sT0}, v{vLane}
        v_lshlrev_b32 v{t0}, 7, v{t0}
        buffer_load_dword v{VGPRS-1}, v{t0}, s[{SRD_WO}:{SRD_WO+3}], 0 offen
        s_mov_b32 exec_lo, 0xffff
        s_mov_b32 exec_hi, 0
        v_add_u32 v{t0}, {64*128}, v{t0}
        buffer_load_dword v{VGPRS-1}, v{t0}, s[{SRD_WO}:{SRD_WO+3}], 0 offen
        s_mov_b64 exec, -1
        """)
        p.label("L_p_nopf")
    clear_part(); clear_o()
    for st_ in range(3, 10):
        dma_stage()
        if 'pdiag' in OPT: stamp(p, 4 + (st_ - 3))
        p(f"s_waitcnt vmcnt({28 if st_ in (3, 4) else 20})")
        p("s_barrier")
        if st_ == 5: count(DBG_CNT, "p")
    p("s_waitcnt vmcnt(10)\n s_barrier")
    p("s_waitcnt vmcnt(0)\n s_barrier")
    wo_prefetch()
    check(DBG_CNT, "p")
    p(f"""
    s_lshr_b32 s{sT0}, s2, 3               ; i
    s_cmp_ge_u32 s{sT0}, 10
    s_cselect_b32 s{sT1}, 1, 0
    s_mul_i32 s{sT1}, s{sT1}, 10
    s_sub_u32 s{sCG}, s{sT0}, s{sT1}
    ; LDS row k' = 8 z + e holds wo row 40 (z/5) + 4 (z%5) + 20 (e>>2) + (e&3);  z = 20 pw + i'
    v_lshrrev_b32 v{t0}, 3, v{vLane}            ; e
    v_bfe_u32 v{t1}, v{t0}, 1, 1
    v_lshlrev_b32 v{t1}, 1, v{t1}
    v_and_b32 v{t2}, 7, v{vLane}
    v_xor_b32 v{t1}, v{t1}, v{t2}
    v_xor_b32 v{t2}, 4, v{t1}
    v_lshrrev_b32 v{t3}, 2, v{t0}
    v_mul_u32_u24 v{t3}, 20, v{t3}
    v_and_b32 v{t0}, 3, v{t0}
    v_add_u32 v{t0}, v{t0}, v{t3}
    s_mul_i32 s{sT0}, s{sWR}, 160
    v_add_u32 v{t0}, s{sT0}, v{t0}
    v_mul_u32_u24 v{t0}, 1280, v{t0}
    s_lshl_b32 s{sT0}, s{sCG}, 7
    v_add_u32 v{t0}, s{sT0}, v{t0}
    v_lshl_add_u32 v{t3}, v{t2}, 4, v{t0}
    v_lshl_add_u32 v{t0}, v{t1}, 4, v{t0}
    s_mul_i32 s{sM0}, s{sWR}, 20480
    s_barrier
    """)
    vK0 = V.alloc(); vK1 = V.alloc()
    p(f"v_mov_b32 v{vK0}, v{t0}\n v_mov_b32 v{vK1}, v{t3}")
    p("s_cmp_ge_u32 s2, 160\n s_cbranch_scc1 L_p_nowo")
    for i in range(20):
        p(f"s_mov_b32 s{sT1}, {(40*(i//5) + 4*(i%5))*1280}\n s_add_u32 m0, s{sM0}, {WO_IMG + 1024*i}")
        p(f"buffer_load_dwordx4 v{vK1 if i & 1 else vK0}, s[{SRD_WO}:{SRD_WO+3}], s{sT1} offen lds")
    p.label("L_p_nowo")
    if 'pdiag' not in OPT: stamp(p, 4)
    p("s_waitcnt vmcnt(0)")
    if 'pdiag' not in OPT: stamp(p, 5)
    p("s_barrier")
    if 'pdiag' not in OPT: stamp(p, 6)
    if common.DIAG:
        stamps_flush(p, t0, t1, loader=True)
    p("s_endpgm")
    V.free = list(mark)
    p.label("L_b_compute")
    vWp = V.alloc(4, align=4); vWp2 = V.alloc(4, align=4)
    p(f"""
    s_mul_i32 s{sT0}, s{sHP}, 1600
    v_lshlrev_b32 v{t0}, 4, v{vLane}
    v_add_u32 v{t0}, s{sT0}, v{t0}
    v_add_u32 v{t1}, 1024, v{t0}
    s_waitcnt lgkmcnt(0)
    global_load_dwordx4 v[{vWp}:{vWp+3}], v{t0}, s[{S_WPHI}:{S_WPHI+1}]
    s_mov_b32 exec_hi, 15
    global_load_dwordx4 v[{vWp2}:{vWp2+3}], v{t1}, s[{S_WPHI}:{S_WPHI+1}]
    s_mov_b32 exec_hi, -1
    """)
    PF0 = 1 if 'st2' in OPT else 3
    NPF = 0
    if 'l2pf' in OPT:
        NPF = 2
        a0 = V.alloc(); a1 = V.alloc(); a2 = V.alloc(); a3 = V.alloc(); d0 = V.alloc(); ad = V.alloc(2, align=2)
        p(f"""
        ; lane -> chunk PF0 + lane/10, item r = lane%10 ; it = min((i*8 + w)*10 + r, 1727)
        v_mul_u32_u24 v{a0}, 205, v{vLane}
        v_lshrrev_b32 v{a0}, 11, v{a0}               ; lane/10
        v_mul_u32_u24 v{a1}, 10, v{a0}
        v_sub_u32 v{a1}, v{vLane}, v{a1}             ; r
        s_lshl_b32 s{sT1}, s{sI}, 3
        s_add_u32 s{sT1}, s{sT1}, s{sW}
        s_mul_i32 s{sT1}, s{sT1}, 10
        v_add_u32 v{a1}, s{sT1}, v{a1}               ; it
        v_min_u32 v{a1}, 1727, v{a1}
        v_add_u32 v{a0}, {PF0}, v{a0}                ; chunk
        s_lshr_b32 s{sT2}, s{sJ}, 2
        s_mul_i32 s{sT2}, s{sT2}, 960
        v_add_u32 v{a2}, s{sT2}, v{a1}
        v_min_u32 v{a2}, 2047, v{a2}
        v_mul_u32_u24 v{a2}, 1280, v{a2}
        v_lshl_add_u32 v{a2}, v{a0}, 7, v{a2}
        ; W: u = it - 1152 ; krow = u/9 ; rem = u%9 ; seg = rem/3 ; ln = rem%3
        v_subrev_u32 v{a1}, 1152, v{a1}
        v_max_i32 v{d0}, 0, v{a1}
        v_mul_u32_u24 v{a3}, 7282, v{d0}
        v_lshrrev_b32 v{a3}, 16, v{a3}               ; krow
        v_mul_u32_u24 v{t3}, 9, v{a3}
        v_sub_u32 v{d0}, v{d0}, v{t3}                ; rem
        v_lshl_add_u32 v{a3}, v{a0}, 6, v{a3}
        v_mul_u32_u24 v{a3}, 3840, v{a3}
        v_mul_u32_u24 v{t3}, 86, v{d0}
        v_lshrrev_b32 v{t3}, 8, v{t3}                ; seg
        v_mul_u32_u24 v{a0}, 3, v{t3}
        v_sub_u32 v{d0}, v{d0}, v{a0}                ; ln
        v_mul_u32_u24 v{t3}, 1280, v{t3}
        v_lshl_add_u32 v{t3}, v{d0}, 7, v{t3}
        s_and_b32 s{sT2}, s{sJ}, 3
        s_mul_i32 s{sT2}, s{sT2}, 320
        s_and_b32 s{sT2}, s{sT2}, 0xffffff80
        v_add3_u32 v{a3}, v{a3}, v{t3}, s{sT2}
        v_cmp_gt_i32 vcc, 0, v{a1}                   ; x lanes
        v_cndmask_b32 v{a2}, v{a3}, v{a2}, vcc
        v_mov_b32 v{a0}, {6*64*3840}
        v_mov_b32 v{a1}, {6*128}
        v_cndmask_b32 v{a3}, v{a0}, v{a1}, vcc
        v_mov_b32 v{a0}, s{S_WQKV}
        v_mov_b32 v{a1}, s{S_X}
        v_cndmask_b32 v{ad}, v{a0}, v{a1}, vcc
        v_mov_b32 v{a0}, s{S_WQKV+1}
        v_mov_b32 v{a1}, s{S_X+1}
        v_cndmask_b32 v{ad+1}, v{a0}, v{a1}, vcc
        v_add_co_u32 v{ad}, vcc, v{ad}, v{a2}
        v_addc_co_u32 v{ad+1}, vcc, 0, v{ad+1}, vcc
        """)
        if 'st2' in OPT: p("s_barrier")
        p(f"""
        s_mov_b32 exec_hi, 0x0fffffff
        global_load_dword v{VGPRS-1}, v[{ad}:{ad+1}], off
        s_mov_b32 exec_hi, -1
        v_add_co_u32 v{ad}, vcc, v{ad}, v{a3}
        v_addc_co_u32 v{ad+1}, vcc, 0, v{ad+1}, vcc
        s_mov_b32 exec_lo, {0x3ff if PF0 == 3 else 0x3fffffff:#x}
        s_mov_b32 exec_hi, 0
        global_load_dword v{VGPRS-1}, v[{ad}:{ad+1}], off
        s_mov_b64 exec, -1
        """)
        for r in (a0, a1, a2, a3, d0): V.release(r)
        V.release(ad, 2)
    stamp(p, 1)
    srd(p, SRD_WS, S_WS, WS_SIZE)
    srd(p, SRD_O, S_OUT, 2048 * 2560)
    p(f"""
    s_mov_b32 s{sL}, {LOG2E:#x}
    s_mov_b32 s{sL+1}, {LOG2E:#x}
    s_mov_b32 s{sNEG}, {-3*SLOT & 0xffffffff:#x}
    """)
    vXa = V.alloc(2, align=1); vWa = V.alloc(4, align=1)
    for ks in range(2):
        p(f"""
        v_add_u32 v{t0}, {4*ks}, v{vG}
        v_lshrrev_b32 v{t1}, 1, v{vI}
        v_xor_b32 v{t0}, v{t0}, v{t1}
        v_lshlrev_b32 v{t0}, 4, v{t0}
        s_mul_i32 s{sT0}, s{sWR}, 48
        v_add_u32 v{t1}, s{sT0}, v{vI}
        v_lshl_add_u32 v{vXa+ks}, v{t1}, 7, v{t0}
        """)
    p(f"""
    v_and_b32 v{t0}, 1, v{vG}
    v_xor_b32 v{t0}, s{sTY}, v{t0}
    v_lshlrev_b32 v{t0}, 7, v{t0}
    v_bfe_u32 v{t2}, v{vI}, 1, 1
    v_lshl_add_u32 v{t0}, v{t2}, 4, v{t0}
    v_and_b32 v{t2}, 1, v{vI}
    v_lshl_add_u32 v{t0}, v{t2}, 3, v{t0}
    v_lshrrev_b32 v{t1}, 2, v{vI}
    v_lshl_add_u32 v{t2}, v{vG}, 3, v{t1}
    v_lshl_add_u32 v{t0}, v{t2}, 8, v{t0}
    v_add_u32 v{t0}, {WOFF}, v{t0}
    """)
    for mt in range(4):
        p(f"v_xor_b32 v{t2}, {mt}, v{t1}\n v_lshl_add_u32 v{vWa+mt}, v{t2}, 5, v{t0}")
    acc = V.alloc(48, align=4)
    for k in range(48): p(f"v_mov_b32 v{acc+k}, 0")
    WPB = 3 * SLOT
    vFA = V.alloc(16, align=4)
    FA, FB, FC0, FC1 = vFA, vFA + 4, vFA + 8, vFA + 12
    GT = V.alloc(32, align=1)
    for k in range(32): p(f"v_mov_b32 v{GT+k}, 0")
    p(f"""
    s_lshl_b32 s{sT0}, s{sW}, 11
    s_add_u32 s{sT0}, s{sT0}, {WPB}
    v_lshl_add_u32 v{t0}, v{vLane}, 4, s{sT0}
    v_lshrrev_b32 v{t1}, 2, v{vI}
    v_mul_u32_u24 v{t1}, 5, v{t1}
    v_and_b32 v{t2}, 3, v{vI}
    v_add_u32 v{t2}, v{t1}, v{t2}
    v_lshlrev_b32 v{t2}, 1, v{t2}
    v_mul_u32_u24 v{t3}, 160, v{vG}
    v_add3_u32 v{t2}, v{t2}, v{t3}, s{sT0}      ; t2: f = 5(m>>2)+(m&3)
    v_add_u32 v{t1}, 4, v{t1}
    v_lshlrev_b32 v{t1}, 1, v{t1}
    v_add3_u32 v{t1}, v{t1}, v{t3}, s{sT0}      ; t1: f = 5(m>>2)+4
    s_waitcnt vmcnt({NPF})
    """)
    p(f"""
    ds_write_b128 v{t0}, v[{vWp}:{vWp+3}]
    s_mov_b32 exec_hi, 15
    ds_write_b128 v{t0}, v[{vWp2}:{vWp2+3}] offset:1024
    s_mov_b32 exec_hi, -1
    s_waitcnt lgkmcnt(0)
    """)
    def gather(dst, addr, off, mask):
        p(f"s_mov_b32 exec_lo, {mask & 0xffffffff:#x}\n s_mov_b32 exec_hi, {mask >> 32:#x}")
        for e in range(4):
            p(f"ds_read_u16 v{GT + 2*(dst - vFA) + e}, v{addr} offset:{off + 40*e}")
    G0 = 0xFFFF; G01 = 0xFFFFFFFF; G123 = 0xFFFFFFFFFFFF0000; ALL = (1 << 64) - 1
    R0 = 0x1111111111111111; R1 = 0x2222222222222222
    gather(FA, t2, 0, ALL);            gather(FA + 2, t2, 16*40, G0)
    gather(FB, t2, 800 - 160, G123);   gather(FB + 2, t2, 800 + 12*40, G01)
    gather(FC0, t1, 0, R0);            gather(FC0 + 2, t1, 16*40, G0 & R0)
    gather(FC1, t1, 800 - 160, G123 & R1); gather(FC1 + 2, t1, 800 + 12*40, G01 & R1)
    p("s_mov_b64 exec, -1\n s_waitcnt lgkmcnt(0)")
    for k in range(16):
        p(f"v_lshl_or_b32 v{vFA+k}, v{GT+2*k+1}, 16, v{GT+2*k}")
    V.release(GT, 32); V.release(vWp, 4); V.release(vWp2, 4)
    XF = [V.alloc(12, align=4), V.alloc(12, align=4)]
    WF = [V.alloc(16, align=4), V.alloc(16, align=4)]
    def reads(ks):
        L = []
        for mt in range(4):
            for h in range(2):
                L.append(f"ds_read_b64_tr_b16 v[{WF[ks]+4*mt+2*h}:{WF[ks]+4*mt+2*h+1}], v{vWa+mt} offset:{8192*ks + 1024*h}")
        X = [f"ds_read_b128 v[{XF[ks]+4*nt}:{XF[ks]+4*nt+3}], v{vXa+ks} offset:{2048*nt}" for nt in range(3)]
        return [L[0], L[1], X[0], X[1], X[2]] + L[2:]
    def mfmas(ks):
        L = []
        for mt in range(4):
            for nt in range(3):
                a = acc + 16*nt + 4*mt
                L.append(f"v_mfma_f32_16x16x32_bf16 v[{a}:{a+3}], v[{WF[ks]+4*mt}:{WF[ks]+4*mt+3}], v[{XF[ks]+4*nt}:{XF[ks]+4*nt+3}], v[{a}:{a+3}]")
        return L
    def sched(main, slots):
        for i, m in enumerate(main):
            if 'nomfma' not in OPT: p(m)
            for x in slots.get(i, []):
                if ('nomfma' in OPT or 'nords' in OPT) and x.startswith('ds_read'): continue
                p(x)
    def advance():
        return [f"v_add_u32 v{r}, s{sSLOTD}, v{r}" for r in (vWa, vXa, vWa+1, vWa+2, vWa+3, vXa+1)]
    stamp(p, 15)
    p("s_barrier")
    stamp(p, 2); cstamp(p, 13)
    for x in reads(0): p(x)
    p(f"s_mov_b32 s{sS}, 0")
    def slot_delta():
        return [f"s_and_b32 s{sT0}, s{sS}, 3", f"s_cmp_eq_u32 s{sT0}, 3", f"s_cselect_b32 s{sSLOTD}, s{sNEG}, {SLOT}"]
    RSP = int(common.os.environ.get("RSP", "2"))
    def read_slots(r, first):
        d = {}
        k = first
        while r:
            d[k] = r[:RSP]; r = r[RSP:]; k += 1
        return d
    def half0():
        p("s_waitcnt lgkmcnt(0)")
        slots = read_slots(reads(1), 0)
        slots[7] = slot_delta()
        sched(mfmas(0), slots)
    def half1(nxt=True):
        p("s_waitcnt lgkmcnt(0)")
        if nxt:
            p("s_barrier")
            slots = read_slots(reads(0), 1)
            slots[0] = advance()
            sched(mfmas(1), slots)
        else:
            sched(mfmas(1), {})
    p.label("L_b_main")
    half0(); half1()
    p(f"s_add_u32 s{sS}, s{sS}, 1\n s_cmp_lt_u32 s{sS}, 9\n s_cbranch_scc1 L_b_main")
    half0(); half1(nxt=False)
    stamp(p, 3); cstamp(p, 14)
    V.release(XF[0], 12); V.release(XF[1], 12); V.release(WF[0], 16); V.release(WF[1], 16)
    V.release(vXa, 2); V.release(vWa, 4)
    def wait_cleared(name, vN, vm):
        p(f"s_mov_b32 s{sCNT}, 0\n s_waitcnt vmcnt({vm})")
        p.label(f"L_b_wc{name}")
        p(f"""
        v_readfirstlane_b32 s{sT0}, v{vN}
        s_cmp_ge_u32 s{sT0}, {N_B}
        s_cbranch_scc1 L_b_wc_ok{name}
        s_add_u32 s{sCNT}, s{sCNT}, 1
        s_cmp_gt_u32 s{sCNT}, {SPIN_MAX}
        s_cbranch_scc1 L_b_wc_ok{name}
        v_mov_b32 v{vN}, {DBG_CNT}
        global_load_dword v{vN}, v{vN}, s[{S_DBG}:{S_DBG+1}] sc1
        s_waitcnt vmcnt(0)
        s_branch L_b_wc{name}
        """)
        p.label(f"L_b_wc_ok{name}")
    P = V.alloc(3 * 8, align=2)
    vRow = V.alloc()
    vV2 = V.alloc(); vV3 = V.alloc()
    p(f"""
    s_mul_i32 s{sT0}, s{sWR}, 48
    v_add_u32 v{t0}, s{sT0}, v{vI}
    v_mul_u32_u24 v{vRow}, {RS}, v{t0}
    v_add_u32 v{vRow}, {PHI}, v{vRow}
    s_mul_i32 s{sT0}, s{sTY}, 48
    v_lshlrev_b32 v{t1}, 3, v{vG}
    v_add3_u32 v{vV2}, v{t1}, v{vRow}, s{sT0}
    v_add_u32 v{vV2}, {192 - 16}, v{vV2}
    v_add_u32 v{t2}, {192 + 16}, v{t1}
    v_add_u32 v{t3}, {192 + 64}, v{t1}
    v_cmp_gt_u32 vcc, 2, v{vG}
    v_add_u32 v{vV3}, {280 - 16}, v{t1}
    v_cndmask_b32 v{t3}, v{vV3}, v{t3}, vcc
    s_cmp_eq_u32 s{sTY}, 0
    s_cselect_b64 vcc, -1, 0
    v_cndmask_b32 v{t3}, v{t3}, v{t2}, vcc
    v_add_u32 v{vV3}, v{t3}, v{vRow}
    """)
    def cvtP(nt, mts):
        for mt in mts:
            a = acc + 16*nt + 4*mt
            p(f"v_cvt_pk_bf16_f32 v{P+8*nt+2*mt}, v{a}, v{a+1}")
            p(f"v_cvt_pk_bf16_f32 v{P+8*nt+2*mt+1}, v{a+2}, v{a+3}")
    for nt in range(3): cvtP(nt, (2, 3))
    p("s_mov_b32 exec_lo, 0")
    for nt in range(3): p(f"ds_write_b64 v{vV2}, v[{P+8*nt+4}:{P+8*nt+5}] offset:{16*RS*nt}")
    p("s_mov_b32 exec_lo, -1")
    for nt in range(3): p(f"ds_write_b64 v{vV3}, v[{P+8*nt+6}:{P+8*nt+7}] offset:{16*RS*nt}")
    for nt in range(3): cvtP(nt, (0, 1))
    V.release(vV2); V.release(vV3)
    if common.DUMP:
        p(f"""
        s_lshl_b32 s{sT0}, s2, 3
        s_add_u32 s{sT0}, s{sT0}, s{sW}
        s_mul_i32 s{sT0}, s{sT0}, {24*256}
        s_add_u32 s{sT0}, s{sT0}, {4<<20}
        v_lshl_add_u32 v{t0}, v{vLane}, 2, s{sT0}
        """)
        for k in range(24):
            p(f"buffer_store_dword v{P+k}, v{t0}, s[{SRD_WS}:{SRD_WS+3}], 0 offen offset:{256*(k%16)}")
            if k == 15: p(f"v_add_u32 v{t0}, 4096, v{t0}")
        p("s_waitcnt vmcnt(0)")
    V.release(acc, 48)
    if common.os.environ.get('RDBG'): print('free before softmax', [i for i,f in enumerate(V.free) if f])
    TTb = V.alloc(38, align=4)
    TT = [TTb, TTb + 12, TTb + 24]
    EE = [V.alloc(20, align=2) for _ in range(3)]
    SS = [[V.alloc(2, align=2) for _ in range(3)] for _ in range(3)]
    def softmax(nt, outs):
        T, E, S = TT[nt], EE[nt], SS[nt]
        X01 = P + 8*nt; X12 = P + 8*nt + 2
        a0, a1, b0, b1, c, d = S[0], S[0]+1, S[1], S[1]+1, S[2], S[2]+1
        L = [f"v_mfma_f32_16x16x32_bf16 v[{T}:{T+3}], v[{FA}:{FA+3}], v[{X01}:{X01+3}], 0",
             f"v_mfma_f32_16x16x32_bf16 v[{T+8}:{T+11}], v[{FC0}:{FC0+3}], v[{X01}:{X01+3}], 0",
             f"v_mfma_f32_16x16x32_bf16 v[{T+4}:{T+7}], v[{FB}:{FB+3}], v[{X12}:{X12+3}], 0",
             f"v_mfma_f32_16x16x32_bf16 v[{T+8}:{T+11}], v[{FC1}:{FC1+3}], v[{X12}:{X12+3}], v[{T+8}:{T+11}]"]
        x = [[T, T+1, T+2, T+3, T+8], [T+4, T+5, T+6, T+7, T+9]]
        for h, (a, b) in enumerate(((a0, b0), (a1, b1))):
            xs = x[h]
            L += [f"v_max3_f32 v{a}, v{xs[0]}, v{xs[1]}, v{xs[2]}", f"v_max3_f32 v{b}, -v{xs[0]}, -v{xs[1]}, -v{xs[2]}"]
        for h, (a, b) in enumerate(((a0, b0), (a1, b1))):
            xs = x[h]
            L += [f"v_max3_f32 v{a}, v{a}, v{xs[3]}, v{xs[4]}", f"v_max3_f32 v{b}, v{b}, -v{xs[3]}, -v{xs[4]}"]
        def allred(op):
            return [f"v_permlane16_swap_b32 v{a0}, v{b0}", f"v_permlane16_swap_b32 v{a1}, v{b1}",
                    f"{op} v{a0}, v{a0}, v{b0}", f"{op} v{a1}, v{a1}, v{b1}",
                    f"v_permlane32_swap_b32 v{a0}, v{a1}", f"{op} v{c}, v{a0}, v{a1}"]
        bc = [f"v_mov_b32 v{d}, v{c}", f"v_permlane32_swap_b32 v{c}, v{d}", f"v_mov_b32 v{a0}, v{c}", f"v_mov_b32 v{a1}, v{d}",
              f"v_permlane16_swap_b32 v{a0}, v{c}", f"v_permlane16_swap_b32 v{a1}, v{d}"]
        L += allred("v_max_f32") + [f"v_mul_f32 v{c}, s{sL}, v{c}"] + bc
        sel = [(0, 0), (0, 0), (1, 1), (1, 1), (0, 1)]
        for k in range(5):
            lo, hi = sel[k]
            L.append(f"v_pk_fma_f32 v[{E+2*k}:{E+2*k+1}], v[{T+2*k}:{T+2*k+1}], s[{sL}:{sL+1}], v[{a0}:{a1}] op_sel:[0,0,{lo}] op_sel_hi:[1,1,{hi}] neg_lo:[0,0,1] neg_hi:[0,0,1]")
            L.append(f"v_pk_fma_f32 v[{E+10+2*k}:{E+10+2*k+1}], v[{T+2*k}:{T+2*k+1}], s[{sL}:{sL+1}], v[{c}:{d}] op_sel:[0,0,{lo}] op_sel_hi:[1,1,{hi}] neg_lo:[1,0,1] neg_hi:[1,0,1]")
        L += [f"v_exp_f32 v{E+k}, v{E+k}" for k in range(20)]
        L += [f"v_pk_add_f32 v[{T}:{T+1}], v[{E}:{E+1}], v[{E+2}:{E+3}]",
              f"v_pk_add_f32 v[{T+2}:{T+3}], v[{E+4}:{E+5}], v[{E+6}:{E+7}]",
              f"v_pk_add_f32 v[{T+4}:{T+5}], v[{E+10}:{E+11}], v[{E+12}:{E+13}]",
              f"v_pk_add_f32 v[{T+6}:{T+7}], v[{E+14}:{E+15}], v[{E+16}:{E+17}]",
              f"v_add_f32 v{a0}, v{T}, v{T+1}", f"v_add_f32 v{a1}, v{T+2}, v{T+3}",
              f"v_add_f32 v{b0}, v{T+4}, v{T+5}", f"v_add_f32 v{b1}, v{T+6}, v{T+7}",
              f"v_pk_add_f32 v[{a0}:{a1}], v[{a0}:{a1}], v[{E+8}:{E+9}]",
              f"v_pk_add_f32 v[{b0}:{b1}], v[{b0}:{b1}], v[{E+18}:{E+19}]"]
        L += allred("v_add_f32") + [f"v_rcp_f32 v{c}, v{c}"] + bc
        for k in range(5):
            lo, hi = sel[k]
            L.append(f"v_pk_mul_f32 v[{E+2*k}:{E+2*k+1}], v[{E+2*k}:{E+2*k+1}], v[{a0}:{a1}] op_sel:[0,{lo}] op_sel_hi:[1,{hi}]")
            L.append(f"v_pk_mul_f32 v[{E+10+2*k}:{E+10+2*k+1}], v[{E+10+2*k}:{E+10+2*k+1}], v[{c}:{d}] op_sel:[0,{lo}] op_sel_hi:[1,{hi}]")
        pairs = [[(0, 1), (2, 3), (8, 10), (11, 12), (13, 18)], [(4, 5), (6, 7), (9, 14), (15, 16), (17, 19)]]
        for h in range(2):
            for k, (u, w) in enumerate(pairs[h]):
                L.append(f"v_cvt_pk_bf16_f32 v{outs[h]+k}, v{E+u}, v{E+w}")
        return L
    snap = list(V.free)
    p(f"s_cmp_eq_u32 s{sTY}, 0\n s_cbranch_scc0 L_b_qtype")
    stamp(p, 4)
    p(f"""
    s_mul_i32 s{sT0}, s{sWR}, 48
    s_add_u32 s{sT0}, s{sT0}, s{sROW0}
    v_add_u32 v{t0}, s{sT0}, v{vI}
    v_mov_b32 v{t1}, 0x3f80
    """)
    on = EE[0]
    p(f"v_mov_b32 v{on+1}, 0")
    for nt in range(3):
        p(f"""
        v_cmp_gt_u32 vcc, 0x800, v{t0}
        v_cndmask_b32 v{on}, 0, v{t1}, vcc
        ds_write_b64 v{vRow}, v[{on}:{on+1}] offset:{16*RS*nt + 272}
        v_add_u32 v{t0}, 16, v{t0}
        """)
    vPh = V.alloc()
    p(f"v_mul_u32_u24 v{t0}, 24, v{vG}\n v_add_u32 v{vPh}, v{t0}, v{vRow}")
    streams = []
    for nt in range(3):
        T = TT[nt]
        L = softmax(nt, [T, T + 6])
        for h in range(2):
            o = T + 6*h; off = 16*RS*nt + 96*h
            L += [f"ds_write_b64 v{vPh}, v[{o}:{o+1}] offset:{off}", f"ds_write_b64 v{vPh}, v[{o+2}:{o+3}] offset:{off+8}",
                  f"ds_write_b32 v{vPh}, v{o+4} offset:{off+16}"]
        streams.append(L)
    for x in merge(streams): p(x)
    p("s_waitcnt lgkmcnt(0)\n s_barrier")
    for r, n in [(P, 24), (vRow, 1), (vFA, 16), (TTb, 38), (vPh, 1)] + [(x, 20) for x in EE] + [(y, 2) for x in SS for y in x]:
        V.release(r, n)
    stamp(p, 5)
    sHD, sHF = 95, 96
    vAa = V.alloc(); vB0 = V.alloc()
    p(f"""
    s_and_b32 s{sHD}, s{sWR}, 1
    s_lshr_b32 s{sHF}, s{sWR}, 1
    v_lshrrev_b32 v{t0}, 2, v{vI}
    v_lshl_add_u32 v{t0}, v{vG}, 3, v{t0}
    v_mul_u32_u24 v{t0}, {RS}, v{t0}
    v_add_u32 v{t0}, {PHI}, v{t0}
    v_and_b32 v{t1}, 3, v{vI}
    v_mul_u32_u24 v{t2}, 24, v{t1}
    s_mul_i32 s{sT0}, s{sHD}, 96
    v_add3_u32 v{vAa}, v{t0}, v{t2}, s{sT0}
    s_mul_i32 s{sT0}, s{sHD}, 40
    v_lshlrev_b32 v{t2}, 3, v{t1}
    v_add_u32 v{t2}, s{sT0}, v{t2}
    v_add_u32 v{vB0}, 192, v{t2}
    s_add_u32 s{sT0}, s{sT0}, 224
    v_mov_b32 v{t2}, 272
    v_mov_b32 v{t3}, s{sT0}
    v_cmp_eq_u32 vcc, s{sHD}, v{t1}
    v_cndmask_b32 v{t2}, v{t2}, v{t3}, vcc
    s_cmp_eq_u32 s{sHF}, 0
    s_cselect_b64 vcc, -1, 0
    v_cndmask_b32 v{t2}, v{t2}, v{vB0}, vcc
    v_add_u32 v{vB0}, v{t0}, v{t2}
    """)
    KF = V.alloc(48, align=4); KD = V.alloc(12, align=4)
    def kvreads(ks):
        b = KF + 16 * (ks % 3); off = 32 * RS * ks
        for h in range(2):
            p(f"ds_read_b64_tr_b16 v[{b+12+2*h}:{b+12+2*h+1}], v{vB0} offset:{off + 4*RS*h}")
        for mt in range(3):
            for h in range(2):
                p(f"ds_read_b64_tr_b16 v[{b+4*mt+2*h}:{b+4*mt+2*h+1}], v{vAa} offset:{off + 4*RS*h + 8*mt}")
    kvreads(0); kvreads(1)
    vP0 = V.alloc(); vP1 = V.alloc()
    p(f"""
    s_lshl_b32 s{sT0}, s{sRB}, 4
    s_add_u32 s{sT0}, s{sT0}, s{sHP}
    s_mul_i32 s{sT0}, s{sT0}, {PART_STRIDE}
    s_mul_i32 s{sT1}, s{sWR}, 1280
    s_add_u32 s{sT0}, s{sT0}, s{sT1}
    s_add_u32 s{sT0}, s{sT0}, {WS_PART}
    v_lshl_add_u32 v{vP0}, v{vLane}, 4, s{sT0}
    s_add_u32 s{sT0}, s{sT0}, 1024
    v_lshl_add_u32 v{vP1}, v{vLane}, 2, s{sT0}
    """)
    for ks in range(6):
        p(f"s_waitcnt lgkmcnt({8 if ks < 5 else 0})")
        b = KF + 16 * (ks % 3)
        for mt in range(3):
            c = "0" if ks == 0 else f"v[{KD+4*mt}:{KD+4*mt+3}]"
            p(f"v_mfma_f32_16x16x32_bf16 v[{KD+4*mt}:{KD+4*mt+3}], v[{b+4*mt}:{b+4*mt+3}], v[{b+12}:{b+15}], {c}")
        if ks + 2 < 6: kvreads(ks + 2)
    q = V.alloc(6, align=4)
    p(f"""
    v_cvt_pk_bf16_f32 v{q}, v{KD}, v{KD+1}
    v_cvt_pk_bf16_f32 v{q+1}, v{KD+2}, v{KD+3}
    v_cvt_pk_bf16_f32 v{q+2}, v{KD+4}, v{KD+5}
    v_cvt_pk_bf16_f32 v{q+3}, v{KD+6}, v{KD+7}
    v_cvt_pk_bf16_f32 v{q+4}, v{KD+8}, v{KD+9}
    buffer_store_dwordx4 v[{q}:{q+3}], v{vP0}, s[{SRD_WS}:{SRD_WS+3}], 0 offen sc1
    buffer_store_dword v{q+4}, v{vP1}, s[{SRD_WS}:{SRD_WS+3}], 0 offen sc1
    """)
    stamp(p, 6)
    V.release(KF, 48); V.release(KD, 12)
    L = V.alloc(56, align=4)
    A10 = V.alloc(10, align=2); mx = V.alloc()
    p(f"""
    s_mul_i32 s{sT0}, s{sRB}, {16*PART_STRIDE}
    v_subrev_u32 v{t0}, s{sT0}, v{vP0}
    v_subrev_u32 v{t1}, s{sT0}, v{vP1}
    s_mov_b32 s{sCNT}, 0
    """)
    def ld_part(r):
        p(f"s_mov_b32 s{sT0}, {r*16*PART_STRIDE}")
        p(f"buffer_load_dwordx4 v[{L+4*r}:{L+4*r+3}], v{t0}, s[{SRD_WS}:{SRD_WS+3}], s{sT0} offen sc1")
        p(f"buffer_load_dword v{L+44+r}, v{t1}, s[{SRD_WS}:{SRD_WS+3}], s{sT0} offen sc1")
    for r in range(11): ld_part(r)
    sHI = 97
    p(f"s_mov_b32 s{sHI}, 0xffff0000")
    u = V.alloc(4, align=2)
    retry = []
    for r in range(11):
        p(f"s_waitcnt vmcnt({2*(10-r)})")
        p.label(f"L_b_chk1_{r}")
        p(f"""
        v_max3_u32 v{mx}, v{L+4*r}, v{L+4*r+1}, v{L+4*r+2}
        v_max3_u32 v{mx}, v{mx}, v{L+4*r+3}, v{L+44+r}
        v_cmp_eq_u32 vcc, -1, v{mx}
        s_cbranch_vccnz L_b_rty1_{r}
        """)
        p.label(f"L_b_ok1_{r}")
        if r == 0: stamp(p, 7)
        for k in range(5):
            src = L + 4*r + k if k < 4 else L + 44 + r
            if r == 0:
                p(f"v_lshlrev_b32 v{A10+2*k}, 16, v{src}")
                p(f"v_and_b32 v{A10+2*k+1}, s{sHI}, v{src}")
            else:
                uu = u + 2 * (k & 1)
                p(f"v_lshlrev_b32 v{uu}, 16, v{src}")
                p(f"v_and_b32 v{uu+1}, s{sHI}, v{src}")
                p(f"v_pk_add_f32 v[{A10+2*k}:{A10+2*k+1}], v[{A10+2*k}:{A10+2*k+1}], v[{uu}:{uu+1}]")
        retry.append(r)
    p("s_branch L_b_sum1")
    sRET = 90
    for r in retry:
        p.label(f"L_b_rty1_{r}")
        p(f"s_add_u32 s{sCNT}, s{sCNT}, 1\n s_cmp_gt_u32 s{sCNT}, {SPIN_MAX}\n s_cbranch_scc1 L_b_ok1_{r}")
        ld_part(r)
        p(f"""
        s_waitcnt vmcnt(0)
        v_max3_u32 v{mx}, v{L+4*r}, v{L+4*r+1}, v{L+4*r+2}
        v_max3_u32 v{mx}, v{mx}, v{L+4*r+3}, v{L+44+r}
        v_cmp_eq_u32 vcc, -1, v{mx}
        s_cbranch_vccnz L_b_rty1_{r}
        """)
        if r < 10:
            p(f"s_mov_b32 s{sRET}, {r}\n s_branch L_b_ref1_{r+1}")
        else:
            p(f"s_branch L_b_ok1_{r}")
    for r in range(1, 11):
        p.label(f"L_b_ref1_{r}")
        ld_part(r)
    for r in range(10):
        p(f"s_cmp_eq_u32 s{sRET}, {r}\n s_cbranch_scc1 L_b_ok1_{r}")
    p("s_branch L_b_ok1_9")
    p.label("L_b_sum1")
    for k in range(5):
        p(f"v_cvt_pk_bf16_f32 v{L+k}, v{A10+2*k}, v{A10+2*k+1}")
    p(f"""
    s_lshl_b32 s{sT1}, s{sWR}, 10
    s_add_u32 s{sT1}, s{sT1}, {AST}
    v_lshl_add_u32 v{t0}, v{vLane}, 4, s{sT1}
    ds_write_b128 v{t0}, v[{L}:{L+3}]
    s_lshl_b32 s{sT1}, s{sWR}, 8
    s_add_u32 s{sT1}, s{sT1}, {AST + 4096}
    v_lshl_add_u32 v{t1}, v{vLane}, 2, s{sT1}
    ds_write_b32 v{t1}, v{L+4}
    s_waitcnt lgkmcnt(0)
    s_barrier
    """)
    stamp(p, 8)
    p("s_branch L_b_final")
    V.free = list(snap)
    p.label("L_b_qtype")
    p("s_waitcnt lgkmcnt(0)\n s_barrier")

    stamp(p, 4)
    for x in merge([softmax(nt, [TT[nt], TT[nt] + 6]) for nt in range(3)]): p(x)
    for nt in range(3):
        p(f"v_mov_b32 v{TT[nt]+5}, 0\n v_mov_b32 v{TT[nt]+11}, 0")
    p(f"v_mov_b32 v{TT[2]+12}, 0\n v_mov_b32 v{TT[2]+13}, 0")
    stamp(p, 5)
    for r, n in [(P, 24), (vRow, 1), (vFA, 16)] + [(x, 20) for x in EE] + [(y, 2) for x in SS for y in x]:
        V.release(r, n)
    p("s_waitcnt vmcnt(0) lgkmcnt(0)\n s_barrier")
    stamp(p, 6)
    AF = V.alloc(32, align=4)
    p(f"""
    v_lshlrev_b32 v{t0}, 4, v{vLane}
    v_add_u32 v{t0}, {AST}, v{t0}
    v_lshlrev_b32 v{t1}, 2, v{vLane}
    v_add_u32 v{t1}, {AST+4096}, v{t1}
    """)
    for k in range(4):
        p(f"ds_read_b128 v[{AF+8*k}:{AF+8*k+3}], v{t0} offset:{1024*k}")
        p(f"ds_read_b32 v{AF+8*k+4}, v{t1} offset:{256*k}")
    for k in range(4):
        for z in (5, 6, 7): p(f"v_mov_b32 v{AF+8*k+z}, 0")
    vOa = V.alloc(); vOb = V.alloc()
    ODs = [V.alloc(16, align=4) for _ in range(3)]; ws_ = [V.alloc(8, align=4) for _ in range(3)]
    sEPS = 97
    p(f"""
    s_mov_b32 s{sEPS}, 0x358637bd
    s_mul_i32 s{sT0}, s{sRB}, 12
    s_mul_i32 s{sT1}, s{sWR}, 3
    s_add_u32 s{sT0}, s{sT0}, s{sT1}
    s_mul_i32 s{sT0}, s{sT0}, {O_TILE}
    s_mul_i32 s{sT1}, s{sHP}, 1280
    s_add_u32 s{sT0}, s{sT0}, s{sT1}
    s_add_u32 s{sT0}, s{sT0}, {WS_O}
    v_lshl_add_u32 v{vOa}, v{vLane}, 4, s{sT0}
    v_lshlrev_b32 v{t0}, 4, v{vI}
    v_lshl_add_u32 v{t0}, v{vG}, 3, v{t0}
    s_add_u32 s{sT0}, s{sT0}, 1024
    v_add_u32 v{vOb}, s{sT0}, v{t0}
    v_cmp_gt_u32 vcc, 16, v{vLane}
    s_mov_b32 s{sT2}, {O_TILE}
    s_mov_b32 s{sT3}, {2*O_TILE}
    s_waitcnt lgkmcnt(0)
    """)
    stamp(p, 8)
    streams = []
    for nt in range(3):
        OD = ODs[nt]; w = ws_[nt]
        L = []
        for h in range(2):
            b = TT[nt] + 6*h
            a0_ = AF + 8*h; a1_ = AF + 8*(h + 2)
            o0 = OD + 8*h; o1 = o0 + 4
            L += [f"v_mfma_f32_16x16x32_bf16 v[{o0}:{o0+3}], v[{a0_}:{a0_+3}], v[{b}:{b+3}], 0",
                  f"v_mfma_f32_16x16x32_bf16 v[{o1}:{o1+3}], v[{a1_}:{a1_+3}], v[{b}:{b+3}], 0",
                  f"v_mfma_f32_16x16x32_bf16 v[{o0}:{o0+3}], v[{a0_+4}:{a0_+7}], v[{b+4}:{b+7}], v[{o0}:{o0+3}]",
                  f"v_mfma_f32_16x16x32_bf16 v[{o1}:{o1+3}], v[{a1_+4}:{a1_+7}], v[{b+4}:{b+7}], v[{o1}:{o1+3}]"]
        y = [w + 6, w + 7]
        L += [f"v_mov_b32 v{y[0]}, v{OD+4}", f"v_mov_b32 v{y[1]}, v{OD+12}",
              f"v_permlane16_swap_b32 v{OD+4}, v{y[0]}", f"v_permlane16_swap_b32 v{y[1]}, v{OD+12}",
              f"v_add_f32 v{y[0]}, s{sEPS}, v{y[0]}", f"v_add_f32 v{y[1]}, s{sEPS}, v{y[1]}",
              f"v_rcp_f32 v{y[0]}, v{y[0]}", f"v_rcp_f32 v{y[1]}, v{y[1]}"]
        for h in range(2):
            for r in range(0, 8, 2):
                a = OD + 8*h + r
                L.append(f"v_pk_mul_f32 v[{a}:{a+1}], v[{a}:{a+1}], v[{w+6}:{w+7}] op_sel:[0,{h}] op_sel_hi:[1,{h}]")
        L += [f"v_cvt_pk_bf16_f32 v{w}, v{OD}, v{OD+1}", f"v_cvt_pk_bf16_f32 v{w+1}, v{OD+2}, v{OD+3}",
              f"v_cvt_pk_bf16_f32 v{w+2}, v{OD+8}, v{OD+9}", f"v_cvt_pk_bf16_f32 v{w+3}, v{OD+10}, v{OD+11}",
              f"v_cvt_pk_bf16_f32 v{OD+4}, v{OD+4}, v{OD+5}", f"v_cvt_pk_bf16_f32 v{OD+5}, v{OD+6}, v{OD+7}",
              f"v_cvt_pk_bf16_f32 v{OD+12}, v{OD+12}, v{OD+13}", f"v_cvt_pk_bf16_f32 v{OD+13}, v{OD+14}, v{OD+15}",
              f"v_cndmask_b32 v{w+4}, v{OD+12}, v{OD+4}, vcc", f"v_cndmask_b32 v{w+5}, v{OD+13}, v{OD+5}, vcc"]
        streams.append(L)
    for x in merge(streams): p(x)
    stamp(p, 15)
    so = ["0", f"s{sT2}", f"s{sT3}"]
    for nt in range(3):
        p(f"buffer_store_dwordx4 v[{ws_[nt]}:{ws_[nt]+3}], v{vOa}, s[{SRD_WS}:{SRD_WS+3}], {so[nt]} offen sc1")
    p("s_mov_b32 exec_hi, 0")
    for nt in range(3):
        p(f"buffer_store_dwordx2 v[{ws_[nt]+4}:{ws_[nt]+5}], v{vOb}, s[{SRD_WS}:{SRD_WS+3}], {so[nt]} offen sc1")
    p("s_mov_b32 exec_hi, -1")
    stamp(p, 7)
    p.label("L_b_final")
    V.free = [i > t3 for i in range(V.limit)]
    sRQ, sKH = 95, 96
    OF = V.alloc(80, align=4)
    vR = V.alloc(); vPl = V.alloc(); mx = V.alloc(); pv = V.alloc()
    p(f"""
    s_cmp_ge_u32 s2, 160
    s_cbranch_scc1 L_b_done
    s_lshr_b32 s{sT0}, s2, 3
    s_cmp_ge_u32 s{sT0}, 10
    s_cselect_b32 s{sT1}, 1, 0
    s_and_b32 s{sT2}, s2, 7
    s_lshl_b32 s{sT2}, s{sT2}, 1
    s_add_u32 s{sRT}, s{sT2}, s{sT1}
    s_mul_i32 s{sT1}, s{sT1}, 10
    s_sub_u32 s{sCG}, s{sT0}, s{sT1}
    s_and_b32 s{sRQ}, s{sW}, 3
    s_lshr_b32 s{sKH}, s{sW}, 2
    s_lshl_b32 s{sT0}, s{sRT}, 3
    s_lshl_b32 s{sT1}, s{sRQ}, 1
    s_add_u32 s{sT0}, s{sT0}, s{sT1}
    s_mul_i32 s{sT0}, s{sT0}, {O_TILE}
    s_mul_i32 s{sT1}, s{sKH}, 10240
    s_add_u32 s{sT0}, s{sT0}, s{sT1}
    s_add_u32 s{sT0}, s{sT0}, {WS_O}
    v_lshl_add_u32 v{vR}, v{vLane}, 4, s{sT0}
    s_mov_b32 s{sCNT}, 0
    """)
    vA = V.alloc(4, align=1)
    p(f"""
    v_lshrrev_b32 v{t2}, 2, v{vI}
    v_bfe_u32 v{t3}, v{t2}, 1, 1
    v_and_b32 v{t0}, 1, v{vG}
    v_lshl_add_u32 v{t3}, v{t0}, 1, v{t3}        ; psi
    v_bfe_u32 v{t0}, v{vI}, 1, 1
    v_lshlrev_b32 v{t0}, 4, v{t0}
    v_and_b32 v{t1}, 1, v{vI}
    v_lshl_add_u32 v{t0}, v{t1}, 3, v{t0}
    v_lshl_add_u32 v{t2}, v{vG}, 3, v{t2}
    v_lshl_add_u32 v{t0}, v{t2}, 7, v{t0}
    s_mul_i32 s{sT1}, s{sKH}, {320*128}
    v_add_u32 v{t0}, s{sT1}, v{t0}
    """)
    for mt in range(4):
        p(f"v_xor_b32 v{t1}, {mt}, v{t3}\n v_lshl_add_u32 v{vA+mt}, v{t1}, 5, v{t0}")
    FAc = V.alloc(32, align=4); WA = [V.alloc(16, align=4), V.alloc(16, align=4)]
    def wreads(ks):
        b = WA[ks & 1]
        return [f"ds_read_b64_tr_b16 v[{b+4*mt+2*h}:{b+4*mt+2*h+1}], v{vA+mt} offset:{WO_IMG + 4096*ks + 512*h}" for mt in range(4) for h in range(2)]
    def ld_o(ks):
        for nt in range(2):
            p(f"s_mov_b32 s{sT1}, {O_TILE*nt + 4096*(ks >> 2)}")
            p(f"buffer_load_dwordx4 v[{OF+8*ks+4*nt}:{OF+8*ks+4*nt+3}], v{vR}, s[{SRD_WS}:{SRD_WS+3}], s{sT1} offen offset:{1024*(ks & 3)} sc1")
    for ks in range(10): ld_o(ks)
    for x in wreads(0): p(x)
    for ks in range(10):
        nxt = wreads(ks + 1) if ks < 9 else []
        p(f"s_waitcnt vmcnt({2*(9-ks)})")
        p.label(f"L_b_chk2_{ks}")
        o = OF + 8*ks
        p(f"""
        v_max3_u32 v{mx}, v{o}, v{o+1}, v{o+2}
        v_max3_u32 v{pv}, v{o+3}, v{o+4}, v{o+5}
        v_max3_u32 v{mx}, v{mx}, v{o+6}, v{o+7}
        v_max_u32 v{mx}, v{mx}, v{pv}
        v_cmp_eq_u32 vcc, -1, v{mx}
        s_cbranch_vccnz L_b_rty2_{ks}
        """)
        p.label(f"L_b_ok2_{ks}")
        if ks == 0: stamp(p, 9)
        p("s_waitcnt lgkmcnt(0)")
        k = 0
        for mt in range(4):
            for nt in range(2):
                a = FAc + 16*nt + 4*mt
                c = "0" if ks == 0 else f"v[{a}:{a+3}]"
                p(f"v_mfma_f32_16x16x32_bf16 v[{a}:{a+3}], v[{WA[ks&1]+4*mt}:{WA[ks&1]+4*mt+3}], v[{OF+8*ks+4*nt}:{OF+8*ks+4*nt+3}], {c}")
                if k < 4 and nxt:
                    p(nxt[2*k]); p(nxt[2*k+1])
                k += 1
    p("s_branch L_b_ok2")
    sRET = 90
    for ks in range(10):
        p.label(f"L_b_rty2_{ks}")
        p(f"s_add_u32 s{sCNT}, s{sCNT}, 1\n s_cmp_gt_u32 s{sCNT}, {SPIN_MAX}\n s_cbranch_scc1 L_b_ok2_{ks}")
        ld_o(ks)
        o = OF + 8*ks
        p(f"""
        s_waitcnt vmcnt(0)
        v_max3_u32 v{mx}, v{o}, v{o+1}, v{o+2}
        v_max3_u32 v{pv}, v{o+3}, v{o+4}, v{o+5}
        v_max3_u32 v{mx}, v{mx}, v{o+6}, v{o+7}
        v_max_u32 v{mx}, v{mx}, v{pv}
        v_cmp_eq_u32 vcc, -1, v{mx}
        s_cbranch_vccnz L_b_rty2_{ks}
        """)
        if ks < 9:
            p(f"s_mov_b32 s{sRET}, {ks}\n s_branch L_b_ref2_{ks+1}")
        else:
            p(f"s_branch L_b_ok2_{ks}")
    for ks in range(1, 10):
        p.label(f"L_b_ref2_{ks}")
        ld_o(ks)
    for ks in range(9):
        p(f"s_cmp_eq_u32 s{sRET}, {ks}\n s_cbranch_scc1 L_b_ok2_{ks}")
    p("s_branch L_b_ok2_8")
    p.label("L_b_ok2")
    stamp(p, 10)
    p(f"""
    s_lshl_b32 s{sT0}, s{sW}, 12
    s_add_u32 s{sT0}, s{sT0}, {RED}
    v_lshl_add_u32 v{t0}, v{vLane}, 4, s{sT0}
    s_xor_b32 s{sT1}, s{sW}, 4
    s_lshl_b32 s{sT1}, s{sT1}, 12
    s_add_u32 s{sT1}, s{sT1}, {RED}
    v_lshl_add_u32 v{t1}, v{vLane}, 4, s{sT1}
    s_lshl_b32 s{sT0}, s{sRT}, 7
    s_lshl_b32 s{sT1}, s{sRQ}, 5
    s_add_u32 s{sT0}, s{sT0}, s{sT1}
    s_lshl_b32 s{sT1}, s{sKH}, 4
    s_add_u32 s{sT0}, s{sT0}, s{sT1}
    v_add_u32 v{t2}, s{sT0}, v{vI}
    v_mul_u32_u24 v{t2}, 2560, v{t2}
    v_and_b32 v{t3}, 1, v{vG}
    v_lshl_add_u32 v{t2}, v{t3}, 5, v{t2}
    v_lshrrev_b32 v{t3}, 1, v{vG}
    v_lshl_add_u32 v{t2}, v{t3}, 4, v{t2}
    s_lshl_b32 s{sT0}, s{sCG}, 7
    s_add_u32 s{sT0}, s{sT0}, 1280
    v_add_u32 v{t2}, s{sT0}, v{t2}
    s_cmp_eq_u32 s{sKH}, 0
    s_cbranch_scc1 L_b_red0
    """)
    def finish(keep):
        p("s_waitcnt lgkmcnt(0)\n s_barrier")
        for k in range(4):
            p(f"ds_read_b128 v[{OF+4*k}:{OF+4*k+3}], v{t1} offset:{1024*k}")
        for a2 in range(2):
            for mt in (2*a2, 2*a2 + 1):
                a = keep + 4*mt; b = OF + 4*mt
                p(f"s_waitcnt lgkmcnt({3-mt})")
                p(f"v_pk_add_f32 v[{a}:{a+1}], v[{a}:{a+1}], v[{b}:{b+1}]")
                p(f"v_pk_add_f32 v[{a+2}:{a+3}], v[{a+2}:{a+3}], v[{b+2}:{b+3}]")
            A = keep + 8*a2; B = A + 4; d = OF + 16 + 4*a2
            p(f"""
            v_cvt_pk_bf16_f32 v{d}, v{A}, v{A+1}
            v_cvt_pk_bf16_f32 v{d+1}, v{A+2}, v{A+3}
            v_cvt_pk_bf16_f32 v{d+2}, v{B}, v{B+1}
            v_cvt_pk_bf16_f32 v{d+3}, v{B+2}, v{B+3}
            v_permlane16_swap_b32 v{d}, v{d+2}
            v_permlane16_swap_b32 v{d+1}, v{d+3}
            buffer_store_dwordx4 v[{d}:{d+3}], v{t2}, s[{SRD_O}:{SRD_O+3}], 0 offen offset:{64*a2}
            """)
    for k in range(4):
        p(f"ds_write_b128 v{t0}, v[{FAc+4*k}:{FAc+4*k+3}] offset:{1024*k}")
    finish(FAc + 16)
    p("s_branch L_b_done")
    p.label("L_b_red0")
    for k in range(4):
        p(f"ds_write_b128 v{t0}, v[{FAc+16+4*k}:{FAc+16+4*k+3}] offset:{1024*k}")
    finish(FAc)
    p.label("L_b_done")
    dbgmax(p, 9, t2, t3, sW)
    stamp(p, 11)
    if common.DIAG:
        p('s_waitcnt vmcnt(0)')
        stamp(p, 12)
        stamps_flush(p, t0, t1)
    return V
```

```python
from common import *
import common

SLOT = 40960
WOFF = 24576
WO_IMG = 0
PHI = 81920
RS = 296
AST = 139264
RED = 81920
WS_PART = 65536
PART_STRIDE = 5120
WS_O = 1 << 20
O_TILE = 20480
WS_SIZE = 16 << 20
SPIN_MAX = 1 << 14
DBG_CNT = 4

def merge(streams):
    out = []
    n = max(len(s) for s in streams)
    for j in range(n):
        for s in streams:
            if j < len(s): out.append(s[j])
    return out

def gen_part_b(p):
    V = VAlloc(VGPRS - 1, start=1)
    sJ, sI, sT, sRB, sHP, sW, sWR, sTY = 32, 33, 34, 35, 36, 37, 38, 39
    SRD_X, SRD_W, SRD_WS, SRD_WO, SRD_O = 40, 44, 48, 52, 56
    sT0, sT1, sT2, sT3 = 60, 61, 62, 63
    sKC = 81; sS = 82; sSLOTD = 83; sXO = 84; sWO = 85; sM0 = 86; sROW0 = 87
    sL = 88
    sRT, sCG, sDSLOT = 92, 93, 94
    sNEG = 100; sCNT = 101
    OPT = common.OPT
    p(f"""
    s_and_b32 s{sJ}, s2, 7
    s_lshr_b32 s{sI}, s2, 3
    s_lshr_b32 s{sT0}, s{sJ}, 2
    s_mul_i32 s{sT0}, s{sT0}, 22
    s_add_u32 s{sT}, s{sT0}, s{sI}
    s_lshr_b32 s{sRB}, s{sT}, 2
    s_and_b32 s{sT0}, s{sT}, 3
    s_and_b32 s{sT1}, s{sJ}, 3
    s_lshl_b32 s{sT1}, s{sT1}, 2
    s_add_u32 s{sHP}, s{sT1}, s{sT0}
    s_mul_i32 s{sROW0}, s{sRB}, 192
    s_mul_i32 s{sT1}, s{sT0}, 3
    s_lshl_b32 s{sT2}, s{sRB}, 1
    s_add_u32 s{sKC}, s{sT1}, s{sT2}
    s_mul_i32 s{sT1}, s{sKC}, 205
    s_lshr_b32 s{sT1}, s{sT1}, 11
    s_mul_i32 s{sT1}, s{sT1}, 10
    s_sub_u32 s{sKC}, s{sKC}, s{sT1}
    """)
    if 'rot0' in OPT: p(f"s_mov_b32 s{sKC}, 0")
    if 'rot2' in OPT: p(f"s_and_b32 s{sKC}, s{sT}, 1\n s_mul_i32 s{sKC}, s{sKC}, 5")
    vLane = V.alloc(); vI = V.alloc(); vG = V.alloc(); t0 = V.alloc(); t1 = V.alloc(); t2 = V.alloc(); t3 = V.alloc()
    p(f"""
    v_lshrrev_b32 v{t0}, 6, v0
    v_and_b32 v{vLane}, 63, v0
    v_readfirstlane_b32 s{sW}, v{t0}
    v_and_b32 v{vI}, 15, v{vLane}
    v_lshrrev_b32 v{vG}, 4, v{vLane}
    s_and_b32 s{sWR}, s{sW}, 3
    s_lshr_b32 s{sTY}, s{sW}, 2
    s_cmp_eq_u32 s{sTY}, 2
    s_cbranch_scc0 L_b_compute
    """)
    mark = list(V.free)
    vX = [V.alloc(), V.alloc()]; vW = [V.alloc(), V.alloc()]
    p(f"""
    s_mul_i32 s{sT0}, s{sWR}, 48
    s_add_u32 s{sT0}, s{sT0}, s{sROW0}
    v_lshrrev_b32 v{t0}, 3, v{vLane}
    v_add_u32 v{t0}, s{sT0}, v{t0}
    v_mul_u32_u24 v{t0}, 1280, v{t0}
    v_and_b32 v{t1}, 7, v{vLane}
    v_xor_b32 v{t2}, v{t1}, v{vG}
    v_lshl_add_u32 v{vX[0]}, v{t2}, 4, v{t0}
    v_xor_b32 v{t2}, 4, v{t2}
    v_lshl_add_u32 v{vX[1]}, v{t2}, 4, v{t0}
    """)
    for hv in range(2):
        p(f"""
        v_lshlrev_b32 v{t0}, 1, v{vG}
        v_add_u32 v{t0}, {8*hv}, v{t0}
        v_xor_b32 v{t0}, v{t0}, v{vI}
        v_min_u32 v{t0}, 14, v{t0}
        ; c<5: 1280+16c ; c<8: 2560+16(c-5) ; c<13: 16(c-8) ; else 2560+16(c-10)
        v_lshlrev_b32 v{t1}, 4, v{t0}
        v_add_u32 v{t2}, {2560-160}, v{t1}
        v_subrev_u32 v{t3}, 128, v{t1}
        v_cmp_gt_u32 vcc, 13, v{t0}
        v_cndmask_b32 v{t2}, v{t2}, v{t3}, vcc
        v_add_u32 v{t3}, {2560-80}, v{t1}
        v_cmp_gt_u32 vcc, 8, v{t0}
        v_cndmask_b32 v{t2}, v{t2}, v{t3}, vcc
        v_add_u32 v{t3}, 1280, v{t1}
        v_cmp_gt_u32 vcc, 5, v{t0}
        v_cndmask_b32 v{t2}, v{t2}, v{t3}, vcc
        s_mul_i32 s{sT0}, s{sHP}, 80
        s_mul_i32 s{sT1}, s{sWR}, {16*3840}
        s_add_u32 s{sT0}, s{sT0}, s{sT1}
        v_mul_u32_u24 v{t0}, 3840, v{vG}
        v_add3_u32 v{vW[hv]}, v{t0}, v{t2}, s{sT0}
        """)
    sMX, sMW = 90, 91
    p(f"""
    s_mul_i32 s{sMX}, s{sWR}, 6144
    s_lshl_b32 s{sMW}, s{sWR}, 12
    s_add_u32 s{sMW}, s{sMW}, {WOFF}
    s_mov_b32 s{sDSLOT}, 0
    s_waitcnt lgkmcnt(0)
    """)
    srd(p, SRD_X, S_X, 2048 * 1280)
    srd(p, SRD_W, S_WQKV, 640 * 3840)
    def dma_stage():
        p(f"s_lshl_b32 s{sXO}, s{sKC}, 7\n s_mul_i32 s{sWO}, s{sKC}, {64*3840}\n s_add_u32 s{sM0}, s{sMX}, s{sDSLOT}\n s_add_u32 s{sT2}, s{sMW}, s{sDSLOT}")
        order = [("x", 0), ("w", 0), ("x", 1), ("x", 2), ("w", 1), ("x", 3), ("w", 2), ("x", 4), ("x", 5), ("w", 3)]
        for kind, e in order:
            if 'nodma' in OPT: continue
            if kind == "x":
                p(f"s_add_u32 s{sT0}, s{sXO}, {8*e*1280}\n s_add_u32 m0, s{sM0}, {1024*e}")
                p(f"buffer_load_dwordx4 v{vX[e & 1]}, s[{SRD_X}:{SRD_X+3}], s{sT0} offen lds")
            else:
                p(f"s_add_u32 s{sT0}, s{sWO}, {4*e*3840}\n s_add_u32 m0, s{sT2}, {1024*e}")
                p(f"buffer_load_dwordx4 v{vW[e >> 1]}, s[{SRD_W}:{SRD_W+3}], s{sT0} offen lds")
        p(f"""
        s_add_u32 s{sKC}, s{sKC}, 1
        s_cmp_eq_u32 s{sKC}, 10
        s_cselect_b32 s{sKC}, 0, s{sKC}
        s_add_u32 s{sDSLOT}, s{sDSLOT}, {SLOT}
        s_cmp_eq_u32 s{sDSLOT}, {4*SLOT}
        s_cselect_b32 s{sDSLOT}, 0, s{sDSLOT}
        """)
    LA = 2 if ('la2' in OPT or 'st2' in OPT) else 3
    if 'st2' in OPT:
        dma_stage()
        p("s_barrier")
        stamp(p, 1)
        srd(p, SRD_WS, S_WS, WS_SIZE)
        srd(p, SRD_WO, S_WO, 640 * 1280)
        p("s_waitcnt vmcnt(0)")
        stamp(p, 2)
        p("s_barrier")
        stamp(p, 3)
        dma_stage()
    else:
        p(f"s_mov_b32 s{sS}, 0")
        p.label("L_p_pro")
        dma_stage()
        p(f"s_add_u32 s{sS}, s{sS}, 1\n s_cmp_lt_u32 s{sS}, {LA}\n s_cbranch_scc1 L_p_pro")
        stamp(p, 1)
        srd(p, SRD_WS, S_WS, WS_SIZE)
        srd(p, SRD_WO, S_WO, 640 * 1280)
        p(f"s_waitcnt vmcnt({10*(LA-1)})")
        stamp(p, 2)
        p("s_barrier")
        stamp(p, 3)
    assert LA == 3
    on4 = V.alloc(4, align=4); vC0 = V.alloc(); vC1 = V.alloc()
    def clear_part():
        p(f"""
        v_mov_b32 v{on4}, -1
        v_mov_b32 v{on4+1}, -1
        v_mov_b32 v{on4+2}, -1
        v_mov_b32 v{on4+3}, -1
        s_lshl_b32 s{sT0}, s{sRB}, 4
        s_add_u32 s{sT0}, s{sT0}, s{sHP}
        s_mul_i32 s{sT0}, s{sT0}, {PART_STRIDE}
        s_mul_i32 s{sT1}, s{sWR}, 1280
        s_add_u32 s{sT0}, s{sT0}, s{sT1}
        s_add_u32 s{sT0}, s{sT0}, {WS_PART}
        v_lshl_add_u32 v{vC0}, v{vLane}, 4, s{sT0}
        s_add_u32 s{sT0}, s{sT0}, 1024
        v_lshl_add_u32 v{vC1}, v{vLane}, 2, s{sT0}
        buffer_store_dwordx4 v[{on4}:{on4+3}], v{vC0}, s[{SRD_WS}:{SRD_WS+3}], 0 offen sc1
        buffer_store_dword v{on4}, v{vC1}, s[{SRD_WS}:{SRD_WS+3}], 0 offen sc1
        """)
    def clear_o():
        p(f"""
        s_mul_i32 s{sT0}, s{sRB}, 12
        s_mul_i32 s{sT1}, s{sWR}, 3
        s_add_u32 s{sT0}, s{sT0}, s{sT1}
        s_mul_i32 s{sT0}, s{sT0}, {O_TILE}
        s_mul_i32 s{sT1}, s{sHP}, 1280
        s_add_u32 s{sT0}, s{sT0}, s{sT1}
        s_add_u32 s{sT0}, s{sT0}, {WS_O}
        v_lshl_add_u32 v{vC0}, v{vLane}, 4, s{sT0}
        s_add_u32 s{sT0}, s{sT0}, 1024
        v_lshl_add_u32 v{vC1}, v{vLane}, 2, s{sT0}
        """)
        for nt in range(3):
            p(f"s_mov_b32 s{sT1}, {O_TILE*nt}")
            p(f"buffer_store_dwordx4 v[{on4}:{on4+3}], v{vC0}, s[{SRD_WS}:{SRD_WS+3}], s{sT1} offen sc1")
            p(f"buffer_store_dword v{on4}, v{vC1}, s[{SRD_WS}:{SRD_WS+3}], s{sT1} offen sc1")
    def count(word, name):
        p(f"""
        s_cmp_lg_u32 s{sWR}, 0
        s_cbranch_scc1 L_p_nocnt{name}
        v_mov_b32 v{t0}, {word}
        v_mov_b32 v{t1}, 1
        s_mov_b32 exec_lo, 1
        s_mov_b32 exec_hi, 0
        global_atomic_add v{t0}, v{t1}, s[{S_DBG}:{S_DBG+1}] sc1
        s_mov_b64 exec, -1
        """)
        p.label(f"L_p_nocnt{name}")
    def check(word, name):
        p(f"""
        s_cmp_lg_u32 s{sWR}, 0
        s_cbranch_scc1 L_p_clr_ok{name}
        s_mov_b32 s{sCNT}, 0
        s_mov_b32 exec_lo, 1
        s_mov_b32 exec_hi, 0
        v_mov_b32 v{t0}, {word}
        """)
        p.label(f"L_p_clr{name}")
        p(f"""
        global_load_dword v{t1}, v{t0}, s[{S_DBG}:{S_DBG+1}] sc1
        s_waitcnt vmcnt(0)
        v_readfirstlane_b32 s{sT0}, v{t1}
        s_cmp_ge_u32 s{sT0}, {N_B}
        s_cbranch_scc1 L_p_clr_ok{name}
        s_add_u32 s{sCNT}, s{sCNT}, 1
        s_cmp_gt_u32 s{sCNT}, {1 << 12}
        s_cbranch_scc1 L_p_clr_ok{name}
        s_sleep 16
        s_branch L_p_clr{name}
        """)
        p.label(f"L_p_clr_ok{name}")
        p("s_mov_b64 exec, -1")
    def wo_prefetch():
        p(f"""
        s_lshr_b32 s{sT0}, s2, 3
        s_cmp_ge_u32 s{sT0}, 20
        s_cbranch_scc1 L_p_nopf
        s_mul_i32 s{sT0}, s{sT0}, 320
        s_mul_i32 s{sT1}, s{sWR}, 80
        s_add_u32 s{sT0}, s{sT0}, s{sT1}
        v_add_u32 v{t0}, s{sT0}, v{vLane}
        v_lshlrev_b32 v{t0}, 7, v{t0}
        buffer_load_dword v{VGPRS-1}, v{t0}, s[{SRD_WO}:{SRD_WO+3}], 0 offen
        s_mov_b32 exec_lo, 0xffff
        s_mov_b32 exec_hi, 0
        v_add_u32 v{t0}, {64*128}, v{t0}
        buffer_load_dword v{VGPRS-1}, v{t0}, s[{SRD_WO}:{SRD_WO+3}], 0 offen
        s_mov_b64 exec, -1
        """)
        p.label("L_p_nopf")
    clear_part(); clear_o()
    for st_ in range(3, 10):
        dma_stage()
        if 'pdiag' in OPT: stamp(p, 4 + (st_ - 3))
        p(f"s_waitcnt vmcnt({28 if st_ in (3, 4) else 20})")
        p("s_barrier")
        if st_ == 5: count(DBG_CNT, "p")
    p("s_waitcnt vmcnt(10)\n s_barrier")
    p("s_waitcnt vmcnt(0)\n s_barrier")
    wo_prefetch()
    check(DBG_CNT, "p")
    p(f"""
    s_lshr_b32 s{sT0}, s2, 3               ; i
    s_cmp_ge_u32 s{sT0}, 10
    s_cselect_b32 s{sT1}, 1, 0
    s_mul_i32 s{sT1}, s{sT1}, 10
    s_sub_u32 s{sCG}, s{sT0}, s{sT1}
    ; LDS row k' = 8 z + e holds wo row 40 (z/5) + 4 (z%5) + 20 (e>>2) + (e&3);  z = 20 pw + i'
    v_lshrrev_b32 v{t0}, 3, v{vLane}            ; e
    v_bfe_u32 v{t1}, v{t0}, 1, 1
    v_lshlrev_b32 v{t1}, 1, v{t1}
    v_and_b32 v{t2}, 7, v{vLane}
    v_xor_b32 v{t1}, v{t1}, v{t2}
    v_xor_b32 v{t2}, 4, v{t1}
    v_lshrrev_b32 v{t3}, 2, v{t0}
    v_mul_u32_u24 v{t3}, 20, v{t3}
    v_and_b32 v{t0}, 3, v{t0}
    v_add_u32 v{t0}, v{t0}, v{t3}
    s_mul_i32 s{sT0}, s{sWR}, 160
    v_add_u32 v{t0}, s{sT0}, v{t0}
    v_mul_u32_u24 v{t0}, 1280, v{t0}
    s_lshl_b32 s{sT0}, s{sCG}, 7
    v_add_u32 v{t0}, s{sT0}, v{t0}
    v_lshl_add_u32 v{t3}, v{t2}, 4, v{t0}
    v_lshl_add_u32 v{t0}, v{t1}, 4, v{t0}
    s_mul_i32 s{sM0}, s{sWR}, 20480
    s_barrier
    """)
    vK0 = V.alloc(); vK1 = V.alloc()
    p(f"v_mov_b32 v{vK0}, v{t0}\n v_mov_b32 v{vK1}, v{t3}")
    p("s_cmp_ge_u32 s2, 160\n s_cbranch_scc1 L_p_nowo")
    for i in range(20):
        p(f"s_mov_b32 s{sT1}, {(40*(i//5) + 4*(i%5))*1280}\n s_add_u32 m0, s{sM0}, {WO_IMG + 1024*i}")
        p(f"buffer_load_dwordx4 v{vK1 if i & 1 else vK0}, s[{SRD_WO}:{SRD_WO+3}], s{sT1} offen lds")
    p.label("L_p_nowo")
    if 'pdiag' not in OPT: stamp(p, 4)
    p("s_waitcnt vmcnt(0)")
    if 'pdiag' not in OPT: stamp(p, 5)
    p("s_barrier")
    if 'pdiag' not in OPT: stamp(p, 6)
    if common.DIAG:
        stamps_flush(p, t0, t1, loader=True)
    p("s_endpgm")
    V.free = list(mark)
    p.label("L_b_compute")
    vWp = V.alloc(4, align=4); vWp2 = V.alloc(4, align=4)
    p(f"""
    s_mul_i32 s{sT0}, s{sHP}, 1600
    v_lshlrev_b32 v{t0}, 4, v{vLane}
    v_add_u32 v{t0}, s{sT0}, v{t0}
    v_add_u32 v{t1}, 1024, v{t0}
    s_waitcnt lgkmcnt(0)
    global_load_dwordx4 v[{vWp}:{vWp+3}], v{t0}, s[{S_WPHI}:{S_WPHI+1}]
    s_mov_b32 exec_hi, 15
    global_load_dwordx4 v[{vWp2}:{vWp2+3}], v{t1}, s[{S_WPHI}:{S_WPHI+1}]
    s_mov_b32 exec_hi, -1
    """)
    PF0 = 1 if 'st2' in OPT else 3
    NPF = 0
    if 'l2pf' in OPT:
        NPF = 2
        a0 = V.alloc(); a1 = V.alloc(); a2 = V.alloc(); a3 = V.alloc(); d0 = V.alloc(); ad = V.alloc(2, align=2)
        p(f"""
        ; lane -> chunk PF0 + lane/10, item r = lane%10 ; it = min((i*8 + w)*10 + r, 1727)
        v_mul_u32_u24 v{a0}, 205, v{vLane}
        v_lshrrev_b32 v{a0}, 11, v{a0}               ; lane/10
        v_mul_u32_u24 v{a1}, 10, v{a0}
        v_sub_u32 v{a1}, v{vLane}, v{a1}             ; r
        s_lshl_b32 s{sT1}, s{sI}, 3
        s_add_u32 s{sT1}, s{sT1}, s{sW}
        s_mul_i32 s{sT1}, s{sT1}, 10
        v_add_u32 v{a1}, s{sT1}, v{a1}               ; it
        v_min_u32 v{a1}, 1727, v{a1}
        v_add_u32 v{a0}, {PF0}, v{a0}                ; chunk
        s_lshr_b32 s{sT2}, s{sJ}, 2
        s_mul_i32 s{sT2}, s{sT2}, 960
        v_add_u32 v{a2}, s{sT2}, v{a1}
        v_min_u32 v{a2}, 2047, v{a2}
        v_mul_u32_u24 v{a2}, 1280, v{a2}
        v_lshl_add_u32 v{a2}, v{a0}, 7, v{a2}
        ; W: u = it - 1152 ; krow = u/9 ; rem = u%9 ; seg = rem/3 ; ln = rem%3
        v_subrev_u32 v{a1}, 1152, v{a1}
        v_max_i32 v{d0}, 0, v{a1}
        v_mul_u32_u24 v{a3}, 7282, v{d0}
        v_lshrrev_b32 v{a3}, 16, v{a3}               ; krow
        v_mul_u32_u24 v{t3}, 9, v{a3}
        v_sub_u32 v{d0}, v{d0}, v{t3}                ; rem
        v_lshl_add_u32 v{a3}, v{a0}, 6, v{a3}
        v_mul_u32_u24 v{a3}, 3840, v{a3}
        v_mul_u32_u24 v{t3}, 86, v{d0}
        v_lshrrev_b32 v{t3}, 8, v{t3}                ; seg
        v_mul_u32_u24 v{a0}, 3, v{t3}
        v_sub_u32 v{d0}, v{d0}, v{a0}                ; ln
        v_mul_u32_u24 v{t3}, 1280, v{t3}
        v_lshl_add_u32 v{t3}, v{d0}, 7, v{t3}
        s_and_b32 s{sT2}, s{sJ}, 3
        s_mul_i32 s{sT2}, s{sT2}, 320
        s_and_b32 s{sT2}, s{sT2}, 0xffffff80
        v_add3_u32 v{a3}, v{a3}, v{t3}, s{sT2}
        v_cmp_gt_i32 vcc, 0, v{a1}                   ; x lanes
        v_cndmask_b32 v{a2}, v{a3}, v{a2}, vcc
        v_mov_b32 v{a0}, {6*64*3840}
        v_mov_b32 v{a1}, {6*128}
        v_cndmask_b32 v{a3}, v{a0}, v{a1}, vcc
        v_mov_b32 v{a0}, s{S_WQKV}
        v_mov_b32 v{a1}, s{S_X}
        v_cndmask_b32 v{ad}, v{a0}, v{a1}, vcc
        v_mov_b32 v{a0}, s{S_WQKV+1}
        v_mov_b32 v{a1}, s{S_X+1}
        v_cndmask_b32 v{ad+1}, v{a0}, v{a1}, vcc
        v_add_co_u32 v{ad}, vcc, v{ad}, v{a2}
        v_addc_co_u32 v{ad+1}, vcc, 0, v{ad+1}, vcc
        """)
        if 'st2' in OPT: p("s_barrier")
        p(f"""
        s_mov_b32 exec_hi, 0x0fffffff
        global_load_dword v{VGPRS-1}, v[{ad}:{ad+1}], off
        s_mov_b32 exec_hi, -1
        v_add_co_u32 v{ad}, vcc, v{ad}, v{a3}
        v_addc_co_u32 v{ad+1}, vcc, 0, v{ad+1}, vcc
        s_mov_b32 exec_lo, {0x3ff if PF0 == 3 else 0x3fffffff:#x}
        s_mov_b32 exec_hi, 0
        global_load_dword v{VGPRS-1}, v[{ad}:{ad+1}], off
        s_mov_b64 exec, -1
        """)
        for r in (a0, a1, a2, a3, d0): V.release(r)
        V.release(ad, 2)
    stamp(p, 1)
    srd(p, SRD_WS, S_WS, WS_SIZE)
    srd(p, SRD_O, S_OUT, 2048 * 2560)
    p(f"""
    s_mov_b32 s{sL}, {LOG2E:#x}
    s_mov_b32 s{sL+1}, {LOG2E:#x}
    s_mov_b32 s{sNEG}, {-3*SLOT & 0xffffffff:#x}
    """)
    vXa = V.alloc(2, align=1); vWa = V.alloc(4, align=1)
    for ks in range(2):
        p(f"""
        v_add_u32 v{t0}, {4*ks}, v{vG}
        v_lshrrev_b32 v{t1}, 1, v{vI}
        v_xor_b32 v{t0}, v{t0}, v{t1}
        v_lshlrev_b32 v{t0}, 4, v{t0}
        s_mul_i32 s{sT0}, s{sWR}, 48
        v_add_u32 v{t1}, s{sT0}, v{vI}
        v_lshl_add_u32 v{vXa+ks}, v{t1}, 7, v{t0}
        """)
    p(f"""
    v_and_b32 v{t0}, 1, v{vG}
    v_xor_b32 v{t0}, s{sTY}, v{t0}
    v_lshlrev_b32 v{t0}, 7, v{t0}
    v_bfe_u32 v{t2}, v{vI}, 1, 1
    v_lshl_add_u32 v{t0}, v{t2}, 4, v{t0}
    v_and_b32 v{t2}, 1, v{vI}
    v_lshl_add_u32 v{t0}, v{t2}, 3, v{t0}
    v_lshrrev_b32 v{t1}, 2, v{vI}
    v_lshl_add_u32 v{t2}, v{vG}, 3, v{t1}
    v_lshl_add_u32 v{t0}, v{t2}, 8, v{t0}
    v_add_u32 v{t0}, {WOFF}, v{t0}
    """)
    for mt in range(4):
        p(f"v_xor_b32 v{t2}, {mt}, v{t1}\n v_lshl_add_u32 v{vWa+mt}, v{t2}, 5, v{t0}")
    acc = V.alloc(48, align=4)
    for k in range(48): p(f"v_mov_b32 v{acc+k}, 0")
    WPB = 3 * SLOT
    vFA = V.alloc(16, align=4)
    FA, FB, FC0, FC1 = vFA, vFA + 4, vFA + 8, vFA + 12
    GT = V.alloc(32, align=1)
    for k in range(32): p(f"v_mov_b32 v{GT+k}, 0")
    p(f"""
    s_lshl_b32 s{sT0}, s{sW}, 11
    s_add_u32 s{sT0}, s{sT0}, {WPB}
    v_lshl_add_u32 v{t0}, v{vLane}, 4, s{sT0}
    v_lshrrev_b32 v{t1}, 2, v{vI}
    v_mul_u32_u24 v{t1}, 5, v{t1}
    v_and_b32 v{t2}, 3, v{vI}
    v_add_u32 v{t2}, v{t1}, v{t2}
    v_lshlrev_b32 v{t2}, 1, v{t2}
    v_mul_u32_u24 v{t3}, 160, v{vG}
    v_add3_u32 v{t2}, v{t2}, v{t3}, s{sT0}      ; t2: f = 5(m>>2)+(m&3)
    v_add_u32 v{t1}, 4, v{t1}
    v_lshlrev_b32 v{t1}, 1, v{t1}
    v_add3_u32 v{t1}, v{t1}, v{t3}, s{sT0}      ; t1: f = 5(m>>2)+4
    s_waitcnt vmcnt({NPF})
    """)
    p(f"""
    ds_write_b128 v{t0}, v[{vWp}:{vWp+3}]
    s_mov_b32 exec_hi, 15
    ds_write_b128 v{t0}, v[{vWp2}:{vWp2+3}] offset:1024
    s_mov_b32 exec_hi, -1
    s_waitcnt lgkmcnt(0)
    """)
    def gather(dst, addr, off, mask):
        p(f"s_mov_b32 exec_lo, {mask & 0xffffffff:#x}\n s_mov_b32 exec_hi, {mask >> 32:#x}")
        for e in range(4):
            p(f"ds_read_u16 v{GT + 2*(dst - vFA) + e}, v{addr} offset:{off + 40*e}")
    G0 = 0xFFFF; G01 = 0xFFFFFFFF; G123 = 0xFFFFFFFFFFFF0000; ALL = (1 << 64) - 1
    R0 = 0x1111111111111111; R1 = 0x2222222222222222
    gather(FA, t2, 0, ALL);            gather(FA + 2, t2, 16*40, G0)
    gather(FB, t2, 800 - 160, G123);   gather(FB + 2, t2, 800 + 12*40, G01)
    gather(FC0, t1, 0, R0);            gather(FC0 + 2, t1, 16*40, G0 & R0)
    gather(FC1, t1, 800 - 160, G123 & R1); gather(FC1 + 2, t1, 800 + 12*40, G01 & R1)
    p("s_mov_b64 exec, -1\n s_waitcnt lgkmcnt(0)")
    for k in range(16):
        p(f"v_lshl_or_b32 v{vFA+k}, v{GT+2*k+1}, 16, v{GT+2*k}")
    V.release(GT, 32); V.release(vWp, 4); V.release(vWp2, 4)
    XF = [V.alloc(12, align=4), V.alloc(12, align=4)]
    WF = [V.alloc(16, align=4), V.alloc(16, align=4)]
    def reads(ks):
        L = []
        for mt in range(4):
            for h in range(2):
                L.append(f"ds_read_b64_tr_b16 v[{WF[ks]+4*mt+2*h}:{WF[ks]+4*mt+2*h+1}], v{vWa+mt} offset:{8192*ks + 1024*h}")
        X = [f"ds_read_b128 v[{XF[ks]+4*nt}:{XF[ks]+4*nt+3}], v{vXa+ks} offset:{2048*nt}" for nt in range(3)]
        return [L[0], L[1], X[0], X[1], X[2]] + L[2:]
    def mfmas(ks):
        L = []
        for mt in range(4):
            for nt in range(3):
                a = acc + 16*nt + 4*mt
                L.append(f"v_mfma_f32_16x16x32_bf16 v[{a}:{a+3}], v[{WF[ks]+4*mt}:{WF[ks]+4*mt+3}], v[{XF[ks]+4*nt}:{XF[ks]+4*nt+3}], v[{a}:{a+3}]")
        return L
    def sched(main, slots):
        for i, m in enumerate(main):
            if 'nomfma' not in OPT: p(m)
            for x in slots.get(i, []):
                if ('nomfma' in OPT or 'nords' in OPT) and x.startswith('ds_read'): continue
                p(x)
    def advance():
        return [f"v_add_u32 v{r}, s{sSLOTD}, v{r}" for r in (vWa, vXa, vWa+1, vWa+2, vWa+3, vXa+1)]
    stamp(p, 15)
    p("s_barrier")
    stamp(p, 2); cstamp(p, 13)
    for x in reads(0): p(x)
    p(f"s_mov_b32 s{sS}, 0")
    def slot_delta():
        return [f"s_and_b32 s{sT0}, s{sS}, 3", f"s_cmp_eq_u32 s{sT0}, 3", f"s_cselect_b32 s{sSLOTD}, s{sNEG}, {SLOT}"]
    RSP = int(common.os.environ.get("RSP", "2"))
    def read_slots(r, first):
        d = {}
        k = first
        while r:
            d[k] = r[:RSP]; r = r[RSP:]; k += 1
        return d
    def half0():
        p("s_waitcnt lgkmcnt(0)")
        slots = read_slots(reads(1), 0)
        slots[7] = slot_delta()
        sched(mfmas(0), slots)
    def half1(nxt=True):
        p("s_waitcnt lgkmcnt(0)")
        if nxt:
            p("s_barrier")
            slots = read_slots(reads(0), 1)
            slots[0] = advance()
            sched(mfmas(1), slots)
        else:
            sched(mfmas(1), {})
    p.label("L_b_main")
    half0(); half1()
    p(f"s_add_u32 s{sS}, s{sS}, 1\n s_cmp_lt_u32 s{sS}, 9\n s_cbranch_scc1 L_b_main")
    half0(); half1(nxt=False)
    stamp(p, 3); cstamp(p, 14)
    V.release(XF[0], 12); V.release(XF[1], 12); V.release(WF[0], 16); V.release(WF[1], 16)
    V.release(vXa, 2); V.release(vWa, 4)
    def wait_cleared(name, vN, vm):
        p(f"s_mov_b32 s{sCNT}, 0\n s_waitcnt vmcnt({vm})")
        p.label(f"L_b_wc{name}")
        p(f"""
        v_readfirstlane_b32 s{sT0}, v{vN}
        s_cmp_ge_u32 s{sT0}, {N_B}
        s_cbranch_scc1 L_b_wc_ok{name}
        s_add_u32 s{sCNT}, s{sCNT}, 1
        s_cmp_gt_u32 s{sCNT}, {SPIN_MAX}
        s_cbranch_scc1 L_b_wc_ok{name}
        v_mov_b32 v{vN}, {DBG_CNT}
        global_load_dword v{vN}, v{vN}, s[{S_DBG}:{S_DBG+1}] sc1
        s_waitcnt vmcnt(0)
        s_branch L_b_wc{name}
        """)
        p.label(f"L_b_wc_ok{name}")
    P = V.alloc(3 * 8, align=2)
    vRow = V.alloc()
    vV2 = V.alloc(); vV3 = V.alloc()
    p(f"""
    s_mul_i32 s{sT0}, s{sWR}, 48
    v_add_u32 v{t0}, s{sT0}, v{vI}
    v_mul_u32_u24 v{vRow}, {RS}, v{t0}
    v_add_u32 v{vRow}, {PHI}, v{vRow}
    s_mul_i32 s{sT0}, s{sTY}, 48
    v_lshlrev_b32 v{t1}, 3, v{vG}
    v_add3_u32 v{vV2}, v{t1}, v{vRow}, s{sT0}
    v_add_u32 v{vV2}, {192 - 16}, v{vV2}
    v_add_u32 v{t2}, {192 + 16}, v{t1}
    v_add_u32 v{t3}, {192 + 64}, v{t1}
    v_cmp_gt_u32 vcc, 2, v{vG}
    v_add_u32 v{vV3}, {280 - 16}, v{t1}
    v_cndmask_b32 v{t3}, v{vV3}, v{t3}, vcc
    s_cmp_eq_u32 s{sTY}, 0
    s_cselect_b64 vcc, -1, 0
    v_cndmask_b32 v{t3}, v{t3}, v{t2}, vcc
    v_add_u32 v{vV3}, v{t3}, v{vRow}
    """)
    def cvtP(nt, mts):
        for mt in mts:
            a = acc + 16*nt + 4*mt
            p(f"v_cvt_pk_bf16_f32 v{P+8*nt+2*mt}, v{a}, v{a+1}")
            p(f"v_cvt_pk_bf16_f32 v{P+8*nt+2*mt+1}, v{a+2}, v{a+3}")
    for nt in range(3): cvtP(nt, (2, 3))
    p("s_mov_b32 exec_lo, 0")
    for nt in range(3): p(f"ds_write_b64 v{vV2}, v[{P+8*nt+4}:{P+8*nt+5}] offset:{16*RS*nt}")
    p("s_mov_b32 exec_lo, -1")
    for nt in range(3): p(f"ds_write_b64 v{vV3}, v[{P+8*nt+6}:{P+8*nt+7}] offset:{16*RS*nt}")
    for nt in range(3): cvtP(nt, (0, 1))
    V.release(vV2); V.release(vV3)
    if common.DUMP:
        p(f"""
        s_lshl_b32 s{sT0}, s2, 3
        s_add_u32 s{sT0}, s{sT0}, s{sW}
        s_mul_i32 s{sT0}, s{sT0}, {24*256}
        s_add_u32 s{sT0}, s{sT0}, {4<<20}
        v_lshl_add_u32 v{t0}, v{vLane}, 2, s{sT0}
        """)
        for k in range(24):
            p(f"buffer_store_dword v{P+k}, v{t0}, s[{SRD_WS}:{SRD_WS+3}], 0 offen offset:{256*(k%16)}")
            if k == 15: p(f"v_add_u32 v{t0}, 4096, v{t0}")
        p("s_waitcnt vmcnt(0)")
    V.release(acc, 48)
    if common.os.environ.get('RDBG'): print('free before softmax', [i for i,f in enumerate(V.free) if f])
    TTb = V.alloc(38, align=4)
    TT = [TTb, TTb + 12, TTb + 24]
    EE = [V.alloc(20, align=2) for _ in range(3)]
    SS = [[V.alloc(2, align=2) for _ in range(3)] for _ in range(3)]
    def softmax(nt, outs):
        T, E, S = TT[nt], EE[nt], SS[nt]
        X01 = P + 8*nt; X12 = P + 8*nt + 2
        a0, a1, b0, b1, c, d = S[0], S[0]+1, S[1], S[1]+1, S[2], S[2]+1
        L = [f"v_mfma_f32_16x16x32_bf16 v[{T}:{T+3}], v[{FA}:{FA+3}], v[{X01}:{X01+3}], 0",
             f"v_mfma_f32_16x16x32_bf16 v[{T+8}:{T+11}], v[{FC0}:{FC0+3}], v[{X01}:{X01+3}], 0",
             f"v_mfma_f32_16x16x32_bf16 v[{T+4}:{T+7}], v[{FB}:{FB+3}], v[{X12}:{X12+3}], 0",
             f"v_mfma_f32_16x16x32_bf16 v[{T+8}:{T+11}], v[{FC1}:{FC1+3}], v[{X12}:{X12+3}], v[{T+8}:{T+11}]"]
        x = [[T, T+1, T+2, T+3, T+8], [T+4, T+5, T+6, T+7, T+9]]
        for h, (a, b) in enumerate(((a0, b0), (a1, b1))):
            xs = x[h]
            L += [f"v_max3_f32 v{a}, v{xs[0]}, v{xs[1]}, v{xs[2]}", f"v_max3_f32 v{b}, -v{xs[0]}, -v{xs[1]}, -v{xs[2]}"]
        for h, (a, b) in enumerate(((a0, b0), (a1, b1))):
            xs = x[h]
            L += [f"v_max3_f32 v{a}, v{a}, v{xs[3]}, v{xs[4]}", f"v_max3_f32 v{b}, v{b}, -v{xs[3]}, -v{xs[4]}"]
        def allred(op):
            return [f"v_permlane16_swap_b32 v{a0}, v{b0}", f"v_permlane16_swap_b32 v{a1}, v{b1}",
                    f"{op} v{a0}, v{a0}, v{b0}", f"{op} v{a1}, v{a1}, v{b1}",
                    f"v_permlane32_swap_b32 v{a0}, v{a1}", f"{op} v{c}, v{a0}, v{a1}"]
        bc = [f"v_mov_b32 v{d}, v{c}", f"v_permlane32_swap_b32 v{c}, v{d}", f"v_mov_b32 v{a0}, v{c}", f"v_mov_b32 v{a1}, v{d}",
              f"v_permlane16_swap_b32 v{a0}, v{c}", f"v_permlane16_swap_b32 v{a1}, v{d}"]
        L += allred("v_max_f32") + [f"v_mul_f32 v{c}, s{sL}, v{c}"] + bc
        sel = [(0, 0), (0, 0), (1, 1), (1, 1), (0, 1)]
        for k in range(5):
            lo, hi = sel[k]
            L.append(f"v_pk_fma_f32 v[{E+2*k}:{E+2*k+1}], v[{T+2*k}:{T+2*k+1}], s[{sL}:{sL+1}], v[{a0}:{a1}] op_sel:[0,0,{lo}] op_sel_hi:[1,1,{hi}] neg_lo:[0,0,1] neg_hi:[0,0,1]")
            L.append(f"v_pk_fma_f32 v[{E+10+2*k}:{E+10+2*k+1}], v[{T+2*k}:{T+2*k+1}], s[{sL}:{sL+1}], v[{c}:{d}] op_sel:[0,0,{lo}] op_sel_hi:[1,1,{hi}] neg_lo:[1,0,1] neg_hi:[1,0,1]")
        L += [f"v_exp_f32 v{E+k}, v{E+k}" for k in range(20)]
        L += [f"v_pk_add_f32 v[{T}:{T+1}], v[{E}:{E+1}], v[{E+2}:{E+3}]",
              f"v_pk_add_f32 v[{T+2}:{T+3}], v[{E+4}:{E+5}], v[{E+6}:{E+7}]",
              f"v_pk_add_f32 v[{T+4}:{T+5}], v[{E+10}:{E+11}], v[{E+12}:{E+13}]",
              f"v_pk_add_f32 v[{T+6}:{T+7}], v[{E+14}:{E+15}], v[{E+16}:{E+17}]",
              f"v_add_f32 v{a0}, v{T}, v{T+1}", f"v_add_f32 v{a1}, v{T+2}, v{T+3}",
              f"v_add_f32 v{b0}, v{T+4}, v{T+5}", f"v_add_f32 v{b1}, v{T+6}, v{T+7}",
              f"v_pk_add_f32 v[{a0}:{a1}], v[{a0}:{a1}], v[{E+8}:{E+9}]",
              f"v_pk_add_f32 v[{b0}:{b1}], v[{b0}:{b1}], v[{E+18}:{E+19}]"]
        L += allred("v_add_f32") + [f"v_rcp_f32 v{c}, v{c}"] + bc
        for k in range(5):
            lo, hi = sel[k]
            L.append(f"v_pk_mul_f32 v[{E+2*k}:{E+2*k+1}], v[{E+2*k}:{E+2*k+1}], v[{a0}:{a1}] op_sel:[0,{lo}] op_sel_hi:[1,{hi}]")
            L.append(f"v_pk_mul_f32 v[{E+10+2*k}:{E+10+2*k+1}], v[{E+10+2*k}:{E+10+2*k+1}], v[{c}:{d}] op_sel:[0,{lo}] op_sel_hi:[1,{hi}]")
        pairs = [[(0, 1), (2, 3), (8, 10), (11, 12), (13, 18)], [(4, 5), (6, 7), (9, 14), (15, 16), (17, 19)]]
        for h in range(2):
            for k, (u, w) in enumerate(pairs[h]):
                L.append(f"v_cvt_pk_bf16_f32 v{outs[h]+k}, v{E+u}, v{E+w}")
        return L
    snap = list(V.free)
    p(f"s_cmp_eq_u32 s{sTY}, 0\n s_cbranch_scc0 L_b_qtype")
    stamp(p, 4)
    p(f"""
    s_mul_i32 s{sT0}, s{sWR}, 48
    s_add_u32 s{sT0}, s{sT0}, s{sROW0}
    v_add_u32 v{t0}, s{sT0}, v{vI}
    v_mov_b32 v{t1}, 0x3f80
    """)
    on = EE[0]
    p(f"v_mov_b32 v{on+1}, 0")
    for nt in range(3):
        p(f"""
        v_cmp_gt_u32 vcc, 0x800, v{t0}
        v_cndmask_b32 v{on}, 0, v{t1}, vcc
        ds_write_b64 v{vRow}, v[{on}:{on+1}] offset:{16*RS*nt + 272}
        v_add_u32 v{t0}, 16, v{t0}
        """)
    vPh = V.alloc()
    p(f"v_mul_u32_u24 v{t0}, 24, v{vG}\n v_add_u32 v{vPh}, v{t0}, v{vRow}")
    streams = []
    for nt in range(3):
        T = TT[nt]
        L = softmax(nt, [T, T + 6])
        for h in range(2):
            o = T + 6*h; off = 16*RS*nt + 96*h
            L += [f"ds_write_b64 v{vPh}, v[{o}:{o+1}] offset:{off}", f"ds_write_b64 v{vPh}, v[{o+2}:{o+3}] offset:{off+8}",
                  f"ds_write_b32 v{vPh}, v{o+4} offset:{off+16}"]
        streams.append(L)
    for x in merge(streams): p(x)
    p("s_waitcnt lgkmcnt(0)\n s_barrier")
    for r, n in [(P, 24), (vRow, 1), (vFA, 16), (TTb, 38), (vPh, 1)] + [(x, 20) for x in EE] + [(y, 2) for x in SS for y in x]:
        V.release(r, n)
    stamp(p, 5)
    sHD, sHF = 95, 96
    vAa = V.alloc(); vB0 = V.alloc()
    p(f"""
    s_and_b32 s{sHD}, s{sWR}, 1
    s_lshr_b32 s{sHF}, s{sWR}, 1
    v_lshrrev_b32 v{t0}, 2, v{vI}
    v_lshl_add_u32 v{t0}, v{vG}, 3, v{t0}
    v_mul_u32_u24 v{t0}, {RS}, v{t0}
    v_add_u32 v{t0}, {PHI}, v{t0}
    v_and_b32 v{t1}, 3, v{vI}
    v_mul_u32_u24 v{t2}, 24, v{t1}
    s_mul_i32 s{sT0}, s{sHD}, 96
    v_add3_u32 v{vAa}, v{t0}, v{t2}, s{sT0}
    s_mul_i32 s{sT0}, s{sHD}, 40
    v_lshlrev_b32 v{t2}, 3, v{t1}
    v_add_u32 v{t2}, s{sT0}, v{t2}
    v_add_u32 v{vB0}, 192, v{t2}
    s_add_u32 s{sT0}, s{sT0}, 224
    v_mov_b32 v{t2}, 272
    v_mov_b32 v{t3}, s{sT0}
    v_cmp_eq_u32 vcc, s{sHD}, v{t1}
    v_cndmask_b32 v{t2}, v{t2}, v{t3}, vcc
    s_cmp_eq_u32 s{sHF}, 0
    s_cselect_b64 vcc, -1, 0
    v_cndmask_b32 v{t2}, v{t2}, v{vB0}, vcc
    v_add_u32 v{vB0}, v{t0}, v{t2}
    """)
    KF = V.alloc(48, align=4); KD = V.alloc(12, align=4)
    def kvreads(ks):
        b = KF + 16 * (ks % 3); off = 32 * RS * ks
        for h in range(2):
            p(f"ds_read_b64_tr_b16 v[{b+12+2*h}:{b+12+2*h+1}], v{vB0} offset:{off + 4*RS*h}")
        for mt in range(3):
            for h in range(2):
                p(f"ds_read_b64_tr_b16 v[{b+4*mt+2*h}:{b+4*mt+2*h+1}], v{vAa} offset:{off + 4*RS*h + 8*mt}")
    kvreads(0); kvreads(1)
    vP0 = V.alloc(); vP1 = V.alloc()
    p(f"""
    s_lshl_b32 s{sT0}, s{sRB}, 4
    s_add_u32 s{sT0}, s{sT0}, s{sHP}
    s_mul_i32 s{sT0}, s{sT0}, {PART_STRIDE}
    s_mul_i32 s{sT1}, s{sWR}, 1280
    s_add_u32 s{sT0}, s{sT0}, s{sT1}
    s_add_u32 s{sT0}, s{sT0}, {WS_PART}
    v_lshl_add_u32 v{vP0}, v{vLane}, 4, s{sT0}
    s_add_u32 s{sT0}, s{sT0}, 1024
    v_lshl_add_u32 v{vP1}, v{vLane}, 2, s{sT0}
    """)
    for ks in range(6):
        p(f"s_waitcnt lgkmcnt({8 if ks < 5 else 0})")
        b = KF + 16 * (ks % 3)
        for mt in range(3):
            c = "0" if ks == 0 else f"v[{KD+4*mt}:{KD+4*mt+3}]"
            p(f"v_mfma_f32_16x16x32_bf16 v[{KD+4*mt}:{KD+4*mt+3}], v[{b+4*mt}:{b+4*mt+3}], v[{b+12}:{b+15}], {c}")
        if ks + 2 < 6: kvreads(ks + 2)
    q = V.alloc(6, align=4)
    p(f"""
    v_cvt_pk_bf16_f32 v{q}, v{KD}, v{KD+1}
    v_cvt_pk_bf16_f32 v{q+1}, v{KD+2}, v{KD+3}
    v_cvt_pk_bf16_f32 v{q+2}, v{KD+4}, v{KD+5}
    v_cvt_pk_bf16_f32 v{q+3}, v{KD+6}, v{KD+7}
    v_cvt_pk_bf16_f32 v{q+4}, v{KD+8}, v{KD+9}
    buffer_store_dwordx4 v[{q}:{q+3}], v{vP0}, s[{SRD_WS}:{SRD_WS+3}], 0 offen sc1
    buffer_store_dword v{q+4}, v{vP1}, s[{SRD_WS}:{SRD_WS+3}], 0 offen sc1
    """)
    stamp(p, 6)
    V.release(KF, 48); V.release(KD, 12)
    L = V.alloc(56, align=4)
    A10 = V.alloc(10, align=2); mx = V.alloc()
    p(f"""
    s_mul_i32 s{sT0}, s{sRB}, {16*PART_STRIDE}
    v_subrev_u32 v{t0}, s{sT0}, v{vP0}
    v_subrev_u32 v{t1}, s{sT0}, v{vP1}
    s_mov_b32 s{sCNT}, 0
    """)
    def ld_part(r):
        p(f"s_mov_b32 s{sT0}, {r*16*PART_STRIDE}")
        p(f"buffer_load_dwordx4 v[{L+4*r}:{L+4*r+3}], v{t0}, s[{SRD_WS}:{SRD_WS+3}], s{sT0} offen sc1")
        p(f"buffer_load_dword v{L+44+r}, v{t1}, s[{SRD_WS}:{SRD_WS+3}], s{sT0} offen sc1")
    sHI = 97; sLO = 90
    p(f"s_mov_b32 s{sHI}, 0x3f800000\n s_mov_b32 s{sLO}, 0x00003f80")
    if 'p1old' not in OPT:
        if 'noack1' not in OPT: p("s_waitcnt vmcnt(0)")
        p.label("L_b_att1")
        for r in range(11): ld_part(r)
        p(f"s_add_u32 s{sCNT}, s{sCNT}, 1")
        p(f"v_mov_b32 v{mx}, 0")
        for r in range(11):
            p(f"s_waitcnt vmcnt({2*(10-r)})")
            p(f"v_max3_u32 v{mx}, v{mx}, v{L+4*r}, v{L+4*r+1}")
            p(f"v_max3_u32 v{mx}, v{mx}, v{L+4*r+2}, v{L+4*r+3}")
            p(f"v_max_u32 v{mx}, v{mx}, v{L+44+r}")
        p(f"""
        v_cmp_eq_u32 vcc, -1, v{mx}
        s_cbranch_vccz L_b_got1
        s_cmp_le_u32 s{sCNT}, {SPIN_MAX}
        s_cbranch_scc1 L_b_att1
        """)
        p.label("L_b_got1")
        stamp(p, 7)
        for r in range(11):
            for k in range(5):
                src = L + 4*r + k if k < 4 else L + 44 + r
                c0 = "0" if r == 0 else f"v{A10+2*k}"
                c1 = "0" if r == 0 else f"v{A10+2*k+1}"
                p(f"v_dot2_f32_bf16 v{A10+2*k}, v{src}, s{sLO}, {c0}")
                p(f"v_dot2_f32_bf16 v{A10+2*k+1}, v{src}, s{sHI}, {c1}")
    p.label("L_b_sum1")
    for k in range(5):
        p(f"v_cvt_pk_bf16_f32 v{L+k}, v{A10+2*k}, v{A10+2*k+1}")
    p(f"""
    s_lshl_b32 s{sT1}, s{sWR}, 10
    s_add_u32 s{sT1}, s{sT1}, {AST}
    v_lshl_add_u32 v{t0}, v{vLane}, 4, s{sT1}
    ds_write_b128 v{t0}, v[{L}:{L+3}]
    s_lshl_b32 s{sT1}, s{sWR}, 8
    s_add_u32 s{sT1}, s{sT1}, {AST + 4096}
    v_lshl_add_u32 v{t1}, v{vLane}, 2, s{sT1}
    ds_write_b32 v{t1}, v{L+4}
    s_waitcnt lgkmcnt(0)
    s_barrier
    """)
    stamp(p, 8)
    if 'noe3' not in OPT: p("s_barrier")
    p("s_branch L_b_final")
    V.free = list(snap)
    p.label("L_b_qtype")
    p("s_waitcnt lgkmcnt(0)\n s_barrier")

    stamp(p, 4)
    for x in merge([softmax(nt, [TT[nt], TT[nt] + 6]) for nt in range(3)]): p(x)
    for nt in range(3):
        p(f"v_mov_b32 v{TT[nt]+5}, 0\n v_mov_b32 v{TT[nt]+11}, 0")
    p(f"v_mov_b32 v{TT[2]+12}, 0\n v_mov_b32 v{TT[2]+13}, 0")
    stamp(p, 5)
    for r, n in [(P, 24), (vRow, 1), (vFA, 16)] + [(x, 20) for x in EE] + [(y, 2) for x in SS for y in x]:
        V.release(r, n)
    p("s_waitcnt vmcnt(0) lgkmcnt(0)\n s_barrier")
    stamp(p, 6)
    AF = V.alloc(32, align=4)
    p(f"""
    v_lshlrev_b32 v{t0}, 4, v{vLane}
    v_add_u32 v{t0}, {AST}, v{t0}
    v_lshlrev_b32 v{t1}, 2, v{vLane}
    v_add_u32 v{t1}, {AST+4096}, v{t1}
    """)
    for k in range(4):
        p(f"ds_read_b128 v[{AF+8*k}:{AF+8*k+3}], v{t0} offset:{1024*k}")
        p(f"ds_read_b32 v{AF+8*k+4}, v{t1} offset:{256*k}")
    for k in range(4):
        for z in (5, 6, 7): p(f"v_mov_b32 v{AF+8*k+z}, 0")
    vOa = V.alloc(); vOb = V.alloc()
    ODs = [V.alloc(16, align=4) for _ in range(3)]; ws_ = [V.alloc(8, align=4) for _ in range(3)]
    sEPS = 97
    p(f"""
    s_mov_b32 s{sEPS}, 0x358637bd
    s_mul_i32 s{sT0}, s{sRB}, 12
    s_mul_i32 s{sT1}, s{sWR}, 3
    s_add_u32 s{sT0}, s{sT0}, s{sT1}
    s_mul_i32 s{sT0}, s{sT0}, {O_TILE}
    s_mul_i32 s{sT1}, s{sHP}, 1280
    s_add_u32 s{sT0}, s{sT0}, s{sT1}
    s_add_u32 s{sT0}, s{sT0}, {WS_O}
    v_lshl_add_u32 v{vOa}, v{vLane}, 4, s{sT0}
    v_lshlrev_b32 v{t0}, 4, v{vI}
    v_lshl_add_u32 v{t0}, v{vG}, 3, v{t0}
    s_add_u32 s{sT0}, s{sT0}, 1024
    v_add_u32 v{vOb}, s{sT0}, v{t0}
    v_cmp_gt_u32 vcc, 16, v{vLane}
    s_mov_b32 s{sT2}, {O_TILE}
    s_mov_b32 s{sT3}, {2*O_TILE}
    s_waitcnt lgkmcnt(0)
    """)
    stamp(p, 8)
    streams = []
    for nt in range(3):
        OD = ODs[nt]; w = ws_[nt]
        L = []
        for h in range(2):
            b = TT[nt] + 6*h
            a0_ = AF + 8*h; a1_ = AF + 8*(h + 2)
            o0 = OD + 8*h; o1 = o0 + 4
            L += [f"v_mfma_f32_16x16x32_bf16 v[{o0}:{o0+3}], v[{a0_}:{a0_+3}], v[{b}:{b+3}], 0",
                  f"v_mfma_f32_16x16x32_bf16 v[{o1}:{o1+3}], v[{a1_}:{a1_+3}], v[{b}:{b+3}], 0",
                  f"v_mfma_f32_16x16x32_bf16 v[{o0}:{o0+3}], v[{a0_+4}:{a0_+7}], v[{b+4}:{b+7}], v[{o0}:{o0+3}]",
                  f"v_mfma_f32_16x16x32_bf16 v[{o1}:{o1+3}], v[{a1_+4}:{a1_+7}], v[{b+4}:{b+7}], v[{o1}:{o1+3}]"]
        y = [w + 6, w + 7]
        L += [f"v_mov_b32 v{y[0]}, v{OD+4}", f"v_mov_b32 v{y[1]}, v{OD+12}",
              f"v_permlane16_swap_b32 v{OD+4}, v{y[0]}", f"v_permlane16_swap_b32 v{y[1]}, v{OD+12}",
              f"v_add_f32 v{y[0]}, s{sEPS}, v{y[0]}", f"v_add_f32 v{y[1]}, s{sEPS}, v{y[1]}",
              f"v_rcp_f32 v{y[0]}, v{y[0]}", f"v_rcp_f32 v{y[1]}, v{y[1]}"]
        for h in range(2):
            for r in range(0, 8, 2):
                a = OD + 8*h + r
                L.append(f"v_pk_mul_f32 v[{a}:{a+1}], v[{a}:{a+1}], v[{w+6}:{w+7}] op_sel:[0,{h}] op_sel_hi:[1,{h}]")
        L += [f"v_cvt_pk_bf16_f32 v{w}, v{OD}, v{OD+1}", f"v_cvt_pk_bf16_f32 v{w+1}, v{OD+2}, v{OD+3}",
              f"v_cvt_pk_bf16_f32 v{w+2}, v{OD+8}, v{OD+9}", f"v_cvt_pk_bf16_f32 v{w+3}, v{OD+10}, v{OD+11}",
              f"v_cvt_pk_bf16_f32 v{OD+4}, v{OD+4}, v{OD+5}", f"v_cvt_pk_bf16_f32 v{OD+5}, v{OD+6}, v{OD+7}",
              f"v_cvt_pk_bf16_f32 v{OD+12}, v{OD+12}, v{OD+13}", f"v_cvt_pk_bf16_f32 v{OD+13}, v{OD+14}, v{OD+15}",
              f"v_cndmask_b32 v{w+4}, v{OD+12}, v{OD+4}, vcc", f"v_cndmask_b32 v{w+5}, v{OD+13}, v{OD+5}, vcc"]
        streams.append(L)
    for x in merge(streams): p(x)
    stamp(p, 15)
    so = ["0", f"s{sT2}", f"s{sT3}"]
    for nt in range(3):
        p(f"buffer_store_dwordx4 v[{ws_[nt]}:{ws_[nt]+3}], v{vOa}, s[{SRD_WS}:{SRD_WS+3}], {so[nt]} offen sc1")
    p("s_mov_b32 exec_hi, 0")
    for nt in range(3):
        p(f"buffer_store_dwordx2 v[{ws_[nt]+4}:{ws_[nt]+5}], v{vOb}, s[{SRD_WS}:{SRD_WS+3}], {so[nt]} offen sc1")
    p("s_mov_b32 exec_hi, -1")
    stamp(p, 7)
    if 'noe3' not in OPT: p("s_waitcnt vmcnt(0)\n s_barrier")
    p.label("L_b_final")
    V.free = [i > t3 for i in range(V.limit)]
    sRQ, sKH = 95, 96
    OF = V.alloc(80, align=4)
    vR = V.alloc(); vPl = V.alloc(); mx = V.alloc(); pv = V.alloc()
    p(f"""
    s_cmp_ge_u32 s2, 160
    s_cbranch_scc1 L_b_done
    s_lshr_b32 s{sT0}, s2, 3
    s_cmp_ge_u32 s{sT0}, 10
    s_cselect_b32 s{sT1}, 1, 0
    s_and_b32 s{sT2}, s2, 7
    s_lshl_b32 s{sT2}, s{sT2}, 1
    s_add_u32 s{sRT}, s{sT2}, s{sT1}
    s_mul_i32 s{sT1}, s{sT1}, 10
    s_sub_u32 s{sCG}, s{sT0}, s{sT1}
    s_and_b32 s{sRQ}, s{sW}, 3
    s_lshr_b32 s{sKH}, s{sW}, 2
    s_lshl_b32 s{sT0}, s{sRT}, 3
    s_lshl_b32 s{sT1}, s{sRQ}, 1
    s_add_u32 s{sT0}, s{sT0}, s{sT1}
    s_mul_i32 s{sT0}, s{sT0}, {O_TILE}
    s_mul_i32 s{sT1}, s{sKH}, 10240
    s_add_u32 s{sT0}, s{sT0}, s{sT1}
    s_add_u32 s{sT0}, s{sT0}, {WS_O}
    v_lshl_add_u32 v{vR}, v{vLane}, 4, s{sT0}
    s_mov_b32 s{sCNT}, 0
    """)
    vA = V.alloc(4, align=1)
    p(f"""
    v_lshrrev_b32 v{t2}, 2, v{vI}
    v_bfe_u32 v{t3}, v{t2}, 1, 1
    v_and_b32 v{t0}, 1, v{vG}
    v_lshl_add_u32 v{t3}, v{t0}, 1, v{t3}        ; psi
    v_bfe_u32 v{t0}, v{vI}, 1, 1
    v_lshlrev_b32 v{t0}, 4, v{t0}
    v_and_b32 v{t1}, 1, v{vI}
    v_lshl_add_u32 v{t0}, v{t1}, 3, v{t0}
    v_lshl_add_u32 v{t2}, v{vG}, 3, v{t2}
    v_lshl_add_u32 v{t0}, v{t2}, 7, v{t0}
    s_mul_i32 s{sT1}, s{sKH}, {320*128}
    v_add_u32 v{t0}, s{sT1}, v{t0}
    """)
    for mt in range(4):
        p(f"v_xor_b32 v{t1}, {mt}, v{t3}\n v_lshl_add_u32 v{vA+mt}, v{t1}, 5, v{t0}")
    FAc = V.alloc(32, align=4); WA = [V.alloc(16, align=4), V.alloc(16, align=4)]
    def wreads(ks):
        b = WA[ks & 1]
        return [f"ds_read_b64_tr_b16 v[{b+4*mt+2*h}:{b+4*mt+2*h+1}], v{vA+mt} offset:{WO_IMG + 4096*ks + 512*h}" for mt in range(4) for h in range(2)]
    def ld_o(ks):
        for nt in range(2):
            p(f"s_mov_b32 s{sT1}, {O_TILE*nt + 4096*(ks >> 2)}")
            p(f"buffer_load_dwordx4 v[{OF+8*ks+4*nt}:{OF+8*ks+4*nt+3}], v{vR}, s[{SRD_WS}:{SRD_WS+3}], s{sT1} offen offset:{1024*(ks & 3)} sc1")
    for ks in range(10): ld_o(ks)
    for x in wreads(0): p(x)
    for ks in range(10):
        nxt = wreads(ks + 1) if ks < 9 else []
        p(f"s_waitcnt vmcnt({2*(9-ks)})")
        p.label(f"L_b_chk2_{ks}")
        o = OF + 8*ks
        p(f"""
        v_max3_u32 v{mx}, v{o}, v{o+1}, v{o+2}
        v_max3_u32 v{pv}, v{o+3}, v{o+4}, v{o+5}
        v_max3_u32 v{mx}, v{mx}, v{o+6}, v{o+7}
        v_max_u32 v{mx}, v{mx}, v{pv}
        v_cmp_eq_u32 vcc, -1, v{mx}
        s_cbranch_vccnz L_b_rty2_{ks}
        """)
        p.label(f"L_b_ok2_{ks}")
        if ks == 0: stamp(p, 9)
        p("s_waitcnt lgkmcnt(0)")
        k = 0
        for mt in range(4):
            for nt in range(2):
                a = FAc + 16*nt + 4*mt
                c = "0" if ks == 0 else f"v[{a}:{a+3}]"
                p(f"v_mfma_f32_16x16x32_bf16 v[{a}:{a+3}], v[{WA[ks&1]+4*mt}:{WA[ks&1]+4*mt+3}], v[{OF+8*ks+4*nt}:{OF+8*ks+4*nt+3}], {c}")
                if k < 4 and nxt:
                    p(nxt[2*k]); p(nxt[2*k+1])
                k += 1
    p("s_branch L_b_ok2")
    sRET = 90
    for ks in range(10):
        p.label(f"L_b_rty2_{ks}")
        p(f"s_add_u32 s{sCNT}, s{sCNT}, 1\n s_cmp_gt_u32 s{sCNT}, {SPIN_MAX}\n s_cbranch_scc1 L_b_ok2_{ks}")
        ld_o(ks)
        o = OF + 8*ks
        p(f"""
        s_waitcnt vmcnt(0)
        v_max3_u32 v{mx}, v{o}, v{o+1}, v{o+2}
        v_max3_u32 v{pv}, v{o+3}, v{o+4}, v{o+5}
        v_max3_u32 v{mx}, v{mx}, v{o+6}, v{o+7}
        v_max_u32 v{mx}, v{mx}, v{pv}
        v_cmp_eq_u32 vcc, -1, v{mx}
        s_cbranch_vccnz L_b_rty2_{ks}
        """)
        if ks < 9:
            p(f"s_mov_b32 s{sRET}, {ks}\n s_branch L_b_ref2_{ks+1}")
        else:
            p(f"s_branch L_b_ok2_{ks}")
    for ks in range(1, 10):
        p.label(f"L_b_ref2_{ks}")
        ld_o(ks)
    for ks in range(9):
        p(f"s_cmp_eq_u32 s{sRET}, {ks}\n s_cbranch_scc1 L_b_ok2_{ks}")
    p("s_branch L_b_ok2_8")
    p.label("L_b_ok2")
    stamp(p, 10)
    p(f"""
    s_lshl_b32 s{sT0}, s{sW}, 12
    s_add_u32 s{sT0}, s{sT0}, {RED}
    v_lshl_add_u32 v{t0}, v{vLane}, 4, s{sT0}
    s_xor_b32 s{sT1}, s{sW}, 4
    s_lshl_b32 s{sT1}, s{sT1}, 12
    s_add_u32 s{sT1}, s{sT1}, {RED}
    v_lshl_add_u32 v{t1}, v{vLane}, 4, s{sT1}
    s_lshl_b32 s{sT0}, s{sRT}, 7
    s_lshl_b32 s{sT1}, s{sRQ}, 5
    s_add_u32 s{sT0}, s{sT0}, s{sT1}
    s_lshl_b32 s{sT1}, s{sKH}, 4
    s_add_u32 s{sT0}, s{sT0}, s{sT1}
    v_add_u32 v{t2}, s{sT0}, v{vI}
    v_mul_u32_u24 v{t2}, 2560, v{t2}
    v_and_b32 v{t3}, 1, v{vG}
    v_lshl_add_u32 v{t2}, v{t3}, 5, v{t2}
    v_lshrrev_b32 v{t3}, 1, v{vG}
    v_lshl_add_u32 v{t2}, v{t3}, 4, v{t2}
    s_lshl_b32 s{sT0}, s{sCG}, 7
    s_add_u32 s{sT0}, s{sT0}, 1280
    v_add_u32 v{t2}, s{sT0}, v{t2}
    s_cmp_eq_u32 s{sKH}, 0
    s_cbranch_scc1 L_b_red0
    """)
    def finish(keep):
        p("s_waitcnt lgkmcnt(0)\n s_barrier")
        for k in range(4):
            p(f"ds_read_b128 v[{OF+4*k}:{OF+4*k+3}], v{t1} offset:{1024*k}")
        for a2 in range(2):
            for mt in (2*a2, 2*a2 + 1):
                a = keep + 4*mt; b = OF + 4*mt
                p(f"s_waitcnt lgkmcnt({3-mt})")
                p(f"v_pk_add_f32 v[{a}:{a+1}], v[{a}:{a+1}], v[{b}:{b+1}]")
                p(f"v_pk_add_f32 v[{a+2}:{a+3}], v[{a+2}:{a+3}], v[{b+2}:{b+3}]")
            A = keep + 8*a2; B = A + 4; d = OF + 16 + 4*a2
            p(f"""
            v_cvt_pk_bf16_f32 v{d}, v{A}, v{A+1}
            v_cvt_pk_bf16_f32 v{d+1}, v{A+2}, v{A+3}
            v_cvt_pk_bf16_f32 v{d+2}, v{B}, v{B+1}
            v_cvt_pk_bf16_f32 v{d+3}, v{B+2}, v{B+3}
            v_permlane16_swap_b32 v{d}, v{d+2}
            v_permlane16_swap_b32 v{d+1}, v{d+3}
            buffer_store_dwordx4 v[{d}:{d+3}], v{t2}, s[{SRD_O}:{SRD_O+3}], 0 offen offset:{64*a2}
            """)
    for k in range(4):
        p(f"ds_write_b128 v{t0}, v[{FAc+4*k}:{FAc+4*k+3}] offset:{1024*k}")
    finish(FAc + 16)
    p("s_branch L_b_done")
    p.label("L_b_red0")
    for k in range(4):
        p(f"ds_write_b128 v{t0}, v[{FAc+16+4*k}:{FAc+16+4*k+3}] offset:{1024*k}")
    finish(FAc)
    p.label("L_b_done")
    dbgmax(p, 9, t2, t3, sW)
    stamp(p, 11)
    if common.DIAG:
        p('s_waitcnt vmcnt(0)')
        stamp(p, 12)
        stamps_flush(p, t0, t1)
    return V
```

```python
import re

TRANS = ("v_exp_f32", "v_log_f32", "v_rcp_f32", "v_rsq_f32", "v_sqrt_f32", "v_sin_f32", "v_cos_f32", "v_rcp_iflag_f32")

def _regs(tok):
    tok = tok.strip()
    tok = re.sub(r"^(neg|abs)\((.*)\)$", r"\2", tok)
    tok = tok.lstrip("-").strip("|")
    m = re.fullmatch(r"([vsa])(\d+)", tok)
    if m:
        return {(m.group(1), int(m.group(2)))}
    m = re.fullmatch(r"([vsa])\[(\d+):(\d+)\]", tok)
    if m:
        return {(m.group(1), i) for i in range(int(m.group(2)), int(m.group(3)) + 1)}
    if tok == "vcc":
        return {("s", 106), ("s", 107)}
    if tok == "vcc_lo":
        return {("s", 106)}
    if tok == "vcc_hi":
        return {("s", 107)}
    if tok == "exec":
        return {("s", 126), ("s", 127)}
    if tok == "exec_lo":
        return {("s", 126)}
    if tok == "exec_hi":
        return {("s", 127)}
    if tok == "m0":
        return {("s", 124)}
    return set()

class Ins:
    __slots__ = ("text", "mn", "ops", "cls", "vw", "vr", "sw", "sr", "passes", "A", "B", "C", "D", "dpp", "lds", "storedata", "ws")
    def __init__(self, text):
        self.text = text
        t = text.split(";")[0].split("//")[0].strip()
        self.mn = t.split()[0] if t else ""
        if self.mn.startswith("v_pk_") and self.mn.endswith("_f32"):
            m_ = re.search(r"op_sel:\[([0-9,]*)\]", t)
            assert not (m_ and "1" in m_.group(1)), "low result from high source register is not allowed: " + t
        rest = t[len(self.mn):].strip()
        ops = []
        if rest:
            parts = [p.strip() for p in re.split(r",(?![^\[]*\])", rest)]
            last = parts[-1].split()
            if last:
                parts[-1] = last[0]
                mods = last[1:]
            else:
                mods = []
            ops = parts
        else:
            mods = []
        self.ops = ops
        mn = self.mn
        self.vw = set(); self.vr = set(); self.sw = set(); self.sr = set()
        self.passes = 0; self.A = self.B = self.C = self.D = set()
        self.dpp = ("_dpp" in mn) or any(m.startswith(("quad_perm", "row_", "wave_")) for m in mods)
        self.lds = "lds" in mods
        self.storedata = set()
        self.ws = 1
        R = [_regs(o) for o in ops]
        def split(regsets, w=False):
            for rs in regsets:
                for r in rs:
                    if r[0] in "va":
                        (self.vw if w else self.vr).add(r)
                    else:
                        (self.sw if w else self.sr).add(r)
        if mn.startswith("v_mfma"):
            self.cls = "mfma"
            self.passes = 8 if "32x32x16" in mn else 4 if "16x16x32" in mn else None
            assert self.passes, mn
            self.D, self.A, self.B = R[0], R[1], R[2]
            self.C = R[3]
            split([R[0]], True); split(R[1:])
        elif mn.startswith("v_"):
            self.cls = "trans" if mn.replace("_e32", "").replace("_e64", "") in TRANS else "valu"
            if mn.startswith("v_permlane") and "swap" in mn:
                split(R[:2], True); split(R[:2])
            elif mn.startswith(("v_add_co", "v_sub_co", "v_addc_co", "v_subb_co", "v_subrev_co")):
                split(R[:2], True); split(R[2:])
            elif mn.startswith("v_cmpx"):
                split(R[:1], True); self.sw |= {("s", 126), ("s", 127)}; split(R[1:])
            else:
                split(R[:1], True); split(R[1:])
                if mn.startswith(("v_fmac", "v_pk_fmac", "v_dot2c", "v_mac")) or "d16" in mn:
                    split(R[:1])
                if self.dpp:
                    split(R[:1])
        elif mn.startswith("ds_"):
            self.cls = "ds"
            if mn.startswith(("ds_read", "ds_bpermute", "ds_permute", "ds_swizzle")):
                split(R[:1], True); split(R[1:])
                if "d16" in mn: split(R[:1])
            else:
                split(R)
        elif mn.startswith(("buffer_", "global_", "flat_")):
            self.cls = "vmem"
            if mn in ("buffer_wbl2", "buffer_inv"):
                pass
            elif "load" in mn:
                if self.lds or "_lds_" in mn:
                    split(R)
                    self.lds = True
                    self.sr.add(("s", 124))
                else:
                    split(R[:1], True); split(R[1:])
                    if "d16" in mn: split(R[:1])
            elif "store" in mn:
                split(R)
                data = R[0] if mn.startswith("buffer_") else R[1]
                if "x3" in mn or "x4" in mn:
                    self.storedata = set(data)
            elif "atomic" in mn:
                split(R)
                if "sc0" in mods:
                    split(R[:1], True)
            else:
                raise ValueError(text)
        elif mn.startswith("s_"):
            self.cls = "salu"
            if mn == "s_nop":
                self.ws = int(ops[0], 0) + 1
            elif mn.startswith(("s_bitset",)):
                split(R[:1], True); split(R)
            elif mn.startswith(("s_cmp", "s_bitcmp", "s_waitcnt", "s_barrier", "s_branch", "s_cbranch", "s_setprio", "s_sleep", "s_endpgm", "s_setreg")):
                split(R)
            elif mn.startswith(("s_load", "s_buffer_load", "s_memtime", "s_memrealtime")):
                self.cls = "smem"
                split(R[:1], True); split(R[1:])
            else:
                split(R[:1], True); split(R[1:])
                if "saveexec" in mn:
                    self.sw |= {("s", 126), ("s", 127)}
        else:
            raise ValueError("unknown instr: " + text)

def need(p, c):
    n = 0
    pv = p.cls in ("valu", "trans")
    cv = c.cls in ("valu", "trans")
    if pv:
        w = p.vw
        if c.cls == "mfma" and (w & c.vr):
            n = max(n, 2)
        if cv and c.mn.startswith("v_permlane") and (w & c.vr):
            n = max(n, 2)
        if cv and c.dpp and (w & c.vr):
            n = max(n, 2)
        if cv and c.mn.startswith(("v_readlane", "v_readfirstlane")) and (w & c.vr):
            n = max(n, 1)
        if p.cls == "trans" and (w & c.vr) and c.cls != "trans":
            n = max(n, 1)
        sw = p.sw
        if sw:
            if cv and (sw & c.sr):
                n = max(n, 2)
                if c.mn.startswith(("v_readlane", "v_writelane")):
                    n = max(n, 4)
            if c.cls == "vmem" and (sw & c.sr):
                n = max(n, 5)
            if c.cls in ("salu", "smem") and (sw & c.sr):
                n = max(n, 4)
            if (("s", 126) in sw):
                if c.cls == "mfma": n = max(n, 4)
                if c.dpp: n = max(n, 5)
                if c.mn.startswith("v_permlane"): n = max(n, 4)
    if p.mn.startswith("v_dot") and (p.vw & (c.vr | c.vw)):
        same_c = c.mn == p.mn and len(c.ops) == 4 and (p.vw & _regs(c.ops[3])) and not (p.vw & (_regs(c.ops[1]) | _regs(c.ops[2])))
        if not same_c: n = max(n, 3)
    if p.cls == "mfma":
        P = p.passes
        t_raw = {4: 8, 8: 12}[P]
        t_ovl = {4: 6, 8: 10}[P]
        t_war = {4: 3, 8: 7}[P]
        if c.cls == "mfma":
            if p.D & (c.A | c.B):
                n = max(n, t_raw)
            if p.D & c.C:
                if not (p.D == c.C and p.passes == c.passes):
                    n = max(n, t_ovl)
            if (p.D & c.D) and not (p.D & c.C):
                n = max(n, t_raw)
        else:
            if p.D & (c.vr | c.vw):
                n = max(n, t_raw)
            if cv and (p.C & c.vw):
                n = max(n, t_war)
            if c.cls in ("ds", "vmem") and (p.C & c.vw):
                n = max(n, t_war)
    if p.cls == "salu" and (("s", 124) in p.sw) and c.cls == "vmem" and c.lds:
        n = max(n, 1)
    if p.storedata and (p.storedata & c.vw):
        n = max(n, 2 if cv else 1)
    return n

WINDOW = 24

class Prog:
    def __init__(self):
        self.items = []
    def __call__(self, s):
        for l in s.split("\n"):
            t = l.strip()
            if not t:
                continue
            if t.startswith(";"):
                self.items.append(("c", t)); continue
            if re.fullmatch(r"[\w.$]+:", t):
                self.items.append(("l", t[:-1])); continue
            if t.startswith("."):
                self.items.append(("c", t)); continue
            self.items.append(("i", Ins(t)))
    def label(self, name):
        self.items.append(("l", name))
    def finalize(self, verbose=False):
        out = []
        hist = []
        nnop = 0
        for kind, x in self.items:
            if kind != "i":
                out.append((kind, x)); continue
            req = 0
            dist = 0
            for p in reversed(hist[-WINDOW:]):
                r = need(p, x) - dist
                if r > req: req = r
                dist += p.ws
                if dist > 20: break
            if req > 0:
                nop = Ins(f"s_nop {req-1}")
                out.append(("i", nop)); hist.append(nop); nnop += req
            out.append(("i", x)); hist.append(x)
            if x.mn in ("s_branch", "s_endpgm"):
                hist = []
        self.final = out
        self._check_seams()
        self._check_pending()
        if verbose: print("inserted wait states:", nnop)
        lines = []
        for kind, x in out:
            if kind == "i": lines.append("    " + x.text)
            elif kind == "l": lines.append(x + ":")
            else: lines.append(x)
        return "\n".join(lines) + "\n"
    def _check_pending(self):
        vm, lg = [], []
        warn = 0
        for kind, x in self.final:
            if kind != "i": continue
            if x.mn in ("s_endpgm", "s_branch"):
                vm, lg = [], []
                continue
            if x.mn == "s_waitcnt":
                t = x.text
                m = re.search(r"vmcnt\((\d+)\)", t)
                if m:
                    n = int(m.group(1))
                    while len(vm) > n: vm.pop(0)
                m = re.search(r"lgkmcnt\((\d+)\)", t)
                if m:
                    n = int(m.group(1))
                    while len(lg) > n: lg.pop(0)
                continue
            touch = {r for r in (x.vr | x.vw) if r[0] == "v"}
            for q, nm in ((vm, "vm"), (lg, "lgkm")):
                for dst, txt in q:
                    hit = dst & touch
                    if hit and not (x.cls in ("vmem", "ds") and hit <= x.vw and not (hit & x.vr)):
                        if ("v", 167) in hit: continue
                        warn += 1
                        if warn < 20: print(f"PENDING[{nm}] {x.text.strip()}   <- outstanding: {txt.strip()}")
            if x.cls == "vmem":
                vm.append((set(x.vw), x.text))
            elif x.cls == "ds":
                lg.append((set(x.vw), x.text))
            elif x.cls == "smem":
                lg.append((set(), x.text))
        if warn: print("pending-load warnings:", warn)
    def _check_seams(self):
        out = self.final
        pos = {x: i for i, (k, x) in enumerate(out) if k == "l"}
        for i, (k, x) in enumerate(out):
            if k == "i" and x.mn.startswith(("s_branch", "s_cbranch")):
                tgt = x.ops[0]
                if tgt not in pos:
                    raise ValueError("unknown label " + tgt)
                tail = [y for kk, y in out[max(0, i - 60):i + 1] if kk == "i"][-WINDOW:]
                head = []
                for kk, y in out[pos[tgt]:pos[tgt] + 60]:
                    if kk == "i":
                        head.append(y)
                        if y.mn in ("s_branch", "s_endpgm"): break
                head = head[:WINDOW]
                seq = list(tail)
                for c in head:
                    dist = 0
                    for p in reversed(seq):
                        if need(p, c) > dist:
                            raise ValueError(f"hazard across branch '{x.text}': {p.text}  ->  {c.text} needs {need(p,c)} has {dist}")
                        dist += p.ws
                        if dist > 20: break
                    seq.append(c)

class VAlloc:
    def __init__(self, limit=256, start=1):
        self.free = [True] * limit
        for i in range(start): self.free[i] = False
        self.limit = limit
        self.high = start
        self.names = {}
    def alloc(self, n=1, align=None, name=None):
        if align is None:
            align = 2 if n >= 2 else 1
        i = 0
        while i + n <= self.limit:
            if i % align == 0 and all(self.free[i:i + n]):
                for j in range(i, i + n): self.free[j] = False
                self.high = max(self.high, i + n)
                if name: self.names[name] = (i, n)
                return i
            i += 1
        raise RuntimeError(f"out of registers allocating {n} ({name})")
    def release(self, base, n=1):
        for j in range(base, base + n):
            assert not self.free[j], (base, n)
            self.free[j] = True
    def used(self):
        return sum(1 for f in self.free if not f)

def vr(b, n=1):
    return f"v{b}" if n == 1 else f"v[{b}:{b+n-1}]"
def sr(b, n=1):
    return f"s{b}" if n == 1 else f"s[{b}:{b+n-1}]"
```

```python
from common import *
import common

SLOT = 40960
WOFF = 24576
WO_IMG = 0
PHI = 81920
RS = 296
AST = 139264
RED = 81920
WS_PART = 65536
PART_STRIDE = 5120
WS_O = 1 << 20
O_TILE = 20480
WS_SIZE = 16 << 20
SPIN_MAX = 1 << 14
DBG_CNT = 4

def merge(streams):
    out = []
    n = max(len(s) for s in streams)
    for j in range(n):
        for s in streams:
            if j < len(s): out.append(s[j])
    return out

def gen_part_b(p):
    V = VAlloc(VGPRS - 1, start=1)
    sJ, sI, sT, sRB, sHP, sW, sWR, sTY = 32, 33, 34, 35, 36, 37, 38, 39
    SRD_X, SRD_W, SRD_WS, SRD_WO, SRD_O = 40, 44, 48, 52, 56
    sT0, sT1, sT2, sT3 = 60, 61, 62, 63
    sKC = 81; sS = 82; sSLOTD = 83; sXO = 84; sWO = 85; sM0 = 86; sROW0 = 87
    sL = 88
    sRT, sCG, sDSLOT = 92, 93, 94
    sNEG = 100; sCNT = 101
    OPT = common.OPT
    p(f"""
    s_and_b32 s{sJ}, s2, 7
    s_lshr_b32 s{sI}, s2, 3
    s_lshr_b32 s{sT0}, s{sJ}, 2
    s_mul_i32 s{sT0}, s{sT0}, 22
    s_add_u32 s{sT}, s{sT0}, s{sI}
    s_lshr_b32 s{sRB}, s{sT}, 2
    s_and_b32 s{sT0}, s{sT}, 3
    s_and_b32 s{sT1}, s{sJ}, 3
    s_lshl_b32 s{sT1}, s{sT1}, 2
    s_add_u32 s{sHP}, s{sT1}, s{sT0}
    s_mul_i32 s{sROW0}, s{sRB}, 192
    s_mul_i32 s{sT1}, s{sT0}, 3
    s_lshl_b32 s{sT2}, s{sRB}, 1
    s_add_u32 s{sKC}, s{sT1}, s{sT2}
    s_mul_i32 s{sT1}, s{sKC}, 205
    s_lshr_b32 s{sT1}, s{sT1}, 11
    s_mul_i32 s{sT1}, s{sT1}, 10
    s_sub_u32 s{sKC}, s{sKC}, s{sT1}
    """)
    if 'rot0' in OPT: p(f"s_mov_b32 s{sKC}, 0")
    if 'rot2' in OPT: p(f"s_and_b32 s{sKC}, s{sT}, 1\n s_mul_i32 s{sKC}, s{sKC}, 5")
    vLane = V.alloc(); vI = V.alloc(); vG = V.alloc(); t0 = V.alloc(); t1 = V.alloc(); t2 = V.alloc(); t3 = V.alloc()
    p(f"""
    v_lshrrev_b32 v{t0}, 6, v0
    v_and_b32 v{vLane}, 63, v0
    v_readfirstlane_b32 s{sW}, v{t0}
    v_and_b32 v{vI}, 15, v{vLane}
    v_lshrrev_b32 v{vG}, 4, v{vLane}
    s_and_b32 s{sWR}, s{sW}, 3
    s_lshr_b32 s{sTY}, s{sW}, 2
    s_cmp_eq_u32 s{sTY}, 2
    s_cbranch_scc0 L_b_compute
    """)
    mark = list(V.free)
    vX = [V.alloc(), V.alloc()]; vW = [V.alloc(), V.alloc()]
    p(f"""
    s_mul_i32 s{sT0}, s{sWR}, 48
    s_add_u32 s{sT0}, s{sT0}, s{sROW0}
    v_lshrrev_b32 v{t0}, 3, v{vLane}
    v_add_u32 v{t0}, s{sT0}, v{t0}
    v_mul_u32_u24 v{t0}, 1280, v{t0}
    v_and_b32 v{t1}, 7, v{vLane}
    v_xor_b32 v{t2}, v{t1}, v{vG}
    v_lshl_add_u32 v{vX[0]}, v{t2}, 4, v{t0}
    v_xor_b32 v{t2}, 4, v{t2}
    v_lshl_add_u32 v{vX[1]}, v{t2}, 4, v{t0}
    """)
    for hv in range(2):
        p(f"""
        v_lshlrev_b32 v{t0}, 1, v{vG}
        v_add_u32 v{t0}, {8*hv}, v{t0}
        v_xor_b32 v{t0}, v{t0}, v{vI}
        v_min_u32 v{t0}, 14, v{t0}
        ; c<5: 1280+16c ; c<8: 2560+16(c-5) ; c<13: 16(c-8) ; else 2560+16(c-10)
        v_lshlrev_b32 v{t1}, 4, v{t0}
        v_add_u32 v{t2}, {2560-160}, v{t1}
        v_subrev_u32 v{t3}, 128, v{t1}
        v_cmp_gt_u32 vcc, 13, v{t0}
        v_cndmask_b32 v{t2}, v{t2}, v{t3}, vcc
        v_add_u32 v{t3}, {2560-80}, v{t1}
        v_cmp_gt_u32 vcc, 8, v{t0}
        v_cndmask_b32 v{t2}, v{t2}, v{t3}, vcc
        v_add_u32 v{t3}, 1280, v{t1}
        v_cmp_gt_u32 vcc, 5, v{t0}
        v_cndmask_b32 v{t2}, v{t2}, v{t3}, vcc
        s_mul_i32 s{sT0}, s{sHP}, 80
        s_mul_i32 s{sT1}, s{sWR}, {16*3840}
        s_add_u32 s{sT0}, s{sT0}, s{sT1}
        v_mul_u32_u24 v{t0}, 3840, v{vG}
        v_add3_u32 v{vW[hv]}, v{t0}, v{t2}, s{sT0}
        """)
    sMX, sMW = 90, 91
    p(f"""
    s_mul_i32 s{sMX}, s{sWR}, 6144
    s_lshl_b32 s{sMW}, s{sWR}, 12
    s_add_u32 s{sMW}, s{sMW}, {WOFF}
    s_mov_b32 s{sDSLOT}, 0
    s_waitcnt lgkmcnt(0)
    """)
    srd(p, SRD_X, S_X, 2048 * 1280)
    srd(p, SRD_W, S_WQKV, 640 * 3840)
    def dma_stage():
        p(f"s_lshl_b32 s{sXO}, s{sKC}, 7\n s_mul_i32 s{sWO}, s{sKC}, {64*3840}\n s_add_u32 s{sM0}, s{sMX}, s{sDSLOT}\n s_add_u32 s{sT2}, s{sMW}, s{sDSLOT}")
        order = [("x", 0), ("w", 0), ("x", 1), ("x", 2), ("w", 1), ("x", 3), ("w", 2), ("x", 4), ("x", 5), ("w", 3)]
        for kind, e in order:
            if 'nodma' in OPT: continue
            if kind == "x":
                p(f"s_add_u32 s{sT0}, s{sXO}, {8*e*1280}\n s_add_u32 m0, s{sM0}, {1024*e}")
                p(f"buffer_load_dwordx4 v{vX[e & 1]}, s[{SRD_X}:{SRD_X+3}], s{sT0} offen lds")
            else:
                p(f"s_add_u32 s{sT0}, s{sWO}, {4*e*3840}\n s_add_u32 m0, s{sT2}, {1024*e}")
                p(f"buffer_load_dwordx4 v{vW[e >> 1]}, s[{SRD_W}:{SRD_W+3}], s{sT0} offen lds")
        p(f"""
        s_add_u32 s{sKC}, s{sKC}, 1
        s_cmp_eq_u32 s{sKC}, 10
        s_cselect_b32 s{sKC}, 0, s{sKC}
        s_add_u32 s{sDSLOT}, s{sDSLOT}, {SLOT}
        s_cmp_eq_u32 s{sDSLOT}, {4*SLOT}
        s_cselect_b32 s{sDSLOT}, 0, s{sDSLOT}
        """)
    LA = 2 if ('la2' in OPT or 'st2' in OPT) else 3
    if 'st2' in OPT:
        dma_stage()
        p("s_barrier")
        stamp(p, 1)
        srd(p, SRD_WS, S_WS, WS_SIZE)
        srd(p, SRD_WO, S_WO, 640 * 1280)
        p("s_waitcnt vmcnt(0)")
        stamp(p, 2)
        p("s_barrier")
        stamp(p, 3)
        dma_stage()
    else:
        p(f"s_mov_b32 s{sS}, 0")
        p.label("L_p_pro")
        dma_stage()
        p(f"s_add_u32 s{sS}, s{sS}, 1\n s_cmp_lt_u32 s{sS}, {LA}\n s_cbranch_scc1 L_p_pro")
        stamp(p, 1)
        srd(p, SRD_WS, S_WS, WS_SIZE)
        srd(p, SRD_WO, S_WO, 640 * 1280)
        p(f"s_waitcnt vmcnt({10*(LA-1)})")
        stamp(p, 2)
        p("s_barrier")
        stamp(p, 3)
    assert LA == 3
    on4 = V.alloc(4, align=4); vC0 = V.alloc(); vC1 = V.alloc()
    def clear_part():
        p(f"""
        v_mov_b32 v{on4}, -1
        v_mov_b32 v{on4+1}, -1
        v_mov_b32 v{on4+2}, -1
        v_mov_b32 v{on4+3}, -1
        s_lshl_b32 s{sT0}, s{sRB}, 4
        s_add_u32 s{sT0}, s{sT0}, s{sHP}
        s_mul_i32 s{sT0}, s{sT0}, {PART_STRIDE}
        s_mul_i32 s{sT1}, s{sWR}, 1280
        s_add_u32 s{sT0}, s{sT0}, s{sT1}
        s_add_u32 s{sT0}, s{sT0}, {WS_PART}
        v_lshl_add_u32 v{vC0}, v{vLane}, 4, s{sT0}
        s_add_u32 s{sT0}, s{sT0}, 1024
        v_lshl_add_u32 v{vC1}, v{vLane}, 2, s{sT0}
        buffer_store_dwordx4 v[{on4}:{on4+3}], v{vC0}, s[{SRD_WS}:{SRD_WS+3}], 0 offen sc1
        buffer_store_dword v{on4}, v{vC1}, s[{SRD_WS}:{SRD_WS+3}], 0 offen sc1
        """)
    def clear_o():
        p(f"""
        s_mul_i32 s{sT0}, s{sRB}, 12
        s_mul_i32 s{sT1}, s{sWR}, 3
        s_add_u32 s{sT0}, s{sT0}, s{sT1}
        s_mul_i32 s{sT0}, s{sT0}, {O_TILE}
        s_mul_i32 s{sT1}, s{sHP}, 1280
        s_add_u32 s{sT0}, s{sT0}, s{sT1}
        s_add_u32 s{sT0}, s{sT0}, {WS_O}
        v_lshl_add_u32 v{vC0}, v{vLane}, 4, s{sT0}
        s_add_u32 s{sT0}, s{sT0}, 1024
        v_lshl_add_u32 v{vC1}, v{vLane}, 2, s{sT0}
        """)
        for nt in range(3):
            p(f"s_mov_b32 s{sT1}, {O_TILE*nt}")
            p(f"buffer_store_dwordx4 v[{on4}:{on4+3}], v{vC0}, s[{SRD_WS}:{SRD_WS+3}], s{sT1} offen sc1")
            p(f"buffer_store_dword v{on4}, v{vC1}, s[{SRD_WS}:{SRD_WS+3}], s{sT1} offen sc1")
    def count(word, name):
        p(f"""
        s_cmp_lg_u32 s{sWR}, 0
        s_cbranch_scc1 L_p_nocnt{name}
        v_mov_b32 v{t0}, {word}
        v_mov_b32 v{t1}, 1
        s_mov_b32 exec_lo, 1
        s_mov_b32 exec_hi, 0
        global_atomic_add v{t0}, v{t1}, s[{S_DBG}:{S_DBG+1}] sc1
        s_mov_b64 exec, -1
        """)
        p.label(f"L_p_nocnt{name}")
    def check(word, name):
        p(f"""
        s_cmp_lg_u32 s{sWR}, 0
        s_cbranch_scc1 L_p_clr_ok{name}
        s_mov_b32 s{sCNT}, 0
        s_mov_b32 exec_lo, 1
        s_mov_b32 exec_hi, 0
        v_mov_b32 v{t0}, {word}
        """)
        p.label(f"L_p_clr{name}")
        p(f"""
        global_load_dword v{t1}, v{t0}, s[{S_DBG}:{S_DBG+1}] sc1
        s_waitcnt vmcnt(0)
        v_readfirstlane_b32 s{sT0}, v{t1}
        s_cmp_ge_u32 s{sT0}, {N_B}
        s_cbranch_scc1 L_p_clr_ok{name}
        s_add_u32 s{sCNT}, s{sCNT}, 1
        s_cmp_gt_u32 s{sCNT}, {1 << 12}
        s_cbranch_scc1 L_p_clr_ok{name}
        s_sleep 16
        s_branch L_p_clr{name}
        """)
        p.label(f"L_p_clr_ok{name}")
        p("s_mov_b64 exec, -1")
    def wo_prefetch():
        p(f"""
        s_lshr_b32 s{sT0}, s2, 3
        s_cmp_ge_u32 s{sT0}, 20
        s_cbranch_scc1 L_p_nopf
        s_mul_i32 s{sT0}, s{sT0}, 320
        s_mul_i32 s{sT1}, s{sWR}, 80
        s_add_u32 s{sT0}, s{sT0}, s{sT1}
        v_add_u32 v{t0}, s{sT0}, v{vLane}
        v_lshlrev_b32 v{t0}, 7, v{t0}
        buffer_load_dword v{VGPRS-1}, v{t0}, s[{SRD_WO}:{SRD_WO+3}], 0 offen
        s_mov_b32 exec_lo, 0xffff
        s_mov_b32 exec_hi, 0
        v_add_u32 v{t0}, {64*128}, v{t0}
        buffer_load_dword v{VGPRS-1}, v{t0}, s[{SRD_WO}:{SRD_WO+3}], 0 offen
        s_mov_b64 exec, -1
        """)
        p.label("L_p_nopf")
    clear_part(); clear_o()
    for st_ in range(3, 10):
        dma_stage()
        if 'pdiag' in OPT: stamp(p, 4 + (st_ - 3))
        p(f"s_waitcnt vmcnt({28 if st_ in (3, 4) else 20})")
        p("s_barrier")
        if st_ == 5: count(DBG_CNT, "p")
    p("s_waitcnt vmcnt(10)\n s_barrier")
    p("s_waitcnt vmcnt(0)\n s_barrier")
    wo_prefetch()
    check(DBG_CNT, "p")
    p(f"""
    s_lshr_b32 s{sT0}, s2, 3               ; i
    s_cmp_ge_u32 s{sT0}, 10
    s_cselect_b32 s{sT1}, 1, 0
    s_mul_i32 s{sT1}, s{sT1}, 10
    s_sub_u32 s{sCG}, s{sT0}, s{sT1}
    ; LDS row k' = 8 z + e holds wo row 40 (z/5) + 4 (z%5) + 20 (e>>2) + (e&3);  z = 20 pw + i'
    v_lshrrev_b32 v{t0}, 3, v{vLane}            ; e
    v_bfe_u32 v{t1}, v{t0}, 1, 1
    v_lshlrev_b32 v{t1}, 1, v{t1}
    v_and_b32 v{t2}, 7, v{vLane}
    v_xor_b32 v{t1}, v{t1}, v{t2}
    v_xor_b32 v{t2}, 4, v{t1}
    v_lshrrev_b32 v{t3}, 2, v{t0}
    v_mul_u32_u24 v{t3}, 20, v{t3}
    v_and_b32 v{t0}, 3, v{t0}
    v_add_u32 v{t0}, v{t0}, v{t3}
    s_mul_i32 s{sT0}, s{sWR}, 160
    v_add_u32 v{t0}, s{sT0}, v{t0}
    v_mul_u32_u24 v{t0}, 1280, v{t0}
    s_lshl_b32 s{sT0}, s{sCG}, 7
    v_add_u32 v{t0}, s{sT0}, v{t0}
    v_lshl_add_u32 v{t3}, v{t2}, 4, v{t0}
    v_lshl_add_u32 v{t0}, v{t1}, 4, v{t0}
    s_mul_i32 s{sM0}, s{sWR}, 20480
    s_barrier
    """)
    vK0 = V.alloc(); vK1 = V.alloc()
    p(f"v_mov_b32 v{vK0}, v{t0}\n v_mov_b32 v{vK1}, v{t3}")
    p("s_cmp_ge_u32 s2, 160\n s_cbranch_scc1 L_p_nowo")
    for i in range(20):
        p(f"s_mov_b32 s{sT1}, {(40*(i//5) + 4*(i%5))*1280}\n s_add_u32 m0, s{sM0}, {WO_IMG + 1024*i}")
        p(f"buffer_load_dwordx4 v{vK1 if i & 1 else vK0}, s[{SRD_WO}:{SRD_WO+3}], s{sT1} offen lds")
    p.label("L_p_nowo")
    if 'pdiag' not in OPT: stamp(p, 4)
    p("s_waitcnt vmcnt(0)")
    if 'pdiag' not in OPT: stamp(p, 5)
    p("s_barrier")
    if 'pdiag' not in OPT: stamp(p, 6)
    if common.DIAG:
        stamps_flush(p, t0, t1, loader=True)
    p("s_endpgm")
    V.free = list(mark)
    p.label("L_b_compute")
    vWp = V.alloc(4, align=4); vWp2 = V.alloc(4, align=4)
    p(f"""
    s_mul_i32 s{sT0}, s{sHP}, 1600
    v_lshlrev_b32 v{t0}, 4, v{vLane}
    v_add_u32 v{t0}, s{sT0}, v{t0}
    v_add_u32 v{t1}, 1024, v{t0}
    s_waitcnt lgkmcnt(0)
    global_load_dwordx4 v[{vWp}:{vWp+3}], v{t0}, s[{S_WPHI}:{S_WPHI+1}]
    s_mov_b32 exec_hi, 15
    global_load_dwordx4 v[{vWp2}:{vWp2+3}], v{t1}, s[{S_WPHI}:{S_WPHI+1}]
    s_mov_b32 exec_hi, -1
    """)
    PF0 = 1 if 'st2' in OPT else 3
    NPF = 0
    if 'l2pf' in OPT:
        NPF = 2
        a0 = V.alloc(); a1 = V.alloc(); a2 = V.alloc(); a3 = V.alloc(); d0 = V.alloc(); ad = V.alloc(2, align=2)
        p(f"""
        ; lane -> chunk PF0 + lane/10, item r = lane%10 ; it = min((i*8 + w)*10 + r, 1727)
        v_mul_u32_u24 v{a0}, 205, v{vLane}
        v_lshrrev_b32 v{a0}, 11, v{a0}               ; lane/10
        v_mul_u32_u24 v{a1}, 10, v{a0}
        v_sub_u32 v{a1}, v{vLane}, v{a1}             ; r
        s_lshl_b32 s{sT1}, s{sI}, 3
        s_add_u32 s{sT1}, s{sT1}, s{sW}
        s_mul_i32 s{sT1}, s{sT1}, 10
        v_add_u32 v{a1}, s{sT1}, v{a1}               ; it
        v_min_u32 v{a1}, 1727, v{a1}
        v_add_u32 v{a0}, {PF0}, v{a0}                ; chunk
        s_lshr_b32 s{sT2}, s{sJ}, 2
        s_mul_i32 s{sT2}, s{sT2}, 960
        v_add_u32 v{a2}, s{sT2}, v{a1}
        v_min_u32 v{a2}, 2047, v{a2}
        v_mul_u32_u24 v{a2}, 1280, v{a2}
        v_lshl_add_u32 v{a2}, v{a0}, 7, v{a2}
        ; W: u = it - 1152 ; krow = u/9 ; rem = u%9 ; seg = rem/3 ; ln = rem%3
        v_subrev_u32 v{a1}, 1152, v{a1}
        v_max_i32 v{d0}, 0, v{a1}
        v_mul_u32_u24 v{a3}, 7282, v{d0}
        v_lshrrev_b32 v{a3}, 16, v{a3}               ; krow
        v_mul_u32_u24 v{t3}, 9, v{a3}
        v_sub_u32 v{d0}, v{d0}, v{t3}                ; rem
        v_lshl_add_u32 v{a3}, v{a0}, 6, v{a3}
        v_mul_u32_u24 v{a3}, 3840, v{a3}
        v_mul_u32_u24 v{t3}, 86, v{d0}
        v_lshrrev_b32 v{t3}, 8, v{t3}                ; seg
        v_mul_u32_u24 v{a0}, 3, v{t3}
        v_sub_u32 v{d0}, v{d0}, v{a0}                ; ln
        v_mul_u32_u24 v{t3}, 1280, v{t3}
        v_lshl_add_u32 v{t3}, v{d0}, 7, v{t3}
        s_and_b32 s{sT2}, s{sJ}, 3
        s_mul_i32 s{sT2}, s{sT2}, 320
        s_and_b32 s{sT2}, s{sT2}, 0xffffff80
        v_add3_u32 v{a3}, v{a3}, v{t3}, s{sT2}
        v_cmp_gt_i32 vcc, 0, v{a1}                   ; x lanes
        v_cndmask_b32 v{a2}, v{a3}, v{a2}, vcc
        v_mov_b32 v{a0}, {6*64*3840}
        v_mov_b32 v{a1}, {6*128}
        v_cndmask_b32 v{a3}, v{a0}, v{a1}, vcc
        v_mov_b32 v{a0}, s{S_WQKV}
        v_mov_b32 v{a1}, s{S_X}
        v_cndmask_b32 v{ad}, v{a0}, v{a1}, vcc
        v_mov_b32 v{a0}, s{S_WQKV+1}
        v_mov_b32 v{a1}, s{S_X+1}
        v_cndmask_b32 v{ad+1}, v{a0}, v{a1}, vcc
        v_add_co_u32 v{ad}, vcc, v{ad}, v{a2}
        v_addc_co_u32 v{ad+1}, vcc, 0, v{ad+1}, vcc
        """)
        if 'st2' in OPT: p("s_barrier")
        p(f"""
        s_mov_b32 exec_hi, 0x0fffffff
        global_load_dword v{VGPRS-1}, v[{ad}:{ad+1}], off
        s_mov_b32 exec_hi, -1
        v_add_co_u32 v{ad}, vcc, v{ad}, v{a3}
        v_addc_co_u32 v{ad+1}, vcc, 0, v{ad+1}, vcc
        s_mov_b32 exec_lo, {0x3ff if PF0 == 3 else 0x3fffffff:#x}
        s_mov_b32 exec_hi, 0
        global_load_dword v{VGPRS-1}, v[{ad}:{ad+1}], off
        s_mov_b64 exec, -1
        """)
        for r in (a0, a1, a2, a3, d0): V.release(r)
        V.release(ad, 2)
    stamp(p, 1)
    srd(p, SRD_WS, S_WS, WS_SIZE)
    srd(p, SRD_O, S_OUT, 2048 * 2560)
    p(f"""
    s_mov_b32 s{sL}, {LOG2E:#x}
    s_mov_b32 s{sL+1}, {LOG2E:#x}
    s_mov_b32 s{sNEG}, {-3*SLOT & 0xffffffff:#x}
    """)
    vXa = V.alloc(2, align=1); vWa = V.alloc(4, align=1)
    for ks in range(2):
        p(f"""
        v_add_u32 v{t0}, {4*ks}, v{vG}
        v_lshrrev_b32 v{t1}, 1, v{vI}
        v_xor_b32 v{t0}, v{t0}, v{t1}
        v_lshlrev_b32 v{t0}, 4, v{t0}
        s_mul_i32 s{sT0}, s{sWR}, 48
        v_add_u32 v{t1}, s{sT0}, v{vI}
        v_lshl_add_u32 v{vXa+ks}, v{t1}, 7, v{t0}
        """)
    p(f"""
    v_and_b32 v{t0}, 1, v{vG}
    v_xor_b32 v{t0}, s{sTY}, v{t0}
    v_lshlrev_b32 v{t0}, 7, v{t0}
    v_bfe_u32 v{t2}, v{vI}, 1, 1
    v_lshl_add_u32 v{t0}, v{t2}, 4, v{t0}
    v_and_b32 v{t2}, 1, v{vI}
    v_lshl_add_u32 v{t0}, v{t2}, 3, v{t0}
    v_lshrrev_b32 v{t1}, 2, v{vI}
    v_lshl_add_u32 v{t2}, v{vG}, 3, v{t1}
    v_lshl_add_u32 v{t0}, v{t2}, 8, v{t0}
    v_add_u32 v{t0}, {WOFF}, v{t0}
    """)
    for mt in range(4):
        p(f"v_xor_b32 v{t2}, {mt}, v{t1}\n v_lshl_add_u32 v{vWa+mt}, v{t2}, 5, v{t0}")
    acc = V.alloc(48, align=4)
    for k in range(48): p(f"v_mov_b32 v{acc+k}, 0")
    WPB = 3 * SLOT
    vFA = V.alloc(16, align=4)
    FA, FB, FC0, FC1 = vFA, vFA + 4, vFA + 8, vFA + 12
    GT = V.alloc(32, align=1)
    for k in range(32): p(f"v_mov_b32 v{GT+k}, 0")
    p(f"""
    s_lshl_b32 s{sT0}, s{sW}, 11
    s_add_u32 s{sT0}, s{sT0}, {WPB}
    v_lshl_add_u32 v{t0}, v{vLane}, 4, s{sT0}
    v_lshrrev_b32 v{t1}, 2, v{vI}
    v_mul_u32_u24 v{t1}, 5, v{t1}
    v_and_b32 v{t2}, 3, v{vI}
    v_add_u32 v{t2}, v{t1}, v{t2}
    v_lshlrev_b32 v{t2}, 1, v{t2}
    v_mul_u32_u24 v{t3}, 160, v{vG}
    v_add3_u32 v{t2}, v{t2}, v{t3}, s{sT0}      ; t2: f = 5(m>>2)+(m&3)
    v_add_u32 v{t1}, 4, v{t1}
    v_lshlrev_b32 v{t1}, 1, v{t1}
    v_add3_u32 v{t1}, v{t1}, v{t3}, s{sT0}      ; t1: f = 5(m>>2)+4
    s_waitcnt vmcnt({NPF})
    """)
    p(f"""
    ds_write_b128 v{t0}, v[{vWp}:{vWp+3}]
    s_mov_b32 exec_hi, 15
    ds_write_b128 v{t0}, v[{vWp2}:{vWp2+3}] offset:1024
    s_mov_b32 exec_hi, -1
    s_waitcnt lgkmcnt(0)
    """)
    def gather(dst, addr, off, mask):
        p(f"s_mov_b32 exec_lo, {mask & 0xffffffff:#x}\n s_mov_b32 exec_hi, {mask >> 32:#x}")
        for e in range(4):
            p(f"ds_read_u16 v{GT + 2*(dst - vFA) + e}, v{addr} offset:{off + 40*e}")
    G0 = 0xFFFF; G01 = 0xFFFFFFFF; G123 = 0xFFFFFFFFFFFF0000; ALL = (1 << 64) - 1
    R0 = 0x1111111111111111; R1 = 0x2222222222222222
    gather(FA, t2, 0, ALL);            gather(FA + 2, t2, 16*40, G0)
    gather(FB, t2, 800 - 160, G123);   gather(FB + 2, t2, 800 + 12*40, G01)
    gather(FC0, t1, 0, R0);            gather(FC0 + 2, t1, 16*40, G0 & R0)
    gather(FC1, t1, 800 - 160, G123 & R1); gather(FC1 + 2, t1, 800 + 12*40, G01 & R1)
    p("s_mov_b64 exec, -1\n s_waitcnt lgkmcnt(0)")
    for k in range(16):
        p(f"v_lshl_or_b32 v{vFA+k}, v{GT+2*k+1}, 16, v{GT+2*k}")
    V.release(GT, 32); V.release(vWp, 4); V.release(vWp2, 4)
    XF = [V.alloc(12, align=4), V.alloc(12, align=4)]
    WF = [V.alloc(16, align=4), V.alloc(16, align=4)]
    def reads(ks):
        L = []
        for mt in range(4):
            for h in range(2):
                L.append(f"ds_read_b64_tr_b16 v[{WF[ks]+4*mt+2*h}:{WF[ks]+4*mt+2*h+1}], v{vWa+mt} offset:{8192*ks + 1024*h}")
        X = [f"ds_read_b128 v[{XF[ks]+4*nt}:{XF[ks]+4*nt+3}], v{vXa+ks} offset:{2048*nt}" for nt in range(3)]
        return [L[0], L[1], X[0], X[1], X[2]] + L[2:]
    def mfmas(ks):
        L = []
        for mt in range(4):
            for nt in range(3):
                a = acc + 16*nt + 4*mt
                L.append(f"v_mfma_f32_16x16x32_bf16 v[{a}:{a+3}], v[{WF[ks]+4*mt}:{WF[ks]+4*mt+3}], v[{XF[ks]+4*nt}:{XF[ks]+4*nt+3}], v[{a}:{a+3}]")
        return L
    def sched(main, slots):
        for i, m in enumerate(main):
            if 'nomfma' not in OPT: p(m)
            for x in slots.get(i, []):
                if ('nomfma' in OPT or 'nords' in OPT) and x.startswith('ds_read'): continue
                p(x)
    def advance():
        return [f"v_add_u32 v{r}, s{sSLOTD}, v{r}" for r in (vWa, vXa, vWa+1, vWa+2, vWa+3, vXa+1)]
    if 'fdiag' not in OPT: stamp(p, 15)
    p("s_barrier")
    stamp(p, 2)
    if 'fdiag' not in OPT: cstamp(p, 13)
    for x in reads(0): p(x)
    p(f"s_mov_b32 s{sS}, 0")
    def slot_delta():
        return [f"s_and_b32 s{sT0}, s{sS}, 3", f"s_cmp_eq_u32 s{sT0}, 3", f"s_cselect_b32 s{sSLOTD}, s{sNEG}, {SLOT}"]
    RSP = int(common.os.environ.get("RSP", "2"))
    def read_slots(r, first):
        d = {}
        k = first
        while r:
            d[k] = r[:RSP]; r = r[RSP:]; k += 1
        return d
    def half0():
        p("s_waitcnt lgkmcnt(0)")
        slots = read_slots(reads(1), 0)
        slots[7] = slot_delta()
        sched(mfmas(0), slots)
    def half1(nxt=True):
        p("s_waitcnt lgkmcnt(0)")
        if nxt:
            p("s_barrier")
            slots = read_slots(reads(0), 1)
            slots[0] = advance()
            sched(mfmas(1), slots)
        else:
            sched(mfmas(1), {})
    p.label("L_b_main")
    half0(); half1()
    p(f"s_add_u32 s{sS}, s{sS}, 1\n s_cmp_lt_u32 s{sS}, 9\n s_cbranch_scc1 L_b_main")
    half0(); half1(nxt=False)
    stamp(p, 3)
    if 'fdiag' not in OPT: cstamp(p, 14)
    V.release(XF[0], 12); V.release(XF[1], 12); V.release(WF[0], 16); V.release(WF[1], 16)
    V.release(vXa, 2); V.release(vWa, 4)
    def wait_cleared(name, vN, vm):
        p(f"s_mov_b32 s{sCNT}, 0\n s_waitcnt vmcnt({vm})")
        p.label(f"L_b_wc{name}")
        p(f"""
        v_readfirstlane_b32 s{sT0}, v{vN}
        s_cmp_ge_u32 s{sT0}, {N_B}
        s_cbranch_scc1 L_b_wc_ok{name}
        s_add_u32 s{sCNT}, s{sCNT}, 1
        s_cmp_gt_u32 s{sCNT}, {SPIN_MAX}
        s_cbranch_scc1 L_b_wc_ok{name}
        v_mov_b32 v{vN}, {DBG_CNT}
        global_load_dword v{vN}, v{vN}, s[{S_DBG}:{S_DBG+1}] sc1
        s_waitcnt vmcnt(0)
        s_branch L_b_wc{name}
        """)
        p.label(f"L_b_wc_ok{name}")
    P = V.alloc(3 * 8, align=2)
    vRow = V.alloc()
    vV2 = V.alloc(); vV3 = V.alloc()
    p(f"""
    s_mul_i32 s{sT0}, s{sWR}, 48
    v_add_u32 v{t0}, s{sT0}, v{vI}
    v_mul_u32_u24 v{vRow}, {RS}, v{t0}
    v_add_u32 v{vRow}, {PHI}, v{vRow}
    s_mul_i32 s{sT0}, s{sTY}, 48
    v_lshlrev_b32 v{t1}, 3, v{vG}
    v_add3_u32 v{vV2}, v{t1}, v{vRow}, s{sT0}
    v_add_u32 v{vV2}, {192 - 16}, v{vV2}
    v_add_u32 v{t2}, {192 + 16}, v{t1}
    v_add_u32 v{t3}, {192 + 64}, v{t1}
    v_cmp_gt_u32 vcc, 2, v{vG}
    v_add_u32 v{vV3}, {280 - 16}, v{t1}
    v_cndmask_b32 v{t3}, v{vV3}, v{t3}, vcc
    s_cmp_eq_u32 s{sTY}, 0
    s_cselect_b64 vcc, -1, 0
    v_cndmask_b32 v{t3}, v{t3}, v{t2}, vcc
    v_add_u32 v{vV3}, v{t3}, v{vRow}
    """)
    def cvtP(nt, mts):
        for mt in mts:
            a = acc + 16*nt + 4*mt
            p(f"v_cvt_pk_bf16_f32 v{P+8*nt+2*mt}, v{a}, v{a+1}")
            p(f"v_cvt_pk_bf16_f32 v{P+8*nt+2*mt+1}, v{a+2}, v{a+3}")
    for nt in range(3): cvtP(nt, (2, 3))
    p("s_mov_b32 exec_lo, 0")
    for nt in range(3): p(f"ds_write_b64 v{vV2}, v[{P+8*nt+4}:{P+8*nt+5}] offset:{16*RS*nt}")
    p("s_mov_b32 exec_lo, -1")
    for nt in range(3): p(f"ds_write_b64 v{vV3}, v[{P+8*nt+6}:{P+8*nt+7}] offset:{16*RS*nt}")
    for nt in range(3): cvtP(nt, (0, 1))
    V.release(vV2); V.release(vV3)
    if common.DUMP:
        p(f"""
        s_lshl_b32 s{sT0}, s2, 3
        s_add_u32 s{sT0}, s{sT0}, s{sW}
        s_mul_i32 s{sT0}, s{sT0}, {24*256}
        s_add_u32 s{sT0}, s{sT0}, {4<<20}
        v_lshl_add_u32 v{t0}, v{vLane}, 2, s{sT0}
        """)
        for k in range(24):
            p(f"buffer_store_dword v{P+k}, v{t0}, s[{SRD_WS}:{SRD_WS+3}], 0 offen offset:{256*(k%16)}")
            if k == 15: p(f"v_add_u32 v{t0}, 4096, v{t0}")
        p("s_waitcnt vmcnt(0)")
    V.release(acc, 48)
    if common.os.environ.get('RDBG'): print('free before softmax', [i for i,f in enumerate(V.free) if f])
    TTb = V.alloc(38, align=4)
    TT = [TTb, TTb + 12, TTb + 24]
    EE = [V.alloc(20, align=2) for _ in range(3)]
    SS = [[V.alloc(2, align=2) for _ in range(3)] for _ in range(3)]
    def softmax(nt, outs):
        T, E, S = TT[nt], EE[nt], SS[nt]
        X01 = P + 8*nt; X12 = P + 8*nt + 2
        a0, a1, b0, b1, c, d = S[0], S[0]+1, S[1], S[1]+1, S[2], S[2]+1
        L = [f"v_mfma_f32_16x16x32_bf16 v[{T}:{T+3}], v[{FA}:{FA+3}], v[{X01}:{X01+3}], 0",
             f"v_mfma_f32_16x16x32_bf16 v[{T+8}:{T+11}], v[{FC0}:{FC0+3}], v[{X01}:{X01+3}], 0",
             f"v_mfma_f32_16x16x32_bf16 v[{T+4}:{T+7}], v[{FB}:{FB+3}], v[{X12}:{X12+3}], 0",
             f"v_mfma_f32_16x16x32_bf16 v[{T+8}:{T+11}], v[{FC1}:{FC1+3}], v[{X12}:{X12+3}], v[{T+8}:{T+11}]"]
        x = [[T, T+1, T+2, T+3, T+8], [T+4, T+5, T+6, T+7, T+9]]
        for h, (a, b) in enumerate(((a0, b0), (a1, b1))):
            xs = x[h]
            L += [f"v_max3_f32 v{a}, v{xs[0]}, v{xs[1]}, v{xs[2]}", f"v_max3_f32 v{b}, -v{xs[0]}, -v{xs[1]}, -v{xs[2]}"]
        for h, (a, b) in enumerate(((a0, b0), (a1, b1))):
            xs = x[h]
            L += [f"v_max3_f32 v{a}, v{a}, v{xs[3]}, v{xs[4]}", f"v_max3_f32 v{b}, v{b}, -v{xs[3]}, -v{xs[4]}"]
        def allred(op):
            return [f"v_permlane16_swap_b32 v{a0}, v{b0}", f"v_permlane16_swap_b32 v{a1}, v{b1}",
                    f"{op} v{a0}, v{a0}, v{b0}", f"{op} v{a1}, v{a1}, v{b1}",
                    f"v_permlane32_swap_b32 v{a0}, v{a1}", f"{op} v{c}, v{a0}, v{a1}"]
        bc = [f"v_mov_b32 v{d}, v{c}", f"v_permlane32_swap_b32 v{c}, v{d}", f"v_mov_b32 v{a0}, v{c}", f"v_mov_b32 v{a1}, v{d}",
              f"v_permlane16_swap_b32 v{a0}, v{c}", f"v_permlane16_swap_b32 v{a1}, v{d}"]
        L += allred("v_max_f32") + [f"v_mul_f32 v{c}, s{sL}, v{c}"] + bc
        sel = [(0, 0), (0, 0), (1, 1), (1, 1), (0, 1)]
        for k in range(5):
            lo, hi = sel[k]
            if lo == 1:
                L.append(f"v_fma_f32 v{E+2*k}, v{T+2*k}, s{sL}, -v{a1}")
                L.append(f"v_fma_f32 v{E+2*k+1}, v{T+2*k+1}, s{sL}, -v{a1}")
                L.append(f"v_fma_f32 v{E+10+2*k}, -v{T+2*k}, s{sL}, -v{d}")
                L.append(f"v_fma_f32 v{E+10+2*k+1}, -v{T+2*k+1}, s{sL}, -v{d}")
                continue
            L.append(f"v_pk_fma_f32 v[{E+2*k}:{E+2*k+1}], v[{T+2*k}:{T+2*k+1}], s[{sL}:{sL+1}], v[{a0}:{a1}] op_sel:[0,0,{lo}] op_sel_hi:[1,1,{hi}] neg_lo:[0,0,1] neg_hi:[0,0,1]")
            L.append(f"v_pk_fma_f32 v[{E+10+2*k}:{E+10+2*k+1}], v[{T+2*k}:{T+2*k+1}], s[{sL}:{sL+1}], v[{c}:{d}] op_sel:[0,0,{lo}] op_sel_hi:[1,1,{hi}] neg_lo:[1,0,1] neg_hi:[1,0,1]")
        L += [f"v_exp_f32 v{E+k}, v{E+k}" for k in range(20)]
        L += [f"v_pk_add_f32 v[{T}:{T+1}], v[{E}:{E+1}], v[{E+2}:{E+3}]",
              f"v_pk_add_f32 v[{T+2}:{T+3}], v[{E+4}:{E+5}], v[{E+6}:{E+7}]",
              f"v_pk_add_f32 v[{T+4}:{T+5}], v[{E+10}:{E+11}], v[{E+12}:{E+13}]",
              f"v_pk_add_f32 v[{T+6}:{T+7}], v[{E+14}:{E+15}], v[{E+16}:{E+17}]",
              f"v_add_f32 v{a0}, v{T}, v{T+1}", f"v_add_f32 v{a1}, v{T+2}, v{T+3}",
              f"v_add_f32 v{b0}, v{T+4}, v{T+5}", f"v_add_f32 v{b1}, v{T+6}, v{T+7}",
              f"v_pk_add_f32 v[{a0}:{a1}], v[{a0}:{a1}], v[{E+8}:{E+9}]",
              f"v_pk_add_f32 v[{b0}:{b1}], v[{b0}:{b1}], v[{E+18}:{E+19}]"]
        L += allred("v_add_f32") + [f"v_rcp_f32 v{c}, v{c}"] + bc
        for k in range(5):
            lo, hi = sel[k]
            if lo == 1:
                L.append(f"v_mul_f32 v{E+2*k}, v{E+2*k}, v{a1}")
                L.append(f"v_mul_f32 v{E+2*k+1}, v{E+2*k+1}, v{a1}")
                L.append(f"v_mul_f32 v{E+10+2*k}, v{E+10+2*k}, v{d}")
                L.append(f"v_mul_f32 v{E+10+2*k+1}, v{E+10+2*k+1}, v{d}")
                continue
            L.append(f"v_pk_mul_f32 v[{E+2*k}:{E+2*k+1}], v[{E+2*k}:{E+2*k+1}], v[{a0}:{a1}] op_sel:[0,{lo}] op_sel_hi:[1,{hi}]")
            L.append(f"v_pk_mul_f32 v[{E+10+2*k}:{E+10+2*k+1}], v[{E+10+2*k}:{E+10+2*k+1}], v[{c}:{d}] op_sel:[0,{lo}] op_sel_hi:[1,{hi}]")
        pairs = [[(0, 1), (2, 3), (8, 10), (11, 12), (13, 18)], [(4, 5), (6, 7), (9, 14), (15, 16), (17, 19)]]
        for h in range(2):
            for k, (u, w) in enumerate(pairs[h]):
                L.append(f"v_cvt_pk_bf16_f32 v{outs[h]+k}, v{E+u}, v{E+w}")
        return L
    snap = list(V.free)
    p(f"s_cmp_eq_u32 s{sTY}, 0\n s_cbranch_scc0 L_b_qtype")
    stamp(p, 4)
    p(f"""
    s_mul_i32 s{sT0}, s{sWR}, 48
    s_add_u32 s{sT0}, s{sT0}, s{sROW0}
    v_add_u32 v{t0}, s{sT0}, v{vI}
    v_mov_b32 v{t1}, 0x3f80
    """)
    on = EE[0]
    p(f"v_mov_b32 v{on+1}, 0")
    for nt in range(3):
        p(f"""
        v_cmp_gt_u32 vcc, 0x800, v{t0}
        v_cndmask_b32 v{on}, 0, v{t1}, vcc
        ds_write_b64 v{vRow}, v[{on}:{on+1}] offset:{16*RS*nt + 272}
        v_add_u32 v{t0}, 16, v{t0}
        """)
    vPh = V.alloc()
    p(f"v_mul_u32_u24 v{t0}, 24, v{vG}\n v_add_u32 v{vPh}, v{t0}, v{vRow}")
    streams = []
    for nt in range(3):
        T = TT[nt]
        L = softmax(nt, [T, T + 6])
        for h in range(2):
            o = T + 6*h; off = 16*RS*nt + 96*h
            L += [f"ds_write_b64 v{vPh}, v[{o}:{o+1}] offset:{off}", f"ds_write_b64 v{vPh}, v[{o+2}:{o+3}] offset:{off+8}",
                  f"ds_write_b32 v{vPh}, v{o+4} offset:{off+16}"]
        streams.append(L)
    for x in merge(streams): p(x)
    p("s_waitcnt lgkmcnt(0)\n s_barrier")
    for r, n in [(P, 24), (vRow, 1), (vFA, 16), (TTb, 38), (vPh, 1)] + [(x, 20) for x in EE] + [(y, 2) for x in SS for y in x]:
        V.release(r, n)
    stamp(p, 5)
    sHD, sHF = 95, 96
    vAa = V.alloc(); vB0 = V.alloc()
    p(f"""
    s_and_b32 s{sHD}, s{sWR}, 1
    s_lshr_b32 s{sHF}, s{sWR}, 1
    v_lshrrev_b32 v{t0}, 2, v{vI}
    v_lshl_add_u32 v{t0}, v{vG}, 3, v{t0}
    v_mul_u32_u24 v{t0}, {RS}, v{t0}
    v_add_u32 v{t0}, {PHI}, v{t0}
    v_and_b32 v{t1}, 3, v{vI}
    v_mul_u32_u24 v{t2}, 24, v{t1}
    s_mul_i32 s{sT0}, s{sHD}, 96
    v_add3_u32 v{vAa}, v{t0}, v{t2}, s{sT0}
    s_mul_i32 s{sT0}, s{sHD}, 40
    v_lshlrev_b32 v{t2}, 3, v{t1}
    v_add_u32 v{t2}, s{sT0}, v{t2}
    v_add_u32 v{vB0}, 192, v{t2}
    s_add_u32 s{sT0}, s{sT0}, 224
    v_mov_b32 v{t2}, 272
    v_mov_b32 v{t3}, s{sT0}
    v_cmp_eq_u32 vcc, s{sHD}, v{t1}
    v_cndmask_b32 v{t2}, v{t2}, v{t3}, vcc
    s_cmp_eq_u32 s{sHF}, 0
    s_cselect_b64 vcc, -1, 0
    v_cndmask_b32 v{t2}, v{t2}, v{vB0}, vcc
    v_add_u32 v{vB0}, v{t0}, v{t2}
    """)
    KF = V.alloc(48, align=4); KD = V.alloc(12, align=4)
    def kvreads(ks):
        b = KF + 16 * (ks % 3); off = 32 * RS * ks
        for h in range(2):
            p(f"ds_read_b64_tr_b16 v[{b+12+2*h}:{b+12+2*h+1}], v{vB0} offset:{off + 4*RS*h}")
        for mt in range(3):
            for h in range(2):
                p(f"ds_read_b64_tr_b16 v[{b+4*mt+2*h}:{b+4*mt+2*h+1}], v{vAa} offset:{off + 4*RS*h + 8*mt}")
    kvreads(0); kvreads(1)
    vP0 = V.alloc(); vP1 = V.alloc()
    p(f"""
    s_lshl_b32 s{sT0}, s{sRB}, 4
    s_add_u32 s{sT0}, s{sT0}, s{sHP}
    s_mul_i32 s{sT0}, s{sT0}, {PART_STRIDE}
    s_mul_i32 s{sT1}, s{sWR}, 1280
    s_add_u32 s{sT0}, s{sT0}, s{sT1}
    s_add_u32 s{sT0}, s{sT0}, {WS_PART}
    v_lshl_add_u32 v{vP0}, v{vLane}, 4, s{sT0}
    s_add_u32 s{sT0}, s{sT0}, 1024
    v_lshl_add_u32 v{vP1}, v{vLane}, 2, s{sT0}
    """)
    for ks in range(6):
        p(f"s_waitcnt lgkmcnt({8 if ks < 5 else 0})")
        b = KF + 16 * (ks % 3)
        for mt in range(3):
            c = "0" if ks == 0 else f"v[{KD+4*mt}:{KD+4*mt+3}]"
            p(f"v_mfma_f32_16x16x32_bf16 v[{KD+4*mt}:{KD+4*mt+3}], v[{b+4*mt}:{b+4*mt+3}], v[{b+12}:{b+15}], {c}")
        if ks + 2 < 6: kvreads(ks + 2)
    q = V.alloc(6, align=4)
    p(f"""
    v_cvt_pk_bf16_f32 v{q}, v{KD}, v{KD+1}
    v_cvt_pk_bf16_f32 v{q+1}, v{KD+2}, v{KD+3}
    v_cvt_pk_bf16_f32 v{q+2}, v{KD+4}, v{KD+5}
    v_cvt_pk_bf16_f32 v{q+3}, v{KD+6}, v{KD+7}
    v_cvt_pk_bf16_f32 v{q+4}, v{KD+8}, v{KD+9}
    buffer_store_dwordx4 v[{q}:{q+3}], v{vP0}, s[{SRD_WS}:{SRD_WS+3}], 0 offen sc1
    buffer_store_dword v{q+4}, v{vP1}, s[{SRD_WS}:{SRD_WS+3}], 0 offen sc1
    """)
    stamp(p, 6)
    V.release(KF, 48); V.release(KD, 12)
    L = V.alloc(56, align=4)
    A10 = V.alloc(10, align=2); mx = V.alloc()
    p(f"""
    s_mul_i32 s{sT0}, s{sRB}, {16*PART_STRIDE}
    v_subrev_u32 v{t0}, s{sT0}, v{vP0}
    v_subrev_u32 v{t1}, s{sT0}, v{vP1}
    s_mov_b32 s{sCNT}, 0
    """)
    def ld_part(r):
        p(f"s_mov_b32 s{sT0}, {r*16*PART_STRIDE}")
        p(f"buffer_load_dwordx4 v[{L+4*r}:{L+4*r+3}], v{t0}, s[{SRD_WS}:{SRD_WS+3}], s{sT0} offen sc1")
        p(f"buffer_load_dword v{L+44+r}, v{t1}, s[{SRD_WS}:{SRD_WS+3}], s{sT0} offen sc1")
    sHI = 97; sLO = 90
    p(f"s_mov_b32 s{sHI}, 0x3f800000\n s_mov_b32 s{sLO}, 0x00003f80")
    if 'p1old' not in OPT:
        if 'noack1' not in OPT: p("s_waitcnt vmcnt(0)")
        for r in range(11): ld_part(r)
        sANY = 91
        p.label("L_b_att1")
        p(f"s_waitcnt vmcnt(0)\n s_mov_b32 s{sANY}, 0")
        for r in range(11):
            p(f"""
            v_max3_u32 v{mx}, v{L+4*r}, v{L+4*r+1}, v{L+4*r+2}
            v_max3_u32 v{mx}, v{mx}, v{L+4*r+3}, v{L+44+r}
            v_cmp_eq_u32 vcc, -1, v{mx}
            s_cbranch_vccz L_b_have1_{r}
            s_mov_b32 s{sANY}, 1
            """)
            ld_part(r)
            p.label(f"L_b_have1_{r}")
        p(f"""
        s_cmp_eq_u32 s{sANY}, 0
        s_cbranch_scc1 L_b_got1
        s_add_u32 s{sCNT}, s{sCNT}, 1
        s_cmp_le_u32 s{sCNT}, {SPIN_MAX}
        s_cbranch_scc1 L_b_att1
        s_waitcnt vmcnt(0)
        """)
        p.label("L_b_got1")
        stamp(p, 7)
        for r in range(11):
            for k in range(5):
                src = L + 4*r + k if k < 4 else L + 44 + r
                c0 = "0" if r == 0 else f"v{A10+2*k}"
                c1 = "0" if r == 0 else f"v{A10+2*k+1}"
                p(f"v_dot2_f32_bf16 v{A10+2*k}, v{src}, s{sLO}, {c0}")
                p(f"v_dot2_f32_bf16 v{A10+2*k+1}, v{src}, s{sHI}, {c1}")
    p.label("L_b_sum1")
    for k in range(5):
        p(f"v_cvt_pk_bf16_f32 v{L+k}, v{A10+2*k}, v{A10+2*k+1}")
    p(f"""
    s_lshl_b32 s{sT1}, s{sWR}, 10
    s_add_u32 s{sT1}, s{sT1}, {AST}
    v_lshl_add_u32 v{t0}, v{vLane}, 4, s{sT1}
    ds_write_b128 v{t0}, v[{L}:{L+3}]
    s_lshl_b32 s{sT1}, s{sWR}, 8
    s_add_u32 s{sT1}, s{sT1}, {AST + 4096}
    v_lshl_add_u32 v{t1}, v{vLane}, 2, s{sT1}
    ds_write_b32 v{t1}, v{L+4}
    s_waitcnt lgkmcnt(0)
    s_barrier
    """)
    stamp(p, 8)
    if 'noe3' not in OPT: p("s_barrier")
    p("s_branch L_b_final")
    V.free = list(snap)
    p.label("L_b_qtype")
    p("s_waitcnt lgkmcnt(0)\n s_barrier")

    stamp(p, 4)
    for x in merge([softmax(nt, [TT[nt], TT[nt] + 6]) for nt in range(3)]): p(x)
    for nt in range(3):
        p(f"v_mov_b32 v{TT[nt]+5}, 0\n v_mov_b32 v{TT[nt]+11}, 0")
    p(f"v_mov_b32 v{TT[2]+12}, 0\n v_mov_b32 v{TT[2]+13}, 0")
    stamp(p, 5)
    for r, n in [(P, 24), (vRow, 1), (vFA, 16)] + [(x, 20) for x in EE] + [(y, 2) for x in SS for y in x]:
        V.release(r, n)
    p("s_waitcnt vmcnt(0) lgkmcnt(0)\n s_barrier")
    stamp(p, 6)
    AF = V.alloc(32, align=4)
    p(f"""
    v_lshlrev_b32 v{t0}, 4, v{vLane}
    v_add_u32 v{t0}, {AST}, v{t0}
    v_lshlrev_b32 v{t1}, 2, v{vLane}
    v_add_u32 v{t1}, {AST+4096}, v{t1}
    """)
    for k in range(4):
        p(f"ds_read_b128 v[{AF+8*k}:{AF+8*k+3}], v{t0} offset:{1024*k}")
        p(f"ds_read_b32 v{AF+8*k+4}, v{t1} offset:{256*k}")
    for k in range(4):
        for z in (5, 6, 7): p(f"v_mov_b32 v{AF+8*k+z}, 0")
    vOa = V.alloc(); vOb = V.alloc()
    ODs = [V.alloc(16, align=4) for _ in range(3)]; ws_ = [V.alloc(8, align=4) for _ in range(3)]
    sEPS = 97
    p(f"""
    s_mov_b32 s{sEPS}, 0x358637bd
    s_mul_i32 s{sT0}, s{sRB}, 12
    s_mul_i32 s{sT1}, s{sWR}, 3
    s_add_u32 s{sT0}, s{sT0}, s{sT1}
    s_mul_i32 s{sT0}, s{sT0}, {O_TILE}
    s_mul_i32 s{sT1}, s{sHP}, 1280
    s_add_u32 s{sT0}, s{sT0}, s{sT1}
    s_add_u32 s{sT0}, s{sT0}, {WS_O}
    v_lshl_add_u32 v{vOa}, v{vLane}, 4, s{sT0}
    v_lshlrev_b32 v{t0}, 4, v{vI}
    v_lshl_add_u32 v{t0}, v{vG}, 3, v{t0}
    s_add_u32 s{sT0}, s{sT0}, 1024
    v_add_u32 v{vOb}, s{sT0}, v{t0}
    v_cmp_gt_u32 vcc, 16, v{vLane}
    s_mov_b32 s{sT2}, {O_TILE}
    s_mov_b32 s{sT3}, {2*O_TILE}
    s_waitcnt lgkmcnt(0)
    """)
    stamp(p, 8)
    streams = []
    for nt in range(3):
        OD = ODs[nt]; w = ws_[nt]
        L = []
        for h in range(2):
            b = TT[nt] + 6*h
            a0_ = AF + 8*h; a1_ = AF + 8*(h + 2)
            o0 = OD + 8*h; o1 = o0 + 4
            L += [f"v_mfma_f32_16x16x32_bf16 v[{o0}:{o0+3}], v[{a0_}:{a0_+3}], v[{b}:{b+3}], 0",
                  f"v_mfma_f32_16x16x32_bf16 v[{o1}:{o1+3}], v[{a1_}:{a1_+3}], v[{b}:{b+3}], 0",
                  f"v_mfma_f32_16x16x32_bf16 v[{o0}:{o0+3}], v[{a0_+4}:{a0_+7}], v[{b+4}:{b+7}], v[{o0}:{o0+3}]",
                  f"v_mfma_f32_16x16x32_bf16 v[{o1}:{o1+3}], v[{a1_+4}:{a1_+7}], v[{b+4}:{b+7}], v[{o1}:{o1+3}]"]
        y = [w + 6, w + 4]
        L += [f"v_mov_b32 v{y[0]}, v{OD+4}", f"v_mov_b32 v{y[1]}, v{OD+12}",
              f"v_permlane16_swap_b32 v{OD+4}, v{y[0]}", f"v_permlane16_swap_b32 v{y[1]}, v{OD+12}",
              f"v_add_f32 v{y[0]}, s{sEPS}, v{y[0]}", f"v_add_f32 v{y[1]}, s{sEPS}, v{y[1]}",
              f"v_rcp_f32 v{y[0]}, v{y[0]}", f"v_rcp_f32 v{y[1]}, v{y[1]}"]
        for h in range(2):
            for r in range(0, 8, 2):
                a = OD + 8*h + r
                L.append(f"v_pk_mul_f32 v[{a}:{a+1}], v[{a}:{a+1}], v[{y[h]}:{y[h]+1}] op_sel:[0,0] op_sel_hi:[1,0]")
        L += [f"v_cvt_pk_bf16_f32 v{w}, v{OD}, v{OD+1}", f"v_cvt_pk_bf16_f32 v{w+1}, v{OD+2}, v{OD+3}",
              f"v_cvt_pk_bf16_f32 v{w+2}, v{OD+8}, v{OD+9}", f"v_cvt_pk_bf16_f32 v{w+3}, v{OD+10}, v{OD+11}",
              f"v_cvt_pk_bf16_f32 v{OD+4}, v{OD+4}, v{OD+5}", f"v_cvt_pk_bf16_f32 v{OD+5}, v{OD+6}, v{OD+7}",
              f"v_cvt_pk_bf16_f32 v{OD+12}, v{OD+12}, v{OD+13}", f"v_cvt_pk_bf16_f32 v{OD+13}, v{OD+14}, v{OD+15}",
              f"v_cndmask_b32 v{w+4}, v{OD+12}, v{OD+4}, vcc", f"v_cndmask_b32 v{w+5}, v{OD+13}, v{OD+5}, vcc"]
        streams.append(L)
    for x in merge(streams): p(x)
    if 'fdiag' not in OPT: stamp(p, 15)
    so = ["0", f"s{sT2}", f"s{sT3}"]
    for nt in range(3):
        p(f"buffer_store_dwordx4 v[{ws_[nt]}:{ws_[nt]+3}], v{vOa}, s[{SRD_WS}:{SRD_WS+3}], {so[nt]} offen sc1")
    p("s_mov_b32 exec_hi, 0")
    for nt in range(3):
        p(f"buffer_store_dwordx2 v[{ws_[nt]+4}:{ws_[nt]+5}], v{vOb}, s[{SRD_WS}:{SRD_WS+3}], {so[nt]} offen sc1")
    p("s_mov_b32 exec_hi, -1")
    stamp(p, 7)
    if 'noe3' not in OPT: p("s_waitcnt vmcnt(0)\n s_barrier")
    p.label("L_b_final")
    V.free = [i > t3 for i in range(V.limit)]
    sRQ, sKH = 95, 96
    OF = V.alloc(80, align=4)
    vR = V.alloc(); vPl = V.alloc(); mx = V.alloc(); pv = V.alloc()
    p(f"""
    s_cmp_ge_u32 s2, 160
    s_cbranch_scc1 L_b_done
    s_lshr_b32 s{sT0}, s2, 3
    s_cmp_ge_u32 s{sT0}, 10
    s_cselect_b32 s{sT1}, 1, 0
    s_and_b32 s{sT2}, s2, 7
    s_lshl_b32 s{sT2}, s{sT2}, 1
    s_add_u32 s{sRT}, s{sT2}, s{sT1}
    s_mul_i32 s{sT1}, s{sT1}, 10
    s_sub_u32 s{sCG}, s{sT0}, s{sT1}
    s_and_b32 s{sRQ}, s{sW}, 3
    s_lshr_b32 s{sKH}, s{sW}, 2
    s_lshl_b32 s{sT0}, s{sRT}, 3
    s_lshl_b32 s{sT1}, s{sRQ}, 1
    s_add_u32 s{sT0}, s{sT0}, s{sT1}
    s_mul_i32 s{sT0}, s{sT0}, {O_TILE}
    s_mul_i32 s{sT1}, s{sKH}, 10240
    s_add_u32 s{sT0}, s{sT0}, s{sT1}
    s_add_u32 s{sT0}, s{sT0}, {WS_O}
    v_lshl_add_u32 v{vR}, v{vLane}, 4, s{sT0}
    s_mov_b32 s{sCNT}, 0
    """)
    vA = V.alloc(4, align=1)
    p(f"""
    v_lshrrev_b32 v{t2}, 2, v{vI}
    v_bfe_u32 v{t3}, v{t2}, 1, 1
    v_and_b32 v{t0}, 1, v{vG}
    v_lshl_add_u32 v{t3}, v{t0}, 1, v{t3}        ; psi
    v_bfe_u32 v{t0}, v{vI}, 1, 1
    v_lshlrev_b32 v{t0}, 4, v{t0}
    v_and_b32 v{t1}, 1, v{vI}
    v_lshl_add_u32 v{t0}, v{t1}, 3, v{t0}
    v_lshl_add_u32 v{t2}, v{vG}, 3, v{t2}
    v_lshl_add_u32 v{t0}, v{t2}, 7, v{t0}
    s_mul_i32 s{sT1}, s{sKH}, {320*128}
    v_add_u32 v{t0}, s{sT1}, v{t0}
    """)
    for mt in range(4):
        p(f"v_xor_b32 v{t1}, {mt}, v{t3}\n v_lshl_add_u32 v{vA+mt}, v{t1}, 5, v{t0}")
    FAc = V.alloc(32, align=4); WA = [V.alloc(16, align=4), V.alloc(16, align=4)]
    def wreads(ks):
        b = WA[ks & 1]
        return [f"ds_read_b64_tr_b16 v[{b+4*mt+2*h}:{b+4*mt+2*h+1}], v{vA+mt} offset:{WO_IMG + 4096*ks + 512*h}" for mt in range(4) for h in range(2)]
    def ld_o(ks):
        for nt in range(2):
            p(f"s_mov_b32 s{sT1}, {O_TILE*nt + 4096*(ks >> 2)}")
            p(f"buffer_load_dwordx4 v[{OF+8*ks+4*nt}:{OF+8*ks+4*nt+3}], v{vR}, s[{SRD_WS}:{SRD_WS+3}], s{sT1} offen offset:{1024*(ks & 3)} sc1")
    sMISS = 90
    def chk_o(ks):
        o = OF + 8*ks
        p(f"""
        v_max3_u32 v{mx}, v{o}, v{o+1}, v{o+2}
        v_max3_u32 v{pv}, v{o+3}, v{o+4}, v{o+5}
        v_max3_u32 v{mx}, v{mx}, v{o+6}, v{o+7}
        v_max_u32 v{mx}, v{mx}, v{pv}
        v_cmp_eq_u32 vcc, -1, v{mx}
        """)
    def mf_o(ks, wb, fill=()):
        k = 0
        for mt in range(4):
            for nt in range(2):
                a = FAc + 16*nt + 4*mt
                p(f"v_mfma_f32_16x16x32_bf16 v[{a}:{a+3}], v[{wb+4*mt}:{wb+4*mt+3}], v[{OF+8*ks+4*nt}:{OF+8*ks+4*nt+3}], v[{a}:{a+3}]")
                if k < 4 and fill:
                    p(fill[2*k]); p(fill[2*k+1])
                k += 1
    PD = int(common.os.environ.get("PD", "4"))
    if 'fdiag' in OPT: stamp(p, 13)
    for ks in range(min(PD, 10)): ld_o(ks)
    if 'fdiag' in OPT: stamp(p, 14)
    for x in wreads(0): p(x)
    for k in range(32): p(f"v_mov_b32 v{FAc+k}, 0")
    p(f"s_mov_b32 s{sMISS}, 0")
    for ks in range(10):
        nxt = wreads(ks + 1) if ks < 9 else []
        p(f"s_waitcnt vmcnt({2*min(PD-1, 9-ks)})")
        if ks + PD < 10: ld_o(ks + PD)
        chk_o(ks)
        p(f"s_cbranch_vccz L_b_ok2_{ks}")
        p(f"s_bitset1_b32 s{sMISS}, {ks}")
        ld_o(ks)
        p("s_waitcnt lgkmcnt(0)")
        for x in nxt: p(x)
        p(f"s_branch L_b_nx2_{ks}")
        p.label(f"L_b_ok2_{ks}")
        if ks == 0: stamp(p, 9)
        p("s_waitcnt lgkmcnt(0)")
        mf_o(ks, WA[ks & 1], nxt)
        p.label(f"L_b_nx2_{ks}")
    if 'fdiag' in OPT:
        stamp(p, 1)
        p(f"s_bcnt1_i32_b32 s79, s{sMISS}")
    p(f"s_cmp_eq_u32 s{sMISS}, 0\n s_cbranch_scc1 L_b_ok2")
    p.label("L_b_p2")
    p("s_waitcnt vmcnt(0)")
    for ks in range(10):
        p(f"s_bitcmp1_b32 s{sMISS}, {ks}\n s_cbranch_scc0 L_b_p2n_{ks}")
        chk_o(ks)
        p(f"s_cbranch_vccnz L_b_p2r_{ks}")
        b = WA[0]
        for x in [f"ds_read_b64_tr_b16 v[{b+4*mt+2*h}:{b+4*mt+2*h+1}], v{vA+mt} offset:{WO_IMG + 4096*ks + 512*h}" for mt in range(4) for h in range(2)]: p(x)
        p("s_waitcnt lgkmcnt(0)")
        mf_o(ks, b)
        p(f"s_bitset0_b32 s{sMISS}, {ks}\n s_branch L_b_p2n_{ks}")
        p.label(f"L_b_p2r_{ks}")
        ld_o(ks)
        p.label(f"L_b_p2n_{ks}")
    p(f"""
    s_cmp_eq_u32 s{sMISS}, 0
    s_cbranch_scc1 L_b_ok2
    s_add_u32 s{sCNT}, s{sCNT}, 1
    s_cmp_le_u32 s{sCNT}, {SPIN_MAX}
    s_cbranch_scc1 L_b_p2
    s_waitcnt vmcnt(0)
    """)
    p.label("L_b_ok2")
    stamp(p, 10)
    p(f"""
    s_lshl_b32 s{sT0}, s{sW}, 12
    s_add_u32 s{sT0}, s{sT0}, {RED}
    v_lshl_add_u32 v{t0}, v{vLane}, 4, s{sT0}
    s_xor_b32 s{sT1}, s{sW}, 4
    s_lshl_b32 s{sT1}, s{sT1}, 12
    s_add_u32 s{sT1}, s{sT1}, {RED}
    v_lshl_add_u32 v{t1}, v{vLane}, 4, s{sT1}
    s_lshl_b32 s{sT0}, s{sRT}, 7
    s_lshl_b32 s{sT1}, s{sRQ}, 5
    s_add_u32 s{sT0}, s{sT0}, s{sT1}
    s_lshl_b32 s{sT1}, s{sKH}, 4
    s_add_u32 s{sT0}, s{sT0}, s{sT1}
    v_add_u32 v{t2}, s{sT0}, v{vI}
    v_mul_u32_u24 v{t2}, 2560, v{t2}
    v_and_b32 v{t3}, 1, v{vG}
    v_lshl_add_u32 v{t2}, v{t3}, 5, v{t2}
    v_lshrrev_b32 v{t3}, 1, v{vG}
    v_lshl_add_u32 v{t2}, v{t3}, 4, v{t2}
    s_lshl_b32 s{sT0}, s{sCG}, 7
    s_add_u32 s{sT0}, s{sT0}, 1280
    v_add_u32 v{t2}, s{sT0}, v{t2}
    s_cmp_eq_u32 s{sKH}, 0
    s_cbranch_scc1 L_b_red0
    """)
    def finish(keep):
        p("s_waitcnt lgkmcnt(0)\n s_barrier")
        for k in range(4):
            p(f"ds_read_b128 v[{OF+4*k}:{OF+4*k+3}], v{t1} offset:{1024*k}")
        for a2 in range(2):
            for mt in (2*a2, 2*a2 + 1):
                a = keep + 4*mt; b = OF + 4*mt
                p(f"s_waitcnt lgkmcnt({3-mt})")
                p(f"v_pk_add_f32 v[{a}:{a+1}], v[{a}:{a+1}], v[{b}:{b+1}]")
                p(f"v_pk_add_f32 v[{a+2}:{a+3}], v[{a+2}:{a+3}], v[{b+2}:{b+3}]")
            A = keep + 8*a2; B = A + 4; d = OF + 16 + 4*a2
            p(f"""
            v_cvt_pk_bf16_f32 v{d}, v{A}, v{A+1}
            v_cvt_pk_bf16_f32 v{d+1}, v{A+2}, v{A+3}
            v_cvt_pk_bf16_f32 v{d+2}, v{B}, v{B+1}
            v_cvt_pk_bf16_f32 v{d+3}, v{B+2}, v{B+3}
            v_permlane16_swap_b32 v{d}, v{d+2}
            v_permlane16_swap_b32 v{d+1}, v{d+3}
            buffer_store_dwordx4 v[{d}:{d+3}], v{t2}, s[{SRD_O}:{SRD_O+3}], 0 offen offset:{64*a2}
            """)
    for k in range(4):
        p(f"ds_write_b128 v{t0}, v[{FAc+4*k}:{FAc+4*k+3}] offset:{1024*k}")
    finish(FAc + 16)
    p("s_branch L_b_done")
    p.label("L_b_red0")
    for k in range(4):
        p(f"ds_write_b128 v{t0}, v[{FAc+16+4*k}:{FAc+16+4*k+3}] offset:{1024*k}")
    finish(FAc)
    p.label("L_b_done")
    dbgmax(p, 9, t2, t3, sW)
    stamp(p, 11)
    if common.DIAG:
        p('s_waitcnt vmcnt(0)')
        stamp(p, 12)
        stamps_flush(p, t0, t1)
    return V
```

```python
from common import *
import common

SLOT = 40960
WOFF = 24576
WO_IMG = 0
PHI = 81920
RS = 296
AST = 139264
RED = 81920
WS_PART = 65536
PART_STRIDE = 5120
WS_O = 1 << 20
O_TILE = 20480
WS_SIZE = 16 << 20
SPIN_MAX = 1 << 14
DBG_CNT = 4

def merge(streams):
    out = []
    n = max(len(s) for s in streams)
    for j in range(n):
        for s in streams:
            if j < len(s): out.append(s[j])
    return out

def gen_part_b(p):
    V = VAlloc(VGPRS - 1, start=1)
    sJ, sI, sT, sRB, sHP, sW, sWR, sTY = 32, 33, 34, 35, 36, 37, 38, 39
    SRD_X, SRD_W, SRD_WS, SRD_WO, SRD_O = 40, 44, 48, 52, 56
    sT0, sT1, sT2, sT3 = 60, 61, 62, 63
    sKC = 81; sS = 82; sSLOTD = 83; sXO = 84; sWO = 85; sM0 = 86; sROW0 = 87
    sL = 88
    sRT, sCG, sDSLOT = 92, 93, 94
    sNEG = 100; sCNT = 101
    OPT = common.OPT
    p(f"""
    s_and_b32 s{sJ}, s2, 7
    s_lshr_b32 s{sI}, s2, 3
    s_lshr_b32 s{sT0}, s{sJ}, 2
    s_mul_i32 s{sT0}, s{sT0}, 22
    s_add_u32 s{sT}, s{sT0}, s{sI}
    s_lshr_b32 s{sRB}, s{sT}, 2
    s_and_b32 s{sT0}, s{sT}, 3
    s_and_b32 s{sT1}, s{sJ}, 3
    s_lshl_b32 s{sT1}, s{sT1}, 2
    s_add_u32 s{sHP}, s{sT1}, s{sT0}
    s_mul_i32 s{sROW0}, s{sRB}, 192
    s_mul_i32 s{sT1}, s{sT0}, 3
    s_lshl_b32 s{sT2}, s{sRB}, 1
    s_add_u32 s{sKC}, s{sT1}, s{sT2}
    s_mul_i32 s{sT1}, s{sKC}, 205
    s_lshr_b32 s{sT1}, s{sT1}, 11
    s_mul_i32 s{sT1}, s{sT1}, 10
    s_sub_u32 s{sKC}, s{sKC}, s{sT1}
    """)
    if 'rot0' in OPT: p(f"s_mov_b32 s{sKC}, 0")
    if 'rot2' in OPT: p(f"s_and_b32 s{sKC}, s{sT}, 1\n s_mul_i32 s{sKC}, s{sKC}, 5")
    vLane = V.alloc(); vI = V.alloc(); vG = V.alloc(); t0 = V.alloc(); t1 = V.alloc(); t2 = V.alloc(); t3 = V.alloc()
    p(f"""
    v_lshrrev_b32 v{t0}, 6, v0
    v_and_b32 v{vLane}, 63, v0
    v_readfirstlane_b32 s{sW}, v{t0}
    v_and_b32 v{vI}, 15, v{vLane}
    v_lshrrev_b32 v{vG}, 4, v{vLane}
    s_and_b32 s{sWR}, s{sW}, 3
    s_lshr_b32 s{sTY}, s{sW}, 2
    s_cmp_eq_u32 s{sTY}, 2
    s_cbranch_scc0 L_b_compute
    """)
    PAD0, PAD1, PAD2 = WOFF + 240, WOFF + 464, WOFF + 688
    def FULL(s_): return (s_ & 3) * SLOT + PAD0 + 4 * (s_ >> 2)
    def FREE(s_): return (s_ & 3) * SLOT + PAD1 + 4 * (s_ >> 2)
    def ISSUED(s_): return s_ * SLOT + PAD2
    WPHI_DONE = 3 * SLOT + PAD2 + 4
    CLR_DONE = PAD2 + 8
    mark = list(V.free)
    vX = [V.alloc(), V.alloc()]; vW = [V.alloc(), V.alloc()]; vF = V.alloc(); vOne = V.alloc()
    sSLOT = 90
    p(f"""
    s_mul_i32 s{sSLOT}, s{sWR}, {SLOT}
    v_lshrrev_b32 v{t0}, 2, v{vLane}
    v_mul_u32_u24 v{t0}, 224, v{t0}
    v_and_b32 v{t1}, 3, v{vLane}
    v_lshl_add_u32 v{t0}, v{t1}, 2, v{t0}
    v_add_u32 v{t0}, {PAD0}, v{t0}
    v_add_u32 v{t0}, s{sSLOT}, v{t0}
    v_mov_b32 v{t1}, 0
    s_mov_b32 exec_lo, 0xfff
    s_mov_b32 exec_hi, 0
    ds_write_b32 v{t0}, v{t1}
    s_mov_b64 exec, -1
    v_mov_b32 v{vOne}, 1
    v_lshrrev_b32 v{t0}, 3, v{vLane}
    v_add_u32 v{t0}, s{sROW0}, v{t0}
    v_mul_u32_u24 v{t0}, 1280, v{t0}
    v_and_b32 v{t1}, 7, v{vLane}
    v_xor_b32 v{t2}, v{t1}, v{vG}
    v_lshl_add_u32 v{vX[0]}, v{t2}, 4, v{t0}
    v_xor_b32 v{t2}, 4, v{t2}
    v_lshl_add_u32 v{vX[1]}, v{t2}, 4, v{t0}
    """)
    for hv in range(2):
        p(f"""
        v_lshlrev_b32 v{t0}, 1, v{vG}
        v_add_u32 v{t0}, {8*hv}, v{t0}
        v_xor_b32 v{t0}, v{t0}, v{vI}
        v_min_u32 v{t0}, 14, v{t0}
        ; c<5: 1280+16c ; c<8: 2560+16(c-5) ; c<13: 16(c-8) ; else 2560+16(c-10)
        v_lshlrev_b32 v{t1}, 4, v{t0}
        v_add_u32 v{t2}, {2560-160}, v{t1}
        v_subrev_u32 v{t3}, 128, v{t1}
        v_cmp_gt_u32 vcc, 13, v{t0}
        v_cndmask_b32 v{t2}, v{t2}, v{t3}, vcc
        v_add_u32 v{t3}, {2560-80}, v{t1}
        v_cmp_gt_u32 vcc, 8, v{t0}
        v_cndmask_b32 v{t2}, v{t2}, v{t3}, vcc
        v_add_u32 v{t3}, 1280, v{t1}
        v_cmp_gt_u32 vcc, 5, v{t0}
        v_cndmask_b32 v{t2}, v{t2}, v{t3}, vcc
        s_mul_i32 s{sT0}, s{sHP}, 80
        v_mul_u32_u24 v{t0}, 3840, v{vG}
        v_add3_u32 v{vW[hv]}, v{t0}, v{t2}, s{sT0}
        """)
    def lanes_without(ls):
        m = (1 << 64) - 1
        for l in ls: m &= ~(1 << l)
        return m
    WM = [lanes_without([16*g + (15 ^ (2*g + 8*hv)) for g in range(4)]) for hv in range(2)]
    p("s_waitcnt lgkmcnt(0)\n s_barrier")
    srd(p, SRD_X, S_X, 2048 * 1280)
    srd(p, SRD_W, S_WQKV, 640 * 3840)
    srd(p, SRD_WS, S_WS, WS_SIZE)
    srd(p, SRD_WO, S_WO, 640 * 1280)
    np_ = [0]
    def poll(addr_sgpr_expr, want, name):
        np_[0] += 1
        p(f"s_mov_b32 s{sCNT}, 0")
        p.label(f"L_p_poll{name}")
        p(f"""
        ds_read_b32 v{t0}, v{vF}
        s_add_u32 s{sCNT}, s{sCNT}, 1
        s_cmp_gt_u32 s{sCNT}, {1 << 16}
        s_cbranch_scc1 L_p_pok{name}
        s_waitcnt lgkmcnt(0)
        v_readfirstlane_b32 s{sT0}, v{t0}
        s_cmp_lt_u32 s{sT0}, {want}
        s_cbranch_scc1 L_p_poll{name}
        """)
        p.label(f"L_p_pok{name}")
        p("s_waitcnt lgkmcnt(0)")
    sMX, sMW, sDS = 91, 92, 93
    p(f"""
    s_mul_i32 s{sMX}, s{sWR}, 6144
    s_lshl_b32 s{sMW}, s{sWR}, 12
    s_add_u32 s{sMW}, s{sMW}, {WOFF}
    s_mul_i32 s{sT0}, s{sWR}, {48*1280}
    v_add_u32 v{vX[0]}, s{sT0}, v{vX[0]}
    v_add_u32 v{vX[1]}, s{sT0}, v{vX[1]}
    s_mul_i32 s{sT0}, s{sWR}, {16*3840}
    v_add_u32 v{vW[0]}, s{sT0}, v{vW[0]}
    v_add_u32 v{vW[1]}, s{sT0}, v{vW[1]}
    """)
    def dma_stage(st_):
        slot = (st_ & 3) * SLOT
        p(f"s_lshl_b32 s{sXO}, s{sKC}, 7\n s_mul_i32 s{sWO}, s{sKC}, {64*3840}\n s_add_u32 s{sM0}, s{sMX}, {slot}\n s_add_u32 s{sDS}, s{sMW}, {slot}")
        for kind, es in (("x", (0, 1, 2)), ("w", (0, 1)), ("x", (3, 4, 5)), ("w", (2, 3))):
            if kind == "w":
                hv = es[0] >> 1
                p(f"s_mov_b32 exec_lo, {WM[hv] & 0xffffffff:#x}\n s_mov_b32 exec_hi, {WM[hv] >> 32:#x}")
            for e in es:
                if kind == "x":
                    p(f"s_add_u32 s{sT0}, s{sXO}, {8*e*1280}\n s_add_u32 m0, s{sM0}, {1024*e}")
                    if 'nodma' not in OPT: p(f"buffer_load_dwordx4 v{vX[e & 1]}, s[{SRD_X}:{SRD_X+3}], s{sT0} offen lds")
                else:
                    p(f"s_add_u32 s{sT0}, s{sWO}, {4*e*3840}\n s_add_u32 m0, s{sDS}, {1024*e}")
                    if 'nodma' not in OPT: p(f"buffer_load_dwordx4 v{vW[e >> 1]}, s[{SRD_W}:{SRD_W+3}], s{sT0} offen lds")
            if kind == "w": p("s_mov_b64 exec, -1")
        p(f"""
        s_add_u32 s{sKC}, s{sKC}, 1
        s_cmp_eq_u32 s{sKC}, 10
        s_cselect_b32 s{sKC}, 0, s{sKC}
        """)
    def signal_full(st_):
        p(f"""
        v_mov_b32 v{vF}, {FULL(st_)}
        s_mov_b32 exec_lo, 1
        s_mov_b32 exec_hi, 0
        ds_add_u32 v{vF}, v{vOne}
        s_mov_b64 exec, -1
        """)
    on4 = V.alloc(4, align=4); vC0 = V.alloc(); vC1 = V.alloc()
    def clear_part():
        p(f"""
        v_mov_b32 v{on4}, -1
        v_mov_b32 v{on4+1}, -1
        v_mov_b32 v{on4+2}, -1
        v_mov_b32 v{on4+3}, -1
        s_lshl_b32 s{sT0}, s{sRB}, 4
        s_add_u32 s{sT0}, s{sT0}, s{sHP}
        s_mul_i32 s{sT0}, s{sT0}, {PART_STRIDE}
        s_mul_i32 s{sT1}, s{sWR}, 1280
        s_add_u32 s{sT0}, s{sT0}, s{sT1}
        s_add_u32 s{sT0}, s{sT0}, {WS_PART}
        v_lshl_add_u32 v{vC0}, v{vLane}, 4, s{sT0}
        s_add_u32 s{sT0}, s{sT0}, 1024
        v_lshl_add_u32 v{vC1}, v{vLane}, 2, s{sT0}
        buffer_store_dwordx4 v[{on4}:{on4+3}], v{vC0}, s[{SRD_WS}:{SRD_WS+3}], 0 offen sc1
        buffer_store_dword v{on4}, v{vC1}, s[{SRD_WS}:{SRD_WS+3}], 0 offen sc1
        """)
    def clear_o():
        p(f"""
        s_mul_i32 s{sT0}, s{sRB}, 12
        s_mul_i32 s{sT1}, s{sWR}, 3
        s_add_u32 s{sT0}, s{sT0}, s{sT1}
        s_mul_i32 s{sT0}, s{sT0}, {O_TILE}
        s_mul_i32 s{sT1}, s{sHP}, 1280
        s_add_u32 s{sT0}, s{sT0}, s{sT1}
        s_add_u32 s{sT0}, s{sT0}, {WS_O}
        v_lshl_add_u32 v{vC0}, v{vLane}, 4, s{sT0}
        s_add_u32 s{sT0}, s{sT0}, 1024
        v_lshl_add_u32 v{vC1}, v{vLane}, 2, s{sT0}
        """)
        for nt in range(3):
            p(f"s_mov_b32 s{sT1}, {O_TILE*nt}")
            p(f"buffer_store_dwordx4 v[{on4}:{on4+3}], v{vC0}, s[{SRD_WS}:{SRD_WS+3}], s{sT1} offen sc1")
            p(f"buffer_store_dword v{on4}, v{vC1}, s[{SRD_WS}:{SRD_WS+3}], s{sT1} offen sc1")
    def count(word, name):
        p(f"""
        s_cmp_lg_u32 s{sWR}, 0
        s_cbranch_scc1 L_p_nocnt{name}
        v_mov_b32 v{t0}, {word}
        v_mov_b32 v{t1}, 1
        s_mov_b32 exec_lo, 1
        s_mov_b32 exec_hi, 0
        global_atomic_add v{t0}, v{t1}, s[{S_DBG}:{S_DBG+1}] sc1
        s_mov_b64 exec, -1
        """)
        p.label(f"L_p_nocnt{name}")
    def check(word, name):
        p(f"""
        s_cmp_lg_u32 s{sWR}, 0
        s_cbranch_scc1 L_p_clr_ok{name}
        s_mov_b32 s{sCNT}, 0
        s_mov_b32 exec_lo, 1
        s_mov_b32 exec_hi, 0
        v_mov_b32 v{t0}, {word}
        """)
        p.label(f"L_p_clr{name}")
        p(f"""
        global_load_dword v{t1}, v{t0}, s[{S_DBG}:{S_DBG+1}] sc1
        s_waitcnt vmcnt(0)
        v_readfirstlane_b32 s{sT0}, v{t1}
        s_cmp_ge_u32 s{sT0}, {N_B}
        s_cbranch_scc1 L_p_clr_ok{name}
        s_add_u32 s{sCNT}, s{sCNT}, 1
        s_cmp_gt_u32 s{sCNT}, {1 << 12}
        s_cbranch_scc1 L_p_clr_ok{name}
        s_sleep 16
        s_branch L_p_clr{name}
        """)
        p.label(f"L_p_clr_ok{name}")
        p("s_mov_b64 exec, -1")
    def wo_prefetch():
        p(f"""
        s_lshr_b32 s{sT0}, s2, 3
        s_cmp_ge_u32 s{sT0}, 20
        s_cbranch_scc1 L_p_nopf
        s_mul_i32 s{sT0}, s{sT0}, 320
        s_mul_i32 s{sT1}, s{sWR}, 80
        s_add_u32 s{sT0}, s{sT0}, s{sT1}
        v_add_u32 v{t0}, s{sT0}, v{vLane}
        v_lshlrev_b32 v{t0}, 7, v{t0}
        buffer_load_dword v{VGPRS-1}, v{t0}, s[{SRD_WO}:{SRD_WO+3}], 0 offen
        s_mov_b32 exec_lo, 0xffff
        s_mov_b32 exec_hi, 0
        v_add_u32 v{t0}, {64*128}, v{t0}
        buffer_load_dword v{VGPRS-1}, v{t0}, s[{SRD_WO}:{SRD_WO+3}], 0 offen
        s_mov_b64 exec, -1
        """)
        p.label("L_p_nopf")
    LAF = int(common.os.environ.get("LAF", "2"))
    nclr = {}
    for st_ in range(10):
        if st_ == 3:
            p(f"v_mov_b32 v{vF}, {WPHI_DONE}"); poll(None, 8, "w")
        if st_ >= 4:
            p(f"v_mov_b32 v{vF}, {FREE(st_ - 4)}"); poll(None, 8, f"f{st_}")
        dma_stage(st_)
        if st_ == 1: stamp(p, 1)
        if 'pdiag' in OPT and st_ >= 3: stamp(p, st_)
        if st_ == 3: clear_part(); clear_o()
        done = st_ - (LAF - 1)
        if done >= 0:
            younger = 10 * (LAF - 1) + (8 if (st_ >= 3 and done <= 3 and done < st_ + 1 and st_ <= 3 + (LAF - 1) and done <= 3 and not (done == st_)) else 0)
            younger = 10 * (st_ - done) + (8 if (done <= 3 and st_ >= 3) else 0)
            p(f"s_waitcnt vmcnt({younger})")
            if done == 4:
                p(f"""
                v_mov_b32 v{vF}, {CLR_DONE}
                s_mov_b32 exec_lo, 1
                s_mov_b32 exec_hi, 0
                ds_add_rtn_u32 v{t0}, v{vF}, v{vOne}
                s_waitcnt lgkmcnt(0)
                v_readfirstlane_b32 s{sT0}, v{t0}
                v_mov_b32 v{t0}, {DBG_CNT}
                s_cmp_eq_u32 s{sT0}, 3
                s_cbranch_scc0 L_p_nocnt
                global_atomic_add v{t0}, v{vOne}, s[{S_DBG}:{S_DBG+1}] sc1
                """)
                p.label("L_p_nocnt")
                p("s_mov_b64 exec, -1")
            signal_full(done)
            if done == 0: stamp(p, 2)
    for done in range(10 - (LAF - 1), 10):
        p(f"s_waitcnt vmcnt({10 * (9 - done)})")
        signal_full(done)
    wo_prefetch()
    check(DBG_CNT, "p")
    p(f"""
    s_lshr_b32 s{sT0}, s2, 3               ; i
    s_cmp_ge_u32 s{sT0}, 10
    s_cselect_b32 s{sT1}, 1, 0
    s_mul_i32 s{sT1}, s{sT1}, 10
    s_sub_u32 s{sCG}, s{sT0}, s{sT1}
    ; LDS row k' = 8 z + e holds wo row 40 (z/5) + 4 (z%5) + 20 (e>>2) + (e&3);  z = 20 pw + i'
    v_lshrrev_b32 v{t0}, 3, v{vLane}            ; e
    v_bfe_u32 v{t1}, v{t0}, 1, 1
    v_lshlrev_b32 v{t1}, 1, v{t1}
    v_and_b32 v{t2}, 7, v{vLane}
    v_xor_b32 v{t1}, v{t1}, v{t2}
    v_xor_b32 v{t2}, 4, v{t1}
    v_lshrrev_b32 v{t3}, 2, v{t0}
    v_mul_u32_u24 v{t3}, 20, v{t3}
    v_and_b32 v{t0}, 3, v{t0}
    v_add_u32 v{t0}, v{t0}, v{t3}
    s_mul_i32 s{sT0}, s{sWR}, 160
    v_add_u32 v{t0}, s{sT0}, v{t0}
    v_mul_u32_u24 v{t0}, 1280, v{t0}
    s_lshl_b32 s{sT0}, s{sCG}, 7
    v_add_u32 v{t0}, s{sT0}, v{t0}
    v_lshl_add_u32 v{t3}, v{t2}, 4, v{t0}
    v_lshl_add_u32 v{t0}, v{t1}, 4, v{t0}
    s_mul_i32 s{sM0}, s{sWR}, 20480
    s_barrier
    """)
    vK0 = V.alloc(); vK1 = V.alloc()
    p(f"v_mov_b32 v{vK0}, v{t0}\n v_mov_b32 v{vK1}, v{t3}")
    p("s_cmp_ge_u32 s2, 160\n s_cbranch_scc1 L_p_nowo")
    for i in range(20):
        p(f"s_mov_b32 s{sT1}, {(40*(i//5) + 4*(i%5))*1280}\n s_add_u32 m0, s{sM0}, {WO_IMG + 1024*i}")
        p(f"buffer_load_dwordx4 v{vK1 if i & 1 else vK0}, s[{SRD_WO}:{SRD_WO+3}], s{sT1} offen lds")
    p.label("L_p_nowo")
    if 'pdiag' not in OPT: stamp(p, 4)
    p("s_waitcnt vmcnt(0)")
    if 'pdiag' not in OPT: stamp(p, 5)
    p("s_barrier")
    if 'pdiag' not in OPT: stamp(p, 6)
    if common.DIAG:
        stamps_flush(p, t0, t1, loader=True)
    p("s_endpgm")
    V.free = list(mark)
    p.label("L_b_compute")
    vWp = V.alloc(4, align=4); vWp2 = V.alloc(4, align=4)
    p(f"""
    s_mul_i32 s{sT0}, s{sHP}, 1600
    v_lshlrev_b32 v{t0}, 4, v{vLane}
    v_add_u32 v{t0}, s{sT0}, v{t0}
    v_add_u32 v{t1}, 1024, v{t0}
    s_waitcnt lgkmcnt(0)
    s_barrier
    global_load_dwordx4 v[{vWp}:{vWp+3}], v{t0}, s[{S_WPHI}:{S_WPHI+1}]
    s_mov_b32 exec_hi, 15
    global_load_dwordx4 v[{vWp2}:{vWp2+3}], v{t1}, s[{S_WPHI}:{S_WPHI+1}]
    s_mov_b32 exec_hi, -1
    """)
    PF0 = 1 if 'st2' in OPT else 3
    NPF = 0
    if 'l2pf' in OPT:
        NPF = 2
        a0 = V.alloc(); a1 = V.alloc(); a2 = V.alloc(); a3 = V.alloc(); d0 = V.alloc(); ad = V.alloc(2, align=2)
        p(f"""
        ; lane -> chunk PF0 + lane/10, item r = lane%10 ; it = min((i*8 + w)*10 + r, 1727)
        v_mul_u32_u24 v{a0}, 205, v{vLane}
        v_lshrrev_b32 v{a0}, 11, v{a0}               ; lane/10
        v_mul_u32_u24 v{a1}, 10, v{a0}
        v_sub_u32 v{a1}, v{vLane}, v{a1}             ; r
        s_lshl_b32 s{sT1}, s{sI}, 3
        s_add_u32 s{sT1}, s{sT1}, s{sW}
        s_mul_i32 s{sT1}, s{sT1}, 10
        v_add_u32 v{a1}, s{sT1}, v{a1}               ; it
        v_min_u32 v{a1}, 1727, v{a1}
        v_add_u32 v{a0}, {PF0}, v{a0}                ; chunk
        s_lshr_b32 s{sT2}, s{sJ}, 2
        s_mul_i32 s{sT2}, s{sT2}, 960
        v_add_u32 v{a2}, s{sT2}, v{a1}
        v_min_u32 v{a2}, 2047, v{a2}
        v_mul_u32_u24 v{a2}, 1280, v{a2}
        v_lshl_add_u32 v{a2}, v{a0}, 7, v{a2}
        ; W: u = it - 1152 ; krow = u/9 ; rem = u%9 ; seg = rem/3 ; ln = rem%3
        v_subrev_u32 v{a1}, 1152, v{a1}
        v_max_i32 v{d0}, 0, v{a1}
        v_mul_u32_u24 v{a3}, 7282, v{d0}
        v_lshrrev_b32 v{a3}, 16, v{a3}               ; krow
        v_mul_u32_u24 v{t3}, 9, v{a3}
        v_sub_u32 v{d0}, v{d0}, v{t3}                ; rem
        v_lshl_add_u32 v{a3}, v{a0}, 6, v{a3}
        v_mul_u32_u24 v{a3}, 3840, v{a3}
        v_mul_u32_u24 v{t3}, 86, v{d0}
        v_lshrrev_b32 v{t3}, 8, v{t3}                ; seg
        v_mul_u32_u24 v{a0}, 3, v{t3}
        v_sub_u32 v{d0}, v{d0}, v{a0}                ; ln
        v_mul_u32_u24 v{t3}, 1280, v{t3}
        v_lshl_add_u32 v{t3}, v{d0}, 7, v{t3}
        s_and_b32 s{sT2}, s{sJ}, 3
        s_mul_i32 s{sT2}, s{sT2}, 320
        s_and_b32 s{sT2}, s{sT2}, 0xffffff80
        v_add3_u32 v{a3}, v{a3}, v{t3}, s{sT2}
        v_cmp_gt_i32 vcc, 0, v{a1}                   ; x lanes
        v_cndmask_b32 v{a2}, v{a3}, v{a2}, vcc
        v_mov_b32 v{a0}, {6*64*3840}
        v_mov_b32 v{a1}, {6*128}
        v_cndmask_b32 v{a3}, v{a0}, v{a1}, vcc
        v_mov_b32 v{a0}, s{S_WQKV}
        v_mov_b32 v{a1}, s{S_X}
        v_cndmask_b32 v{ad}, v{a0}, v{a1}, vcc
        v_mov_b32 v{a0}, s{S_WQKV+1}
        v_mov_b32 v{a1}, s{S_X+1}
        v_cndmask_b32 v{ad+1}, v{a0}, v{a1}, vcc
        v_add_co_u32 v{ad}, vcc, v{ad}, v{a2}
        v_addc_co_u32 v{ad+1}, vcc, 0, v{ad+1}, vcc
        """)
        if 'st2' in OPT: p("s_barrier")
        p(f"""
        s_mov_b32 exec_hi, 0x0fffffff
        global_load_dword v{VGPRS-1}, v[{ad}:{ad+1}], off
        s_mov_b32 exec_hi, -1
        v_add_co_u32 v{ad}, vcc, v{ad}, v{a3}
        v_addc_co_u32 v{ad+1}, vcc, 0, v{ad+1}, vcc
        s_mov_b32 exec_lo, {0x3ff if PF0 == 3 else 0x3fffffff:#x}
        s_mov_b32 exec_hi, 0
        global_load_dword v{VGPRS-1}, v[{ad}:{ad+1}], off
        s_mov_b64 exec, -1
        """)
        for r in (a0, a1, a2, a3, d0): V.release(r)
        V.release(ad, 2)
    stamp(p, 1)
    srd(p, SRD_WS, S_WS, WS_SIZE)
    srd(p, SRD_O, S_OUT, 2048 * 2560)
    p(f"""
    s_mov_b32 s{sL}, {LOG2E:#x}
    s_mov_b32 s{sL+1}, {LOG2E:#x}
    s_mov_b32 s{sNEG}, {-3*SLOT & 0xffffffff:#x}
    """)
    vXa = V.alloc(2, align=1); vWa = V.alloc(4, align=1)
    for ks in range(2):
        p(f"""
        v_add_u32 v{t0}, {4*ks}, v{vG}
        v_lshrrev_b32 v{t1}, 1, v{vI}
        v_xor_b32 v{t0}, v{t0}, v{t1}
        v_lshlrev_b32 v{t0}, 4, v{t0}
        s_mul_i32 s{sT0}, s{sWR}, 48
        v_add_u32 v{t1}, s{sT0}, v{vI}
        v_lshl_add_u32 v{vXa+ks}, v{t1}, 7, v{t0}
        """)
    p(f"""
    v_and_b32 v{t0}, 1, v{vG}
    v_xor_b32 v{t0}, s{sTY}, v{t0}
    v_lshlrev_b32 v{t0}, 7, v{t0}
    v_bfe_u32 v{t2}, v{vI}, 1, 1
    v_lshl_add_u32 v{t0}, v{t2}, 4, v{t0}
    v_and_b32 v{t2}, 1, v{vI}
    v_lshl_add_u32 v{t0}, v{t2}, 3, v{t0}
    v_lshrrev_b32 v{t1}, 2, v{vI}
    v_lshl_add_u32 v{t2}, v{vG}, 3, v{t1}
    v_lshl_add_u32 v{t0}, v{t2}, 8, v{t0}
    v_add_u32 v{t0}, {WOFF}, v{t0}
    """)
    for mt in range(4):
        p(f"v_xor_b32 v{t2}, {mt}, v{t1}\n v_lshl_add_u32 v{vWa+mt}, v{t2}, 5, v{t0}")
    acc = V.alloc(48, align=4)
    for k in range(48): p(f"v_mov_b32 v{acc+k}, 0")
    WPB = 3 * SLOT
    vFA = V.alloc(16, align=4)
    FA, FB, FC0, FC1 = vFA, vFA + 4, vFA + 8, vFA + 12
    GT = V.alloc(32, align=1)
    for k in range(32): p(f"v_mov_b32 v{GT+k}, 0")
    p(f"""
    s_lshl_b32 s{sT0}, s{sW}, 11
    s_add_u32 s{sT0}, s{sT0}, {WPB}
    v_lshl_add_u32 v{t0}, v{vLane}, 4, s{sT0}
    v_lshrrev_b32 v{t1}, 2, v{vI}
    v_mul_u32_u24 v{t1}, 5, v{t1}
    v_and_b32 v{t2}, 3, v{vI}
    v_add_u32 v{t2}, v{t1}, v{t2}
    v_lshlrev_b32 v{t2}, 1, v{t2}
    v_mul_u32_u24 v{t3}, 160, v{vG}
    v_add3_u32 v{t2}, v{t2}, v{t3}, s{sT0}      ; t2: f = 5(m>>2)+(m&3)
    v_add_u32 v{t1}, 4, v{t1}
    v_lshlrev_b32 v{t1}, 1, v{t1}
    v_add3_u32 v{t1}, v{t1}, v{t3}, s{sT0}      ; t1: f = 5(m>>2)+4
    s_waitcnt vmcnt({NPF})
    """)
    p(f"""
    ds_write_b128 v{t0}, v[{vWp}:{vWp+3}]
    s_mov_b32 exec_hi, 15
    ds_write_b128 v{t0}, v[{vWp2}:{vWp2+3}] offset:1024
    s_mov_b32 exec_hi, -1
    s_waitcnt lgkmcnt(0)
    """)
    def gather(dst, addr, off, mask):
        p(f"s_mov_b32 exec_lo, {mask & 0xffffffff:#x}\n s_mov_b32 exec_hi, {mask >> 32:#x}")
        for e in range(4):
            p(f"ds_read_u16 v{GT + 2*(dst - vFA) + e}, v{addr} offset:{off + 40*e}")
    G0 = 0xFFFF; G01 = 0xFFFFFFFF; G123 = 0xFFFFFFFFFFFF0000; ALL = (1 << 64) - 1
    R0 = 0x1111111111111111; R1 = 0x2222222222222222
    gather(FA, t2, 0, ALL);            gather(FA + 2, t2, 16*40, G0)
    gather(FB, t2, 800 - 160, G123);   gather(FB + 2, t2, 800 + 12*40, G01)
    gather(FC0, t1, 0, R0);            gather(FC0 + 2, t1, 16*40, G0 & R0)
    gather(FC1, t1, 800 - 160, G123 & R1); gather(FC1 + 2, t1, 800 + 12*40, G01 & R1)
    p("s_mov_b64 exec, -1\n s_waitcnt lgkmcnt(0)")
    for k in range(16):
        p(f"v_lshl_or_b32 v{vFA+k}, v{GT+2*k+1}, 16, v{GT+2*k}")
    V.release(GT, 32); V.release(vWp, 4); V.release(vWp2, 4)
    XF = [V.alloc(12, align=4), V.alloc(12, align=4)]
    WF = [V.alloc(16, align=4), V.alloc(16, align=4)]
    def reads(ks):
        L = []
        for mt in range(4):
            for h in range(2):
                L.append(f"ds_read_b64_tr_b16 v[{WF[ks]+4*mt+2*h}:{WF[ks]+4*mt+2*h+1}], v{vWa+mt} offset:{8192*ks + 1024*h}")
        X = [f"ds_read_b128 v[{XF[ks]+4*nt}:{XF[ks]+4*nt+3}], v{vXa+ks} offset:{2048*nt}" for nt in range(3)]
        return [L[0], L[1], X[0], X[1], X[2]] + L[2:]
    def mfmas(ks):
        L = []
        for mt in range(4):
            for nt in range(3):
                a = acc + 16*nt + 4*mt
                L.append(f"v_mfma_f32_16x16x32_bf16 v[{a}:{a+3}], v[{WF[ks]+4*mt}:{WF[ks]+4*mt+3}], v[{XF[ks]+4*nt}:{XF[ks]+4*nt+3}], v[{a}:{a+3}]")
        return L
    def sched(main, slots):
        for i, m in enumerate(main):
            if 'nomfma' not in OPT: p(m)
            for x in slots.get(i, []):
                if ('nomfma' in OPT or 'nords' in OPT) and x.startswith('ds_read'): continue
                p(x)
    def advance():
        return [f"v_add_u32 v{r}, s{sSLOTD}, v{r}" for r in (vWa, vXa, vWa+1, vWa+2, vWa+3, vXa+1)]
    vFl = V.alloc(); vFr = V.alloc(); vFv = V.alloc(); vOne = V.alloc()
    p(f"""
    v_mov_b32 v{vOne}, 1
    v_mov_b32 v{vFv}, {WPHI_DONE}
    s_mov_b32 exec_lo, 1
    s_mov_b32 exec_hi, 0
    ds_add_u32 v{vFv}, v{vOne}
    s_mov_b64 exec, -1
    v_mov_b32 v{vFl}, {FULL(0)}
    v_mov_b32 v{vFr}, {FREE(0)}
    """)
    def cspin(addr, want, name):
        p(f"s_mov_b32 s{sCNT}, 0")
        p.label(f"L_b_sp{name}")
        p(f"""
        ds_read_b32 v{vFv}, v{addr}
        s_add_u32 s{sCNT}, s{sCNT}, 1
        s_cmp_gt_u32 s{sCNT}, {1 << 16}
        s_cbranch_scc1 L_b_spok{name}
        s_waitcnt lgkmcnt(0)
        v_readfirstlane_b32 s{sT1}, v{vFv}
        s_cmp_lt_u32 s{sT1}, {want}
        s_cbranch_scc1 L_b_sp{name}
        """)
        p.label(f"L_b_spok{name}")
        p("s_waitcnt lgkmcnt(0)")
    if 'kprio' in OPT:
        p(f"s_cmp_eq_u32 s{sTY}, 0\n s_cbranch_scc0 L_b_noprio\n s_setprio 1")
        p.label("L_b_noprio")
    if 'fdiag' not in OPT: stamp(p, 15)
    cspin(vFl, 4, "0")
    stamp(p, 2)
    if 'fdiag' not in OPT: cstamp(p, 13)
    for x in reads(0): p(x)
    p(f"s_mov_b32 s{sS}, 0\n v_add_u32 v{vFl}, {SLOT}, v{vFl}")
    sDF = 91
    def slot_delta():
        return [f"s_and_b32 s{sT0}, s{sS}, 3", f"s_cmp_eq_u32 s{sT0}, 3", f"s_cselect_b32 s{sSLOTD}, s{sNEG}, {SLOT}",
                f"s_cselect_b32 s{sDF}, 4, 0", f"s_add_u32 s{sDF}, s{sDF}, s{sSLOTD}",
                f"s_cmp_eq_u32 s{sT0}, 2", f"s_cselect_b32 s{sT2}, s{sNEG4}, {SLOT}"]
    sNEG4 = 90
    p(f"s_add_u32 s{sNEG4}, s{sNEG}, 4")
    RSP = int(common.os.environ.get("RSP", "2"))
    def read_slots(r, first):
        d = {}
        k = first
        while r:
            d[k] = r[:RSP]; r = r[RSP:]; k += 1
        return d
    def half0(chk=True):
        p("s_waitcnt lgkmcnt(0)")
        slots = read_slots(reads(1), 0)
        if chk: slots[5] = slots.get(5, []) + [f"ds_read_b32 v{vFv}, v{vFl}"]
        slots[7] = slot_delta()
        sched(mfmas(0), slots)
    nsp = [0]
    outl = []
    def half1(nxt=True):
        p("s_waitcnt lgkmcnt(0)")
        if nxt:
            nsp[0] += 1; k = nsp[0]
            m = mfmas(1)
            p(f"v_readfirstlane_b32 s{sT1}, v{vFv}")
            p("s_mov_b32 exec_lo, 1\n s_mov_b32 exec_hi, 0")
            p(f"ds_add_u32 v{vFr}, v{vOne}")
            p("s_mov_b64 exec, -1")
            if 'nomfma' not in OPT: p(m[0])
            for x in advance() + [f"v_add_u32 v{vFr}, s{sDF}, v{vFr}"]: p(x)
            p(f"s_cmp_lt_u32 s{sT1}, 4\n s_cbranch_scc1 L_b_out{k}")
            p.label(f"L_b_back{k}")
            outl.append(k)
            slots = read_slots(reads(0), 0)
            slots[6] = slots.get(6, []) + [f"v_add_u32 v{vFl}, s{sT2}, v{vFl}"]
            sched(m[1:], slots)
        else:
            sched(mfmas(1), {})
    p.label("L_b_main")
    half0(); half1()
    p(f"s_add_u32 s{sS}, s{sS}, 1\n s_cmp_lt_u32 s{sS}, 9\n s_cbranch_scc1 L_b_main")
    half0(chk=False); half1(nxt=False)
    stamp(p, 3)
    if 'fdiag' not in OPT: cstamp(p, 14)
    p("s_branch L_b_mainend")
    for k in outl:
        p.label(f"L_b_out{k}")
        cspin(vFl, 4, f"o{k}")
        p(f"s_branch L_b_back{k}")
    p.label("L_b_mainend")
    for r in (vFl, vFr, vFv, vOne): V.release(r)
    def wait_slots_free(name):
        p(f"v_mov_b32 v{t1}, {FREE(8)}\n s_mov_b32 s{sCNT}, 0")
        p.label(f"L_b_sf{name}")
        p(f"""
        ds_read_b32 v{t2}, v{t1}
        s_add_u32 s{sCNT}, s{sCNT}, 1
        s_cmp_gt_u32 s{sCNT}, {1 << 16}
        s_cbranch_scc1 L_b_sfok{name}
        s_waitcnt lgkmcnt(0)
        v_readfirstlane_b32 s{sT0}, v{t2}
        s_cmp_lt_u32 s{sT0}, 8
        s_cbranch_scc1 L_b_sf{name}
        """)
        p.label(f"L_b_sfok{name}")
        p("s_waitcnt lgkmcnt(0)")
    V.release(XF[0], 12); V.release(XF[1], 12); V.release(WF[0], 16); V.release(WF[1], 16)
    V.release(vXa, 2); V.release(vWa, 4)
    def wait_cleared(name, vN, vm):
        p(f"s_mov_b32 s{sCNT}, 0\n s_waitcnt vmcnt({vm})")
        p.label(f"L_b_wc{name}")
        p(f"""
        v_readfirstlane_b32 s{sT0}, v{vN}
        s_cmp_ge_u32 s{sT0}, {N_B}
        s_cbranch_scc1 L_b_wc_ok{name}
        s_add_u32 s{sCNT}, s{sCNT}, 1
        s_cmp_gt_u32 s{sCNT}, {SPIN_MAX}
        s_cbranch_scc1 L_b_wc_ok{name}
        v_mov_b32 v{vN}, {DBG_CNT}
        global_load_dword v{vN}, v{vN}, s[{S_DBG}:{S_DBG+1}] sc1
        s_waitcnt vmcnt(0)
        s_branch L_b_wc{name}
        """)
        p.label(f"L_b_wc_ok{name}")
    P = V.alloc(3 * 8, align=2)
    vRow = V.alloc()
    p(f"""
    s_mul_i32 s{sT0}, s{sWR}, 48
    v_add_u32 v{t0}, s{sT0}, v{vI}
    v_mul_u32_u24 v{vRow}, {RS}, v{t0}
    v_add_u32 v{vRow}, {PHI}, v{vRow}
    """)
    def cvtP(nt, mts):
        for mt in mts:
            a = acc + 16*nt + 4*mt
            p(f"v_cvt_pk_bf16_f32 v{P+8*nt+2*mt}, v{a}, v{a+1}")
            p(f"v_cvt_pk_bf16_f32 v{P+8*nt+2*mt+1}, v{a+2}, v{a+3}")
    for nt in range(3): cvtP(nt, (0, 1, 2, 3))
    def v_writes():
        vV2, vV3 = t0, t3
        p(f"""
        v_lshlrev_b32 v{t1}, 3, v{vG}
        v_add_u32 v{t2}, {192 + 16}, v{t1}
        v_add_u32 v{t3}, {192 + 64}, v{t1}
        v_cmp_gt_u32 vcc, 2, v{vG}
        v_add_u32 v{t0}, {280 - 16}, v{t1}
        v_cndmask_b32 v{t3}, v{t0}, v{t3}, vcc
        s_cmp_eq_u32 s{sTY}, 0
        s_cselect_b64 vcc, -1, 0
        v_cndmask_b32 v{t3}, v{t3}, v{t2}, vcc
        v_add_u32 v{vV3}, v{t3}, v{vRow}
        s_mul_i32 s{sT0}, s{sTY}, 48
        v_add3_u32 v{vV2}, v{t1}, v{vRow}, s{sT0}
        v_add_u32 v{vV2}, {192 - 16}, v{vV2}
        s_mov_b32 exec_lo, 0
        """)
        for nt in range(3): p(f"ds_write_b64 v{vV2}, v[{P+8*nt+4}:{P+8*nt+5}] offset:{16*RS*nt}")
        p("s_mov_b32 exec_lo, -1")
        for nt in range(3): p(f"ds_write_b64 v{vV3}, v[{P+8*nt+6}:{P+8*nt+7}] offset:{16*RS*nt}")
    if common.DUMP:
        p(f"""
        s_lshl_b32 s{sT0}, s2, 3
        s_add_u32 s{sT0}, s{sT0}, s{sW}
        s_mul_i32 s{sT0}, s{sT0}, {24*256}
        s_add_u32 s{sT0}, s{sT0}, {4<<20}
        v_lshl_add_u32 v{t0}, v{vLane}, 2, s{sT0}
        """)
        for k in range(24):
            p(f"buffer_store_dword v{P+k}, v{t0}, s[{SRD_WS}:{SRD_WS+3}], 0 offen offset:{256*(k%16)}")
            if k == 15: p(f"v_add_u32 v{t0}, 4096, v{t0}")
        p("s_waitcnt vmcnt(0)")
    V.release(acc, 48)
    if common.os.environ.get('RDBG'): print('free before softmax', [i for i,f in enumerate(V.free) if f])
    TTb = V.alloc(38, align=4)
    TT = [TTb, TTb + 12, TTb + 24]
    EE = [V.alloc(20, align=2) for _ in range(3)]
    SS = [[V.alloc(2, align=2) for _ in range(3)] for _ in range(3)]
    def softmax(nt, outs, X=None):
        T, E, S = TT[nt], EE[nt], SS[nt]
        if X is None: X = P + 8*nt
        X01 = X; X12 = X + 2
        a0, a1, b0, b1, c, d = S[0], S[0]+1, S[1], S[1]+1, S[2], S[2]+1
        L = [f"v_mfma_f32_16x16x32_bf16 v[{T}:{T+3}], v[{FA}:{FA+3}], v[{X01}:{X01+3}], 0",
             f"v_mfma_f32_16x16x32_bf16 v[{T+8}:{T+11}], v[{FC0}:{FC0+3}], v[{X01}:{X01+3}], 0",
             f"v_mfma_f32_16x16x32_bf16 v[{T+4}:{T+7}], v[{FB}:{FB+3}], v[{X12}:{X12+3}], 0",
             f"v_mfma_f32_16x16x32_bf16 v[{T+8}:{T+11}], v[{FC1}:{FC1+3}], v[{X12}:{X12+3}], v[{T+8}:{T+11}]"]
        x = [[T, T+1, T+2, T+3, T+8], [T+4, T+5, T+6, T+7, T+9]]
        for h, (a, b) in enumerate(((a0, b0), (a1, b1))):
            xs = x[h]
            L += [f"v_max3_f32 v{a}, v{xs[0]}, v{xs[1]}, v{xs[2]}", f"v_max3_f32 v{b}, -v{xs[0]}, -v{xs[1]}, -v{xs[2]}"]
        for h, (a, b) in enumerate(((a0, b0), (a1, b1))):
            xs = x[h]
            L += [f"v_max3_f32 v{a}, v{a}, v{xs[3]}, v{xs[4]}", f"v_max3_f32 v{b}, v{b}, -v{xs[3]}, -v{xs[4]}"]
        def allred(op):
            return [f"v_permlane16_swap_b32 v{a0}, v{b0}", f"v_permlane16_swap_b32 v{a1}, v{b1}",
                    f"{op} v{a0}, v{a0}, v{b0}", f"{op} v{a1}, v{a1}, v{b1}",
                    f"v_permlane32_swap_b32 v{a0}, v{a1}", f"{op} v{c}, v{a0}, v{a1}"]
        bc = [f"v_mov_b32 v{d}, v{c}", f"v_permlane32_swap_b32 v{c}, v{d}", f"v_mov_b32 v{a0}, v{c}", f"v_mov_b32 v{a1}, v{d}",
              f"v_permlane16_swap_b32 v{a0}, v{c}", f"v_permlane16_swap_b32 v{a1}, v{d}"]
        L += allred("v_max_f32") + [f"v_mul_f32 v{c}, s{sL}, v{c}"] + bc
        sel = [(0, 0), (0, 0), (1, 1), (1, 1), (0, 1)]
        for k in range(5):
            lo, hi = sel[k]
            if lo == 1:
                L.append(f"v_fma_f32 v{E+2*k}, v{T+2*k}, s{sL}, -v{a1}")
                L.append(f"v_fma_f32 v{E+2*k+1}, v{T+2*k+1}, s{sL}, -v{a1}")
                L.append(f"v_fma_f32 v{E+10+2*k}, -v{T+2*k}, s{sL}, -v{d}")
                L.append(f"v_fma_f32 v{E+10+2*k+1}, -v{T+2*k+1}, s{sL}, -v{d}")
                continue
            L.append(f"v_pk_fma_f32 v[{E+2*k}:{E+2*k+1}], v[{T+2*k}:{T+2*k+1}], s[{sL}:{sL+1}], v[{a0}:{a1}] op_sel:[0,0,{lo}] op_sel_hi:[1,1,{hi}] neg_lo:[0,0,1] neg_hi:[0,0,1]")
            L.append(f"v_pk_fma_f32 v[{E+10+2*k}:{E+10+2*k+1}], v[{T+2*k}:{T+2*k+1}], s[{sL}:{sL+1}], v[{c}:{d}] op_sel:[0,0,{lo}] op_sel_hi:[1,1,{hi}] neg_lo:[1,0,1] neg_hi:[1,0,1]")
        L += [f"v_exp_f32 v{E+k}, v{E+k}" for k in range(20)]
        L += [f"v_pk_add_f32 v[{T}:{T+1}], v[{E}:{E+1}], v[{E+2}:{E+3}]",
              f"v_pk_add_f32 v[{T+2}:{T+3}], v[{E+4}:{E+5}], v[{E+6}:{E+7}]",
              f"v_pk_add_f32 v[{T+4}:{T+5}], v[{E+10}:{E+11}], v[{E+12}:{E+13}]",
              f"v_pk_add_f32 v[{T+6}:{T+7}], v[{E+14}:{E+15}], v[{E+16}:{E+17}]",
              f"v_add_f32 v{a0}, v{T}, v{T+1}", f"v_add_f32 v{a1}, v{T+2}, v{T+3}",
              f"v_add_f32 v{b0}, v{T+4}, v{T+5}", f"v_add_f32 v{b1}, v{T+6}, v{T+7}",
              f"v_pk_add_f32 v[{a0}:{a1}], v[{a0}:{a1}], v[{E+8}:{E+9}]",
              f"v_pk_add_f32 v[{b0}:{b1}], v[{b0}:{b1}], v[{E+18}:{E+19}]"]
        L += allred("v_add_f32") + [f"v_rcp_f32 v{c}, v{c}"] + bc
        for k in range(5):
            lo, hi = sel[k]
            if lo == 1:
                L.append(f"v_mul_f32 v{E+2*k}, v{E+2*k}, v{a1}")
                L.append(f"v_mul_f32 v{E+2*k+1}, v{E+2*k+1}, v{a1}")
                L.append(f"v_mul_f32 v{E+10+2*k}, v{E+10+2*k}, v{d}")
                L.append(f"v_mul_f32 v{E+10+2*k+1}, v{E+10+2*k+1}, v{d}")
                continue
            L.append(f"v_pk_mul_f32 v[{E+2*k}:{E+2*k+1}], v[{E+2*k}:{E+2*k+1}], v[{a0}:{a1}] op_sel:[0,{lo}] op_sel_hi:[1,{hi}]")
            L.append(f"v_pk_mul_f32 v[{E+10+2*k}:{E+10+2*k+1}], v[{E+10+2*k}:{E+10+2*k+1}], v[{c}:{d}] op_sel:[0,{lo}] op_sel_hi:[1,{hi}]")
        pairs = [[(0, 1), (2, 3), (8, 10), (11, 12), (13, 18)], [(4, 5), (6, 7), (9, 14), (15, 16), (17, 19)]]
        for h in range(2):
            for k, (u, w) in enumerate(pairs[h]):
                L.append(f"v_cvt_pk_bf16_f32 v{outs[h]+k}, v{E+u}, v{E+w}")
        return L
    snap = list(V.free)
    p(f"s_cmp_eq_u32 s{sTY}, 0\n s_cbranch_scc0 L_b_qtype")
    stamp(p, 4)
    SPLIT = False
    if 'preset' in OPT:
        for nt in range(3):
            for k in range(20): p(f"v_mov_b32 v{EE[nt]+k}, 4.0")
    for x in merge([softmax(nt, [TT[nt], TT[nt] + 6]) for nt in range(3)]): p(x)
    if 'kprio' in OPT: p("s_setprio 0")
    if 'dumpT' in OPT:
        p(f"""
        s_lshl_b32 s{sT0}, s2, 2
        s_add_u32 s{sT0}, s{sT0}, s{sWR}
        s_mul_i32 s{sT0}, s{sT0}, {36*256}
        s_add_u32 s{sT0}, s{sT0}, {4<<20}
        v_lshl_add_u32 v{t0}, v{vLane}, 2, s{sT0}
        """)
        for k in range(36):
            p(f"buffer_store_dword v{TTb+k}, v{t0}, s[{SRD_WS}:{SRD_WS+3}], 0 offen offset:{256*(k%16)}")
            if k % 16 == 15: p(f"v_add_u32 v{t0}, 4096, v{t0}")
        p("s_waitcnt vmcnt(0)")
    wait_slots_free("k")
    v_writes()
    p(f"""
    s_mul_i32 s{sT0}, s{sWR}, 48
    s_add_u32 s{sT0}, s{sT0}, s{sROW0}
    v_add_u32 v{t0}, s{sT0}, v{vI}
    v_mov_b32 v{t1}, 0x3f80
    """)
    on = EE[0]
    p(f"v_mov_b32 v{on+1}, 0")
    for nt in range(3):
        p(f"""
        v_cmp_gt_u32 vcc, 0x800, v{t0}
        v_cndmask_b32 v{on}, 0, v{t1}, vcc
        ds_write_b64 v{vRow}, v[{on}:{on+1}] offset:{16*RS*nt + 272}
        v_add_u32 v{t0}, 16, v{t0}
        """)
    vPh = EE[0] + 2
    p(f"v_mul_u32_u24 v{t0}, 24, v{vG}\n v_add_u32 v{vPh}, v{t0}, v{vRow}")
    streams = [[]]
    for nt in range(3):
        for h in range(2):
            o = TT[nt] + 6*h; off = 16*RS*nt + 96*h
            streams[0] += [f"ds_write_b64 v{vPh}, v[{o}:{o+1}] offset:{off}", f"ds_write_b64 v{vPh}, v[{o+2}:{o+3}] offset:{off+8}",
                           f"ds_write_b32 v{vPh}, v{o+4} offset:{off+16}"]
    for x in merge(streams): p(x)
    p("s_waitcnt lgkmcnt(0)\n s_barrier")
    for r, n in [(P, 24), (vRow, 1), (vFA, 16), (TTb, 38)] + [(x, 20) for x in EE] + [(y, 2) for x in SS for y in x]:
        V.release(r, n)
    stamp(p, 5)
    sHD, sHF = 95, 96
    vAa = V.alloc(); vB0 = V.alloc()
    p(f"""
    s_and_b32 s{sHD}, s{sWR}, 1
    s_lshr_b32 s{sHF}, s{sWR}, 1
    v_lshrrev_b32 v{t0}, 2, v{vI}
    v_lshl_add_u32 v{t0}, v{vG}, 3, v{t0}
    v_mul_u32_u24 v{t0}, {RS}, v{t0}
    v_add_u32 v{t0}, {PHI}, v{t0}
    v_and_b32 v{t1}, 3, v{vI}
    v_mul_u32_u24 v{t2}, 24, v{t1}
    s_mul_i32 s{sT0}, s{sHD}, 96
    v_add3_u32 v{vAa}, v{t0}, v{t2}, s{sT0}
    s_mul_i32 s{sT0}, s{sHD}, 40
    v_lshlrev_b32 v{t2}, 3, v{t1}
    v_add_u32 v{t2}, s{sT0}, v{t2}
    v_add_u32 v{vB0}, 192, v{t2}
    s_add_u32 s{sT0}, s{sT0}, 224
    v_mov_b32 v{t2}, 272
    v_mov_b32 v{t3}, s{sT0}
    v_cmp_eq_u32 vcc, s{sHD}, v{t1}
    v_cndmask_b32 v{t2}, v{t2}, v{t3}, vcc
    s_cmp_eq_u32 s{sHF}, 0
    s_cselect_b64 vcc, -1, 0
    v_cndmask_b32 v{t2}, v{t2}, v{vB0}, vcc
    v_add_u32 v{vB0}, v{t0}, v{t2}
    """)
    KF = V.alloc(48, align=4); KD = V.alloc(12, align=4)
    def kvreads(ks):
        b = KF + 16 * (ks % 3); off = 32 * RS * ks
        for h in range(2):
            p(f"ds_read_b64_tr_b16 v[{b+12+2*h}:{b+12+2*h+1}], v{vB0} offset:{off + 4*RS*h}")
        for mt in range(3):
            for h in range(2):
                p(f"ds_read_b64_tr_b16 v[{b+4*mt+2*h}:{b+4*mt+2*h+1}], v{vAa} offset:{off + 4*RS*h + 8*mt}")
    kvreads(0); kvreads(1)
    vP0 = V.alloc(); vP1 = V.alloc()
    p(f"""
    s_lshl_b32 s{sT0}, s{sRB}, 4
    s_add_u32 s{sT0}, s{sT0}, s{sHP}
    s_mul_i32 s{sT0}, s{sT0}, {PART_STRIDE}
    s_mul_i32 s{sT1}, s{sWR}, 1280
    s_add_u32 s{sT0}, s{sT0}, s{sT1}
    s_add_u32 s{sT0}, s{sT0}, {WS_PART}
    v_lshl_add_u32 v{vP0}, v{vLane}, 4, s{sT0}
    s_add_u32 s{sT0}, s{sT0}, 1024
    v_lshl_add_u32 v{vP1}, v{vLane}, 2, s{sT0}
    """)
    for ks in range(6):
        p(f"s_waitcnt lgkmcnt({8 if ks < 5 else 0})")
        b = KF + 16 * (ks % 3)
        for mt in range(3):
            c = "0" if ks == 0 else f"v[{KD+4*mt}:{KD+4*mt+3}]"
            p(f"v_mfma_f32_16x16x32_bf16 v[{KD+4*mt}:{KD+4*mt+3}], v[{b+4*mt}:{b+4*mt+3}], v[{b+12}:{b+15}], {c}")
        if ks + 2 < 6: kvreads(ks + 2)
    q = V.alloc(6, align=4)
    p(f"""
    v_cvt_pk_bf16_f32 v{q}, v{KD}, v{KD+1}
    v_cvt_pk_bf16_f32 v{q+1}, v{KD+2}, v{KD+3}
    v_cvt_pk_bf16_f32 v{q+2}, v{KD+4}, v{KD+5}
    v_cvt_pk_bf16_f32 v{q+3}, v{KD+6}, v{KD+7}
    v_cvt_pk_bf16_f32 v{q+4}, v{KD+8}, v{KD+9}
    buffer_store_dwordx4 v[{q}:{q+3}], v{vP0}, s[{SRD_WS}:{SRD_WS+3}], 0 offen sc1
    buffer_store_dword v{q+4}, v{vP1}, s[{SRD_WS}:{SRD_WS+3}], 0 offen sc1
    """)
    stamp(p, 6)
    V.release(KF, 48); V.release(KD, 12)
    L = V.alloc(56, align=4)
    A10 = V.alloc(10, align=2); mx = V.alloc()
    p(f"""
    s_mul_i32 s{sT0}, s{sRB}, {16*PART_STRIDE}
    v_subrev_u32 v{t0}, s{sT0}, v{vP0}
    v_subrev_u32 v{t1}, s{sT0}, v{vP1}
    s_mov_b32 s{sCNT}, 0
    """)
    def ld_part(r):
        p(f"s_mov_b32 s{sT0}, {r*16*PART_STRIDE}")
        p(f"buffer_load_dwordx4 v[{L+4*r}:{L+4*r+3}], v{t0}, s[{SRD_WS}:{SRD_WS+3}], s{sT0} offen sc1")
        p(f"buffer_load_dword v{L+44+r}, v{t1}, s[{SRD_WS}:{SRD_WS+3}], s{sT0} offen sc1")
    sHI = 97; sLO = 90
    p(f"s_mov_b32 s{sHI}, 0x3f800000\n s_mov_b32 s{sLO}, 0x00003f80")
    if 'p1old' not in OPT:
        if 'noack1' not in OPT: p("s_waitcnt vmcnt(0)")
        for r in range(11): ld_part(r)
        sANY = 91
        p.label("L_b_att1")
        p(f"s_waitcnt vmcnt(0)\n s_mov_b32 s{sANY}, 0")
        for r in range(11):
            p(f"""
            v_max3_u32 v{mx}, v{L+4*r}, v{L+4*r+1}, v{L+4*r+2}
            v_max3_u32 v{mx}, v{mx}, v{L+4*r+3}, v{L+44+r}
            v_cmp_eq_u32 vcc, -1, v{mx}
            s_cbranch_vccz L_b_have1_{r}
            s_mov_b32 s{sANY}, 1
            """)
            ld_part(r)
            p.label(f"L_b_have1_{r}")
        p(f"""
        s_cmp_eq_u32 s{sANY}, 0
        s_cbranch_scc1 L_b_got1
        s_add_u32 s{sCNT}, s{sCNT}, 1
        s_cmp_le_u32 s{sCNT}, {SPIN_MAX}
        s_cbranch_scc1 L_b_att1
        s_waitcnt vmcnt(0)
        """)
        p.label("L_b_got1")
        stamp(p, 7)
        for r in range(11):
            for k in range(5):
                src = L + 4*r + k if k < 4 else L + 44 + r
                c0 = "0" if r == 0 else f"v{A10+2*k}"
                c1 = "0" if r == 0 else f"v{A10+2*k+1}"
                p(f"v_dot2_f32_bf16 v{A10+2*k}, v{src}, s{sLO}, {c0}")
                p(f"v_dot2_f32_bf16 v{A10+2*k+1}, v{src}, s{sHI}, {c1}")
    p.label("L_b_sum1")
    for k in range(5):
        p(f"v_cvt_pk_bf16_f32 v{L+k}, v{A10+2*k}, v{A10+2*k+1}")
    p(f"""
    s_lshl_b32 s{sT1}, s{sWR}, 10
    s_add_u32 s{sT1}, s{sT1}, {AST}
    v_lshl_add_u32 v{t0}, v{vLane}, 4, s{sT1}
    ds_write_b128 v{t0}, v[{L}:{L+3}]
    s_lshl_b32 s{sT1}, s{sWR}, 8
    s_add_u32 s{sT1}, s{sT1}, {AST + 4096}
    v_lshl_add_u32 v{t1}, v{vLane}, 2, s{sT1}
    ds_write_b32 v{t1}, v{L+4}
    s_waitcnt lgkmcnt(0)
    s_barrier
    """)
    stamp(p, 8)
    if 'noe3' not in OPT: p("s_barrier")
    p("s_branch L_b_final")
    V.free = list(snap)
    p.label("L_b_qtype")
    wait_slots_free("q")
    v_writes()
    p("s_waitcnt lgkmcnt(0)\n s_barrier")

    stamp(p, 4)
    for x in merge([softmax(nt, [TT[nt], TT[nt] + 6]) for nt in range(3)]): p(x)
    for nt in range(3):
        p(f"v_mov_b32 v{TT[nt]+5}, 0\n v_mov_b32 v{TT[nt]+11}, 0")
    p(f"v_mov_b32 v{TT[2]+12}, 0\n v_mov_b32 v{TT[2]+13}, 0")
    stamp(p, 5)
    for r, n in [(P, 24), (vRow, 1), (vFA, 16)] + [(x, 20) for x in EE] + [(y, 2) for x in SS for y in x]:
        V.release(r, n)
    p("s_waitcnt vmcnt(0) lgkmcnt(0)\n s_barrier")
    stamp(p, 6)
    AF = V.alloc(32, align=4)
    p(f"""
    v_lshlrev_b32 v{t0}, 4, v{vLane}
    v_add_u32 v{t0}, {AST}, v{t0}
    v_lshlrev_b32 v{t1}, 2, v{vLane}
    v_add_u32 v{t1}, {AST+4096}, v{t1}
    """)
    for k in range(4):
        p(f"ds_read_b128 v[{AF+8*k}:{AF+8*k+3}], v{t0} offset:{1024*k}")
        p(f"ds_read_b32 v{AF+8*k+4}, v{t1} offset:{256*k}")
    for k in range(4):
        for z in (5, 6, 7): p(f"v_mov_b32 v{AF+8*k+z}, 0")
    vOa = V.alloc(); vOb = V.alloc()
    ODs = [V.alloc(16, align=4) for _ in range(3)]; ws_ = [V.alloc(8, align=4) for _ in range(3)]
    sEPS = 97
    p(f"""
    s_mov_b32 s{sEPS}, 0x358637bd
    s_mul_i32 s{sT0}, s{sRB}, 12
    s_mul_i32 s{sT1}, s{sWR}, 3
    s_add_u32 s{sT0}, s{sT0}, s{sT1}
    s_mul_i32 s{sT0}, s{sT0}, {O_TILE}
    s_mul_i32 s{sT1}, s{sHP}, 1280
    s_add_u32 s{sT0}, s{sT0}, s{sT1}
    s_add_u32 s{sT0}, s{sT0}, {WS_O}
    v_lshl_add_u32 v{vOa}, v{vLane}, 4, s{sT0}
    v_lshlrev_b32 v{t0}, 4, v{vI}
    v_lshl_add_u32 v{t0}, v{vG}, 3, v{t0}
    s_add_u32 s{sT0}, s{sT0}, 1024
    v_add_u32 v{vOb}, s{sT0}, v{t0}
    v_cmp_gt_u32 vcc, 16, v{vLane}
    s_mov_b32 s{sT2}, {O_TILE}
    s_mov_b32 s{sT3}, {2*O_TILE}
    s_waitcnt lgkmcnt(0)
    """)
    stamp(p, 8)
    streams = []
    for nt in range(3):
        OD = ODs[nt]; w = ws_[nt]
        L = []
        for h in range(2):
            b = TT[nt] + 6*h
            a0_ = AF + 8*h; a1_ = AF + 8*(h + 2)
            o0 = OD + 8*h; o1 = o0 + 4
            L += [f"v_mfma_f32_16x16x32_bf16 v[{o0}:{o0+3}], v[{a0_}:{a0_+3}], v[{b}:{b+3}], 0",
                  f"v_mfma_f32_16x16x32_bf16 v[{o1}:{o1+3}], v[{a1_}:{a1_+3}], v[{b}:{b+3}], 0",
                  f"v_mfma_f32_16x16x32_bf16 v[{o0}:{o0+3}], v[{a0_+4}:{a0_+7}], v[{b+4}:{b+7}], v[{o0}:{o0+3}]",
                  f"v_mfma_f32_16x16x32_bf16 v[{o1}:{o1+3}], v[{a1_+4}:{a1_+7}], v[{b+4}:{b+7}], v[{o1}:{o1+3}]"]
        y = [w + 6, w + 4]
        L += [f"v_mov_b32 v{y[0]}, v{OD+4}", f"v_mov_b32 v{y[1]}, v{OD+12}",
              f"v_permlane16_swap_b32 v{OD+4}, v{y[0]}", f"v_permlane16_swap_b32 v{y[1]}, v{OD+12}",
              f"v_add_f32 v{y[0]}, s{sEPS}, v{y[0]}", f"v_add_f32 v{y[1]}, s{sEPS}, v{y[1]}",
              f"v_rcp_f32 v{y[0]}, v{y[0]}", f"v_rcp_f32 v{y[1]}, v{y[1]}"]
        for h in range(2):
            for r in range(0, 8, 2):
                a = OD + 8*h + r
                L.append(f"v_pk_mul_f32 v[{a}:{a+1}], v[{a}:{a+1}], v[{y[h]}:{y[h]+1}] op_sel:[0,0] op_sel_hi:[1,0]")
        L += [f"v_cvt_pk_bf16_f32 v{w}, v{OD}, v{OD+1}", f"v_cvt_pk_bf16_f32 v{w+1}, v{OD+2}, v{OD+3}",
              f"v_cvt_pk_bf16_f32 v{w+2}, v{OD+8}, v{OD+9}", f"v_cvt_pk_bf16_f32 v{w+3}, v{OD+10}, v{OD+11}",
              f"v_cvt_pk_bf16_f32 v{OD+4}, v{OD+4}, v{OD+5}", f"v_cvt_pk_bf16_f32 v{OD+5}, v{OD+6}, v{OD+7}",
              f"v_cvt_pk_bf16_f32 v{OD+12}, v{OD+12}, v{OD+13}", f"v_cvt_pk_bf16_f32 v{OD+13}, v{OD+14}, v{OD+15}",
              f"v_cndmask_b32 v{w+4}, v{OD+12}, v{OD+4}, vcc", f"v_cndmask_b32 v{w+5}, v{OD+13}, v{OD+5}, vcc"]
        streams.append(L)
    for x in merge(streams): p(x)
    if 'fdiag' not in OPT: stamp(p, 15)
    so = ["0", f"s{sT2}", f"s{sT3}"]
    for nt in range(3):
        p(f"buffer_store_dwordx4 v[{ws_[nt]}:{ws_[nt]+3}], v{vOa}, s[{SRD_WS}:{SRD_WS+3}], {so[nt]} offen sc1")
    p("s_mov_b32 exec_hi, 0")
    for nt in range(3):
        p(f"buffer_store_dwordx2 v[{ws_[nt]+4}:{ws_[nt]+5}], v{vOb}, s[{SRD_WS}:{SRD_WS+3}], {so[nt]} offen sc1")
    p("s_mov_b32 exec_hi, -1")
    stamp(p, 7)
    if 'noe3' not in OPT: p("s_waitcnt vmcnt(0)\n s_barrier")
    p.label("L_b_final")
    V.free = [i > t3 for i in range(V.limit)]
    sRQ, sKH = 95, 96
    OF = V.alloc(80, align=4)
    vR = V.alloc(); vPl = V.alloc(); mx = V.alloc(); pv = V.alloc()
    p(f"""
    s_cmp_ge_u32 s2, 160
    s_cbranch_scc1 L_b_done
    s_lshr_b32 s{sT0}, s2, 3
    s_cmp_ge_u32 s{sT0}, 10
    s_cselect_b32 s{sT1}, 1, 0
    s_and_b32 s{sT2}, s2, 7
    s_lshl_b32 s{sT2}, s{sT2}, 1
    s_add_u32 s{sRT}, s{sT2}, s{sT1}
    s_mul_i32 s{sT1}, s{sT1}, 10
    s_sub_u32 s{sCG}, s{sT0}, s{sT1}
    s_and_b32 s{sRQ}, s{sW}, 3
    s_lshr_b32 s{sKH}, s{sW}, 2
    s_lshl_b32 s{sT0}, s{sRT}, 3
    s_lshl_b32 s{sT1}, s{sRQ}, 1
    s_add_u32 s{sT0}, s{sT0}, s{sT1}
    s_mul_i32 s{sT0}, s{sT0}, {O_TILE}
    s_mul_i32 s{sT1}, s{sKH}, 10240
    s_add_u32 s{sT0}, s{sT0}, s{sT1}
    s_add_u32 s{sT0}, s{sT0}, {WS_O}
    v_lshl_add_u32 v{vR}, v{vLane}, 4, s{sT0}
    s_mov_b32 s{sCNT}, 0
    """)
    vA = V.alloc(4, align=1)
    p(f"""
    v_lshrrev_b32 v{t2}, 2, v{vI}
    v_bfe_u32 v{t3}, v{t2}, 1, 1
    v_and_b32 v{t0}, 1, v{vG}
    v_lshl_add_u32 v{t3}, v{t0}, 1, v{t3}        ; psi
    v_bfe_u32 v{t0}, v{vI}, 1, 1
    v_lshlrev_b32 v{t0}, 4, v{t0}
    v_and_b32 v{t1}, 1, v{vI}
    v_lshl_add_u32 v{t0}, v{t1}, 3, v{t0}
    v_lshl_add_u32 v{t2}, v{vG}, 3, v{t2}
    v_lshl_add_u32 v{t0}, v{t2}, 7, v{t0}
    s_mul_i32 s{sT1}, s{sKH}, {320*128}
    v_add_u32 v{t0}, s{sT1}, v{t0}
    """)
    for mt in range(4):
        p(f"v_xor_b32 v{t1}, {mt}, v{t3}\n v_lshl_add_u32 v{vA+mt}, v{t1}, 5, v{t0}")
    FAc = V.alloc(32, align=4); WA = [V.alloc(16, align=4), V.alloc(16, align=4)]
    def wreads(ks):
        b = WA[ks & 1]
        return [f"ds_read_b64_tr_b16 v[{b+4*mt+2*h}:{b+4*mt+2*h+1}], v{vA+mt} offset:{WO_IMG + 4096*ks + 512*h}" for mt in range(4) for h in range(2)]
    def ld_o(ks):
        for nt in range(2):
            p(f"s_mov_b32 s{sT1}, {O_TILE*nt + 4096*(ks >> 2)}")
            p(f"buffer_load_dwordx4 v[{OF+8*ks+4*nt}:{OF+8*ks+4*nt+3}], v{vR}, s[{SRD_WS}:{SRD_WS+3}], s{sT1} offen offset:{1024*(ks & 3)} sc1")
    sMISS = 90
    def chk_o(ks):
        o = OF + 8*ks
        p(f"""
        v_max3_u32 v{mx}, v{o}, v{o+1}, v{o+2}
        v_max3_u32 v{pv}, v{o+3}, v{o+4}, v{o+5}
        v_max3_u32 v{mx}, v{mx}, v{o+6}, v{o+7}
        v_max_u32 v{mx}, v{mx}, v{pv}
        v_cmp_eq_u32 vcc, -1, v{mx}
        """)
    def mf_o(ks, wb, fill=()):
        k = 0
        for mt in range(4):
            for nt in range(2):
                a = FAc + 16*nt + 4*mt
                p(f"v_mfma_f32_16x16x32_bf16 v[{a}:{a+3}], v[{wb+4*mt}:{wb+4*mt+3}], v[{OF+8*ks+4*nt}:{OF+8*ks+4*nt+3}], v[{a}:{a+3}]")
                if k < 4 and fill:
                    p(fill[2*k]); p(fill[2*k+1])
                k += 1
    PD = int(common.os.environ.get("PD", "4"))
    if 'fdiag' in OPT: stamp(p, 13)
    for ks in range(min(PD, 10)): ld_o(ks)
    if 'fdiag' in OPT: stamp(p, 14)
    for x in wreads(0): p(x)
    for k in range(32): p(f"v_mov_b32 v{FAc+k}, 0")
    p(f"s_mov_b32 s{sMISS}, 0")
    for ks in range(10):
        nxt = wreads(ks + 1) if ks < 9 else []
        p(f"s_waitcnt vmcnt({2*min(PD-1, 9-ks)})")
        if ks + PD < 10: ld_o(ks + PD)
        chk_o(ks)
        p(f"s_cbranch_vccz L_b_ok2_{ks}")
        p(f"s_bitset1_b32 s{sMISS}, {ks}")
        ld_o(ks)
        p("s_waitcnt lgkmcnt(0)")
        for x in nxt: p(x)
        p(f"s_branch L_b_nx2_{ks}")
        p.label(f"L_b_ok2_{ks}")
        if ks == 0: stamp(p, 9)
        p("s_waitcnt lgkmcnt(0)")
        mf_o(ks, WA[ks & 1], nxt)
        p.label(f"L_b_nx2_{ks}")
    if 'fdiag' in OPT:
        stamp(p, 1)
        p(f"s_bcnt1_i32_b32 s79, s{sMISS}")
    p(f"s_cmp_eq_u32 s{sMISS}, 0\n s_cbranch_scc1 L_b_ok2")
    p.label("L_b_p2")
    p("s_waitcnt vmcnt(0)")
    for ks in range(10):
        p(f"s_bitcmp1_b32 s{sMISS}, {ks}\n s_cbranch_scc0 L_b_p2n_{ks}")
        chk_o(ks)
        p(f"s_cbranch_vccnz L_b_p2r_{ks}")
        b = WA[0]
        for x in [f"ds_read_b64_tr_b16 v[{b+4*mt+2*h}:{b+4*mt+2*h+1}], v{vA+mt} offset:{WO_IMG + 4096*ks + 512*h}" for mt in range(4) for h in range(2)]: p(x)
        p("s_waitcnt lgkmcnt(0)")
        mf_o(ks, b)
        p(f"s_bitset0_b32 s{sMISS}, {ks}\n s_branch L_b_p2n_{ks}")
        p.label(f"L_b_p2r_{ks}")
        ld_o(ks)
        p.label(f"L_b_p2n_{ks}")
    p(f"""
    s_cmp_eq_u32 s{sMISS}, 0
    s_cbranch_scc1 L_b_ok2
    s_add_u32 s{sCNT}, s{sCNT}, 1
    s_cmp_le_u32 s{sCNT}, {SPIN_MAX}
    s_cbranch_scc1 L_b_p2
    s_waitcnt vmcnt(0)
    """)
    p.label("L_b_ok2")
    stamp(p, 10)
    p(f"""
    s_lshl_b32 s{sT0}, s{sW}, 12
    s_add_u32 s{sT0}, s{sT0}, {RED}
    v_lshl_add_u32 v{t0}, v{vLane}, 4, s{sT0}
    s_xor_b32 s{sT1}, s{sW}, 4
    s_lshl_b32 s{sT1}, s{sT1}, 12
    s_add_u32 s{sT1}, s{sT1}, {RED}
    v_lshl_add_u32 v{t1}, v{vLane}, 4, s{sT1}
    s_lshl_b32 s{sT0}, s{sRT}, 7
    s_lshl_b32 s{sT1}, s{sRQ}, 5
    s_add_u32 s{sT0}, s{sT0}, s{sT1}
    s_lshl_b32 s{sT1}, s{sKH}, 4
    s_add_u32 s{sT0}, s{sT0}, s{sT1}
    v_add_u32 v{t2}, s{sT0}, v{vI}
    v_mul_u32_u24 v{t2}, 2560, v{t2}
    v_and_b32 v{t3}, 1, v{vG}
    v_lshl_add_u32 v{t2}, v{t3}, 5, v{t2}
    v_lshrrev_b32 v{t3}, 1, v{vG}
    v_lshl_add_u32 v{t2}, v{t3}, 4, v{t2}
    s_lshl_b32 s{sT0}, s{sCG}, 7
    s_add_u32 s{sT0}, s{sT0}, 1280
    v_add_u32 v{t2}, s{sT0}, v{t2}
    s_cmp_eq_u32 s{sKH}, 0
    s_cbranch_scc1 L_b_red0
    """)
    def finish(keep):
        p("s_waitcnt lgkmcnt(0)\n s_barrier")
        for k in range(4):
            p(f"ds_read_b128 v[{OF+4*k}:{OF+4*k+3}], v{t1} offset:{1024*k}")
        for a2 in range(2):
            for mt in (2*a2, 2*a2 + 1):
                a = keep + 4*mt; b = OF + 4*mt
                p(f"s_waitcnt lgkmcnt({3-mt})")
                p(f"v_pk_add_f32 v[{a}:{a+1}], v[{a}:{a+1}], v[{b}:{b+1}]")
                p(f"v_pk_add_f32 v[{a+2}:{a+3}], v[{a+2}:{a+3}], v[{b+2}:{b+3}]")
            A = keep + 8*a2; B = A + 4; d = OF + 16 + 4*a2
            p(f"""
            v_cvt_pk_bf16_f32 v{d}, v{A}, v{A+1}
            v_cvt_pk_bf16_f32 v{d+1}, v{A+2}, v{A+3}
            v_cvt_pk_bf16_f32 v{d+2}, v{B}, v{B+1}
            v_cvt_pk_bf16_f32 v{d+3}, v{B+2}, v{B+3}
            v_permlane16_swap_b32 v{d}, v{d+2}
            v_permlane16_swap_b32 v{d+1}, v{d+3}
            buffer_store_dwordx4 v[{d}:{d+3}], v{t2}, s[{SRD_O}:{SRD_O+3}], 0 offen offset:{64*a2}
            """)
    for k in range(4):
        p(f"ds_write_b128 v{t0}, v[{FAc+4*k}:{FAc+4*k+3}] offset:{1024*k}")
    finish(FAc + 16)
    p("s_branch L_b_done")
    p.label("L_b_red0")
    for k in range(4):
        p(f"ds_write_b128 v{t0}, v[{FAc+16+4*k}:{FAc+16+4*k+3}] offset:{1024*k}")
    finish(FAc)
    p.label("L_b_done")
    dbgmax(p, 9, t2, t3, sW)
    stamp(p, 11)
    if common.DIAG:
        p('s_waitcnt vmcnt(0)')
        stamp(p, 12)
        stamps_flush(p, t0, t1)
    return V
```

```python
from common import *
import common

REG = 20416
K1OFF = 4224
UOFF = 8384
U1D = 4576
TB = 8448 + 128

def cmul(p, z, x, y):
    p(f"v_pk_mul_f32 v[{z}:{z+1}], v[{x}:{x+1}], v[{y}:{y+1}] op_sel:[0,0] op_sel_hi:[1,0]")
    p(f"v_fma_f32 v{z}, -v{x+1}, v{y+1}, v{z}")
    p(f"v_fma_f32 v{z+1}, v{x}, v{y+1}, v{z+1}")

def exp_bf16(p, V, dst, x, sL, sLlo, sLn2):
    t = V.alloc(); e = V.alloc()
    p(f"v_mul_f32 v{t}, s{sL}, v{x}")
    p(f"v_fma_f32 v{e}, v{x}, s{sL}, -v{t}")
    p(f"v_fma_f32 v{e}, v{x}, s{sLlo}, v{e}")
    p(f"v_exp_f32 v{t}, v{t}")
    p(f"v_mul_f32 v{e}, s{sLn2}, v{e}")
    p(f"v_fma_f32 v{t}, v{t}, v{e}, v{t}")
    p(f"v_cvt_pk_bf16_f32 v{t}, v{t}, v{t}")
    p(f"v_lshlrev_b32 v{dst}, 16, v{t}")
    V.release(t); V.release(e)

def gen_part_a(p, final_hook=None):
    V = VAlloc(VGPRS - 2, start=1)
    sA, sJ, sCG, sW, sC = 32, 33, 34, 35, 36
    sREG = 37
    sL, sLlo, sLn2 = 38, 39, 40
    sSEL = 41
    SRD_U = 44; SRD_O = 48
    sT0, sT1 = 52, 53
    p(f"""
    s_sub_u32 s{sA}, s2, {N_B}
    s_and_b32 s{sJ}, s{sA}, 7
    s_lshr_b32 s{sT0}, s{sA}, 3
    s_mul_i32 s{sCG}, s{sJ}, 10
    s_add_u32 s{sCG}, s{sCG}, s{sT0}
    """)
    if 'linemap' in common.OPT:
        p(f"""
        s_lshl_b32 s{sCG}, s{sJ}, 3
        s_add_u32 s{sCG}, s{sCG}, s{sT0}          ; i < 8 : 8 j + i
        s_cmp_lt_u32 s{sT0}, 8
        s_cbranch_scc1 L_a_map
        s_lshr_b32 s{sCG}, s{sJ}, 2
        s_lshl_b32 s{sCG}, s{sCG}, 3
        s_and_b32 s{sT1}, s{sJ}, 3
        s_lshl_b32 s{sT1}, s{sT1}, 1
        s_add_u32 s{sCG}, s{sCG}, s{sT1}
        s_add_u32 s{sCG}, s{sCG}, s{sT0}
        s_add_u32 s{sCG}, s{sCG}, 56              ; 64 + 8 (j>>2) + 2 (j&3) + (i - 8)
        """)
        p.label("L_a_map")
    vLane = V.alloc(name="lane")
    vT = V.alloc()
    p(f"""
    v_lshrrev_b32 v{vT}, 6, v0
    v_and_b32 v{vLane}, 63, v0
    v_readfirstlane_b32 s{sW}, v{vT}
    s_cmp_ge_u32 s{sW}, 8
    s_cbranch_scc1 L_end
    s_mov_b32 s{sL}, {LOG2E:#x}
    s_mov_b32 s{sLlo}, {LOG2E_LO:#x}
    s_mov_b32 s{sLn2}, {LN2:#x}
    s_mov_b32 s{sSEL}, 0x07060100
    s_lshl_b32 s{sC}, s{sCG}, 3
    s_add_u32 s{sC}, s{sC}, s{sW}
    s_mul_i32 s{sREG}, s{sW}, {REG}
    """)
    p("s_waitcnt lgkmcnt(0)")
    srd(p, SRD_U, S_U, 2048 * 1280)
    srd(p, SRD_O, S_OUT, 2048 * 2560)
    if 'noupf' not in common.OPT:
        vPf = V.alloc()
        p(f"""
        s_lshr_b32 s{sT0}, s{sA}, 3
        s_mul_i32 s{sT0}, s{sT0}, 205
        v_lshrrev_b32 v{vPf}, 1, v0
        v_add_u32 v{vPf}, s{sT0}, v{vPf}
        v_mul_u32_u24 v{vPf}, 1280, v{vPf}
        s_mul_i32 s{sT0}, s{sJ}, 160
        s_and_b32 s{sT0}, s{sT0}, 0xffffff80
        v_and_b32 v{vT}, 1, v0
        v_lshlrev_b32 v{vT}, 7, v{vT}
        v_add3_u32 v{vPf}, v{vPf}, v{vT}, s{sT0}
        v_cmp_gt_u32 vcc, 410, v0
        s_and_saveexec_b64 s[60:61], vcc
        s_cbranch_execz L_a_nopf
        buffer_load_dword v{VGPRS-2}, v{vPf}, s[{SRD_U}:{SRD_U+3}], 0 offen
        """)
        p.label("L_a_nopf")
        p("s_mov_b64 exec, s[60:61]")
        V.release(vPf)
    vLA = V.alloc(); vAI = V.alloc(); vCR = V.alloc(); vCI = V.alloc(); vDT = V.alloc(); vD = V.alloc(name="D")
    vA = V.alloc()
    p(f"""
    s_lshl_b32 s{sT0}, s{sC}, 8
    v_lshl_add_u32 v{vA}, v{vLane}, 2, s{sT0}
    s_lshl_b32 s{sT1}, s{sC}, 1
    v_mov_b32 v{vT}, s{sT1}
    global_load_ushort v{vDT}, v{vT}, s[{S_LDT}:{S_LDT+1}]
    global_load_dword v{vLA}, v{vA}, s[{S_LAR}:{S_LAR+1}]
    global_load_dword v{vAI}, v{vA}, s[{S_AIM}:{S_AIM+1}]
    global_load_dword v{vCR}, v{vA}, s[{S_CRE}:{S_CRE+1}]
    global_load_dword v{vCI}, v{vA}, s[{S_CIM}:{S_CIM+1}]
    global_load_ushort v{vD}, v{vT}, s[{S_DSK}:{S_DSK+1}]
    """)
    V.release(vA)
    vU = V.alloc(20, align=4, name="U")
    vUa = V.alloc(); vUb = V.alloc()
    p(f"""
    v_mul_u32_u24 v{vUa}, 5120, v0
    s_lshl_b32 s{sT0}, s{sCG}, 4
    v_add_u32 v{vUa}, s{sT0}, v{vUa}
    v_subrev_u32 v{vUb}, 1280, v{vUa}
    """)
    uloads = [f"buffer_load_dwordx4 v[{vU}:{vU+3}], v{vUb}, s[{SRD_U}:{SRD_U+3}], 0 offen"] + \
             [f"buffer_load_dwordx4 v[{vU+4+4*k}:{vU+7+4*k}], v{vUa}, s[{SRD_U}:{SRD_U+3}], 0 offen offset:{1280*k}" for k in range(4)]
    stamp(p)
    vWA = V.alloc(16, align=1)
    vL4 = V.alloc()
    p(f"v_lshlrev_b32 v{vL4}, 2, v{vLane}")
    for i in range(16):
        p(f"v_xor_b32 v{vWA+i}, {i << 4}, v{vL4}")
        p(f"v_add_u32 v{vWA+i}, s{sREG}, v{vWA+i}")
    vRA = V.alloc(4, align=1)
    vI = V.alloc(); vG = V.alloc(name="g"); vN = vI
    p(f"""
    v_and_b32 v{vI}, 15, v{vLane}
    v_lshrrev_b32 v{vG}, 4, v{vLane}
    """)
    for ks in range(4):
        p(f"""
        v_add_u32 v{vT}, {4*ks}, v{vG}
        v_xor_b32 v{vT}, v{vT}, v{vI}
        v_lshlrev_b32 v{vT}, 4, v{vT}
        v_lshl_add_u32 v{vT}, v{vI}, 8, v{vT}
        v_add_u32 v{vRA+ks}, s{sREG}, v{vT}
        """)
    V.release(vL4)
    p("s_waitcnt vmcnt(0)")
    p(f"v_lshlrev_b32 v{vDT}, 16, v{vDT}")
    exp_bf16(p, V, vDT, vDT, sL, sLlo, sLn2)
    p(f"v_lshlrev_b32 v{vD}, 16, v{vD}")
    stamp(p)
    vAcc = V.alloc(12, align=4, name="acc")
    vAl = V.alloc(); vBe = V.alloc()
    w1 = V.alloc(2); w2 = V.alloc(2); w4 = V.alloc(2); w8 = V.alloc(2); w128 = V.alloc(2)
    G = [V.alloc(2), V.alloc(2)]
    X = [V.alloc(2), V.alloc(2)]
    Y = [V.alloc(2), V.alloc(2)]
    tmp = [V.alloc() for _ in range(4)]
    fr = V.alloc(16, align=4)
    tc = [0]
    def store(val, row, tile, negim=False):
        t = tmp[tc[0] % 4]; tc[0] += 1
        p(f"v_cvt_pk_bf16_f32 v{t}, v{val}, {'-' if negim else ''}v{val+1}")
        p(f"ds_write_b32 v{vWA+row}, v{t} offset:{tile*4096 + row*256}")
    def cexp(dst, pw):
        a, b = tmp[0], tmp[1]
        p(f"""
        v_mul_f32 v{a}, {float(pw)}, v{vAl}
        v_mul_f32 v{b}, {float(pw)}, v{vBe}
        """ if pw in (1, 2, 4) else f"""
        v_mul_f32 v{a}, {hex(f32bits(pw))}, v{vAl}
        v_mul_f32 v{b}, {hex(f32bits(pw))}, v{vBe}
        """)
        p(f"""
        v_fract_f32 v{b}, v{b}
        v_exp_f32 v{a}, v{a}
        v_cos_f32 v{dst}, v{b}
        v_sin_f32 v{dst+1}, v{b}
        v_mul_f32 v{dst}, v{dst}, v{a}
        v_mul_f32 v{dst+1}, v{dst+1}, v{a}
        """)
    sPS = 58
    for k in range(12): p(f"v_mov_b32 v{vAcc+k}, 0")
    p(f"s_mov_b32 s{sPS}, 0")
    p.label("L_a_pass")
    ul = [0]
    def uload():
        k = ul[0]; ul[0] += 1
        if 'ulate' in common.OPT: return
        if 'up1' in common.OPT:
            p(f"s_cmp_eq_u32 s{sPS}, 0\n s_cbranch_scc1 L_a_nou{k}")
            p(uloads[k])
            p.label(f"L_a_nou{k}")
            return
        p(f"s_cmp_lg_u32 s{sPS}, 0\n s_cbranch_scc1 L_a_nou{k}")
        p(uloads[k])
        p.label(f"L_a_nou{k}")
    t0, t1, t2, t3 = tmp
    p(f"""
    v_lshrrev_b32 v{t0}, s{sPS}, v{vLA}
    v_lshrrev_b32 v{t1}, s{sPS}, v{vAI}
    v_lshrrev_b32 v{t2}, s{sPS}, v{vCR}
    v_lshrrev_b32 v{t3}, s{sPS}, v{vCI}
    v_lshlrev_b32 v{t0}, 16, v{t0}
    v_lshlrev_b32 v{t1}, 16, v{t1}
    v_lshlrev_b32 v{t2}, 16, v{t2}
    v_lshlrev_b32 v{t3}, 16, v{t3}
    """)
    exp_bf16(p, V, t0, t0, sL, sLlo, sLn2)
    p(f"""
    v_mul_f32 v{t0}, v{t0}, v{vDT}
    v_mul_f32 v{t1}, v{t1}, v{vDT}
    v_mul_f32 v{vAl}, s{sL}, v{t0}
    v_mul_f32 v{vBe}, 0.15915494, v{t1}
    v_sub_f32 v{vAl}, 0, v{vAl}
    v_mul_f32 v{t2}, v{t2}, v{vDT}
    v_mul_f32 v{t3}, v{t3}, v{vDT}
    v_add_f32 v{G[0]}, v{t2}, v{t2}
    v_add_f32 v{G[0]+1}, v{t3}, v{t3}
    """)
    uload()
    cexp(w1, 1); cexp(w8, 8); cexp(w128, 128)
    cmul(p, w2, w1, w1); cmul(p, w4, w2, w2)
    p(f"v_mov_b32 v{tmp[0]}, 0x00003f80")
    p(f"ds_write_b32 v{vWA}, v{tmp[0]}")
    tc[0] = 1
    store(w8, 1, 0, True)
    cur = w8
    for j in range(2, 16):
        nx = X[j % 2]
        cmul(p, nx, cur, w8)
        store(nx, j, 0, True)
        cur = nx
    uload()
    g = G[0]
    for t in range(17):
        if t > 0:
            ng = G[t % 2]
            cmul(p, ng, g, w128)
            g = ng
        if t < 2:
            store(g, 8*t, 1)
            cur = g
            for k in range(1, 8):
                nx = Y[k % 2]; cmul(p, nx, cur, w1); store(nx, 8*t + k, 1); cur = nx
            uload()
        elif t < 4:
            store(g, 4*(t-2), 2)
            cur = g
            for k in range(1, 4):
                nx = Y[k % 2]; cmul(p, nx, cur, w2); store(nx, 4*(t-2) + k, 2); cur = nx
        elif t < 8:
            store(g, 8 + 2*(t-4), 2)
            cmul(p, Y[0], g, w4); store(Y[0], 8 + 2*(t-4) + 1, 2)
        else:
            store(g, t - 8, 3)
        if t == 7: uload()
    fr2 = V.alloc(48, align=4)
    bufs = [fr, fr2, fr2 + 16, fr2 + 32]
    for ks in range(4):
        for t in range(4):
            p(f"ds_read_b128 v[{bufs[ks]+4*t}:{bufs[ks]+4*t+3}], v{vRA+ks} offset:{4096*t}")
    for ks in range(4):
        p(f"s_waitcnt lgkmcnt({4*(3-ks)})")
        for t in range(3):
            b = bufs[ks]
            p(f"v_mfma_f32_16x16x32_bf16 v[{vAcc+4*t}:{vAcc+4*t+3}], v[{b+4*(t+1)}:{b+4*(t+1)+3}], v[{b}:{b+3}], v[{vAcc+4*t}:{vAcc+4*t+3}]")
    p(f"s_add_u32 s{sPS}, s{sPS}, 16\n s_cmp_le_u32 s{sPS}, 16\n s_cbranch_scc1 L_a_pass")
    if 'ulate' in common.OPT:
        for x in uloads: p(x)
    V.release(fr2, 48); V.release(vUa); V.release(vUb)
    for r in (vAl, vBe, vLA, vAI, vCR, vCI, vDT): V.release(r)
    for r in (w1, w2, w4, w8, w128, G[0], G[1], X[0], X[1], Y[0], Y[1]): V.release(r, 2)
    V.release(vWA, 16); V.release(vRA, 4)
    stamp(p)
    d = fr
    a0 = V.alloc(); a1 = V.alloc(); a2 = V.alloc(); a3 = V.alloc()
    t0, t1, t2, t3 = tmp
    p(f"""
    v_and_b32 v{t0}, 1, v{vG}
    v_lshrrev_b32 v{t1}, 1, v{vG}
    v_lshlrev_b32 v{a0}, 5, v{vI}
    v_lshl_add_u32 v{a0}, v{t0}, 4, v{a0}
    v_lshl_add_u32 v{a0}, v{t1}, 9, v{a0}
    v_add_u32 v{a0}, s{sREG}, v{a0}
    v_lshlrev_b32 v{a1}, 4, v{vI}
    v_lshl_add_u32 v{a1}, v{vG}, 8, v{a1}
    v_add_u32 v{a1}, 1024, v{a1}
    v_add_u32 v{a2}, 8, v{a1}
    v_lshlrev_b32 v{t2}, 3, v{vI}
    v_lshl_add_u32 v{t2}, v{t0}, 8, v{t2}
    v_add_u32 v{t2}, 1536, v{t2}
    v_add_u32 v{t3}, 128, v{t2}
    v_cmp_gt_u32 vcc, 2, v{vG}
    v_cndmask_b32 v{a1}, v{t2}, v{a1}, vcc
    v_cndmask_b32 v{a2}, v{t3}, v{a2}, vcc
    v_add_u32 v{a1}, s{sREG}, v{a1}
    v_add_u32 v{a2}, s{sREG}, v{a2}
    ; tile2: 4*(512 + j + 64 g) + 64 r
    v_lshlrev_b32 v{a3}, 2, v{vI}
    v_lshl_add_u32 v{a3}, v{vG}, 8, v{a3}
    v_add_u32 v{a3}, s{sREG}, v{a3}
    v_mov_b32 v{t0}, 0
    v_lshl_add_u32 v{t1}, v{vLane}, 2, s{sREG}
    """)
    p(f"""
    s_mov_b32 exec_lo, -1
    s_mov_b32 exec_hi, 0
    ds_write_b32 v{t1}, v{t0} offset:{TB-128}
    s_mov_b64 exec, -1
    """)
    for k in range(12):
        p(f"v_cvt_pk_bf16_f32 v{d+k}, v{vAcc+k}, v{vAcc+k}")
    p(f"ds_write_b128 v{a0}, v[{d}:{d+3}] offset:{TB}")
    p(f"ds_write_b64 v{a1}, v[{d+4}:{d+5}] offset:{TB}")
    p(f"ds_write_b64 v{a2}, v[{d+6}:{d+7}] offset:{TB}")
    for r in range(4):
        p(f"ds_write_b32 v{a3}, v{d+8+r} offset:{TB + 4*512 + 64*r}")
    V.release(vAcc, 12)
    for r in (a0, a1, a2, a3): V.release(r)
    e3 = V.alloc(4, align=2); e2 = V.alloc(4, align=2); e1 = V.alloc(6, align=4); e0 = V.alloc(10, align=4)
    ra = V.alloc(); cc = V.alloc(); sel = V.alloc()
    K0 = [V.alloc() for _ in range(5)]
    W = V.alloc(8, align=4)
    p(f"""
    v_lshl_add_u32 v{ra}, v{vLane}, 2, s{sREG}
    ds_read2_b32 v[{e3}:{e3+1}], v{ra} offset0:0 offset1:1
    """)
    p.items.pop()
    p(f"""
    v_add_u32 v{t0}, {TB + 4*(383+129)}, v{ra}
    ds_read2_b32 v[{e3}:{e3+1}], v{t0} offset0:0 offset1:1
    ds_read2_b32 v[{e3+2}:{e3+3}], v{t0} offset0:64 offset1:65
    v_lshl_add_u32 v{t0}, v{vLane}, 3, s{sREG}
    v_add_u32 v{t0}, {TB + 4*(254+130)}, v{t0}
    ds_read2_b32 v[{e2}:{e2+1}], v{t0} offset0:0 offset1:1
    ds_read_b32 v{e2+2}, v{t0} offset:8
    v_lshl_add_u32 v{t0}, v{vLane}, 4, s{sREG}
    v_add_u32 v{t0}, {TB + 4*(124+132)}, v{t0}
    ds_read_b128 v[{e1}:{e1+3}], v{t0}
    ds_read_b32 v{e1+4}, v{t0} offset:16
    v_lshl_add_u32 v{t0}, v{vLane}, 5, s{sREG}
    v_add_u32 v{t0}, {TB - 32 - 96}, v{t0}
    ds_read_b128 v[{e0}:{e0+3}], v{t0}
    ds_read_b128 v[{e0+4}:{e0+7}], v{t0} offset:16
    ds_read_b32 v{e0+8}, v{t0} offset:32
    v_lshlrev_b32 v{t1}, 3, v{vLane}
    v_subrev_u32 v{t1}, 23, v{t1}
    v_min_i32 v{t1}, 256, v{t1}
    v_lshlrev_b32 v{t1}, 2, v{t1}
    v_add_u32 v{t1}, {TB}, v{t1}
    v_add_u32 v{t1}, s{sREG}, v{t1}
    ds_read_b32 v{e0+9}, v{t1}
    v_lshlrev_b32 v{t0}, 4, v{vLane}
    v_sub_u32 v{t0}, s{sREG}, v{t0}
    v_add_u32 v{K0[0]}, {4096 - 16*129}, v{t0}
    v_add_u32 v{K0[1]}, {4096 - 16*193}, v{t0}
    v_add_u32 v{K0[2]}, {4096 - 16*65}, v{t0}
    v_add_u32 v{K0[3]}, {4096 - 16*33}, v{t0}
    v_add_u32 v{K0[4]}, {4096 + 16*3}, v{t0}
    v_and_b32 v{t0}, 1, v{vLane}
    v_mov_b32 v{t1}, 0x03020100
    v_mov_b32 v{t2}, 0x07060100
    v_cmp_eq_u32 vcc, 1, v{t0}
    v_cndmask_b32 v{sel}, v{t2}, v{t1}, vcc
    s_waitcnt lgkmcnt(0)
    """)
    def mixs(dst, lo, hi):
        return f"v_perm_b32 v{dst}, v{hi}, v{lo}, s{sSEL}"
    def kput(addr, A, B, C, D, E):
        for k, x in enumerate((A, B, C, D)): p(x(W + k))
        for k, x in enumerate((B, C, D, E)): p(x(W + 4 + k))
        p(f"ds_write_b128 v{addr}, v[{W}:{W+3}]")
        p(f"ds_write_b128 v{addr}, v[{W+4}:{W+7}] offset:{K1OFF}")
    mv = lambda r: (lambda d: f"v_mov_b32 v{d}, v{r}")
    mx = lambda lo, hi: (lambda d: mixs(d, lo, hi))
    for h in range(2):
        a, b = e3 + 2*h, e3 + 2*h + 1
        pm = lambda d, a=a, b=b: f"v_perm_b32 v{d}, v{a}, v{b}, v{sel}"
        kput(K0[h], mv(b), mv(b), pm, mv(a), mv(a))
    kput(K0[2], mv(e2+2), mv(e2+2), mv(e2+1), mx(e2+1, e2), mv(e2))
    p("s_mov_b32 exec_hi, 0")
    kput(K0[3], mv(e1+4), mx(e1+4, e1+3), mv(e1+2), mx(e1+2, e1+1), mv(e1))
    p("s_mov_b32 exec_hi, 15")
    kput(K0[4], mx(e0+9, e0+8), mx(e0+7, e0+6), mx(e0+5, e0+4), mx(e0+3, e0+2), mx(e0+1, e0))
    p("s_mov_b64 exec, -1")
    for r, n in ((e3, 4), (e2, 4), (e1, 6), (e0, 10), (ra, 1), (cc, 1), (sel, 1), (W, 8)): V.release(r, n)
    for r in K0: V.release(r)
    z = V.alloc(4, align=4)
    p(f"""
    v_mov_b32 v{z}, 0
    v_mov_b32 v{z+1}, 0
    v_mov_b32 v{z+2}, 0
    v_mov_b32 v{z+3}, 0
    v_lshl_add_u32 v{t0}, v{vLane}, 4, s{sREG}
    s_waitcnt lgkmcnt(0)
    s_mov_b32 exec_lo, 0xfffffff
    s_mov_b32 exec_hi, 0
    ds_write_b128 v{t0}, v[{z}:{z+3}] offset:{UOFF}
    ds_write_b128 v{t0}, v[{z}:{z+3}] offset:{UOFF+U1D}
    s_mov_b64 exec, -1
    s_waitcnt vmcnt(0) lgkmcnt(0)
    s_barrier
    """)
    V.release(z, 4)
    stamp(p)
    q = V.alloc(8, align=2)
    sS0, sS1 = 54, 55
    p(f"""
    s_mov_b32 s{sS0}, 0x05040100
    s_mov_b32 s{sS1}, 0x07060302
    v_lshlrev_b32 v{t0}, 3, v0
    v_add_u32 v{t0}, {UOFF + 448}, v{t0}
    """)
    for ch in range(8):
        j = ch >> 1; s = sS1 if ch & 1 else sS0
        b = q + 4 * (ch & 1)
        R = lambda row: vU + 4 * (row + 1) + j
        p(f"""
        v_perm_b32 v{b}, v{R(1)}, v{R(0)}, s{s}
        v_perm_b32 v{b+1}, v{R(3)}, v{R(2)}, s{s}
        v_perm_b32 v{b+2}, v{R(0)}, v{R(-1)}, s{s}
        v_perm_b32 v{b+3}, v{R(2)}, v{R(1)}, s{s}
        ds_write_b64 v{t0}, v[{b}:{b+1}]
        ds_write_b64 v{t0}, v[{b+2}:{b+3}] offset:{U1D}
        """)
        if ch < 7: p(f"v_add_u32 v{t0}, {REG}, v{t0}")
    V.release(q, 8); V.release(vU, 20); V.release(fr, 16)
    p("s_waitcnt lgkmcnt(0)\n s_barrier")
    stamp(p)
    acc = V.alloc(32, align=4); A = V.alloc(32, align=4); B = V.alloc(32, align=4)
    vB = V.alloc(); vB0 = V.alloc(); vAa = V.alloc()
    p(f"""
    v_and_b32 v{t0}, 1, v{vN}
    v_xor_b32 v{t0}, 1, v{t0}
    v_mul_u32_u24 v{t0}, {U1D}, v{t0}
    v_lshrrev_b32 v{t1}, 1, v{vN}
    v_lshlrev_b32 v{t1}, 6, v{t1}
    v_lshl_add_u32 v{t1}, v{vG}, 4, v{t1}
    v_add3_u32 v{vB}, v{t0}, v{t1}, s{sREG}
    v_add_u32 v{vB}, {UOFF + 448}, v{vB}
    v_mov_b32 v{vB0}, v{vB}
    v_and_b32 v{t0}, 1, v{vN}
    v_mul_u32_u24 v{t0}, {K1OFF - 4}, v{t0}
    v_lshlrev_b32 v{t1}, 2, v{vN}
    v_sub_u32 v{t0}, v{t0}, v{t1}
    v_lshl_add_u32 v{t0}, v{vG}, 4, v{t0}
    v_add_u32 v{t0}, {4096 - 3584}, v{t0}
    v_add_u32 v{vAa}, s{sREG}, v{t0}
    """)
    def ldA(t):
        p(f"ds_read_b64 v[{A+4*t}:{A+4*t+1}], v{vAa} offset:{512*(7-t)}")
        p(f"ds_read_b64 v[{A+4*t+2}:{A+4*t+3}], v{vAa} offset:{512*(7-t)+8}")
    def ldB(i):
        p(f"ds_read_b128 v[{B+4*i}:{B+4*i+3}], v{vB} offset:{512*i}")
    for k in range(32): p(f"v_mov_b32 v{acc+k}, 0")
    for t in range(8):
        ldA(t); ldB(7 - t)
    sR = 56
    p(f"s_mov_b32 s{sR}, 0")
    p.label("L_conv")
    p(f"v_subrev_u32 v{vB}, 64, v{vB}\n v_subrev_u32 v{vAa}, 64, v{vAa}")
    for t in range(8):
        order = list(range(7, t - 1, -1))
        for k, i in enumerate(order):
            if t == 0:
                if k == 0: p("s_waitcnt lgkmcnt(9)")
                if k == 5: p("s_waitcnt lgkmcnt(0)")
            p(f"v_mfma_f32_16x16x32_bf16 v[{acc+4*i}:{acc+4*i+3}], v[{A+4*t}:{A+4*t+3}], v[{B+4*(i-t)}:{B+4*(i-t)+3}], v[{acc+4*i}:{acc+4*i+3}]")
        ldA(t); ldB(7 - t)
    p(f"""
    s_add_u32 s{sR}, s{sR}, 1
    s_cmp_lt_u32 s{sR}, 8
    s_cbranch_scc1 L_conv
    """)
    stamp(p)
    p("s_waitcnt lgkmcnt(0)")
    for i in range(8):
        p(f"ds_read_b128 v[{B+4*i}:{B+4*i+3}], v{vB0} offset:{512*i}")
    s0 = V.alloc(); s1 = V.alloc(); ya = V.alloc()
    sM = 57
    p(f"""
    s_mov_b32 s{sM}, 0xffff0000
    v_and_b32 v{t0}, 1, v{vN}
    v_cmp_eq_u32 vcc, 0, v{t0}
    v_mov_b32 v{t1}, 0x05040100
    v_mov_b32 v{t2}, 0x01000504
    v_cndmask_b32 v{s0}, v{t2}, v{t1}, vcc
    v_mov_b32 v{t1}, 0x07060302
    v_mov_b32 v{t2}, 0x03020706
    v_cndmask_b32 v{s1}, v{t2}, v{t1}, vcc
    v_lshrrev_b32 v{t1}, 1, v{vN}
    v_lshlrev_b32 v{t1}, 6, v{t1}
    v_lshl_add_u32 v{t1}, v{vG}, 4, v{t1}
    v_lshl_add_u32 v{t1}, v{t0}, 3, v{t1}
    v_add_u32 v{ya}, s{sREG}, v{t1}
    s_waitcnt lgkmcnt(0)
    """)
    for i in range(8):
        a = acc + 4 * i; b = B + 4 * i; pk = A + 4 * i
        for r in range(4):
            p(f"v_and_b32 v{b+r}, s{sM}, v{b+r}")
        for r in range(4):
            p(f"v_fma_f32 v{a+r}, v{b+r}, v{V.names['D'][0]}, v{a+r}")
        p(f"""
        v_cvt_pk_bf16_f32 v{pk}, v{a}, v{a+1}
        v_cvt_pk_bf16_f32 v{pk+1}, v{a+2}, v{a+3}
        v_cndmask_b32 v{pk+2}, v{pk+1}, v{pk}, vcc
        v_cndmask_b32 v{pk+3}, v{pk}, v{pk+1}, vcc
        """)
        p(f"v_mov_b32_dpp v{pk}, v{pk+3} quad_perm:[1,0,3,2] row_mask:0xf bank_mask:0xf")
        p(f"""
        v_perm_b32 v{a}, v{pk}, v{pk+2}, v{s0}
        v_perm_b32 v{a+1}, v{pk}, v{pk+2}, v{s1}
        ds_write_b64 v{ya}, v[{a}:{a+1}] offset:{512*i}
        """)
    p("s_waitcnt lgkmcnt(0)\n s_barrier")
    stamp(p)
    ta = V.alloc(); tb = V.alloc(); go = V.alloc()
    p(f"""
    v_lshrrev_b32 v{t0}, 2, v{vI}
    v_mul_u32_u24 v{t0}, {REG}, v{t0}
    v_and_b32 v{t1}, 3, v{vI}
    v_lshlrev_b32 v{t1}, 3, v{t1}
    v_lshl_add_u32 v{t1}, v{vG}, 5, v{t1}
    s_lshl_b32 s{sT0}, s{sW}, 9
    v_add3_u32 v{ta}, v{t0}, v{t1}, s{sT0}
    v_add_u32 v{tb}, {4*REG}, v{ta}
    s_lshl_b32 s{sT0}, s{sW}, 8
    v_add_u32 v{go}, s{sT0}, v{vLane}
    v_mul_u32_u24 v{go}, 2560, v{go}
    s_lshl_b32 s{sT0}, s{sCG}, 4
    v_add_u32 v{go}, s{sT0}, v{go}
    """)
    for it in range(4):
        o = A + 4 * it
        p(f"ds_read_b64_tr_b16 v[{o}:{o+1}], v{ta} offset:{128*it}")
        p(f"ds_read_b64_tr_b16 v[{o+2}:{o+3}], v{tb} offset:{128*it}")
    for it in range(4):
        o = A + 4 * it
        p(f"s_waitcnt lgkmcnt({6-2*it})")
        p(f"s_mov_b32 s{sT0}, {it*64*2560}")
        p(f"buffer_store_dwordx4 v[{o}:{o+3}], v{go}, s[{SRD_O}:{SRD_O+3}], s{sT0} offen")
    dbgmax(p, 13, t0, t1, sW)
    stamp(p)
    if common.DIAG:
        p('s_waitcnt vmcnt(0)')
        stamp(p)
        stamps_flush(p, t0, t1)
    return V

import struct
def f32bits(x):
    return struct.unpack("<I", struct.pack("<f", float(x)))[0]
```

```python
from common import *
import common

REG = 20416
K1OFF = 4224
UOFF = 8384
U1D = 4576
TB = 8448 + 128

def cmul(p, z, x, y):
    p(f"v_pk_mul_f32 v[{z}:{z+1}], v[{x}:{x+1}], v[{y}:{y+1}] op_sel:[0,0] op_sel_hi:[1,0]")
    p(f"v_fma_f32 v{z}, -v{x+1}, v{y+1}, v{z}")
    p(f"v_fma_f32 v{z+1}, v{x}, v{y+1}, v{z+1}")

def exp_bf16(p, V, dst, x, sL, sLlo, sLn2):
    t = V.alloc(); e = V.alloc()
    p(f"v_mul_f32 v{t}, s{sL}, v{x}")
    p(f"v_fma_f32 v{e}, v{x}, s{sL}, -v{t}")
    p(f"v_fma_f32 v{e}, v{x}, s{sLlo}, v{e}")
    p(f"v_exp_f32 v{t}, v{t}")
    p(f"v_mul_f32 v{e}, s{sLn2}, v{e}")
    p(f"v_fma_f32 v{t}, v{t}, v{e}, v{t}")
    p(f"v_cvt_pk_bf16_f32 v{t}, v{t}, v{t}")
    p(f"v_lshlrev_b32 v{dst}, 16, v{t}")
    V.release(t); V.release(e)

def gen_uwave(): pass

def gen_part_a(p, final_hook=None):
    V = VAlloc(VGPRS - 2, start=1)
    sA, sJ, sCG, sW, sC = 32, 33, 34, 35, 36
    sREG = 37
    sL, sLlo, sLn2 = 38, 39, 40
    sSEL = 41
    SRD_U = 44; SRD_O = 48
    sT0, sT1 = 52, 53
    p(f"""
    s_sub_u32 s{sA}, s2, {N_B}
    s_and_b32 s{sJ}, s{sA}, 7
    s_lshr_b32 s{sT0}, s{sA}, 3
    s_mul_i32 s{sCG}, s{sJ}, 10
    s_add_u32 s{sCG}, s{sCG}, s{sT0}
    """)
    if 'linemap' in common.OPT:
        p(f"""
        s_lshl_b32 s{sCG}, s{sJ}, 3
        s_add_u32 s{sCG}, s{sCG}, s{sT0}          ; i < 8 : 8 j + i
        s_cmp_lt_u32 s{sT0}, 8
        s_cbranch_scc1 L_a_map
        s_lshr_b32 s{sCG}, s{sJ}, 2
        s_lshl_b32 s{sCG}, s{sCG}, 3
        s_and_b32 s{sT1}, s{sJ}, 3
        s_lshl_b32 s{sT1}, s{sT1}, 1
        s_add_u32 s{sCG}, s{sCG}, s{sT1}
        s_add_u32 s{sCG}, s{sCG}, s{sT0}
        s_add_u32 s{sCG}, s{sCG}, 56              ; 64 + 8 (j>>2) + 2 (j&3) + (i - 8)
        """)
        p.label("L_a_map")
    vLane = V.alloc(name="lane")
    vT = V.alloc()
    p(f"""
    v_lshrrev_b32 v{vT}, 6, v0
    v_and_b32 v{vLane}, 63, v0
    v_readfirstlane_b32 s{sW}, v{vT}
    s_cmp_ge_u32 s{sW}, 8
    s_cbranch_scc1 L_a_loader
    s_mov_b32 s{sL}, {LOG2E:#x}
    s_mov_b32 s{sLlo}, {LOG2E_LO:#x}
    s_mov_b32 s{sLn2}, {LN2:#x}
    s_mov_b32 s{sSEL}, 0x07060100
    s_lshl_b32 s{sC}, s{sCG}, 3
    s_add_u32 s{sC}, s{sC}, s{sW}
    s_mul_i32 s{sREG}, s{sW}, {REG}
    """)
    p("s_waitcnt lgkmcnt(0)")
    srd(p, SRD_U, S_U, 2048 * 1280)
    srd(p, SRD_O, S_OUT, 2048 * 2560)
    if 'noupf' not in common.OPT:
        vPf = V.alloc()
        p(f"""
        s_lshr_b32 s{sT0}, s{sA}, 3
        s_mul_i32 s{sT0}, s{sT0}, 205
        v_lshrrev_b32 v{vPf}, 1, v0
        v_add_u32 v{vPf}, s{sT0}, v{vPf}
        v_mul_u32_u24 v{vPf}, 1280, v{vPf}
        s_mul_i32 s{sT0}, s{sJ}, 160
        s_and_b32 s{sT0}, s{sT0}, 0xffffff80
        v_and_b32 v{vT}, 1, v0
        v_lshlrev_b32 v{vT}, 7, v{vT}
        v_add3_u32 v{vPf}, v{vPf}, v{vT}, s{sT0}
        v_cmp_gt_u32 vcc, 410, v0
        s_and_saveexec_b64 s[60:61], vcc
        s_cbranch_execz L_a_nopf
        buffer_load_dword v{VGPRS-2}, v{vPf}, s[{SRD_U}:{SRD_U+3}], 0 offen
        """)
        p.label("L_a_nopf")
        p("s_mov_b64 exec, s[60:61]")
        V.release(vPf)
    vLA = V.alloc(); vAI = V.alloc(); vCR = V.alloc(); vCI = V.alloc(); vDT = V.alloc(); vD = V.alloc(name="D")
    vA = V.alloc()
    p(f"""
    s_lshl_b32 s{sT0}, s{sC}, 8
    v_lshl_add_u32 v{vA}, v{vLane}, 2, s{sT0}
    s_lshl_b32 s{sT1}, s{sC}, 1
    v_mov_b32 v{vT}, s{sT1}
    global_load_ushort v{vDT}, v{vT}, s[{S_LDT}:{S_LDT+1}]
    global_load_dword v{vLA}, v{vA}, s[{S_LAR}:{S_LAR+1}]
    global_load_dword v{vAI}, v{vA}, s[{S_AIM}:{S_AIM+1}]
    global_load_dword v{vCR}, v{vA}, s[{S_CRE}:{S_CRE+1}]
    global_load_dword v{vCI}, v{vA}, s[{S_CIM}:{S_CIM+1}]
    global_load_ushort v{vD}, v{vT}, s[{S_DSK}:{S_DSK+1}]
    """)
    V.release(vA)
    vU = V.alloc(20, align=4, name="U")
    vUa = V.alloc(); vUb = V.alloc()
    p(f"""
    v_mul_u32_u24 v{vUa}, 5120, v0
    s_lshl_b32 s{sT0}, s{sCG}, 4
    v_add_u32 v{vUa}, s{sT0}, v{vUa}
    v_subrev_u32 v{vUb}, 1280, v{vUa}
    """)
    uloads = [f"buffer_load_dwordx4 v[{vU}:{vU+3}], v{vUb}, s[{SRD_U}:{SRD_U+3}], 0 offen"] + \
             [f"buffer_load_dwordx4 v[{vU+4+4*k}:{vU+7+4*k}], v{vUa}, s[{SRD_U}:{SRD_U+3}], 0 offen offset:{1280*k}" for k in range(4)]
    stamp(p)
    vWA = V.alloc(16, align=1)
    vL4 = V.alloc()
    p(f"v_lshlrev_b32 v{vL4}, 2, v{vLane}")
    for i in range(16):
        p(f"v_xor_b32 v{vWA+i}, {i << 4}, v{vL4}")
        p(f"v_add_u32 v{vWA+i}, s{sREG}, v{vWA+i}")
    vRA = V.alloc(4, align=1)
    vI = V.alloc(); vG = V.alloc(name="g"); vN = vI
    p(f"""
    v_and_b32 v{vI}, 15, v{vLane}
    v_lshrrev_b32 v{vG}, 4, v{vLane}
    """)
    for ks in range(4):
        p(f"""
        v_add_u32 v{vT}, {4*ks}, v{vG}
        v_xor_b32 v{vT}, v{vT}, v{vI}
        v_lshlrev_b32 v{vT}, 4, v{vT}
        v_lshl_add_u32 v{vT}, v{vI}, 8, v{vT}
        v_add_u32 v{vRA+ks}, s{sREG}, v{vT}
        """)
    V.release(vL4)
    p("s_waitcnt vmcnt(0)")
    p(f"v_lshlrev_b32 v{vDT}, 16, v{vDT}")
    exp_bf16(p, V, vDT, vDT, sL, sLlo, sLn2)
    p(f"v_lshlrev_b32 v{vD}, 16, v{vD}")
    stamp(p)
    vAcc = V.alloc(12, align=4, name="acc")
    vAl = V.alloc(); vBe = V.alloc()
    w1 = V.alloc(2); w2 = V.alloc(2); w4 = V.alloc(2); w8 = V.alloc(2); w128 = V.alloc(2)
    G = [V.alloc(2), V.alloc(2)]
    X = [V.alloc(2), V.alloc(2)]
    Y = [V.alloc(2), V.alloc(2)]
    tmp = [V.alloc() for _ in range(4)]
    fr = V.alloc(16, align=4)
    tc = [0]
    def store(val, row, tile, negim=False):
        t = tmp[tc[0] % 4]; tc[0] += 1
        p(f"v_cvt_pk_bf16_f32 v{t}, v{val}, {'-' if negim else ''}v{val+1}")
        p(f"ds_write_b32 v{vWA+row}, v{t} offset:{tile*4096 + row*256}")
    def cexp(dst, pw):
        a, b = tmp[0], tmp[1]
        p(f"""
        v_mul_f32 v{a}, {float(pw)}, v{vAl}
        v_mul_f32 v{b}, {float(pw)}, v{vBe}
        """ if pw in (1, 2, 4) else f"""
        v_mul_f32 v{a}, {hex(f32bits(pw))}, v{vAl}
        v_mul_f32 v{b}, {hex(f32bits(pw))}, v{vBe}
        """)
        p(f"""
        v_fract_f32 v{b}, v{b}
        v_exp_f32 v{a}, v{a}
        v_cos_f32 v{dst}, v{b}
        v_sin_f32 v{dst+1}, v{b}
        v_mul_f32 v{dst}, v{dst}, v{a}
        v_mul_f32 v{dst+1}, v{dst+1}, v{a}
        """)
    sPS = 58
    for k in range(12): p(f"v_mov_b32 v{vAcc+k}, 0")
    p(f"s_mov_b32 s{sPS}, 0")
    p.label("L_a_pass")
    ul = [0]
    def uload():
        k = ul[0]; ul[0] += 1
        if 'ulate' in common.OPT: return
        if 'up1' in common.OPT:
            p(f"s_cmp_eq_u32 s{sPS}, 0\n s_cbranch_scc1 L_a_nou{k}")
            p(uloads[k])
            p.label(f"L_a_nou{k}")
            return
        p(f"s_cmp_lg_u32 s{sPS}, 0\n s_cbranch_scc1 L_a_nou{k}")
        p(uloads[k])
        p.label(f"L_a_nou{k}")
    t0, t1, t2, t3 = tmp
    p(f"""
    v_lshrrev_b32 v{t0}, s{sPS}, v{vLA}
    v_lshrrev_b32 v{t1}, s{sPS}, v{vAI}
    v_lshrrev_b32 v{t2}, s{sPS}, v{vCR}
    v_lshrrev_b32 v{t3}, s{sPS}, v{vCI}
    v_lshlrev_b32 v{t0}, 16, v{t0}
    v_lshlrev_b32 v{t1}, 16, v{t1}
    v_lshlrev_b32 v{t2}, 16, v{t2}
    v_lshlrev_b32 v{t3}, 16, v{t3}
    """)
    exp_bf16(p, V, t0, t0, sL, sLlo, sLn2)
    p(f"""
    v_mul_f32 v{t0}, v{t0}, v{vDT}
    v_mul_f32 v{t1}, v{t1}, v{vDT}
    v_mul_f32 v{vAl}, s{sL}, v{t0}
    v_mul_f32 v{vBe}, 0.15915494, v{t1}
    v_sub_f32 v{vAl}, 0, v{vAl}
    v_mul_f32 v{t2}, v{t2}, v{vDT}
    v_mul_f32 v{t3}, v{t3}, v{vDT}
    v_add_f32 v{G[0]}, v{t2}, v{t2}
    v_add_f32 v{G[0]+1}, v{t3}, v{t3}
    """)
    uload()
    cexp(w1, 1); cexp(w8, 8); cexp(w128, 128)
    cmul(p, w2, w1, w1); cmul(p, w4, w2, w2)
    p(f"v_mov_b32 v{tmp[0]}, 0x00003f80")
    p(f"ds_write_b32 v{vWA}, v{tmp[0]}")
    tc[0] = 1
    store(w8, 1, 0, True)
    cur = w8
    for j in range(2, 16):
        nx = X[j % 2]
        cmul(p, nx, cur, w8)
        store(nx, j, 0, True)
        cur = nx
    uload()
    g = G[0]
    for t in range(17):
        if t > 0:
            ng = G[t % 2]
            cmul(p, ng, g, w128)
            g = ng
        if t < 2:
            store(g, 8*t, 1)
            cur = g
            for k in range(1, 8):
                nx = Y[k % 2]; cmul(p, nx, cur, w1); store(nx, 8*t + k, 1); cur = nx
            uload()
        elif t < 4:
            store(g, 4*(t-2), 2)
            cur = g
            for k in range(1, 4):
                nx = Y[k % 2]; cmul(p, nx, cur, w2); store(nx, 4*(t-2) + k, 2); cur = nx
        elif t < 8:
            store(g, 8 + 2*(t-4), 2)
            cmul(p, Y[0], g, w4); store(Y[0], 8 + 2*(t-4) + 1, 2)
        else:
            store(g, t - 8, 3)
        if t == 7: uload()
    fr2 = V.alloc(48, align=4)
    bufs = [fr, fr2, fr2 + 16, fr2 + 32]
    for ks in range(4):
        for t in range(4):
            p(f"ds_read_b128 v[{bufs[ks]+4*t}:{bufs[ks]+4*t+3}], v{vRA+ks} offset:{4096*t}")
    for ks in range(4):
        p(f"s_waitcnt lgkmcnt({4*(3-ks)})")
        for t in range(3):
            b = bufs[ks]
            p(f"v_mfma_f32_16x16x32_bf16 v[{vAcc+4*t}:{vAcc+4*t+3}], v[{b+4*(t+1)}:{b+4*(t+1)+3}], v[{b}:{b+3}], v[{vAcc+4*t}:{vAcc+4*t+3}]")
    p(f"s_add_u32 s{sPS}, s{sPS}, 16\n s_cmp_le_u32 s{sPS}, 16\n s_cbranch_scc1 L_a_pass")
    if 'ulate' in common.OPT:
        for x in uloads: p(x)
    V.release(fr2, 48); V.release(vUa); V.release(vUb)
    for r in (vAl, vBe, vLA, vAI, vCR, vCI, vDT): V.release(r)
    for r in (w1, w2, w4, w8, w128, G[0], G[1], X[0], X[1], Y[0], Y[1]): V.release(r, 2)
    V.release(vWA, 16); V.release(vRA, 4)
    stamp(p)
    d = fr
    a0 = V.alloc(); a1 = V.alloc(); a2 = V.alloc(); a3 = V.alloc()
    t0, t1, t2, t3 = tmp
    p(f"""
    v_and_b32 v{t0}, 1, v{vG}
    v_lshrrev_b32 v{t1}, 1, v{vG}
    v_lshlrev_b32 v{a0}, 5, v{vI}
    v_lshl_add_u32 v{a0}, v{t0}, 4, v{a0}
    v_lshl_add_u32 v{a0}, v{t1}, 9, v{a0}
    v_add_u32 v{a0}, s{sREG}, v{a0}
    v_lshlrev_b32 v{a1}, 4, v{vI}
    v_lshl_add_u32 v{a1}, v{vG}, 8, v{a1}
    v_add_u32 v{a1}, 1024, v{a1}
    v_add_u32 v{a2}, 8, v{a1}
    v_lshlrev_b32 v{t2}, 3, v{vI}
    v_lshl_add_u32 v{t2}, v{t0}, 8, v{t2}
    v_add_u32 v{t2}, 1536, v{t2}
    v_add_u32 v{t3}, 128, v{t2}
    v_cmp_gt_u32 vcc, 2, v{vG}
    v_cndmask_b32 v{a1}, v{t2}, v{a1}, vcc
    v_cndmask_b32 v{a2}, v{t3}, v{a2}, vcc
    v_add_u32 v{a1}, s{sREG}, v{a1}
    v_add_u32 v{a2}, s{sREG}, v{a2}
    ; tile2: 4*(512 + j + 64 g) + 64 r
    v_lshlrev_b32 v{a3}, 2, v{vI}
    v_lshl_add_u32 v{a3}, v{vG}, 8, v{a3}
    v_add_u32 v{a3}, s{sREG}, v{a3}
    v_mov_b32 v{t0}, 0
    v_lshl_add_u32 v{t1}, v{vLane}, 2, s{sREG}
    """)
    p(f"""
    s_mov_b32 exec_lo, -1
    s_mov_b32 exec_hi, 0
    ds_write_b32 v{t1}, v{t0} offset:{TB-128}
    s_mov_b64 exec, -1
    """)
    for k in range(12):
        p(f"v_cvt_pk_bf16_f32 v{d+k}, v{vAcc+k}, v{vAcc+k}")
    p(f"ds_write_b128 v{a0}, v[{d}:{d+3}] offset:{TB}")
    p(f"ds_write_b64 v{a1}, v[{d+4}:{d+5}] offset:{TB}")
    p(f"ds_write_b64 v{a2}, v[{d+6}:{d+7}] offset:{TB}")
    for r in range(4):
        p(f"ds_write_b32 v{a3}, v{d+8+r} offset:{TB + 4*512 + 64*r}")
    V.release(vAcc, 12)
    for r in (a0, a1, a2, a3): V.release(r)
    e3 = V.alloc(4, align=2); e2 = V.alloc(4, align=2); e1 = V.alloc(6, align=4); e0 = V.alloc(10, align=4)
    ra = V.alloc(); cc = V.alloc(); sel = V.alloc()
    K0 = [V.alloc() for _ in range(5)]
    W = V.alloc(8, align=4)
    p(f"""
    v_lshl_add_u32 v{ra}, v{vLane}, 2, s{sREG}
    ds_read2_b32 v[{e3}:{e3+1}], v{ra} offset0:0 offset1:1
    """)
    p.items.pop()
    p(f"""
    v_add_u32 v{t0}, {TB + 4*(383+129)}, v{ra}
    ds_read2_b32 v[{e3}:{e3+1}], v{t0} offset0:0 offset1:1
    ds_read2_b32 v[{e3+2}:{e3+3}], v{t0} offset0:64 offset1:65
    v_lshl_add_u32 v{t0}, v{vLane}, 3, s{sREG}
    v_add_u32 v{t0}, {TB + 4*(254+130)}, v{t0}
    ds_read2_b32 v[{e2}:{e2+1}], v{t0} offset0:0 offset1:1
    ds_read_b32 v{e2+2}, v{t0} offset:8
    v_lshl_add_u32 v{t0}, v{vLane}, 4, s{sREG}
    v_add_u32 v{t0}, {TB + 4*(124+132)}, v{t0}
    ds_read_b128 v[{e1}:{e1+3}], v{t0}
    ds_read_b32 v{e1+4}, v{t0} offset:16
    v_lshl_add_u32 v{t0}, v{vLane}, 5, s{sREG}
    v_add_u32 v{t0}, {TB - 32 - 96}, v{t0}
    ds_read_b128 v[{e0}:{e0+3}], v{t0}
    ds_read_b128 v[{e0+4}:{e0+7}], v{t0} offset:16
    ds_read_b32 v{e0+8}, v{t0} offset:32
    v_lshlrev_b32 v{t1}, 3, v{vLane}
    v_subrev_u32 v{t1}, 23, v{t1}
    v_min_i32 v{t1}, 256, v{t1}
    v_lshlrev_b32 v{t1}, 2, v{t1}
    v_add_u32 v{t1}, {TB}, v{t1}
    v_add_u32 v{t1}, s{sREG}, v{t1}
    ds_read_b32 v{e0+9}, v{t1}
    v_lshlrev_b32 v{t0}, 4, v{vLane}
    v_sub_u32 v{t0}, s{sREG}, v{t0}
    v_add_u32 v{K0[0]}, {4096 - 16*129}, v{t0}
    v_add_u32 v{K0[1]}, {4096 - 16*193}, v{t0}
    v_add_u32 v{K0[2]}, {4096 - 16*65}, v{t0}
    v_add_u32 v{K0[3]}, {4096 - 16*33}, v{t0}
    v_add_u32 v{K0[4]}, {4096 + 16*3}, v{t0}
    v_and_b32 v{t0}, 1, v{vLane}
    v_mov_b32 v{t1}, 0x03020100
    v_mov_b32 v{t2}, 0x07060100
    v_cmp_eq_u32 vcc, 1, v{t0}
    v_cndmask_b32 v{sel}, v{t2}, v{t1}, vcc
    s_waitcnt lgkmcnt(0)
    """)
    def mixs(dst, lo, hi):
        return f"v_perm_b32 v{dst}, v{hi}, v{lo}, s{sSEL}"
    def kput(addr, A, B, C, D, E):
        for k, x in enumerate((A, B, C, D)): p(x(W + k))
        for k, x in enumerate((B, C, D, E)): p(x(W + 4 + k))
        p(f"ds_write_b128 v{addr}, v[{W}:{W+3}]")
        p(f"ds_write_b128 v{addr}, v[{W+4}:{W+7}] offset:{K1OFF}")
    mv = lambda r: (lambda d: f"v_mov_b32 v{d}, v{r}")
    mx = lambda lo, hi: (lambda d: mixs(d, lo, hi))
    for h in range(2):
        a, b = e3 + 2*h, e3 + 2*h + 1
        pm = lambda d, a=a, b=b: f"v_perm_b32 v{d}, v{a}, v{b}, v{sel}"
        kput(K0[h], mv(b), mv(b), pm, mv(a), mv(a))
    kput(K0[2], mv(e2+2), mv(e2+2), mv(e2+1), mx(e2+1, e2), mv(e2))
    p("s_mov_b32 exec_hi, 0")
    kput(K0[3], mv(e1+4), mx(e1+4, e1+3), mv(e1+2), mx(e1+2, e1+1), mv(e1))
    p("s_mov_b32 exec_hi, 15")
    kput(K0[4], mx(e0+9, e0+8), mx(e0+7, e0+6), mx(e0+5, e0+4), mx(e0+3, e0+2), mx(e0+1, e0))
    p("s_mov_b64 exec, -1")
    for r, n in ((e3, 4), (e2, 4), (e1, 6), (e0, 10), (ra, 1), (cc, 1), (sel, 1), (W, 8)): V.release(r, n)
    for r in K0: V.release(r)
    z = V.alloc(4, align=4)
    p(f"""
    v_mov_b32 v{z}, 0
    v_mov_b32 v{z+1}, 0
    v_mov_b32 v{z+2}, 0
    v_mov_b32 v{z+3}, 0
    v_lshl_add_u32 v{t0}, v{vLane}, 4, s{sREG}
    s_waitcnt lgkmcnt(0)
    s_mov_b32 exec_lo, 0xfffffff
    s_mov_b32 exec_hi, 0
    ds_write_b128 v{t0}, v[{z}:{z+3}] offset:{UOFF}
    ds_write_b128 v{t0}, v[{z}:{z+3}] offset:{UOFF+U1D}
    s_mov_b64 exec, -1
    s_waitcnt vmcnt(0) lgkmcnt(0)
    s_barrier
    """)
    V.release(z, 4)
    stamp(p)
    q = V.alloc(8, align=2)
    sS0, sS1 = 54, 55
    p(f"""
    s_mov_b32 s{sS0}, 0x05040100
    s_mov_b32 s{sS1}, 0x07060302
    v_lshlrev_b32 v{t0}, 3, v0
    v_add_u32 v{t0}, {UOFF + 448}, v{t0}
    """)
    for ch in range(8):
        j = ch >> 1; s = sS1 if ch & 1 else sS0
        b = q + 4 * (ch & 1)
        R = lambda row: vU + 4 * (row + 1) + j
        p(f"""
        v_perm_b32 v{b}, v{R(1)}, v{R(0)}, s{s}
        v_perm_b32 v{b+1}, v{R(3)}, v{R(2)}, s{s}
        v_perm_b32 v{b+2}, v{R(0)}, v{R(-1)}, s{s}
        v_perm_b32 v{b+3}, v{R(2)}, v{R(1)}, s{s}
        ds_write_b64 v{t0}, v[{b}:{b+1}]
        ds_write_b64 v{t0}, v[{b+2}:{b+3}] offset:{U1D}
        """)
        if ch < 7: p(f"v_add_u32 v{t0}, {REG}, v{t0}")
    V.release(q, 8); V.release(vU, 20); V.release(fr, 16)
    p("s_waitcnt lgkmcnt(0)\n s_barrier")
    stamp(p)
    acc = V.alloc(32, align=4); A = V.alloc(32, align=4); B = V.alloc(32, align=4)
    vB = V.alloc(); vB0 = V.alloc(); vAa = V.alloc()
    p(f"""
    v_and_b32 v{t0}, 1, v{vN}
    v_xor_b32 v{t0}, 1, v{t0}
    v_mul_u32_u24 v{t0}, {U1D}, v{t0}
    v_lshrrev_b32 v{t1}, 1, v{vN}
    v_lshlrev_b32 v{t1}, 6, v{t1}
    v_lshl_add_u32 v{t1}, v{vG}, 4, v{t1}
    v_add3_u32 v{vB}, v{t0}, v{t1}, s{sREG}
    v_add_u32 v{vB}, {UOFF + 448}, v{vB}
    v_mov_b32 v{vB0}, v{vB}
    v_and_b32 v{t0}, 1, v{vN}
    v_mul_u32_u24 v{t0}, {K1OFF - 4}, v{t0}
    v_lshlrev_b32 v{t1}, 2, v{vN}
    v_sub_u32 v{t0}, v{t0}, v{t1}
    v_lshl_add_u32 v{t0}, v{vG}, 4, v{t0}
    v_add_u32 v{t0}, {4096 - 3584}, v{t0}
    v_add_u32 v{vAa}, s{sREG}, v{t0}
    """)
    def ldA(t):
        p(f"ds_read_b64 v[{A+4*t}:{A+4*t+1}], v{vAa} offset:{512*(7-t)}")
        p(f"ds_read_b64 v[{A+4*t+2}:{A+4*t+3}], v{vAa} offset:{512*(7-t)+8}")
    def ldB(i):
        p(f"ds_read_b128 v[{B+4*i}:{B+4*i+3}], v{vB} offset:{512*i}")
    for k in range(32): p(f"v_mov_b32 v{acc+k}, 0")
    for t in range(8):
        ldA(t); ldB(7 - t)
    sR = 56
    p(f"s_mov_b32 s{sR}, 0")
    p.label("L_conv")
    p(f"v_subrev_u32 v{vB}, 64, v{vB}\n v_subrev_u32 v{vAa}, 64, v{vAa}")
    for t in range(8):
        order = list(range(7, t - 1, -1))
        for k, i in enumerate(order):
            if t == 0:
                if k == 0: p("s_waitcnt lgkmcnt(9)")
                if k == 5: p("s_waitcnt lgkmcnt(0)")
            p(f"v_mfma_f32_16x16x32_bf16 v[{acc+4*i}:{acc+4*i+3}], v[{A+4*t}:{A+4*t+3}], v[{B+4*(i-t)}:{B+4*(i-t)+3}], v[{acc+4*i}:{acc+4*i+3}]")
        ldA(t); ldB(7 - t)
    p(f"""
    s_add_u32 s{sR}, s{sR}, 1
    s_cmp_lt_u32 s{sR}, 8
    s_cbranch_scc1 L_conv
    """)
    stamp(p)
    p("s_waitcnt lgkmcnt(0)")
    for i in range(8):
        p(f"ds_read_b128 v[{B+4*i}:{B+4*i+3}], v{vB0} offset:{512*i}")
    s0 = V.alloc(); s1 = V.alloc(); ya = V.alloc()
    sM = 57
    p(f"""
    s_mov_b32 s{sM}, 0xffff0000
    v_and_b32 v{t0}, 1, v{vN}
    v_cmp_eq_u32 vcc, 0, v{t0}
    v_mov_b32 v{t1}, 0x05040100
    v_mov_b32 v{t2}, 0x01000504
    v_cndmask_b32 v{s0}, v{t2}, v{t1}, vcc
    v_mov_b32 v{t1}, 0x07060302
    v_mov_b32 v{t2}, 0x03020706
    v_cndmask_b32 v{s1}, v{t2}, v{t1}, vcc
    v_lshrrev_b32 v{t1}, 1, v{vN}
    v_lshlrev_b32 v{t1}, 6, v{t1}
    v_lshl_add_u32 v{t1}, v{vG}, 4, v{t1}
    v_lshl_add_u32 v{t1}, v{t0}, 3, v{t1}
    v_add_u32 v{ya}, s{sREG}, v{t1}
    s_waitcnt lgkmcnt(0)
    """)
    for i in range(8):
        a = acc + 4 * i; b = B + 4 * i; pk = A + 4 * i
        for r in range(4):
            p(f"v_and_b32 v{b+r}, s{sM}, v{b+r}")
        for r in range(4):
            p(f"v_fma_f32 v{a+r}, v{b+r}, v{V.names['D'][0]}, v{a+r}")
        p(f"""
        v_cvt_pk_bf16_f32 v{pk}, v{a}, v{a+1}
        v_cvt_pk_bf16_f32 v{pk+1}, v{a+2}, v{a+3}
        v_cndmask_b32 v{pk+2}, v{pk+1}, v{pk}, vcc
        v_cndmask_b32 v{pk+3}, v{pk}, v{pk+1}, vcc
        """)
        p(f"v_mov_b32_dpp v{pk}, v{pk+3} quad_perm:[1,0,3,2] row_mask:0xf bank_mask:0xf")
        p(f"""
        v_perm_b32 v{a}, v{pk}, v{pk+2}, v{s0}
        v_perm_b32 v{a+1}, v{pk}, v{pk+2}, v{s1}
        ds_write_b64 v{ya}, v[{a}:{a+1}] offset:{512*i}
        """)
    p("s_waitcnt lgkmcnt(0)\n s_barrier")
    stamp(p)
    ta = V.alloc(); tb = V.alloc(); go = V.alloc()
    p(f"""
    v_lshrrev_b32 v{t0}, 2, v{vI}
    v_mul_u32_u24 v{t0}, {REG}, v{t0}
    v_and_b32 v{t1}, 3, v{vI}
    v_lshlrev_b32 v{t1}, 3, v{t1}
    v_lshl_add_u32 v{t1}, v{vG}, 5, v{t1}
    s_lshl_b32 s{sT0}, s{sW}, 9
    v_add3_u32 v{ta}, v{t0}, v{t1}, s{sT0}
    v_add_u32 v{tb}, {4*REG}, v{ta}
    s_lshl_b32 s{sT0}, s{sW}, 8
    v_add_u32 v{go}, s{sT0}, v{vLane}
    v_mul_u32_u24 v{go}, 2560, v{go}
    s_lshl_b32 s{sT0}, s{sCG}, 4
    v_add_u32 v{go}, s{sT0}, v{go}
    """)
    for it in range(4):
        o = A + 4 * it
        p(f"ds_read_b64_tr_b16 v[{o}:{o+1}], v{ta} offset:{128*it}")
        p(f"ds_read_b64_tr_b16 v[{o+2}:{o+3}], v{tb} offset:{128*it}")
    p("s_waitcnt lgkmcnt(0)\n s_barrier")
    for it in range(4):
        o = A + 4 * it
        p(f"s_mov_b32 s{sT0}, {it*64*2560}")
        p(f"buffer_store_dwordx4 v[{o}:{o+3}], v{go}, s[{SRD_O}:{SRD_O+3}], s{sT0} offen")
    stamp(p)
    p(f"""
    s_mov_b32 s37, s{sW}
    v_and_b32 v2, 15, v1
    v_lshrrev_b32 v3, 4, v1
    """)
    srd(p, 48, S_WS, 16 << 20)
    srd(p, 56, S_OUT, 2048 * 2560)
    p("s_barrier\n s_branch L_b_final")
    p.label("L_a_loader")
    p(f"""
    s_sub_u32 s38, s{sW}, 8
    s_mov_b32 s97, 1
    s_waitcnt lgkmcnt(0)
    """)
    srd(p, 52, S_WO, 640 * 1280)
    p("""
    v_and_b32 v2, 15, v1
    v_lshrrev_b32 v3, 4, v1
    s_barrier
    s_barrier
    s_barrier
    s_branch L_wo_load
    """)
    return V

import struct
def f32bits(x):
    return struct.unpack("<I", struct.pack("<f", float(x)))[0]
```

```python
from common import *
import common

SLOT = 40960
WOFF = 24576
WO_IMG = 0
PHI = 81920
RS = 296
AST = 139264
RED = 81920
WS_PART = 65536
PART_STRIDE = 5120
WS_O = 1 << 20
O_TILE = 20480
WS_SIZE = 16 << 20
SPIN_MAX = 1 << 14
DBG_CNT = 4

def merge(streams):
    out = []
    n = max(len(s) for s in streams)
    for j in range(n):
        for s in streams:
            if j < len(s): out.append(s[j])
    return out

def gen_part_b(p):
    V = VAlloc(VGPRS - 1, start=1)
    sJ, sI, sT, sRB, sHP, sW, sWR, sTY = 32, 33, 34, 35, 36, 37, 38, 39
    SRD_X, SRD_W, SRD_WS, SRD_WO, SRD_O = 40, 44, 48, 52, 56
    sT0, sT1, sT2, sT3 = 60, 61, 62, 63
    sKC = 81; sS = 82; sSLOTD = 83; sXO = 84; sWO = 85; sM0 = 86; sROW0 = 87
    sL = 88
    sRT, sCG, sDSLOT = 92, 93, 94
    sNEG = 100; sCNT = 101
    sHQ = 80
    QX = 1 if 'qx' in common.OPT else 0
    OPT = common.OPT
    p(f"""
    s_and_b32 s{sJ}, s2, 7
    s_lshr_b32 s{sI}, s2, 3
    s_lshr_b32 s{sT0}, s{sJ}, 2
    s_mul_i32 s{sT0}, s{sT0}, 22
    s_add_u32 s{sT}, s{sT0}, s{sI}
    s_lshr_b32 s{sRB}, s{sT}, 2
    s_and_b32 s{sT0}, s{sT}, 3
    s_and_b32 s{sT1}, s{sJ}, 3
    s_lshl_b32 s{sT1}, s{sT1}, 2
    s_add_u32 s{sHP}, s{sT1}, s{sT0}
    s_mul_i32 s{sROW0}, s{sRB}, 192
    s_xor_b32 s{sHQ}, s{sHP}, {QX}
    s_mul_i32 s{sT1}, s{sT0}, 3
    s_lshl_b32 s{sT2}, s{sRB}, 1
    s_add_u32 s{sKC}, s{sT1}, s{sT2}
    s_mul_i32 s{sT1}, s{sKC}, 205
    s_lshr_b32 s{sT1}, s{sT1}, 11
    s_mul_i32 s{sT1}, s{sT1}, 10
    s_sub_u32 s{sKC}, s{sKC}, s{sT1}
    """)
    if 'rot0' in OPT: p(f"s_mov_b32 s{sKC}, 0")
    if 'rot2' in OPT: p(f"s_and_b32 s{sKC}, s{sT}, 1\n s_mul_i32 s{sKC}, s{sKC}, 5")
    vLane = V.alloc(); vI = V.alloc(); vG = V.alloc(); t0 = V.alloc(); t1 = V.alloc(); t2 = V.alloc(); t3 = V.alloc()
    p(f"""
    v_lshrrev_b32 v{t0}, 6, v0
    v_and_b32 v{vLane}, 63, v0
    v_readfirstlane_b32 s{sW}, v{t0}
    v_and_b32 v{vI}, 15, v{vLane}
    v_lshrrev_b32 v{vG}, 4, v{vLane}
    s_and_b32 s{sWR}, s{sW}, 3
    s_lshr_b32 s{sTY}, s{sW}, 2
    s_cmp_eq_u32 s{sTY}, 2
    s_cbranch_scc0 L_b_compute
    """)
    mark = list(V.free)
    if 'pprio' in OPT: p("s_setprio 3")
    vX = [V.alloc(), V.alloc()]; vW = [V.alloc(), V.alloc()]
    p(f"""
    s_mul_i32 s{sT0}, s{sWR}, 48
    s_add_u32 s{sT0}, s{sT0}, s{sROW0}
    v_lshrrev_b32 v{t0}, 3, v{vLane}
    v_add_u32 v{t0}, s{sT0}, v{t0}
    v_mul_u32_u24 v{t0}, 1280, v{t0}
    v_and_b32 v{t1}, 7, v{vLane}
    v_xor_b32 v{t2}, v{t1}, v{vG}
    v_lshl_add_u32 v{vX[0]}, v{t2}, 4, v{t0}
    v_xor_b32 v{t2}, 4, v{t2}
    v_lshl_add_u32 v{vX[1]}, v{t2}, 4, v{t0}
    """)
    for hv in range(2):
        p(f"""
        v_lshlrev_b32 v{t0}, 1, v{vG}
        v_add_u32 v{t0}, {8*hv}, v{t0}
        v_xor_b32 v{t0}, v{t0}, v{vI}
        v_min_u32 v{t0}, 14, v{t0}
        ; c<5: 1280+16c ; c<8: 2560+16(c-5) ; c<13: 16(c-8) ; else 2560+16(c-10)
        v_lshlrev_b32 v{t1}, 4, v{t0}
        v_add_u32 v{t2}, {2560-160}, v{t1}
        s_sub_u32 s{sT1}, s{sHQ}, s{sHP}
        s_mul_i32 s{sT1}, s{sT1}, 80
        s_sub_u32 s{sT1}, s{sT1}, 128
        v_add_u32 v{t3}, s{sT1}, v{t1}
        v_cmp_gt_u32 vcc, 13, v{t0}
        v_cndmask_b32 v{t2}, v{t2}, v{t3}, vcc
        v_add_u32 v{t3}, {2560-80}, v{t1}
        v_cmp_gt_u32 vcc, 8, v{t0}
        v_cndmask_b32 v{t2}, v{t2}, v{t3}, vcc
        v_add_u32 v{t3}, 1280, v{t1}
        v_cmp_gt_u32 vcc, 5, v{t0}
        v_cndmask_b32 v{t2}, v{t2}, v{t3}, vcc
        s_mul_i32 s{sT0}, s{sHP}, 80
        s_mul_i32 s{sT1}, s{sWR}, {16*3840}
        s_add_u32 s{sT0}, s{sT0}, s{sT1}
        v_mul_u32_u24 v{t0}, 3840, v{vG}
        v_add3_u32 v{vW[hv]}, v{t0}, v{t2}, s{sT0}
        """)
    sMX, sMW = 90, 91
    p(f"""
    s_mul_i32 s{sMX}, s{sWR}, 6144
    s_lshl_b32 s{sMW}, s{sWR}, 12
    s_add_u32 s{sMW}, s{sMW}, {WOFF}
    s_mov_b32 s{sDSLOT}, 0
    s_waitcnt lgkmcnt(0)
    """)
    srd(p, SRD_X, S_X, 2048 * 1280)
    srd(p, SRD_W, S_WQKV, 640 * 3840)
    def dma_stage():
        p(f"s_lshl_b32 s{sXO}, s{sKC}, 7\n s_mul_i32 s{sWO}, s{sKC}, {64*3840}\n s_add_u32 s{sM0}, s{sMX}, s{sDSLOT}\n s_add_u32 s{sT2}, s{sMW}, s{sDSLOT}")
        order = [("x", 0), ("w", 0), ("x", 1), ("x", 2), ("w", 1), ("x", 3), ("w", 2), ("x", 4), ("x", 5), ("w", 3)]
        for kind, e in order:
            if 'nodma' in OPT: continue
            if kind == "x":
                p(f"s_add_u32 s{sT0}, s{sXO}, {8*e*1280}\n s_add_u32 m0, s{sM0}, {1024*e}")
                p(f"buffer_load_dwordx4 v{vX[e & 1]}, s[{SRD_X}:{SRD_X+3}], s{sT0} offen lds")
            else:
                p(f"s_add_u32 s{sT0}, s{sWO}, {4*e*3840}\n s_add_u32 m0, s{sT2}, {1024*e}")
                p(f"buffer_load_dwordx4 v{vW[e >> 1]}, s[{SRD_W}:{SRD_W+3}], s{sT0} offen lds")
        p(f"""
        s_add_u32 s{sKC}, s{sKC}, 1
        s_cmp_eq_u32 s{sKC}, 10
        s_cselect_b32 s{sKC}, 0, s{sKC}
        s_add_u32 s{sDSLOT}, s{sDSLOT}, {SLOT}
        s_cmp_eq_u32 s{sDSLOT}, {4*SLOT}
        s_cselect_b32 s{sDSLOT}, 0, s{sDSLOT}
        """)
    LA = 2 if ('la2' in OPT or 'st2' in OPT) else 3
    if 'st2' in OPT:
        dma_stage()
        p("s_barrier")
        stamp(p, 1)
        srd(p, SRD_WS, S_WS, WS_SIZE)
        srd(p, SRD_WO, S_WO, 640 * 1280)
        p("s_waitcnt vmcnt(0)")
        stamp(p, 2)
        p("s_barrier")
        stamp(p, 3)
        dma_stage()
    else:
        p(f"s_mov_b32 s{sS}, 0")
        p.label("L_p_pro")
        dma_stage()
        p(f"s_add_u32 s{sS}, s{sS}, 1\n s_cmp_lt_u32 s{sS}, {LA}\n s_cbranch_scc1 L_p_pro")
        stamp(p, 1)
        srd(p, SRD_WS, S_WS, WS_SIZE)
        srd(p, SRD_WO, S_WO, 640 * 1280)
        p(f"s_waitcnt vmcnt({10*(LA-1)})")
        stamp(p, 2)
        p("s_barrier")
        stamp(p, 3)
    assert LA == 3
    on4 = V.alloc(4, align=4); vC0 = V.alloc(); vC1 = V.alloc()
    def clear_part():
        p(f"""
        v_mov_b32 v{on4}, -1
        v_mov_b32 v{on4+1}, -1
        v_mov_b32 v{on4+2}, -1
        v_mov_b32 v{on4+3}, -1
        s_lshl_b32 s{sT0}, s{sRB}, 4
        s_add_u32 s{sT0}, s{sT0}, s{sHP}
        s_mul_i32 s{sT0}, s{sT0}, {PART_STRIDE}
        s_mul_i32 s{sT1}, s{sWR}, 1280
        s_add_u32 s{sT0}, s{sT0}, s{sT1}
        s_add_u32 s{sT0}, s{sT0}, {WS_PART}
        v_lshl_add_u32 v{vC0}, v{vLane}, 4, s{sT0}
        s_add_u32 s{sT0}, s{sT0}, 1024
        v_lshl_add_u32 v{vC1}, v{vLane}, 2, s{sT0}
        buffer_store_dwordx4 v[{on4}:{on4+3}], v{vC0}, s[{SRD_WS}:{SRD_WS+3}], 0 offen sc1
        buffer_store_dword v{on4}, v{vC1}, s[{SRD_WS}:{SRD_WS+3}], 0 offen sc1
        """)
    def clear_o():
        p(f"""
        s_mul_i32 s{sT0}, s{sRB}, 12
        s_mul_i32 s{sT1}, s{sWR}, 3
        s_add_u32 s{sT0}, s{sT0}, s{sT1}
        s_mul_i32 s{sT0}, s{sT0}, {O_TILE}
        s_mul_i32 s{sT1}, s{sHQ}, 1280
        s_add_u32 s{sT0}, s{sT0}, s{sT1}
        s_add_u32 s{sT0}, s{sT0}, {WS_O}
        v_lshl_add_u32 v{vC0}, v{vLane}, 4, s{sT0}
        s_add_u32 s{sT0}, s{sT0}, 1024
        v_lshl_add_u32 v{vC1}, v{vLane}, 2, s{sT0}
        """)
        for nt in range(3):
            p(f"s_mov_b32 s{sT1}, {O_TILE*nt}")
            p(f"buffer_store_dwordx4 v[{on4}:{on4+3}], v{vC0}, s[{SRD_WS}:{SRD_WS+3}], s{sT1} offen sc1")
            p(f"buffer_store_dword v{on4}, v{vC1}, s[{SRD_WS}:{SRD_WS+3}], s{sT1} offen sc1")
    def count(word, name):
        p(f"""
        s_cmp_lg_u32 s{sWR}, 0
        s_cbranch_scc1 L_p_nocnt{name}
        v_mov_b32 v{t0}, {word}
        v_mov_b32 v{t1}, 1
        s_mov_b32 exec_lo, 1
        s_mov_b32 exec_hi, 0
        global_atomic_add v{t0}, v{t1}, s[{S_DBG}:{S_DBG+1}] sc1
        s_mov_b64 exec, -1
        """)
        p.label(f"L_p_nocnt{name}")
    def check(word, name):
        p(f"""
        s_cmp_lg_u32 s{sWR}, 0
        s_cbranch_scc1 L_p_clr_ok{name}
        s_mov_b32 s{sCNT}, 0
        s_mov_b32 exec_lo, 1
        s_mov_b32 exec_hi, 0
        v_mov_b32 v{t0}, {word}
        """)
        p.label(f"L_p_clr{name}")
        p(f"""
        global_load_dword v{t1}, v{t0}, s[{S_DBG}:{S_DBG+1}] sc1
        s_waitcnt vmcnt(0)
        v_readfirstlane_b32 s{sT0}, v{t1}
        s_cmp_ge_u32 s{sT0}, {N_B}
        s_cbranch_scc1 L_p_clr_ok{name}
        s_add_u32 s{sCNT}, s{sCNT}, 1
        s_cmp_gt_u32 s{sCNT}, {1 << 12}
        s_cbranch_scc1 L_p_clr_ok{name}
        s_sleep 16
        s_branch L_p_clr{name}
        """)
        p.label(f"L_p_clr_ok{name}")
        p("s_mov_b64 exec, -1")
    def wo_prefetch():
        p(f"""
        s_lshr_b32 s{sT0}, s2, 3
        s_cmp_ge_u32 s{sT0}, 20
        s_cbranch_scc1 L_p_nopf
        s_mul_i32 s{sT0}, s{sT0}, 320
        s_mul_i32 s{sT1}, s{sWR}, 80
        s_add_u32 s{sT0}, s{sT0}, s{sT1}
        v_add_u32 v{t0}, s{sT0}, v{vLane}
        v_lshlrev_b32 v{t0}, 7, v{t0}
        buffer_load_dword v{VGPRS-1}, v{t0}, s[{SRD_WO}:{SRD_WO+3}], 0 offen
        s_mov_b32 exec_lo, 0xffff
        s_mov_b32 exec_hi, 0
        v_add_u32 v{t0}, {64*128}, v{t0}
        buffer_load_dword v{VGPRS-1}, v{t0}, s[{SRD_WO}:{SRD_WO+3}], 0 offen
        s_mov_b64 exec, -1
        """)
        p.label("L_p_nopf")
    clear_part(); clear_o()
    for st_ in range(3, 10):
        dma_stage()
        if 'pdiag' in OPT: stamp(p, 4 + (st_ - 3))
        p(f"s_waitcnt vmcnt({28 if st_ in (3, 4) else 20})")
        p("s_barrier")
        if st_ == 5: count(DBG_CNT, "p")
    p("s_waitcnt vmcnt(10)\n s_barrier")
    p("s_waitcnt vmcnt(0)\n s_barrier")
    wo_prefetch()
    check(DBG_CNT, "p")
    p(f"""
    s_lshr_b32 s{sT0}, s2, 3               ; i
    s_cmp_ge_u32 s{sT0}, 10
    s_cselect_b32 s{sT1}, 1, 0
    s_mul_i32 s{sT1}, s{sT1}, 10
    s_sub_u32 s{sCG}, s{sT0}, s{sT1}
    ; LDS row k' = 8 z + e holds wo row 40 (z/5) + 4 (z%5) + 20 (e>>2) + (e&3);  z = 20 pw + i'
    v_lshrrev_b32 v{t0}, 3, v{vLane}            ; e
    v_bfe_u32 v{t1}, v{t0}, 1, 1
    v_lshlrev_b32 v{t1}, 1, v{t1}
    v_and_b32 v{t2}, 7, v{vLane}
    v_xor_b32 v{t1}, v{t1}, v{t2}
    v_xor_b32 v{t2}, 4, v{t1}
    v_lshrrev_b32 v{t3}, 2, v{t0}
    v_mul_u32_u24 v{t3}, 20, v{t3}
    v_and_b32 v{t0}, 3, v{t0}
    v_add_u32 v{t0}, v{t0}, v{t3}
    s_mul_i32 s{sT0}, s{sWR}, 160
    v_add_u32 v{t0}, s{sT0}, v{t0}
    v_mul_u32_u24 v{t0}, 1280, v{t0}
    s_lshl_b32 s{sT0}, s{sCG}, 7
    v_add_u32 v{t0}, s{sT0}, v{t0}
    v_lshl_add_u32 v{t3}, v{t2}, 4, v{t0}
    v_lshl_add_u32 v{t0}, v{t1}, 4, v{t0}
    s_mul_i32 s{sM0}, s{sWR}, 20480
    s_barrier
    """)
    vK0 = V.alloc(); vK1 = V.alloc()
    p(f"v_mov_b32 v{vK0}, v{t0}\n v_mov_b32 v{vK1}, v{t3}")
    p("s_cmp_ge_u32 s2, 160\n s_cbranch_scc1 L_p_nowo")
    for i in range(20):
        p(f"s_mov_b32 s{sT1}, {(40*(i//5) + 4*(i%5))*1280}\n s_add_u32 m0, s{sM0}, {WO_IMG + 1024*i}")
        p(f"buffer_load_dwordx4 v{vK1 if i & 1 else vK0}, s[{SRD_WO}:{SRD_WO+3}], s{sT1} offen lds")
    p.label("L_p_nowo")
    if 'pdiag' not in OPT: stamp(p, 4)
    p("s_waitcnt vmcnt(0)")
    if 'pdiag' not in OPT: stamp(p, 5)
    p("s_barrier")
    if 'pdiag' not in OPT: stamp(p, 6)
    if common.DIAG:
        stamps_flush(p, t0, t1, loader=True)
    p("s_endpgm")
    V.free = list(mark)
    p.label("L_b_compute")
    vWp = V.alloc(4, align=4); vWp2 = V.alloc(4, align=4)
    p(f"""
    s_cmp_eq_u32 s{sTY}, 0
    s_cselect_b32 s{sT0}, s{sHP}, s{sHQ}
    s_mul_i32 s{sT0}, s{sT0}, 1600
    v_lshlrev_b32 v{t0}, 4, v{vLane}
    v_add_u32 v{t0}, s{sT0}, v{t0}
    v_add_u32 v{t1}, 1024, v{t0}
    s_waitcnt lgkmcnt(0)
    global_load_dwordx4 v[{vWp}:{vWp+3}], v{t0}, s[{S_WPHI}:{S_WPHI+1}]
    s_mov_b32 exec_hi, 15
    global_load_dwordx4 v[{vWp2}:{vWp2+3}], v{t1}, s[{S_WPHI}:{S_WPHI+1}]
    s_mov_b32 exec_hi, -1
    """)
    PF0 = 1 if 'st2' in OPT else 3
    NPF = 0
    if 'l2pf' in OPT:
        NPF = 2
        a0 = V.alloc(); a1 = V.alloc(); a2 = V.alloc(); a3 = V.alloc(); d0 = V.alloc(); ad = V.alloc(2, align=2)
        p(f"""
        ; lane -> chunk PF0 + lane/10, item r = lane%10 ; it = min((i*8 + w)*10 + r, 1727)
        v_mul_u32_u24 v{a0}, 205, v{vLane}
        v_lshrrev_b32 v{a0}, 11, v{a0}               ; lane/10
        v_mul_u32_u24 v{a1}, 10, v{a0}
        v_sub_u32 v{a1}, v{vLane}, v{a1}             ; r
        s_lshl_b32 s{sT1}, s{sI}, 3
        s_add_u32 s{sT1}, s{sT1}, s{sW}
        s_mul_i32 s{sT1}, s{sT1}, 10
        v_add_u32 v{a1}, s{sT1}, v{a1}               ; it
        v_min_u32 v{a1}, 1727, v{a1}
        v_add_u32 v{a0}, {PF0}, v{a0}                ; chunk
        s_lshr_b32 s{sT2}, s{sJ}, 2
        s_mul_i32 s{sT2}, s{sT2}, 960
        v_add_u32 v{a2}, s{sT2}, v{a1}
        v_min_u32 v{a2}, 2047, v{a2}
        v_mul_u32_u24 v{a2}, 1280, v{a2}
        v_lshl_add_u32 v{a2}, v{a0}, 7, v{a2}
        ; W: u = it - 1152 ; krow = u/9 ; rem = u%9 ; seg = rem/3 ; ln = rem%3
        v_subrev_u32 v{a1}, 1152, v{a1}
        v_max_i32 v{d0}, 0, v{a1}
        v_mul_u32_u24 v{a3}, 7282, v{d0}
        v_lshrrev_b32 v{a3}, 16, v{a3}               ; krow
        v_mul_u32_u24 v{t3}, 9, v{a3}
        v_sub_u32 v{d0}, v{d0}, v{t3}                ; rem
        v_lshl_add_u32 v{a3}, v{a0}, 6, v{a3}
        v_mul_u32_u24 v{a3}, 3840, v{a3}
        v_mul_u32_u24 v{t3}, 86, v{d0}
        v_lshrrev_b32 v{t3}, 8, v{t3}                ; seg
        v_mul_u32_u24 v{a0}, 3, v{t3}
        v_sub_u32 v{d0}, v{d0}, v{a0}                ; ln
        v_mul_u32_u24 v{t3}, 1280, v{t3}
        v_lshl_add_u32 v{t3}, v{d0}, 7, v{t3}
        s_and_b32 s{sT2}, s{sJ}, 3
        s_mul_i32 s{sT2}, s{sT2}, 320
        s_and_b32 s{sT2}, s{sT2}, 0xffffff80
        v_add3_u32 v{a3}, v{a3}, v{t3}, s{sT2}
        v_cmp_gt_i32 vcc, 0, v{a1}                   ; x lanes
        v_cndmask_b32 v{a2}, v{a3}, v{a2}, vcc
        v_mov_b32 v{a0}, {6*64*3840}
        v_mov_b32 v{a1}, {6*128}
        v_cndmask_b32 v{a3}, v{a0}, v{a1}, vcc
        v_mov_b32 v{a0}, s{S_WQKV}
        v_mov_b32 v{a1}, s{S_X}
        v_cndmask_b32 v{ad}, v{a0}, v{a1}, vcc
        v_mov_b32 v{a0}, s{S_WQKV+1}
        v_mov_b32 v{a1}, s{S_X+1}
        v_cndmask_b32 v{ad+1}, v{a0}, v{a1}, vcc
        v_add_co_u32 v{ad}, vcc, v{ad}, v{a2}
        v_addc_co_u32 v{ad+1}, vcc, 0, v{ad+1}, vcc
        """)
        if 'st2' in OPT: p("s_barrier")
        p(f"""
        s_mov_b32 exec_hi, 0x0fffffff
        global_load_dword v{VGPRS-1}, v[{ad}:{ad+1}], off
        s_mov_b32 exec_hi, -1
        v_add_co_u32 v{ad}, vcc, v{ad}, v{a3}
        v_addc_co_u32 v{ad+1}, vcc, 0, v{ad+1}, vcc
        s_mov_b32 exec_lo, {0x3ff if PF0 == 3 else 0x3fffffff:#x}
        s_mov_b32 exec_hi, 0
        global_load_dword v{VGPRS-1}, v[{ad}:{ad+1}], off
        s_mov_b64 exec, -1
        """)
        for r in (a0, a1, a2, a3, d0): V.release(r)
        V.release(ad, 2)
    stamp(p, 1)
    srd(p, SRD_WS, S_WS, WS_SIZE)
    srd(p, SRD_O, S_OUT, 2048 * 2560)
    p(f"""
    s_mov_b32 s{sL}, {LOG2E:#x}
    s_mov_b32 s{sL+1}, {LOG2E:#x}
    s_mov_b32 s{sNEG}, {-3*SLOT & 0xffffffff:#x}
    """)
    vXa = V.alloc(2, align=1); vWa = V.alloc(4, align=1)
    for ks in range(2):
        p(f"""
        v_add_u32 v{t0}, {4*ks}, v{vG}
        v_lshrrev_b32 v{t1}, 1, v{vI}
        v_xor_b32 v{t0}, v{t0}, v{t1}
        v_lshlrev_b32 v{t0}, 4, v{t0}
        s_mul_i32 s{sT0}, s{sWR}, 48
        v_add_u32 v{t1}, s{sT0}, v{vI}
        v_lshl_add_u32 v{vXa+ks}, v{t1}, 7, v{t0}
        """)
    p(f"""
    v_and_b32 v{t0}, 1, v{vG}
    v_xor_b32 v{t0}, s{sTY}, v{t0}
    v_lshlrev_b32 v{t0}, 7, v{t0}
    v_bfe_u32 v{t2}, v{vI}, 1, 1
    v_lshl_add_u32 v{t0}, v{t2}, 4, v{t0}
    v_and_b32 v{t2}, 1, v{vI}
    v_lshl_add_u32 v{t0}, v{t2}, 3, v{t0}
    v_lshrrev_b32 v{t1}, 2, v{vI}
    v_lshl_add_u32 v{t2}, v{vG}, 3, v{t1}
    v_lshl_add_u32 v{t0}, v{t2}, 8, v{t0}
    v_add_u32 v{t0}, {WOFF}, v{t0}
    """)
    for mt in range(4):
        p(f"v_xor_b32 v{t2}, {mt}, v{t1}\n v_lshl_add_u32 v{vWa+mt}, v{t2}, 5, v{t0}")
    acc = V.alloc(48, align=4)
    for k in range(48): p(f"v_mov_b32 v{acc+k}, 0")
    WPB = 3 * SLOT
    vFA = V.alloc(16, align=4)
    FA, FB, FC0, FC1 = vFA, vFA + 4, vFA + 8, vFA + 12
    GT = V.alloc(32, align=1)
    for k in range(32): p(f"v_mov_b32 v{GT+k}, 0")
    p(f"""
    s_lshl_b32 s{sT0}, s{sW}, 11
    s_add_u32 s{sT0}, s{sT0}, {WPB}
    v_lshl_add_u32 v{t0}, v{vLane}, 4, s{sT0}
    v_lshrrev_b32 v{t1}, 2, v{vI}
    v_mul_u32_u24 v{t1}, 5, v{t1}
    v_and_b32 v{t2}, 3, v{vI}
    v_add_u32 v{t2}, v{t1}, v{t2}
    v_lshlrev_b32 v{t2}, 1, v{t2}
    v_mul_u32_u24 v{t3}, 160, v{vG}
    v_add3_u32 v{t2}, v{t2}, v{t3}, s{sT0}      ; t2: f = 5(m>>2)+(m&3)
    v_add_u32 v{t1}, 4, v{t1}
    v_lshlrev_b32 v{t1}, 1, v{t1}
    v_add3_u32 v{t1}, v{t1}, v{t3}, s{sT0}      ; t1: f = 5(m>>2)+4
    s_waitcnt vmcnt({NPF})
    """)
    p(f"""
    ds_write_b128 v{t0}, v[{vWp}:{vWp+3}]
    s_mov_b32 exec_hi, 15
    ds_write_b128 v{t0}, v[{vWp2}:{vWp2+3}] offset:1024
    s_mov_b32 exec_hi, -1
    s_waitcnt lgkmcnt(0)
    """)
    def gather(dst, addr, off, mask):
        p(f"s_mov_b32 exec_lo, {mask & 0xffffffff:#x}\n s_mov_b32 exec_hi, {mask >> 32:#x}")
        for e in range(4):
            p(f"ds_read_u16 v{GT + 2*(dst - vFA) + e}, v{addr} offset:{off + 40*e}")
    G0 = 0xFFFF; G01 = 0xFFFFFFFF; G123 = 0xFFFFFFFFFFFF0000; ALL = (1 << 64) - 1
    R0 = 0x1111111111111111; R1 = 0x2222222222222222
    gather(FA, t2, 0, ALL);            gather(FA + 2, t2, 16*40, G0)
    gather(FB, t2, 800 - 160, G123);   gather(FB + 2, t2, 800 + 12*40, G01)
    gather(FC0, t1, 0, R0);            gather(FC0 + 2, t1, 16*40, G0 & R0)
    gather(FC1, t1, 800 - 160, G123 & R1); gather(FC1 + 2, t1, 800 + 12*40, G01 & R1)
    p("s_mov_b64 exec, -1\n s_waitcnt lgkmcnt(0)")
    for k in range(16):
        p(f"v_lshl_or_b32 v{vFA+k}, v{GT+2*k+1}, 16, v{GT+2*k}")
    V.release(GT, 32); V.release(vWp, 4); V.release(vWp2, 4)
    XF = [V.alloc(12, align=4), V.alloc(12, align=4)]
    WF = [V.alloc(16, align=4), V.alloc(16, align=4)]
    def reads(ks):
        L = []
        for mt in range(4):
            for h in range(2):
                L.append(f"ds_read_b64_tr_b16 v[{WF[ks]+4*mt+2*h}:{WF[ks]+4*mt+2*h+1}], v{vWa+mt} offset:{8192*ks + 1024*h}")
        X = [f"ds_read_b128 v[{XF[ks]+4*nt}:{XF[ks]+4*nt+3}], v{vXa+ks} offset:{2048*nt}" for nt in range(3)]
        return [L[0], L[1], X[0], X[1], X[2]] + L[2:]
    def mfmas(ks):
        L = []
        for mt in range(4):
            for nt in range(3):
                a = acc + 16*nt + 4*mt
                L.append(f"v_mfma_f32_16x16x32_bf16 v[{a}:{a+3}], v[{WF[ks]+4*mt}:{WF[ks]+4*mt+3}], v[{XF[ks]+4*nt}:{XF[ks]+4*nt+3}], v[{a}:{a+3}]")
        return L
    def sched(main, slots):
        for i, m in enumerate(main):
            if 'nomfma' not in OPT: p(m)
            for x in slots.get(i, []):
                if ('nomfma' in OPT or 'nords' in OPT) and x.startswith('ds_read'): continue
                p(x)
    def advance():
        return [f"v_add_u32 v{r}, s{sSLOTD}, v{r}" for r in (vWa, vXa, vWa+1, vWa+2, vWa+3, vXa+1)]
    if 'fdiag' not in OPT: stamp(p, 15)
    p("s_barrier")
    stamp(p, 2)
    if 'fdiag' not in OPT: cstamp(p, 13)
    for x in reads(0): p(x)
    p(f"s_mov_b32 s{sS}, 0")
    def slot_delta():
        return [f"s_and_b32 s{sT0}, s{sS}, 3", f"s_cmp_eq_u32 s{sT0}, 3", f"s_cselect_b32 s{sSLOTD}, s{sNEG}, {SLOT}"]
    RSP = int(common.os.environ.get("RSP", "2"))
    def read_slots(r, first):
        d = {}
        k = first
        while r:
            d[k] = r[:RSP]; r = r[RSP:]; k += 1
        return d
    def half0():
        p("s_waitcnt lgkmcnt(0)")
        slots = read_slots(reads(1), 0)
        slots[7] = slot_delta()
        sched(mfmas(0), slots)
    def half1(nxt=True):
        p("s_waitcnt lgkmcnt(0)")
        if nxt:
            p("s_barrier")
            slots = read_slots(reads(0), 1)
            slots[0] = advance()
            sched(mfmas(1), slots)
        else:
            sched(mfmas(1), {})
    p.label("L_b_main")
    half0(); half1()
    p(f"s_add_u32 s{sS}, s{sS}, 1\n s_cmp_lt_u32 s{sS}, 9\n s_cbranch_scc1 L_b_main")
    half0(); half1(nxt=False)
    stamp(p, 3)
    if 'fdiag' not in OPT: cstamp(p, 14)
    V.release(XF[0], 12); V.release(XF[1], 12); V.release(WF[0], 16); V.release(WF[1], 16)
    V.release(vXa, 2); V.release(vWa, 4)
    def wait_cleared(name, vN, vm):
        p(f"s_mov_b32 s{sCNT}, 0\n s_waitcnt vmcnt({vm})")
        p.label(f"L_b_wc{name}")
        p(f"""
        v_readfirstlane_b32 s{sT0}, v{vN}
        s_cmp_ge_u32 s{sT0}, {N_B}
        s_cbranch_scc1 L_b_wc_ok{name}
        s_add_u32 s{sCNT}, s{sCNT}, 1
        s_cmp_gt_u32 s{sCNT}, {SPIN_MAX}
        s_cbranch_scc1 L_b_wc_ok{name}
        v_mov_b32 v{vN}, {DBG_CNT}
        global_load_dword v{vN}, v{vN}, s[{S_DBG}:{S_DBG+1}] sc1
        s_waitcnt vmcnt(0)
        s_branch L_b_wc{name}
        """)
        p.label(f"L_b_wc_ok{name}")
    P = V.alloc(3 * 8, align=2)
    vRow = V.alloc()
    vV2 = V.alloc(); vV3 = V.alloc()
    p(f"""
    s_mul_i32 s{sT0}, s{sWR}, 48
    v_add_u32 v{t0}, s{sT0}, v{vI}
    v_mul_u32_u24 v{vRow}, {RS}, v{t0}
    v_add_u32 v{vRow}, {PHI}, v{vRow}
    s_mul_i32 s{sT0}, s{sTY}, 48
    v_lshlrev_b32 v{t1}, 3, v{vG}
    v_add3_u32 v{vV2}, v{t1}, v{vRow}, s{sT0}
    v_add_u32 v{vV2}, {192 - 16}, v{vV2}
    v_add_u32 v{t2}, {192 + 16}, v{t1}
    v_add_u32 v{t3}, {192 + 64}, v{t1}
    v_cmp_gt_u32 vcc, 2, v{vG}
    v_add_u32 v{vV3}, {280 - 16}, v{t1}
    v_cndmask_b32 v{t3}, v{vV3}, v{t3}, vcc
    s_cmp_eq_u32 s{sTY}, 0
    s_cselect_b64 vcc, -1, 0
    v_cndmask_b32 v{t3}, v{t3}, v{t2}, vcc
    v_add_u32 v{vV3}, v{t3}, v{vRow}
    """)
    def cvtP(nt, mts):
        for mt in mts:
            a = acc + 16*nt + 4*mt
            p(f"v_cvt_pk_bf16_f32 v{P+8*nt+2*mt}, v{a}, v{a+1}")
            p(f"v_cvt_pk_bf16_f32 v{P+8*nt+2*mt+1}, v{a+2}, v{a+3}")
    for nt in range(3): cvtP(nt, (2, 3))
    p("s_mov_b32 exec_lo, 0")
    for nt in range(3): p(f"ds_write_b64 v{vV2}, v[{P+8*nt+4}:{P+8*nt+5}] offset:{16*RS*nt}")
    p("s_mov_b32 exec_lo, -1")
    for nt in range(3): p(f"ds_write_b64 v{vV3}, v[{P+8*nt+6}:{P+8*nt+7}] offset:{16*RS*nt}")
    for nt in range(3): cvtP(nt, (0, 1))
    V.release(vV2); V.release(vV3)
    if common.DUMP:
        p(f"""
        s_lshl_b32 s{sT0}, s2, 3
        s_add_u32 s{sT0}, s{sT0}, s{sW}
        s_mul_i32 s{sT0}, s{sT0}, {24*256}
        s_add_u32 s{sT0}, s{sT0}, {4<<20}
        v_lshl_add_u32 v{t0}, v{vLane}, 2, s{sT0}
        """)
        for k in range(24):
            p(f"buffer_store_dword v{P+k}, v{t0}, s[{SRD_WS}:{SRD_WS+3}], 0 offen offset:{256*(k%16)}")
            if k == 15: p(f"v_add_u32 v{t0}, 4096, v{t0}")
        p("s_waitcnt vmcnt(0)")
    V.release(acc, 48)
    if common.os.environ.get('RDBG'): print('free before softmax', [i for i,f in enumerate(V.free) if f])
    TTb = V.alloc(38, align=4)
    TT = [TTb, TTb + 12, TTb + 24]
    EE = [V.alloc(20, align=2) for _ in range(3)]
    SS = [[V.alloc(2, align=2) for _ in range(3)] for _ in range(3)]
    def softmax(nt, outs):
        T, E, S = TT[nt], EE[nt], SS[nt]
        X01 = P + 8*nt; X12 = P + 8*nt + 2
        a0, a1, b0, b1, c, d = S[0], S[0]+1, S[1], S[1]+1, S[2], S[2]+1
        L = [f"v_mfma_f32_16x16x32_bf16 v[{T}:{T+3}], v[{FA}:{FA+3}], v[{X01}:{X01+3}], 0",
             f"v_mfma_f32_16x16x32_bf16 v[{T+8}:{T+11}], v[{FC0}:{FC0+3}], v[{X01}:{X01+3}], 0",
             f"v_mfma_f32_16x16x32_bf16 v[{T+4}:{T+7}], v[{FB}:{FB+3}], v[{X12}:{X12+3}], 0",
             f"v_mfma_f32_16x16x32_bf16 v[{T+8}:{T+11}], v[{FC1}:{FC1+3}], v[{X12}:{X12+3}], v[{T+8}:{T+11}]"]
        x = [[T, T+1, T+2, T+3, T+8], [T+4, T+5, T+6, T+7, T+9]]
        for h, (a, b) in enumerate(((a0, b0), (a1, b1))):
            xs = x[h]
            L += [f"v_max3_f32 v{a}, v{xs[0]}, v{xs[1]}, v{xs[2]}", f"v_max3_f32 v{b}, -v{xs[0]}, -v{xs[1]}, -v{xs[2]}"]
        for h, (a, b) in enumerate(((a0, b0), (a1, b1))):
            xs = x[h]
            L += [f"v_max3_f32 v{a}, v{a}, v{xs[3]}, v{xs[4]}", f"v_max3_f32 v{b}, v{b}, -v{xs[3]}, -v{xs[4]}"]
        def allred(op):
            return [f"v_permlane16_swap_b32 v{a0}, v{b0}", f"v_permlane16_swap_b32 v{a1}, v{b1}",
                    f"{op} v{a0}, v{a0}, v{b0}", f"{op} v{a1}, v{a1}, v{b1}",
                    f"v_permlane32_swap_b32 v{a0}, v{a1}", f"{op} v{c}, v{a0}, v{a1}"]
        bc = [f"v_mov_b32 v{d}, v{c}", f"v_permlane32_swap_b32 v{c}, v{d}", f"v_mov_b32 v{a0}, v{c}", f"v_mov_b32 v{a1}, v{d}",
              f"v_permlane16_swap_b32 v{a0}, v{c}", f"v_permlane16_swap_b32 v{a1}, v{d}"]
        L += allred("v_max_f32") + [f"v_mul_f32 v{c}, s{sL}, v{c}"] + bc
        sel = [(0, 0), (0, 0), (1, 1), (1, 1), (0, 1)]
        for k in range(5):
            lo, hi = sel[k]
            if lo == 1:
                L.append(f"v_fma_f32 v{E+2*k}, v{T+2*k}, s{sL}, -v{a1}")
                L.append(f"v_fma_f32 v{E+2*k+1}, v{T+2*k+1}, s{sL}, -v{a1}")
                L.append(f"v_fma_f32 v{E+10+2*k}, -v{T+2*k}, s{sL}, -v{d}")
                L.append(f"v_fma_f32 v{E+10+2*k+1}, -v{T+2*k+1}, s{sL}, -v{d}")
                continue
            L.append(f"v_pk_fma_f32 v[{E+2*k}:{E+2*k+1}], v[{T+2*k}:{T+2*k+1}], s[{sL}:{sL+1}], v[{a0}:{a1}] op_sel:[0,0,{lo}] op_sel_hi:[1,1,{hi}] neg_lo:[0,0,1] neg_hi:[0,0,1]")
            L.append(f"v_pk_fma_f32 v[{E+10+2*k}:{E+10+2*k+1}], v[{T+2*k}:{T+2*k+1}], s[{sL}:{sL+1}], v[{c}:{d}] op_sel:[0,0,{lo}] op_sel_hi:[1,1,{hi}] neg_lo:[1,0,1] neg_hi:[1,0,1]")
        L += [f"v_exp_f32 v{E+k}, v{E+k}" for k in range(20)]
        L += [f"v_pk_add_f32 v[{T}:{T+1}], v[{E}:{E+1}], v[{E+2}:{E+3}]",
              f"v_pk_add_f32 v[{T+2}:{T+3}], v[{E+4}:{E+5}], v[{E+6}:{E+7}]",
              f"v_pk_add_f32 v[{T+4}:{T+5}], v[{E+10}:{E+11}], v[{E+12}:{E+13}]",
              f"v_pk_add_f32 v[{T+6}:{T+7}], v[{E+14}:{E+15}], v[{E+16}:{E+17}]",
              f"v_add_f32 v{a0}, v{T}, v{T+1}", f"v_add_f32 v{a1}, v{T+2}, v{T+3}",
              f"v_add_f32 v{b0}, v{T+4}, v{T+5}", f"v_add_f32 v{b1}, v{T+6}, v{T+7}",
              f"v_pk_add_f32 v[{a0}:{a1}], v[{a0}:{a1}], v[{E+8}:{E+9}]",
              f"v_pk_add_f32 v[{b0}:{b1}], v[{b0}:{b1}], v[{E+18}:{E+19}]"]
        L += allred("v_add_f32") + [f"v_rcp_f32 v{c}, v{c}"] + bc
        for k in range(5):
            lo, hi = sel[k]
            if lo == 1:
                L.append(f"v_mul_f32 v{E+2*k}, v{E+2*k}, v{a1}")
                L.append(f"v_mul_f32 v{E+2*k+1}, v{E+2*k+1}, v{a1}")
                L.append(f"v_mul_f32 v{E+10+2*k}, v{E+10+2*k}, v{d}")
                L.append(f"v_mul_f32 v{E+10+2*k+1}, v{E+10+2*k+1}, v{d}")
                continue
            L.append(f"v_pk_mul_f32 v[{E+2*k}:{E+2*k+1}], v[{E+2*k}:{E+2*k+1}], v[{a0}:{a1}] op_sel:[0,{lo}] op_sel_hi:[1,{hi}]")
            L.append(f"v_pk_mul_f32 v[{E+10+2*k}:{E+10+2*k+1}], v[{E+10+2*k}:{E+10+2*k+1}], v[{c}:{d}] op_sel:[0,{lo}] op_sel_hi:[1,{hi}]")
        pairs = [[(0, 1), (2, 3), (8, 10), (11, 12), (13, 18)], [(4, 5), (6, 7), (9, 14), (15, 16), (17, 19)]]
        for h in range(2):
            for k, (u, w) in enumerate(pairs[h]):
                L.append(f"v_cvt_pk_bf16_f32 v{outs[h]+k}, v{E+u}, v{E+w}")
        return L
    snap = list(V.free)
    p(f"s_cmp_eq_u32 s{sTY}, 0\n s_cbranch_scc0 L_b_qtype")
    stamp(p, 4)
    p(f"""
    s_mul_i32 s{sT0}, s{sWR}, 48
    s_add_u32 s{sT0}, s{sT0}, s{sROW0}
    v_add_u32 v{t0}, s{sT0}, v{vI}
    v_mov_b32 v{t1}, 0x3f80
    """)
    on = EE[0]
    p(f"v_mov_b32 v{on+1}, 0")
    for nt in range(3):
        p(f"""
        v_cmp_gt_u32 vcc, 0x800, v{t0}
        v_cndmask_b32 v{on}, 0, v{t1}, vcc
        ds_write_b64 v{vRow}, v[{on}:{on+1}] offset:{16*RS*nt + 272}
        v_add_u32 v{t0}, 16, v{t0}
        """)
    vPh = V.alloc()
    p(f"v_mul_u32_u24 v{t0}, 24, v{vG}\n v_add_u32 v{vPh}, v{t0}, v{vRow}")
    streams = []
    for nt in range(3):
        T = TT[nt]
        L = softmax(nt, [T, T + 6])
        for h in range(2):
            o = T + 6*h; off = 16*RS*nt + 96*h
            L += [f"ds_write_b64 v{vPh}, v[{o}:{o+1}] offset:{off}", f"ds_write_b64 v{vPh}, v[{o+2}:{o+3}] offset:{off+8}",
                  f"ds_write_b32 v{vPh}, v{o+4} offset:{off+16}"]
        streams.append(L)
    for x in merge(streams): p(x)
    p("s_waitcnt lgkmcnt(0)\n s_barrier")
    for r, n in [(P, 24), (vRow, 1), (vFA, 16), (TTb, 38), (vPh, 1)] + [(x, 20) for x in EE] + [(y, 2) for x in SS for y in x]:
        V.release(r, n)
    stamp(p, 5)
    sHD, sHF = 95, 96
    vAa = V.alloc(); vB0 = V.alloc()
    p(f"""
    s_and_b32 s{sHD}, s{sWR}, 1
    s_lshr_b32 s{sHF}, s{sWR}, 1
    v_lshrrev_b32 v{t0}, 2, v{vI}
    v_lshl_add_u32 v{t0}, v{vG}, 3, v{t0}
    v_mul_u32_u24 v{t0}, {RS}, v{t0}
    v_add_u32 v{t0}, {PHI}, v{t0}
    v_and_b32 v{t1}, 3, v{vI}
    v_mul_u32_u24 v{t2}, 24, v{t1}
    s_mul_i32 s{sT0}, s{sHD}, 96
    v_add3_u32 v{vAa}, v{t0}, v{t2}, s{sT0}
    s_mul_i32 s{sT0}, s{sHD}, 40
    v_lshlrev_b32 v{t2}, 3, v{t1}
    v_add_u32 v{t2}, s{sT0}, v{t2}
    v_add_u32 v{vB0}, 192, v{t2}
    s_add_u32 s{sT0}, s{sT0}, 224
    v_mov_b32 v{t2}, 272
    v_mov_b32 v{t3}, s{sT0}
    v_cmp_eq_u32 vcc, s{sHD}, v{t1}
    v_cndmask_b32 v{t2}, v{t2}, v{t3}, vcc
    s_cmp_eq_u32 s{sHF}, 0
    s_cselect_b64 vcc, -1, 0
    v_cndmask_b32 v{t2}, v{t2}, v{vB0}, vcc
    v_add_u32 v{vB0}, v{t0}, v{t2}
    """)
    KF = V.alloc(48, align=4); KD = V.alloc(12, align=4)
    def kvreads(ks):
        b = KF + 16 * (ks % 3); off = 32 * RS * ks
        for h in range(2):
            p(f"ds_read_b64_tr_b16 v[{b+12+2*h}:{b+12+2*h+1}], v{vB0} offset:{off + 4*RS*h}")
        for mt in range(3):
            for h in range(2):
                p(f"ds_read_b64_tr_b16 v[{b+4*mt+2*h}:{b+4*mt+2*h+1}], v{vAa} offset:{off + 4*RS*h + 8*mt}")
    kvreads(0); kvreads(1)
    vP0 = V.alloc(); vP1 = V.alloc()
    p(f"""
    s_lshl_b32 s{sT0}, s{sRB}, 4
    s_add_u32 s{sT0}, s{sT0}, s{sHP}
    s_mul_i32 s{sT0}, s{sT0}, {PART_STRIDE}
    s_mul_i32 s{sT1}, s{sWR}, 1280
    s_add_u32 s{sT0}, s{sT0}, s{sT1}
    s_add_u32 s{sT0}, s{sT0}, {WS_PART}
    v_lshl_add_u32 v{vP0}, v{vLane}, 4, s{sT0}
    s_add_u32 s{sT0}, s{sT0}, 1024
    v_lshl_add_u32 v{vP1}, v{vLane}, 2, s{sT0}
    """)
    for ks in range(6):
        p(f"s_waitcnt lgkmcnt({8 if ks < 5 else 0})")
        b = KF + 16 * (ks % 3)
        for mt in range(3):
            c = "0" if ks == 0 else f"v[{KD+4*mt}:{KD+4*mt+3}]"
            p(f"v_mfma_f32_16x16x32_bf16 v[{KD+4*mt}:{KD+4*mt+3}], v[{b+4*mt}:{b+4*mt+3}], v[{b+12}:{b+15}], {c}")
        if ks + 2 < 6: kvreads(ks + 2)
    q = V.alloc(6, align=4)
    p(f"""
    v_cvt_pk_bf16_f32 v{q}, v{KD}, v{KD+1}
    v_cvt_pk_bf16_f32 v{q+1}, v{KD+2}, v{KD+3}
    v_cvt_pk_bf16_f32 v{q+2}, v{KD+4}, v{KD+5}
    v_cvt_pk_bf16_f32 v{q+3}, v{KD+6}, v{KD+7}
    v_cvt_pk_bf16_f32 v{q+4}, v{KD+8}, v{KD+9}
    buffer_store_dwordx4 v[{q}:{q+3}], v{vP0}, s[{SRD_WS}:{SRD_WS+3}], 0 offen sc1
    buffer_store_dword v{q+4}, v{vP1}, s[{SRD_WS}:{SRD_WS+3}], 0 offen sc1
    """)
    stamp(p, 6)
    V.release(KF, 48); V.release(KD, 12)
    L = V.alloc(56, align=4)
    A10 = V.alloc(10, align=2); mx = V.alloc()
    p(f"""
    s_lshl_b32 s{sT0}, s{sRB}, 4
    s_add_u32 s{sT0}, s{sT0}, s{sHP}
    s_sub_u32 s{sT0}, s{sT0}, s{sHQ}
    s_mul_i32 s{sT0}, s{sT0}, {PART_STRIDE}
    v_subrev_u32 v{t0}, s{sT0}, v{vP0}
    v_subrev_u32 v{t1}, s{sT0}, v{vP1}
    s_mov_b32 s{sCNT}, 0
    """)
    def ld_part(r):
        p(f"s_mov_b32 s{sT0}, {r*16*PART_STRIDE}")
        p(f"buffer_load_dwordx4 v[{L+4*r}:{L+4*r+3}], v{t0}, s[{SRD_WS}:{SRD_WS+3}], s{sT0} offen sc1")
        p(f"buffer_load_dword v{L+44+r}, v{t1}, s[{SRD_WS}:{SRD_WS+3}], s{sT0} offen sc1")
    sHI = 97; sLO = 90
    p(f"s_mov_b32 s{sHI}, 0x3f800000\n s_mov_b32 s{sLO}, 0x00003f80")
    if 'p1old' not in OPT:
        if 'noack1' not in OPT: p("s_waitcnt vmcnt(0)")
        for r in range(11): ld_part(r)
        sANY = 91
        p.label("L_b_att1")
        p(f"s_waitcnt vmcnt(0)\n s_mov_b32 s{sANY}, 0")
        for r in range(11):
            p(f"""
            v_max3_u32 v{mx}, v{L+4*r}, v{L+4*r+1}, v{L+4*r+2}
            v_max3_u32 v{mx}, v{mx}, v{L+4*r+3}, v{L+44+r}
            v_cmp_eq_u32 vcc, -1, v{mx}
            s_cbranch_vccz L_b_have1_{r}
            s_mov_b32 s{sANY}, 1
            """)
            ld_part(r)
            p.label(f"L_b_have1_{r}")
        p(f"""
        s_cmp_eq_u32 s{sANY}, 0
        s_cbranch_scc1 L_b_got1
        s_add_u32 s{sCNT}, s{sCNT}, 1
        s_cmp_le_u32 s{sCNT}, {SPIN_MAX}
        s_cbranch_scc1 L_b_att1
        s_waitcnt vmcnt(0)
        """)
        p.label("L_b_got1")
        stamp(p, 7)
        for r in range(11):
            for k in range(5):
                src = L + 4*r + k if k < 4 else L + 44 + r
                c0 = "0" if r == 0 else f"v{A10+2*k}"
                c1 = "0" if r == 0 else f"v{A10+2*k+1}"
                p(f"v_dot2_f32_bf16 v{A10+2*k}, v{src}, s{sLO}, {c0}")
                p(f"v_dot2_f32_bf16 v{A10+2*k+1}, v{src}, s{sHI}, {c1}")
    p.label("L_b_sum1")
    for k in range(5):
        p(f"v_cvt_pk_bf16_f32 v{L+k}, v{A10+2*k}, v{A10+2*k+1}")
    p(f"""
    s_lshl_b32 s{sT1}, s{sWR}, 10
    s_add_u32 s{sT1}, s{sT1}, {AST}
    v_lshl_add_u32 v{t0}, v{vLane}, 4, s{sT1}
    ds_write_b128 v{t0}, v[{L}:{L+3}]
    s_lshl_b32 s{sT1}, s{sWR}, 8
    s_add_u32 s{sT1}, s{sT1}, {AST + 4096}
    v_lshl_add_u32 v{t1}, v{vLane}, 2, s{sT1}
    ds_write_b32 v{t1}, v{L+4}
    s_waitcnt lgkmcnt(0)
    s_barrier
    """)
    stamp(p, 8)
    if 'noe3' not in OPT: p("s_barrier")
    p("s_branch L_b_final")
    V.free = list(snap)
    p.label("L_b_qtype")
    p("s_waitcnt lgkmcnt(0)\n s_barrier")

    stamp(p, 4)
    for x in merge([softmax(nt, [TT[nt], TT[nt] + 6]) for nt in range(3)]): p(x)
    for nt in range(3):
        p(f"v_mov_b32 v{TT[nt]+5}, 0\n v_mov_b32 v{TT[nt]+11}, 0")
    p(f"v_mov_b32 v{TT[2]+12}, 0\n v_mov_b32 v{TT[2]+13}, 0")
    stamp(p, 5)
    for r, n in [(P, 24), (vRow, 1), (vFA, 16)] + [(x, 20) for x in EE] + [(y, 2) for x in SS for y in x]:
        V.release(r, n)
    p("s_waitcnt vmcnt(0) lgkmcnt(0)\n s_barrier")
    stamp(p, 6)
    AF = V.alloc(32, align=4)
    p(f"""
    v_lshlrev_b32 v{t0}, 4, v{vLane}
    v_add_u32 v{t0}, {AST}, v{t0}
    v_lshlrev_b32 v{t1}, 2, v{vLane}
    v_add_u32 v{t1}, {AST+4096}, v{t1}
    """)
    for k in range(4):
        p(f"ds_read_b128 v[{AF+8*k}:{AF+8*k+3}], v{t0} offset:{1024*k}")
        p(f"ds_read_b32 v{AF+8*k+4}, v{t1} offset:{256*k}")
    for k in range(4):
        for z in (5, 6, 7): p(f"v_mov_b32 v{AF+8*k+z}, 0")
    vOa = V.alloc(); vOb = V.alloc()
    ODs = [V.alloc(16, align=4) for _ in range(3)]; ws_ = [V.alloc(8, align=4) for _ in range(3)]
    sEPS = 97
    p(f"""
    s_mov_b32 s{sEPS}, 0x358637bd
    s_mul_i32 s{sT0}, s{sRB}, 12
    s_mul_i32 s{sT1}, s{sWR}, 3
    s_add_u32 s{sT0}, s{sT0}, s{sT1}
    s_mul_i32 s{sT0}, s{sT0}, {O_TILE}
    s_mul_i32 s{sT1}, s{sHQ}, 1280
    s_add_u32 s{sT0}, s{sT0}, s{sT1}
    s_add_u32 s{sT0}, s{sT0}, {WS_O}
    v_lshl_add_u32 v{vOa}, v{vLane}, 4, s{sT0}
    v_lshlrev_b32 v{t0}, 4, v{vI}
    v_lshl_add_u32 v{t0}, v{vG}, 3, v{t0}
    s_add_u32 s{sT0}, s{sT0}, 1024
    v_add_u32 v{vOb}, s{sT0}, v{t0}
    v_cmp_gt_u32 vcc, 16, v{vLane}
    s_mov_b32 s{sT2}, {O_TILE}
    s_mov_b32 s{sT3}, {2*O_TILE}
    s_waitcnt lgkmcnt(0)
    """)
    stamp(p, 8)
    streams = []
    for nt in range(3):
        OD = ODs[nt]; w = ws_[nt]
        L = []
        for h in range(2):
            b = TT[nt] + 6*h
            a0_ = AF + 8*h; a1_ = AF + 8*(h + 2)
            o0 = OD + 8*h; o1 = o0 + 4
            L += [f"v_mfma_f32_16x16x32_bf16 v[{o0}:{o0+3}], v[{a0_}:{a0_+3}], v[{b}:{b+3}], 0",
                  f"v_mfma_f32_16x16x32_bf16 v[{o1}:{o1+3}], v[{a1_}:{a1_+3}], v[{b}:{b+3}], 0",
                  f"v_mfma_f32_16x16x32_bf16 v[{o0}:{o0+3}], v[{a0_+4}:{a0_+7}], v[{b+4}:{b+7}], v[{o0}:{o0+3}]",
                  f"v_mfma_f32_16x16x32_bf16 v[{o1}:{o1+3}], v[{a1_+4}:{a1_+7}], v[{b+4}:{b+7}], v[{o1}:{o1+3}]"]
        y = [w + 6, w + 4]
        L += [f"v_mov_b32 v{y[0]}, v{OD+4}", f"v_mov_b32 v{y[1]}, v{OD+12}",
              f"v_permlane16_swap_b32 v{OD+4}, v{y[0]}", f"v_permlane16_swap_b32 v{y[1]}, v{OD+12}",
              f"v_add_f32 v{y[0]}, s{sEPS}, v{y[0]}", f"v_add_f32 v{y[1]}, s{sEPS}, v{y[1]}",
              f"v_rcp_f32 v{y[0]}, v{y[0]}", f"v_rcp_f32 v{y[1]}, v{y[1]}"]
        for h in range(2):
            for r in range(0, 8, 2):
                a = OD + 8*h + r
                L.append(f"v_pk_mul_f32 v[{a}:{a+1}], v[{a}:{a+1}], v[{y[h]}:{y[h]+1}] op_sel:[0,0] op_sel_hi:[1,0]")
        L += [f"v_cvt_pk_bf16_f32 v{w}, v{OD}, v{OD+1}", f"v_cvt_pk_bf16_f32 v{w+1}, v{OD+2}, v{OD+3}",
              f"v_cvt_pk_bf16_f32 v{w+2}, v{OD+8}, v{OD+9}", f"v_cvt_pk_bf16_f32 v{w+3}, v{OD+10}, v{OD+11}",
              f"v_cvt_pk_bf16_f32 v{OD+4}, v{OD+4}, v{OD+5}", f"v_cvt_pk_bf16_f32 v{OD+5}, v{OD+6}, v{OD+7}",
              f"v_cvt_pk_bf16_f32 v{OD+12}, v{OD+12}, v{OD+13}", f"v_cvt_pk_bf16_f32 v{OD+13}, v{OD+14}, v{OD+15}",
              f"v_cndmask_b32 v{w+4}, v{OD+12}, v{OD+4}, vcc", f"v_cndmask_b32 v{w+5}, v{OD+13}, v{OD+5}, vcc"]
        streams.append(L)
    for x in merge(streams): p(x)
    if 'fdiag' not in OPT: stamp(p, 15)
    so = ["0", f"s{sT2}", f"s{sT3}"]
    for nt in range(3):
        p(f"buffer_store_dwordx4 v[{ws_[nt]}:{ws_[nt]+3}], v{vOa}, s[{SRD_WS}:{SRD_WS+3}], {so[nt]} offen sc1")
    p("s_mov_b32 exec_hi, 0")
    for nt in range(3):
        p(f"buffer_store_dwordx2 v[{ws_[nt]+4}:{ws_[nt]+5}], v{vOb}, s[{SRD_WS}:{SRD_WS+3}], {so[nt]} offen sc1")
    p("s_mov_b32 exec_hi, -1")
    stamp(p, 7)
    if 'noe3' not in OPT: p("s_waitcnt vmcnt(0)\n s_barrier")
    p.label("L_b_final")
    V.free = [i > t3 for i in range(V.limit)]
    sRQ, sKH = 95, 96
    OF = V.alloc(80, align=4)
    vR = V.alloc(); vPl = V.alloc(); mx = V.alloc(); pv = V.alloc()
    p(f"""
    s_cmp_ge_u32 s2, 160
    s_cbranch_scc1 L_b_done
    s_lshr_b32 s{sT0}, s2, 3
    s_cmp_ge_u32 s{sT0}, 10
    s_cselect_b32 s{sT1}, 1, 0
    s_and_b32 s{sT2}, s2, 7
    s_lshl_b32 s{sT2}, s{sT2}, 1
    s_add_u32 s{sRT}, s{sT2}, s{sT1}
    s_mul_i32 s{sT1}, s{sT1}, 10
    s_sub_u32 s{sCG}, s{sT0}, s{sT1}
    s_and_b32 s{sRQ}, s{sW}, 3
    s_lshr_b32 s{sKH}, s{sW}, 2
    s_lshl_b32 s{sT0}, s{sRT}, 3
    s_lshl_b32 s{sT1}, s{sRQ}, 1
    s_add_u32 s{sT0}, s{sT0}, s{sT1}
    s_mul_i32 s{sT0}, s{sT0}, {O_TILE}
    s_mul_i32 s{sT1}, s{sKH}, 10240
    s_add_u32 s{sT0}, s{sT0}, s{sT1}
    s_add_u32 s{sT0}, s{sT0}, {WS_O}
    v_lshl_add_u32 v{vR}, v{vLane}, 4, s{sT0}
    s_mov_b32 s{sCNT}, 0
    """)
    vA = V.alloc(4, align=1)
    p(f"""
    v_lshrrev_b32 v{t2}, 2, v{vI}
    v_bfe_u32 v{t3}, v{t2}, 1, 1
    v_and_b32 v{t0}, 1, v{vG}
    v_lshl_add_u32 v{t3}, v{t0}, 1, v{t3}        ; psi
    v_bfe_u32 v{t0}, v{vI}, 1, 1
    v_lshlrev_b32 v{t0}, 4, v{t0}
    v_and_b32 v{t1}, 1, v{vI}
    v_lshl_add_u32 v{t0}, v{t1}, 3, v{t0}
    v_lshl_add_u32 v{t2}, v{vG}, 3, v{t2}
    v_lshl_add_u32 v{t0}, v{t2}, 7, v{t0}
    s_mul_i32 s{sT1}, s{sKH}, {320*128}
    v_add_u32 v{t0}, s{sT1}, v{t0}
    """)
    for mt in range(4):
        p(f"v_xor_b32 v{t1}, {mt}, v{t3}\n v_lshl_add_u32 v{vA+mt}, v{t1}, 5, v{t0}")
    FAc = V.alloc(32, align=4); WA = [V.alloc(16, align=4), V.alloc(16, align=4)]
    def wreads(ks):
        b = WA[ks & 1]
        return [f"ds_read_b64_tr_b16 v[{b+4*mt+2*h}:{b+4*mt+2*h+1}], v{vA+mt} offset:{WO_IMG + 4096*ks + 512*h}" for mt in range(4) for h in range(2)]
    def ld_o(ks):
        for nt in range(2):
            p(f"s_mov_b32 s{sT1}, {O_TILE*nt + 4096*(ks >> 2)}")
            p(f"buffer_load_dwordx4 v[{OF+8*ks+4*nt}:{OF+8*ks+4*nt+3}], v{vR}, s[{SRD_WS}:{SRD_WS+3}], s{sT1} offen offset:{1024*(ks & 3)} sc1")
    sMISS = 90
    def chk_o(ks):
        o = OF + 8*ks
        p(f"""
        v_max3_u32 v{mx}, v{o}, v{o+1}, v{o+2}
        v_max3_u32 v{pv}, v{o+3}, v{o+4}, v{o+5}
        v_max3_u32 v{mx}, v{mx}, v{o+6}, v{o+7}
        v_max_u32 v{mx}, v{mx}, v{pv}
        v_cmp_eq_u32 vcc, -1, v{mx}
        """)
    def mf_o(ks, wb, fill=()):
        k = 0
        for mt in range(4):
            for nt in range(2):
                a = FAc + 16*nt + 4*mt
                p(f"v_mfma_f32_16x16x32_bf16 v[{a}:{a+3}], v[{wb+4*mt}:{wb+4*mt+3}], v[{OF+8*ks+4*nt}:{OF+8*ks+4*nt+3}], v[{a}:{a+3}]")
                if k < 4 and fill:
                    p(fill[2*k]); p(fill[2*k+1])
                k += 1
    PD = int(common.os.environ.get("PD", "4"))
    if 'fdiag' in OPT: stamp(p, 13)
    for ks in range(min(PD, 10)): ld_o(ks)
    if 'fdiag' in OPT: stamp(p, 14)
    for x in wreads(0): p(x)
    for k in range(32): p(f"v_mov_b32 v{FAc+k}, 0")
    p(f"s_mov_b32 s{sMISS}, 0")
    for ks in range(10):
        nxt = wreads(ks + 1) if ks < 9 else []
        p(f"s_waitcnt vmcnt({2*min(PD-1, 9-ks)})")
        if ks + PD < 10: ld_o(ks + PD)
        chk_o(ks)
        p(f"s_cbranch_vccz L_b_ok2_{ks}")
        p(f"s_bitset1_b32 s{sMISS}, {ks}")
        ld_o(ks)
        p("s_waitcnt lgkmcnt(0)")
        for x in nxt: p(x)
        p(f"s_branch L_b_nx2_{ks}")
        p.label(f"L_b_ok2_{ks}")
        if ks == 0: stamp(p, 9)
        p("s_waitcnt lgkmcnt(0)")
        mf_o(ks, WA[ks & 1], nxt)
        p.label(f"L_b_nx2_{ks}")
    if 'fdiag' in OPT:
        stamp(p, 1)
        p(f"s_bcnt1_i32_b32 s79, s{sMISS}")
    p(f"s_cmp_eq_u32 s{sMISS}, 0\n s_cbranch_scc1 L_b_ok2")
    p.label("L_b_p2")
    p("s_waitcnt vmcnt(0)")
    for ks in range(10):
        p(f"s_bitcmp1_b32 s{sMISS}, {ks}\n s_cbranch_scc0 L_b_p2n_{ks}")
        chk_o(ks)
        p(f"s_cbranch_vccnz L_b_p2r_{ks}")
        b = WA[0]
        for x in [f"ds_read_b64_tr_b16 v[{b+4*mt+2*h}:{b+4*mt+2*h+1}], v{vA+mt} offset:{WO_IMG + 4096*ks + 512*h}" for mt in range(4) for h in range(2)]: p(x)
        p("s_waitcnt lgkmcnt(0)")
        mf_o(ks, b)
        p(f"s_bitset0_b32 s{sMISS}, {ks}\n s_branch L_b_p2n_{ks}")
        p.label(f"L_b_p2r_{ks}")
        ld_o(ks)
        p.label(f"L_b_p2n_{ks}")
    p(f"""
    s_cmp_eq_u32 s{sMISS}, 0
    s_cbranch_scc1 L_b_ok2
    s_add_u32 s{sCNT}, s{sCNT}, 1
    s_cmp_le_u32 s{sCNT}, {SPIN_MAX}
    s_cbranch_scc1 L_b_p2
    s_waitcnt vmcnt(0)
    """)
    p.label("L_b_ok2")
    stamp(p, 10)
    p(f"""
    s_lshl_b32 s{sT0}, s{sW}, 12
    s_add_u32 s{sT0}, s{sT0}, {RED}
    v_lshl_add_u32 v{t0}, v{vLane}, 4, s{sT0}
    s_xor_b32 s{sT1}, s{sW}, 4
    s_lshl_b32 s{sT1}, s{sT1}, 12
    s_add_u32 s{sT1}, s{sT1}, {RED}
    v_lshl_add_u32 v{t1}, v{vLane}, 4, s{sT1}
    s_lshl_b32 s{sT0}, s{sRT}, 7
    s_lshl_b32 s{sT1}, s{sRQ}, 5
    s_add_u32 s{sT0}, s{sT0}, s{sT1}
    s_lshl_b32 s{sT1}, s{sKH}, 4
    s_add_u32 s{sT0}, s{sT0}, s{sT1}
    v_and_b32 v{t2}, 7, v{vI}
    v_add_u32 v{t2}, s{sT0}, v{t2}
    v_mul_u32_u24 v{t2}, 2560, v{t2}
    v_lshrrev_b32 v{t3}, 3, v{vI}
    v_lshl_add_u32 v{t2}, v{t3}, 6, v{t2}
    v_and_b32 v{t3}, 1, v{vG}
    v_lshl_add_u32 v{t2}, v{t3}, 5, v{t2}
    v_lshrrev_b32 v{t3}, 1, v{vG}
    v_lshl_add_u32 v{t2}, v{t3}, 4, v{t2}
    s_lshl_b32 s{sT0}, s{sCG}, 7
    s_add_u32 s{sT0}, s{sT0}, 1280
    v_add_u32 v{t2}, s{sT0}, v{t2}
    s_cmp_eq_u32 s{sKH}, 0
    s_cbranch_scc1 L_b_red0
    """)
    def finish(keep):
        p("s_waitcnt lgkmcnt(0)\n s_barrier")
        for k in range(4):
            p(f"ds_read_b128 v[{OF+4*k}:{OF+4*k+3}], v{t1} offset:{1024*k}")
        for a2 in range(2):
            for mt in (2*a2, 2*a2 + 1):
                a = keep + 4*mt; b = OF + 4*mt
                p(f"s_waitcnt lgkmcnt({3-mt})")
                p(f"v_pk_add_f32 v[{a}:{a+1}], v[{a}:{a+1}], v[{b}:{b+1}]")
                p(f"v_pk_add_f32 v[{a+2}:{a+3}], v[{a+2}:{a+3}], v[{b+2}:{b+3}]")
            A = keep + 8*a2; B = A + 4; d = OF + 16 + 4*a2
            p(f"""
            v_cvt_pk_bf16_f32 v{d}, v{A}, v{A+1}
            v_cvt_pk_bf16_f32 v{d+1}, v{A+2}, v{A+3}
            v_cvt_pk_bf16_f32 v{d+2}, v{B}, v{B+1}
            v_cvt_pk_bf16_f32 v{d+3}, v{B+2}, v{B+3}
            v_permlane16_swap_b32 v{d}, v{d+2}
            v_permlane16_swap_b32 v{d+1}, v{d+3}
            """)
        d0 = OF + 16; d1 = OF + 20; r0 = OF + 24; r1 = OF + 28
        p(f"v_cmp_gt_u32 vcc, 8, v{vI}")
        for k in range(4):
            p(f"v_mov_b32_dpp v{r0+k}, v{d0+k} row_ror:8 row_mask:0xf bank_mask:0xf")
            p(f"v_mov_b32_dpp v{r1+k}, v{d1+k} row_ror:8 row_mask:0xf bank_mask:0xf")
        for k in range(4):
            p(f"v_cndmask_b32 v{r1+k}, v{r1+k}, v{d0+k}, vcc")
            p(f"v_cndmask_b32 v{r0+k}, v{d1+k}, v{r0+k}, vcc")
        MOD = 'sc1' if 'osc1' in OPT else ''
        p(f"s_mov_b32 s{sT0}, {8*2560}")
        p(f"buffer_store_dwordx4 v[{r1}:{r1+3}], v{t2}, s[{SRD_O}:{SRD_O+3}], 0 offen {MOD}")
        p(f"buffer_store_dwordx4 v[{r0}:{r0+3}], v{t2}, s[{SRD_O}:{SRD_O+3}], s{sT0} offen {MOD}")
    for k in range(4):
        p(f"ds_write_b128 v{t0}, v[{FAc+4*k}:{FAc+4*k+3}] offset:{1024*k}")
    finish(FAc + 16)
    p("s_branch L_b_done")
    p.label("L_b_red0")
    for k in range(4):
        p(f"ds_write_b128 v{t0}, v[{FAc+16+4*k}:{FAc+16+4*k+3}] offset:{1024*k}")
    finish(FAc)
    p.label("L_b_done")
    dbgmax(p, 9, t2, t3, sW)
    stamp(p, 11)
    if common.DIAG:
        p('s_waitcnt vmcnt(0)')
        stamp(p, 12)
        stamps_flush(p, t0, t1)
    return V
```

```python
from common import *
import common

SLOT = 40960
WOFF = 24576
WO_IMG = 0
PHI = 107520
RS = 288
AST = 102400
RED = 107520
WS_PART = 65536
PART_STRIDE = 5120
WS_O = 1 << 20
O_TILE = 20480
WS_SIZE = 16 << 20
SPIN_MAX = 1 << 14
DBG_CNT = 4

def merge(streams):
    out = []
    n = max(len(s) for s in streams)
    for j in range(n):
        for s in streams:
            if j < len(s): out.append(s[j])
    return out

def gen_part_b(p):
    V = VAlloc(VGPRS - 1, start=1)
    sJ, sI, sT, sRB, sHP, sW, sWR, sTY = 32, 33, 34, 35, 36, 37, 38, 39
    SRD_X, SRD_W, SRD_WS, SRD_WO, SRD_O = 40, 44, 48, 52, 56
    sT0, sT1, sT2, sT3 = 60, 61, 62, 63
    sKC = 81; sS = 82; sSLOTD = 83; sXO = 84; sWO = 85; sM0 = 86; sROW0 = 87
    sL = 88
    sRT, sCG, sDSLOT = 92, 93, 94
    sNEG = 100; sCNT = 101
    sHQ = 80
    QX = 1 if 'qx' in common.OPT else 0
    OPT = common.OPT
    p(f"""
    s_and_b32 s{sJ}, s2, 7
    s_lshr_b32 s{sI}, s2, 3
    s_lshr_b32 s{sT0}, s{sJ}, 2
    s_mul_i32 s{sT0}, s{sT0}, 22
    s_add_u32 s{sT}, s{sT0}, s{sI}
    s_lshr_b32 s{sRB}, s{sT}, 2
    s_and_b32 s{sT0}, s{sT}, 3
    s_and_b32 s{sT1}, s{sJ}, 3
    s_lshl_b32 s{sT1}, s{sT1}, 2
    s_add_u32 s{sHP}, s{sT1}, s{sT0}
    s_mul_i32 s{sROW0}, s{sRB}, 192
    s_xor_b32 s{sHQ}, s{sHP}, {QX}
    s_mul_i32 s{sT1}, s{sT0}, 3
    s_lshl_b32 s{sT2}, s{sRB}, 1
    s_add_u32 s{sKC}, s{sT1}, s{sT2}
    s_mul_i32 s{sT1}, s{sKC}, 205
    s_lshr_b32 s{sT1}, s{sT1}, 11
    s_mul_i32 s{sT1}, s{sT1}, 10
    s_sub_u32 s{sKC}, s{sKC}, s{sT1}
    """)
    if 'rot0' in OPT: p(f"s_mov_b32 s{sKC}, 0")
    if 'rot2' in OPT: p(f"s_and_b32 s{sKC}, s{sT}, 1\n s_mul_i32 s{sKC}, s{sKC}, 5")
    vLane = V.alloc(); vI = V.alloc(); vG = V.alloc(); t0 = V.alloc(); t1 = V.alloc(); t2 = V.alloc(); t3 = V.alloc()
    p(f"""
    v_lshrrev_b32 v{t0}, 6, v0
    v_and_b32 v{vLane}, 63, v0
    v_readfirstlane_b32 s{sW}, v{t0}
    v_and_b32 v{vI}, 15, v{vLane}
    v_lshrrev_b32 v{vG}, 4, v{vLane}
    s_and_b32 s{sWR}, s{sW}, 3
    s_lshr_b32 s{sTY}, s{sW}, 2
    s_cmp_eq_u32 s{sTY}, 2
    s_cbranch_scc0 L_b_compute
    """)
    mark = list(V.free)
    vX = [V.alloc(), V.alloc()]; vW = [V.alloc(), V.alloc()]
    p(f"""
    s_mul_i32 s{sT0}, s{sWR}, 48
    s_add_u32 s{sT0}, s{sT0}, s{sROW0}
    v_lshrrev_b32 v{t0}, 3, v{vLane}
    v_add_u32 v{t0}, s{sT0}, v{t0}
    v_mul_u32_u24 v{t0}, 1280, v{t0}
    v_and_b32 v{t1}, 7, v{vLane}
    v_xor_b32 v{t2}, v{t1}, v{vG}
    v_lshl_add_u32 v{vX[0]}, v{t2}, 4, v{t0}
    v_xor_b32 v{t2}, 4, v{t2}
    v_lshl_add_u32 v{vX[1]}, v{t2}, 4, v{t0}
    """)
    for hv in range(2):
        p(f"""
        v_lshlrev_b32 v{t0}, 1, v{vG}
        v_add_u32 v{t0}, {8*hv}, v{t0}
        v_xor_b32 v{t0}, v{t0}, v{vI}
        v_min_u32 v{t0}, 14, v{t0}
        ; c<5: 1280+16c ; c<8: 2560+16(c-5) ; c<13: 16(c-8) ; else 2560+16(c-10)
        v_lshlrev_b32 v{t1}, 4, v{t0}
        v_add_u32 v{t2}, {2560-160}, v{t1}
        s_sub_u32 s{sT1}, s{sHQ}, s{sHP}
        s_mul_i32 s{sT1}, s{sT1}, 80
        s_sub_u32 s{sT1}, s{sT1}, 128
        v_add_u32 v{t3}, s{sT1}, v{t1}
        v_cmp_gt_u32 vcc, 13, v{t0}
        v_cndmask_b32 v{t2}, v{t2}, v{t3}, vcc
        v_add_u32 v{t3}, {2560-80}, v{t1}
        v_cmp_gt_u32 vcc, 8, v{t0}
        v_cndmask_b32 v{t2}, v{t2}, v{t3}, vcc
        v_add_u32 v{t3}, 1280, v{t1}
        v_cmp_gt_u32 vcc, 5, v{t0}
        v_cndmask_b32 v{t2}, v{t2}, v{t3}, vcc
        s_mul_i32 s{sT0}, s{sHP}, 80
        s_mul_i32 s{sT1}, s{sWR}, {16*3840}
        s_add_u32 s{sT0}, s{sT0}, s{sT1}
        v_mul_u32_u24 v{t0}, 3840, v{vG}
        v_add3_u32 v{vW[hv]}, v{t0}, v{t2}, s{sT0}
        """)
    sMX, sMW = 90, 91
    p(f"""
    s_mul_i32 s{sMX}, s{sWR}, 6144
    s_lshl_b32 s{sMW}, s{sWR}, 12
    s_add_u32 s{sMW}, s{sMW}, {WOFF}
    s_mov_b32 s{sDSLOT}, 0
    s_waitcnt lgkmcnt(0)
    """)
    srd(p, SRD_X, S_X, 2048 * 1280)
    srd(p, SRD_W, S_WQKV, 640 * 3840)
    def dma_stage():
        p(f"s_lshl_b32 s{sXO}, s{sKC}, 7\n s_mul_i32 s{sWO}, s{sKC}, {64*3840}\n s_add_u32 s{sM0}, s{sMX}, s{sDSLOT}\n s_add_u32 s{sT2}, s{sMW}, s{sDSLOT}")
        order = [("x", 0), ("w", 0), ("x", 1), ("x", 2), ("w", 1), ("x", 3), ("w", 2), ("x", 4), ("x", 5), ("w", 3)]
        for kind, e in order:
            if 'nodma' in OPT: continue
            if kind == "x":
                p(f"s_add_u32 s{sT0}, s{sXO}, {8*e*1280}\n s_add_u32 m0, s{sM0}, {1024*e}")
                p(f"buffer_load_dwordx4 v{vX[e & 1]}, s[{SRD_X}:{SRD_X+3}], s{sT0} offen lds")
            else:
                p(f"s_add_u32 s{sT0}, s{sWO}, {4*e*3840}\n s_add_u32 m0, s{sT2}, {1024*e}")
                p(f"buffer_load_dwordx4 v{vW[e >> 1]}, s[{SRD_W}:{SRD_W+3}], s{sT0} offen lds")
        p(f"""
        s_add_u32 s{sKC}, s{sKC}, 1
        s_cmp_eq_u32 s{sKC}, 10
        s_cselect_b32 s{sKC}, 0, s{sKC}
        s_add_u32 s{sDSLOT}, s{sDSLOT}, {SLOT}
        s_cmp_eq_u32 s{sDSLOT}, {4*SLOT}
        s_cselect_b32 s{sDSLOT}, 0, s{sDSLOT}
        """)
    LA = 2 if ('la2' in OPT or 'st2' in OPT) else 3
    if 'st2' in OPT:
        dma_stage()
        p("s_barrier")
        stamp(p, 1)
        srd(p, SRD_WS, S_WS, WS_SIZE)
        srd(p, SRD_WO, S_WO, 640 * 1280)
        p("s_waitcnt vmcnt(0)")
        stamp(p, 2)
        p("s_barrier")
        stamp(p, 3)
        dma_stage()
    else:
        p(f"s_mov_b32 s{sS}, 0")
        p.label("L_p_pro")
        dma_stage()
        p(f"s_add_u32 s{sS}, s{sS}, 1\n s_cmp_lt_u32 s{sS}, {LA}\n s_cbranch_scc1 L_p_pro")
        stamp(p, 1)
        srd(p, SRD_WS, S_WS, WS_SIZE)
        srd(p, SRD_WO, S_WO, 640 * 1280)
        p(f"s_waitcnt vmcnt({10*(LA-1)})")
        stamp(p, 2)
        p("s_barrier")
        stamp(p, 3)
    assert LA == 3
    on4 = V.alloc(4, align=4); vC0 = V.alloc(); vC1 = V.alloc()
    def clear_part():
        p(f"""
        v_mov_b32 v{on4}, -1
        v_mov_b32 v{on4+1}, -1
        v_mov_b32 v{on4+2}, -1
        v_mov_b32 v{on4+3}, -1
        s_lshl_b32 s{sT0}, s{sRB}, 4
        s_add_u32 s{sT0}, s{sT0}, s{sHP}
        s_mul_i32 s{sT0}, s{sT0}, {PART_STRIDE}
        s_mul_i32 s{sT1}, s{sWR}, 1280
        s_add_u32 s{sT0}, s{sT0}, s{sT1}
        s_add_u32 s{sT0}, s{sT0}, {WS_PART}
        v_lshl_add_u32 v{vC0}, v{vLane}, 4, s{sT0}
        s_add_u32 s{sT0}, s{sT0}, 1024
        v_lshl_add_u32 v{vC1}, v{vLane}, 2, s{sT0}
        buffer_store_dwordx4 v[{on4}:{on4+3}], v{vC0}, s[{SRD_WS}:{SRD_WS+3}], 0 offen sc1
        buffer_store_dword v{on4}, v{vC1}, s[{SRD_WS}:{SRD_WS+3}], 0 offen sc1
        """)
    def clear_o():
        p(f"""
        s_mul_i32 s{sT0}, s{sRB}, 12
        s_mul_i32 s{sT1}, s{sWR}, 3
        s_add_u32 s{sT0}, s{sT0}, s{sT1}
        s_mul_i32 s{sT0}, s{sT0}, {O_TILE}
        s_mul_i32 s{sT1}, s{sHQ}, 1280
        s_add_u32 s{sT0}, s{sT0}, s{sT1}
        s_add_u32 s{sT0}, s{sT0}, {WS_O}
        v_lshl_add_u32 v{vC0}, v{vLane}, 4, s{sT0}
        s_add_u32 s{sT0}, s{sT0}, 1024
        v_lshl_add_u32 v{vC1}, v{vLane}, 2, s{sT0}
        """)
        for nt in range(3):
            p(f"s_mov_b32 s{sT1}, {O_TILE*nt}")
            p(f"buffer_store_dwordx4 v[{on4}:{on4+3}], v{vC0}, s[{SRD_WS}:{SRD_WS+3}], s{sT1} offen sc1")
            p(f"buffer_store_dword v{on4}, v{vC1}, s[{SRD_WS}:{SRD_WS+3}], s{sT1} offen sc1")
    def count(word, name):
        p(f"""
        s_cmp_lg_u32 s{sWR}, 0
        s_cbranch_scc1 L_p_nocnt{name}
        v_mov_b32 v{t0}, {word}
        v_mov_b32 v{t1}, 1
        s_mov_b32 exec_lo, 1
        s_mov_b32 exec_hi, 0
        global_atomic_add v{t0}, v{t1}, s[{S_DBG}:{S_DBG+1}] sc1
        s_mov_b64 exec, -1
        """)
        p.label(f"L_p_nocnt{name}")
    def check(word, name):
        p(f"""
        s_cmp_lg_u32 s{sWR}, 0
        s_cbranch_scc1 L_p_clr_ok{name}
        s_mov_b32 s{sCNT}, 0
        s_mov_b32 exec_lo, 1
        s_mov_b32 exec_hi, 0
        v_mov_b32 v{t0}, {word}
        """)
        p.label(f"L_p_clr{name}")
        p(f"""
        global_load_dword v{t1}, v{t0}, s[{S_DBG}:{S_DBG+1}] sc1
        s_waitcnt vmcnt(0)
        v_readfirstlane_b32 s{sT0}, v{t1}
        s_cmp_ge_u32 s{sT0}, {N_B}
        s_cbranch_scc1 L_p_clr_ok{name}
        s_add_u32 s{sCNT}, s{sCNT}, 1
        s_cmp_gt_u32 s{sCNT}, {1 << 12}
        s_cbranch_scc1 L_p_clr_ok{name}
        s_sleep 16
        s_branch L_p_clr{name}
        """)
        p.label(f"L_p_clr_ok{name}")
        p("s_mov_b64 exec, -1")
    def wo_prefetch():
        p(f"""
        s_lshr_b32 s{sT0}, s2, 3
        s_cmp_ge_u32 s{sT0}, 20
        s_cbranch_scc1 L_p_nopf
        s_mul_i32 s{sT0}, s{sT0}, 320
        s_mul_i32 s{sT1}, s{sWR}, 80
        s_add_u32 s{sT0}, s{sT0}, s{sT1}
        v_add_u32 v{t0}, s{sT0}, v{vLane}
        v_lshlrev_b32 v{t0}, 7, v{t0}
        buffer_load_dword v{VGPRS-1}, v{t0}, s[{SRD_WO}:{SRD_WO+3}], 0 offen
        s_mov_b32 exec_lo, 0xffff
        s_mov_b32 exec_hi, 0
        v_add_u32 v{t0}, {64*128}, v{t0}
        buffer_load_dword v{VGPRS-1}, v{t0}, s[{SRD_WO}:{SRD_WO+3}], 0 offen
        s_mov_b64 exec, -1
        """)
        p.label("L_p_nopf")
    clear_part(); clear_o()
    for st_ in range(3, 10):
        dma_stage()
        if 'pdiag' in OPT: stamp(p, 4 + (st_ - 3))
        p(f"s_waitcnt vmcnt({28 if st_ in (3, 4) else 20})")
        p("s_barrier")
        if st_ == 5: count(DBG_CNT, "p")
    p("s_waitcnt vmcnt(10)\n s_barrier")
    p("s_waitcnt vmcnt(0)\n s_barrier")
    wo_prefetch()
    check(DBG_CNT, "p")
    p("s_mov_b32 s97, 0\n s_branch L_wo_load")
    V.free = list(mark)
    p.label("L_b_compute")
    vWp = V.alloc(4, align=4); vWp2 = V.alloc(4, align=4)
    p(f"""
    s_cmp_eq_u32 s{sTY}, 0
    s_cselect_b32 s{sT0}, s{sHP}, s{sHQ}
    s_mul_i32 s{sT0}, s{sT0}, 1600
    v_lshlrev_b32 v{t0}, 4, v{vLane}
    v_add_u32 v{t0}, s{sT0}, v{t0}
    v_add_u32 v{t1}, 1024, v{t0}
    s_waitcnt lgkmcnt(0)
    global_load_dwordx4 v[{vWp}:{vWp+3}], v{t0}, s[{S_WPHI}:{S_WPHI+1}]
    s_mov_b32 exec_hi, 15
    global_load_dwordx4 v[{vWp2}:{vWp2+3}], v{t1}, s[{S_WPHI}:{S_WPHI+1}]
    s_mov_b32 exec_hi, -1
    """)
    PF0 = 1 if 'st2' in OPT else 3
    NPF = 0
    if 'l2pf' in OPT:
        NPF = 2
        a0 = V.alloc(); a1 = V.alloc(); a2 = V.alloc(); a3 = V.alloc(); d0 = V.alloc(); ad = V.alloc(2, align=2)
        p(f"""
        ; lane -> chunk PF0 + lane/10, item r = lane%10 ; it = min((i*8 + w)*10 + r, 1727)
        v_mul_u32_u24 v{a0}, 205, v{vLane}
        v_lshrrev_b32 v{a0}, 11, v{a0}               ; lane/10
        v_mul_u32_u24 v{a1}, 10, v{a0}
        v_sub_u32 v{a1}, v{vLane}, v{a1}             ; r
        s_lshl_b32 s{sT1}, s{sI}, 3
        s_add_u32 s{sT1}, s{sT1}, s{sW}
        s_mul_i32 s{sT1}, s{sT1}, 10
        v_add_u32 v{a1}, s{sT1}, v{a1}               ; it
        v_min_u32 v{a1}, 1727, v{a1}
        v_add_u32 v{a0}, {PF0}, v{a0}                ; chunk
        s_lshr_b32 s{sT2}, s{sJ}, 2
        s_mul_i32 s{sT2}, s{sT2}, 960
        v_add_u32 v{a2}, s{sT2}, v{a1}
        v_min_u32 v{a2}, 2047, v{a2}
        v_mul_u32_u24 v{a2}, 1280, v{a2}
        v_lshl_add_u32 v{a2}, v{a0}, 7, v{a2}
        ; W: u = it - 1152 ; krow = u/9 ; rem = u%9 ; seg = rem/3 ; ln = rem%3
        v_subrev_u32 v{a1}, 1152, v{a1}
        v_max_i32 v{d0}, 0, v{a1}
        v_mul_u32_u24 v{a3}, 7282, v{d0}
        v_lshrrev_b32 v{a3}, 16, v{a3}               ; krow
        v_mul_u32_u24 v{t3}, 9, v{a3}
        v_sub_u32 v{d0}, v{d0}, v{t3}                ; rem
        v_lshl_add_u32 v{a3}, v{a0}, 6, v{a3}
        v_mul_u32_u24 v{a3}, 3840, v{a3}
        v_mul_u32_u24 v{t3}, 86, v{d0}
        v_lshrrev_b32 v{t3}, 8, v{t3}                ; seg
        v_mul_u32_u24 v{a0}, 3, v{t3}
        v_sub_u32 v{d0}, v{d0}, v{a0}                ; ln
        v_mul_u32_u24 v{t3}, 1280, v{t3}
        v_lshl_add_u32 v{t3}, v{d0}, 7, v{t3}
        s_and_b32 s{sT2}, s{sJ}, 3
        s_mul_i32 s{sT2}, s{sT2}, 320
        s_and_b32 s{sT2}, s{sT2}, 0xffffff80
        v_add3_u32 v{a3}, v{a3}, v{t3}, s{sT2}
        v_cmp_gt_i32 vcc, 0, v{a1}                   ; x lanes
        v_cndmask_b32 v{a2}, v{a3}, v{a2}, vcc
        v_mov_b32 v{a0}, {6*64*3840}
        v_mov_b32 v{a1}, {6*128}
        v_cndmask_b32 v{a3}, v{a0}, v{a1}, vcc
        v_mov_b32 v{a0}, s{S_WQKV}
        v_mov_b32 v{a1}, s{S_X}
        v_cndmask_b32 v{ad}, v{a0}, v{a1}, vcc
        v_mov_b32 v{a0}, s{S_WQKV+1}
        v_mov_b32 v{a1}, s{S_X+1}
        v_cndmask_b32 v{ad+1}, v{a0}, v{a1}, vcc
        v_add_co_u32 v{ad}, vcc, v{ad}, v{a2}
        v_addc_co_u32 v{ad+1}, vcc, 0, v{ad+1}, vcc
        """)
        if 'st2' in OPT: p("s_barrier")
        p(f"""
        s_mov_b32 exec_hi, 0x0fffffff
        global_load_dword v{VGPRS-1}, v[{ad}:{ad+1}], off
        s_mov_b32 exec_hi, -1
        v_add_co_u32 v{ad}, vcc, v{ad}, v{a3}
        v_addc_co_u32 v{ad+1}, vcc, 0, v{ad+1}, vcc
        s_mov_b32 exec_lo, {0x3ff if PF0 == 3 else 0x3fffffff:#x}
        s_mov_b32 exec_hi, 0
        global_load_dword v{VGPRS-1}, v[{ad}:{ad+1}], off
        s_mov_b64 exec, -1
        """)
        for r in (a0, a1, a2, a3, d0): V.release(r)
        V.release(ad, 2)
    stamp(p, 1)
    srd(p, SRD_WS, S_WS, WS_SIZE)
    srd(p, SRD_O, S_OUT, 2048 * 2560)
    p(f"""
    s_mov_b32 s{sL}, {LOG2E:#x}
    s_mov_b32 s{sL+1}, {LOG2E:#x}
    s_mov_b32 s{sNEG}, {-3*SLOT & 0xffffffff:#x}
    """)
    vXa = V.alloc(2, align=1); vWa = V.alloc(4, align=1)
    for ks in range(2):
        p(f"""
        v_add_u32 v{t0}, {4*ks}, v{vG}
        v_lshrrev_b32 v{t1}, 1, v{vI}
        v_xor_b32 v{t0}, v{t0}, v{t1}
        v_lshlrev_b32 v{t0}, 4, v{t0}
        s_mul_i32 s{sT0}, s{sWR}, 48
        v_add_u32 v{t1}, s{sT0}, v{vI}
        v_lshl_add_u32 v{vXa+ks}, v{t1}, 7, v{t0}
        """)
    p(f"""
    v_and_b32 v{t0}, 1, v{vG}
    v_xor_b32 v{t0}, s{sTY}, v{t0}
    v_lshlrev_b32 v{t0}, 7, v{t0}
    v_bfe_u32 v{t2}, v{vI}, 1, 1
    v_lshl_add_u32 v{t0}, v{t2}, 4, v{t0}
    v_and_b32 v{t2}, 1, v{vI}
    v_lshl_add_u32 v{t0}, v{t2}, 3, v{t0}
    v_lshrrev_b32 v{t1}, 2, v{vI}
    v_lshl_add_u32 v{t2}, v{vG}, 3, v{t1}
    v_lshl_add_u32 v{t0}, v{t2}, 8, v{t0}
    v_add_u32 v{t0}, {WOFF}, v{t0}
    """)
    for mt in range(4):
        p(f"v_xor_b32 v{t2}, {mt}, v{t1}\n v_lshl_add_u32 v{vWa+mt}, v{t2}, 5, v{t0}")
    acc = V.alloc(48, align=4)
    for k in range(48): p(f"v_mov_b32 v{acc+k}, 0")
    WPB = 3 * SLOT
    vFA = V.alloc(16, align=4)
    FA, FB, FC0, FC1 = vFA, vFA + 4, vFA + 8, vFA + 12
    GT = V.alloc(32, align=1)
    for k in range(32): p(f"v_mov_b32 v{GT+k}, 0")
    p(f"""
    s_lshl_b32 s{sT0}, s{sW}, 11
    s_add_u32 s{sT0}, s{sT0}, {WPB}
    v_lshl_add_u32 v{t0}, v{vLane}, 4, s{sT0}
    v_lshrrev_b32 v{t1}, 2, v{vI}
    v_mul_u32_u24 v{t1}, 5, v{t1}
    v_and_b32 v{t2}, 3, v{vI}
    v_add_u32 v{t2}, v{t1}, v{t2}
    v_lshlrev_b32 v{t2}, 1, v{t2}
    v_mul_u32_u24 v{t3}, 160, v{vG}
    v_add3_u32 v{t2}, v{t2}, v{t3}, s{sT0}      ; t2: f = 5(m>>2)+(m&3)
    v_add_u32 v{t1}, 4, v{t1}
    v_lshlrev_b32 v{t1}, 1, v{t1}
    v_add3_u32 v{t1}, v{t1}, v{t3}, s{sT0}      ; t1: f = 5(m>>2)+4
    s_waitcnt vmcnt({NPF})
    """)
    p(f"""
    ds_write_b128 v{t0}, v[{vWp}:{vWp+3}]
    s_mov_b32 exec_hi, 15
    ds_write_b128 v{t0}, v[{vWp2}:{vWp2+3}] offset:1024
    s_mov_b32 exec_hi, -1
    s_waitcnt lgkmcnt(0)
    """)
    def gather(dst, addr, off, mask):
        p(f"s_mov_b32 exec_lo, {mask & 0xffffffff:#x}\n s_mov_b32 exec_hi, {mask >> 32:#x}")
        for e in range(4):
            p(f"ds_read_u16 v{GT + 2*(dst - vFA) + e}, v{addr} offset:{off + 40*e}")
    G0 = 0xFFFF; G01 = 0xFFFFFFFF; G123 = 0xFFFFFFFFFFFF0000; ALL = (1 << 64) - 1
    R0 = 0x1111111111111111; R1 = 0x2222222222222222
    gather(FA, t2, 0, ALL);            gather(FA + 2, t2, 16*40, G0)
    gather(FB, t2, 800 - 160, G123);   gather(FB + 2, t2, 800 + 12*40, G01)
    gather(FC0, t1, 0, R0);            gather(FC0 + 2, t1, 16*40, G0 & R0)
    gather(FC1, t1, 800 - 160, G123 & R1); gather(FC1 + 2, t1, 800 + 12*40, G01 & R1)
    p("s_mov_b64 exec, -1\n s_waitcnt lgkmcnt(0)")
    for k in range(16):
        p(f"v_lshl_or_b32 v{vFA+k}, v{GT+2*k+1}, 16, v{GT+2*k}")
    V.release(GT, 32); V.release(vWp, 4); V.release(vWp2, 4)
    XF = [V.alloc(12, align=4), V.alloc(12, align=4)]
    WF = [V.alloc(16, align=4), V.alloc(16, align=4)]
    def reads(ks):
        L = []
        for mt in range(4):
            for h in range(2):
                L.append(f"ds_read_b64_tr_b16 v[{WF[ks]+4*mt+2*h}:{WF[ks]+4*mt+2*h+1}], v{vWa+mt} offset:{8192*ks + 1024*h}")
        X = [f"ds_read_b128 v[{XF[ks]+4*nt}:{XF[ks]+4*nt+3}], v{vXa+ks} offset:{2048*nt}" for nt in range(3)]
        return [L[0], L[1], X[0], X[1], X[2]] + L[2:]
    def mfmas(ks):
        L = []
        for mt in range(4):
            for nt in range(3):
                a = acc + 16*nt + 4*mt
                L.append(f"v_mfma_f32_16x16x32_bf16 v[{a}:{a+3}], v[{WF[ks]+4*mt}:{WF[ks]+4*mt+3}], v[{XF[ks]+4*nt}:{XF[ks]+4*nt+3}], v[{a}:{a+3}]")
        return L
    def sched(main, slots):
        for i, m in enumerate(main):
            if 'nomfma' not in OPT: p(m)
            for x in slots.get(i, []):
                if ('nomfma' in OPT or 'nords' in OPT) and x.startswith('ds_read'): continue
                p(x)
    def advance():
        return [f"v_add_u32 v{r}, s{sSLOTD}, v{r}" for r in (vWa, vXa, vWa+1, vWa+2, vWa+3, vXa+1)]
    if 'fdiag' not in OPT: stamp(p, 15)
    p("s_barrier")
    stamp(p, 2)
    if 'fdiag' not in OPT: cstamp(p, 13)
    for x in reads(0): p(x)
    p(f"s_mov_b32 s{sS}, 0")
    def slot_delta():
        return [f"s_and_b32 s{sT0}, s{sS}, 3", f"s_cmp_eq_u32 s{sT0}, 3", f"s_cselect_b32 s{sSLOTD}, s{sNEG}, {SLOT}"]
    RSP = int(common.os.environ.get("RSP", "2"))
    def read_slots(r, first):
        d = {}
        k = first
        while r:
            d[k] = r[:RSP]; r = r[RSP:]; k += 1
        return d
    def half0():
        p("s_waitcnt lgkmcnt(0)")
        slots = read_slots(reads(1), 0)
        slots[7] = slot_delta()
        sched(mfmas(0), slots)
    def half1(nxt=True):
        p("s_waitcnt lgkmcnt(0)")
        if nxt:
            p("s_barrier")
            slots = read_slots(reads(0), 1)
            slots[0] = advance()
            sched(mfmas(1), slots)
        else:
            sched(mfmas(1), {})
    p.label("L_b_main")
    half0(); half1()
    p(f"s_add_u32 s{sS}, s{sS}, 1\n s_cmp_lt_u32 s{sS}, 9\n s_cbranch_scc1 L_b_main")
    half0(); half1(nxt=False)
    stamp(p, 3)
    if 'fdiag' not in OPT: cstamp(p, 14)
    V.release(XF[0], 12); V.release(XF[1], 12); V.release(WF[0], 16); V.release(WF[1], 16)
    V.release(vXa, 2); V.release(vWa, 4)
    def wait_cleared(name, vN, vm):
        p(f"s_mov_b32 s{sCNT}, 0\n s_waitcnt vmcnt({vm})")
        p.label(f"L_b_wc{name}")
        p(f"""
        v_readfirstlane_b32 s{sT0}, v{vN}
        s_cmp_ge_u32 s{sT0}, {N_B}
        s_cbranch_scc1 L_b_wc_ok{name}
        s_add_u32 s{sCNT}, s{sCNT}, 1
        s_cmp_gt_u32 s{sCNT}, {SPIN_MAX}
        s_cbranch_scc1 L_b_wc_ok{name}
        v_mov_b32 v{vN}, {DBG_CNT}
        global_load_dword v{vN}, v{vN}, s[{S_DBG}:{S_DBG+1}] sc1
        s_waitcnt vmcnt(0)
        s_branch L_b_wc{name}
        """)
        p.label(f"L_b_wc_ok{name}")
    P = V.alloc(3 * 8, align=2)
    vRow = V.alloc()
    vV2 = V.alloc(); vV3 = V.alloc()
    p(f"""
    s_mul_i32 s{sT0}, s{sWR}, 48
    v_add_u32 v{t0}, s{sT0}, v{vI}
    v_mul_u32_u24 v{vRow}, {RS}, v{t0}
    v_add_u32 v{vRow}, {PHI}, v{vRow}
    s_mul_i32 s{sT0}, s{sTY}, 48
    v_lshlrev_b32 v{t1}, 3, v{vG}
    v_add3_u32 v{vV2}, v{t1}, v{vRow}, s{sT0}
    v_add_u32 v{vV2}, {192 - 16}, v{vV2}
    v_add_u32 v{t2}, {192 + 16}, v{t1}
    v_add_u32 v{t3}, {192 + 64}, v{t1}
    v_cmp_gt_u32 vcc, 2, v{vG}
    v_add_u32 v{vV3}, {280 - 16}, v{t1}
    v_cndmask_b32 v{t3}, v{vV3}, v{t3}, vcc
    s_cmp_eq_u32 s{sTY}, 0
    s_cselect_b64 vcc, -1, 0
    v_cndmask_b32 v{t3}, v{t3}, v{t2}, vcc
    v_add_u32 v{vV3}, v{t3}, v{vRow}
    """)
    def cvtP(nt, mts):
        for mt in mts:
            a = acc + 16*nt + 4*mt
            p(f"v_cvt_pk_bf16_f32 v{P+8*nt+2*mt}, v{a}, v{a+1}")
            p(f"v_cvt_pk_bf16_f32 v{P+8*nt+2*mt+1}, v{a+2}, v{a+3}")
    for nt in range(3): cvtP(nt, (2, 3))
    p("s_mov_b32 exec_lo, 0")
    for nt in range(3): p(f"ds_write_b64 v{vV2}, v[{P+8*nt+4}:{P+8*nt+5}] offset:{16*RS*nt}")
    p("s_mov_b32 exec_lo, -1")
    p(f"s_cmp_eq_u32 s{sTY}, 0\n s_cselect_b32 exec_hi, -1, 0")
    for nt in range(3): p(f"ds_write_b64 v{vV3}, v[{P+8*nt+6}:{P+8*nt+7}] offset:{16*RS*nt}")
    p("s_mov_b32 exec_hi, -1")
    for nt in range(3): cvtP(nt, (0, 1))
    V.release(vV2); V.release(vV3)
    if common.DUMP:
        p(f"""
        s_lshl_b32 s{sT0}, s2, 3
        s_add_u32 s{sT0}, s{sT0}, s{sW}
        s_mul_i32 s{sT0}, s{sT0}, {24*256}
        s_add_u32 s{sT0}, s{sT0}, {4<<20}
        v_lshl_add_u32 v{t0}, v{vLane}, 2, s{sT0}
        """)
        for k in range(24):
            p(f"buffer_store_dword v{P+k}, v{t0}, s[{SRD_WS}:{SRD_WS+3}], 0 offen offset:{256*(k%16)}")
            if k == 15: p(f"v_add_u32 v{t0}, 4096, v{t0}")
        p("s_waitcnt vmcnt(0)")
    V.release(acc, 48)
    if common.os.environ.get('RDBG'): print('free before softmax', [i for i,f in enumerate(V.free) if f])
    TTb = V.alloc(38, align=4)
    TT = [TTb, TTb + 12, TTb + 24]
    EE = [V.alloc(20, align=2) for _ in range(3)]
    SS = [[V.alloc(2, align=2) for _ in range(3)] for _ in range(3)]
    def softmax(nt, outs):
        T, E, S = TT[nt], EE[nt], SS[nt]
        X01 = P + 8*nt; X12 = P + 8*nt + 2
        a0, a1, b0, b1, c, d = S[0], S[0]+1, S[1], S[1]+1, S[2], S[2]+1
        L = [f"v_mfma_f32_16x16x32_bf16 v[{T}:{T+3}], v[{FA}:{FA+3}], v[{X01}:{X01+3}], 0",
             f"v_mfma_f32_16x16x32_bf16 v[{T+8}:{T+11}], v[{FC0}:{FC0+3}], v[{X01}:{X01+3}], 0",
             f"v_mfma_f32_16x16x32_bf16 v[{T+4}:{T+7}], v[{FB}:{FB+3}], v[{X12}:{X12+3}], 0",
             f"v_mfma_f32_16x16x32_bf16 v[{T+8}:{T+11}], v[{FC1}:{FC1+3}], v[{X12}:{X12+3}], v[{T+8}:{T+11}]"]
        x = [[T, T+1, T+2, T+3, T+8], [T+4, T+5, T+6, T+7, T+9]]
        for h, (a, b) in enumerate(((a0, b0), (a1, b1))):
            xs = x[h]
            L += [f"v_max3_f32 v{a}, v{xs[0]}, v{xs[1]}, v{xs[2]}", f"v_max3_f32 v{b}, -v{xs[0]}, -v{xs[1]}, -v{xs[2]}"]
        for h, (a, b) in enumerate(((a0, b0), (a1, b1))):
            xs = x[h]
            L += [f"v_max3_f32 v{a}, v{a}, v{xs[3]}, v{xs[4]}", f"v_max3_f32 v{b}, v{b}, -v{xs[3]}, -v{xs[4]}"]
        def allred(op):
            return [f"v_permlane16_swap_b32 v{a0}, v{b0}", f"v_permlane16_swap_b32 v{a1}, v{b1}",
                    f"{op} v{a0}, v{a0}, v{b0}", f"{op} v{a1}, v{a1}, v{b1}",
                    f"v_permlane32_swap_b32 v{a0}, v{a1}", f"{op} v{c}, v{a0}, v{a1}"]
        bc = [f"v_mov_b32 v{d}, v{c}", f"v_permlane32_swap_b32 v{c}, v{d}", f"v_mov_b32 v{a0}, v{c}", f"v_mov_b32 v{a1}, v{d}",
              f"v_permlane16_swap_b32 v{a0}, v{c}", f"v_permlane16_swap_b32 v{a1}, v{d}"]
        L += allred("v_max_f32") + [f"v_mul_f32 v{c}, s{sL}, v{c}"] + bc
        sel = [(0, 0), (0, 0), (1, 1), (1, 1), (0, 1)]
        for k in range(5):
            lo, hi = sel[k]
            if lo == 1:
                L.append(f"v_fma_f32 v{E+2*k}, v{T+2*k}, s{sL}, -v{a1}")
                L.append(f"v_fma_f32 v{E+2*k+1}, v{T+2*k+1}, s{sL}, -v{a1}")
                L.append(f"v_fma_f32 v{E+10+2*k}, -v{T+2*k}, s{sL}, -v{d}")
                L.append(f"v_fma_f32 v{E+10+2*k+1}, -v{T+2*k+1}, s{sL}, -v{d}")
                continue
            L.append(f"v_pk_fma_f32 v[{E+2*k}:{E+2*k+1}], v[{T+2*k}:{T+2*k+1}], s[{sL}:{sL+1}], v[{a0}:{a1}] op_sel:[0,0,{lo}] op_sel_hi:[1,1,{hi}] neg_lo:[0,0,1] neg_hi:[0,0,1]")
            L.append(f"v_pk_fma_f32 v[{E+10+2*k}:{E+10+2*k+1}], v[{T+2*k}:{T+2*k+1}], s[{sL}:{sL+1}], v[{c}:{d}] op_sel:[0,0,{lo}] op_sel_hi:[1,1,{hi}] neg_lo:[1,0,1] neg_hi:[1,0,1]")
        L += [f"v_exp_f32 v{E+k}, v{E+k}" for k in range(20)]
        L += [f"v_pk_add_f32 v[{T}:{T+1}], v[{E}:{E+1}], v[{E+2}:{E+3}]",
              f"v_pk_add_f32 v[{T+2}:{T+3}], v[{E+4}:{E+5}], v[{E+6}:{E+7}]",
              f"v_pk_add_f32 v[{T+4}:{T+5}], v[{E+10}:{E+11}], v[{E+12}:{E+13}]",
              f"v_pk_add_f32 v[{T+6}:{T+7}], v[{E+14}:{E+15}], v[{E+16}:{E+17}]",
              f"v_add_f32 v{a0}, v{T}, v{T+1}", f"v_add_f32 v{a1}, v{T+2}, v{T+3}",
              f"v_add_f32 v{b0}, v{T+4}, v{T+5}", f"v_add_f32 v{b1}, v{T+6}, v{T+7}",
              f"v_pk_add_f32 v[{a0}:{a1}], v[{a0}:{a1}], v[{E+8}:{E+9}]",
              f"v_pk_add_f32 v[{b0}:{b1}], v[{b0}:{b1}], v[{E+18}:{E+19}]"]
        L += allred("v_add_f32") + [f"v_rcp_f32 v{c}, v{c}"] + bc
        for k in range(5):
            lo, hi = sel[k]
            if lo == 1:
                L.append(f"v_mul_f32 v{E+2*k}, v{E+2*k}, v{a1}")
                L.append(f"v_mul_f32 v{E+2*k+1}, v{E+2*k+1}, v{a1}")
                L.append(f"v_mul_f32 v{E+10+2*k}, v{E+10+2*k}, v{d}")
                L.append(f"v_mul_f32 v{E+10+2*k+1}, v{E+10+2*k+1}, v{d}")
                continue
            L.append(f"v_pk_mul_f32 v[{E+2*k}:{E+2*k+1}], v[{E+2*k}:{E+2*k+1}], v[{a0}:{a1}] op_sel:[0,{lo}] op_sel_hi:[1,{hi}]")
            L.append(f"v_pk_mul_f32 v[{E+10+2*k}:{E+10+2*k+1}], v[{E+10+2*k}:{E+10+2*k+1}], v[{c}:{d}] op_sel:[0,{lo}] op_sel_hi:[1,{hi}]")
        pairs = [[(0, 1), (2, 3), (8, 10), (11, 12), (13, 18)], [(4, 5), (6, 7), (9, 14), (15, 16), (17, 19)]]
        for h in range(2):
            for k, (u, w) in enumerate(pairs[h]):
                L.append(f"v_cvt_pk_bf16_f32 v{outs[h]+k}, v{E+u}, v{E+w}")
        return L
    snap = list(V.free)
    p(f"s_cmp_eq_u32 s{sTY}, 0\n s_cbranch_scc0 L_b_qtype")
    stamp(p, 4)
    p(f"""
    s_mul_i32 s{sT0}, s{sWR}, 48
    s_add_u32 s{sT0}, s{sT0}, s{sROW0}
    v_add_u32 v{t0}, s{sT0}, v{vI}
    v_mov_b32 v{t1}, 0x3f80
    """)
    on = EE[0]
    p(f"v_mov_b32 v{on+1}, 0")
    for nt in range(3):
        p(f"""
        v_cmp_gt_u32 vcc, 0x800, v{t0}
        v_cndmask_b32 v{on}, 0, v{t1}, vcc
        ds_write_b64 v{vRow}, v[{on}:{on+1}] offset:{16*RS*nt + 272}
        v_add_u32 v{t0}, 16, v{t0}
        """)
    vPh = V.alloc()
    p(f"v_mul_u32_u24 v{t0}, 24, v{vG}\n v_add_u32 v{vPh}, v{t0}, v{vRow}")
    streams = []
    for nt in range(3):
        T = TT[nt]
        L = softmax(nt, [T, T + 6])
        for h in range(2):
            o = T + 6*h; off = 16*RS*nt + 96*h
            L += [f"ds_write_b64 v{vPh}, v[{o}:{o+1}] offset:{off}", f"ds_write_b64 v{vPh}, v[{o+2}:{o+3}] offset:{off+8}",
                  f"ds_write_b32 v{vPh}, v{o+4} offset:{off+16}"]
        streams.append(L)
    for x in merge(streams): p(x)
    p("s_waitcnt lgkmcnt(0)\n s_barrier")
    for r, n in [(P, 24), (vRow, 1), (vFA, 16), (TTb, 38), (vPh, 1)] + [(x, 20) for x in EE] + [(y, 2) for x in SS for y in x]:
        V.release(r, n)
    stamp(p, 5)
    sHD, sHF = 95, 96
    vAa = V.alloc(); vB0 = V.alloc()
    p(f"""
    s_and_b32 s{sHD}, s{sWR}, 1
    s_lshr_b32 s{sHF}, s{sWR}, 1
    v_lshrrev_b32 v{t0}, 2, v{vI}
    v_lshl_add_u32 v{t0}, v{vG}, 3, v{t0}
    v_mul_u32_u24 v{t0}, {RS}, v{t0}
    v_add_u32 v{t0}, {PHI}, v{t0}
    v_and_b32 v{t1}, 3, v{vI}
    v_mul_u32_u24 v{t2}, 24, v{t1}
    s_mul_i32 s{sT0}, s{sHD}, 96
    v_add3_u32 v{vAa}, v{t0}, v{t2}, s{sT0}
    s_mul_i32 s{sT0}, s{sHD}, 40
    v_lshlrev_b32 v{t2}, 3, v{t1}
    v_add_u32 v{t2}, s{sT0}, v{t2}
    v_add_u32 v{vB0}, 192, v{t2}
    s_add_u32 s{sT0}, s{sT0}, 224
    v_mov_b32 v{t2}, 272
    v_mov_b32 v{t3}, s{sT0}
    v_cmp_eq_u32 vcc, s{sHD}, v{t1}
    v_cndmask_b32 v{t2}, v{t2}, v{t3}, vcc
    s_cmp_eq_u32 s{sHF}, 0
    s_cselect_b64 vcc, -1, 0
    v_cndmask_b32 v{t2}, v{t2}, v{vB0}, vcc
    v_add_u32 v{vB0}, v{t0}, v{t2}
    """)
    KF = V.alloc(48, align=4); KD = V.alloc(12, align=4)
    def kvreads(ks):
        b = KF + 16 * (ks % 3); off = 32 * RS * ks
        for h in range(2):
            p(f"ds_read_b64_tr_b16 v[{b+12+2*h}:{b+12+2*h+1}], v{vB0} offset:{off + 4*RS*h}")
        for mt in range(3):
            for h in range(2):
                p(f"ds_read_b64_tr_b16 v[{b+4*mt+2*h}:{b+4*mt+2*h+1}], v{vAa} offset:{off + 4*RS*h + 8*mt}")
    kvreads(0); kvreads(1)
    vP0 = V.alloc(); vP1 = V.alloc()
    p(f"""
    s_lshl_b32 s{sT0}, s{sRB}, 4
    s_add_u32 s{sT0}, s{sT0}, s{sHP}
    s_mul_i32 s{sT0}, s{sT0}, {PART_STRIDE}
    s_mul_i32 s{sT1}, s{sWR}, 1280
    s_add_u32 s{sT0}, s{sT0}, s{sT1}
    s_add_u32 s{sT0}, s{sT0}, {WS_PART}
    v_lshl_add_u32 v{vP0}, v{vLane}, 4, s{sT0}
    s_add_u32 s{sT0}, s{sT0}, 1024
    v_lshl_add_u32 v{vP1}, v{vLane}, 2, s{sT0}
    """)
    for ks in range(6):
        p(f"s_waitcnt lgkmcnt({8 if ks < 5 else 0})")
        b = KF + 16 * (ks % 3)
        for mt in range(3):
            c = "0" if ks == 0 else f"v[{KD+4*mt}:{KD+4*mt+3}]"
            p(f"v_mfma_f32_16x16x32_bf16 v[{KD+4*mt}:{KD+4*mt+3}], v[{b+4*mt}:{b+4*mt+3}], v[{b+12}:{b+15}], {c}")
        if ks + 2 < 6: kvreads(ks + 2)
    q = V.alloc(6, align=4)
    p(f"""
    v_cvt_pk_bf16_f32 v{q}, v{KD}, v{KD+1}
    v_cvt_pk_bf16_f32 v{q+1}, v{KD+2}, v{KD+3}
    v_cvt_pk_bf16_f32 v{q+2}, v{KD+4}, v{KD+5}
    v_cvt_pk_bf16_f32 v{q+3}, v{KD+6}, v{KD+7}
    v_cvt_pk_bf16_f32 v{q+4}, v{KD+8}, v{KD+9}
    buffer_store_dwordx4 v[{q}:{q+3}], v{vP0}, s[{SRD_WS}:{SRD_WS+3}], 0 offen sc1
    buffer_store_dword v{q+4}, v{vP1}, s[{SRD_WS}:{SRD_WS+3}], 0 offen sc1
    """)
    stamp(p, 6)
    V.release(KF, 48); V.release(KD, 12)
    L = V.alloc(56, align=4)
    A10 = V.alloc(10, align=2); mx = V.alloc()
    p(f"""
    s_lshl_b32 s{sT0}, s{sRB}, 4
    s_add_u32 s{sT0}, s{sT0}, s{sHP}
    s_sub_u32 s{sT0}, s{sT0}, s{sHQ}
    s_mul_i32 s{sT0}, s{sT0}, {PART_STRIDE}
    v_subrev_u32 v{t0}, s{sT0}, v{vP0}
    v_subrev_u32 v{t1}, s{sT0}, v{vP1}
    s_mov_b32 s{sCNT}, 0
    """)
    def ld_part(r):
        p(f"s_mov_b32 s{sT0}, {r*16*PART_STRIDE}")
        p(f"buffer_load_dwordx4 v[{L+4*r}:{L+4*r+3}], v{t0}, s[{SRD_WS}:{SRD_WS+3}], s{sT0} offen sc1")
        p(f"buffer_load_dword v{L+44+r}, v{t1}, s[{SRD_WS}:{SRD_WS+3}], s{sT0} offen sc1")
    sHI = 97; sLO = 90
    p(f"s_mov_b32 s{sHI}, 0x3f800000\n s_mov_b32 s{sLO}, 0x00003f80")
    if 'p1old' not in OPT:
        if 'noack1' not in OPT: p("s_waitcnt vmcnt(0)")
        for r in range(11): ld_part(r)
        sANY = 91
        p.label("L_b_att1")
        p(f"s_waitcnt vmcnt(0)\n s_mov_b32 s{sANY}, 0")
        for r in range(11):
            p(f"""
            v_max3_u32 v{mx}, v{L+4*r}, v{L+4*r+1}, v{L+4*r+2}
            v_max3_u32 v{mx}, v{mx}, v{L+4*r+3}, v{L+44+r}
            v_cmp_eq_u32 vcc, -1, v{mx}
            s_cbranch_vccz L_b_have1_{r}
            s_mov_b32 s{sANY}, 1
            """)
            ld_part(r)
            p.label(f"L_b_have1_{r}")
        p(f"""
        s_cmp_eq_u32 s{sANY}, 0
        s_cbranch_scc1 L_b_got1
        s_add_u32 s{sCNT}, s{sCNT}, 1
        s_cmp_le_u32 s{sCNT}, {SPIN_MAX}
        s_cbranch_scc1 L_b_att1
        s_waitcnt vmcnt(0)
        """)
        p.label("L_b_got1")
        stamp(p, 7)
        for r in range(11):
            for k in range(5):
                src = L + 4*r + k if k < 4 else L + 44 + r
                c0 = "0" if r == 0 else f"v{A10+2*k}"
                c1 = "0" if r == 0 else f"v{A10+2*k+1}"
                p(f"v_dot2_f32_bf16 v{A10+2*k}, v{src}, s{sLO}, {c0}")
                p(f"v_dot2_f32_bf16 v{A10+2*k+1}, v{src}, s{sHI}, {c1}")
    p.label("L_b_sum1")
    for k in range(5):
        p(f"v_cvt_pk_bf16_f32 v{L+k}, v{A10+2*k}, v{A10+2*k+1}")
    p(f"""
    s_lshl_b32 s{sT1}, s{sWR}, 10
    s_add_u32 s{sT1}, s{sT1}, {AST}
    v_lshl_add_u32 v{t0}, v{vLane}, 4, s{sT1}
    ds_write_b128 v{t0}, v[{L}:{L+3}]
    s_lshl_b32 s{sT1}, s{sWR}, 8
    s_add_u32 s{sT1}, s{sT1}, {AST + 4096}
    v_lshl_add_u32 v{t1}, v{vLane}, 2, s{sT1}
    ds_write_b32 v{t1}, v{L+4}
    s_waitcnt lgkmcnt(0)
    s_barrier
    """)
    stamp(p, 8)
    if 'noe3' not in OPT: p("s_barrier")
    p("s_branch L_b_final")
    V.free = list(snap)
    p.label("L_b_qtype")
    p("s_waitcnt lgkmcnt(0)\n s_barrier")

    stamp(p, 4)
    for x in merge([softmax(nt, [TT[nt], TT[nt] + 6]) for nt in range(3)]): p(x)
    for nt in range(3):
        p(f"v_mov_b32 v{TT[nt]+5}, 0\n v_mov_b32 v{TT[nt]+11}, 0")
    p(f"v_mov_b32 v{TT[2]+12}, 0\n v_mov_b32 v{TT[2]+13}, 0")
    stamp(p, 5)
    for r, n in [(P, 24), (vRow, 1), (vFA, 16)] + [(x, 20) for x in EE] + [(y, 2) for x in SS for y in x]:
        V.release(r, n)
    p("s_waitcnt vmcnt(0) lgkmcnt(0)\n s_barrier")
    stamp(p, 6)
    AF = V.alloc(32, align=4)
    p(f"""
    v_lshlrev_b32 v{t0}, 4, v{vLane}
    v_add_u32 v{t0}, {AST}, v{t0}
    v_lshlrev_b32 v{t1}, 2, v{vLane}
    v_add_u32 v{t1}, {AST+4096}, v{t1}
    """)
    for k in range(4):
        p(f"ds_read_b128 v[{AF+8*k}:{AF+8*k+3}], v{t0} offset:{1024*k}")
        p(f"ds_read_b32 v{AF+8*k+4}, v{t1} offset:{256*k}")
    for k in range(4):
        for z in (5, 6, 7): p(f"v_mov_b32 v{AF+8*k+z}, 0")
    vOa = V.alloc(); vOb = V.alloc()
    ODs = [V.alloc(16, align=4) for _ in range(3)]; ws_ = [V.alloc(8, align=4) for _ in range(3)]
    sEPS = 97
    p(f"""
    s_mov_b32 s{sEPS}, 0x358637bd
    s_mul_i32 s{sT0}, s{sRB}, 12
    s_mul_i32 s{sT1}, s{sWR}, 3
    s_add_u32 s{sT0}, s{sT0}, s{sT1}
    s_mul_i32 s{sT0}, s{sT0}, {O_TILE}
    s_mul_i32 s{sT1}, s{sHQ}, 1280
    s_add_u32 s{sT0}, s{sT0}, s{sT1}
    s_add_u32 s{sT0}, s{sT0}, {WS_O}
    v_lshl_add_u32 v{vOa}, v{vLane}, 4, s{sT0}
    v_lshlrev_b32 v{t0}, 4, v{vI}
    v_lshl_add_u32 v{t0}, v{vG}, 3, v{t0}
    s_add_u32 s{sT0}, s{sT0}, 1024
    v_add_u32 v{vOb}, s{sT0}, v{t0}
    v_cmp_gt_u32 vcc, 16, v{vLane}
    s_mov_b32 s{sT2}, {O_TILE}
    s_mov_b32 s{sT3}, {2*O_TILE}
    s_waitcnt lgkmcnt(0)
    """)
    stamp(p, 8)
    streams = []
    for nt in range(3):
        OD = ODs[nt]; w = ws_[nt]
        L = []
        for h in range(2):
            b = TT[nt] + 6*h
            a0_ = AF + 8*h; a1_ = AF + 8*(h + 2)
            o0 = OD + 8*h; o1 = o0 + 4
            L += [f"v_mfma_f32_16x16x32_bf16 v[{o0}:{o0+3}], v[{a0_}:{a0_+3}], v[{b}:{b+3}], 0",
                  f"v_mfma_f32_16x16x32_bf16 v[{o1}:{o1+3}], v[{a1_}:{a1_+3}], v[{b}:{b+3}], 0",
                  f"v_mfma_f32_16x16x32_bf16 v[{o0}:{o0+3}], v[{a0_+4}:{a0_+7}], v[{b+4}:{b+7}], v[{o0}:{o0+3}]",
                  f"v_mfma_f32_16x16x32_bf16 v[{o1}:{o1+3}], v[{a1_+4}:{a1_+7}], v[{b+4}:{b+7}], v[{o1}:{o1+3}]"]
        y = [w + 6, w + 4]
        L += [f"v_mov_b32 v{y[0]}, v{OD+4}", f"v_mov_b32 v{y[1]}, v{OD+12}",
              f"v_permlane16_swap_b32 v{OD+4}, v{y[0]}", f"v_permlane16_swap_b32 v{y[1]}, v{OD+12}",
              f"v_add_f32 v{y[0]}, s{sEPS}, v{y[0]}", f"v_add_f32 v{y[1]}, s{sEPS}, v{y[1]}",
              f"v_rcp_f32 v{y[0]}, v{y[0]}", f"v_rcp_f32 v{y[1]}, v{y[1]}"]
        for h in range(2):
            for r in range(0, 8, 2):
                a = OD + 8*h + r
                L.append(f"v_pk_mul_f32 v[{a}:{a+1}], v[{a}:{a+1}], v[{y[h]}:{y[h]+1}] op_sel:[0,0] op_sel_hi:[1,0]")
        L += [f"v_cvt_pk_bf16_f32 v{w}, v{OD}, v{OD+1}", f"v_cvt_pk_bf16_f32 v{w+1}, v{OD+2}, v{OD+3}",
              f"v_cvt_pk_bf16_f32 v{w+2}, v{OD+8}, v{OD+9}", f"v_cvt_pk_bf16_f32 v{w+3}, v{OD+10}, v{OD+11}",
              f"v_cvt_pk_bf16_f32 v{OD+4}, v{OD+4}, v{OD+5}", f"v_cvt_pk_bf16_f32 v{OD+5}, v{OD+6}, v{OD+7}",
              f"v_cvt_pk_bf16_f32 v{OD+12}, v{OD+12}, v{OD+13}", f"v_cvt_pk_bf16_f32 v{OD+13}, v{OD+14}, v{OD+15}",
              f"v_cndmask_b32 v{w+4}, v{OD+12}, v{OD+4}, vcc", f"v_cndmask_b32 v{w+5}, v{OD+13}, v{OD+5}, vcc"]
        streams.append(L)
    for x in merge(streams): p(x)
    if 'fdiag' not in OPT: stamp(p, 15)
    so = ["0", f"s{sT2}", f"s{sT3}"]
    for nt in range(3):
        p(f"buffer_store_dwordx4 v[{ws_[nt]}:{ws_[nt]+3}], v{vOa}, s[{SRD_WS}:{SRD_WS+3}], {so[nt]} offen sc1")
    p("s_mov_b32 exec_hi, 0")
    for nt in range(3):
        p(f"buffer_store_dwordx2 v[{ws_[nt]+4}:{ws_[nt]+5}], v{vOb}, s[{SRD_WS}:{SRD_WS+3}], {so[nt]} offen sc1")
    p("s_mov_b32 exec_hi, -1")
    stamp(p, 7)
    if 'noe3' not in OPT: p("s_waitcnt vmcnt(0)\n s_barrier")
    p("s_branch L_b_final")
    p.label("L_wo_load")
    wa = [8, 9, 10, 11, 12]
    p(f"s_lshr_b32 s{sT0}, s2, 3\n s_and_b32 s{sT0}, s{sT0}, 7\n s_mul_i32 s{sT0}, s{sT0}, 160")
    for m in range(5):
        p(f"""
        v_add_u32 v{t0}, {64*m}, v{vLane}
        v_mul_u32_u24 v{t1}, 6554, v{t0}
        v_lshrrev_b32 v{t1}, 16, v{t1}              ; row = P / 10
        v_mul_u32_u24 v{t2}, 10, v{t1}
        v_sub_u32 v{t0}, v{t0}, v{t2}               ; chunk
        v_mul_u32_u24 v{t1}, 1280, v{t1}
        v_lshl_add_u32 v{t1}, v{t0}, 4, v{t1}
        v_add_u32 v{wa[m]}, s{sT0}, v{t1}
        """)
    p(f"""
    s_mul_i32 s{sM0}, s{sWR}, 25600
    s_mul_i32 s{sT2}, s{sWR}, {5*32*1280}
    s_barrier
    """)
    for ii in range(25):
        p(f"s_add_u32 s{sT1}, s{sT2}, {(ii // 5)*32*1280}\n s_add_u32 m0, s{sM0}, {WO_IMG + 1024*ii}")
        p(f"buffer_load_dwordx4 v{wa[ii % 5]}, s[{SRD_WO}:{SRD_WO+3}], s{sT1} offen lds")
    if 'pdiag' not in OPT: stamp(p, 4)
    p(f"""
    s_cmp_eq_u32 s97, 0
    s_cbranch_scc1 L_wo_nochk
    """)
    check(DBG_CNT, "a")
    p.label("L_wo_nochk")
    p("s_waitcnt vmcnt(0)")
    if 'pdiag' not in OPT: stamp(p, 5)
    p("s_barrier")
    if common.DIAG:
        stamps_flush(p, t0, t1, loader=True)
    p("s_endpgm")
    p.label("L_b_final")
    V.free = [i > t3 for i in range(V.limit)]
    sNT, sKH = 95, 96
    OF = V.alloc(40, align=4)
    vR = V.alloc(); mx = V.alloc()
    p(f"""
    s_lshr_b32 s{sT0}, s2, 3               ; i
    s_and_b32 s{sCG}, s{sT0}, 7
    s_lshr_b32 s{sT0}, s{sT0}, 3
    s_and_b32 s{sT1}, s2, 7
    s_lshl_b32 s{sT1}, s{sT1}, 2
    s_add_u32 s{sRT}, s{sT1}, s{sT0}
    s_and_b32 s{sNT}, s{sW}, 3
    s_lshr_b32 s{sKH}, s{sW}, 2
    s_lshl_b32 s{sT0}, s{sRT}, 2
    s_add_u32 s{sT0}, s{sT0}, s{sNT}
    s_mul_i32 s{sT0}, s{sT0}, {O_TILE}
    s_mul_i32 s{sT1}, s{sKH}, 10240
    s_add_u32 s{sT0}, s{sT0}, s{sT1}
    s_add_u32 s{sT0}, s{sT0}, {WS_O}
    v_lshl_add_u32 v{vR}, v{vLane}, 4, s{sT0}
    s_mov_b32 s{sCNT}, 0
    """)
    def ld_o(ks):
        p(f"s_mov_b32 s{sT1}, {4096*(ks >> 2)}")
        p(f"buffer_load_dwordx4 v[{OF+4*ks}:{OF+4*ks+3}], v{vR}, s[{SRD_WS}:{SRD_WS+3}], s{sT1} offen offset:{1024*(ks & 3)} sc1")
    PD = int(common.os.environ.get("PD", "5"))
    for ks in range(min(PD, 10)): ld_o(ks)
    vA = V.alloc(5, align=1)
    for k5 in range(5):
        p(f"""
        v_add_u32 v{t0}, {4*k5}, v{vG}
        v_mul_u32_u24 v{t1}, 52, v{t0}
        v_lshrrev_b32 v{t1}, 8, v{t1}               ; z / 5
        v_lshlrev_b32 v{t0}, 2, v{t0}
        v_mul_u32_u24 v{t1}, 20, v{t1}
        v_add_u32 v{t0}, v{t0}, v{t1}               ; 40 (z/5) + 4 (z%5)
        v_lshrrev_b32 v{t1}, 2, v{vI}
        v_add_u32 v{t0}, v{t0}, v{t1}
        v_mul_u32_u24 v{t0}, 160, v{t0}
        v_bfe_u32 v{t1}, v{vI}, 1, 1
        v_lshl_add_u32 v{t0}, v{t1}, 4, v{t0}
        v_and_b32 v{t1}, 1, v{vI}
        v_lshl_add_u32 v{t0}, v{t1}, 3, v{t0}
        s_mul_i32 s{sT1}, s{sKH}, {320*160}
        v_add_u32 v{vA+k5}, s{sT1}, v{t0}
        """)
    FAc = V.alloc(20, align=4); WA = [V.alloc(20, align=4), V.alloc(20, align=4)]
    def wreads(ks, b=None):
        if b is None: b = WA[ks & 1]
        return [f"ds_read_b64_tr_b16 v[{b+4*mt+2*h}:{b+4*mt+2*h+1}], v{vA + ks % 5} offset:{WO_IMG + (ks // 5)*25600 + 3200*h + 32*mt}" for mt in range(5) for h in range(2)]
    sMISS = 90
    def chk_o(ks):
        o = OF + 4*ks
        p(f"""
        v_max3_u32 v{mx}, v{o}, v{o+1}, v{o+2}
        v_max_u32 v{mx}, v{mx}, v{o+3}
        v_cmp_eq_u32 vcc, -1, v{mx}
        """)
    def mf_o(ks, wb, fill=()):
        for mt in range(5):
            a = FAc + 4*mt
            p(f"v_mfma_f32_16x16x32_bf16 v[{a}:{a+3}], v[{wb+4*mt}:{wb+4*mt+3}], v[{OF+4*ks}:{OF+4*ks+3}], v[{a}:{a+3}]")
            if fill:
                p(fill[2*mt]); p(fill[2*mt+1])
    for x in wreads(0): p(x)
    for k in range(20): p(f"v_mov_b32 v{FAc+k}, 0")
    p(f"s_mov_b32 s{sMISS}, 0")
    for ks in range(10):
        nxt = wreads(ks + 1) if ks < 9 else []
        p(f"s_waitcnt vmcnt({min(PD-1, 9-ks)})")
        if ks + PD < 10: ld_o(ks + PD)
        chk_o(ks)
        p(f"s_cbranch_vccz L_b_ok2_{ks}")
        p(f"s_bitset1_b32 s{sMISS}, {ks}")
        ld_o(ks)
        p("s_waitcnt lgkmcnt(0)")
        for x in nxt: p(x)
        p(f"s_branch L_b_nx2_{ks}")
        p.label(f"L_b_ok2_{ks}")
        if ks == 0: stamp(p, 9)
        p("s_waitcnt lgkmcnt(0)")
        mf_o(ks, WA[ks & 1], nxt)
        p.label(f"L_b_nx2_{ks}")
    p(f"s_cmp_eq_u32 s{sMISS}, 0\n s_cbranch_scc1 L_b_ok2")
    p.label("L_b_p2")
    p("s_waitcnt vmcnt(0)")
    for ks in range(10):
        p(f"s_bitcmp1_b32 s{sMISS}, {ks}\n s_cbranch_scc0 L_b_p2n_{ks}")
        chk_o(ks)
        p(f"s_cbranch_vccnz L_b_p2r_{ks}")
        for x in wreads(ks, WA[0]): p(x)
        p("s_waitcnt lgkmcnt(0)")
        mf_o(ks, WA[0])
        p(f"s_bitset0_b32 s{sMISS}, {ks}\n s_branch L_b_p2n_{ks}")
        p.label(f"L_b_p2r_{ks}")
        ld_o(ks)
        p.label(f"L_b_p2n_{ks}")
    p(f"""
    s_cmp_eq_u32 s{sMISS}, 0
    s_cbranch_scc1 L_b_ok2
    s_add_u32 s{sCNT}, s{sCNT}, 1
    s_cmp_le_u32 s{sCNT}, {SPIN_MAX}
    s_cbranch_scc1 L_b_p2
    s_waitcnt vmcnt(0)
    """)
    p.label("L_b_ok2")
    stamp(p, 10)
    p(f"""
    s_mul_i32 s{sT0}, s{sW}, 3072
    s_add_u32 s{sT0}, s{sT0}, {RED}
    v_lshl_add_u32 v{t0}, v{vLane}, 4, s{sT0}
    s_xor_b32 s{sT1}, s{sW}, 4
    s_mul_i32 s{sT1}, s{sT1}, 3072
    s_add_u32 s{sT1}, s{sT1}, {RED}
    v_lshl_add_u32 v{t1}, v{vLane}, 4, s{sT1}
    s_lshl_b32 s{sT0}, s{sRT}, 6
    s_lshl_b32 s{sT1}, s{sNT}, 4
    s_add_u32 s{sT0}, s{sT0}, s{sT1}
    v_add_u32 v{t2}, s{sT0}, v{vI}
    v_mul_u32_u24 v{t2}, 2560, v{t2}
    s_mul_i32 s{sT0}, s{sCG}, 160
    s_add_u32 s{sT0}, s{sT0}, 1280
    v_add_u32 v{t2}, s{sT0}, v{t2}
    v_lshl_add_u32 v{vR}, v{vG}, 3, v{t2}
    v_and_b32 v{t3}, 1, v{vG}
    v_lshl_add_u32 v{t2}, v{t3}, 5, v{t2}
    v_lshrrev_b32 v{t3}, 1, v{vG}
    v_lshl_add_u32 v{t2}, v{t3}, 4, v{t2}
    s_cmp_eq_u32 s{sKH}, 0
    s_cbranch_scc1 L_b_red0
    """)
    def add4(a, b):
        p(f"v_pk_add_f32 v[{a}:{a+1}], v[{a}:{a+1}], v[{b}:{b+1}]")
        p(f"v_pk_add_f32 v[{a+2}:{a+3}], v[{a+2}:{a+3}], v[{b+2}:{b+3}]")
    def pair_store(A, B, off):
        d = OF + 16
        p(f"""
        v_cvt_pk_bf16_f32 v{d}, v{A}, v{A+1}
        v_cvt_pk_bf16_f32 v{d+1}, v{A+2}, v{A+3}
        v_cvt_pk_bf16_f32 v{d+2}, v{B}, v{B+1}
        v_cvt_pk_bf16_f32 v{d+3}, v{B+2}, v{B+3}
        v_permlane16_swap_b32 v{d}, v{d+2}
        v_permlane16_swap_b32 v{d+1}, v{d+3}
        buffer_store_dwordx4 v[{d}:{d+3}], v{t2}, s[{SRD_O}:{SRD_O+3}], 0 offen offset:{off}
        """)
    for k, mt in enumerate((0, 1, 4)):
        p(f"ds_write_b128 v{t0}, v[{FAc+4*mt}:{FAc+4*mt+3}] offset:{1024*k}")
    p("s_waitcnt lgkmcnt(0)\n s_barrier")
    for k in range(2): p(f"ds_read_b128 v[{OF+4*k}:{OF+4*k+3}], v{t1} offset:{1024*k}")
    p("s_waitcnt lgkmcnt(0)")
    add4(FAc + 8, OF); add4(FAc + 12, OF + 4)
    pair_store(FAc + 8, FAc + 12, 64)
    p("s_branch L_b_done")
    p.label("L_b_red0")
    for k, mt in enumerate((2, 3)):
        p(f"ds_write_b128 v{t0}, v[{FAc+4*mt}:{FAc+4*mt+3}] offset:{1024*k}")
    p("s_waitcnt lgkmcnt(0)\n s_barrier")
    for k in range(3): p(f"ds_read_b128 v[{OF+4*k}:{OF+4*k+3}], v{t1} offset:{1024*k}")
    p("s_waitcnt lgkmcnt(0)")
    add4(FAc, OF); add4(FAc + 4, OF + 4); add4(FAc + 16, OF + 8)
    pair_store(FAc, FAc + 4, 0)
    d = OF + 20
    p(f"""
    v_cvt_pk_bf16_f32 v{d}, v{FAc+16}, v{FAc+17}
    v_cvt_pk_bf16_f32 v{d+1}, v{FAc+18}, v{FAc+19}
    buffer_store_dwordx2 v[{d}:{d+1}], v{vR}, s[{SRD_O}:{SRD_O+3}], 0 offen offset:128
    """)
    p.label("L_b_done")
    dbgmax(p, 9, t2, t3, sW)
    stamp(p, 11)
    if common.DIAG:
        p('s_waitcnt vmcnt(0)')
        stamp(p, 12)
        stamps_flush(p, t0, t1)
    return V
```

```python
from common import *
import common

SLOT = 40960
WOFF = 24576
WO_IMG = 0
PHI = 81920
RS = 296
AST = 139264
RED = 81920
WS_PART = 65536
PART_STRIDE = 5120
WS_O = 1 << 20
O_TILE = 20480
WS_SIZE = 16 << 20
SPIN_MAX = 1 << 14
DBG_CNT = 4

def merge(streams):
    out = []
    n = max(len(s) for s in streams)
    for j in range(n):
        for s in streams:
            if j < len(s): out.append(s[j])
    return out

def gen_part_b(p):
    V = VAlloc(VGPRS - 1, start=1)
    sJ, sI, sT, sRB, sHP, sW, sWR, sTY = 32, 33, 34, 35, 36, 37, 38, 39
    SRD_X, SRD_W, SRD_WS, SRD_WO, SRD_O = 40, 44, 48, 52, 56
    sT0, sT1, sT2, sT3 = 60, 61, 62, 63
    sKC = 81; sS = 82; sSLOTD = 83; sXO = 84; sWO = 85; sM0 = 86; sROW0 = 87
    sL = 88
    sRT, sCG, sDSLOT = 92, 93, 94
    sNEG = 100; sCNT = 101
    sHQ = 80
    QX = 1 if 'qx' in common.OPT else 0
    OPT = common.OPT
    p(f"""
    s_and_b32 s{sJ}, s2, 7
    s_lshr_b32 s{sI}, s2, 3
    s_lshr_b32 s{sT0}, s{sJ}, 2
    s_mul_i32 s{sT0}, s{sT0}, 22
    s_add_u32 s{sT}, s{sT0}, s{sI}
    s_lshr_b32 s{sRB}, s{sT}, 2
    s_and_b32 s{sT0}, s{sT}, 3
    s_and_b32 s{sT1}, s{sJ}, 3
    s_lshl_b32 s{sT1}, s{sT1}, 2
    s_add_u32 s{sHP}, s{sT1}, s{sT0}
    s_mul_i32 s{sROW0}, s{sRB}, 192
    s_xor_b32 s{sHQ}, s{sHP}, {QX}
    s_mul_i32 s{sT1}, s{sT0}, 3
    s_lshl_b32 s{sT2}, s{sRB}, 1
    s_add_u32 s{sKC}, s{sT1}, s{sT2}
    s_mul_i32 s{sT1}, s{sKC}, 205
    s_lshr_b32 s{sT1}, s{sT1}, 11
    s_mul_i32 s{sT1}, s{sT1}, 10
    s_sub_u32 s{sKC}, s{sKC}, s{sT1}
    """)
    if 'rot0' in OPT: p(f"s_mov_b32 s{sKC}, 0")
    if 'rot2' in OPT: p(f"s_and_b32 s{sKC}, s{sT}, 1\n s_mul_i32 s{sKC}, s{sKC}, 5")
    vLane = V.alloc(); vI = V.alloc(); vG = V.alloc(); t0 = V.alloc(); t1 = V.alloc(); t2 = V.alloc(); t3 = V.alloc()
    p(f"""
    v_lshrrev_b32 v{t0}, 6, v0
    v_and_b32 v{vLane}, 63, v0
    v_readfirstlane_b32 s{sW}, v{t0}
    v_and_b32 v{vI}, 15, v{vLane}
    v_lshrrev_b32 v{vG}, 4, v{vLane}
    s_and_b32 s{sWR}, s{sW}, 3
    s_lshr_b32 s{sTY}, s{sW}, 2
    s_cmp_eq_u32 s{sTY}, 2
    s_cbranch_scc0 L_b_compute
    """)
    mark = list(V.free)
    if 'nopprio' not in OPT: p("s_setprio 3")
    vX = [V.alloc(), V.alloc()]; vW = [V.alloc(), V.alloc()]
    p(f"""
    s_mul_i32 s{sT0}, s{sWR}, 48
    s_add_u32 s{sT0}, s{sT0}, s{sROW0}
    v_lshrrev_b32 v{t0}, 3, v{vLane}
    v_add_u32 v{t0}, s{sT0}, v{t0}
    v_mul_u32_u24 v{t0}, 1280, v{t0}
    v_and_b32 v{t1}, 7, v{vLane}
    v_xor_b32 v{t2}, v{t1}, v{vG}
    v_lshl_add_u32 v{vX[0]}, v{t2}, 4, v{t0}
    v_xor_b32 v{t2}, 4, v{t2}
    v_lshl_add_u32 v{vX[1]}, v{t2}, 4, v{t0}
    """)
    for hv in range(2):
        p(f"""
        v_lshlrev_b32 v{t0}, 1, v{vG}
        v_add_u32 v{t0}, {8*hv}, v{t0}
        v_xor_b32 v{t0}, v{t0}, v{vI}
        v_min_u32 v{t0}, 14, v{t0}
        ; c<5: 1280+16c ; c<8: 2560+16(c-5) ; c<13: 16(c-8) ; else 2560+16(c-10)
        v_lshlrev_b32 v{t1}, 4, v{t0}
        v_add_u32 v{t2}, {2560-160}, v{t1}
        s_sub_u32 s{sT1}, s{sHQ}, s{sHP}
        s_mul_i32 s{sT1}, s{sT1}, 80
        s_sub_u32 s{sT1}, s{sT1}, 128
        v_add_u32 v{t3}, s{sT1}, v{t1}
        v_cmp_gt_u32 vcc, 13, v{t0}
        v_cndmask_b32 v{t2}, v{t2}, v{t3}, vcc
        v_add_u32 v{t3}, {2560-80}, v{t1}
        v_cmp_gt_u32 vcc, 8, v{t0}
        v_cndmask_b32 v{t2}, v{t2}, v{t3}, vcc
        v_add_u32 v{t3}, 1280, v{t1}
        v_cmp_gt_u32 vcc, 5, v{t0}
        v_cndmask_b32 v{t2}, v{t2}, v{t3}, vcc
        s_mul_i32 s{sT0}, s{sHP}, 80
        s_mul_i32 s{sT1}, s{sWR}, {16*3840}
        s_add_u32 s{sT0}, s{sT0}, s{sT1}
        v_mul_u32_u24 v{t0}, 3840, v{vG}
        v_add3_u32 v{vW[hv]}, v{t0}, v{t2}, s{sT0}
        """)
    sMX, sMW = 90, 91
    p(f"""
    s_mul_i32 s{sMX}, s{sWR}, 6144
    s_lshl_b32 s{sMW}, s{sWR}, 12
    s_add_u32 s{sMW}, s{sMW}, {WOFF}
    s_mov_b32 s{sDSLOT}, 0
    s_waitcnt lgkmcnt(0)
    """)
    srd(p, SRD_X, S_X, 2048 * 1280)
    srd(p, SRD_W, S_WQKV, 640 * 3840)
    def dma_stage():
        p(f"s_lshl_b32 s{sXO}, s{sKC}, 7\n s_mul_i32 s{sWO}, s{sKC}, {64*3840}\n s_add_u32 s{sM0}, s{sMX}, s{sDSLOT}\n s_add_u32 s{sT2}, s{sMW}, s{sDSLOT}")
        order = [("x", 0), ("w", 0), ("x", 1), ("x", 2), ("w", 1), ("x", 3), ("w", 2), ("x", 4), ("x", 5), ("w", 3)]
        for kind, e in order:
            if 'nodma' in OPT: continue
            if kind == "x":
                p(f"s_add_u32 s{sT0}, s{sXO}, {8*e*1280}\n s_add_u32 m0, s{sM0}, {1024*e}")
                p(f"buffer_load_dwordx4 v{vX[e & 1]}, s[{SRD_X}:{SRD_X+3}], s{sT0} offen lds")
            else:
                p(f"s_add_u32 s{sT0}, s{sWO}, {4*e*3840}\n s_add_u32 m0, s{sT2}, {1024*e}")
                p(f"buffer_load_dwordx4 v{vW[e >> 1]}, s[{SRD_W}:{SRD_W+3}], s{sT0} offen lds")
        p(f"""
        s_add_u32 s{sKC}, s{sKC}, 1
        s_cmp_eq_u32 s{sKC}, 10
        s_cselect_b32 s{sKC}, 0, s{sKC}
        s_add_u32 s{sDSLOT}, s{sDSLOT}, {SLOT}
        s_cmp_eq_u32 s{sDSLOT}, {4*SLOT}
        s_cselect_b32 s{sDSLOT}, 0, s{sDSLOT}
        """)
    LA = 2 if ('la2' in OPT or 'st2' in OPT) else 3
    if 'st2' in OPT:
        dma_stage()
        p("s_barrier")
        stamp(p, 1)
        srd(p, SRD_WS, S_WS, WS_SIZE)
        srd(p, SRD_WO, S_WO, 640 * 1280)
        p("s_waitcnt vmcnt(0)")
        stamp(p, 2)
        p("s_barrier")
        stamp(p, 3)
        dma_stage()
    else:
        p(f"s_mov_b32 s{sS}, 0")
        p.label("L_p_pro")
        dma_stage()
        p(f"s_add_u32 s{sS}, s{sS}, 1\n s_cmp_lt_u32 s{sS}, {LA}\n s_cbranch_scc1 L_p_pro")
        stamp(p, 1)
        srd(p, SRD_WS, S_WS, WS_SIZE)
        srd(p, SRD_WO, S_WO, 640 * 1280)
        p(f"s_waitcnt vmcnt({10*(LA-1)})")
        stamp(p, 2)
        p("s_barrier")
        stamp(p, 3)
    assert LA == 3
    on4 = V.alloc(4, align=4); vC0 = V.alloc(); vC1 = V.alloc()
    def clear_part():
        p(f"""
        v_mov_b32 v{on4}, -1
        v_mov_b32 v{on4+1}, -1
        v_mov_b32 v{on4+2}, -1
        v_mov_b32 v{on4+3}, -1
        s_lshl_b32 s{sT0}, s{sRB}, 4
        s_add_u32 s{sT0}, s{sT0}, s{sHP}
        s_mul_i32 s{sT0}, s{sT0}, {PART_STRIDE}
        s_mul_i32 s{sT1}, s{sWR}, 1280
        s_add_u32 s{sT0}, s{sT0}, s{sT1}
        s_add_u32 s{sT0}, s{sT0}, {WS_PART}
        v_lshl_add_u32 v{vC0}, v{vLane}, 4, s{sT0}
        s_add_u32 s{sT0}, s{sT0}, 1024
        v_lshl_add_u32 v{vC1}, v{vLane}, 2, s{sT0}
        buffer_store_dwordx4 v[{on4}:{on4+3}], v{vC0}, s[{SRD_WS}:{SRD_WS+3}], 0 offen sc1
        buffer_store_dword v{on4}, v{vC1}, s[{SRD_WS}:{SRD_WS+3}], 0 offen sc1
        """)
    def clear_o():
        p(f"""
        s_mul_i32 s{sT0}, s{sRB}, 12
        s_mul_i32 s{sT1}, s{sWR}, 3
        s_add_u32 s{sT0}, s{sT0}, s{sT1}
        s_mul_i32 s{sT0}, s{sT0}, {O_TILE}
        s_mul_i32 s{sT1}, s{sHQ}, 1280
        s_add_u32 s{sT0}, s{sT0}, s{sT1}
        s_add_u32 s{sT0}, s{sT0}, {WS_O}
        v_lshl_add_u32 v{vC0}, v{vLane}, 4, s{sT0}
        s_add_u32 s{sT0}, s{sT0}, 1024
        v_lshl_add_u32 v{vC1}, v{vLane}, 2, s{sT0}
        """)
        for nt in range(3):
            p(f"s_mov_b32 s{sT1}, {O_TILE*nt}")
            p(f"buffer_store_dwordx4 v[{on4}:{on4+3}], v{vC0}, s[{SRD_WS}:{SRD_WS+3}], s{sT1} offen sc1")
            p(f"buffer_store_dword v{on4}, v{vC1}, s[{SRD_WS}:{SRD_WS+3}], s{sT1} offen sc1")
    def count(word, name):
        p(f"""
        s_cmp_lg_u32 s{sWR}, 0
        s_cbranch_scc1 L_p_nocnt{name}
        v_mov_b32 v{t0}, {word}
        v_mov_b32 v{t1}, 1
        s_mov_b32 exec_lo, 1
        s_mov_b32 exec_hi, 0
        global_atomic_add v{t0}, v{t1}, s[{S_DBG}:{S_DBG+1}] sc1
        s_mov_b64 exec, -1
        """)
        p.label(f"L_p_nocnt{name}")
    def check(word, name):
        p(f"""
        s_cmp_lg_u32 s{sWR}, 0
        s_cbranch_scc1 L_p_clr_ok{name}
        s_mov_b32 s{sCNT}, 0
        s_mov_b32 exec_lo, 1
        s_mov_b32 exec_hi, 0
        v_mov_b32 v{t0}, {word}
        """)
        p.label(f"L_p_clr{name}")
        p(f"""
        global_load_dword v{t1}, v{t0}, s[{S_DBG}:{S_DBG+1}] sc1
        s_waitcnt vmcnt(0)
        v_readfirstlane_b32 s{sT0}, v{t1}
        s_cmp_ge_u32 s{sT0}, {N_B}
        s_cbranch_scc1 L_p_clr_ok{name}
        s_add_u32 s{sCNT}, s{sCNT}, 1
        s_cmp_gt_u32 s{sCNT}, {1 << 12}
        s_cbranch_scc1 L_p_clr_ok{name}
        s_sleep 16
        s_branch L_p_clr{name}
        """)
        p.label(f"L_p_clr_ok{name}")
        p("s_mov_b64 exec, -1")
    def wo_prefetch():
        p(f"""
        s_lshr_b32 s{sT0}, s2, 3
        s_cmp_ge_u32 s{sT0}, 20
        s_cbranch_scc1 L_p_nopf
        s_mul_i32 s{sT0}, s{sT0}, 320
        s_mul_i32 s{sT1}, s{sWR}, 80
        s_add_u32 s{sT0}, s{sT0}, s{sT1}
        v_add_u32 v{t0}, s{sT0}, v{vLane}
        v_lshlrev_b32 v{t0}, 7, v{t0}
        buffer_load_dword v{VGPRS-1}, v{t0}, s[{SRD_WO}:{SRD_WO+3}], 0 offen
        s_mov_b32 exec_lo, 0xffff
        s_mov_b32 exec_hi, 0
        v_add_u32 v{t0}, {64*128}, v{t0}
        buffer_load_dword v{VGPRS-1}, v{t0}, s[{SRD_WO}:{SRD_WO+3}], 0 offen
        s_mov_b64 exec, -1
        """)
        p.label("L_p_nopf")
    clear_part(); clear_o()
    for st_ in range(3, 10):
        dma_stage()
        if 'pdiag' in OPT: stamp(p, 4 + (st_ - 3))
        p(f"s_waitcnt vmcnt({28 if st_ in (3, 4) else 20})")
        p("s_barrier")
        if st_ == 5: count(DBG_CNT, "p")
    p("s_waitcnt vmcnt(10)\n s_barrier")
    p("s_waitcnt vmcnt(0)\n s_barrier")
    wo_prefetch()
    check(DBG_CNT, "p")
    p(f"""
    s_lshr_b32 s{sT0}, s2, 3               ; i
    s_cmp_ge_u32 s{sT0}, 10
    s_cselect_b32 s{sT1}, 1, 0
    s_mul_i32 s{sT1}, s{sT1}, 10
    s_sub_u32 s{sCG}, s{sT0}, s{sT1}
    ; LDS row k' = 8 z + e holds wo row 40 (z/5) + 4 (z%5) + 20 (e>>2) + (e&3);  z = 20 pw + i'
    v_lshrrev_b32 v{t0}, 3, v{vLane}            ; e
    v_bfe_u32 v{t1}, v{t0}, 1, 1
    v_lshlrev_b32 v{t1}, 1, v{t1}
    v_and_b32 v{t2}, 7, v{vLane}
    v_xor_b32 v{t1}, v{t1}, v{t2}
    v_xor_b32 v{t2}, 4, v{t1}
    v_lshrrev_b32 v{t3}, 2, v{t0}
    v_mul_u32_u24 v{t3}, 20, v{t3}
    v_and_b32 v{t0}, 3, v{t0}
    v_add_u32 v{t0}, v{t0}, v{t3}
    s_mul_i32 s{sT0}, s{sWR}, 160
    v_add_u32 v{t0}, s{sT0}, v{t0}
    v_mul_u32_u24 v{t0}, 1280, v{t0}
    s_lshl_b32 s{sT0}, s{sCG}, 7
    v_add_u32 v{t0}, s{sT0}, v{t0}
    v_lshl_add_u32 v{t3}, v{t2}, 4, v{t0}
    v_lshl_add_u32 v{t0}, v{t1}, 4, v{t0}
    s_mul_i32 s{sM0}, s{sWR}, 20480
    s_barrier
    """)
    vK0 = V.alloc(); vK1 = V.alloc()
    p(f"v_mov_b32 v{vK0}, v{t0}\n v_mov_b32 v{vK1}, v{t3}")
    p("s_cmp_ge_u32 s2, 160\n s_cbranch_scc1 L_p_nowo")
    for i in range(20):
        p(f"s_mov_b32 s{sT1}, {(40*(i//5) + 4*(i%5))*1280}\n s_add_u32 m0, s{sM0}, {WO_IMG + 1024*i}")
        p(f"buffer_load_dwordx4 v{vK1 if i & 1 else vK0}, s[{SRD_WO}:{SRD_WO+3}], s{sT1} offen lds")
    p.label("L_p_nowo")
    if 'pdiag' not in OPT: stamp(p, 4)
    p("s_waitcnt vmcnt(0)")
    if 'pdiag' not in OPT: stamp(p, 5)
    p("s_barrier")
    if 'pdiag' not in OPT: stamp(p, 6)
    if common.DIAG:
        stamps_flush(p, t0, t1, loader=True)
    p("s_endpgm")
    V.free = list(mark)
    p.label("L_b_compute")
    vWp = V.alloc(4, align=4); vWp2 = V.alloc(4, align=4)
    p(f"""
    s_cmp_eq_u32 s{sTY}, 0
    s_cselect_b32 s{sT0}, s{sHP}, s{sHQ}
    s_mul_i32 s{sT0}, s{sT0}, 1600
    v_lshlrev_b32 v{t0}, 4, v{vLane}
    v_add_u32 v{t0}, s{sT0}, v{t0}
    v_add_u32 v{t1}, 1024, v{t0}
    s_waitcnt lgkmcnt(0)
    global_load_dwordx4 v[{vWp}:{vWp+3}], v{t0}, s[{S_WPHI}:{S_WPHI+1}]
    s_mov_b32 exec_hi, 15
    global_load_dwordx4 v[{vWp2}:{vWp2+3}], v{t1}, s[{S_WPHI}:{S_WPHI+1}]
    s_mov_b32 exec_hi, -1
    """)
    PF0 = 1 if 'st2' in OPT else 3
    NPF = 0
    if 'l2pf' in OPT:
        NPF = 2
        a0 = V.alloc(); a1 = V.alloc(); a2 = V.alloc(); a3 = V.alloc(); d0 = V.alloc(); ad = V.alloc(2, align=2)
        p(f"""
        ; lane -> chunk PF0 + lane/10, item r = lane%10 ; it = min((i*8 + w)*10 + r, 1727)
        v_mul_u32_u24 v{a0}, 205, v{vLane}
        v_lshrrev_b32 v{a0}, 11, v{a0}               ; lane/10
        v_mul_u32_u24 v{a1}, 10, v{a0}
        v_sub_u32 v{a1}, v{vLane}, v{a1}             ; r
        s_lshl_b32 s{sT1}, s{sI}, 3
        s_add_u32 s{sT1}, s{sT1}, s{sW}
        s_mul_i32 s{sT1}, s{sT1}, 10
        v_add_u32 v{a1}, s{sT1}, v{a1}               ; it
        v_min_u32 v{a1}, 1727, v{a1}
        v_add_u32 v{a0}, {PF0}, v{a0}                ; chunk
        s_lshr_b32 s{sT2}, s{sJ}, 2
        s_mul_i32 s{sT2}, s{sT2}, 960
        v_add_u32 v{a2}, s{sT2}, v{a1}
        v_min_u32 v{a2}, 2047, v{a2}
        v_mul_u32_u24 v{a2}, 1280, v{a2}
        v_lshl_add_u32 v{a2}, v{a0}, 7, v{a2}
        ; W: u = it - 1152 ; krow = u/9 ; rem = u%9 ; seg = rem/3 ; ln = rem%3
        v_subrev_u32 v{a1}, 1152, v{a1}
        v_max_i32 v{d0}, 0, v{a1}
        v_mul_u32_u24 v{a3}, 7282, v{d0}
        v_lshrrev_b32 v{a3}, 16, v{a3}               ; krow
        v_mul_u32_u24 v{t3}, 9, v{a3}
        v_sub_u32 v{d0}, v{d0}, v{t3}                ; rem
        v_lshl_add_u32 v{a3}, v{a0}, 6, v{a3}
        v_mul_u32_u24 v{a3}, 3840, v{a3}
        v_mul_u32_u24 v{t3}, 86, v{d0}
        v_lshrrev_b32 v{t3}, 8, v{t3}                ; seg
        v_mul_u32_u24 v{a0}, 3, v{t3}
        v_sub_u32 v{d0}, v{d0}, v{a0}                ; ln
        v_mul_u32_u24 v{t3}, 1280, v{t3}
        v_lshl_add_u32 v{t3}, v{d0}, 7, v{t3}
        s_and_b32 s{sT2}, s{sJ}, 3
        s_mul_i32 s{sT2}, s{sT2}, 320
        s_and_b32 s{sT2}, s{sT2}, 0xffffff80
        v_add3_u32 v{a3}, v{a3}, v{t3}, s{sT2}
        v_cmp_gt_i32 vcc, 0, v{a1}                   ; x lanes
        v_cndmask_b32 v{a2}, v{a3}, v{a2}, vcc
        v_mov_b32 v{a0}, {6*64*3840}
        v_mov_b32 v{a1}, {6*128}
        v_cndmask_b32 v{a3}, v{a0}, v{a1}, vcc
        v_mov_b32 v{a0}, s{S_WQKV}
        v_mov_b32 v{a1}, s{S_X}
        v_cndmask_b32 v{ad}, v{a0}, v{a1}, vcc
        v_mov_b32 v{a0}, s{S_WQKV+1}
        v_mov_b32 v{a1}, s{S_X+1}
        v_cndmask_b32 v{ad+1}, v{a0}, v{a1}, vcc
        v_add_co_u32 v{ad}, vcc, v{ad}, v{a2}
        v_addc_co_u32 v{ad+1}, vcc, 0, v{ad+1}, vcc
        """)
        if 'st2' in OPT: p("s_barrier")
        p(f"""
        s_mov_b32 exec_hi, 0x0fffffff
        global_load_dword v{VGPRS-1}, v[{ad}:{ad+1}], off
        s_mov_b32 exec_hi, -1
        v_add_co_u32 v{ad}, vcc, v{ad}, v{a3}
        v_addc_co_u32 v{ad+1}, vcc, 0, v{ad+1}, vcc
        s_mov_b32 exec_lo, {0x3ff if PF0 == 3 else 0x3fffffff:#x}
        s_mov_b32 exec_hi, 0
        global_load_dword v{VGPRS-1}, v[{ad}:{ad+1}], off
        s_mov_b64 exec, -1
        """)
        for r in (a0, a1, a2, a3, d0): V.release(r)
        V.release(ad, 2)
    stamp(p, 1)
    srd(p, SRD_WS, S_WS, WS_SIZE)
    srd(p, SRD_O, S_OUT, 2048 * 2560)
    p(f"""
    s_mov_b32 s{sL}, {LOG2E:#x}
    s_mov_b32 s{sL+1}, {LOG2E:#x}
    s_mov_b32 s{sNEG}, {-3*SLOT & 0xffffffff:#x}
    """)
    vXa = V.alloc(2, align=1); vWa = V.alloc(4, align=1)
    for ks in range(2):
        p(f"""
        v_add_u32 v{t0}, {4*ks}, v{vG}
        v_lshrrev_b32 v{t1}, 1, v{vI}
        v_xor_b32 v{t0}, v{t0}, v{t1}
        v_lshlrev_b32 v{t0}, 4, v{t0}
        s_mul_i32 s{sT0}, s{sWR}, 48
        v_add_u32 v{t1}, s{sT0}, v{vI}
        v_lshl_add_u32 v{vXa+ks}, v{t1}, 7, v{t0}
        """)
    p(f"""
    v_and_b32 v{t0}, 1, v{vG}
    v_xor_b32 v{t0}, s{sTY}, v{t0}
    v_lshlrev_b32 v{t0}, 7, v{t0}
    v_bfe_u32 v{t2}, v{vI}, 1, 1
    v_lshl_add_u32 v{t0}, v{t2}, 4, v{t0}
    v_and_b32 v{t2}, 1, v{vI}
    v_lshl_add_u32 v{t0}, v{t2}, 3, v{t0}
    v_lshrrev_b32 v{t1}, 2, v{vI}
    v_lshl_add_u32 v{t2}, v{vG}, 3, v{t1}
    v_lshl_add_u32 v{t0}, v{t2}, 8, v{t0}
    v_add_u32 v{t0}, {WOFF}, v{t0}
    """)
    for mt in range(4):
        p(f"v_xor_b32 v{t2}, {mt}, v{t1}\n v_lshl_add_u32 v{vWa+mt}, v{t2}, 5, v{t0}")
    acc = V.alloc(48, align=4)
    for k in range(48): p(f"v_mov_b32 v{acc+k}, 0")
    WPB = 3 * SLOT
    vFA = V.alloc(16, align=4)
    FA, FB, FC0, FC1 = vFA, vFA + 4, vFA + 8, vFA + 12
    GT = V.alloc(32, align=1)
    for k in range(32): p(f"v_mov_b32 v{GT+k}, 0")
    p(f"""
    s_lshl_b32 s{sT0}, s{sW}, 11
    s_add_u32 s{sT0}, s{sT0}, {WPB}
    v_lshl_add_u32 v{t0}, v{vLane}, 4, s{sT0}
    v_lshrrev_b32 v{t1}, 2, v{vI}
    v_mul_u32_u24 v{t1}, 5, v{t1}
    v_and_b32 v{t2}, 3, v{vI}
    v_add_u32 v{t2}, v{t1}, v{t2}
    v_lshlrev_b32 v{t2}, 1, v{t2}
    v_mul_u32_u24 v{t3}, 160, v{vG}
    v_add3_u32 v{t2}, v{t2}, v{t3}, s{sT0}      ; t2: f = 5(m>>2)+(m&3)
    v_add_u32 v{t1}, 4, v{t1}
    v_lshlrev_b32 v{t1}, 1, v{t1}
    v_add3_u32 v{t1}, v{t1}, v{t3}, s{sT0}      ; t1: f = 5(m>>2)+4
    s_waitcnt vmcnt({NPF})
    """)
    p(f"""
    ds_write_b128 v{t0}, v[{vWp}:{vWp+3}]
    s_mov_b32 exec_hi, 15
    ds_write_b128 v{t0}, v[{vWp2}:{vWp2+3}] offset:1024
    s_mov_b32 exec_hi, -1
    s_waitcnt lgkmcnt(0)
    """)
    def gather(dst, addr, off, mask):
        p(f"s_mov_b32 exec_lo, {mask & 0xffffffff:#x}\n s_mov_b32 exec_hi, {mask >> 32:#x}")
        for e in range(4):
            p(f"ds_read_u16 v{GT + 2*(dst - vFA) + e}, v{addr} offset:{off + 40*e}")
    G0 = 0xFFFF; G01 = 0xFFFFFFFF; G123 = 0xFFFFFFFFFFFF0000; ALL = (1 << 64) - 1
    R0 = 0x1111111111111111; R1 = 0x2222222222222222
    gather(FA, t2, 0, ALL);            gather(FA + 2, t2, 16*40, G0)
    gather(FB, t2, 800 - 160, G123);   gather(FB + 2, t2, 800 + 12*40, G01)
    gather(FC0, t1, 0, R0);            gather(FC0 + 2, t1, 16*40, G0 & R0)
    gather(FC1, t1, 800 - 160, G123 & R1); gather(FC1 + 2, t1, 800 + 12*40, G01 & R1)
    p("s_mov_b64 exec, -1\n s_waitcnt lgkmcnt(0)")
    for k in range(16):
        p(f"v_lshl_or_b32 v{vFA+k}, v{GT+2*k+1}, 16, v{GT+2*k}")
    V.release(GT, 32); V.release(vWp, 4); V.release(vWp2, 4)
    XF = [V.alloc(12, align=4), V.alloc(12, align=4)]
    WF = [V.alloc(16, align=4), V.alloc(16, align=4)]
    def reads(ks):
        L = []
        for mt in range(4):
            for h in range(2):
                L.append(f"ds_read_b64_tr_b16 v[{WF[ks]+4*mt+2*h}:{WF[ks]+4*mt+2*h+1}], v{vWa+mt} offset:{8192*ks + 1024*h}")
        X = [f"ds_read_b128 v[{XF[ks]+4*nt}:{XF[ks]+4*nt+3}], v{vXa+ks} offset:{2048*nt}" for nt in range(3)]
        return [L[0], L[1], X[0], X[1], X[2]] + L[2:]
    def mfmas(ks):
        L = []
        for mt in range(4):
            for nt in range(3):
                a = acc + 16*nt + 4*mt
                L.append(f"v_mfma_f32_16x16x32_bf16 v[{a}:{a+3}], v[{WF[ks]+4*mt}:{WF[ks]+4*mt+3}], v[{XF[ks]+4*nt}:{XF[ks]+4*nt+3}], v[{a}:{a+3}]")
        return L
    def sched(main, slots):
        for i, m in enumerate(main):
            if 'nomfma' not in OPT: p(m)
            for x in slots.get(i, []):
                if ('nomfma' in OPT or 'nords' in OPT) and x.startswith('ds_read'): continue
                p(x)
    def advance():
        return [f"v_add_u32 v{r}, s{sSLOTD}, v{r}" for r in (vWa, vXa, vWa+1, vWa+2, vWa+3, vXa+1)]
    if 'fdiag' not in OPT: stamp(p, 15)
    p("s_barrier")
    stamp(p, 2)
    if 'fdiag' not in OPT: cstamp(p, 13)
    for x in reads(0): p(x)
    p(f"s_mov_b32 s{sS}, 0")
    def slot_delta():
        return [f"s_and_b32 s{sT0}, s{sS}, 3", f"s_cmp_eq_u32 s{sT0}, 3", f"s_cselect_b32 s{sSLOTD}, s{sNEG}, {SLOT}"]
    RSP = int(common.os.environ.get("RSP", "2"))
    def read_slots(r, first):
        d = {}
        k = first
        while r:
            d[k] = r[:RSP]; r = r[RSP:]; k += 1
        return d
    def half0():
        p("s_waitcnt lgkmcnt(0)")
        slots = read_slots(reads(1), 0)
        slots[7] = slot_delta()
        sched(mfmas(0), slots)
    def half1(nxt=True):
        p("s_waitcnt lgkmcnt(0)")
        if nxt:
            p("s_barrier")
            slots = read_slots(reads(0), 1)
            slots[0] = advance()
            sched(mfmas(1), slots)
        else:
            sched(mfmas(1), {})
    p.label("L_b_main")
    half0(); half1()
    p(f"s_add_u32 s{sS}, s{sS}, 1\n s_cmp_lt_u32 s{sS}, 9\n s_cbranch_scc1 L_b_main")
    half0(); half1(nxt=False)
    stamp(p, 3)
    if 'fdiag' not in OPT: cstamp(p, 14)
    V.release(XF[0], 12); V.release(XF[1], 12); V.release(WF[0], 16); V.release(WF[1], 16)
    V.release(vXa, 2); V.release(vWa, 4)
    def wait_cleared(name, vN, vm):
        p(f"s_mov_b32 s{sCNT}, 0\n s_waitcnt vmcnt({vm})")
        p.label(f"L_b_wc{name}")
        p(f"""
        v_readfirstlane_b32 s{sT0}, v{vN}
        s_cmp_ge_u32 s{sT0}, {N_B}
        s_cbranch_scc1 L_b_wc_ok{name}
        s_add_u32 s{sCNT}, s{sCNT}, 1
        s_cmp_gt_u32 s{sCNT}, {SPIN_MAX}
        s_cbranch_scc1 L_b_wc_ok{name}
        v_mov_b32 v{vN}, {DBG_CNT}
        global_load_dword v{vN}, v{vN}, s[{S_DBG}:{S_DBG+1}] sc1
        s_waitcnt vmcnt(0)
        s_branch L_b_wc{name}
        """)
        p.label(f"L_b_wc_ok{name}")
    P = V.alloc(3 * 8, align=2)
    vRow = V.alloc()
    vV2 = V.alloc(); vV3 = V.alloc()
    p(f"""
    s_mul_i32 s{sT0}, s{sWR}, 48
    v_add_u32 v{t0}, s{sT0}, v{vI}
    v_mul_u32_u24 v{vRow}, {RS}, v{t0}
    v_add_u32 v{vRow}, {PHI}, v{vRow}
    s_mul_i32 s{sT0}, s{sTY}, 48
    v_lshlrev_b32 v{t1}, 3, v{vG}
    v_add3_u32 v{vV2}, v{t1}, v{vRow}, s{sT0}
    v_add_u32 v{vV2}, {192 - 16}, v{vV2}
    v_add_u32 v{t2}, {192 + 16}, v{t1}
    v_add_u32 v{t3}, {192 + 64}, v{t1}
    v_cmp_gt_u32 vcc, 2, v{vG}
    v_add_u32 v{vV3}, {280 - 16}, v{t1}
    v_cndmask_b32 v{t3}, v{vV3}, v{t3}, vcc
    s_cmp_eq_u32 s{sTY}, 0
    s_cselect_b64 vcc, -1, 0
    v_cndmask_b32 v{t3}, v{t3}, v{t2}, vcc
    v_add_u32 v{vV3}, v{t3}, v{vRow}
    """)
    def cvtP(nt, mts):
        for mt in mts:
            a = acc + 16*nt + 4*mt
            p(f"v_cvt_pk_bf16_f32 v{P+8*nt+2*mt}, v{a}, v{a+1}")
            p(f"v_cvt_pk_bf16_f32 v{P+8*nt+2*mt+1}, v{a+2}, v{a+3}")
    for nt in range(3): cvtP(nt, (2, 3))
    p("s_mov_b32 exec_lo, 0")
    for nt in range(3): p(f"ds_write_b64 v{vV2}, v[{P+8*nt+4}:{P+8*nt+5}] offset:{16*RS*nt}")
    p("s_mov_b32 exec_lo, -1")
    for nt in range(3): p(f"ds_write_b64 v{vV3}, v[{P+8*nt+6}:{P+8*nt+7}] offset:{16*RS*nt}")
    for nt in range(3): cvtP(nt, (0, 1))
    V.release(vV2); V.release(vV3)
    if common.DUMP:
        p(f"""
        s_lshl_b32 s{sT0}, s2, 3
        s_add_u32 s{sT0}, s{sT0}, s{sW}
        s_mul_i32 s{sT0}, s{sT0}, {24*256}
        s_add_u32 s{sT0}, s{sT0}, {4<<20}
        v_lshl_add_u32 v{t0}, v{vLane}, 2, s{sT0}
        """)
        for k in range(24):
            p(f"buffer_store_dword v{P+k}, v{t0}, s[{SRD_WS}:{SRD_WS+3}], 0 offen offset:{256*(k%16)}")
            if k == 15: p(f"v_add_u32 v{t0}, 4096, v{t0}")
        p("s_waitcnt vmcnt(0)")
    V.release(acc, 48)
    if common.os.environ.get('RDBG'): print('free before softmax', [i for i,f in enumerate(V.free) if f])
    TTb = V.alloc(38, align=4)
    TT = [TTb, TTb + 12, TTb + 24]
    EE = [V.alloc(20, align=2) for _ in range(3)]
    SS = [[V.alloc(2, align=2) for _ in range(3)] for _ in range(3)]
    def softmax(nt, outs):
        T, E, S = TT[nt], EE[nt], SS[nt]
        X01 = P + 8*nt; X12 = P + 8*nt + 2
        a0, a1, b0, b1, c, d = S[0], S[0]+1, S[1], S[1]+1, S[2], S[2]+1
        L = [f"v_mfma_f32_16x16x32_bf16 v[{T}:{T+3}], v[{FA}:{FA+3}], v[{X01}:{X01+3}], 0",
             f"v_mfma_f32_16x16x32_bf16 v[{T+8}:{T+11}], v[{FC0}:{FC0+3}], v[{X01}:{X01+3}], 0",
             f"v_mfma_f32_16x16x32_bf16 v[{T+4}:{T+7}], v[{FB}:{FB+3}], v[{X12}:{X12+3}], 0",
             f"v_mfma_f32_16x16x32_bf16 v[{T+8}:{T+11}], v[{FC1}:{FC1+3}], v[{X12}:{X12+3}], v[{T+8}:{T+11}]"]
        x = [[T, T+1, T+2, T+3, T+8], [T+4, T+5, T+6, T+7, T+9]]
        for h, (a, b) in enumerate(((a0, b0), (a1, b1))):
            xs = x[h]
            L += [f"v_max3_f32 v{a}, v{xs[0]}, v{xs[1]}, v{xs[2]}", f"v_max3_f32 v{b}, -v{xs[0]}, -v{xs[1]}, -v{xs[2]}"]
        for h, (a, b) in enumerate(((a0, b0), (a1, b1))):
            xs = x[h]
            L += [f"v_max3_f32 v{a}, v{a}, v{xs[3]}, v{xs[4]}", f"v_max3_f32 v{b}, v{b}, -v{xs[3]}, -v{xs[4]}"]
        def allred(op):
            return [f"v_permlane16_swap_b32 v{a0}, v{b0}", f"v_permlane16_swap_b32 v{a1}, v{b1}",
                    f"{op} v{a0}, v{a0}, v{b0}", f"{op} v{a1}, v{a1}, v{b1}",
                    f"v_permlane32_swap_b32 v{a0}, v{a1}", f"{op} v{c}, v{a0}, v{a1}"]
        bc = [f"v_mov_b32 v{d}, v{c}", f"v_permlane32_swap_b32 v{c}, v{d}", f"v_mov_b32 v{a0}, v{c}", f"v_mov_b32 v{a1}, v{d}",
              f"v_permlane16_swap_b32 v{a0}, v{c}", f"v_permlane16_swap_b32 v{a1}, v{d}"]
        L += allred("v_max_f32") + [f"v_mul_f32 v{c}, s{sL}, v{c}"] + bc
        sel = [(0, 0), (0, 0), (1, 1), (1, 1), (0, 1)]
        for k in range(5):
            lo, hi = sel[k]
            if lo == 1:
                L.append(f"v_fma_f32 v{E+2*k}, v{T+2*k}, s{sL}, -v{a1}")
                L.append(f"v_fma_f32 v{E+2*k+1}, v{T+2*k+1}, s{sL}, -v{a1}")
                L.append(f"v_fma_f32 v{E+10+2*k}, -v{T+2*k}, s{sL}, -v{d}")
                L.append(f"v_fma_f32 v{E+10+2*k+1}, -v{T+2*k+1}, s{sL}, -v{d}")
                continue
            L.append(f"v_pk_fma_f32 v[{E+2*k}:{E+2*k+1}], v[{T+2*k}:{T+2*k+1}], s[{sL}:{sL+1}], v[{a0}:{a1}] op_sel:[0,0,{lo}] op_sel_hi:[1,1,{hi}] neg_lo:[0,0,1] neg_hi:[0,0,1]")
            L.append(f"v_pk_fma_f32 v[{E+10+2*k}:{E+10+2*k+1}], v[{T+2*k}:{T+2*k+1}], s[{sL}:{sL+1}], v[{c}:{d}] op_sel:[0,0,{lo}] op_sel_hi:[1,1,{hi}] neg_lo:[1,0,1] neg_hi:[1,0,1]")
        L += [f"v_exp_f32 v{E+k}, v{E+k}" for k in range(20)]
        L += [f"v_pk_add_f32 v[{T}:{T+1}], v[{E}:{E+1}], v[{E+2}:{E+3}]",
              f"v_pk_add_f32 v[{T+2}:{T+3}], v[{E+4}:{E+5}], v[{E+6}:{E+7}]",
              f"v_pk_add_f32 v[{T+4}:{T+5}], v[{E+10}:{E+11}], v[{E+12}:{E+13}]",
              f"v_pk_add_f32 v[{T+6}:{T+7}], v[{E+14}:{E+15}], v[{E+16}:{E+17}]",
              f"v_add_f32 v{a0}, v{T}, v{T+1}", f"v_add_f32 v{a1}, v{T+2}, v{T+3}",
              f"v_add_f32 v{b0}, v{T+4}, v{T+5}", f"v_add_f32 v{b1}, v{T+6}, v{T+7}",
              f"v_pk_add_f32 v[{a0}:{a1}], v[{a0}:{a1}], v[{E+8}:{E+9}]",
              f"v_pk_add_f32 v[{b0}:{b1}], v[{b0}:{b1}], v[{E+18}:{E+19}]"]
        L += allred("v_add_f32") + [f"v_rcp_f32 v{c}, v{c}"] + bc
        for k in range(5):
            lo, hi = sel[k]
            if lo == 1:
                L.append(f"v_mul_f32 v{E+2*k}, v{E+2*k}, v{a1}")
                L.append(f"v_mul_f32 v{E+2*k+1}, v{E+2*k+1}, v{a1}")
                L.append(f"v_mul_f32 v{E+10+2*k}, v{E+10+2*k}, v{d}")
                L.append(f"v_mul_f32 v{E+10+2*k+1}, v{E+10+2*k+1}, v{d}")
                continue
            L.append(f"v_pk_mul_f32 v[{E+2*k}:{E+2*k+1}], v[{E+2*k}:{E+2*k+1}], v[{a0}:{a1}] op_sel:[0,{lo}] op_sel_hi:[1,{hi}]")
            L.append(f"v_pk_mul_f32 v[{E+10+2*k}:{E+10+2*k+1}], v[{E+10+2*k}:{E+10+2*k+1}], v[{c}:{d}] op_sel:[0,{lo}] op_sel_hi:[1,{hi}]")
        pairs = [[(0, 1), (2, 3), (8, 10), (11, 12), (13, 18)], [(4, 5), (6, 7), (9, 14), (15, 16), (17, 19)]]
        for h in range(2):
            for k, (u, w) in enumerate(pairs[h]):
                L.append(f"v_cvt_pk_bf16_f32 v{outs[h]+k}, v{E+u}, v{E+w}")
        return L
    snap = list(V.free)
    p(f"s_cmp_eq_u32 s{sTY}, 0\n s_cbranch_scc0 L_b_qtype")
    stamp(p, 4)
    p(f"""
    s_mul_i32 s{sT0}, s{sWR}, 48
    s_add_u32 s{sT0}, s{sT0}, s{sROW0}
    v_add_u32 v{t0}, s{sT0}, v{vI}
    v_mov_b32 v{t1}, 0x3f80
    """)
    on = EE[0]
    p(f"v_mov_b32 v{on+1}, 0")
    for nt in range(3):
        p(f"""
        v_cmp_gt_u32 vcc, 0x800, v{t0}
        v_cndmask_b32 v{on}, 0, v{t1}, vcc
        ds_write_b64 v{vRow}, v[{on}:{on+1}] offset:{16*RS*nt + 272}
        v_add_u32 v{t0}, 16, v{t0}
        """)
    vPh = V.alloc()
    p(f"v_mul_u32_u24 v{t0}, 24, v{vG}\n v_add_u32 v{vPh}, v{t0}, v{vRow}")
    streams = []
    for nt in range(3):
        T = TT[nt]
        L = softmax(nt, [T, T + 6])
        for h in range(2):
            o = T + 6*h; off = 16*RS*nt + 96*h
            L += [f"ds_write_b64 v{vPh}, v[{o}:{o+1}] offset:{off}", f"ds_write_b64 v{vPh}, v[{o+2}:{o+3}] offset:{off+8}",
                  f"ds_write_b32 v{vPh}, v{o+4} offset:{off+16}"]
        streams.append(L)
    for x in merge(streams): p(x)
    p("s_waitcnt lgkmcnt(0)\n s_barrier")
    for r, n in [(P, 24), (vRow, 1), (vFA, 16), (TTb, 38), (vPh, 1)] + [(x, 20) for x in EE] + [(y, 2) for x in SS for y in x]:
        V.release(r, n)
    stamp(p, 5)
    sHD, sHF = 95, 96
    vAa = V.alloc(); vB0 = V.alloc()
    p(f"""
    s_and_b32 s{sHD}, s{sWR}, 1
    s_lshr_b32 s{sHF}, s{sWR}, 1
    v_lshrrev_b32 v{t0}, 2, v{vI}
    v_lshl_add_u32 v{t0}, v{vG}, 3, v{t0}
    v_mul_u32_u24 v{t0}, {RS}, v{t0}
    v_add_u32 v{t0}, {PHI}, v{t0}
    v_and_b32 v{t1}, 3, v{vI}
    v_mul_u32_u24 v{t2}, 24, v{t1}
    s_mul_i32 s{sT0}, s{sHD}, 96
    v_add3_u32 v{vAa}, v{t0}, v{t2}, s{sT0}
    s_mul_i32 s{sT0}, s{sHD}, 40
    v_lshlrev_b32 v{t2}, 3, v{t1}
    v_add_u32 v{t2}, s{sT0}, v{t2}
    v_add_u32 v{vB0}, 192, v{t2}
    s_add_u32 s{sT0}, s{sT0}, 224
    v_mov_b32 v{t2}, 272
    v_mov_b32 v{t3}, s{sT0}
    v_cmp_eq_u32 vcc, s{sHD}, v{t1}
    v_cndmask_b32 v{t2}, v{t2}, v{t3}, vcc
    s_cmp_eq_u32 s{sHF}, 0
    s_cselect_b64 vcc, -1, 0
    v_cndmask_b32 v{t2}, v{t2}, v{vB0}, vcc
    v_add_u32 v{vB0}, v{t0}, v{t2}
    """)
    KF = V.alloc(48, align=4); KD = V.alloc(12, align=4)
    def kvreads(ks):
        b = KF + 16 * (ks % 3); off = 32 * RS * ks
        for h in range(2):
            p(f"ds_read_b64_tr_b16 v[{b+12+2*h}:{b+12+2*h+1}], v{vB0} offset:{off + 4*RS*h}")
        for mt in range(3):
            for h in range(2):
                p(f"ds_read_b64_tr_b16 v[{b+4*mt+2*h}:{b+4*mt+2*h+1}], v{vAa} offset:{off + 4*RS*h + 8*mt}")
    kvreads(0); kvreads(1)
    vP0 = V.alloc(); vP1 = V.alloc()
    p(f"""
    s_lshl_b32 s{sT0}, s{sRB}, 4
    s_add_u32 s{sT0}, s{sT0}, s{sHP}
    s_mul_i32 s{sT0}, s{sT0}, {PART_STRIDE}
    s_mul_i32 s{sT1}, s{sWR}, 1280
    s_add_u32 s{sT0}, s{sT0}, s{sT1}
    s_add_u32 s{sT0}, s{sT0}, {WS_PART}
    v_lshl_add_u32 v{vP0}, v{vLane}, 4, s{sT0}
    s_add_u32 s{sT0}, s{sT0}, 1024
    v_lshl_add_u32 v{vP1}, v{vLane}, 2, s{sT0}
    """)
    for ks in range(6):
        p(f"s_waitcnt lgkmcnt({8 if ks < 5 else 0})")
        b = KF + 16 * (ks % 3)
        for mt in range(3):
            c = "0" if ks == 0 else f"v[{KD+4*mt}:{KD+4*mt+3}]"
            p(f"v_mfma_f32_16x16x32_bf16 v[{KD+4*mt}:{KD+4*mt+3}], v[{b+4*mt}:{b+4*mt+3}], v[{b+12}:{b+15}], {c}")
        if ks + 2 < 6: kvreads(ks + 2)
    q = V.alloc(6, align=4)
    p(f"""
    v_cvt_pk_bf16_f32 v{q}, v{KD}, v{KD+1}
    v_cvt_pk_bf16_f32 v{q+1}, v{KD+2}, v{KD+3}
    v_cvt_pk_bf16_f32 v{q+2}, v{KD+4}, v{KD+5}
    v_cvt_pk_bf16_f32 v{q+3}, v{KD+6}, v{KD+7}
    v_cvt_pk_bf16_f32 v{q+4}, v{KD+8}, v{KD+9}
    buffer_store_dwordx4 v[{q}:{q+3}], v{vP0}, s[{SRD_WS}:{SRD_WS+3}], 0 offen sc1
    buffer_store_dword v{q+4}, v{vP1}, s[{SRD_WS}:{SRD_WS+3}], 0 offen sc1
    """)
    stamp(p, 6)
    V.release(KF, 48); V.release(KD, 12)
    L = V.alloc(56, align=4)
    A10 = V.alloc(10, align=2); mx = V.alloc()
    p(f"""
    s_lshl_b32 s{sT0}, s{sRB}, 4
    s_add_u32 s{sT0}, s{sT0}, s{sHP}
    s_sub_u32 s{sT0}, s{sT0}, s{sHQ}
    s_mul_i32 s{sT0}, s{sT0}, {PART_STRIDE}
    v_subrev_u32 v{t0}, s{sT0}, v{vP0}
    v_subrev_u32 v{t1}, s{sT0}, v{vP1}
    s_mov_b32 s{sCNT}, 0
    """)
    def ld_part(r):
        p(f"s_mov_b32 s{sT0}, {r*16*PART_STRIDE}")
        p(f"buffer_load_dwordx4 v[{L+4*r}:{L+4*r+3}], v{t0}, s[{SRD_WS}:{SRD_WS+3}], s{sT0} offen sc1")
        p(f"buffer_load_dword v{L+44+r}, v{t1}, s[{SRD_WS}:{SRD_WS+3}], s{sT0} offen sc1")
    sHI = 97; sLO = 90
    p(f"s_mov_b32 s{sHI}, 0x3f800000\n s_mov_b32 s{sLO}, 0x00003f80")
    if 'p1old' not in OPT:
        if 'noack1' not in OPT: p("s_waitcnt vmcnt(0)")
        for r in range(11): ld_part(r)
        sANY = 91
        p.label("L_b_att1")
        p(f"s_waitcnt vmcnt(0)\n s_mov_b32 s{sANY}, 0")
        for r in range(11):
            p(f"""
            v_max3_u32 v{mx}, v{L+4*r}, v{L+4*r+1}, v{L+4*r+2}
            v_max3_u32 v{mx}, v{mx}, v{L+4*r+3}, v{L+44+r}
            v_cmp_eq_u32 vcc, -1, v{mx}
            s_cbranch_vccz L_b_have1_{r}
            s_mov_b32 s{sANY}, 1
            """)
            ld_part(r)
            p.label(f"L_b_have1_{r}")
        p(f"""
        s_cmp_eq_u32 s{sANY}, 0
        s_cbranch_scc1 L_b_got1
        s_add_u32 s{sCNT}, s{sCNT}, 1
        s_cmp_le_u32 s{sCNT}, {SPIN_MAX}
        s_cbranch_scc1 L_b_att1
        s_waitcnt vmcnt(0)
        """)
        p.label("L_b_got1")
        stamp(p, 7)
        for r in range(11):
            for k in range(5):
                src = L + 4*r + k if k < 4 else L + 44 + r
                c0 = "0" if r == 0 else f"v{A10+2*k}"
                c1 = "0" if r == 0 else f"v{A10+2*k+1}"
                p(f"v_dot2_f32_bf16 v{A10+2*k}, v{src}, s{sLO}, {c0}")
                p(f"v_dot2_f32_bf16 v{A10+2*k+1}, v{src}, s{sHI}, {c1}")
    p.label("L_b_sum1")
    for k in range(5):
        p(f"v_cvt_pk_bf16_f32 v{L+k}, v{A10+2*k}, v{A10+2*k+1}")
    p(f"""
    s_lshl_b32 s{sT1}, s{sWR}, 10
    s_add_u32 s{sT1}, s{sT1}, {AST}
    v_lshl_add_u32 v{t0}, v{vLane}, 4, s{sT1}
    ds_write_b128 v{t0}, v[{L}:{L+3}]
    s_lshl_b32 s{sT1}, s{sWR}, 8
    s_add_u32 s{sT1}, s{sT1}, {AST + 4096}
    v_lshl_add_u32 v{t1}, v{vLane}, 2, s{sT1}
    ds_write_b32 v{t1}, v{L+4}
    s_waitcnt lgkmcnt(0)
    s_barrier
    """)
    stamp(p, 8)
    if 'noe3' not in OPT: p("s_barrier")
    p("s_branch L_b_final")
    V.free = list(snap)
    p.label("L_b_qtype")
    p("s_waitcnt lgkmcnt(0)\n s_barrier")

    stamp(p, 4)
    for x in merge([softmax(nt, [TT[nt], TT[nt] + 6]) for nt in range(3)]): p(x)
    for nt in range(3):
        p(f"v_mov_b32 v{TT[nt]+5}, 0\n v_mov_b32 v{TT[nt]+11}, 0")
    p(f"v_mov_b32 v{TT[2]+12}, 0\n v_mov_b32 v{TT[2]+13}, 0")
    stamp(p, 5)
    for r, n in [(P, 24), (vRow, 1), (vFA, 16)] + [(x, 20) for x in EE] + [(y, 2) for x in SS for y in x]:
        V.release(r, n)
    p("s_waitcnt vmcnt(0) lgkmcnt(0)\n s_barrier")
    stamp(p, 6)
    AF = V.alloc(32, align=4)
    p(f"""
    v_lshlrev_b32 v{t0}, 4, v{vLane}
    v_add_u32 v{t0}, {AST}, v{t0}
    v_lshlrev_b32 v{t1}, 2, v{vLane}
    v_add_u32 v{t1}, {AST+4096}, v{t1}
    """)
    for k in range(4):
        p(f"ds_read_b128 v[{AF+8*k}:{AF+8*k+3}], v{t0} offset:{1024*k}")
        p(f"ds_read_b32 v{AF+8*k+4}, v{t1} offset:{256*k}")
    for k in range(4):
        for z in (5, 6, 7): p(f"v_mov_b32 v{AF+8*k+z}, 0")
    vOa = V.alloc(); vOb = V.alloc()
    ODs = [V.alloc(16, align=4) for _ in range(3)]; ws_ = [V.alloc(8, align=4) for _ in range(3)]
    sEPS = 97
    p(f"""
    s_mov_b32 s{sEPS}, 0x358637bd
    s_mul_i32 s{sT0}, s{sRB}, 12
    s_mul_i32 s{sT1}, s{sWR}, 3
    s_add_u32 s{sT0}, s{sT0}, s{sT1}
    s_mul_i32 s{sT0}, s{sT0}, {O_TILE}
    s_mul_i32 s{sT1}, s{sHQ}, 1280
    s_add_u32 s{sT0}, s{sT0}, s{sT1}
    s_add_u32 s{sT0}, s{sT0}, {WS_O}
    v_lshl_add_u32 v{vOa}, v{vLane}, 4, s{sT0}
    v_lshlrev_b32 v{t0}, 4, v{vI}
    v_lshl_add_u32 v{t0}, v{vG}, 3, v{t0}
    s_add_u32 s{sT0}, s{sT0}, 1024
    v_add_u32 v{vOb}, s{sT0}, v{t0}
    v_cmp_gt_u32 vcc, 16, v{vLane}
    s_mov_b32 s{sT2}, {O_TILE}
    s_mov_b32 s{sT3}, {2*O_TILE}
    s_waitcnt lgkmcnt(0)
    """)
    stamp(p, 8)
    streams = []
    for nt in range(3):
        OD = ODs[nt]; w = ws_[nt]
        L = []
        for h in range(2):
            b = TT[nt] + 6*h
            a0_ = AF + 8*h; a1_ = AF + 8*(h + 2)
            o0 = OD + 8*h; o1 = o0 + 4
            L += [f"v_mfma_f32_16x16x32_bf16 v[{o0}:{o0+3}], v[{a0_}:{a0_+3}], v[{b}:{b+3}], 0",
                  f"v_mfma_f32_16x16x32_bf16 v[{o1}:{o1+3}], v[{a1_}:{a1_+3}], v[{b}:{b+3}], 0",
                  f"v_mfma_f32_16x16x32_bf16 v[{o0}:{o0+3}], v[{a0_+4}:{a0_+7}], v[{b+4}:{b+7}], v[{o0}:{o0+3}]",
                  f"v_mfma_f32_16x16x32_bf16 v[{o1}:{o1+3}], v[{a1_+4}:{a1_+7}], v[{b+4}:{b+7}], v[{o1}:{o1+3}]"]
        y = [w + 6, w + 4]
        L += [f"v_mov_b32 v{y[0]}, v{OD+4}", f"v_mov_b32 v{y[1]}, v{OD+12}",
              f"v_permlane16_swap_b32 v{OD+4}, v{y[0]}", f"v_permlane16_swap_b32 v{y[1]}, v{OD+12}",
              f"v_add_f32 v{y[0]}, s{sEPS}, v{y[0]}", f"v_add_f32 v{y[1]}, s{sEPS}, v{y[1]}",
              f"v_rcp_f32 v{y[0]}, v{y[0]}", f"v_rcp_f32 v{y[1]}, v{y[1]}"]
        for h in range(2):
            for r in range(0, 8, 2):
                a = OD + 8*h + r
                L.append(f"v_pk_mul_f32 v[{a}:{a+1}], v[{a}:{a+1}], v[{y[h]}:{y[h]+1}] op_sel:[0,0] op_sel_hi:[1,0]")
        L += [f"v_cvt_pk_bf16_f32 v{w}, v{OD}, v{OD+1}", f"v_cvt_pk_bf16_f32 v{w+1}, v{OD+2}, v{OD+3}",
              f"v_cvt_pk_bf16_f32 v{w+2}, v{OD+8}, v{OD+9}", f"v_cvt_pk_bf16_f32 v{w+3}, v{OD+10}, v{OD+11}",
              f"v_cvt_pk_bf16_f32 v{OD+4}, v{OD+4}, v{OD+5}", f"v_cvt_pk_bf16_f32 v{OD+5}, v{OD+6}, v{OD+7}",
              f"v_cvt_pk_bf16_f32 v{OD+12}, v{OD+12}, v{OD+13}", f"v_cvt_pk_bf16_f32 v{OD+13}, v{OD+14}, v{OD+15}",
              f"v_cndmask_b32 v{w+4}, v{OD+12}, v{OD+4}, vcc", f"v_cndmask_b32 v{w+5}, v{OD+13}, v{OD+5}, vcc"]
        streams.append(L)
    for x in merge(streams): p(x)
    if 'fdiag' not in OPT: stamp(p, 15)
    so = ["0", f"s{sT2}", f"s{sT3}"]
    for nt in range(3):
        p(f"buffer_store_dwordx4 v[{ws_[nt]}:{ws_[nt]+3}], v{vOa}, s[{SRD_WS}:{SRD_WS+3}], {so[nt]} offen sc1")
    p("s_mov_b32 exec_hi, 0")
    for nt in range(3):
        p(f"buffer_store_dwordx2 v[{ws_[nt]+4}:{ws_[nt]+5}], v{vOb}, s[{SRD_WS}:{SRD_WS+3}], {so[nt]} offen sc1")
    p("s_mov_b32 exec_hi, -1")
    stamp(p, 7)
    if 'noe3' not in OPT: p("s_waitcnt vmcnt(0)\n s_barrier")
    p.label("L_b_final")
    V.free = [i > t3 for i in range(V.limit)]
    NK = 20
    OF = V.alloc(4 * NK, align=4)
    vR = V.alloc(); mx = V.alloc()
    p(f"""
    s_cmp_ge_u32 s2, 160
    s_cbranch_scc1 L_b_done
    s_lshr_b32 s{sT0}, s2, 3
    s_cmp_ge_u32 s{sT0}, 10
    s_cselect_b32 s{sT1}, 1, 0
    s_and_b32 s{sT2}, s2, 7
    s_lshl_b32 s{sT2}, s{sT2}, 1
    s_add_u32 s{sRT}, s{sT2}, s{sT1}
    s_mul_i32 s{sT1}, s{sT1}, 10
    s_sub_u32 s{sCG}, s{sT0}, s{sT1}
    s_lshl_b32 s{sT0}, s{sRT}, 3
    s_add_u32 s{sT0}, s{sT0}, s{sW}
    s_mul_i32 s{sT0}, s{sT0}, {O_TILE}
    s_add_u32 s{sT0}, s{sT0}, {WS_O}
    v_lshl_add_u32 v{vR}, v{vLane}, 4, s{sT0}
    s_mov_b32 s{sCNT}, 0
    """)
    def ld_o(ks):
        p(f"s_mov_b32 s{sT1}, {4096*(ks >> 2)}")
        p(f"buffer_load_dwordx4 v[{OF+4*ks}:{OF+4*ks+3}], v{vR}, s[{SRD_WS}:{SRD_WS+3}], s{sT1} offen offset:{1024*(ks & 3)} sc1")
    PD = int(common.os.environ.get("PD", "10"))
    for ks in range(PD): ld_o(ks)
    vA = V.alloc(8, align=1)
    p(f"""
    v_lshrrev_b32 v{t2}, 2, v{vI}
    v_bfe_u32 v{t3}, v{t2}, 1, 1
    v_and_b32 v{t0}, 1, v{vG}
    v_lshl_add_u32 v{t3}, v{t0}, 1, v{t3}        ; psi
    v_bfe_u32 v{t0}, v{vI}, 1, 1
    v_lshlrev_b32 v{t0}, 4, v{t0}
    v_and_b32 v{t1}, 1, v{vI}
    v_lshl_add_u32 v{t0}, v{t1}, 3, v{t0}
    v_lshl_add_u32 v{t2}, v{vG}, 3, v{t2}
    v_lshl_add_u32 v{t0}, v{t2}, 7, v{t0}
    """)
    for mt in range(4):
        p(f"v_xor_b32 v{t1}, {mt}, v{t3}\n v_lshl_add_u32 v{vA+mt}, v{t1}, 5, v{t0}\n v_add_u32 v{vA+4+mt}, 40960, v{vA+mt}")
    FAc = V.alloc(16, align=4); WA = [V.alloc(16, align=4), V.alloc(16, align=4)]
    def wreads(ks, b=None):
        if b is None: b = WA[ks & 1]
        return [f"ds_read_b64_tr_b16 v[{b+4*mt+2*h}:{b+4*mt+2*h+1}], v{vA + 4*(ks // 10) + mt} offset:{WO_IMG + 4096*(ks % 10) + 512*h}" for mt in range(4) for h in range(2)]
    sMISS = 90
    def chk_o(ks):
        o = OF + 4*ks
        p(f"""
        v_max3_u32 v{mx}, v{o}, v{o+1}, v{o+2}
        v_max_u32 v{mx}, v{mx}, v{o+3}
        v_cmp_eq_u32 vcc, -1, v{mx}
        """)
    def mf_o(ks, wb, fill=()):
        for mt in range(4):
            a = FAc + 4*mt
            p(f"v_mfma_f32_16x16x32_bf16 v[{a}:{a+3}], v[{wb+4*mt}:{wb+4*mt+3}], v[{OF+4*ks}:{OF+4*ks+3}], v[{a}:{a+3}]")
            if fill:
                p(fill[2*mt]); p(fill[2*mt+1])
    for x in wreads(0): p(x)
    for k in range(16): p(f"v_mov_b32 v{FAc+k}, 0")
    p(f"s_mov_b32 s{sMISS}, 0")
    for ks in range(NK):
        nxt = wreads(ks + 1) if ks < NK - 1 else []
        p(f"s_waitcnt vmcnt({min(PD-1, NK-1-ks)})")
        if ks + PD < NK: ld_o(ks + PD)
        chk_o(ks)
        p(f"s_cbranch_vccz L_b_ok2_{ks}")
        p(f"s_bitset1_b32 s{sMISS}, {ks}")
        ld_o(ks)
        p("s_waitcnt lgkmcnt(0)")
        for x in nxt: p(x)
        p(f"s_branch L_b_nx2_{ks}")
        p.label(f"L_b_ok2_{ks}")
        if ks == 0: stamp(p, 9)
        p("s_waitcnt lgkmcnt(0)")
        mf_o(ks, WA[ks & 1], nxt)
        p.label(f"L_b_nx2_{ks}")
    p(f"s_cmp_eq_u32 s{sMISS}, 0\n s_cbranch_scc1 L_b_ok2")
    p.label("L_b_p2")
    p("s_waitcnt vmcnt(0)")
    for ks in range(NK):
        p(f"s_bitcmp1_b32 s{sMISS}, {ks}\n s_cbranch_scc0 L_b_p2n_{ks}")
        chk_o(ks)
        p(f"s_cbranch_vccnz L_b_p2r_{ks}")
        for x in wreads(ks, WA[0]): p(x)
        p("s_waitcnt lgkmcnt(0)")
        mf_o(ks, WA[0])
        p(f"s_bitset0_b32 s{sMISS}, {ks}\n s_branch L_b_p2n_{ks}")
        p.label(f"L_b_p2r_{ks}")
        ld_o(ks)
        p.label(f"L_b_p2n_{ks}")
    p(f"""
    s_cmp_eq_u32 s{sMISS}, 0
    s_cbranch_scc1 L_b_ok2
    s_add_u32 s{sCNT}, s{sCNT}, 1
    s_cmp_le_u32 s{sCNT}, {SPIN_MAX}
    s_cbranch_scc1 L_b_p2
    s_waitcnt vmcnt(0)
    """)
    p.label("L_b_ok2")
    stamp(p, 10)
    p(f"""
    s_lshl_b32 s{sT0}, s{sRT}, 7
    s_lshl_b32 s{sT1}, s{sW}, 4
    s_add_u32 s{sT0}, s{sT0}, s{sT1}
    v_and_b32 v{t2}, 7, v{vI}
    v_add_u32 v{t2}, s{sT0}, v{t2}
    v_mul_u32_u24 v{t2}, 2560, v{t2}
    v_lshrrev_b32 v{t3}, 3, v{vI}
    v_lshl_add_u32 v{t2}, v{t3}, 6, v{t2}
    v_and_b32 v{t3}, 1, v{vG}
    v_lshl_add_u32 v{t2}, v{t3}, 5, v{t2}
    v_lshrrev_b32 v{t3}, 1, v{vG}
    v_lshl_add_u32 v{t2}, v{t3}, 4, v{t2}
    s_lshl_b32 s{sT0}, s{sCG}, 7
    s_add_u32 s{sT0}, s{sT0}, 1280
    v_add_u32 v{t2}, s{sT0}, v{t2}
    v_cmp_gt_u32 vcc, 8, v{vI}
    """)
    d0 = OF; d1 = OF + 4; r0 = OF + 8; r1 = OF + 12
    for a2, d in ((0, d0), (1, d1)):
        A = FAc + 8*a2; B = A + 4
        p(f"""
        v_cvt_pk_bf16_f32 v{d}, v{A}, v{A+1}
        v_cvt_pk_bf16_f32 v{d+1}, v{A+2}, v{A+3}
        v_cvt_pk_bf16_f32 v{d+2}, v{B}, v{B+1}
        v_cvt_pk_bf16_f32 v{d+3}, v{B+2}, v{B+3}
        """)
    for d in (d0, d1):
        p(f"v_permlane16_swap_b32 v{d}, v{d+2}\n v_permlane16_swap_b32 v{d+1}, v{d+3}")
    for k in range(4):
        p(f"v_mov_b32_dpp v{r0+k}, v{d0+k} row_ror:8 row_mask:0xf bank_mask:0xf")
        p(f"v_mov_b32_dpp v{r1+k}, v{d1+k} row_ror:8 row_mask:0xf bank_mask:0xf")
    for k in range(4):
        p(f"v_cndmask_b32 v{r1+k}, v{r1+k}, v{d0+k}, vcc")
        p(f"v_cndmask_b32 v{r0+k}, v{d1+k}, v{r0+k}, vcc")
    p(f"s_mov_b32 s{sT0}, {8*2560}")
    p(f"buffer_store_dwordx4 v[{r1}:{r1+3}], v{t2}, s[{SRD_O}:{SRD_O+3}], 0 offen")
    p(f"buffer_store_dwordx4 v[{r0}:{r0+3}], v{t2}, s[{SRD_O}:{SRD_O+3}], s{sT0} offen")
    p.label("L_b_done")
    dbgmax(p, 9, t2, t3, sW)
    stamp(p, 11)
    if common.DIAG:
        p('s_waitcnt vmcnt(0)')
        stamp(p, 12)
        stamps_flush(p, t0, t1)
    return V
```

```python
from common import *
import common

SLOT = 40960
WOFF = 24576
WO_IMG = 0
PHI = 81920
RS = 296
AST = 139264
RED = 81920
WS_PART = 65536
PART_STRIDE = 5120
WS_O = 1 << 20
O_TILE = 20480
WS_SIZE = 16 << 20
SPIN_MAX = 1 << 14
DBG_CNT = 4

def merge(streams):
    out = []
    n = max(len(s) for s in streams)
    for j in range(n):
        for s in streams:
            if j < len(s): out.append(s[j])
    return out

def gen_part_b(p):
    V = VAlloc(VGPRS - 1, start=1)
    sJ, sI, sT, sRB, sHP, sW, sWR, sTY = 32, 33, 34, 35, 36, 37, 38, 39
    SRD_X, SRD_W, SRD_WS, SRD_WO, SRD_O = 40, 44, 48, 52, 56
    sT0, sT1, sT2, sT3 = 60, 61, 62, 63
    sKC = 81; sS = 82; sSLOTD = 83; sXO = 84; sWO = 85; sM0 = 86; sROW0 = 87
    sL = 88
    sRT, sCG, sDSLOT = 92, 93, 94
    sNEG = 100; sCNT = 101
    sHQ = 80
    QX = 1 if 'qx' in common.OPT else 0
    OPT = common.OPT
    p(f"""
    s_and_b32 s{sJ}, s2, 7
    s_lshr_b32 s{sI}, s2, 3
    s_lshr_b32 s{sT0}, s{sJ}, 2
    s_mul_i32 s{sT0}, s{sT0}, 22
    s_add_u32 s{sT}, s{sT0}, s{sI}
    s_lshr_b32 s{sRB}, s{sT}, 2
    s_and_b32 s{sT0}, s{sT}, 3
    s_and_b32 s{sT1}, s{sJ}, 3
    s_lshl_b32 s{sT1}, s{sT1}, 2
    s_add_u32 s{sHP}, s{sT1}, s{sT0}
    s_mul_i32 s{sROW0}, s{sRB}, 192
    s_xor_b32 s{sHQ}, s{sHP}, {QX}
    s_mul_i32 s{sT1}, s{sT0}, 3
    s_lshl_b32 s{sT2}, s{sRB}, 1
    s_add_u32 s{sKC}, s{sT1}, s{sT2}
    s_mul_i32 s{sT1}, s{sKC}, 205
    s_lshr_b32 s{sT1}, s{sT1}, 11
    s_mul_i32 s{sT1}, s{sT1}, 10
    s_sub_u32 s{sKC}, s{sKC}, s{sT1}
    """)
    if 'rot0' in OPT: p(f"s_mov_b32 s{sKC}, 0")
    if 'rot2' in OPT: p(f"s_and_b32 s{sKC}, s{sT}, 1\n s_mul_i32 s{sKC}, s{sKC}, 5")
    vLane = V.alloc(); vI = V.alloc(); vG = V.alloc(); t0 = V.alloc(); t1 = V.alloc(); t2 = V.alloc(); t3 = V.alloc()
    p(f"""
    v_lshrrev_b32 v{t0}, 6, v0
    v_and_b32 v{vLane}, 63, v0
    v_readfirstlane_b32 s{sW}, v{t0}
    v_and_b32 v{vI}, 15, v{vLane}
    v_lshrrev_b32 v{vG}, 4, v{vLane}
    s_and_b32 s{sWR}, s{sW}, 3
    s_lshr_b32 s{sTY}, s{sW}, 2
    s_cmp_eq_u32 s{sTY}, 2
    s_cbranch_scc0 L_b_compute
    """)
    PAD0, PAD1, PAD2 = WOFF + 240, WOFF + 464, WOFF + 688
    def FULL(s_): return (s_ & 3) * SLOT + PAD0 + 4 * (s_ >> 2)
    def FREE(s_): return (s_ & 3) * SLOT + PAD1 + 4 * (s_ >> 2)
    def ISSUED(s_): return s_ * SLOT + PAD2
    WPHI_DONE = 3 * SLOT + PAD2 + 4
    CLR_DONE = PAD2 + 8
    mark = list(V.free)
    vX = [V.alloc(), V.alloc()]; vW = [V.alloc(), V.alloc()]; vF = V.alloc(); vOne = V.alloc()
    sSLOT = 90
    p(f"""
    s_mul_i32 s{sSLOT}, s{sWR}, {SLOT}
    v_lshrrev_b32 v{t0}, 2, v{vLane}
    v_mul_u32_u24 v{t0}, 224, v{t0}
    v_and_b32 v{t1}, 3, v{vLane}
    v_lshl_add_u32 v{t0}, v{t1}, 2, v{t0}
    v_add_u32 v{t0}, {PAD0}, v{t0}
    v_add_u32 v{t0}, s{sSLOT}, v{t0}
    v_mov_b32 v{t1}, 0
    s_mov_b32 exec_lo, 0xfff
    s_mov_b32 exec_hi, 0
    ds_write_b32 v{t0}, v{t1}
    s_mov_b64 exec, -1
    v_mov_b32 v{vOne}, 1
    v_lshrrev_b32 v{t0}, 3, v{vLane}
    v_add_u32 v{t0}, s{sROW0}, v{t0}
    v_mul_u32_u24 v{t0}, 1280, v{t0}
    v_and_b32 v{t1}, 7, v{vLane}
    v_xor_b32 v{t2}, v{t1}, v{vG}
    v_lshl_add_u32 v{vX[0]}, v{t2}, 4, v{t0}
    v_xor_b32 v{t2}, 4, v{t2}
    v_lshl_add_u32 v{vX[1]}, v{t2}, 4, v{t0}
    """)
    for hv in range(2):
        p(f"""
        v_lshlrev_b32 v{t0}, 1, v{vG}
        v_add_u32 v{t0}, {8*hv}, v{t0}
        v_xor_b32 v{t0}, v{t0}, v{vI}
        v_min_u32 v{t0}, 14, v{t0}
        ; c<5: 1280+16c ; c<8: 2560+16(c-5) ; c<13: 16(c-8) ; else 2560+16(c-10)
        v_lshlrev_b32 v{t1}, 4, v{t0}
        v_add_u32 v{t2}, {2560-160}, v{t1}
        s_sub_u32 s{sT1}, s{sHQ}, s{sHP}
        s_mul_i32 s{sT1}, s{sT1}, 80
        s_sub_u32 s{sT1}, s{sT1}, 128
        v_add_u32 v{t3}, s{sT1}, v{t1}
        v_cmp_gt_u32 vcc, 13, v{t0}
        v_cndmask_b32 v{t2}, v{t2}, v{t3}, vcc
        v_add_u32 v{t3}, {2560-80}, v{t1}
        v_cmp_gt_u32 vcc, 8, v{t0}
        v_cndmask_b32 v{t2}, v{t2}, v{t3}, vcc
        v_add_u32 v{t3}, 1280, v{t1}
        v_cmp_gt_u32 vcc, 5, v{t0}
        v_cndmask_b32 v{t2}, v{t2}, v{t3}, vcc
        s_mul_i32 s{sT0}, s{sHP}, 80
        v_mul_u32_u24 v{t0}, 3840, v{vG}
        v_add3_u32 v{vW[hv]}, v{t0}, v{t2}, s{sT0}
        """)
    def lanes_without(ls):
        m = (1 << 64) - 1
        for l in ls: m &= ~(1 << l)
        return m
    WM = [lanes_without([16*g + (15 ^ (2*g + 8*hv)) for g in range(4)]) for hv in range(2)]
    p("s_waitcnt lgkmcnt(0)\n s_barrier")
    srd(p, SRD_X, S_X, 2048 * 1280)
    srd(p, SRD_W, S_WQKV, 640 * 3840)
    srd(p, SRD_WS, S_WS, WS_SIZE)
    srd(p, SRD_WO, S_WO, 640 * 1280)
    np_ = [0]
    def poll(addr_sgpr_expr, want, name):
        np_[0] += 1
        p(f"s_mov_b32 s{sCNT}, 0")
        p.label(f"L_p_poll{name}")
        p(f"""
        ds_read_b32 v{t0}, v{vF}
        s_add_u32 s{sCNT}, s{sCNT}, 1
        s_cmp_gt_u32 s{sCNT}, {1 << 16}
        s_cbranch_scc1 L_p_pok{name}
        s_waitcnt lgkmcnt(0)
        v_readfirstlane_b32 s{sT0}, v{t0}
        s_cmp_lt_u32 s{sT0}, {want}
        s_cbranch_scc1 L_p_poll{name}
        """)
        p.label(f"L_p_pok{name}")
        p("s_waitcnt lgkmcnt(0)")
    sMX, sMW, sDS = 91, 92, 93
    p(f"""
    s_mul_i32 s{sMX}, s{sWR}, 6144
    s_lshl_b32 s{sMW}, s{sWR}, 12
    s_add_u32 s{sMW}, s{sMW}, {WOFF}
    s_mul_i32 s{sT0}, s{sWR}, {48*1280}
    v_add_u32 v{vX[0]}, s{sT0}, v{vX[0]}
    v_add_u32 v{vX[1]}, s{sT0}, v{vX[1]}
    s_mul_i32 s{sT0}, s{sWR}, {16*3840}
    v_add_u32 v{vW[0]}, s{sT0}, v{vW[0]}
    v_add_u32 v{vW[1]}, s{sT0}, v{vW[1]}
    """)
    def dma_stage(st_):
        slot = (st_ & 3) * SLOT
        p(f"s_lshl_b32 s{sXO}, s{sKC}, 7\n s_mul_i32 s{sWO}, s{sKC}, {64*3840}\n s_add_u32 s{sM0}, s{sMX}, {slot}\n s_add_u32 s{sDS}, s{sMW}, {slot}")
        for kind, es in (("x", (0, 1, 2)), ("w", (0, 1)), ("x", (3, 4, 5)), ("w", (2, 3))):
            if kind == "w":
                hv = es[0] >> 1
                p(f"s_mov_b32 exec_lo, {WM[hv] & 0xffffffff:#x}\n s_mov_b32 exec_hi, {WM[hv] >> 32:#x}")
            for e in es:
                if kind == "x":
                    p(f"s_add_u32 s{sT0}, s{sXO}, {8*e*1280}\n s_add_u32 m0, s{sM0}, {1024*e}")
                    if 'nodma' not in OPT: p(f"buffer_load_dwordx4 v{vX[e & 1]}, s[{SRD_X}:{SRD_X+3}], s{sT0} offen lds")
                else:
                    p(f"s_add_u32 s{sT0}, s{sWO}, {4*e*3840}\n s_add_u32 m0, s{sDS}, {1024*e}")
                    if 'nodma' not in OPT: p(f"buffer_load_dwordx4 v{vW[e >> 1]}, s[{SRD_W}:{SRD_W+3}], s{sT0} offen lds")
            if kind == "w": p("s_mov_b64 exec, -1")
        p(f"""
        s_add_u32 s{sKC}, s{sKC}, 1
        s_cmp_eq_u32 s{sKC}, 10
        s_cselect_b32 s{sKC}, 0, s{sKC}
        """)
    def signal_full(st_):
        p(f"""
        v_mov_b32 v{vF}, {FULL(st_)}
        s_mov_b32 exec_lo, 1
        s_mov_b32 exec_hi, 0
        ds_add_u32 v{vF}, v{vOne}
        s_mov_b64 exec, -1
        """)
    on4 = V.alloc(4, align=4); vC0 = V.alloc(); vC1 = V.alloc()
    def clear_part():
        p(f"""
        v_mov_b32 v{on4}, -1
        v_mov_b32 v{on4+1}, -1
        v_mov_b32 v{on4+2}, -1
        v_mov_b32 v{on4+3}, -1
        s_lshl_b32 s{sT0}, s{sRB}, 4
        s_add_u32 s{sT0}, s{sT0}, s{sHP}
        s_mul_i32 s{sT0}, s{sT0}, {PART_STRIDE}
        s_mul_i32 s{sT1}, s{sWR}, 1280
        s_add_u32 s{sT0}, s{sT0}, s{sT1}
        s_add_u32 s{sT0}, s{sT0}, {WS_PART}
        v_lshl_add_u32 v{vC0}, v{vLane}, 4, s{sT0}
        s_add_u32 s{sT0}, s{sT0}, 1024
        v_lshl_add_u32 v{vC1}, v{vLane}, 2, s{sT0}
        buffer_store_dwordx4 v[{on4}:{on4+3}], v{vC0}, s[{SRD_WS}:{SRD_WS+3}], 0 offen sc1
        buffer_store_dword v{on4}, v{vC1}, s[{SRD_WS}:{SRD_WS+3}], 0 offen sc1
        """)
    def clear_o():
        p(f"""
        s_mul_i32 s{sT0}, s{sRB}, 12
        s_mul_i32 s{sT1}, s{sWR}, 3
        s_add_u32 s{sT0}, s{sT0}, s{sT1}
        s_mul_i32 s{sT0}, s{sT0}, {O_TILE}
        s_mul_i32 s{sT1}, s{sHQ}, 1280
        s_add_u32 s{sT0}, s{sT0}, s{sT1}
        s_add_u32 s{sT0}, s{sT0}, {WS_O}
        v_lshl_add_u32 v{vC0}, v{vLane}, 4, s{sT0}
        s_add_u32 s{sT0}, s{sT0}, 1024
        v_lshl_add_u32 v{vC1}, v{vLane}, 2, s{sT0}
        """)
        for nt in range(3):
            p(f"s_mov_b32 s{sT1}, {O_TILE*nt}")
            p(f"buffer_store_dwordx4 v[{on4}:{on4+3}], v{vC0}, s[{SRD_WS}:{SRD_WS+3}], s{sT1} offen sc1")
            p(f"buffer_store_dword v{on4}, v{vC1}, s[{SRD_WS}:{SRD_WS+3}], s{sT1} offen sc1")
    def count(word, name):
        p(f"""
        s_cmp_lg_u32 s{sWR}, 0
        s_cbranch_scc1 L_p_nocnt{name}
        v_mov_b32 v{t0}, {word}
        v_mov_b32 v{t1}, 1
        s_mov_b32 exec_lo, 1
        s_mov_b32 exec_hi, 0
        global_atomic_add v{t0}, v{t1}, s[{S_DBG}:{S_DBG+1}] sc1
        s_mov_b64 exec, -1
        """)
        p.label(f"L_p_nocnt{name}")
    def check(word, name):
        p(f"""
        s_cmp_lg_u32 s{sWR}, 0
        s_cbranch_scc1 L_p_clr_ok{name}
        s_mov_b32 s{sCNT}, 0
        s_mov_b32 exec_lo, 1
        s_mov_b32 exec_hi, 0
        v_mov_b32 v{t0}, {word}
        """)
        p.label(f"L_p_clr{name}")
        p(f"""
        global_load_dword v{t1}, v{t0}, s[{S_DBG}:{S_DBG+1}] sc1
        s_waitcnt vmcnt(0)
        v_readfirstlane_b32 s{sT0}, v{t1}
        s_cmp_ge_u32 s{sT0}, {N_B}
        s_cbranch_scc1 L_p_clr_ok{name}
        s_add_u32 s{sCNT}, s{sCNT}, 1
        s_cmp_gt_u32 s{sCNT}, {1 << 12}
        s_cbranch_scc1 L_p_clr_ok{name}
        s_sleep 16
        s_branch L_p_clr{name}
        """)
        p.label(f"L_p_clr_ok{name}")
        p("s_mov_b64 exec, -1")
    def wo_prefetch():
        p(f"""
        s_lshr_b32 s{sT0}, s2, 3
        s_cmp_ge_u32 s{sT0}, 20
        s_cbranch_scc1 L_p_nopf
        s_mul_i32 s{sT0}, s{sT0}, 320
        s_mul_i32 s{sT1}, s{sWR}, 80
        s_add_u32 s{sT0}, s{sT0}, s{sT1}
        v_add_u32 v{t0}, s{sT0}, v{vLane}
        v_lshlrev_b32 v{t0}, 7, v{t0}
        buffer_load_dword v{VGPRS-1}, v{t0}, s[{SRD_WO}:{SRD_WO+3}], 0 offen
        s_mov_b32 exec_lo, 0xffff
        s_mov_b32 exec_hi, 0
        v_add_u32 v{t0}, {64*128}, v{t0}
        buffer_load_dword v{VGPRS-1}, v{t0}, s[{SRD_WO}:{SRD_WO+3}], 0 offen
        s_mov_b64 exec, -1
        """)
        p.label("L_p_nopf")
    LAF = int(common.os.environ.get("LAF", "2"))
    nclr = {}
    for st_ in range(10):
        if st_ == 3:
            p(f"v_mov_b32 v{vF}, {WPHI_DONE}"); poll(None, 8, "w")
        if st_ >= 4:
            p(f"v_mov_b32 v{vF}, {FREE(st_ - 4)}"); poll(None, 8, f"f{st_}")
        dma_stage(st_)
        if st_ == 1: stamp(p, 1)
        if 'pdiag' in OPT and st_ >= 3: stamp(p, st_)
        if st_ == 3: clear_part(); clear_o()
        done = st_ - (LAF - 1)
        if done >= 0:
            younger = 10 * (LAF - 1) + (8 if (st_ >= 3 and done <= 3 and done < st_ + 1 and st_ <= 3 + (LAF - 1) and done <= 3 and not (done == st_)) else 0)
            younger = 10 * (st_ - done) + (8 if (done <= 3 and st_ >= 3) else 0)
            p(f"s_waitcnt vmcnt({younger})")
            if done == 4:
                p(f"""
                v_mov_b32 v{vF}, {CLR_DONE}
                s_mov_b32 exec_lo, 1
                s_mov_b32 exec_hi, 0
                ds_add_rtn_u32 v{t0}, v{vF}, v{vOne}
                s_waitcnt lgkmcnt(0)
                v_readfirstlane_b32 s{sT0}, v{t0}
                v_mov_b32 v{t0}, {DBG_CNT}
                s_cmp_eq_u32 s{sT0}, 3
                s_cbranch_scc0 L_p_nocnt
                global_atomic_add v{t0}, v{vOne}, s[{S_DBG}:{S_DBG+1}] sc1
                """)
                p.label("L_p_nocnt")
                p("s_mov_b64 exec, -1")
            signal_full(done)
            if done == 0: stamp(p, 2)
    for done in range(10 - (LAF - 1), 10):
        p(f"s_waitcnt vmcnt({10 * (9 - done)})")
        signal_full(done)
    wo_prefetch()
    check(DBG_CNT, "p")
    p(f"""
    s_lshr_b32 s{sT0}, s2, 3               ; i
    s_cmp_ge_u32 s{sT0}, 10
    s_cselect_b32 s{sT1}, 1, 0
    s_mul_i32 s{sT1}, s{sT1}, 10
    s_sub_u32 s{sCG}, s{sT0}, s{sT1}
    ; LDS row k' = 8 z + e holds wo row 40 (z/5) + 4 (z%5) + 20 (e>>2) + (e&3);  z = 20 pw + i'
    v_lshrrev_b32 v{t0}, 3, v{vLane}            ; e
    v_bfe_u32 v{t1}, v{t0}, 1, 1
    v_lshlrev_b32 v{t1}, 1, v{t1}
    v_and_b32 v{t2}, 7, v{vLane}
    v_xor_b32 v{t1}, v{t1}, v{t2}
    v_xor_b32 v{t2}, 4, v{t1}
    v_lshrrev_b32 v{t3}, 2, v{t0}
    v_mul_u32_u24 v{t3}, 20, v{t3}
    v_and_b32 v{t0}, 3, v{t0}
    v_add_u32 v{t0}, v{t0}, v{t3}
    s_mul_i32 s{sT0}, s{sWR}, 160
    v_add_u32 v{t0}, s{sT0}, v{t0}
    v_mul_u32_u24 v{t0}, 1280, v{t0}
    s_lshl_b32 s{sT0}, s{sCG}, 7
    v_add_u32 v{t0}, s{sT0}, v{t0}
    v_lshl_add_u32 v{t3}, v{t2}, 4, v{t0}
    v_lshl_add_u32 v{t0}, v{t1}, 4, v{t0}
    s_mul_i32 s{sM0}, s{sWR}, 20480
    s_barrier
    """)
    vK0 = V.alloc(); vK1 = V.alloc()
    p(f"v_mov_b32 v{vK0}, v{t0}\n v_mov_b32 v{vK1}, v{t3}")
    p("s_cmp_ge_u32 s2, 160\n s_cbranch_scc1 L_p_nowo")
    for i in range(20):
        p(f"s_mov_b32 s{sT1}, {(40*(i//5) + 4*(i%5))*1280}\n s_add_u32 m0, s{sM0}, {WO_IMG + 1024*i}")
        p(f"buffer_load_dwordx4 v{vK1 if i & 1 else vK0}, s[{SRD_WO}:{SRD_WO+3}], s{sT1} offen lds")
    p.label("L_p_nowo")
    if 'pdiag' not in OPT: stamp(p, 4)
    p("s_waitcnt vmcnt(0)")
    if 'pdiag' not in OPT: stamp(p, 5)
    p("s_barrier")
    if 'pdiag' not in OPT: stamp(p, 6)
    if common.DIAG:
        stamps_flush(p, t0, t1, loader=True)
    p("s_endpgm")
    V.free = list(mark)
    p.label("L_b_compute")
    vWp = V.alloc(4, align=4); vWp2 = V.alloc(4, align=4)
    p(f"""
    s_cmp_eq_u32 s{sTY}, 0
    s_cselect_b32 s{sT0}, s{sHP}, s{sHQ}
    s_mul_i32 s{sT0}, s{sT0}, 1600
    v_lshlrev_b32 v{t0}, 4, v{vLane}
    v_add_u32 v{t0}, s{sT0}, v{t0}
    v_add_u32 v{t1}, 1024, v{t0}
    s_waitcnt lgkmcnt(0)
    s_barrier
    global_load_dwordx4 v[{vWp}:{vWp+3}], v{t0}, s[{S_WPHI}:{S_WPHI+1}]
    s_mov_b32 exec_hi, 15
    global_load_dwordx4 v[{vWp2}:{vWp2+3}], v{t1}, s[{S_WPHI}:{S_WPHI+1}]
    s_mov_b32 exec_hi, -1
    """)
    PF0 = 1 if 'st2' in OPT else 3
    NPF = 0
    if 'l2pf' in OPT:
        NPF = 2
        a0 = V.alloc(); a1 = V.alloc(); a2 = V.alloc(); a3 = V.alloc(); d0 = V.alloc(); ad = V.alloc(2, align=2)
        p(f"""
        ; lane -> chunk PF0 + lane/10, item r = lane%10 ; it = min((i*8 + w)*10 + r, 1727)
        v_mul_u32_u24 v{a0}, 205, v{vLane}
        v_lshrrev_b32 v{a0}, 11, v{a0}               ; lane/10
        v_mul_u32_u24 v{a1}, 10, v{a0}
        v_sub_u32 v{a1}, v{vLane}, v{a1}             ; r
        s_lshl_b32 s{sT1}, s{sI}, 3
        s_add_u32 s{sT1}, s{sT1}, s{sW}
        s_mul_i32 s{sT1}, s{sT1}, 10
        v_add_u32 v{a1}, s{sT1}, v{a1}               ; it
        v_min_u32 v{a1}, 1727, v{a1}
        v_add_u32 v{a0}, {PF0}, v{a0}                ; chunk
        s_lshr_b32 s{sT2}, s{sJ}, 2
        s_mul_i32 s{sT2}, s{sT2}, 960
        v_add_u32 v{a2}, s{sT2}, v{a1}
        v_min_u32 v{a2}, 2047, v{a2}
        v_mul_u32_u24 v{a2}, 1280, v{a2}
        v_lshl_add_u32 v{a2}, v{a0}, 7, v{a2}
        ; W: u = it - 1152 ; krow = u/9 ; rem = u%9 ; seg = rem/3 ; ln = rem%3
        v_subrev_u32 v{a1}, 1152, v{a1}
        v_max_i32 v{d0}, 0, v{a1}
        v_mul_u32_u24 v{a3}, 7282, v{d0}
        v_lshrrev_b32 v{a3}, 16, v{a3}               ; krow
        v_mul_u32_u24 v{t3}, 9, v{a3}
        v_sub_u32 v{d0}, v{d0}, v{t3}                ; rem
        v_lshl_add_u32 v{a3}, v{a0}, 6, v{a3}
        v_mul_u32_u24 v{a3}, 3840, v{a3}
        v_mul_u32_u24 v{t3}, 86, v{d0}
        v_lshrrev_b32 v{t3}, 8, v{t3}                ; seg
        v_mul_u32_u24 v{a0}, 3, v{t3}
        v_sub_u32 v{d0}, v{d0}, v{a0}                ; ln
        v_mul_u32_u24 v{t3}, 1280, v{t3}
        v_lshl_add_u32 v{t3}, v{d0}, 7, v{t3}
        s_and_b32 s{sT2}, s{sJ}, 3
        s_mul_i32 s{sT2}, s{sT2}, 320
        s_and_b32 s{sT2}, s{sT2}, 0xffffff80
        v_add3_u32 v{a3}, v{a3}, v{t3}, s{sT2}
        v_cmp_gt_i32 vcc, 0, v{a1}                   ; x lanes
        v_cndmask_b32 v{a2}, v{a3}, v{a2}, vcc
        v_mov_b32 v{a0}, {6*64*3840}
        v_mov_b32 v{a1}, {6*128}
        v_cndmask_b32 v{a3}, v{a0}, v{a1}, vcc
        v_mov_b32 v{a0}, s{S_WQKV}
        v_mov_b32 v{a1}, s{S_X}
        v_cndmask_b32 v{ad}, v{a0}, v{a1}, vcc
        v_mov_b32 v{a0}, s{S_WQKV+1}
        v_mov_b32 v{a1}, s{S_X+1}
        v_cndmask_b32 v{ad+1}, v{a0}, v{a1}, vcc
        v_add_co_u32 v{ad}, vcc, v{ad}, v{a2}
        v_addc_co_u32 v{ad+1}, vcc, 0, v{ad+1}, vcc
        """)
        if 'st2' in OPT: p("s_barrier")
        p(f"""
        s_mov_b32 exec_hi, 0x0fffffff
        global_load_dword v{VGPRS-1}, v[{ad}:{ad+1}], off
        s_mov_b32 exec_hi, -1
        v_add_co_u32 v{ad}, vcc, v{ad}, v{a3}
        v_addc_co_u32 v{ad+1}, vcc, 0, v{ad+1}, vcc
        s_mov_b32 exec_lo, {0x3ff if PF0 == 3 else 0x3fffffff:#x}
        s_mov_b32 exec_hi, 0
        global_load_dword v{VGPRS-1}, v[{ad}:{ad+1}], off
        s_mov_b64 exec, -1
        """)
        for r in (a0, a1, a2, a3, d0): V.release(r)
        V.release(ad, 2)
    stamp(p, 1)
    srd(p, SRD_WS, S_WS, WS_SIZE)
    srd(p, SRD_O, S_OUT, 2048 * 2560)
    p(f"""
    s_mov_b32 s{sL}, {LOG2E:#x}
    s_mov_b32 s{sL+1}, {LOG2E:#x}
    s_mov_b32 s{sNEG}, {-3*SLOT & 0xffffffff:#x}
    """)
    vXa = V.alloc(2, align=1); vWa = V.alloc(4, align=1)
    for ks in range(2):
        p(f"""
        v_add_u32 v{t0}, {4*ks}, v{vG}
        v_lshrrev_b32 v{t1}, 1, v{vI}
        v_xor_b32 v{t0}, v{t0}, v{t1}
        v_lshlrev_b32 v{t0}, 4, v{t0}
        s_mul_i32 s{sT0}, s{sWR}, 48
        v_add_u32 v{t1}, s{sT0}, v{vI}
        v_lshl_add_u32 v{vXa+ks}, v{t1}, 7, v{t0}
        """)
    p(f"""
    v_and_b32 v{t0}, 1, v{vG}
    v_xor_b32 v{t0}, s{sTY}, v{t0}
    v_lshlrev_b32 v{t0}, 7, v{t0}
    v_bfe_u32 v{t2}, v{vI}, 1, 1
    v_lshl_add_u32 v{t0}, v{t2}, 4, v{t0}
    v_and_b32 v{t2}, 1, v{vI}
    v_lshl_add_u32 v{t0}, v{t2}, 3, v{t0}
    v_lshrrev_b32 v{t1}, 2, v{vI}
    v_lshl_add_u32 v{t2}, v{vG}, 3, v{t1}
    v_lshl_add_u32 v{t0}, v{t2}, 8, v{t0}
    v_add_u32 v{t0}, {WOFF}, v{t0}
    """)
    for mt in range(4):
        p(f"v_xor_b32 v{t2}, {mt}, v{t1}\n v_lshl_add_u32 v{vWa+mt}, v{t2}, 5, v{t0}")
    acc = V.alloc(48, align=4)
    for k in range(48): p(f"v_mov_b32 v{acc+k}, 0")
    WPB = 3 * SLOT
    vFA = V.alloc(16, align=4)
    FA, FB, FC0, FC1 = vFA, vFA + 4, vFA + 8, vFA + 12
    GT = V.alloc(32, align=1)
    for k in range(32): p(f"v_mov_b32 v{GT+k}, 0")
    p(f"""
    s_lshl_b32 s{sT0}, s{sW}, 11
    s_add_u32 s{sT0}, s{sT0}, {WPB}
    v_lshl_add_u32 v{t0}, v{vLane}, 4, s{sT0}
    v_lshrrev_b32 v{t1}, 2, v{vI}
    v_mul_u32_u24 v{t1}, 5, v{t1}
    v_and_b32 v{t2}, 3, v{vI}
    v_add_u32 v{t2}, v{t1}, v{t2}
    v_lshlrev_b32 v{t2}, 1, v{t2}
    v_mul_u32_u24 v{t3}, 160, v{vG}
    v_add3_u32 v{t2}, v{t2}, v{t3}, s{sT0}      ; t2: f = 5(m>>2)+(m&3)
    v_add_u32 v{t1}, 4, v{t1}
    v_lshlrev_b32 v{t1}, 1, v{t1}
    v_add3_u32 v{t1}, v{t1}, v{t3}, s{sT0}      ; t1: f = 5(m>>2)+4
    s_waitcnt vmcnt({NPF})
    """)
    p(f"""
    ds_write_b128 v{t0}, v[{vWp}:{vWp+3}]
    s_mov_b32 exec_hi, 15
    ds_write_b128 v{t0}, v[{vWp2}:{vWp2+3}] offset:1024
    s_mov_b32 exec_hi, -1
    s_waitcnt lgkmcnt(0)
    """)
    def gather(dst, addr, off, mask):
        p(f"s_mov_b32 exec_lo, {mask & 0xffffffff:#x}\n s_mov_b32 exec_hi, {mask >> 32:#x}")
        for e in range(4):
            p(f"ds_read_u16 v{GT + 2*(dst - vFA) + e}, v{addr} offset:{off + 40*e}")
    G0 = 0xFFFF; G01 = 0xFFFFFFFF; G123 = 0xFFFFFFFFFFFF0000; ALL = (1 << 64) - 1
    R0 = 0x1111111111111111; R1 = 0x2222222222222222
    gather(FA, t2, 0, ALL);            gather(FA + 2, t2, 16*40, G0)
    gather(FB, t2, 800 - 160, G123);   gather(FB + 2, t2, 800 + 12*40, G01)
    gather(FC0, t1, 0, R0);            gather(FC0 + 2, t1, 16*40, G0 & R0)
    gather(FC1, t1, 800 - 160, G123 & R1); gather(FC1 + 2, t1, 800 + 12*40, G01 & R1)
    p("s_mov_b64 exec, -1\n s_waitcnt lgkmcnt(0)")
    for k in range(16):
        p(f"v_lshl_or_b32 v{vFA+k}, v{GT+2*k+1}, 16, v{GT+2*k}")
    V.release(GT, 32); V.release(vWp, 4); V.release(vWp2, 4)
    XF = [V.alloc(12, align=4), V.alloc(12, align=4)]
    WF = [V.alloc(16, align=4), V.alloc(16, align=4)]
    def reads(ks):
        L = []
        for mt in range(4):
            for h in range(2):
                L.append(f"ds_read_b64_tr_b16 v[{WF[ks]+4*mt+2*h}:{WF[ks]+4*mt+2*h+1}], v{vWa+mt} offset:{8192*ks + 1024*h}")
        X = [f"ds_read_b128 v[{XF[ks]+4*nt}:{XF[ks]+4*nt+3}], v{vXa+ks} offset:{2048*nt}" for nt in range(3)]
        return [L[0], L[1], X[0], X[1], X[2]] + L[2:]
    def mfmas(ks):
        L = []
        for mt in range(4):
            for nt in range(3):
                a = acc + 16*nt + 4*mt
                L.append(f"v_mfma_f32_16x16x32_bf16 v[{a}:{a+3}], v[{WF[ks]+4*mt}:{WF[ks]+4*mt+3}], v[{XF[ks]+4*nt}:{XF[ks]+4*nt+3}], v[{a}:{a+3}]")
        return L
    def sched(main, slots):
        for i, m in enumerate(main):
            if 'nomfma' not in OPT: p(m)
            for x in slots.get(i, []):
                if ('nomfma' in OPT or 'nords' in OPT) and x.startswith('ds_read'): continue
                p(x)
    def advance():
        return [f"v_add_u32 v{r}, s{sSLOTD}, v{r}" for r in (vWa, vXa, vWa+1, vWa+2, vWa+3, vXa+1)]
    vFl = V.alloc(); vFr = V.alloc(); vFv = V.alloc(); vOne = V.alloc()
    p(f"""
    v_mov_b32 v{vOne}, 1
    v_mov_b32 v{vFv}, {WPHI_DONE}
    s_mov_b32 exec_lo, 1
    s_mov_b32 exec_hi, 0
    ds_add_u32 v{vFv}, v{vOne}
    s_mov_b64 exec, -1
    v_mov_b32 v{vFl}, {FULL(0)}
    v_mov_b32 v{vFr}, {FREE(0)}
    """)
    def cspin(addr, want, name):
        p(f"s_mov_b32 s{sCNT}, 0")
        p.label(f"L_b_sp{name}")
        p(f"""
        ds_read_b32 v{vFv}, v{addr}
        s_add_u32 s{sCNT}, s{sCNT}, 1
        s_cmp_gt_u32 s{sCNT}, {1 << 16}
        s_cbranch_scc1 L_b_spok{name}
        s_waitcnt lgkmcnt(0)
        v_readfirstlane_b32 s{sT1}, v{vFv}
        s_cmp_lt_u32 s{sT1}, {want}
        s_cbranch_scc1 L_b_sp{name}
        """)
        p.label(f"L_b_spok{name}")
        p("s_waitcnt lgkmcnt(0)")
    if 'kprio' in OPT:
        p(f"s_cmp_eq_u32 s{sTY}, 0\n s_cbranch_scc0 L_b_noprio\n s_setprio 1")
        p.label("L_b_noprio")
    if 'fdiag' not in OPT: stamp(p, 15)
    cspin(vFl, 4, "0")
    stamp(p, 2)
    if 'fdiag' not in OPT: cstamp(p, 13)
    for x in reads(0): p(x)
    p(f"s_mov_b32 s{sS}, 0\n v_add_u32 v{vFl}, {SLOT}, v{vFl}")
    sDF = 91
    def slot_delta():
        return [f"s_and_b32 s{sT0}, s{sS}, 3", f"s_cmp_eq_u32 s{sT0}, 3", f"s_cselect_b32 s{sSLOTD}, s{sNEG}, {SLOT}",
                f"s_cselect_b32 s{sDF}, 4, 0", f"s_add_u32 s{sDF}, s{sDF}, s{sSLOTD}",
                f"s_cmp_eq_u32 s{sT0}, 2", f"s_cselect_b32 s{sT2}, s{sNEG4}, {SLOT}"]
    sNEG4 = 90
    p(f"s_add_u32 s{sNEG4}, s{sNEG}, 4")
    RSP = int(common.os.environ.get("RSP", "2"))
    def read_slots(r, first):
        d = {}
        k = first
        while r:
            d[k] = r[:RSP]; r = r[RSP:]; k += 1
        return d
    def half0(chk=True):
        p("s_waitcnt lgkmcnt(0)")
        slots = read_slots(reads(1), 0)
        if chk: slots[5] = slots.get(5, []) + [f"ds_read_b32 v{vFv}, v{vFl}"]
        slots[7] = slot_delta()
        sched(mfmas(0), slots)
    nsp = [0]
    outl = []
    def half1(nxt=True):
        p("s_waitcnt lgkmcnt(0)")
        if nxt:
            nsp[0] += 1; k = nsp[0]
            m = mfmas(1)
            p(f"v_readfirstlane_b32 s{sT1}, v{vFv}")
            p("s_mov_b32 exec_lo, 1\n s_mov_b32 exec_hi, 0")
            p(f"ds_add_u32 v{vFr}, v{vOne}")
            p("s_mov_b64 exec, -1")
            if 'nomfma' not in OPT: p(m[0])
            for x in advance() + [f"v_add_u32 v{vFr}, s{sDF}, v{vFr}"]: p(x)
            p(f"s_cmp_lt_u32 s{sT1}, 4\n s_cbranch_scc1 L_b_out{k}")
            p.label(f"L_b_back{k}")
            outl.append(k)
            slots = read_slots(reads(0), 0)
            slots[6] = slots.get(6, []) + [f"v_add_u32 v{vFl}, s{sT2}, v{vFl}"]
            sched(m[1:], slots)
        else:
            sched(mfmas(1), {})
    p.label("L_b_main")
    half0(); half1()
    p(f"s_add_u32 s{sS}, s{sS}, 1\n s_cmp_lt_u32 s{sS}, 9\n s_cbranch_scc1 L_b_main")
    half0(chk=False); half1(nxt=False)
    stamp(p, 3)
    if 'fdiag' not in OPT: cstamp(p, 14)
    p("s_branch L_b_mainend")
    for k in outl:
        p.label(f"L_b_out{k}")
        cspin(vFl, 4, f"o{k}")
        p(f"s_branch L_b_back{k}")
    p.label("L_b_mainend")
    for r in (vFl, vFr, vFv, vOne): V.release(r)
    def wait_slots_free(name):
        p(f"v_mov_b32 v{t1}, {FREE(8)}\n s_mov_b32 s{sCNT}, 0")
        p.label(f"L_b_sf{name}")
        p(f"""
        ds_read_b32 v{t2}, v{t1}
        s_add_u32 s{sCNT}, s{sCNT}, 1
        s_cmp_gt_u32 s{sCNT}, {1 << 16}
        s_cbranch_scc1 L_b_sfok{name}
        s_waitcnt lgkmcnt(0)
        v_readfirstlane_b32 s{sT0}, v{t2}
        s_cmp_lt_u32 s{sT0}, 8
        s_cbranch_scc1 L_b_sf{name}
        """)
        p.label(f"L_b_sfok{name}")
        p("s_waitcnt lgkmcnt(0)")
    V.release(XF[0], 12); V.release(XF[1], 12); V.release(WF[0], 16); V.release(WF[1], 16)
    V.release(vXa, 2); V.release(vWa, 4)
    def wait_cleared(name, vN, vm):
        p(f"s_mov_b32 s{sCNT}, 0\n s_waitcnt vmcnt({vm})")
        p.label(f"L_b_wc{name}")
        p(f"""
        v_readfirstlane_b32 s{sT0}, v{vN}
        s_cmp_ge_u32 s{sT0}, {N_B}
        s_cbranch_scc1 L_b_wc_ok{name}
        s_add_u32 s{sCNT}, s{sCNT}, 1
        s_cmp_gt_u32 s{sCNT}, {SPIN_MAX}
        s_cbranch_scc1 L_b_wc_ok{name}
        v_mov_b32 v{vN}, {DBG_CNT}
        global_load_dword v{vN}, v{vN}, s[{S_DBG}:{S_DBG+1}] sc1
        s_waitcnt vmcnt(0)
        s_branch L_b_wc{name}
        """)
        p.label(f"L_b_wc_ok{name}")
    P = V.alloc(3 * 8, align=2)
    vRow = V.alloc()
    p(f"""
    s_mul_i32 s{sT0}, s{sWR}, 48
    v_add_u32 v{t0}, s{sT0}, v{vI}
    v_mul_u32_u24 v{vRow}, {RS}, v{t0}
    v_add_u32 v{vRow}, {PHI}, v{vRow}
    """)
    def cvtP(nt, mts):
        for mt in mts:
            a = acc + 16*nt + 4*mt
            p(f"v_cvt_pk_bf16_f32 v{P+8*nt+2*mt}, v{a}, v{a+1}")
            p(f"v_cvt_pk_bf16_f32 v{P+8*nt+2*mt+1}, v{a+2}, v{a+3}")
    for nt in range(3): cvtP(nt, (0, 1, 2, 3))
    def v_writes():
        vV2, vV3 = t0, t3
        p(f"""
        v_lshlrev_b32 v{t1}, 3, v{vG}
        v_add_u32 v{t2}, {192 + 16}, v{t1}
        v_add_u32 v{t3}, {192 + 64}, v{t1}
        v_cmp_gt_u32 vcc, 2, v{vG}
        v_add_u32 v{t0}, {280 - 16}, v{t1}
        v_cndmask_b32 v{t3}, v{t0}, v{t3}, vcc
        s_cmp_eq_u32 s{sTY}, 0
        s_cselect_b64 vcc, -1, 0
        v_cndmask_b32 v{t3}, v{t3}, v{t2}, vcc
        v_add_u32 v{vV3}, v{t3}, v{vRow}
        s_mul_i32 s{sT0}, s{sTY}, 48
        v_add3_u32 v{vV2}, v{t1}, v{vRow}, s{sT0}
        v_add_u32 v{vV2}, {192 - 16}, v{vV2}
        s_mov_b32 exec_lo, 0
        """)
        for nt in range(3): p(f"ds_write_b64 v{vV2}, v[{P+8*nt+4}:{P+8*nt+5}] offset:{16*RS*nt}")
        p("s_mov_b32 exec_lo, -1")
        for nt in range(3): p(f"ds_write_b64 v{vV3}, v[{P+8*nt+6}:{P+8*nt+7}] offset:{16*RS*nt}")
    if common.DUMP:
        p(f"""
        s_lshl_b32 s{sT0}, s2, 3
        s_add_u32 s{sT0}, s{sT0}, s{sW}
        s_mul_i32 s{sT0}, s{sT0}, {24*256}
        s_add_u32 s{sT0}, s{sT0}, {4<<20}
        v_lshl_add_u32 v{t0}, v{vLane}, 2, s{sT0}
        """)
        for k in range(24):
            p(f"buffer_store_dword v{P+k}, v{t0}, s[{SRD_WS}:{SRD_WS+3}], 0 offen offset:{256*(k%16)}")
            if k == 15: p(f"v_add_u32 v{t0}, 4096, v{t0}")
        p("s_waitcnt vmcnt(0)")
    V.release(acc, 48)
    if common.os.environ.get('RDBG'): print('free before softmax', [i for i,f in enumerate(V.free) if f])
    TTb = V.alloc(38, align=4)
    TT = [TTb, TTb + 12, TTb + 24]
    EE = [V.alloc(20, align=2) for _ in range(3)]
    SS = [[V.alloc(2, align=2) for _ in range(3)] for _ in range(3)]
    def softmax(nt, outs, X=None):
        T, E, S = TT[nt], EE[nt], SS[nt]
        if X is None: X = P + 8*nt
        X01 = X; X12 = X + 2
        a0, a1, b0, b1, c, d = S[0], S[0]+1, S[1], S[1]+1, S[2], S[2]+1
        L = [f"v_mfma_f32_16x16x32_bf16 v[{T}:{T+3}], v[{FA}:{FA+3}], v[{X01}:{X01+3}], 0",
             f"v_mfma_f32_16x16x32_bf16 v[{T+8}:{T+11}], v[{FC0}:{FC0+3}], v[{X01}:{X01+3}], 0",
             f"v_mfma_f32_16x16x32_bf16 v[{T+4}:{T+7}], v[{FB}:{FB+3}], v[{X12}:{X12+3}], 0",
             f"v_mfma_f32_16x16x32_bf16 v[{T+8}:{T+11}], v[{FC1}:{FC1+3}], v[{X12}:{X12+3}], v[{T+8}:{T+11}]"]
        x = [[T, T+1, T+2, T+3, T+8], [T+4, T+5, T+6, T+7, T+9]]
        for h, (a, b) in enumerate(((a0, b0), (a1, b1))):
            xs = x[h]
            L += [f"v_max3_f32 v{a}, v{xs[0]}, v{xs[1]}, v{xs[2]}", f"v_max3_f32 v{b}, -v{xs[0]}, -v{xs[1]}, -v{xs[2]}"]
        for h, (a, b) in enumerate(((a0, b0), (a1, b1))):
            xs = x[h]
            L += [f"v_max3_f32 v{a}, v{a}, v{xs[3]}, v{xs[4]}", f"v_max3_f32 v{b}, v{b}, -v{xs[3]}, -v{xs[4]}"]
        def allred(op):
            return [f"v_permlane16_swap_b32 v{a0}, v{b0}", f"v_permlane16_swap_b32 v{a1}, v{b1}",
                    f"{op} v{a0}, v{a0}, v{b0}", f"{op} v{a1}, v{a1}, v{b1}",
                    f"v_permlane32_swap_b32 v{a0}, v{a1}", f"{op} v{c}, v{a0}, v{a1}"]
        bc = [f"v_mov_b32 v{d}, v{c}", f"v_permlane32_swap_b32 v{c}, v{d}", f"v_mov_b32 v{a0}, v{c}", f"v_mov_b32 v{a1}, v{d}",
              f"v_permlane16_swap_b32 v{a0}, v{c}", f"v_permlane16_swap_b32 v{a1}, v{d}"]
        L += allred("v_max_f32") + [f"v_mul_f32 v{c}, s{sL}, v{c}"] + bc
        sel = [(0, 0), (0, 0), (1, 1), (1, 1), (0, 1)]
        for k in range(5):
            lo, hi = sel[k]
            if lo == 1:
                L.append(f"v_fma_f32 v{E+2*k}, v{T+2*k}, s{sL}, -v{a1}")
                L.append(f"v_fma_f32 v{E+2*k+1}, v{T+2*k+1}, s{sL}, -v{a1}")
                L.append(f"v_fma_f32 v{E+10+2*k}, -v{T+2*k}, s{sL}, -v{d}")
                L.append(f"v_fma_f32 v{E+10+2*k+1}, -v{T+2*k+1}, s{sL}, -v{d}")
                continue
            L.append(f"v_pk_fma_f32 v[{E+2*k}:{E+2*k+1}], v[{T+2*k}:{T+2*k+1}], s[{sL}:{sL+1}], v[{a0}:{a1}] op_sel:[0,0,{lo}] op_sel_hi:[1,1,{hi}] neg_lo:[0,0,1] neg_hi:[0,0,1]")
            L.append(f"v_pk_fma_f32 v[{E+10+2*k}:{E+10+2*k+1}], v[{T+2*k}:{T+2*k+1}], s[{sL}:{sL+1}], v[{c}:{d}] op_sel:[0,0,{lo}] op_sel_hi:[1,1,{hi}] neg_lo:[1,0,1] neg_hi:[1,0,1]")
        L += [f"v_exp_f32 v{E+k}, v{E+k}" for k in range(20)]
        L += [f"v_pk_add_f32 v[{T}:{T+1}], v[{E}:{E+1}], v[{E+2}:{E+3}]",
              f"v_pk_add_f32 v[{T+2}:{T+3}], v[{E+4}:{E+5}], v[{E+6}:{E+7}]",
              f"v_pk_add_f32 v[{T+4}:{T+5}], v[{E+10}:{E+11}], v[{E+12}:{E+13}]",
              f"v_pk_add_f32 v[{T+6}:{T+7}], v[{E+14}:{E+15}], v[{E+16}:{E+17}]",
              f"v_add_f32 v{a0}, v{T}, v{T+1}", f"v_add_f32 v{a1}, v{T+2}, v{T+3}",
              f"v_add_f32 v{b0}, v{T+4}, v{T+5}", f"v_add_f32 v{b1}, v{T+6}, v{T+7}",
              f"v_pk_add_f32 v[{a0}:{a1}], v[{a0}:{a1}], v[{E+8}:{E+9}]",
              f"v_pk_add_f32 v[{b0}:{b1}], v[{b0}:{b1}], v[{E+18}:{E+19}]"]
        L += allred("v_add_f32") + [f"v_rcp_f32 v{c}, v{c}"] + bc
        for k in range(5):
            lo, hi = sel[k]
            if lo == 1:
                L.append(f"v_mul_f32 v{E+2*k}, v{E+2*k}, v{a1}")
                L.append(f"v_mul_f32 v{E+2*k+1}, v{E+2*k+1}, v{a1}")
                L.append(f"v_mul_f32 v{E+10+2*k}, v{E+10+2*k}, v{d}")
                L.append(f"v_mul_f32 v{E+10+2*k+1}, v{E+10+2*k+1}, v{d}")
                continue
            L.append(f"v_pk_mul_f32 v[{E+2*k}:{E+2*k+1}], v[{E+2*k}:{E+2*k+1}], v[{a0}:{a1}] op_sel:[0,{lo}] op_sel_hi:[1,{hi}]")
            L.append(f"v_pk_mul_f32 v[{E+10+2*k}:{E+10+2*k+1}], v[{E+10+2*k}:{E+10+2*k+1}], v[{c}:{d}] op_sel:[0,{lo}] op_sel_hi:[1,{hi}]")
        pairs = [[(0, 1), (2, 3), (8, 10), (11, 12), (13, 18)], [(4, 5), (6, 7), (9, 14), (15, 16), (17, 19)]]
        for h in range(2):
            for k, (u, w) in enumerate(pairs[h]):
                L.append(f"v_cvt_pk_bf16_f32 v{outs[h]+k}, v{E+u}, v{E+w}")
        return L
    snap = list(V.free)
    p(f"s_cmp_eq_u32 s{sTY}, 0\n s_cbranch_scc0 L_b_qtype")
    stamp(p, 4)
    SPLIT = False
    if 'preset' in OPT:
        for nt in range(3):
            for k in range(20): p(f"v_mov_b32 v{EE[nt]+k}, 4.0")
    for x in merge([softmax(nt, [TT[nt], TT[nt] + 6]) for nt in range(3)]): p(x)
    if 'kprio' in OPT: p("s_setprio 0")
    if 'dumpT' in OPT:
        p(f"""
        s_lshl_b32 s{sT0}, s2, 2
        s_add_u32 s{sT0}, s{sT0}, s{sWR}
        s_mul_i32 s{sT0}, s{sT0}, {36*256}
        s_add_u32 s{sT0}, s{sT0}, {4<<20}
        v_lshl_add_u32 v{t0}, v{vLane}, 2, s{sT0}
        """)
        for k in range(36):
            p(f"buffer_store_dword v{TTb+k}, v{t0}, s[{SRD_WS}:{SRD_WS+3}], 0 offen offset:{256*(k%16)}")
            if k % 16 == 15: p(f"v_add_u32 v{t0}, 4096, v{t0}")
        p("s_waitcnt vmcnt(0)")
    wait_slots_free("k")
    v_writes()
    p(f"""
    s_mul_i32 s{sT0}, s{sWR}, 48
    s_add_u32 s{sT0}, s{sT0}, s{sROW0}
    v_add_u32 v{t0}, s{sT0}, v{vI}
    v_mov_b32 v{t1}, 0x3f80
    """)
    on = EE[0]
    p(f"v_mov_b32 v{on+1}, 0")
    for nt in range(3):
        p(f"""
        v_cmp_gt_u32 vcc, 0x800, v{t0}
        v_cndmask_b32 v{on}, 0, v{t1}, vcc
        ds_write_b64 v{vRow}, v[{on}:{on+1}] offset:{16*RS*nt + 272}
        v_add_u32 v{t0}, 16, v{t0}
        """)
    vPh = EE[0] + 2
    p(f"v_mul_u32_u24 v{t0}, 24, v{vG}\n v_add_u32 v{vPh}, v{t0}, v{vRow}")
    streams = [[]]
    for nt in range(3):
        for h in range(2):
            o = TT[nt] + 6*h; off = 16*RS*nt + 96*h
            streams[0] += [f"ds_write_b64 v{vPh}, v[{o}:{o+1}] offset:{off}", f"ds_write_b64 v{vPh}, v[{o+2}:{o+3}] offset:{off+8}",
                           f"ds_write_b32 v{vPh}, v{o+4} offset:{off+16}"]
    for x in merge(streams): p(x)
    p("s_waitcnt lgkmcnt(0)\n s_barrier")
    for r, n in [(P, 24), (vRow, 1), (vFA, 16), (TTb, 38)] + [(x, 20) for x in EE] + [(y, 2) for x in SS for y in x]:
        V.release(r, n)
    stamp(p, 5)
    sHD, sHF = 95, 96
    vAa = V.alloc(); vB0 = V.alloc()
    p(f"""
    s_and_b32 s{sHD}, s{sWR}, 1
    s_lshr_b32 s{sHF}, s{sWR}, 1
    v_lshrrev_b32 v{t0}, 2, v{vI}
    v_lshl_add_u32 v{t0}, v{vG}, 3, v{t0}
    v_mul_u32_u24 v{t0}, {RS}, v{t0}
    v_add_u32 v{t0}, {PHI}, v{t0}
    v_and_b32 v{t1}, 3, v{vI}
    v_mul_u32_u24 v{t2}, 24, v{t1}
    s_mul_i32 s{sT0}, s{sHD}, 96
    v_add3_u32 v{vAa}, v{t0}, v{t2}, s{sT0}
    s_mul_i32 s{sT0}, s{sHD}, 40
    v_lshlrev_b32 v{t2}, 3, v{t1}
    v_add_u32 v{t2}, s{sT0}, v{t2}
    v_add_u32 v{vB0}, 192, v{t2}
    s_add_u32 s{sT0}, s{sT0}, 224
    v_mov_b32 v{t2}, 272
    v_mov_b32 v{t3}, s{sT0}
    v_cmp_eq_u32 vcc, s{sHD}, v{t1}
    v_cndmask_b32 v{t2}, v{t2}, v{t3}, vcc
    s_cmp_eq_u32 s{sHF}, 0
    s_cselect_b64 vcc, -1, 0
    v_cndmask_b32 v{t2}, v{t2}, v{vB0}, vcc
    v_add_u32 v{vB0}, v{t0}, v{t2}
    """)
    KF = V.alloc(48, align=4); KD = V.alloc(12, align=4)
    def kvreads(ks):
        b = KF + 16 * (ks % 3); off = 32 * RS * ks
        for h in range(2):
            p(f"ds_read_b64_tr_b16 v[{b+12+2*h}:{b+12+2*h+1}], v{vB0} offset:{off + 4*RS*h}")
        for mt in range(3):
            for h in range(2):
                p(f"ds_read_b64_tr_b16 v[{b+4*mt+2*h}:{b+4*mt+2*h+1}], v{vAa} offset:{off + 4*RS*h + 8*mt}")
    kvreads(0); kvreads(1)
    vP0 = V.alloc(); vP1 = V.alloc()
    p(f"""
    s_lshl_b32 s{sT0}, s{sRB}, 4
    s_add_u32 s{sT0}, s{sT0}, s{sHP}
    s_mul_i32 s{sT0}, s{sT0}, {PART_STRIDE}
    s_mul_i32 s{sT1}, s{sWR}, 1280
    s_add_u32 s{sT0}, s{sT0}, s{sT1}
    s_add_u32 s{sT0}, s{sT0}, {WS_PART}
    v_lshl_add_u32 v{vP0}, v{vLane}, 4, s{sT0}
    s_add_u32 s{sT0}, s{sT0}, 1024
    v_lshl_add_u32 v{vP1}, v{vLane}, 2, s{sT0}
    """)
    for ks in range(6):
        p(f"s_waitcnt lgkmcnt({8 if ks < 5 else 0})")
        b = KF + 16 * (ks % 3)
        for mt in range(3):
            c = "0" if ks == 0 else f"v[{KD+4*mt}:{KD+4*mt+3}]"
            p(f"v_mfma_f32_16x16x32_bf16 v[{KD+4*mt}:{KD+4*mt+3}], v[{b+4*mt}:{b+4*mt+3}], v[{b+12}:{b+15}], {c}")
        if ks + 2 < 6: kvreads(ks + 2)
    q = V.alloc(6, align=4)
    p(f"""
    v_cvt_pk_bf16_f32 v{q}, v{KD}, v{KD+1}
    v_cvt_pk_bf16_f32 v{q+1}, v{KD+2}, v{KD+3}
    v_cvt_pk_bf16_f32 v{q+2}, v{KD+4}, v{KD+5}
    v_cvt_pk_bf16_f32 v{q+3}, v{KD+6}, v{KD+7}
    v_cvt_pk_bf16_f32 v{q+4}, v{KD+8}, v{KD+9}
    buffer_store_dwordx4 v[{q}:{q+3}], v{vP0}, s[{SRD_WS}:{SRD_WS+3}], 0 offen sc1
    buffer_store_dword v{q+4}, v{vP1}, s[{SRD_WS}:{SRD_WS+3}], 0 offen sc1
    """)
    stamp(p, 6)
    V.release(KF, 48); V.release(KD, 12)
    L = V.alloc(56, align=4)
    A10 = V.alloc(10, align=2); mx = V.alloc()
    p(f"""
    s_lshl_b32 s{sT0}, s{sRB}, 4
    s_add_u32 s{sT0}, s{sT0}, s{sHP}
    s_sub_u32 s{sT0}, s{sT0}, s{sHQ}
    s_mul_i32 s{sT0}, s{sT0}, {PART_STRIDE}
    v_subrev_u32 v{t0}, s{sT0}, v{vP0}
    v_subrev_u32 v{t1}, s{sT0}, v{vP1}
    s_mov_b32 s{sCNT}, 0
    """)
    def ld_part(r):
        p(f"s_mov_b32 s{sT0}, {r*16*PART_STRIDE}")
        p(f"buffer_load_dwordx4 v[{L+4*r}:{L+4*r+3}], v{t0}, s[{SRD_WS}:{SRD_WS+3}], s{sT0} offen sc1")
        p(f"buffer_load_dword v{L+44+r}, v{t1}, s[{SRD_WS}:{SRD_WS+3}], s{sT0} offen sc1")
    sHI = 97; sLO = 90
    p(f"s_mov_b32 s{sHI}, 0x3f800000\n s_mov_b32 s{sLO}, 0x00003f80")
    if 'p1old' not in OPT:
        if 'noack1' not in OPT: p("s_waitcnt vmcnt(0)")
        for r in range(11): ld_part(r)
        sANY = 91
        p.label("L_b_att1")
        p(f"s_waitcnt vmcnt(0)\n s_mov_b32 s{sANY}, 0")
        for r in range(11):
            p(f"""
            v_max3_u32 v{mx}, v{L+4*r}, v{L+4*r+1}, v{L+4*r+2}
            v_max3_u32 v{mx}, v{mx}, v{L+4*r+3}, v{L+44+r}
            v_cmp_eq_u32 vcc, -1, v{mx}
            s_cbranch_vccz L_b_have1_{r}
            s_mov_b32 s{sANY}, 1
            """)
            ld_part(r)
            p.label(f"L_b_have1_{r}")
        p(f"""
        s_cmp_eq_u32 s{sANY}, 0
        s_cbranch_scc1 L_b_got1
        s_add_u32 s{sCNT}, s{sCNT}, 1
        s_cmp_le_u32 s{sCNT}, {SPIN_MAX}
        s_cbranch_scc1 L_b_att1
        s_waitcnt vmcnt(0)
        """)
        p.label("L_b_got1")
        stamp(p, 7)
        for r in range(11):
            for k in range(5):
                src = L + 4*r + k if k < 4 else L + 44 + r
                c0 = "0" if r == 0 else f"v{A10+2*k}"
                c1 = "0" if r == 0 else f"v{A10+2*k+1}"
                p(f"v_dot2_f32_bf16 v{A10+2*k}, v{src}, s{sLO}, {c0}")
                p(f"v_dot2_f32_bf16 v{A10+2*k+1}, v{src}, s{sHI}, {c1}")
    p.label("L_b_sum1")
    for k in range(5):
        p(f"v_cvt_pk_bf16_f32 v{L+k}, v{A10+2*k}, v{A10+2*k+1}")
    p(f"""
    s_lshl_b32 s{sT1}, s{sWR}, 10
    s_add_u32 s{sT1}, s{sT1}, {AST}
    v_lshl_add_u32 v{t0}, v{vLane}, 4, s{sT1}
    ds_write_b128 v{t0}, v[{L}:{L+3}]
    s_lshl_b32 s{sT1}, s{sWR}, 8
    s_add_u32 s{sT1}, s{sT1}, {AST + 4096}
    v_lshl_add_u32 v{t1}, v{vLane}, 2, s{sT1}
    ds_write_b32 v{t1}, v{L+4}
    s_waitcnt lgkmcnt(0)
    s_barrier
    """)
    stamp(p, 8)
    if 'noe3' not in OPT: p("s_barrier")
    p("s_branch L_b_final")
    V.free = list(snap)
    p.label("L_b_qtype")
    wait_slots_free("q")
    v_writes()
    p("s_waitcnt lgkmcnt(0)\n s_barrier")

    stamp(p, 4)
    for x in merge([softmax(nt, [TT[nt], TT[nt] + 6]) for nt in range(3)]): p(x)
    for nt in range(3):
        p(f"v_mov_b32 v{TT[nt]+5}, 0\n v_mov_b32 v{TT[nt]+11}, 0")
    p(f"v_mov_b32 v{TT[2]+12}, 0\n v_mov_b32 v{TT[2]+13}, 0")
    stamp(p, 5)
    for r, n in [(P, 24), (vRow, 1), (vFA, 16)] + [(x, 20) for x in EE] + [(y, 2) for x in SS for y in x]:
        V.release(r, n)
    p("s_waitcnt vmcnt(0) lgkmcnt(0)\n s_barrier")
    stamp(p, 6)
    AF = V.alloc(32, align=4)
    p(f"""
    v_lshlrev_b32 v{t0}, 4, v{vLane}
    v_add_u32 v{t0}, {AST}, v{t0}
    v_lshlrev_b32 v{t1}, 2, v{vLane}
    v_add_u32 v{t1}, {AST+4096}, v{t1}
    """)
    for k in range(4):
        p(f"ds_read_b128 v[{AF+8*k}:{AF+8*k+3}], v{t0} offset:{1024*k}")
        p(f"ds_read_b32 v{AF+8*k+4}, v{t1} offset:{256*k}")
    for k in range(4):
        for z in (5, 6, 7): p(f"v_mov_b32 v{AF+8*k+z}, 0")
    vOa = V.alloc(); vOb = V.alloc()
    ODs = [V.alloc(16, align=4) for _ in range(3)]; ws_ = [V.alloc(8, align=4) for _ in range(3)]
    sEPS = 97
    p(f"""
    s_mov_b32 s{sEPS}, 0x358637bd
    s_mul_i32 s{sT0}, s{sRB}, 12
    s_mul_i32 s{sT1}, s{sWR}, 3
    s_add_u32 s{sT0}, s{sT0}, s{sT1}
    s_mul_i32 s{sT0}, s{sT0}, {O_TILE}
    s_mul_i32 s{sT1}, s{sHQ}, 1280
    s_add_u32 s{sT0}, s{sT0}, s{sT1}
    s_add_u32 s{sT0}, s{sT0}, {WS_O}
    v_lshl_add_u32 v{vOa}, v{vLane}, 4, s{sT0}
    v_lshlrev_b32 v{t0}, 4, v{vI}
    v_lshl_add_u32 v{t0}, v{vG}, 3, v{t0}
    s_add_u32 s{sT0}, s{sT0}, 1024
    v_add_u32 v{vOb}, s{sT0}, v{t0}
    v_cmp_gt_u32 vcc, 16, v{vLane}
    s_mov_b32 s{sT2}, {O_TILE}
    s_mov_b32 s{sT3}, {2*O_TILE}
    s_waitcnt lgkmcnt(0)
    """)
    stamp(p, 8)
    streams = []
    for nt in range(3):
        OD = ODs[nt]; w = ws_[nt]
        L = []
        for h in range(2):
            b = TT[nt] + 6*h
            a0_ = AF + 8*h; a1_ = AF + 8*(h + 2)
            o0 = OD + 8*h; o1 = o0 + 4
            L += [f"v_mfma_f32_16x16x32_bf16 v[{o0}:{o0+3}], v[{a0_}:{a0_+3}], v[{b}:{b+3}], 0",
                  f"v_mfma_f32_16x16x32_bf16 v[{o1}:{o1+3}], v[{a1_}:{a1_+3}], v[{b}:{b+3}], 0",
                  f"v_mfma_f32_16x16x32_bf16 v[{o0}:{o0+3}], v[{a0_+4}:{a0_+7}], v[{b+4}:{b+7}], v[{o0}:{o0+3}]",
                  f"v_mfma_f32_16x16x32_bf16 v[{o1}:{o1+3}], v[{a1_+4}:{a1_+7}], v[{b+4}:{b+7}], v[{o1}:{o1+3}]"]
        y = [w + 6, w + 4]
        L += [f"v_mov_b32 v{y[0]}, v{OD+4}", f"v_mov_b32 v{y[1]}, v{OD+12}",
              f"v_permlane16_swap_b32 v{OD+4}, v{y[0]}", f"v_permlane16_swap_b32 v{y[1]}, v{OD+12}",
              f"v_add_f32 v{y[0]}, s{sEPS}, v{y[0]}", f"v_add_f32 v{y[1]}, s{sEPS}, v{y[1]}",
              f"v_rcp_f32 v{y[0]}, v{y[0]}", f"v_rcp_f32 v{y[1]}, v{y[1]}"]
        for h in range(2):
            for r in range(0, 8, 2):
                a = OD + 8*h + r
                L.append(f"v_pk_mul_f32 v[{a}:{a+1}], v[{a}:{a+1}], v[{y[h]}:{y[h]+1}] op_sel:[0,0] op_sel_hi:[1,0]")
        L += [f"v_cvt_pk_bf16_f32 v{w}, v{OD}, v{OD+1}", f"v_cvt_pk_bf16_f32 v{w+1}, v{OD+2}, v{OD+3}",
              f"v_cvt_pk_bf16_f32 v{w+2}, v{OD+8}, v{OD+9}", f"v_cvt_pk_bf16_f32 v{w+3}, v{OD+10}, v{OD+11}",
              f"v_cvt_pk_bf16_f32 v{OD+4}, v{OD+4}, v{OD+5}", f"v_cvt_pk_bf16_f32 v{OD+5}, v{OD+6}, v{OD+7}",
              f"v_cvt_pk_bf16_f32 v{OD+12}, v{OD+12}, v{OD+13}", f"v_cvt_pk_bf16_f32 v{OD+13}, v{OD+14}, v{OD+15}",
              f"v_cndmask_b32 v{w+4}, v{OD+12}, v{OD+4}, vcc", f"v_cndmask_b32 v{w+5}, v{OD+13}, v{OD+5}, vcc"]
        streams.append(L)
    for x in merge(streams): p(x)
    if 'fdiag' not in OPT: stamp(p, 15)
    so = ["0", f"s{sT2}", f"s{sT3}"]
    for nt in range(3):
        p(f"buffer_store_dwordx4 v[{ws_[nt]}:{ws_[nt]+3}], v{vOa}, s[{SRD_WS}:{SRD_WS+3}], {so[nt]} offen sc1")
    p("s_mov_b32 exec_hi, 0")
    for nt in range(3):
        p(f"buffer_store_dwordx2 v[{ws_[nt]+4}:{ws_[nt]+5}], v{vOb}, s[{SRD_WS}:{SRD_WS+3}], {so[nt]} offen sc1")
    p("s_mov_b32 exec_hi, -1")
    stamp(p, 7)
    if 'noe3' not in OPT: p("s_waitcnt vmcnt(0)\n s_barrier")
    p.label("L_b_final")
    V.free = [i > t3 for i in range(V.limit)]
    sRQ, sKH = 95, 96
    OF = V.alloc(80, align=4)
    vR = V.alloc(); vPl = V.alloc(); mx = V.alloc(); pv = V.alloc()
    p(f"""
    s_cmp_ge_u32 s2, 160
    s_cbranch_scc1 L_b_done
    s_lshr_b32 s{sT0}, s2, 3
    s_cmp_ge_u32 s{sT0}, 10
    s_cselect_b32 s{sT1}, 1, 0
    s_and_b32 s{sT2}, s2, 7
    s_lshl_b32 s{sT2}, s{sT2}, 1
    s_add_u32 s{sRT}, s{sT2}, s{sT1}
    s_mul_i32 s{sT1}, s{sT1}, 10
    s_sub_u32 s{sCG}, s{sT0}, s{sT1}
    s_and_b32 s{sRQ}, s{sW}, 3
    s_lshr_b32 s{sKH}, s{sW}, 2
    s_lshl_b32 s{sT0}, s{sRT}, 3
    s_lshl_b32 s{sT1}, s{sRQ}, 1
    s_add_u32 s{sT0}, s{sT0}, s{sT1}
    s_mul_i32 s{sT0}, s{sT0}, {O_TILE}
    s_mul_i32 s{sT1}, s{sKH}, 10240
    s_add_u32 s{sT0}, s{sT0}, s{sT1}
    s_add_u32 s{sT0}, s{sT0}, {WS_O}
    v_lshl_add_u32 v{vR}, v{vLane}, 4, s{sT0}
    s_mov_b32 s{sCNT}, 0
    """)
    vA = V.alloc(4, align=1)
    p(f"""
    v_lshrrev_b32 v{t2}, 2, v{vI}
    v_bfe_u32 v{t3}, v{t2}, 1, 1
    v_and_b32 v{t0}, 1, v{vG}
    v_lshl_add_u32 v{t3}, v{t0}, 1, v{t3}        ; psi
    v_bfe_u32 v{t0}, v{vI}, 1, 1
    v_lshlrev_b32 v{t0}, 4, v{t0}
    v_and_b32 v{t1}, 1, v{vI}
    v_lshl_add_u32 v{t0}, v{t1}, 3, v{t0}
    v_lshl_add_u32 v{t2}, v{vG}, 3, v{t2}
    v_lshl_add_u32 v{t0}, v{t2}, 7, v{t0}
    s_mul_i32 s{sT1}, s{sKH}, {320*128}
    v_add_u32 v{t0}, s{sT1}, v{t0}
    """)
    for mt in range(4):
        p(f"v_xor_b32 v{t1}, {mt}, v{t3}\n v_lshl_add_u32 v{vA+mt}, v{t1}, 5, v{t0}")
    FAc = V.alloc(32, align=4); WA = [V.alloc(16, align=4), V.alloc(16, align=4)]
    def wreads(ks):
        b = WA[ks & 1]
        return [f"ds_read_b64_tr_b16 v[{b+4*mt+2*h}:{b+4*mt+2*h+1}], v{vA+mt} offset:{WO_IMG + 4096*ks + 512*h}" for mt in range(4) for h in range(2)]
    def ld_o(ks):
        for nt in range(2):
            p(f"s_mov_b32 s{sT1}, {O_TILE*nt + 4096*(ks >> 2)}")
            p(f"buffer_load_dwordx4 v[{OF+8*ks+4*nt}:{OF+8*ks+4*nt+3}], v{vR}, s[{SRD_WS}:{SRD_WS+3}], s{sT1} offen offset:{1024*(ks & 3)} sc1")
    sMISS = 90
    def chk_o(ks):
        o = OF + 8*ks
        p(f"""
        v_max3_u32 v{mx}, v{o}, v{o+1}, v{o+2}
        v_max3_u32 v{pv}, v{o+3}, v{o+4}, v{o+5}
        v_max3_u32 v{mx}, v{mx}, v{o+6}, v{o+7}
        v_max_u32 v{mx}, v{mx}, v{pv}
        v_cmp_eq_u32 vcc, -1, v{mx}
        """)
    def mf_o(ks, wb, fill=()):
        k = 0
        for mt in range(4):
            for nt in range(2):
                a = FAc + 16*nt + 4*mt
                p(f"v_mfma_f32_16x16x32_bf16 v[{a}:{a+3}], v[{wb+4*mt}:{wb+4*mt+3}], v[{OF+8*ks+4*nt}:{OF+8*ks+4*nt+3}], v[{a}:{a+3}]")
                if k < 4 and fill:
                    p(fill[2*k]); p(fill[2*k+1])
                k += 1
    PD = int(common.os.environ.get("PD", "4"))
    if 'fdiag' in OPT: stamp(p, 13)
    for ks in range(min(PD, 10)): ld_o(ks)
    if 'fdiag' in OPT: stamp(p, 14)
    for x in wreads(0): p(x)
    for k in range(32): p(f"v_mov_b32 v{FAc+k}, 0")
    p(f"s_mov_b32 s{sMISS}, 0")
    for ks in range(10):
        nxt = wreads(ks + 1) if ks < 9 else []
        p(f"s_waitcnt vmcnt({2*min(PD-1, 9-ks)})")
        if ks + PD < 10: ld_o(ks + PD)
        chk_o(ks)
        p(f"s_cbranch_vccz L_b_ok2_{ks}")
        p(f"s_bitset1_b32 s{sMISS}, {ks}")
        ld_o(ks)
        p("s_waitcnt lgkmcnt(0)")
        for x in nxt: p(x)
        p(f"s_branch L_b_nx2_{ks}")
        p.label(f"L_b_ok2_{ks}")
        if ks == 0: stamp(p, 9)
        p("s_waitcnt lgkmcnt(0)")
        mf_o(ks, WA[ks & 1], nxt)
        p.label(f"L_b_nx2_{ks}")
    if 'fdiag' in OPT:
        stamp(p, 1)
        p(f"s_bcnt1_i32_b32 s79, s{sMISS}")
    p(f"s_cmp_eq_u32 s{sMISS}, 0\n s_cbranch_scc1 L_b_ok2")
    p.label("L_b_p2")
    p("s_waitcnt vmcnt(0)")
    for ks in range(10):
        p(f"s_bitcmp1_b32 s{sMISS}, {ks}\n s_cbranch_scc0 L_b_p2n_{ks}")
        chk_o(ks)
        p(f"s_cbranch_vccnz L_b_p2r_{ks}")
        b = WA[0]
        for x in [f"ds_read_b64_tr_b16 v[{b+4*mt+2*h}:{b+4*mt+2*h+1}], v{vA+mt} offset:{WO_IMG + 4096*ks + 512*h}" for mt in range(4) for h in range(2)]: p(x)
        p("s_waitcnt lgkmcnt(0)")
        mf_o(ks, b)
        p(f"s_bitset0_b32 s{sMISS}, {ks}\n s_branch L_b_p2n_{ks}")
        p.label(f"L_b_p2r_{ks}")
        ld_o(ks)
        p.label(f"L_b_p2n_{ks}")
    p(f"""
    s_cmp_eq_u32 s{sMISS}, 0
    s_cbranch_scc1 L_b_ok2
    s_add_u32 s{sCNT}, s{sCNT}, 1
    s_cmp_le_u32 s{sCNT}, {SPIN_MAX}
    s_cbranch_scc1 L_b_p2
    s_waitcnt vmcnt(0)
    """)
    p.label("L_b_ok2")
    stamp(p, 10)
    p(f"""
    s_lshl_b32 s{sT0}, s{sW}, 12
    s_add_u32 s{sT0}, s{sT0}, {RED}
    v_lshl_add_u32 v{t0}, v{vLane}, 4, s{sT0}
    s_xor_b32 s{sT1}, s{sW}, 4
    s_lshl_b32 s{sT1}, s{sT1}, 12
    s_add_u32 s{sT1}, s{sT1}, {RED}
    v_lshl_add_u32 v{t1}, v{vLane}, 4, s{sT1}
    s_lshl_b32 s{sT0}, s{sRT}, 7
    s_lshl_b32 s{sT1}, s{sRQ}, 5
    s_add_u32 s{sT0}, s{sT0}, s{sT1}
    s_lshl_b32 s{sT1}, s{sKH}, 4
    s_add_u32 s{sT0}, s{sT0}, s{sT1}
    v_and_b32 v{t2}, 7, v{vI}
    v_add_u32 v{t2}, s{sT0}, v{t2}
    v_mul_u32_u24 v{t2}, 2560, v{t2}
    v_lshrrev_b32 v{t3}, 3, v{vI}
    v_lshl_add_u32 v{t2}, v{t3}, 6, v{t2}
    v_and_b32 v{t3}, 1, v{vG}
    v_lshl_add_u32 v{t2}, v{t3}, 5, v{t2}
    v_lshrrev_b32 v{t3}, 1, v{vG}
    v_lshl_add_u32 v{t2}, v{t3}, 4, v{t2}
    s_lshl_b32 s{sT0}, s{sCG}, 7
    s_add_u32 s{sT0}, s{sT0}, 1280
    v_add_u32 v{t2}, s{sT0}, v{t2}
    s_cmp_eq_u32 s{sKH}, 0
    s_cbranch_scc1 L_b_red0
    """)
    def finish(keep):
        p("s_waitcnt lgkmcnt(0)\n s_barrier")
        for k in range(4):
            p(f"ds_read_b128 v[{OF+4*k}:{OF+4*k+3}], v{t1} offset:{1024*k}")
        for a2 in range(2):
            for mt in (2*a2, 2*a2 + 1):
                a = keep + 4*mt; b = OF + 4*mt
                p(f"s_waitcnt lgkmcnt({3-mt})")
                p(f"v_pk_add_f32 v[{a}:{a+1}], v[{a}:{a+1}], v[{b}:{b+1}]")
                p(f"v_pk_add_f32 v[{a+2}:{a+3}], v[{a+2}:{a+3}], v[{b+2}:{b+3}]")
            A = keep + 8*a2; B = A + 4; d = OF + 16 + 4*a2
            p(f"""
            v_cvt_pk_bf16_f32 v{d}, v{A}, v{A+1}
            v_cvt_pk_bf16_f32 v{d+1}, v{A+2}, v{A+3}
            v_cvt_pk_bf16_f32 v{d+2}, v{B}, v{B+1}
            v_cvt_pk_bf16_f32 v{d+3}, v{B+2}, v{B+3}
            v_permlane16_swap_b32 v{d}, v{d+2}
            v_permlane16_swap_b32 v{d+1}, v{d+3}
            """)
        d0 = OF + 16; d1 = OF + 20; r0 = OF + 24; r1 = OF + 28
        p(f"v_cmp_gt_u32 vcc, 8, v{vI}")
        for k in range(4):
            p(f"v_mov_b32_dpp v{r0+k}, v{d0+k} row_ror:8 row_mask:0xf bank_mask:0xf")
            p(f"v_mov_b32_dpp v{r1+k}, v{d1+k} row_ror:8 row_mask:0xf bank_mask:0xf")
        for k in range(4):
            p(f"v_cndmask_b32 v{r1+k}, v{r1+k}, v{d0+k}, vcc")
            p(f"v_cndmask_b32 v{r0+k}, v{d1+k}, v{r0+k}, vcc")
        MOD = 'sc1' if 'osc1' in OPT else ''
        p(f"s_mov_b32 s{sT0}, {8*2560}")
        p(f"buffer_store_dwordx4 v[{r1}:{r1+3}], v{t2}, s[{SRD_O}:{SRD_O+3}], 0 offen {MOD}")
        p(f"buffer_store_dwordx4 v[{r0}:{r0+3}], v{t2}, s[{SRD_O}:{SRD_O+3}], s{sT0} offen {MOD}")
    for k in range(4):
        p(f"ds_write_b128 v{t0}, v[{FAc+4*k}:{FAc+4*k+3}] offset:{1024*k}")
    finish(FAc + 16)
    p("s_branch L_b_done")
    p.label("L_b_red0")
    for k in range(4):
        p(f"ds_write_b128 v{t0}, v[{FAc+16+4*k}:{FAc+16+4*k+3}] offset:{1024*k}")
    finish(FAc)
    p.label("L_b_done")
    dbgmax(p, 9, t2, t3, sW)
    stamp(p, 11)
    if common.DIAG:
        p('s_waitcnt vmcnt(0)')
        stamp(p, 12)
        stamps_flush(p, t0, t1)
    return V
```

```python
from common import *
import common

SLOT = 40960
WOFF = 24576
WO_IMG = 0
PHI = 81920
RS = 296
AST = 139264
RED = 81920
WS_PART = 65536
PART_STRIDE = 5120
WS_O = 1 << 20
O_TILE = 20480
WS_SIZE = 16 << 20
SPIN_MAX = 1 << 14
DBG_CNT = 4

def merge(streams):
    out = []
    n = max(len(s) for s in streams)
    for j in range(n):
        for s in streams:
            if j < len(s): out.append(s[j])
    return out

def gen_part_b(p):
    V = VAlloc(VGPRS - 1, start=1)
    sJ, sI, sT, sRB, sHP, sW, sWR, sTY = 32, 33, 34, 35, 36, 37, 38, 39
    SRD_X, SRD_W, SRD_WS, SRD_WO, SRD_O = 40, 44, 48, 52, 56
    sT0, sT1, sT2, sT3 = 60, 61, 62, 63
    sKC = 81; sS = 82; sSLOTD = 83; sXO = 84; sWO = 85; sM0 = 86; sROW0 = 87
    sL = 88
    sRT, sCG, sDSLOT = 92, 93, 94
    sNEG = 100; sCNT = 101
    sHQ = 80
    QX = 1 if 'qx' in common.OPT else 0
    OPT = common.OPT
    p(f"""
    s_and_b32 s{sJ}, s2, 7
    s_lshr_b32 s{sI}, s2, 3
    s_lshr_b32 s{sT0}, s{sJ}, 2
    s_mul_i32 s{sT0}, s{sT0}, 22
    s_add_u32 s{sT}, s{sT0}, s{sI}
    s_lshr_b32 s{sRB}, s{sT}, 2
    s_and_b32 s{sT0}, s{sT}, 3
    s_and_b32 s{sT1}, s{sJ}, 3
    s_lshl_b32 s{sT1}, s{sT1}, 2
    s_add_u32 s{sHP}, s{sT1}, s{sT0}
    s_mul_i32 s{sROW0}, s{sRB}, 192
    s_xor_b32 s{sHQ}, s{sHP}, {QX}
    s_mul_i32 s{sT1}, s{sT0}, 3
    s_lshl_b32 s{sT2}, s{sRB}, 1
    s_add_u32 s{sKC}, s{sT1}, s{sT2}
    s_mul_i32 s{sT1}, s{sKC}, 205
    s_lshr_b32 s{sT1}, s{sT1}, 11
    s_mul_i32 s{sT1}, s{sT1}, 10
    s_sub_u32 s{sKC}, s{sKC}, s{sT1}
    """)
    if 'rot0' in OPT: p(f"s_mov_b32 s{sKC}, 0")
    if 'rot2' in OPT: p(f"s_and_b32 s{sKC}, s{sT}, 1\n s_mul_i32 s{sKC}, s{sKC}, 5")
    vLane = V.alloc(); vI = V.alloc(); vG = V.alloc(); t0 = V.alloc(); t1 = V.alloc(); t2 = V.alloc(); t3 = V.alloc()
    p(f"""
    v_lshrrev_b32 v{t0}, 6, v0
    v_and_b32 v{vLane}, 63, v0
    v_readfirstlane_b32 s{sW}, v{t0}
    v_and_b32 v{vI}, 15, v{vLane}
    v_lshrrev_b32 v{vG}, 4, v{vLane}
    s_and_b32 s{sWR}, s{sW}, 3
    s_lshr_b32 s{sTY}, s{sW}, 2
    s_cmp_eq_u32 s{sTY}, 2
    s_cbranch_scc0 L_b_compute
    """)
    mark = list(V.free)
    if 'pprio' in OPT: p("s_setprio 3")
    vX = [V.alloc(), V.alloc()]; vW = [V.alloc(), V.alloc()]
    p(f"""
    s_mul_i32 s{sT0}, s{sWR}, 48
    s_add_u32 s{sT0}, s{sT0}, s{sROW0}
    v_lshrrev_b32 v{t0}, 3, v{vLane}
    v_add_u32 v{t0}, s{sT0}, v{t0}
    v_mul_u32_u24 v{t0}, 1280, v{t0}
    v_and_b32 v{t1}, 7, v{vLane}
    v_xor_b32 v{t2}, v{t1}, v{vG}
    v_lshl_add_u32 v{vX[0]}, v{t2}, 4, v{t0}
    v_xor_b32 v{t2}, 4, v{t2}
    v_lshl_add_u32 v{vX[1]}, v{t2}, 4, v{t0}
    """)
    for hv in range(2):
        p(f"""
        v_lshlrev_b32 v{t0}, 1, v{vG}
        v_add_u32 v{t0}, {8*hv}, v{t0}
        v_xor_b32 v{t0}, v{t0}, v{vI}
        v_min_u32 v{t0}, 14, v{t0}
        ; c<5: 1280+16c ; c<8: 2560+16(c-5) ; c<13: 16(c-8) ; else 2560+16(c-10)
        v_lshlrev_b32 v{t1}, 4, v{t0}
        v_add_u32 v{t2}, {2560-160}, v{t1}
        s_sub_u32 s{sT1}, s{sHQ}, s{sHP}
        s_mul_i32 s{sT1}, s{sT1}, 80
        s_sub_u32 s{sT1}, s{sT1}, 128
        v_add_u32 v{t3}, s{sT1}, v{t1}
        v_cmp_gt_u32 vcc, 13, v{t0}
        v_cndmask_b32 v{t2}, v{t2}, v{t3}, vcc
        v_add_u32 v{t3}, {2560-80}, v{t1}
        v_cmp_gt_u32 vcc, 8, v{t0}
        v_cndmask_b32 v{t2}, v{t2}, v{t3}, vcc
        v_add_u32 v{t3}, 1280, v{t1}
        v_cmp_gt_u32 vcc, 5, v{t0}
        v_cndmask_b32 v{t2}, v{t2}, v{t3}, vcc
        s_mul_i32 s{sT0}, s{sHP}, 80
        s_mul_i32 s{sT1}, s{sWR}, {16*3840}
        s_add_u32 s{sT0}, s{sT0}, s{sT1}
        v_mul_u32_u24 v{t0}, 3840, v{vG}
        v_add3_u32 v{vW[hv]}, v{t0}, v{t2}, s{sT0}
        """)
    sMX, sMW = 90, 91
    p(f"""
    s_mul_i32 s{sMX}, s{sWR}, 6144
    s_lshl_b32 s{sMW}, s{sWR}, 12
    s_add_u32 s{sMW}, s{sMW}, {WOFF}
    s_mov_b32 s{sDSLOT}, 0
    s_waitcnt lgkmcnt(0)
    """)
    srd(p, SRD_X, S_X, 2048 * 1280)
    srd(p, SRD_W, S_WQKV, 640 * 3840)
    def dma_stage():
        p(f"s_lshl_b32 s{sXO}, s{sKC}, 7\n s_mul_i32 s{sWO}, s{sKC}, {64*3840}\n s_add_u32 s{sM0}, s{sMX}, s{sDSLOT}\n s_add_u32 s{sT2}, s{sMW}, s{sDSLOT}")
        order = [("x", 0), ("w", 0), ("x", 1), ("x", 2), ("w", 1), ("x", 3), ("w", 2), ("x", 4), ("x", 5), ("w", 3)]
        for kind, e in order:
            if 'nodma' in OPT: continue
            if kind == "x":
                p(f"s_add_u32 s{sT0}, s{sXO}, {8*e*1280}\n s_add_u32 m0, s{sM0}, {1024*e}")
                p(f"buffer_load_dwordx4 v{vX[e & 1]}, s[{SRD_X}:{SRD_X+3}], s{sT0} offen lds")
            else:
                p(f"s_add_u32 s{sT0}, s{sWO}, {4*e*3840}\n s_add_u32 m0, s{sT2}, {1024*e}")
                p(f"buffer_load_dwordx4 v{vW[e >> 1]}, s[{SRD_W}:{SRD_W+3}], s{sT0} offen lds")
        p(f"""
        s_add_u32 s{sKC}, s{sKC}, 1
        s_cmp_eq_u32 s{sKC}, 10
        s_cselect_b32 s{sKC}, 0, s{sKC}
        s_add_u32 s{sDSLOT}, s{sDSLOT}, {SLOT}
        s_cmp_eq_u32 s{sDSLOT}, {4*SLOT}
        s_cselect_b32 s{sDSLOT}, 0, s{sDSLOT}
        """)
    LA = 2 if ('la2' in OPT or 'st2' in OPT) else 3
    if 'st2' in OPT:
        dma_stage()
        p("s_barrier")
        stamp(p, 1)
        srd(p, SRD_WS, S_WS, WS_SIZE)
        srd(p, SRD_WO, S_WO, 640 * 1280)
        p("s_waitcnt vmcnt(0)")
        stamp(p, 2)
        p("s_barrier")
        stamp(p, 3)
        dma_stage()
    else:
        p(f"s_mov_b32 s{sS}, 0")
        p.label("L_p_pro")
        dma_stage()
        p(f"s_add_u32 s{sS}, s{sS}, 1\n s_cmp_lt_u32 s{sS}, {LA}\n s_cbranch_scc1 L_p_pro")
        stamp(p, 1)
        srd(p, SRD_WS, S_WS, WS_SIZE)
        srd(p, SRD_WO, S_WO, 640 * 1280)
        p(f"s_waitcnt vmcnt({10*(LA-1)})")
        stamp(p, 2)
        p("s_barrier")
        stamp(p, 3)
    assert LA == 3
    on4 = V.alloc(4, align=4); vC0 = V.alloc(); vC1 = V.alloc()
    def clear_part():
        p(f"""
        v_mov_b32 v{on4}, -1
        v_mov_b32 v{on4+1}, -1
        v_mov_b32 v{on4+2}, -1
        v_mov_b32 v{on4+3}, -1
        s_lshl_b32 s{sT0}, s{sRB}, 4
        s_add_u32 s{sT0}, s{sT0}, s{sHP}
        s_mul_i32 s{sT0}, s{sT0}, {PART_STRIDE}
        s_mul_i32 s{sT1}, s{sWR}, 1280
        s_add_u32 s{sT0}, s{sT0}, s{sT1}
        s_add_u32 s{sT0}, s{sT0}, {WS_PART}
        v_lshl_add_u32 v{vC0}, v{vLane}, 4, s{sT0}
        s_add_u32 s{sT0}, s{sT0}, 1024
        v_lshl_add_u32 v{vC1}, v{vLane}, 2, s{sT0}
        buffer_store_dwordx4 v[{on4}:{on4+3}], v{vC0}, s[{SRD_WS}:{SRD_WS+3}], 0 offen sc1
        buffer_store_dword v{on4}, v{vC1}, s[{SRD_WS}:{SRD_WS+3}], 0 offen sc1
        """)
    def clear_o():
        p(f"""
        s_mul_i32 s{sT0}, s{sRB}, 12
        s_mul_i32 s{sT1}, s{sWR}, 3
        s_add_u32 s{sT0}, s{sT0}, s{sT1}
        s_mul_i32 s{sT0}, s{sT0}, {O_TILE}
        s_mul_i32 s{sT1}, s{sHQ}, 1280
        s_add_u32 s{sT0}, s{sT0}, s{sT1}
        s_add_u32 s{sT0}, s{sT0}, {WS_O}
        v_lshl_add_u32 v{vC0}, v{vLane}, 4, s{sT0}
        s_add_u32 s{sT0}, s{sT0}, 1024
        v_lshl_add_u32 v{vC1}, v{vLane}, 2, s{sT0}
        """)
        for nt in range(3):
            p(f"s_mov_b32 s{sT1}, {O_TILE*nt}")
            p(f"buffer_store_dwordx4 v[{on4}:{on4+3}], v{vC0}, s[{SRD_WS}:{SRD_WS+3}], s{sT1} offen sc1")
            p(f"buffer_store_dword v{on4}, v{vC1}, s[{SRD_WS}:{SRD_WS+3}], s{sT1} offen sc1")
    def count(word, name):
        p(f"""
        s_cmp_lg_u32 s{sWR}, 0
        s_cbranch_scc1 L_p_nocnt{name}
        v_mov_b32 v{t0}, {word}
        v_mov_b32 v{t1}, 1
        s_mov_b32 exec_lo, 1
        s_mov_b32 exec_hi, 0
        global_atomic_add v{t0}, v{t1}, s[{S_DBG}:{S_DBG+1}] sc1
        s_mov_b64 exec, -1
        """)
        p.label(f"L_p_nocnt{name}")
    def check(word, name):
        p(f"""
        s_cmp_lg_u32 s{sWR}, 0
        s_cbranch_scc1 L_p_clr_ok{name}
        s_mov_b32 s{sCNT}, 0
        s_mov_b32 exec_lo, 1
        s_mov_b32 exec_hi, 0
        v_mov_b32 v{t0}, {word}
        """)
        p.label(f"L_p_clr{name}")
        p(f"""
        global_load_dword v{t1}, v{t0}, s[{S_DBG}:{S_DBG+1}] sc1
        s_waitcnt vmcnt(0)
        v_readfirstlane_b32 s{sT0}, v{t1}
        s_cmp_ge_u32 s{sT0}, {N_B}
        s_cbranch_scc1 L_p_clr_ok{name}
        s_add_u32 s{sCNT}, s{sCNT}, 1
        s_cmp_gt_u32 s{sCNT}, {1 << 12}
        s_cbranch_scc1 L_p_clr_ok{name}
        s_sleep 16
        s_branch L_p_clr{name}
        """)
        p.label(f"L_p_clr_ok{name}")
        p("s_mov_b64 exec, -1")
    def wo_prefetch():
        p(f"""
        s_lshr_b32 s{sT0}, s2, 3
        s_cmp_ge_u32 s{sT0}, 20
        s_cbranch_scc1 L_p_nopf
        s_mul_i32 s{sT0}, s{sT0}, 320
        s_mul_i32 s{sT1}, s{sWR}, 80
        s_add_u32 s{sT0}, s{sT0}, s{sT1}
        v_add_u32 v{t0}, s{sT0}, v{vLane}
        v_lshlrev_b32 v{t0}, 7, v{t0}
        buffer_load_dword v{VGPRS-1}, v{t0}, s[{SRD_WO}:{SRD_WO+3}], 0 offen
        s_mov_b32 exec_lo, 0xffff
        s_mov_b32 exec_hi, 0
        v_add_u32 v{t0}, {64*128}, v{t0}
        buffer_load_dword v{VGPRS-1}, v{t0}, s[{SRD_WO}:{SRD_WO+3}], 0 offen
        s_mov_b64 exec, -1
        """)
        p.label("L_p_nopf")
    clear_part(); clear_o()
    for st_ in range(3, 10):
        dma_stage()
        if 'pdiag' in OPT: stamp(p, 4 + (st_ - 3))
        p(f"s_waitcnt vmcnt({28 if st_ in (3, 4) else 20})")
        p("s_barrier")
        if st_ == 5: count(DBG_CNT, "p")
    p("s_waitcnt vmcnt(10)\n s_barrier")
    p("s_waitcnt vmcnt(0)\n s_barrier")
    wo_prefetch()
    check(DBG_CNT, "p")
    p(f"""
    s_lshr_b32 s{sT0}, s2, 3               ; i
    s_cmp_ge_u32 s{sT0}, 10
    s_cselect_b32 s{sT1}, 1, 0
    s_mul_i32 s{sT1}, s{sT1}, 10
    s_sub_u32 s{sCG}, s{sT0}, s{sT1}
    ; LDS row k' = 8 z + e holds wo row 40 (z/5) + 4 (z%5) + 20 (e>>2) + (e&3);  z = 20 pw + i'
    v_lshrrev_b32 v{t0}, 3, v{vLane}            ; e
    v_bfe_u32 v{t1}, v{t0}, 1, 1
    v_lshlrev_b32 v{t1}, 1, v{t1}
    v_and_b32 v{t2}, 7, v{vLane}
    v_xor_b32 v{t1}, v{t1}, v{t2}
    v_xor_b32 v{t2}, 4, v{t1}
    v_lshrrev_b32 v{t3}, 2, v{t0}
    v_mul_u32_u24 v{t3}, 20, v{t3}
    v_and_b32 v{t0}, 3, v{t0}
    v_add_u32 v{t0}, v{t0}, v{t3}
    s_mul_i32 s{sT0}, s{sWR}, 160
    v_add_u32 v{t0}, s{sT0}, v{t0}
    v_mul_u32_u24 v{t0}, 1280, v{t0}
    s_lshl_b32 s{sT0}, s{sCG}, 7
    v_add_u32 v{t0}, s{sT0}, v{t0}
    v_lshl_add_u32 v{t3}, v{t2}, 4, v{t0}
    v_lshl_add_u32 v{t0}, v{t1}, 4, v{t0}
    s_mul_i32 s{sM0}, s{sWR}, 20480
    """)
    p("s_barrier")
    vK0 = V.alloc(); vK1 = V.alloc()
    p(f"v_mov_b32 v{vK0}, v{t0}\n v_mov_b32 v{vK1}, v{t3}")
    p("s_cmp_ge_u32 s2, 160\n s_cbranch_scc1 L_p_nowo")
    for i in range(20):
        p(f"s_mov_b32 s{sT1}, {(40*(i//5) + 4*(i%5))*1280}\n s_add_u32 m0, s{sM0}, {WO_IMG + 1024*i}")
        p(f"buffer_load_dwordx4 v{vK1 if i & 1 else vK0}, s[{SRD_WO}:{SRD_WO+3}], s{sT1} offen lds")
    p.label("L_p_nowo")
    if 'pdiag' not in OPT: stamp(p, 4)
    p("s_waitcnt vmcnt(0)")
    if 'pdiag' not in OPT: stamp(p, 5)
    p("s_barrier")
    if 'pdiag' not in OPT: stamp(p, 6)
    if common.DIAG:
        stamps_flush(p, t0, t1, loader=True)
    p("s_endpgm")
    V.free = list(mark)
    p.label("L_b_compute")
    vWp = V.alloc(4, align=4); vWp2 = V.alloc(4, align=4)
    p(f"""
    s_cmp_eq_u32 s{sTY}, 0
    s_cselect_b32 s{sT0}, s{sHP}, s{sHQ}
    s_mul_i32 s{sT0}, s{sT0}, 1600
    v_lshlrev_b32 v{t0}, 4, v{vLane}
    v_add_u32 v{t0}, s{sT0}, v{t0}
    v_add_u32 v{t1}, 1024, v{t0}
    s_waitcnt lgkmcnt(0)
    global_load_dwordx4 v[{vWp}:{vWp+3}], v{t0}, s[{S_WPHI}:{S_WPHI+1}]
    s_mov_b32 exec_hi, 15
    global_load_dwordx4 v[{vWp2}:{vWp2+3}], v{t1}, s[{S_WPHI}:{S_WPHI+1}]
    s_mov_b32 exec_hi, -1
    """)
    PF0 = 1 if 'st2' in OPT else 3
    NPF = 0
    if 'l2pf' in OPT:
        NPF = 2
        a0 = V.alloc(); a1 = V.alloc(); a2 = V.alloc(); a3 = V.alloc(); d0 = V.alloc(); ad = V.alloc(2, align=2)
        p(f"""
        ; lane -> chunk PF0 + lane/10, item r = lane%10 ; it = min((i*8 + w)*10 + r, 1727)
        v_mul_u32_u24 v{a0}, 205, v{vLane}
        v_lshrrev_b32 v{a0}, 11, v{a0}               ; lane/10
        v_mul_u32_u24 v{a1}, 10, v{a0}
        v_sub_u32 v{a1}, v{vLane}, v{a1}             ; r
        s_lshl_b32 s{sT1}, s{sI}, 3
        s_add_u32 s{sT1}, s{sT1}, s{sW}
        s_mul_i32 s{sT1}, s{sT1}, 10
        v_add_u32 v{a1}, s{sT1}, v{a1}               ; it
        v_min_u32 v{a1}, 1727, v{a1}
        v_add_u32 v{a0}, {PF0}, v{a0}                ; chunk
        s_lshr_b32 s{sT2}, s{sJ}, 2
        s_mul_i32 s{sT2}, s{sT2}, 960
        v_add_u32 v{a2}, s{sT2}, v{a1}
        v_min_u32 v{a2}, 2047, v{a2}
        v_mul_u32_u24 v{a2}, 1280, v{a2}
        v_lshl_add_u32 v{a2}, v{a0}, 7, v{a2}
        ; W: u = it - 1152 ; krow = u/9 ; rem = u%9 ; seg = rem/3 ; ln = rem%3
        v_subrev_u32 v{a1}, 1152, v{a1}
        v_max_i32 v{d0}, 0, v{a1}
        v_mul_u32_u24 v{a3}, 7282, v{d0}
        v_lshrrev_b32 v{a3}, 16, v{a3}               ; krow
        v_mul_u32_u24 v{t3}, 9, v{a3}
        v_sub_u32 v{d0}, v{d0}, v{t3}                ; rem
        v_lshl_add_u32 v{a3}, v{a0}, 6, v{a3}
        v_mul_u32_u24 v{a3}, 3840, v{a3}
        v_mul_u32_u24 v{t3}, 86, v{d0}
        v_lshrrev_b32 v{t3}, 8, v{t3}                ; seg
        v_mul_u32_u24 v{a0}, 3, v{t3}
        v_sub_u32 v{d0}, v{d0}, v{a0}                ; ln
        v_mul_u32_u24 v{t3}, 1280, v{t3}
        v_lshl_add_u32 v{t3}, v{d0}, 7, v{t3}
        s_and_b32 s{sT2}, s{sJ}, 3
        s_mul_i32 s{sT2}, s{sT2}, 320
        s_and_b32 s{sT2}, s{sT2}, 0xffffff80
        v_add3_u32 v{a3}, v{a3}, v{t3}, s{sT2}
        v_cmp_gt_i32 vcc, 0, v{a1}                   ; x lanes
        v_cndmask_b32 v{a2}, v{a3}, v{a2}, vcc
        v_mov_b32 v{a0}, {6*64*3840}
        v_mov_b32 v{a1}, {6*128}
        v_cndmask_b32 v{a3}, v{a0}, v{a1}, vcc
        v_mov_b32 v{a0}, s{S_WQKV}
        v_mov_b32 v{a1}, s{S_X}
        v_cndmask_b32 v{ad}, v{a0}, v{a1}, vcc
        v_mov_b32 v{a0}, s{S_WQKV+1}
        v_mov_b32 v{a1}, s{S_X+1}
        v_cndmask_b32 v{ad+1}, v{a0}, v{a1}, vcc
        v_add_co_u32 v{ad}, vcc, v{ad}, v{a2}
        v_addc_co_u32 v{ad+1}, vcc, 0, v{ad+1}, vcc
        """)
        if 'st2' in OPT: p("s_barrier")
        p(f"""
        s_mov_b32 exec_hi, 0x0fffffff
        global_load_dword v{VGPRS-1}, v[{ad}:{ad+1}], off
        s_mov_b32 exec_hi, -1
        v_add_co_u32 v{ad}, vcc, v{ad}, v{a3}
        v_addc_co_u32 v{ad+1}, vcc, 0, v{ad+1}, vcc
        s_mov_b32 exec_lo, {0x3ff if PF0 == 3 else 0x3fffffff:#x}
        s_mov_b32 exec_hi, 0
        global_load_dword v{VGPRS-1}, v[{ad}:{ad+1}], off
        s_mov_b64 exec, -1
        """)
        for r in (a0, a1, a2, a3, d0): V.release(r)
        V.release(ad, 2)
    stamp(p, 1)
    srd(p, SRD_WS, S_WS, WS_SIZE)
    srd(p, SRD_O, S_OUT, 2048 * 2560)
    p(f"""
    s_mov_b32 s{sL}, {LOG2E:#x}
    s_mov_b32 s{sL+1}, {LOG2E:#x}
    s_mov_b32 s{sNEG}, {-3*SLOT & 0xffffffff:#x}
    """)
    vXa = V.alloc(2, align=1); vWa = V.alloc(4, align=1)
    for ks in range(2):
        p(f"""
        v_add_u32 v{t0}, {4*ks}, v{vG}
        v_lshrrev_b32 v{t1}, 1, v{vI}
        v_xor_b32 v{t0}, v{t0}, v{t1}
        v_lshlrev_b32 v{t0}, 4, v{t0}
        s_mul_i32 s{sT0}, s{sWR}, 48
        v_add_u32 v{t1}, s{sT0}, v{vI}
        v_lshl_add_u32 v{vXa+ks}, v{t1}, 7, v{t0}
        """)
    p(f"""
    v_and_b32 v{t0}, 1, v{vG}
    v_xor_b32 v{t0}, s{sTY}, v{t0}
    v_lshlrev_b32 v{t0}, 7, v{t0}
    v_bfe_u32 v{t2}, v{vI}, 1, 1
    v_lshl_add_u32 v{t0}, v{t2}, 4, v{t0}
    v_and_b32 v{t2}, 1, v{vI}
    v_lshl_add_u32 v{t0}, v{t2}, 3, v{t0}
    v_lshrrev_b32 v{t1}, 2, v{vI}
    v_lshl_add_u32 v{t2}, v{vG}, 3, v{t1}
    v_lshl_add_u32 v{t0}, v{t2}, 8, v{t0}
    v_add_u32 v{t0}, {WOFF}, v{t0}
    """)
    for mt in range(4):
        p(f"v_xor_b32 v{t2}, {mt}, v{t1}\n v_lshl_add_u32 v{vWa+mt}, v{t2}, 5, v{t0}")
    acc = V.alloc(48, align=4)
    for k in range(48): p(f"v_mov_b32 v{acc+k}, 0")
    WPB = 3 * SLOT
    vFA = V.alloc(16, align=4)
    FA, FB, FC0, FC1 = vFA, vFA + 4, vFA + 8, vFA + 12
    GT = V.alloc(32, align=1)
    for k in range(32): p(f"v_mov_b32 v{GT+k}, 0")
    p(f"""
    s_lshl_b32 s{sT0}, s{sW}, 11
    s_add_u32 s{sT0}, s{sT0}, {WPB}
    v_lshl_add_u32 v{t0}, v{vLane}, 4, s{sT0}
    v_lshrrev_b32 v{t1}, 2, v{vI}
    v_mul_u32_u24 v{t1}, 5, v{t1}
    v_and_b32 v{t2}, 3, v{vI}
    v_add_u32 v{t2}, v{t1}, v{t2}
    v_lshlrev_b32 v{t2}, 1, v{t2}
    v_mul_u32_u24 v{t3}, 160, v{vG}
    v_add3_u32 v{t2}, v{t2}, v{t3}, s{sT0}      ; t2: f = 5(m>>2)+(m&3)
    v_add_u32 v{t1}, 4, v{t1}
    v_lshlrev_b32 v{t1}, 1, v{t1}
    v_add3_u32 v{t1}, v{t1}, v{t3}, s{sT0}      ; t1: f = 5(m>>2)+4
    s_waitcnt vmcnt({NPF})
    """)
    p(f"""
    ds_write_b128 v{t0}, v[{vWp}:{vWp+3}]
    s_mov_b32 exec_hi, 15
    ds_write_b128 v{t0}, v[{vWp2}:{vWp2+3}] offset:1024
    s_mov_b32 exec_hi, -1
    s_waitcnt lgkmcnt(0)
    """)
    def gather(dst, addr, off, mask):
        p(f"s_mov_b32 exec_lo, {mask & 0xffffffff:#x}\n s_mov_b32 exec_hi, {mask >> 32:#x}")
        for e in range(4):
            p(f"ds_read_u16 v{GT + 2*(dst - vFA) + e}, v{addr} offset:{off + 40*e}")
    G0 = 0xFFFF; G01 = 0xFFFFFFFF; G123 = 0xFFFFFFFFFFFF0000; ALL = (1 << 64) - 1
    R0 = 0x1111111111111111; R1 = 0x2222222222222222
    gather(FA, t2, 0, ALL);            gather(FA + 2, t2, 16*40, G0)
    gather(FB, t2, 800 - 160, G123);   gather(FB + 2, t2, 800 + 12*40, G01)
    gather(FC0, t1, 0, R0);            gather(FC0 + 2, t1, 16*40, G0 & R0)
    gather(FC1, t1, 800 - 160, G123 & R1); gather(FC1 + 2, t1, 800 + 12*40, G01 & R1)
    p("s_mov_b64 exec, -1\n s_waitcnt lgkmcnt(0)")
    for k in range(16):
        p(f"v_lshl_or_b32 v{vFA+k}, v{GT+2*k+1}, 16, v{GT+2*k}")
    V.release(GT, 32); V.release(vWp, 4); V.release(vWp2, 4)
    XF = [V.alloc(12, align=4), V.alloc(12, align=4)]
    WF = [V.alloc(16, align=4), V.alloc(16, align=4)]
    def reads(ks):
        L = []
        for mt in range(4):
            for h in range(2):
                L.append(f"ds_read_b64_tr_b16 v[{WF[ks]+4*mt+2*h}:{WF[ks]+4*mt+2*h+1}], v{vWa+mt} offset:{8192*ks + 1024*h}")
        X = [f"ds_read_b128 v[{XF[ks]+4*nt}:{XF[ks]+4*nt+3}], v{vXa+ks} offset:{2048*nt}" for nt in range(3)]
        return [L[0], L[1], X[0], X[1], X[2]] + L[2:]
    def mfmas(ks):
        L = []
        for mt in range(4):
            for nt in range(3):
                a = acc + 16*nt + 4*mt
                L.append(f"v_mfma_f32_16x16x32_bf16 v[{a}:{a+3}], v[{WF[ks]+4*mt}:{WF[ks]+4*mt+3}], v[{XF[ks]+4*nt}:{XF[ks]+4*nt+3}], v[{a}:{a+3}]")
        return L
    def sched(main, slots):
        for i, m in enumerate(main):
            if 'nomfma' not in OPT: p(m)
            for x in slots.get(i, []):
                if ('nomfma' in OPT or 'nords' in OPT) and x.startswith('ds_read'): continue
                p(x)
    def advance():
        return [f"v_add_u32 v{r}, s{sSLOTD}, v{r}" for r in (vWa, vXa, vWa+1, vWa+2, vWa+3, vXa+1)]
    if 'fdiag' not in OPT: stamp(p, 15)
    p("s_barrier")
    stamp(p, 2)
    if 'fdiag' not in OPT: cstamp(p, 13)
    for x in reads(0): p(x)
    p(f"s_mov_b32 s{sS}, 0")
    def slot_delta():
        return [f"s_and_b32 s{sT0}, s{sS}, 3", f"s_cmp_eq_u32 s{sT0}, 3", f"s_cselect_b32 s{sSLOTD}, s{sNEG}, {SLOT}"]
    RSP = int(common.os.environ.get("RSP", "2"))
    def read_slots(r, first):
        d = {}
        k = first
        while r:
            d[k] = r[:RSP]; r = r[RSP:]; k += 1
        return d
    def half0():
        p("s_waitcnt lgkmcnt(0)")
        slots = read_slots(reads(1), 0)
        slots[7] = slot_delta()
        sched(mfmas(0), slots)
    def half1(nxt=True):
        p("s_waitcnt lgkmcnt(0)")
        if nxt:
            p("s_barrier")
            slots = read_slots(reads(0), 1)
            slots[0] = advance()
            sched(mfmas(1), slots)
        else:
            sched(mfmas(1), {})
    p.label("L_b_main")
    half0(); half1()
    p(f"s_add_u32 s{sS}, s{sS}, 1\n s_cmp_lt_u32 s{sS}, 9\n s_cbranch_scc1 L_b_main")
    half0(); half1(nxt=False)
    stamp(p, 3)
    if 'fdiag' not in OPT: cstamp(p, 14)
    V.release(XF[0], 12); V.release(XF[1], 12); V.release(WF[0], 16); V.release(WF[1], 16)
    V.release(vXa, 2); V.release(vWa, 4)
    def wait_cleared(name, vN, vm):
        p(f"s_mov_b32 s{sCNT}, 0\n s_waitcnt vmcnt({vm})")
        p.label(f"L_b_wc{name}")
        p(f"""
        v_readfirstlane_b32 s{sT0}, v{vN}
        s_cmp_ge_u32 s{sT0}, {N_B}
        s_cbranch_scc1 L_b_wc_ok{name}
        s_add_u32 s{sCNT}, s{sCNT}, 1
        s_cmp_gt_u32 s{sCNT}, {SPIN_MAX}
        s_cbranch_scc1 L_b_wc_ok{name}
        v_mov_b32 v{vN}, {DBG_CNT}
        global_load_dword v{vN}, v{vN}, s[{S_DBG}:{S_DBG+1}] sc1
        s_waitcnt vmcnt(0)
        s_branch L_b_wc{name}
        """)
        p.label(f"L_b_wc_ok{name}")
    P = V.alloc(3 * 8, align=2)
    vRow = V.alloc()
    vV2 = V.alloc(); vV3 = V.alloc()
    p(f"""
    s_mul_i32 s{sT0}, s{sWR}, 48
    v_add_u32 v{t0}, s{sT0}, v{vI}
    v_mul_u32_u24 v{vRow}, {RS}, v{t0}
    v_add_u32 v{vRow}, {PHI}, v{vRow}
    s_mul_i32 s{sT0}, s{sTY}, 48
    v_lshlrev_b32 v{t1}, 3, v{vG}
    v_add3_u32 v{vV2}, v{t1}, v{vRow}, s{sT0}
    v_add_u32 v{vV2}, {192 - 16}, v{vV2}
    v_add_u32 v{t2}, {192 + 16}, v{t1}
    v_add_u32 v{t3}, {192 + 64}, v{t1}
    v_cmp_gt_u32 vcc, 2, v{vG}
    v_add_u32 v{vV3}, {280 - 16}, v{t1}
    v_cndmask_b32 v{t3}, v{vV3}, v{t3}, vcc
    s_cmp_eq_u32 s{sTY}, 0
    s_cselect_b64 vcc, -1, 0
    v_cndmask_b32 v{t3}, v{t3}, v{t2}, vcc
    v_add_u32 v{vV3}, v{t3}, v{vRow}
    """)
    def cvtP(nt, mts):
        for mt in mts:
            a = acc + 16*nt + 4*mt
            p(f"v_cvt_pk_bf16_f32 v{P+8*nt+2*mt}, v{a}, v{a+1}")
            p(f"v_cvt_pk_bf16_f32 v{P+8*nt+2*mt+1}, v{a+2}, v{a+3}")
    for nt in range(3): cvtP(nt, (2, 3))
    p("s_mov_b32 exec_lo, 0")
    for nt in range(3): p(f"ds_write_b64 v{vV2}, v[{P+8*nt+4}:{P+8*nt+5}] offset:{16*RS*nt}")
    p("s_mov_b32 exec_lo, -1")
    for nt in range(3): p(f"ds_write_b64 v{vV3}, v[{P+8*nt+6}:{P+8*nt+7}] offset:{16*RS*nt}")
    for nt in range(3): cvtP(nt, (0, 1))
    V.release(vV2); V.release(vV3)
    if common.DUMP:
        p(f"""
        s_lshl_b32 s{sT0}, s2, 3
        s_add_u32 s{sT0}, s{sT0}, s{sW}
        s_mul_i32 s{sT0}, s{sT0}, {24*256}
        s_add_u32 s{sT0}, s{sT0}, {4<<20}
        v_lshl_add_u32 v{t0}, v{vLane}, 2, s{sT0}
        """)
        for k in range(24):
            p(f"buffer_store_dword v{P+k}, v{t0}, s[{SRD_WS}:{SRD_WS+3}], 0 offen offset:{256*(k%16)}")
            if k == 15: p(f"v_add_u32 v{t0}, 4096, v{t0}")
        p("s_waitcnt vmcnt(0)")
    V.release(acc, 48)
    if common.os.environ.get('RDBG'): print('free before softmax', [i for i,f in enumerate(V.free) if f])
    TTb = V.alloc(38, align=4)
    TT = [TTb, TTb + 12, TTb + 24]
    EE = [V.alloc(20, align=2) for _ in range(3)]
    SS = [[V.alloc(2, align=2) for _ in range(3)] for _ in range(3)]
    def softmax(nt, outs, X=None):
        T, E, S = TT[nt], EE[nt], SS[nt]
        if X is None: X = P + 8*nt
        X01 = X; X12 = X + 2
        a0, a1, b0, b1, c, d = S[0], S[0]+1, S[1], S[1]+1, S[2], S[2]+1
        L = [f"v_mfma_f32_16x16x32_bf16 v[{T}:{T+3}], v[{FA}:{FA+3}], v[{X01}:{X01+3}], 0",
             f"v_mfma_f32_16x16x32_bf16 v[{T+8}:{T+11}], v[{FC0}:{FC0+3}], v[{X01}:{X01+3}], 0",
             f"v_mfma_f32_16x16x32_bf16 v[{T+4}:{T+7}], v[{FB}:{FB+3}], v[{X12}:{X12+3}], 0",
             f"v_mfma_f32_16x16x32_bf16 v[{T+8}:{T+11}], v[{FC1}:{FC1+3}], v[{X12}:{X12+3}], v[{T+8}:{T+11}]"]
        x = [[T, T+1, T+2, T+3, T+8], [T+4, T+5, T+6, T+7, T+9]]
        for h, (a, b) in enumerate(((a0, b0), (a1, b1))):
            xs = x[h]
            L += [f"v_max3_f32 v{a}, v{xs[0]}, v{xs[1]}, v{xs[2]}", f"v_max3_f32 v{b}, -v{xs[0]}, -v{xs[1]}, -v{xs[2]}"]
        for h, (a, b) in enumerate(((a0, b0), (a1, b1))):
            xs = x[h]
            L += [f"v_max3_f32 v{a}, v{a}, v{xs[3]}, v{xs[4]}", f"v_max3_f32 v{b}, v{b}, -v{xs[3]}, -v{xs[4]}"]
        def allred(op):
            return [f"v_permlane16_swap_b32 v{a0}, v{b0}", f"v_permlane16_swap_b32 v{a1}, v{b1}",
                    f"{op} v{a0}, v{a0}, v{b0}", f"{op} v{a1}, v{a1}, v{b1}",
                    f"v_permlane32_swap_b32 v{a0}, v{a1}", f"{op} v{c}, v{a0}, v{a1}"]
        bc = [f"v_mov_b32 v{d}, v{c}", f"v_permlane32_swap_b32 v{c}, v{d}", f"v_mov_b32 v{a0}, v{c}", f"v_mov_b32 v{a1}, v{d}",
              f"v_permlane16_swap_b32 v{a0}, v{c}", f"v_permlane16_swap_b32 v{a1}, v{d}"]
        L += allred("v_max_f32") + [f"v_mul_f32 v{c}, s{sL}, v{c}"] + bc
        sel = [(0, 0), (0, 0), (1, 1), (1, 1), (0, 1)]
        for k in range(5):
            lo, hi = sel[k]
            if lo == 1:
                L.append(f"v_fma_f32 v{E+2*k}, v{T+2*k}, s{sL}, -v{a1}")
                L.append(f"v_fma_f32 v{E+2*k+1}, v{T+2*k+1}, s{sL}, -v{a1}")
                L.append(f"v_fma_f32 v{E+10+2*k}, -v{T+2*k}, s{sL}, -v{d}")
                L.append(f"v_fma_f32 v{E+10+2*k+1}, -v{T+2*k+1}, s{sL}, -v{d}")
                continue
            L.append(f"v_pk_fma_f32 v[{E+2*k}:{E+2*k+1}], v[{T+2*k}:{T+2*k+1}], s[{sL}:{sL+1}], v[{a0}:{a1}] op_sel:[0,0,{lo}] op_sel_hi:[1,1,{hi}] neg_lo:[0,0,1] neg_hi:[0,0,1]")
            L.append(f"v_pk_fma_f32 v[{E+10+2*k}:{E+10+2*k+1}], v[{T+2*k}:{T+2*k+1}], s[{sL}:{sL+1}], v[{c}:{d}] op_sel:[0,0,{lo}] op_sel_hi:[1,1,{hi}] neg_lo:[1,0,1] neg_hi:[1,0,1]")
        L += [f"v_exp_f32 v{E+k}, v{E+k}" for k in range(20)]
        L += [f"v_pk_add_f32 v[{T}:{T+1}], v[{E}:{E+1}], v[{E+2}:{E+3}]",
              f"v_pk_add_f32 v[{T+2}:{T+3}], v[{E+4}:{E+5}], v[{E+6}:{E+7}]",
              f"v_pk_add_f32 v[{T+4}:{T+5}], v[{E+10}:{E+11}], v[{E+12}:{E+13}]",
              f"v_pk_add_f32 v[{T+6}:{T+7}], v[{E+14}:{E+15}], v[{E+16}:{E+17}]",
              f"v_add_f32 v{a0}, v{T}, v{T+1}", f"v_add_f32 v{a1}, v{T+2}, v{T+3}",
              f"v_add_f32 v{b0}, v{T+4}, v{T+5}", f"v_add_f32 v{b1}, v{T+6}, v{T+7}",
              f"v_pk_add_f32 v[{a0}:{a1}], v[{a0}:{a1}], v[{E+8}:{E+9}]",
              f"v_pk_add_f32 v[{b0}:{b1}], v[{b0}:{b1}], v[{E+18}:{E+19}]"]
        L += allred("v_add_f32") + [f"v_rcp_f32 v{c}, v{c}"] + bc
        for k in range(5):
            lo, hi = sel[k]
            if lo == 1:
                L.append(f"v_mul_f32 v{E+2*k}, v{E+2*k}, v{a1}")
                L.append(f"v_mul_f32 v{E+2*k+1}, v{E+2*k+1}, v{a1}")
                L.append(f"v_mul_f32 v{E+10+2*k}, v{E+10+2*k}, v{d}")
                L.append(f"v_mul_f32 v{E+10+2*k+1}, v{E+10+2*k+1}, v{d}")
                continue
            L.append(f"v_pk_mul_f32 v[{E+2*k}:{E+2*k+1}], v[{E+2*k}:{E+2*k+1}], v[{a0}:{a1}] op_sel:[0,{lo}] op_sel_hi:[1,{hi}]")
            L.append(f"v_pk_mul_f32 v[{E+10+2*k}:{E+10+2*k+1}], v[{E+10+2*k}:{E+10+2*k+1}], v[{c}:{d}] op_sel:[0,{lo}] op_sel_hi:[1,{hi}]")
        pairs = [[(0, 1), (2, 3), (8, 10), (11, 12), (13, 18)], [(4, 5), (6, 7), (9, 14), (15, 16), (17, 19)]]
        for h in range(2):
            for k, (u, w) in enumerate(pairs[h]):
                L.append(f"v_cvt_pk_bf16_f32 v{outs[h]+k}, v{E+u}, v{E+w}")
        return L
    snap = list(V.free)
    p(f"s_cmp_eq_u32 s{sTY}, 0\n s_cbranch_scc0 L_b_qtype")
    stamp(p, 4)
    p(f"""
    s_mul_i32 s{sT0}, s{sWR}, 48
    s_add_u32 s{sT0}, s{sT0}, s{sROW0}
    v_add_u32 v{t0}, s{sT0}, v{vI}
    v_mov_b32 v{t1}, 0x3f80
    """)
    on = EE[0]
    p(f"v_mov_b32 v{on+1}, 0")
    for nt in range(3):
        p(f"""
        v_cmp_gt_u32 vcc, 0x800, v{t0}
        v_cndmask_b32 v{on}, 0, v{t1}, vcc
        ds_write_b64 v{vRow}, v[{on}:{on+1}] offset:{16*RS*nt + 272}
        v_add_u32 v{t0}, 16, v{t0}
        """)
    vPh = V.alloc()
    p(f"v_mul_u32_u24 v{t0}, 24, v{vG}\n v_add_u32 v{vPh}, v{t0}, v{vRow}")
    KSPLIT = 'ksplit' in OPT
    KMAGIC = 0x7fc17fc1
    KX = 144384
    if KSPLIT:
        p(f"""
        s_mul_i32 s{sT0}, s{sWR}, 1536
        s_add_u32 s{sT0}, s{sT0}, {KX}
        v_lshl_add_u32 v{t0}, v{vLane}, 3, s{sT0}
        ds_write_b64 v{t0}, v[{P+16}:{P+17}]
        ds_write_b64 v{t0}, v[{P+18}:{P+19}] offset:512
        ds_write_b64 v{t0}, v[{P+20}:{P+21}] offset:1024
        s_lshl_b32 s{sT0}, s{sWR}, 2
        s_add_u32 s{sT0}, s{sT0}, {KX + 6144}
        v_mov_b32 v{t1}, s{sT0}
        v_mov_b32 v{t2}, {KMAGIC:#x}
        s_waitcnt lgkmcnt(0)
        ds_write_b32 v{t1}, v{t2}
        """)
    def phi_writes(nt, T, ph):
        L = []
        for h in range(2):
            o = T + 6*h; off = 16*RS*nt + 96*h
            L += [f"ds_write_b64 v{ph}, v[{o}:{o+1}] offset:{off}", f"ds_write_b64 v{ph}, v[{o+2}:{o+3}] offset:{off+8}",
                  f"ds_write_b32 v{ph}, v{o+4} offset:{off+16}"]
        return L
    streams = []
    for nt in range(2 if KSPLIT else 3):
        T = TT[nt]
        streams.append(softmax(nt, [T, T + 6]) + phi_writes(nt, T, vPh))
    for x in merge(streams): p(x)
    p("s_waitcnt lgkmcnt(0)\n s_barrier")
    for r, n in [(P, 24), (vRow, 1), (vFA, 16), (TTb, 38), (vPh, 1)] + [(x, 20) for x in EE] + [(y, 2) for x in SS for y in x]:
        V.release(r, n)
    stamp(p, 5)
    sHD, sHF = 95, 96
    vAa = V.alloc(); vB0 = V.alloc()
    p(f"""
    s_and_b32 s{sHD}, s{sWR}, 1
    s_lshr_b32 s{sHF}, s{sWR}, 1
    v_lshrrev_b32 v{t0}, 2, v{vI}
    v_lshl_add_u32 v{t0}, v{vG}, 3, v{t0}
    v_mul_u32_u24 v{t0}, {RS}, v{t0}
    v_add_u32 v{t0}, {PHI}, v{t0}
    v_and_b32 v{t1}, 3, v{vI}
    v_mul_u32_u24 v{t2}, 24, v{t1}
    s_mul_i32 s{sT0}, s{sHD}, 96
    v_add3_u32 v{vAa}, v{t0}, v{t2}, s{sT0}
    s_mul_i32 s{sT0}, s{sHD}, 40
    v_lshlrev_b32 v{t2}, 3, v{t1}
    v_add_u32 v{t2}, s{sT0}, v{t2}
    v_add_u32 v{vB0}, 192, v{t2}
    s_add_u32 s{sT0}, s{sT0}, 224
    v_mov_b32 v{t2}, 272
    v_mov_b32 v{t3}, s{sT0}
    v_cmp_eq_u32 vcc, s{sHD}, v{t1}
    v_cndmask_b32 v{t2}, v{t2}, v{t3}, vcc
    s_cmp_eq_u32 s{sHF}, 0
    s_cselect_b64 vcc, -1, 0
    v_cndmask_b32 v{t2}, v{t2}, v{vB0}, vcc
    v_add_u32 v{vB0}, v{t0}, v{t2}
    """)
    KF = V.alloc(48, align=4); KD = V.alloc(12, align=4)
    def kvreads(ks):
        b = KF + 16 * (ks % 3); off = 32 * RS * ks
        for h in range(2):
            p(f"ds_read_b64_tr_b16 v[{b+12+2*h}:{b+12+2*h+1}], v{vB0} offset:{off + 4*RS*h}")
        for mt in range(3):
            for h in range(2):
                p(f"ds_read_b64_tr_b16 v[{b+4*mt+2*h}:{b+4*mt+2*h+1}], v{vAa} offset:{off + 4*RS*h + 8*mt}")
    kvreads(0); kvreads(1)
    vP0 = V.alloc(); vP1 = V.alloc()
    p(f"""
    s_lshl_b32 s{sT0}, s{sRB}, 4
    s_add_u32 s{sT0}, s{sT0}, s{sHP}
    s_mul_i32 s{sT0}, s{sT0}, {PART_STRIDE}
    s_mul_i32 s{sT1}, s{sWR}, 1280
    s_add_u32 s{sT0}, s{sT0}, s{sT1}
    s_add_u32 s{sT0}, s{sT0}, {WS_PART}
    v_lshl_add_u32 v{vP0}, v{vLane}, 4, s{sT0}
    s_add_u32 s{sT0}, s{sT0}, 1024
    v_lshl_add_u32 v{vP1}, v{vLane}, 2, s{sT0}
    """)
    for ks in range(6):
        p(f"s_waitcnt lgkmcnt({8 if ks < 5 else 0})")
        b = KF + 16 * (ks % 3)
        for mt in range(3):
            c = "0" if ks == 0 else f"v[{KD+4*mt}:{KD+4*mt+3}]"
            p(f"v_mfma_f32_16x16x32_bf16 v[{KD+4*mt}:{KD+4*mt+3}], v[{b+4*mt}:{b+4*mt+3}], v[{b+12}:{b+15}], {c}")
        if ks + 2 < 6: kvreads(ks + 2)
    q = V.alloc(6, align=4)
    p(f"""
    v_cvt_pk_bf16_f32 v{q}, v{KD}, v{KD+1}
    v_cvt_pk_bf16_f32 v{q+1}, v{KD+2}, v{KD+3}
    v_cvt_pk_bf16_f32 v{q+2}, v{KD+4}, v{KD+5}
    v_cvt_pk_bf16_f32 v{q+3}, v{KD+6}, v{KD+7}
    v_cvt_pk_bf16_f32 v{q+4}, v{KD+8}, v{KD+9}
    buffer_store_dwordx4 v[{q}:{q+3}], v{vP0}, s[{SRD_WS}:{SRD_WS+3}], 0 offen sc1
    buffer_store_dword v{q+4}, v{vP1}, s[{SRD_WS}:{SRD_WS+3}], 0 offen sc1
    """)
    stamp(p, 6)
    V.release(KF, 48); V.release(KD, 12)
    L = V.alloc(56, align=4)
    A10 = V.alloc(10, align=2); mx = V.alloc()
    p(f"""
    s_lshl_b32 s{sT0}, s{sRB}, 4
    s_add_u32 s{sT0}, s{sT0}, s{sHP}
    s_sub_u32 s{sT0}, s{sT0}, s{sHQ}
    s_mul_i32 s{sT0}, s{sT0}, {PART_STRIDE}
    v_subrev_u32 v{t0}, s{sT0}, v{vP0}
    v_subrev_u32 v{t1}, s{sT0}, v{vP1}
    s_mov_b32 s{sCNT}, 0
    """)
    def ld_part(r):
        p(f"s_mov_b32 s{sT0}, {r*16*PART_STRIDE}")
        p(f"buffer_load_dwordx4 v[{L+4*r}:{L+4*r+3}], v{t0}, s[{SRD_WS}:{SRD_WS+3}], s{sT0} offen sc1")
        p(f"buffer_load_dword v{L+44+r}, v{t1}, s[{SRD_WS}:{SRD_WS+3}], s{sT0} offen sc1")
    sHI = 97; sLO = 90
    p(f"s_mov_b32 s{sHI}, 0x3f800000\n s_mov_b32 s{sLO}, 0x00003f80")
    if 'p1old' not in OPT:
        if 'noack1' not in OPT: p("s_waitcnt vmcnt(0)")
        for r in range(11): ld_part(r)
        sANY = 91
        p.label("L_b_att1")
        p(f"s_waitcnt vmcnt(0)\n s_mov_b32 s{sANY}, 0")
        for r in range(11):
            p(f"""
            v_max3_u32 v{mx}, v{L+4*r}, v{L+4*r+1}, v{L+4*r+2}
            v_max3_u32 v{mx}, v{mx}, v{L+4*r+3}, v{L+44+r}
            v_cmp_eq_u32 vcc, -1, v{mx}
            s_cbranch_vccz L_b_have1_{r}
            s_mov_b32 s{sANY}, 1
            """)
            ld_part(r)
            p.label(f"L_b_have1_{r}")
        p(f"""
        s_cmp_eq_u32 s{sANY}, 0
        s_cbranch_scc1 L_b_got1
        s_add_u32 s{sCNT}, s{sCNT}, 1
        s_cmp_le_u32 s{sCNT}, {SPIN_MAX}
        s_cbranch_scc1 L_b_att1
        s_waitcnt vmcnt(0)
        """)
        p.label("L_b_got1")
        stamp(p, 7)
        for r in range(11):
            for k in range(5):
                src = L + 4*r + k if k < 4 else L + 44 + r
                c0 = "0" if r == 0 else f"v{A10+2*k}"
                c1 = "0" if r == 0 else f"v{A10+2*k+1}"
                p(f"v_dot2_f32_bf16 v{A10+2*k}, v{src}, s{sLO}, {c0}")
                p(f"v_dot2_f32_bf16 v{A10+2*k+1}, v{src}, s{sHI}, {c1}")
    p.label("L_b_sum1")
    for k in range(5):
        p(f"v_cvt_pk_bf16_f32 v{L+k}, v{A10+2*k}, v{A10+2*k+1}")
    p(f"""
    s_lshl_b32 s{sT1}, s{sWR}, 10
    s_add_u32 s{sT1}, s{sT1}, {AST}
    v_lshl_add_u32 v{t0}, v{vLane}, 4, s{sT1}
    ds_write_b128 v{t0}, v[{L}:{L+3}]
    s_lshl_b32 s{sT1}, s{sWR}, 8
    s_add_u32 s{sT1}, s{sT1}, {AST + 4096}
    v_lshl_add_u32 v{t1}, v{vLane}, 2, s{sT1}
    ds_write_b32 v{t1}, v{L+4}
    s_waitcnt lgkmcnt(0)
    s_barrier
    """)
    stamp(p, 8)
    if 'noe3' not in OPT: p("s_barrier")
    p("s_branch L_b_final")
    V.free = list(snap)
    p.label("L_b_qtype")
    if KSPLIT:
        X = EE[0]; ph = SS[0][0]
        p(f"""
        s_mul_i32 s{sT0}, s{sWR}, 1536
        s_add_u32 s{sT0}, s{sT0}, {KX}
        v_lshl_add_u32 v{t0}, v{vLane}, 3, s{sT0}
        v_mul_u32_u24 v{t2}, 24, v{vG}
        v_add_u32 v{ph}, v{t2}, v{vRow}
        s_lshl_b32 s{sT0}, s{sWR}, 2
        s_add_u32 s{sT0}, s{sT0}, {KX + 6144}
        v_mov_b32 v{t1}, s{sT0}
        s_mov_b32 s{sCNT}, 0
        """)
        p.label("L_b_pair")
        p(f"""
        ds_read_b32 v{t2}, v{t1}
        s_add_u32 s{sCNT}, s{sCNT}, 1
        s_cmp_gt_u32 s{sCNT}, {1 << 16}
        s_cbranch_scc1 L_b_pair_ok
        s_waitcnt lgkmcnt(0)
        v_readfirstlane_b32 s{sT0}, v{t2}
        s_cmp_lg_u32 s{sT0}, {KMAGIC:#x}
        s_cbranch_scc1 L_b_pair
        """)
        p.label("L_b_pair_ok")
        p(f"""
        s_waitcnt lgkmcnt(0)
        ds_read_b64 v[{X}:{X+1}], v{t0}
        ds_read_b64 v[{X+2}:{X+3}], v{t0} offset:512
        ds_read_b64 v[{X+4}:{X+5}], v{t0} offset:1024
        s_waitcnt lgkmcnt(0)
        """)
        for x in softmax(2, [TT[2], TT[2] + 6], X) + phi_writes(2, TT[2], ph): p(x)
    p("s_waitcnt lgkmcnt(0)\n s_barrier")

    stamp(p, 4)
    for x in merge([softmax(nt, [TT[nt], TT[nt] + 6]) for nt in range(3)]): p(x)
    for nt in range(3):
        p(f"v_mov_b32 v{TT[nt]+5}, 0\n v_mov_b32 v{TT[nt]+11}, 0")
    p(f"v_mov_b32 v{TT[2]+12}, 0\n v_mov_b32 v{TT[2]+13}, 0")
    stamp(p, 5)
    for r, n in [(P, 24), (vRow, 1), (vFA, 16)] + [(x, 20) for x in EE] + [(y, 2) for x in SS for y in x]:
        V.release(r, n)
    p("s_waitcnt vmcnt(0) lgkmcnt(0)\n s_barrier")
    stamp(p, 6)
    AF = V.alloc(32, align=4)
    p(f"""
    v_lshlrev_b32 v{t0}, 4, v{vLane}
    v_add_u32 v{t0}, {AST}, v{t0}
    v_lshlrev_b32 v{t1}, 2, v{vLane}
    v_add_u32 v{t1}, {AST+4096}, v{t1}
    """)
    for k in range(4):
        p(f"ds_read_b128 v[{AF+8*k}:{AF+8*k+3}], v{t0} offset:{1024*k}")
        p(f"ds_read_b32 v{AF+8*k+4}, v{t1} offset:{256*k}")
    for k in range(4):
        for z in (5, 6, 7): p(f"v_mov_b32 v{AF+8*k+z}, 0")
    vOa = V.alloc(); vOb = V.alloc()
    ODs = [V.alloc(16, align=4) for _ in range(3)]; ws_ = [V.alloc(8, align=4) for _ in range(3)]
    sEPS = 97
    p(f"""
    s_mov_b32 s{sEPS}, 0x358637bd
    s_mul_i32 s{sT0}, s{sRB}, 12
    s_mul_i32 s{sT1}, s{sWR}, 3
    s_add_u32 s{sT0}, s{sT0}, s{sT1}
    s_mul_i32 s{sT0}, s{sT0}, {O_TILE}
    s_mul_i32 s{sT1}, s{sHQ}, 1280
    s_add_u32 s{sT0}, s{sT0}, s{sT1}
    s_add_u32 s{sT0}, s{sT0}, {WS_O}
    v_lshl_add_u32 v{vOa}, v{vLane}, 4, s{sT0}
    v_lshlrev_b32 v{t0}, 4, v{vI}
    v_lshl_add_u32 v{t0}, v{vG}, 3, v{t0}
    s_add_u32 s{sT0}, s{sT0}, 1024
    v_add_u32 v{vOb}, s{sT0}, v{t0}
    v_cmp_gt_u32 vcc, 16, v{vLane}
    s_mov_b32 s{sT2}, {O_TILE}
    s_mov_b32 s{sT3}, {2*O_TILE}
    s_waitcnt lgkmcnt(0)
    """)
    stamp(p, 8)
    streams = []
    for nt in range(3):
        OD = ODs[nt]; w = ws_[nt]
        L = []
        for h in range(2):
            b = TT[nt] + 6*h
            a0_ = AF + 8*h; a1_ = AF + 8*(h + 2)
            o0 = OD + 8*h; o1 = o0 + 4
            L += [f"v_mfma_f32_16x16x32_bf16 v[{o0}:{o0+3}], v[{a0_}:{a0_+3}], v[{b}:{b+3}], 0",
                  f"v_mfma_f32_16x16x32_bf16 v[{o1}:{o1+3}], v[{a1_}:{a1_+3}], v[{b}:{b+3}], 0",
                  f"v_mfma_f32_16x16x32_bf16 v[{o0}:{o0+3}], v[{a0_+4}:{a0_+7}], v[{b+4}:{b+7}], v[{o0}:{o0+3}]",
                  f"v_mfma_f32_16x16x32_bf16 v[{o1}:{o1+3}], v[{a1_+4}:{a1_+7}], v[{b+4}:{b+7}], v[{o1}:{o1+3}]"]
        y = [w + 6, w + 4]
        L += [f"v_mov_b32 v{y[0]}, v{OD+4}", f"v_mov_b32 v{y[1]}, v{OD+12}",
              f"v_permlane16_swap_b32 v{OD+4}, v{y[0]}", f"v_permlane16_swap_b32 v{y[1]}, v{OD+12}",
              f"v_add_f32 v{y[0]}, s{sEPS}, v{y[0]}", f"v_add_f32 v{y[1]}, s{sEPS}, v{y[1]}",
              f"v_rcp_f32 v{y[0]}, v{y[0]}", f"v_rcp_f32 v{y[1]}, v{y[1]}"]
        for h in range(2):
            for r in range(0, 8, 2):
                a = OD + 8*h + r
                L.append(f"v_pk_mul_f32 v[{a}:{a+1}], v[{a}:{a+1}], v[{y[h]}:{y[h]+1}] op_sel:[0,0] op_sel_hi:[1,0]")
        L += [f"v_cvt_pk_bf16_f32 v{w}, v{OD}, v{OD+1}", f"v_cvt_pk_bf16_f32 v{w+1}, v{OD+2}, v{OD+3}",
              f"v_cvt_pk_bf16_f32 v{w+2}, v{OD+8}, v{OD+9}", f"v_cvt_pk_bf16_f32 v{w+3}, v{OD+10}, v{OD+11}",
              f"v_cvt_pk_bf16_f32 v{OD+4}, v{OD+4}, v{OD+5}", f"v_cvt_pk_bf16_f32 v{OD+5}, v{OD+6}, v{OD+7}",
              f"v_cvt_pk_bf16_f32 v{OD+12}, v{OD+12}, v{OD+13}", f"v_cvt_pk_bf16_f32 v{OD+13}, v{OD+14}, v{OD+15}",
              f"v_cndmask_b32 v{w+4}, v{OD+12}, v{OD+4}, vcc", f"v_cndmask_b32 v{w+5}, v{OD+13}, v{OD+5}, vcc"]
        streams.append(L)
    for x in merge(streams): p(x)
    if 'fdiag' not in OPT: stamp(p, 15)
    so = ["0", f"s{sT2}", f"s{sT3}"]
    for nt in range(3):
        p(f"buffer_store_dwordx4 v[{ws_[nt]}:{ws_[nt]+3}], v{vOa}, s[{SRD_WS}:{SRD_WS+3}], {so[nt]} offen sc1")
    p("s_mov_b32 exec_hi, 0")
    for nt in range(3):
        p(f"buffer_store_dwordx2 v[{ws_[nt]+4}:{ws_[nt]+5}], v{vOb}, s[{SRD_WS}:{SRD_WS+3}], {so[nt]} offen sc1")
    p("s_mov_b32 exec_hi, -1")
    stamp(p, 7)
    if 'noe3' not in OPT: p("s_waitcnt vmcnt(0)\n s_barrier")
    p.label("L_b_final")
    V.free = [i > t3 for i in range(V.limit)]
    sRQ, sKH = 95, 96
    OF = V.alloc(80, align=4)
    vR = V.alloc(); vPl = V.alloc(); mx = V.alloc(); pv = V.alloc()
    p(f"""
    s_cmp_ge_u32 s2, 160
    s_cbranch_scc1 L_b_done
    s_lshr_b32 s{sT0}, s2, 3
    s_cmp_ge_u32 s{sT0}, 10
    s_cselect_b32 s{sT1}, 1, 0
    s_and_b32 s{sT2}, s2, 7
    s_lshl_b32 s{sT2}, s{sT2}, 1
    s_add_u32 s{sRT}, s{sT2}, s{sT1}
    s_mul_i32 s{sT1}, s{sT1}, 10
    s_sub_u32 s{sCG}, s{sT0}, s{sT1}
    s_and_b32 s{sRQ}, s{sW}, 3
    s_lshr_b32 s{sKH}, s{sW}, 2
    s_lshl_b32 s{sT0}, s{sRT}, 3
    s_lshl_b32 s{sT1}, s{sRQ}, 1
    s_add_u32 s{sT0}, s{sT0}, s{sT1}
    s_mul_i32 s{sT0}, s{sT0}, {O_TILE}
    s_mul_i32 s{sT1}, s{sKH}, 10240
    s_add_u32 s{sT0}, s{sT0}, s{sT1}
    s_add_u32 s{sT0}, s{sT0}, {WS_O}
    v_lshl_add_u32 v{vR}, v{vLane}, 4, s{sT0}
    s_mov_b32 s{sCNT}, 0
    """)
    vA = V.alloc(4, align=1)
    p(f"""
    v_lshrrev_b32 v{t2}, 2, v{vI}
    v_bfe_u32 v{t3}, v{t2}, 1, 1
    v_and_b32 v{t0}, 1, v{vG}
    v_lshl_add_u32 v{t3}, v{t0}, 1, v{t3}        ; psi
    v_bfe_u32 v{t0}, v{vI}, 1, 1
    v_lshlrev_b32 v{t0}, 4, v{t0}
    v_and_b32 v{t1}, 1, v{vI}
    v_lshl_add_u32 v{t0}, v{t1}, 3, v{t0}
    v_lshl_add_u32 v{t2}, v{vG}, 3, v{t2}
    v_lshl_add_u32 v{t0}, v{t2}, 7, v{t0}
    s_mul_i32 s{sT1}, s{sKH}, {320*128}
    v_add_u32 v{t0}, s{sT1}, v{t0}
    """)
    for mt in range(4):
        p(f"v_xor_b32 v{t1}, {mt}, v{t3}\n v_lshl_add_u32 v{vA+mt}, v{t1}, 5, v{t0}")
    FAc = V.alloc(32, align=4); WA = [V.alloc(16, align=4), V.alloc(16, align=4)]
    def wreads(ks):
        b = WA[ks & 1]
        return [f"ds_read_b64_tr_b16 v[{b+4*mt+2*h}:{b+4*mt+2*h+1}], v{vA+mt} offset:{WO_IMG + 4096*ks + 512*h}" for mt in range(4) for h in range(2)]
    def ld_o(ks):
        for nt in range(2):
            p(f"s_mov_b32 s{sT1}, {O_TILE*nt + 4096*(ks >> 2)}")
            p(f"buffer_load_dwordx4 v[{OF+8*ks+4*nt}:{OF+8*ks+4*nt+3}], v{vR}, s[{SRD_WS}:{SRD_WS+3}], s{sT1} offen offset:{1024*(ks & 3)} sc1")
    sMISS = 90
    def chk_o(ks):
        o = OF + 8*ks
        p(f"""
        v_max3_u32 v{mx}, v{o}, v{o+1}, v{o+2}
        v_max3_u32 v{pv}, v{o+3}, v{o+4}, v{o+5}
        v_max3_u32 v{mx}, v{mx}, v{o+6}, v{o+7}
        v_max_u32 v{mx}, v{mx}, v{pv}
        v_cmp_eq_u32 vcc, -1, v{mx}
        """)
    def mf_o(ks, wb, fill=()):
        k = 0
        for mt in range(4):
            for nt in range(2):
                a = FAc + 16*nt + 4*mt
                p(f"v_mfma_f32_16x16x32_bf16 v[{a}:{a+3}], v[{wb+4*mt}:{wb+4*mt+3}], v[{OF+8*ks+4*nt}:{OF+8*ks+4*nt+3}], v[{a}:{a+3}]")
                if k < 4 and fill:
                    p(fill[2*k]); p(fill[2*k+1])
                k += 1
    PD = int(common.os.environ.get("PD", "4"))
    if 'fdiag' in OPT: stamp(p, 13)
    for ks in range(min(PD, 10)): ld_o(ks)
    if 'fdiag' in OPT: stamp(p, 14)
    for x in wreads(0): p(x)
    for k in range(32): p(f"v_mov_b32 v{FAc+k}, 0")
    p(f"s_mov_b32 s{sMISS}, 0")
    for ks in range(10):
        nxt = wreads(ks + 1) if ks < 9 else []
        p(f"s_waitcnt vmcnt({2*min(PD-1, 9-ks)})")
        if ks + PD < 10: ld_o(ks + PD)
        chk_o(ks)
        p(f"s_cbranch_vccz L_b_ok2_{ks}")
        p(f"s_bitset1_b32 s{sMISS}, {ks}")
        ld_o(ks)
        p("s_waitcnt lgkmcnt(0)")
        for x in nxt: p(x)
        p(f"s_branch L_b_nx2_{ks}")
        p.label(f"L_b_ok2_{ks}")
        if ks == 0: stamp(p, 9)
        p("s_waitcnt lgkmcnt(0)")
        mf_o(ks, WA[ks & 1], nxt)
        p.label(f"L_b_nx2_{ks}")
    if 'fdiag' in OPT:
        stamp(p, 1)
        p(f"s_bcnt1_i32_b32 s79, s{sMISS}")
    p(f"s_cmp_eq_u32 s{sMISS}, 0\n s_cbranch_scc1 L_b_ok2")
    p.label("L_b_p2")
    p("s_waitcnt vmcnt(0)")
    for ks in range(10):
        p(f"s_bitcmp1_b32 s{sMISS}, {ks}\n s_cbranch_scc0 L_b_p2n_{ks}")
        chk_o(ks)
        p(f"s_cbranch_vccnz L_b_p2r_{ks}")
        b = WA[0]
        for x in [f"ds_read_b64_tr_b16 v[{b+4*mt+2*h}:{b+4*mt+2*h+1}], v{vA+mt} offset:{WO_IMG + 4096*ks + 512*h}" for mt in range(4) for h in range(2)]: p(x)
        p("s_waitcnt lgkmcnt(0)")
        mf_o(ks, b)
        p(f"s_bitset0_b32 s{sMISS}, {ks}\n s_branch L_b_p2n_{ks}")
        p.label(f"L_b_p2r_{ks}")
        ld_o(ks)
        p.label(f"L_b_p2n_{ks}")
    p(f"""
    s_cmp_eq_u32 s{sMISS}, 0
    s_cbranch_scc1 L_b_ok2
    s_add_u32 s{sCNT}, s{sCNT}, 1
    s_cmp_le_u32 s{sCNT}, {SPIN_MAX}
    s_cbranch_scc1 L_b_p2
    s_waitcnt vmcnt(0)
    """)
    p.label("L_b_ok2")
    stamp(p, 10)
    p(f"""
    s_lshl_b32 s{sT0}, s{sW}, 12
    s_add_u32 s{sT0}, s{sT0}, {RED}
    v_lshl_add_u32 v{t0}, v{vLane}, 4, s{sT0}
    s_xor_b32 s{sT1}, s{sW}, 4
    s_lshl_b32 s{sT1}, s{sT1}, 12
    s_add_u32 s{sT1}, s{sT1}, {RED}
    v_lshl_add_u32 v{t1}, v{vLane}, 4, s{sT1}
    s_lshl_b32 s{sT0}, s{sRT}, 7
    s_lshl_b32 s{sT1}, s{sRQ}, 5
    s_add_u32 s{sT0}, s{sT0}, s{sT1}
    s_lshl_b32 s{sT1}, s{sKH}, 4
    s_add_u32 s{sT0}, s{sT0}, s{sT1}
    v_and_b32 v{t2}, 7, v{vI}
    v_add_u32 v{t2}, s{sT0}, v{t2}
    v_mul_u32_u24 v{t2}, 2560, v{t2}
    v_lshrrev_b32 v{t3}, 3, v{vI}
    v_lshl_add_u32 v{t2}, v{t3}, 6, v{t2}
    v_and_b32 v{t3}, 1, v{vG}
    v_lshl_add_u32 v{t2}, v{t3}, 5, v{t2}
    v_lshrrev_b32 v{t3}, 1, v{vG}
    v_lshl_add_u32 v{t2}, v{t3}, 4, v{t2}
    s_lshl_b32 s{sT0}, s{sCG}, 7
    s_add_u32 s{sT0}, s{sT0}, 1280
    v_add_u32 v{t2}, s{sT0}, v{t2}
    s_cmp_eq_u32 s{sKH}, 0
    s_cbranch_scc1 L_b_red0
    """)
    def finish(keep):
        p("s_waitcnt lgkmcnt(0)\n s_barrier")
        for k in range(4):
            p(f"ds_read_b128 v[{OF+4*k}:{OF+4*k+3}], v{t1} offset:{1024*k}")
        for a2 in range(2):
            for mt in (2*a2, 2*a2 + 1):
                a = keep + 4*mt; b = OF + 4*mt
                p(f"s_waitcnt lgkmcnt({3-mt})")
                p(f"v_pk_add_f32 v[{a}:{a+1}], v[{a}:{a+1}], v[{b}:{b+1}]")
                p(f"v_pk_add_f32 v[{a+2}:{a+3}], v[{a+2}:{a+3}], v[{b+2}:{b+3}]")
            A = keep + 8*a2; B = A + 4; d = OF + 16 + 4*a2
            p(f"""
            v_cvt_pk_bf16_f32 v{d}, v{A}, v{A+1}
            v_cvt_pk_bf16_f32 v{d+1}, v{A+2}, v{A+3}
            v_cvt_pk_bf16_f32 v{d+2}, v{B}, v{B+1}
            v_cvt_pk_bf16_f32 v{d+3}, v{B+2}, v{B+3}
            v_permlane16_swap_b32 v{d}, v{d+2}
            v_permlane16_swap_b32 v{d+1}, v{d+3}
            """)
        d0 = OF + 16; d1 = OF + 20; r0 = OF + 24; r1 = OF + 28
        p(f"v_cmp_gt_u32 vcc, 8, v{vI}")
        for k in range(4):
            p(f"v_mov_b32_dpp v{r0+k}, v{d0+k} row_ror:8 row_mask:0xf bank_mask:0xf")
            p(f"v_mov_b32_dpp v{r1+k}, v{d1+k} row_ror:8 row_mask:0xf bank_mask:0xf")
        for k in range(4):
            p(f"v_cndmask_b32 v{r1+k}, v{r1+k}, v{d0+k}, vcc")
            p(f"v_cndmask_b32 v{r0+k}, v{d1+k}, v{r0+k}, vcc")
        MOD = 'sc1' if 'osc1' in OPT else ''
        p(f"s_mov_b32 s{sT0}, {8*2560}")
        p(f"buffer_store_dwordx4 v[{r1}:{r1+3}], v{t2}, s[{SRD_O}:{SRD_O+3}], 0 offen {MOD}")
        p(f"buffer_store_dwordx4 v[{r0}:{r0+3}], v{t2}, s[{SRD_O}:{SRD_O+3}], s{sT0} offen {MOD}")
    for k in range(4):
        p(f"ds_write_b128 v{t0}, v[{FAc+4*k}:{FAc+4*k+3}] offset:{1024*k}")
    finish(FAc + 16)
    p("s_branch L_b_done")
    p.label("L_b_red0")
    for k in range(4):
        p(f"ds_write_b128 v{t0}, v[{FAc+16+4*k}:{FAc+16+4*k+3}] offset:{1024*k}")
    finish(FAc)
    p.label("L_b_done")
    dbgmax(p, 9, t2, t3, sW)
    stamp(p, 11)
    if common.DIAG:
        p('s_waitcnt vmcnt(0)')
        stamp(p, 12)
        stamps_flush(p, t0, t1)
    return V
```

```python
from common import *
import common

SLOT = 40960
WOFF = 24576
WO_IMG = 0
PHI = 81920
RS = 296
AST = 139264
RED = 81920
WS_PART = 65536
PART_STRIDE = 5120
WS_O = 1 << 20
O_TILE = 20480
WS_SIZE = 16 << 20
SPIN_MAX = 1 << 14
DBG_CNT2 = 128
DBG_CNT = 4

def merge(streams):
    out = []
    n = max(len(s) for s in streams)
    for j in range(n):
        for s in streams:
            if j < len(s): out.append(s[j])
    return out

def gen_part_b(p):
    V = VAlloc(VGPRS - 1, start=1)
    sJ, sI, sT, sRB, sHP, sW, sWR, sTY = 32, 33, 34, 35, 36, 37, 38, 39
    SRD_X, SRD_W, SRD_WS, SRD_WO, SRD_O = 40, 44, 48, 52, 56
    sT0, sT1, sT2, sT3 = 60, 61, 62, 63
    sKC = 81; sS = 82; sSLOTD = 83; sXO = 84; sWO = 85; sM0 = 86; sROW0 = 87
    sL = 88
    sRT, sCG, sDSLOT = 92, 93, 94
    sNEG = 100; sCNT = 101
    sHQ = 80
    QX = 1 if 'qx' in common.OPT else 0
    OPT = common.OPT
    p(f"""
    s_and_b32 s{sJ}, s2, 7
    s_lshr_b32 s{sI}, s2, 3
    s_lshr_b32 s{sT0}, s{sJ}, 2
    s_mul_i32 s{sT0}, s{sT0}, 22
    s_add_u32 s{sT}, s{sT0}, s{sI}
    s_lshr_b32 s{sRB}, s{sT}, 2
    s_and_b32 s{sT0}, s{sT}, 3
    s_and_b32 s{sT1}, s{sJ}, 3
    s_lshl_b32 s{sT1}, s{sT1}, 2
    s_add_u32 s{sHP}, s{sT1}, s{sT0}
    s_mul_i32 s{sROW0}, s{sRB}, 192
    s_xor_b32 s{sHQ}, s{sHP}, {QX}
    s_mul_i32 s{sT1}, s{sT0}, 3
    s_lshl_b32 s{sT2}, s{sRB}, 1
    s_add_u32 s{sKC}, s{sT1}, s{sT2}
    s_mul_i32 s{sT1}, s{sKC}, 205
    s_lshr_b32 s{sT1}, s{sT1}, 11
    s_mul_i32 s{sT1}, s{sT1}, 10
    s_sub_u32 s{sKC}, s{sKC}, s{sT1}
    """)
    if 'rot0' in OPT: p(f"s_mov_b32 s{sKC}, 0")
    if 'rot2' in OPT: p(f"s_and_b32 s{sKC}, s{sT}, 1\n s_mul_i32 s{sKC}, s{sKC}, 5")
    vLane = V.alloc(); vI = V.alloc(); vG = V.alloc(); t0 = V.alloc(); t1 = V.alloc(); t2 = V.alloc(); t3 = V.alloc()
    p(f"""
    v_lshrrev_b32 v{t0}, 6, v0
    v_and_b32 v{vLane}, 63, v0
    v_readfirstlane_b32 s{sW}, v{t0}
    v_and_b32 v{vI}, 15, v{vLane}
    v_lshrrev_b32 v{vG}, 4, v{vLane}
    s_and_b32 s{sWR}, s{sW}, 3
    s_lshr_b32 s{sTY}, s{sW}, 2
    s_cmp_eq_u32 s{sTY}, 2
    s_cbranch_scc0 L_b_compute
    """)
    mark = list(V.free)
    if 'pprio' in OPT: p("s_setprio 3")
    vX = [V.alloc(), V.alloc()]; vW = [V.alloc(), V.alloc()]
    p(f"""
    s_mul_i32 s{sT0}, s{sWR}, 48
    s_add_u32 s{sT0}, s{sT0}, s{sROW0}
    v_lshrrev_b32 v{t0}, 3, v{vLane}
    v_add_u32 v{t0}, s{sT0}, v{t0}
    v_mul_u32_u24 v{t0}, 1280, v{t0}
    v_and_b32 v{t1}, 7, v{vLane}
    v_xor_b32 v{t2}, v{t1}, v{vG}
    v_lshl_add_u32 v{vX[0]}, v{t2}, 4, v{t0}
    v_xor_b32 v{t2}, 4, v{t2}
    v_lshl_add_u32 v{vX[1]}, v{t2}, 4, v{t0}
    """)
    for hv in range(2):
        p(f"""
        v_lshlrev_b32 v{t0}, 1, v{vG}
        v_add_u32 v{t0}, {8*hv}, v{t0}
        v_xor_b32 v{t0}, v{t0}, v{vI}
        v_min_u32 v{t0}, 14, v{t0}
        ; c<5: 1280+16c ; c<8: 2560+16(c-5) ; c<13: 16(c-8) ; else 2560+16(c-10)
        v_lshlrev_b32 v{t1}, 4, v{t0}
        v_add_u32 v{t2}, {2560-160}, v{t1}
        s_sub_u32 s{sT1}, s{sHQ}, s{sHP}
        s_mul_i32 s{sT1}, s{sT1}, 80
        s_sub_u32 s{sT1}, s{sT1}, 128
        v_add_u32 v{t3}, s{sT1}, v{t1}
        v_cmp_gt_u32 vcc, 13, v{t0}
        v_cndmask_b32 v{t2}, v{t2}, v{t3}, vcc
        v_add_u32 v{t3}, {2560-80}, v{t1}
        v_cmp_gt_u32 vcc, 8, v{t0}
        v_cndmask_b32 v{t2}, v{t2}, v{t3}, vcc
        v_add_u32 v{t3}, 1280, v{t1}
        v_cmp_gt_u32 vcc, 5, v{t0}
        v_cndmask_b32 v{t2}, v{t2}, v{t3}, vcc
        s_mul_i32 s{sT0}, s{sHP}, 80
        s_mul_i32 s{sT1}, s{sWR}, {16*3840}
        s_add_u32 s{sT0}, s{sT0}, s{sT1}
        v_mul_u32_u24 v{t0}, 3840, v{vG}
        v_add3_u32 v{vW[hv]}, v{t0}, v{t2}, s{sT0}
        """)
    sMX, sMW = 90, 91
    p(f"""
    s_mul_i32 s{sMX}, s{sWR}, 6144
    s_lshl_b32 s{sMW}, s{sWR}, 12
    s_add_u32 s{sMW}, s{sMW}, {WOFF}
    s_mov_b32 s{sDSLOT}, 0
    s_waitcnt lgkmcnt(0)
    """)
    srd(p, SRD_X, S_X, 2048 * 1280)
    srd(p, SRD_W, S_WQKV, 640 * 3840)
    def dma_stage():
        p(f"s_lshl_b32 s{sXO}, s{sKC}, 7\n s_mul_i32 s{sWO}, s{sKC}, {64*3840}\n s_add_u32 s{sM0}, s{sMX}, s{sDSLOT}\n s_add_u32 s{sT2}, s{sMW}, s{sDSLOT}")
        order = [("x", 0), ("w", 0), ("x", 1), ("x", 2), ("w", 1), ("x", 3), ("w", 2), ("x", 4), ("x", 5), ("w", 3)]
        for kind, e in order:
            if 'nodma' in OPT: continue
            if kind == "x":
                p(f"s_add_u32 s{sT0}, s{sXO}, {8*e*1280}\n s_add_u32 m0, s{sM0}, {1024*e}")
                p(f"buffer_load_dwordx4 v{vX[e & 1]}, s[{SRD_X}:{SRD_X+3}], s{sT0} offen lds")
            else:
                p(f"s_add_u32 s{sT0}, s{sWO}, {4*e*3840}\n s_add_u32 m0, s{sT2}, {1024*e}")
                p(f"buffer_load_dwordx4 v{vW[e >> 1]}, s[{SRD_W}:{SRD_W+3}], s{sT0} offen lds")
        p(f"""
        s_add_u32 s{sKC}, s{sKC}, 1
        s_cmp_eq_u32 s{sKC}, 10
        s_cselect_b32 s{sKC}, 0, s{sKC}
        s_add_u32 s{sDSLOT}, s{sDSLOT}, {SLOT}
        s_cmp_eq_u32 s{sDSLOT}, {4*SLOT}
        s_cselect_b32 s{sDSLOT}, 0, s{sDSLOT}
        """)
    LA = 2 if ('la2' in OPT or 'st2' in OPT) else 3
    if 'st2' in OPT:
        dma_stage()
        p("s_barrier")
        stamp(p, 1)
        srd(p, SRD_WS, S_WS, WS_SIZE)
        srd(p, SRD_WO, S_WO, 640 * 1280)
        p("s_waitcnt vmcnt(0)")
        stamp(p, 2)
        p("s_barrier")
        stamp(p, 3)
        dma_stage()
    else:
        p(f"s_mov_b32 s{sS}, 0")
        p.label("L_p_pro")
        dma_stage()
        p(f"s_add_u32 s{sS}, s{sS}, 1\n s_cmp_lt_u32 s{sS}, {LA}\n s_cbranch_scc1 L_p_pro")
        stamp(p, 1)
        srd(p, SRD_WS, S_WS, WS_SIZE)
        srd(p, SRD_WO, S_WO, 640 * 1280)
        p(f"s_waitcnt vmcnt({10*(LA-1)})")
        stamp(p, 2)
        p("s_barrier")
        stamp(p, 3)
    assert LA == 3
    on4 = V.alloc(4, align=4); vC0 = V.alloc(); vC1 = V.alloc()
    def clear_part():
        p(f"""
        v_mov_b32 v{on4}, -1
        v_mov_b32 v{on4+1}, -1
        v_mov_b32 v{on4+2}, -1
        v_mov_b32 v{on4+3}, -1
        s_lshl_b32 s{sT0}, s{sRB}, 4
        s_add_u32 s{sT0}, s{sT0}, s{sHP}
        s_mul_i32 s{sT0}, s{sT0}, {PART_STRIDE}
        s_mul_i32 s{sT1}, s{sWR}, 1280
        s_add_u32 s{sT0}, s{sT0}, s{sT1}
        s_add_u32 s{sT0}, s{sT0}, {WS_PART}
        v_lshl_add_u32 v{vC0}, v{vLane}, 4, s{sT0}
        s_add_u32 s{sT0}, s{sT0}, 1024
        v_lshl_add_u32 v{vC1}, v{vLane}, 2, s{sT0}
        buffer_store_dwordx4 v[{on4}:{on4+3}], v{vC0}, s[{SRD_WS}:{SRD_WS+3}], 0 offen sc1
        buffer_store_dword v{on4}, v{vC1}, s[{SRD_WS}:{SRD_WS+3}], 0 offen sc1
        """)
    def clear_o_setup():
        p(f"""
        s_mul_i32 s{sT0}, s{sRB}, 12
        s_mul_i32 s{sT1}, s{sWR}, 3
        s_add_u32 s{sT0}, s{sT0}, s{sT1}
        s_mul_i32 s{sT0}, s{sT0}, {O_TILE}
        s_mul_i32 s{sT1}, s{sHQ}, 1280
        s_add_u32 s{sT0}, s{sT0}, s{sT1}
        s_add_u32 s{sT0}, s{sT0}, {WS_O}
        v_lshl_add_u32 v{vC0}, v{vLane}, 4, s{sT0}
        s_add_u32 s{sT0}, s{sT0}, 1024
        v_lshl_add_u32 v{vC1}, v{vLane}, 2, s{sT0}
        """)
    def clear_o_store(k):
        nt = k >> 1
        p(f"s_mov_b32 s{sT1}, {O_TILE*nt}")
        if k & 1: p(f"buffer_store_dword v{on4}, v{vC1}, s[{SRD_WS}:{SRD_WS+3}], s{sT1} offen sc1")
        else: p(f"buffer_store_dwordx4 v[{on4}:{on4+3}], v{vC0}, s[{SRD_WS}:{SRD_WS+3}], s{sT1} offen sc1")
    def clear_o():
        clear_o_setup()
        for k in range(6): clear_o_store(k)
    def count(word, name):
        p(f"""
        s_cmp_lg_u32 s{sWR}, 0
        s_cbranch_scc1 L_p_nocnt{name}
        v_mov_b32 v{t0}, {word}
        v_mov_b32 v{t1}, 1
        s_mov_b32 exec_lo, 1
        s_mov_b32 exec_hi, 0
        global_atomic_add v{t0}, v{t1}, s[{S_DBG}:{S_DBG+1}] sc1
        s_mov_b64 exec, -1
        """)
        p.label(f"L_p_nocnt{name}")
    def check(word, name):
        p(f"""
        s_cmp_lg_u32 s{sWR}, 0
        s_cbranch_scc1 L_p_clr_ok{name}
        s_mov_b32 s{sCNT}, 0
        s_mov_b32 exec_lo, 1
        s_mov_b32 exec_hi, 0
        v_mov_b32 v{t0}, {word}
        """)
        p.label(f"L_p_clr{name}")
        p(f"""
        global_load_dword v{t1}, v{t0}, s[{S_DBG}:{S_DBG+1}] sc1
        s_waitcnt vmcnt(0)
        v_readfirstlane_b32 s{sT0}, v{t1}
        s_cmp_ge_u32 s{sT0}, {N_B}
        s_cbranch_scc1 L_p_clr_ok{name}
        s_add_u32 s{sCNT}, s{sCNT}, 1
        s_cmp_gt_u32 s{sCNT}, {1 << 12}
        s_cbranch_scc1 L_p_clr_ok{name}
        s_sleep 16
        s_branch L_p_clr{name}
        """)
        p.label(f"L_p_clr_ok{name}")
        p("s_mov_b64 exec, -1")
    def wo_prefetch():
        p(f"""
        s_lshr_b32 s{sT0}, s2, 3
        s_cmp_ge_u32 s{sT0}, 20
        s_cbranch_scc1 L_p_nopf
        s_mul_i32 s{sT0}, s{sT0}, 320
        s_mul_i32 s{sT1}, s{sWR}, 80
        s_add_u32 s{sT0}, s{sT0}, s{sT1}
        v_add_u32 v{t0}, s{sT0}, v{vLane}
        v_lshlrev_b32 v{t0}, 7, v{t0}
        buffer_load_dword v{VGPRS-1}, v{t0}, s[{SRD_WO}:{SRD_WO+3}], 0 offen
        s_mov_b32 exec_lo, 0xffff
        s_mov_b32 exec_hi, 0
        v_add_u32 v{t0}, {64*128}, v{t0}
        buffer_load_dword v{VGPRS-1}, v{t0}, s[{SRD_WO}:{SRD_WO+3}], 0 offen
        s_mov_b64 exec, -1
        """)
        p.label("L_p_nopf")
    SPREAD = 'spread' in OPT
    LATE = 'earlyo' not in OPT
    NOCLR = 'noclr' in OPT
    if not NOCLR: clear_part()
    if not LATE and not NOCLR: clear_o()
    if SPREAD: clear_o_setup()
    ncl = 0 if NOCLR else 2 if LATE else 8
    for st_ in range(3, 10):
        if SPREAD and st_ >= 4: clear_o_store(st_ - 4)
        dma_stage()
        if 'pdiag' in OPT: stamp(p, 4 + (st_ - 3))
        young = 20 + (ncl if st_ in (3, 4) else 0)
        if SPREAD: young += (1 if st_ >= 4 else 0) + (1 if st_ >= 5 else 0)
        p(f"s_waitcnt vmcnt({young})")
        p("s_barrier")
        if st_ == 5 and 'nocount' not in OPT: count(DBG_CNT, "p")
    p(f"s_waitcnt vmcnt({11 if SPREAD else 10})\n s_barrier")
    p("s_waitcnt vmcnt(0)\n s_barrier")
    if SPREAD: count(DBG_CNT2, "o")
    if LATE and not SPREAD: clear_o()
    wo_prefetch()
    if 'nocount' not in OPT: check(DBG_CNT, "p")
    if LATE and not SPREAD: p("s_waitcnt vmcnt(0)")
    p(f"""
    s_lshr_b32 s{sT0}, s2, 3               ; i
    s_cmp_ge_u32 s{sT0}, 10
    s_cselect_b32 s{sT1}, 1, 0
    s_mul_i32 s{sT1}, s{sT1}, 10
    s_sub_u32 s{sCG}, s{sT0}, s{sT1}
    ; LDS row k' = 8 z + e holds wo row 40 (z/5) + 4 (z%5) + 20 (e>>2) + (e&3);  z = 20 pw + i'
    v_lshrrev_b32 v{t0}, 3, v{vLane}            ; e
    v_bfe_u32 v{t1}, v{t0}, 1, 1
    v_lshlrev_b32 v{t1}, 1, v{t1}
    v_and_b32 v{t2}, 7, v{vLane}
    v_xor_b32 v{t1}, v{t1}, v{t2}
    v_xor_b32 v{t2}, 4, v{t1}
    v_lshrrev_b32 v{t3}, 2, v{t0}
    v_mul_u32_u24 v{t3}, 20, v{t3}
    v_and_b32 v{t0}, 3, v{t0}
    v_add_u32 v{t0}, v{t0}, v{t3}
    s_mul_i32 s{sT0}, s{sWR}, 160
    v_add_u32 v{t0}, s{sT0}, v{t0}
    v_mul_u32_u24 v{t0}, 1280, v{t0}
    s_lshl_b32 s{sT0}, s{sCG}, 7
    v_add_u32 v{t0}, s{sT0}, v{t0}
    v_lshl_add_u32 v{t3}, v{t2}, 4, v{t0}
    v_lshl_add_u32 v{t0}, v{t1}, 4, v{t0}
    s_mul_i32 s{sM0}, s{sWR}, 20480
    """)
    p("s_barrier")
    vK0 = V.alloc(); vK1 = V.alloc()
    p(f"v_mov_b32 v{vK0}, v{t0}\n v_mov_b32 v{vK1}, v{t3}")
    if LATE and not SPREAD: count(DBG_CNT2, "o")
    p("s_cmp_ge_u32 s2, 160\n s_cbranch_scc1 L_p_nowo")
    for i in range(20):
        p(f"s_mov_b32 s{sT1}, {(40*(i//5) + 4*(i%5))*1280}\n s_add_u32 m0, s{sM0}, {WO_IMG + 1024*i}")
        p(f"buffer_load_dwordx4 v{vK1 if i & 1 else vK0}, s[{SRD_WO}:{SRD_WO+3}], s{sT1} offen lds")
    p.label("L_p_nowo")
    if 'pdiag' not in OPT: stamp(p, 4)
    p("s_waitcnt vmcnt(0)")
    if 'pdiag' not in OPT: stamp(p, 5)
    p("s_barrier")
    if 'pdiag' not in OPT: stamp(p, 6)
    if common.DIAG:
        stamps_flush(p, t0, t1, loader=True)
    p("s_endpgm")
    V.free = list(mark)
    p.label("L_b_compute")
    vWp = V.alloc(4, align=4); vWp2 = V.alloc(4, align=4)
    p(f"""
    s_cmp_eq_u32 s{sTY}, 0
    s_cselect_b32 s{sT0}, s{sHP}, s{sHQ}
    s_mul_i32 s{sT0}, s{sT0}, 1600
    v_lshlrev_b32 v{t0}, 4, v{vLane}
    v_add_u32 v{t0}, s{sT0}, v{t0}
    v_add_u32 v{t1}, 1024, v{t0}
    s_waitcnt lgkmcnt(0)
    global_load_dwordx4 v[{vWp}:{vWp+3}], v{t0}, s[{S_WPHI}:{S_WPHI+1}]
    s_mov_b32 exec_hi, 15
    global_load_dwordx4 v[{vWp2}:{vWp2+3}], v{t1}, s[{S_WPHI}:{S_WPHI+1}]
    s_mov_b32 exec_hi, -1
    """)
    PF0 = 1 if 'st2' in OPT else 3
    NPF = 0
    if 'l2pf' in OPT:
        NPF = 2
        a0 = V.alloc(); a1 = V.alloc(); a2 = V.alloc(); a3 = V.alloc(); d0 = V.alloc(); ad = V.alloc(2, align=2)
        p(f"""
        ; lane -> chunk PF0 + lane/10, item r = lane%10 ; it = min((i*8 + w)*10 + r, 1727)
        v_mul_u32_u24 v{a0}, 205, v{vLane}
        v_lshrrev_b32 v{a0}, 11, v{a0}               ; lane/10
        v_mul_u32_u24 v{a1}, 10, v{a0}
        v_sub_u32 v{a1}, v{vLane}, v{a1}             ; r
        s_lshl_b32 s{sT1}, s{sI}, 3
        s_add_u32 s{sT1}, s{sT1}, s{sW}
        s_mul_i32 s{sT1}, s{sT1}, 10
        v_add_u32 v{a1}, s{sT1}, v{a1}               ; it
        v_min_u32 v{a1}, 1727, v{a1}
        v_add_u32 v{a0}, {PF0}, v{a0}                ; chunk
        s_lshr_b32 s{sT2}, s{sJ}, 2
        s_mul_i32 s{sT2}, s{sT2}, 960
        v_add_u32 v{a2}, s{sT2}, v{a1}
        v_min_u32 v{a2}, 2047, v{a2}
        v_mul_u32_u24 v{a2}, 1280, v{a2}
        v_lshl_add_u32 v{a2}, v{a0}, 7, v{a2}
        ; W: u = it - 1152 ; krow = u/9 ; rem = u%9 ; seg = rem/3 ; ln = rem%3
        v_subrev_u32 v{a1}, 1152, v{a1}
        v_max_i32 v{d0}, 0, v{a1}
        v_mul_u32_u24 v{a3}, 7282, v{d0}
        v_lshrrev_b32 v{a3}, 16, v{a3}               ; krow
        v_mul_u32_u24 v{t3}, 9, v{a3}
        v_sub_u32 v{d0}, v{d0}, v{t3}                ; rem
        v_lshl_add_u32 v{a3}, v{a0}, 6, v{a3}
        v_mul_u32_u24 v{a3}, 3840, v{a3}
        v_mul_u32_u24 v{t3}, 86, v{d0}
        v_lshrrev_b32 v{t3}, 8, v{t3}                ; seg
        v_mul_u32_u24 v{a0}, 3, v{t3}
        v_sub_u32 v{d0}, v{d0}, v{a0}                ; ln
        v_mul_u32_u24 v{t3}, 1280, v{t3}
        v_lshl_add_u32 v{t3}, v{d0}, 7, v{t3}
        s_and_b32 s{sT2}, s{sJ}, 3
        s_mul_i32 s{sT2}, s{sT2}, 320
        s_and_b32 s{sT2}, s{sT2}, 0xffffff80
        v_add3_u32 v{a3}, v{a3}, v{t3}, s{sT2}
        v_cmp_gt_i32 vcc, 0, v{a1}                   ; x lanes
        v_cndmask_b32 v{a2}, v{a3}, v{a2}, vcc
        v_mov_b32 v{a0}, {6*64*3840}
        v_mov_b32 v{a1}, {6*128}
        v_cndmask_b32 v{a3}, v{a0}, v{a1}, vcc
        v_mov_b32 v{a0}, s{S_WQKV}
        v_mov_b32 v{a1}, s{S_X}
        v_cndmask_b32 v{ad}, v{a0}, v{a1}, vcc
        v_mov_b32 v{a0}, s{S_WQKV+1}
        v_mov_b32 v{a1}, s{S_X+1}
        v_cndmask_b32 v{ad+1}, v{a0}, v{a1}, vcc
        v_add_co_u32 v{ad}, vcc, v{ad}, v{a2}
        v_addc_co_u32 v{ad+1}, vcc, 0, v{ad+1}, vcc
        """)
        if 'st2' in OPT: p("s_barrier")
        p(f"""
        s_mov_b32 exec_hi, 0x0fffffff
        global_load_dword v{VGPRS-1}, v[{ad}:{ad+1}], off
        s_mov_b32 exec_hi, -1
        v_add_co_u32 v{ad}, vcc, v{ad}, v{a3}
        v_addc_co_u32 v{ad+1}, vcc, 0, v{ad+1}, vcc
        s_mov_b32 exec_lo, {0x3ff if PF0 == 3 else 0x3fffffff:#x}
        s_mov_b32 exec_hi, 0
        global_load_dword v{VGPRS-1}, v[{ad}:{ad+1}], off
        s_mov_b64 exec, -1
        """)
        for r in (a0, a1, a2, a3, d0): V.release(r)
        V.release(ad, 2)
    stamp(p, 1)
    srd(p, SRD_WS, S_WS, WS_SIZE)
    srd(p, SRD_O, S_OUT, 2048 * 2560)
    p(f"""
    s_mov_b32 s{sL}, {LOG2E:#x}
    s_mov_b32 s{sL+1}, {LOG2E:#x}
    s_mov_b32 s{sNEG}, {-3*SLOT & 0xffffffff:#x}
    """)
    vXa = V.alloc(2, align=1); vWa = V.alloc(4, align=1)
    for ks in range(2):
        p(f"""
        v_add_u32 v{t0}, {4*ks}, v{vG}
        v_lshrrev_b32 v{t1}, 1, v{vI}
        v_xor_b32 v{t0}, v{t0}, v{t1}
        v_lshlrev_b32 v{t0}, 4, v{t0}
        s_mul_i32 s{sT0}, s{sWR}, 48
        v_add_u32 v{t1}, s{sT0}, v{vI}
        v_lshl_add_u32 v{vXa+ks}, v{t1}, 7, v{t0}
        """)
    p(f"""
    v_and_b32 v{t0}, 1, v{vG}
    v_xor_b32 v{t0}, s{sTY}, v{t0}
    v_lshlrev_b32 v{t0}, 7, v{t0}
    v_bfe_u32 v{t2}, v{vI}, 1, 1
    v_lshl_add_u32 v{t0}, v{t2}, 4, v{t0}
    v_and_b32 v{t2}, 1, v{vI}
    v_lshl_add_u32 v{t0}, v{t2}, 3, v{t0}
    v_lshrrev_b32 v{t1}, 2, v{vI}
    v_lshl_add_u32 v{t2}, v{vG}, 3, v{t1}
    v_lshl_add_u32 v{t0}, v{t2}, 8, v{t0}
    v_add_u32 v{t0}, {WOFF}, v{t0}
    """)
    for mt in range(4):
        p(f"v_xor_b32 v{t2}, {mt}, v{t1}\n v_lshl_add_u32 v{vWa+mt}, v{t2}, 5, v{t0}")
    acc = V.alloc(48, align=4)
    for k in range(48): p(f"v_mov_b32 v{acc+k}, 0")
    WPB = 3 * SLOT
    vFA = V.alloc(16, align=4)
    FA, FB, FC0, FC1 = vFA, vFA + 4, vFA + 8, vFA + 12
    GT = V.alloc(32, align=1)
    for k in range(32): p(f"v_mov_b32 v{GT+k}, 0")
    p(f"""
    s_lshl_b32 s{sT0}, s{sW}, 11
    s_add_u32 s{sT0}, s{sT0}, {WPB}
    v_lshl_add_u32 v{t0}, v{vLane}, 4, s{sT0}
    v_lshrrev_b32 v{t1}, 2, v{vI}
    v_mul_u32_u24 v{t1}, 5, v{t1}
    v_and_b32 v{t2}, 3, v{vI}
    v_add_u32 v{t2}, v{t1}, v{t2}
    v_lshlrev_b32 v{t2}, 1, v{t2}
    v_mul_u32_u24 v{t3}, 160, v{vG}
    v_add3_u32 v{t2}, v{t2}, v{t3}, s{sT0}      ; t2: f = 5(m>>2)+(m&3)
    v_add_u32 v{t1}, 4, v{t1}
    v_lshlrev_b32 v{t1}, 1, v{t1}
    v_add3_u32 v{t1}, v{t1}, v{t3}, s{sT0}      ; t1: f = 5(m>>2)+4
    s_waitcnt vmcnt({NPF})
    """)
    p(f"""
    ds_write_b128 v{t0}, v[{vWp}:{vWp+3}]
    s_mov_b32 exec_hi, 15
    ds_write_b128 v{t0}, v[{vWp2}:{vWp2+3}] offset:1024
    s_mov_b32 exec_hi, -1
    s_waitcnt lgkmcnt(0)
    """)
    def gather(dst, addr, off, mask):
        p(f"s_mov_b32 exec_lo, {mask & 0xffffffff:#x}\n s_mov_b32 exec_hi, {mask >> 32:#x}")
        for e in range(4):
            p(f"ds_read_u16 v{GT + 2*(dst - vFA) + e}, v{addr} offset:{off + 40*e}")
    G0 = 0xFFFF; G01 = 0xFFFFFFFF; G123 = 0xFFFFFFFFFFFF0000; ALL = (1 << 64) - 1
    R0 = 0x1111111111111111; R1 = 0x2222222222222222
    gather(FA, t2, 0, ALL);            gather(FA + 2, t2, 16*40, G0)
    gather(FB, t2, 800 - 160, G123);   gather(FB + 2, t2, 800 + 12*40, G01)
    gather(FC0, t1, 0, R0);            gather(FC0 + 2, t1, 16*40, G0 & R0)
    gather(FC1, t1, 800 - 160, G123 & R1); gather(FC1 + 2, t1, 800 + 12*40, G01 & R1)
    p("s_mov_b64 exec, -1\n s_waitcnt lgkmcnt(0)")
    for k in range(16):
        p(f"v_lshl_or_b32 v{vFA+k}, v{GT+2*k+1}, 16, v{GT+2*k}")
    V.release(GT, 32); V.release(vWp, 4); V.release(vWp2, 4)
    XF = [V.alloc(12, align=4), V.alloc(12, align=4)]
    WF = [V.alloc(16, align=4), V.alloc(16, align=4)]
    def reads(ks):
        L = []
        for mt in range(4):
            for h in range(2):
                L.append(f"ds_read_b64_tr_b16 v[{WF[ks]+4*mt+2*h}:{WF[ks]+4*mt+2*h+1}], v{vWa+mt} offset:{8192*ks + 1024*h}")
        X = [f"ds_read_b128 v[{XF[ks]+4*nt}:{XF[ks]+4*nt+3}], v{vXa+ks} offset:{2048*nt}" for nt in range(3)]
        return [L[0], L[1], X[0], X[1], X[2]] + L[2:]
    def mfmas(ks):
        L = []
        for mt in range(4):
            for nt in range(3):
                a = acc + 16*nt + 4*mt
                L.append(f"v_mfma_f32_16x16x32_bf16 v[{a}:{a+3}], v[{WF[ks]+4*mt}:{WF[ks]+4*mt+3}], v[{XF[ks]+4*nt}:{XF[ks]+4*nt+3}], v[{a}:{a+3}]")
        return L
    def sched(main, slots):
        for i, m in enumerate(main):
            if 'nomfma' not in OPT: p(m)
            for x in slots.get(i, []):
                if ('nomfma' in OPT or 'nords' in OPT) and x.startswith('ds_read'): continue
                p(x)
    def advance():
        return [f"v_add_u32 v{r}, s{sSLOTD}, v{r}" for r in (vWa, vXa, vWa+1, vWa+2, vWa+3, vXa+1)]
    if 'fdiag' not in OPT: stamp(p, 15)
    p("s_barrier")
    stamp(p, 2)
    if 'fdiag' not in OPT: cstamp(p, 13)
    for x in reads(0): p(x)
    p(f"s_mov_b32 s{sS}, 0")
    def slot_delta():
        return [f"s_and_b32 s{sT0}, s{sS}, 3", f"s_cmp_eq_u32 s{sT0}, 3", f"s_cselect_b32 s{sSLOTD}, s{sNEG}, {SLOT}"]
    RSP = int(common.os.environ.get("RSP", "2"))
    def read_slots(r, first):
        d = {}
        k = first
        while r:
            d[k] = r[:RSP]; r = r[RSP:]; k += 1
        return d
    def half0():
        p("s_waitcnt lgkmcnt(0)")
        slots = read_slots(reads(1), 0)
        slots[7] = slot_delta()
        sched(mfmas(0), slots)
    def half1(nxt=True):
        p("s_waitcnt lgkmcnt(0)")
        if nxt:
            p("s_barrier")
            slots = read_slots(reads(0), 1)
            slots[0] = advance()
            sched(mfmas(1), slots)
        else:
            sched(mfmas(1), {})
    p.label("L_b_main")
    half0(); half1()
    p(f"s_add_u32 s{sS}, s{sS}, 1\n s_cmp_lt_u32 s{sS}, 9\n s_cbranch_scc1 L_b_main")
    half0(); half1(nxt=False)
    stamp(p, 3)
    if 'fdiag' not in OPT: cstamp(p, 14)
    V.release(XF[0], 12); V.release(XF[1], 12); V.release(WF[0], 16); V.release(WF[1], 16)
    V.release(vXa, 2); V.release(vWa, 4)
    def wait_cleared(name, vN, vm):
        p(f"s_mov_b32 s{sCNT}, 0\n s_waitcnt vmcnt({vm})")
        p.label(f"L_b_wc{name}")
        p(f"""
        v_readfirstlane_b32 s{sT0}, v{vN}
        s_cmp_ge_u32 s{sT0}, {N_B}
        s_cbranch_scc1 L_b_wc_ok{name}
        s_add_u32 s{sCNT}, s{sCNT}, 1
        s_cmp_gt_u32 s{sCNT}, {SPIN_MAX}
        s_cbranch_scc1 L_b_wc_ok{name}
        v_mov_b32 v{vN}, {DBG_CNT}
        global_load_dword v{vN}, v{vN}, s[{S_DBG}:{S_DBG+1}] sc1
        s_waitcnt vmcnt(0)
        s_branch L_b_wc{name}
        """)
        p.label(f"L_b_wc_ok{name}")
    P = V.alloc(3 * 8, align=2)
    vRow = V.alloc()
    vV2 = V.alloc(); vV3 = V.alloc()
    p(f"""
    s_mul_i32 s{sT0}, s{sWR}, 48
    v_add_u32 v{t0}, s{sT0}, v{vI}
    v_mul_u32_u24 v{vRow}, {RS}, v{t0}
    v_add_u32 v{vRow}, {PHI}, v{vRow}
    s_mul_i32 s{sT0}, s{sTY}, 48
    v_lshlrev_b32 v{t1}, 3, v{vG}
    v_add3_u32 v{vV2}, v{t1}, v{vRow}, s{sT0}
    v_add_u32 v{vV2}, {192 - 16}, v{vV2}
    v_add_u32 v{t2}, {192 + 16}, v{t1}
    v_add_u32 v{t3}, {192 + 64}, v{t1}
    v_cmp_gt_u32 vcc, 2, v{vG}
    v_add_u32 v{vV3}, {280 - 16}, v{t1}
    v_cndmask_b32 v{t3}, v{vV3}, v{t3}, vcc
    s_cmp_eq_u32 s{sTY}, 0
    s_cselect_b64 vcc, -1, 0
    v_cndmask_b32 v{t3}, v{t3}, v{t2}, vcc
    v_add_u32 v{vV3}, v{t3}, v{vRow}
    """)
    def cvtP(nt, mts):
        for mt in mts:
            a = acc + 16*nt + 4*mt
            p(f"v_cvt_pk_bf16_f32 v{P+8*nt+2*mt}, v{a}, v{a+1}")
            p(f"v_cvt_pk_bf16_f32 v{P+8*nt+2*mt+1}, v{a+2}, v{a+3}")
    for nt in range(3): cvtP(nt, (2, 3))
    p("s_mov_b32 exec_lo, 0")
    for nt in range(3): p(f"ds_write_b64 v{vV2}, v[{P+8*nt+4}:{P+8*nt+5}] offset:{16*RS*nt}")
    p("s_mov_b32 exec_lo, -1")
    for nt in range(3): p(f"ds_write_b64 v{vV3}, v[{P+8*nt+6}:{P+8*nt+7}] offset:{16*RS*nt}")
    for nt in range(3): cvtP(nt, (0, 1))
    V.release(vV2); V.release(vV3)
    if common.DUMP:
        p(f"""
        s_lshl_b32 s{sT0}, s2, 3
        s_add_u32 s{sT0}, s{sT0}, s{sW}
        s_mul_i32 s{sT0}, s{sT0}, {24*256}
        s_add_u32 s{sT0}, s{sT0}, {4<<20}
        v_lshl_add_u32 v{t0}, v{vLane}, 2, s{sT0}
        """)
        for k in range(24):
            p(f"buffer_store_dword v{P+k}, v{t0}, s[{SRD_WS}:{SRD_WS+3}], 0 offen offset:{256*(k%16)}")
            if k == 15: p(f"v_add_u32 v{t0}, 4096, v{t0}")
        p("s_waitcnt vmcnt(0)")
    V.release(acc, 48)
    if common.os.environ.get('RDBG'): print('free before softmax', [i for i,f in enumerate(V.free) if f])
    TTb = V.alloc(38, align=4)
    TT = [TTb, TTb + 12, TTb + 24]
    EE = [V.alloc(20, align=2) for _ in range(3)]
    SS = [[V.alloc(2, align=2) for _ in range(3)] for _ in range(3)]
    def softmax(nt, outs, X=None):
        T, E, S = TT[nt], EE[nt], SS[nt]
        if X is None: X = P + 8*nt
        X01 = X; X12 = X + 2
        a0, a1, b0, b1, c, d = S[0], S[0]+1, S[1], S[1]+1, S[2], S[2]+1
        L = [f"v_mfma_f32_16x16x32_bf16 v[{T}:{T+3}], v[{FA}:{FA+3}], v[{X01}:{X01+3}], 0",
             f"v_mfma_f32_16x16x32_bf16 v[{T+8}:{T+11}], v[{FC0}:{FC0+3}], v[{X01}:{X01+3}], 0",
             f"v_mfma_f32_16x16x32_bf16 v[{T+4}:{T+7}], v[{FB}:{FB+3}], v[{X12}:{X12+3}], 0",
             f"v_mfma_f32_16x16x32_bf16 v[{T+8}:{T+11}], v[{FC1}:{FC1+3}], v[{X12}:{X12+3}], v[{T+8}:{T+11}]"]
        x = [[T, T+1, T+2, T+3, T+8], [T+4, T+5, T+6, T+7, T+9]]
        for h, (a, b) in enumerate(((a0, b0), (a1, b1))):
            xs = x[h]
            L += [f"v_max3_f32 v{a}, v{xs[0]}, v{xs[1]}, v{xs[2]}", f"v_max3_f32 v{b}, -v{xs[0]}, -v{xs[1]}, -v{xs[2]}"]
        for h, (a, b) in enumerate(((a0, b0), (a1, b1))):
            xs = x[h]
            L += [f"v_max3_f32 v{a}, v{a}, v{xs[3]}, v{xs[4]}", f"v_max3_f32 v{b}, v{b}, -v{xs[3]}, -v{xs[4]}"]
        def allred(op):
            return [f"v_permlane16_swap_b32 v{a0}, v{b0}", f"v_permlane16_swap_b32 v{a1}, v{b1}",
                    f"{op} v{a0}, v{a0}, v{b0}", f"{op} v{a1}, v{a1}, v{b1}",
                    f"v_permlane32_swap_b32 v{a0}, v{a1}", f"{op} v{c}, v{a0}, v{a1}"]
        bc = [f"v_mov_b32 v{d}, v{c}", f"v_permlane32_swap_b32 v{c}, v{d}", f"v_mov_b32 v{a0}, v{c}", f"v_mov_b32 v{a1}, v{d}",
              f"v_permlane16_swap_b32 v{a0}, v{c}", f"v_permlane16_swap_b32 v{a1}, v{d}"]
        L += allred("v_max_f32") + [f"v_mul_f32 v{c}, s{sL}, v{c}"] + bc
        sel = [(0, 0), (0, 0), (1, 1), (1, 1), (0, 1)]
        for k in range(5):
            lo, hi = sel[k]
            if lo == 1:
                L.append(f"v_fma_f32 v{E+2*k}, v{T+2*k}, s{sL}, -v{a1}")
                L.append(f"v_fma_f32 v{E+2*k+1}, v{T+2*k+1}, s{sL}, -v{a1}")
                L.append(f"v_fma_f32 v{E+10+2*k}, -v{T+2*k}, s{sL}, -v{d}")
                L.append(f"v_fma_f32 v{E+10+2*k+1}, -v{T+2*k+1}, s{sL}, -v{d}")
                continue
            L.append(f"v_pk_fma_f32 v[{E+2*k}:{E+2*k+1}], v[{T+2*k}:{T+2*k+1}], s[{sL}:{sL+1}], v[{a0}:{a1}] op_sel:[0,0,{lo}] op_sel_hi:[1,1,{hi}] neg_lo:[0,0,1] neg_hi:[0,0,1]")
            L.append(f"v_pk_fma_f32 v[{E+10+2*k}:{E+10+2*k+1}], v[{T+2*k}:{T+2*k+1}], s[{sL}:{sL+1}], v[{c}:{d}] op_sel:[0,0,{lo}] op_sel_hi:[1,1,{hi}] neg_lo:[1,0,1] neg_hi:[1,0,1]")
        L += [f"v_exp_f32 v{E+k}, v{E+k}" for k in range(20)]
        L += [f"v_pk_add_f32 v[{T}:{T+1}], v[{E}:{E+1}], v[{E+2}:{E+3}]",
              f"v_pk_add_f32 v[{T+2}:{T+3}], v[{E+4}:{E+5}], v[{E+6}:{E+7}]",
              f"v_pk_add_f32 v[{T+4}:{T+5}], v[{E+10}:{E+11}], v[{E+12}:{E+13}]",
              f"v_pk_add_f32 v[{T+6}:{T+7}], v[{E+14}:{E+15}], v[{E+16}:{E+17}]",
              f"v_add_f32 v{a0}, v{T}, v{T+1}", f"v_add_f32 v{a1}, v{T+2}, v{T+3}",
              f"v_add_f32 v{b0}, v{T+4}, v{T+5}", f"v_add_f32 v{b1}, v{T+6}, v{T+7}",
              f"v_pk_add_f32 v[{a0}:{a1}], v[{a0}:{a1}], v[{E+8}:{E+9}]",
              f"v_pk_add_f32 v[{b0}:{b1}], v[{b0}:{b1}], v[{E+18}:{E+19}]"]
        L += allred("v_add_f32") + [f"v_rcp_f32 v{c}, v{c}"] + bc
        for k in range(5):
            lo, hi = sel[k]
            if lo == 1:
                L.append(f"v_mul_f32 v{E+2*k}, v{E+2*k}, v{a1}")
                L.append(f"v_mul_f32 v{E+2*k+1}, v{E+2*k+1}, v{a1}")
                L.append(f"v_mul_f32 v{E+10+2*k}, v{E+10+2*k}, v{d}")
                L.append(f"v_mul_f32 v{E+10+2*k+1}, v{E+10+2*k+1}, v{d}")
                continue
            L.append(f"v_pk_mul_f32 v[{E+2*k}:{E+2*k+1}], v[{E+2*k}:{E+2*k+1}], v[{a0}:{a1}] op_sel:[0,{lo}] op_sel_hi:[1,{hi}]")
            L.append(f"v_pk_mul_f32 v[{E+10+2*k}:{E+10+2*k+1}], v[{E+10+2*k}:{E+10+2*k+1}], v[{c}:{d}] op_sel:[0,{lo}] op_sel_hi:[1,{hi}]")
        pairs = [[(0, 1), (2, 3), (8, 10), (11, 12), (13, 18)], [(4, 5), (6, 7), (9, 14), (15, 16), (17, 19)]]
        for h in range(2):
            for k, (u, w) in enumerate(pairs[h]):
                L.append(f"v_cvt_pk_bf16_f32 v{outs[h]+k}, v{E+u}, v{E+w}")
        return L
    snap = list(V.free)
    p(f"s_cmp_eq_u32 s{sTY}, 0\n s_cbranch_scc0 L_b_qtype")
    stamp(p, 4)
    p(f"""
    s_mul_i32 s{sT0}, s{sWR}, 48
    s_add_u32 s{sT0}, s{sT0}, s{sROW0}
    v_add_u32 v{t0}, s{sT0}, v{vI}
    v_mov_b32 v{t1}, 0x3f80
    """)
    on = EE[0]
    p(f"v_mov_b32 v{on+1}, 0")
    for nt in range(3):
        p(f"""
        v_cmp_gt_u32 vcc, 0x800, v{t0}
        v_cndmask_b32 v{on}, 0, v{t1}, vcc
        ds_write_b64 v{vRow}, v[{on}:{on+1}] offset:{16*RS*nt + 272}
        v_add_u32 v{t0}, 16, v{t0}
        """)
    vPh = V.alloc()
    p(f"v_mul_u32_u24 v{t0}, 24, v{vG}\n v_add_u32 v{vPh}, v{t0}, v{vRow}")
    KSPLIT = 'ksplit' in OPT
    KMAGIC = 0x7fc17fc1
    KX = 144384
    if KSPLIT:
        p(f"""
        s_mul_i32 s{sT0}, s{sWR}, 1536
        s_add_u32 s{sT0}, s{sT0}, {KX}
        v_lshl_add_u32 v{t0}, v{vLane}, 3, s{sT0}
        ds_write_b64 v{t0}, v[{P+16}:{P+17}]
        ds_write_b64 v{t0}, v[{P+18}:{P+19}] offset:512
        ds_write_b64 v{t0}, v[{P+20}:{P+21}] offset:1024
        s_lshl_b32 s{sT0}, s{sWR}, 2
        s_add_u32 s{sT0}, s{sT0}, {KX + 6144}
        v_mov_b32 v{t1}, s{sT0}
        v_mov_b32 v{t2}, {KMAGIC:#x}
        s_waitcnt lgkmcnt(0)
        ds_write_b32 v{t1}, v{t2}
        """)
    def phi_writes(nt, T, ph):
        L = []
        for h in range(2):
            o = T + 6*h; off = 16*RS*nt + 96*h
            L += [f"ds_write_b64 v{ph}, v[{o}:{o+1}] offset:{off}", f"ds_write_b64 v{ph}, v[{o+2}:{o+3}] offset:{off+8}",
                  f"ds_write_b32 v{ph}, v{o+4} offset:{off+16}"]
        return L
    streams = []
    for nt in range(2 if KSPLIT else 3):
        T = TT[nt]
        streams.append(softmax(nt, [T, T + 6]) + phi_writes(nt, T, vPh))
    for x in merge(streams): p(x)
    p("s_waitcnt lgkmcnt(0)\n s_barrier")
    for r, n in [(P, 24), (vRow, 1), (vFA, 16), (TTb, 38), (vPh, 1)] + [(x, 20) for x in EE] + [(y, 2) for x in SS for y in x]:
        V.release(r, n)
    stamp(p, 5)
    sHD, sHF = 95, 96
    vAa = V.alloc(); vB0 = V.alloc()
    p(f"""
    s_and_b32 s{sHD}, s{sWR}, 1
    s_lshr_b32 s{sHF}, s{sWR}, 1
    v_lshrrev_b32 v{t0}, 2, v{vI}
    v_lshl_add_u32 v{t0}, v{vG}, 3, v{t0}
    v_mul_u32_u24 v{t0}, {RS}, v{t0}
    v_add_u32 v{t0}, {PHI}, v{t0}
    v_and_b32 v{t1}, 3, v{vI}
    v_mul_u32_u24 v{t2}, 24, v{t1}
    s_mul_i32 s{sT0}, s{sHD}, 96
    v_add3_u32 v{vAa}, v{t0}, v{t2}, s{sT0}
    s_mul_i32 s{sT0}, s{sHD}, 40
    v_lshlrev_b32 v{t2}, 3, v{t1}
    v_add_u32 v{t2}, s{sT0}, v{t2}
    v_add_u32 v{vB0}, 192, v{t2}
    s_add_u32 s{sT0}, s{sT0}, 224
    v_mov_b32 v{t2}, 272
    v_mov_b32 v{t3}, s{sT0}
    v_cmp_eq_u32 vcc, s{sHD}, v{t1}
    v_cndmask_b32 v{t2}, v{t2}, v{t3}, vcc
    s_cmp_eq_u32 s{sHF}, 0
    s_cselect_b64 vcc, -1, 0
    v_cndmask_b32 v{t2}, v{t2}, v{vB0}, vcc
    v_add_u32 v{vB0}, v{t0}, v{t2}
    """)
    KF = V.alloc(48, align=4); KD = V.alloc(12, align=4)
    def kvreads(ks):
        b = KF + 16 * (ks % 3); off = 32 * RS * ks
        for h in range(2):
            p(f"ds_read_b64_tr_b16 v[{b+12+2*h}:{b+12+2*h+1}], v{vB0} offset:{off + 4*RS*h}")
        for mt in range(3):
            for h in range(2):
                p(f"ds_read_b64_tr_b16 v[{b+4*mt+2*h}:{b+4*mt+2*h+1}], v{vAa} offset:{off + 4*RS*h + 8*mt}")
    kvreads(0); kvreads(1)
    vP0 = V.alloc(); vP1 = V.alloc()
    p(f"""
    s_lshl_b32 s{sT0}, s{sRB}, 4
    s_add_u32 s{sT0}, s{sT0}, s{sHP}
    s_mul_i32 s{sT0}, s{sT0}, {PART_STRIDE}
    s_mul_i32 s{sT1}, s{sWR}, 1280
    s_add_u32 s{sT0}, s{sT0}, s{sT1}
    s_add_u32 s{sT0}, s{sT0}, {WS_PART}
    v_lshl_add_u32 v{vP0}, v{vLane}, 4, s{sT0}
    s_add_u32 s{sT0}, s{sT0}, 1024
    v_lshl_add_u32 v{vP1}, v{vLane}, 2, s{sT0}
    """)
    for ks in range(6):
        p(f"s_waitcnt lgkmcnt({8 if ks < 5 else 0})")
        b = KF + 16 * (ks % 3)
        for mt in range(3):
            c = "0" if ks == 0 else f"v[{KD+4*mt}:{KD+4*mt+3}]"
            p(f"v_mfma_f32_16x16x32_bf16 v[{KD+4*mt}:{KD+4*mt+3}], v[{b+4*mt}:{b+4*mt+3}], v[{b+12}:{b+15}], {c}")
        if ks + 2 < 6: kvreads(ks + 2)
    q = V.alloc(6, align=4)
    p(f"""
    v_cvt_pk_bf16_f32 v{q}, v{KD}, v{KD+1}
    v_cvt_pk_bf16_f32 v{q+1}, v{KD+2}, v{KD+3}
    v_cvt_pk_bf16_f32 v{q+2}, v{KD+4}, v{KD+5}
    v_cvt_pk_bf16_f32 v{q+3}, v{KD+6}, v{KD+7}
    v_cvt_pk_bf16_f32 v{q+4}, v{KD+8}, v{KD+9}
    buffer_store_dwordx4 v[{q}:{q+3}], v{vP0}, s[{SRD_WS}:{SRD_WS+3}], 0 offen sc1
    buffer_store_dword v{q+4}, v{vP1}, s[{SRD_WS}:{SRD_WS+3}], 0 offen sc1
    """)
    stamp(p, 6)
    V.release(KF, 48); V.release(KD, 12)
    L = V.alloc(56, align=4)
    A10 = V.alloc(10, align=2); mx = V.alloc()
    p(f"""
    s_lshl_b32 s{sT0}, s{sRB}, 4
    s_add_u32 s{sT0}, s{sT0}, s{sHP}
    s_sub_u32 s{sT0}, s{sT0}, s{sHQ}
    s_mul_i32 s{sT0}, s{sT0}, {PART_STRIDE}
    v_subrev_u32 v{t0}, s{sT0}, v{vP0}
    v_subrev_u32 v{t1}, s{sT0}, v{vP1}
    s_mov_b32 s{sCNT}, 0
    """)
    def ld_part(r):
        p(f"s_mov_b32 s{sT0}, {r*16*PART_STRIDE}")
        p(f"buffer_load_dwordx4 v[{L+4*r}:{L+4*r+3}], v{t0}, s[{SRD_WS}:{SRD_WS+3}], s{sT0} offen sc1")
        p(f"buffer_load_dword v{L+44+r}, v{t1}, s[{SRD_WS}:{SRD_WS+3}], s{sT0} offen sc1")
    sHI = 97; sLO = 90
    p(f"s_mov_b32 s{sHI}, 0x3f800000\n s_mov_b32 s{sLO}, 0x00003f80")
    if 'p1old' not in OPT:
        if 'noack1' not in OPT: p("s_waitcnt vmcnt(0)")
        for r in range(11): ld_part(r)
        sANY = 91
        p.label("L_b_att1")
        p(f"s_waitcnt vmcnt(0)\n s_mov_b32 s{sANY}, 0")
        for r in range(11):
            p(f"""
            v_max3_u32 v{mx}, v{L+4*r}, v{L+4*r+1}, v{L+4*r+2}
            v_max3_u32 v{mx}, v{mx}, v{L+4*r+3}, v{L+44+r}
            v_cmp_eq_u32 vcc, -1, v{mx}
            s_cbranch_vccz L_b_have1_{r}
            s_mov_b32 s{sANY}, 1
            """)
            ld_part(r)
            p.label(f"L_b_have1_{r}")
        p(f"""
        s_cmp_eq_u32 s{sANY}, 0
        s_cbranch_scc1 L_b_got1
        s_add_u32 s{sCNT}, s{sCNT}, 1
        s_cmp_le_u32 s{sCNT}, {SPIN_MAX}
        s_cbranch_scc1 L_b_att1
        s_waitcnt vmcnt(0)
        """)
        p.label("L_b_got1")
        stamp(p, 7)
        for r in range(11):
            for k in range(5):
                src = L + 4*r + k if k < 4 else L + 44 + r
                c0 = "0" if r == 0 else f"v{A10+2*k}"
                c1 = "0" if r == 0 else f"v{A10+2*k+1}"
                p(f"v_dot2_f32_bf16 v{A10+2*k}, v{src}, s{sLO}, {c0}")
                p(f"v_dot2_f32_bf16 v{A10+2*k+1}, v{src}, s{sHI}, {c1}")
    p.label("L_b_sum1")
    for k in range(5):
        p(f"v_cvt_pk_bf16_f32 v{L+k}, v{A10+2*k}, v{A10+2*k+1}")
    p(f"""
    s_lshl_b32 s{sT1}, s{sWR}, 10
    s_add_u32 s{sT1}, s{sT1}, {AST}
    v_lshl_add_u32 v{t0}, v{vLane}, 4, s{sT1}
    ds_write_b128 v{t0}, v[{L}:{L+3}]
    s_lshl_b32 s{sT1}, s{sWR}, 8
    s_add_u32 s{sT1}, s{sT1}, {AST + 4096}
    v_lshl_add_u32 v{t1}, v{vLane}, 2, s{sT1}
    ds_write_b32 v{t1}, v{L+4}
    s_waitcnt lgkmcnt(0)
    s_barrier
    """)
    stamp(p, 8)
    if 'noe3' not in OPT: p("s_barrier")
    p("s_branch L_b_final")
    V.free = list(snap)
    p.label("L_b_qtype")
    if KSPLIT:
        X = EE[0]; ph = SS[0][0]
        p(f"""
        s_mul_i32 s{sT0}, s{sWR}, 1536
        s_add_u32 s{sT0}, s{sT0}, {KX}
        v_lshl_add_u32 v{t0}, v{vLane}, 3, s{sT0}
        v_mul_u32_u24 v{t2}, 24, v{vG}
        v_add_u32 v{ph}, v{t2}, v{vRow}
        s_lshl_b32 s{sT0}, s{sWR}, 2
        s_add_u32 s{sT0}, s{sT0}, {KX + 6144}
        v_mov_b32 v{t1}, s{sT0}
        s_mov_b32 s{sCNT}, 0
        """)
        p.label("L_b_pair")
        p(f"""
        ds_read_b32 v{t2}, v{t1}
        s_add_u32 s{sCNT}, s{sCNT}, 1
        s_cmp_gt_u32 s{sCNT}, {1 << 16}
        s_cbranch_scc1 L_b_pair_ok
        s_waitcnt lgkmcnt(0)
        v_readfirstlane_b32 s{sT0}, v{t2}
        s_cmp_lg_u32 s{sT0}, {KMAGIC:#x}
        s_cbranch_scc1 L_b_pair
        """)
        p.label("L_b_pair_ok")
        p(f"""
        s_waitcnt lgkmcnt(0)
        ds_read_b64 v[{X}:{X+1}], v{t0}
        ds_read_b64 v[{X+2}:{X+3}], v{t0} offset:512
        ds_read_b64 v[{X+4}:{X+5}], v{t0} offset:1024
        s_waitcnt lgkmcnt(0)
        """)
        for x in softmax(2, [TT[2], TT[2] + 6], X) + phi_writes(2, TT[2], ph): p(x)
    p("s_waitcnt lgkmcnt(0)\n s_barrier")

    stamp(p, 4)
    for x in merge([softmax(nt, [TT[nt], TT[nt] + 6]) for nt in range(3)]): p(x)
    for nt in range(3):
        p(f"v_mov_b32 v{TT[nt]+5}, 0\n v_mov_b32 v{TT[nt]+11}, 0")
    p(f"v_mov_b32 v{TT[2]+12}, 0\n v_mov_b32 v{TT[2]+13}, 0")
    stamp(p, 5)
    for r, n in [(P, 24), (vRow, 1), (vFA, 16)] + [(x, 20) for x in EE] + [(y, 2) for x in SS for y in x]:
        V.release(r, n)
    p("s_waitcnt vmcnt(0) lgkmcnt(0)\n s_barrier")
    stamp(p, 6)
    AF = V.alloc(32, align=4)
    p(f"""
    v_lshlrev_b32 v{t0}, 4, v{vLane}
    v_add_u32 v{t0}, {AST}, v{t0}
    v_lshlrev_b32 v{t1}, 2, v{vLane}
    v_add_u32 v{t1}, {AST+4096}, v{t1}
    """)
    for k in range(4):
        p(f"ds_read_b128 v[{AF+8*k}:{AF+8*k+3}], v{t0} offset:{1024*k}")
        p(f"ds_read_b32 v{AF+8*k+4}, v{t1} offset:{256*k}")
    for k in range(4):
        for z in (5, 6, 7): p(f"v_mov_b32 v{AF+8*k+z}, 0")
    vOa = V.alloc(); vOb = V.alloc()
    ODs = [V.alloc(16, align=4) for _ in range(3)]; ws_ = [V.alloc(8, align=4) for _ in range(3)]
    sEPS = 97
    p(f"""
    s_mov_b32 s{sEPS}, 0x358637bd
    s_mul_i32 s{sT0}, s{sRB}, 12
    s_mul_i32 s{sT1}, s{sWR}, 3
    s_add_u32 s{sT0}, s{sT0}, s{sT1}
    s_mul_i32 s{sT0}, s{sT0}, {O_TILE}
    s_mul_i32 s{sT1}, s{sHQ}, 1280
    s_add_u32 s{sT0}, s{sT0}, s{sT1}
    s_add_u32 s{sT0}, s{sT0}, {WS_O}
    v_lshl_add_u32 v{vOa}, v{vLane}, 4, s{sT0}
    v_lshlrev_b32 v{t0}, 4, v{vI}
    v_lshl_add_u32 v{t0}, v{vG}, 3, v{t0}
    s_add_u32 s{sT0}, s{sT0}, 1024
    v_add_u32 v{vOb}, s{sT0}, v{t0}
    v_cmp_gt_u32 vcc, 16, v{vLane}
    s_mov_b32 s{sT2}, {O_TILE}
    s_mov_b32 s{sT3}, {2*O_TILE}
    s_waitcnt lgkmcnt(0)
    """)
    stamp(p, 8)
    streams = []
    for nt in range(3):
        OD = ODs[nt]; w = ws_[nt]
        L = []
        for h in range(2):
            b = TT[nt] + 6*h
            a0_ = AF + 8*h; a1_ = AF + 8*(h + 2)
            o0 = OD + 8*h; o1 = o0 + 4
            L += [f"v_mfma_f32_16x16x32_bf16 v[{o0}:{o0+3}], v[{a0_}:{a0_+3}], v[{b}:{b+3}], 0",
                  f"v_mfma_f32_16x16x32_bf16 v[{o1}:{o1+3}], v[{a1_}:{a1_+3}], v[{b}:{b+3}], 0",
                  f"v_mfma_f32_16x16x32_bf16 v[{o0}:{o0+3}], v[{a0_+4}:{a0_+7}], v[{b+4}:{b+7}], v[{o0}:{o0+3}]",
                  f"v_mfma_f32_16x16x32_bf16 v[{o1}:{o1+3}], v[{a1_+4}:{a1_+7}], v[{b+4}:{b+7}], v[{o1}:{o1+3}]"]
        y = [w + 6, w + 4]
        L += [f"v_mov_b32 v{y[0]}, v{OD+4}", f"v_mov_b32 v{y[1]}, v{OD+12}",
              f"v_permlane16_swap_b32 v{OD+4}, v{y[0]}", f"v_permlane16_swap_b32 v{y[1]}, v{OD+12}",
              f"v_add_f32 v{y[0]}, s{sEPS}, v{y[0]}", f"v_add_f32 v{y[1]}, s{sEPS}, v{y[1]}",
              f"v_rcp_f32 v{y[0]}, v{y[0]}", f"v_rcp_f32 v{y[1]}, v{y[1]}"]
        for h in range(2):
            for r in range(0, 8, 2):
                a = OD + 8*h + r
                L.append(f"v_pk_mul_f32 v[{a}:{a+1}], v[{a}:{a+1}], v[{y[h]}:{y[h]+1}] op_sel:[0,0] op_sel_hi:[1,0]")
        L += [f"v_cvt_pk_bf16_f32 v{w}, v{OD}, v{OD+1}", f"v_cvt_pk_bf16_f32 v{w+1}, v{OD+2}, v{OD+3}",
              f"v_cvt_pk_bf16_f32 v{w+2}, v{OD+8}, v{OD+9}", f"v_cvt_pk_bf16_f32 v{w+3}, v{OD+10}, v{OD+11}",
              f"v_cvt_pk_bf16_f32 v{OD+4}, v{OD+4}, v{OD+5}", f"v_cvt_pk_bf16_f32 v{OD+5}, v{OD+6}, v{OD+7}",
              f"v_cvt_pk_bf16_f32 v{OD+12}, v{OD+12}, v{OD+13}", f"v_cvt_pk_bf16_f32 v{OD+13}, v{OD+14}, v{OD+15}",
              f"v_cndmask_b32 v{w+4}, v{OD+12}, v{OD+4}, vcc", f"v_cndmask_b32 v{w+5}, v{OD+13}, v{OD+5}, vcc"]
        streams.append(L)
    for x in merge(streams): p(x)
    if 'fdiag' not in OPT: stamp(p, 15)
    so = ["0", f"s{sT2}", f"s{sT3}"]
    for nt in range(3):
        p(f"buffer_store_dwordx4 v[{ws_[nt]}:{ws_[nt]+3}], v{vOa}, s[{SRD_WS}:{SRD_WS+3}], {so[nt]} offen sc1")
    p("s_mov_b32 exec_hi, 0")
    for nt in range(3):
        p(f"buffer_store_dwordx2 v[{ws_[nt]+4}:{ws_[nt]+5}], v{vOb}, s[{SRD_WS}:{SRD_WS+3}], {so[nt]} offen sc1")
    p("s_mov_b32 exec_hi, -1")
    stamp(p, 7)
    if LATE:
        vNo = V.alloc()
        p(f"""
        s_cmp_lg_u32 s{sWR}, 0
        s_cbranch_scc1 L_b_oclr_ok
        s_mov_b32 s{sCNT}, 0
        """)
        p.label("L_b_oclr")
        p(f"""
        v_mov_b32 v{vNo}, {DBG_CNT2}
        global_load_dword v{vNo}, v{vNo}, s[{S_DBG}:{S_DBG+1}] sc1
        s_waitcnt vmcnt(0)
        v_readfirstlane_b32 s{sT0}, v{vNo}
        s_cmp_ge_u32 s{sT0}, {N_B}
        s_cbranch_scc1 L_b_oclr_ok
        s_add_u32 s{sCNT}, s{sCNT}, 1
        s_cmp_gt_u32 s{sCNT}, {1 << 12}
        s_cbranch_scc1 L_b_oclr_ok
        s_sleep 16
        s_branch L_b_oclr
        """)
        p.label("L_b_oclr_ok")
        V.release(vNo)
    if 'noe3' not in OPT: p("s_waitcnt vmcnt(0)\n s_barrier")
    p.label("L_b_final")
    V.free = [i > t3 for i in range(V.limit)]
    sRQ, sKH = 95, 96
    OF = V.alloc(80, align=4)
    vR = V.alloc(); vPl = V.alloc(); mx = V.alloc(); pv = V.alloc()
    p(f"""
    s_cmp_ge_u32 s2, 160
    s_cbranch_scc1 L_b_done
    s_lshr_b32 s{sT0}, s2, 3
    s_cmp_ge_u32 s{sT0}, 10
    s_cselect_b32 s{sT1}, 1, 0
    s_and_b32 s{sT2}, s2, 7
    s_lshl_b32 s{sT2}, s{sT2}, 1
    s_add_u32 s{sRT}, s{sT2}, s{sT1}
    s_mul_i32 s{sT1}, s{sT1}, 10
    s_sub_u32 s{sCG}, s{sT0}, s{sT1}
    s_and_b32 s{sRQ}, s{sW}, 3
    s_lshr_b32 s{sKH}, s{sW}, 2
    s_lshl_b32 s{sT0}, s{sRT}, 3
    s_lshl_b32 s{sT1}, s{sRQ}, 1
    s_add_u32 s{sT0}, s{sT0}, s{sT1}
    s_mul_i32 s{sT0}, s{sT0}, {O_TILE}
    s_mul_i32 s{sT1}, s{sKH}, 10240
    s_add_u32 s{sT0}, s{sT0}, s{sT1}
    s_add_u32 s{sT0}, s{sT0}, {WS_O}
    v_lshl_add_u32 v{vR}, v{vLane}, 4, s{sT0}
    s_mov_b32 s{sCNT}, 0
    """)
    vA = V.alloc(4, align=1)
    p(f"""
    v_lshrrev_b32 v{t2}, 2, v{vI}
    v_bfe_u32 v{t3}, v{t2}, 1, 1
    v_and_b32 v{t0}, 1, v{vG}
    v_lshl_add_u32 v{t3}, v{t0}, 1, v{t3}        ; psi
    v_bfe_u32 v{t0}, v{vI}, 1, 1
    v_lshlrev_b32 v{t0}, 4, v{t0}
    v_and_b32 v{t1}, 1, v{vI}
    v_lshl_add_u32 v{t0}, v{t1}, 3, v{t0}
    v_lshl_add_u32 v{t2}, v{vG}, 3, v{t2}
    v_lshl_add_u32 v{t0}, v{t2}, 7, v{t0}
    s_mul_i32 s{sT1}, s{sKH}, {320*128}
    v_add_u32 v{t0}, s{sT1}, v{t0}
    """)
    for mt in range(4):
        p(f"v_xor_b32 v{t1}, {mt}, v{t3}\n v_lshl_add_u32 v{vA+mt}, v{t1}, 5, v{t0}")
    FAc = V.alloc(32, align=4); WA = [V.alloc(16, align=4), V.alloc(16, align=4)]
    def wreads(ks):
        b = WA[ks & 1]
        return [f"ds_read_b64_tr_b16 v[{b+4*mt+2*h}:{b+4*mt+2*h+1}], v{vA+mt} offset:{WO_IMG + 4096*ks + 512*h}" for mt in range(4) for h in range(2)]
    def ld_o(ks):
        for nt in range(2):
            p(f"s_mov_b32 s{sT1}, {O_TILE*nt + 4096*(ks >> 2)}")
            p(f"buffer_load_dwordx4 v[{OF+8*ks+4*nt}:{OF+8*ks+4*nt+3}], v{vR}, s[{SRD_WS}:{SRD_WS+3}], s{sT1} offen offset:{1024*(ks & 3)} sc1")
    sMISS = 90
    def chk_o(ks):
        o = OF + 8*ks
        p(f"""
        v_max3_u32 v{mx}, v{o}, v{o+1}, v{o+2}
        v_max3_u32 v{pv}, v{o+3}, v{o+4}, v{o+5}
        v_max3_u32 v{mx}, v{mx}, v{o+6}, v{o+7}
        v_max_u32 v{mx}, v{mx}, v{pv}
        v_cmp_eq_u32 vcc, -1, v{mx}
        """)
    def mf_o(ks, wb, fill=()):
        k = 0
        for mt in range(4):
            for nt in range(2):
                a = FAc + 16*nt + 4*mt
                p(f"v_mfma_f32_16x16x32_bf16 v[{a}:{a+3}], v[{wb+4*mt}:{wb+4*mt+3}], v[{OF+8*ks+4*nt}:{OF+8*ks+4*nt+3}], v[{a}:{a+3}]")
                if k < 4 and fill:
                    p(fill[2*k]); p(fill[2*k+1])
                k += 1
    PD = int(common.os.environ.get("PD", "4"))
    if 'fdiag' in OPT: stamp(p, 13)
    for ks in range(min(PD, 10)): ld_o(ks)
    if 'fdiag' in OPT: stamp(p, 14)
    for x in wreads(0): p(x)
    for k in range(32): p(f"v_mov_b32 v{FAc+k}, 0")
    p(f"s_mov_b32 s{sMISS}, 0")
    for ks in range(10):
        nxt = wreads(ks + 1) if ks < 9 else []
        p(f"s_waitcnt vmcnt({2*min(PD-1, 9-ks)})")
        if ks + PD < 10: ld_o(ks + PD)
        chk_o(ks)
        p(f"s_cbranch_vccz L_b_ok2_{ks}")
        p(f"s_bitset1_b32 s{sMISS}, {ks}")
        ld_o(ks)
        p("s_waitcnt lgkmcnt(0)")
        for x in nxt: p(x)
        p(f"s_branch L_b_nx2_{ks}")
        p.label(f"L_b_ok2_{ks}")
        if ks == 0: stamp(p, 9)
        p("s_waitcnt lgkmcnt(0)")
        mf_o(ks, WA[ks & 1], nxt)
        p.label(f"L_b_nx2_{ks}")
    if 'fdiag' in OPT:
        stamp(p, 1)
        p(f"s_bcnt1_i32_b32 s79, s{sMISS}")
    p(f"s_cmp_eq_u32 s{sMISS}, 0\n s_cbranch_scc1 L_b_ok2")
    p.label("L_b_p2")
    p("s_waitcnt vmcnt(0)")
    for ks in range(10):
        p(f"s_bitcmp1_b32 s{sMISS}, {ks}\n s_cbranch_scc0 L_b_p2n_{ks}")
        chk_o(ks)
        p(f"s_cbranch_vccnz L_b_p2r_{ks}")
        b = WA[0]
        for x in [f"ds_read_b64_tr_b16 v[{b+4*mt+2*h}:{b+4*mt+2*h+1}], v{vA+mt} offset:{WO_IMG + 4096*ks + 512*h}" for mt in range(4) for h in range(2)]: p(x)
        p("s_waitcnt lgkmcnt(0)")
        mf_o(ks, b)
        p(f"s_bitset0_b32 s{sMISS}, {ks}\n s_branch L_b_p2n_{ks}")
        p.label(f"L_b_p2r_{ks}")
        ld_o(ks)
        p.label(f"L_b_p2n_{ks}")
    p(f"""
    s_cmp_eq_u32 s{sMISS}, 0
    s_cbranch_scc1 L_b_ok2
    s_add_u32 s{sCNT}, s{sCNT}, 1
    s_cmp_le_u32 s{sCNT}, {SPIN_MAX}
    s_cbranch_scc1 L_b_p2
    s_waitcnt vmcnt(0)
    """)
    p.label("L_b_ok2")
    stamp(p, 10)
    p(f"""
    s_lshl_b32 s{sT0}, s{sW}, 12
    s_add_u32 s{sT0}, s{sT0}, {RED}
    v_lshl_add_u32 v{t0}, v{vLane}, 4, s{sT0}
    s_xor_b32 s{sT1}, s{sW}, 4
    s_lshl_b32 s{sT1}, s{sT1}, 12
    s_add_u32 s{sT1}, s{sT1}, {RED}
    v_lshl_add_u32 v{t1}, v{vLane}, 4, s{sT1}
    s_lshl_b32 s{sT0}, s{sRT}, 7
    s_lshl_b32 s{sT1}, s{sRQ}, 5
    s_add_u32 s{sT0}, s{sT0}, s{sT1}
    s_lshl_b32 s{sT1}, s{sKH}, 4
    s_add_u32 s{sT0}, s{sT0}, s{sT1}
    v_and_b32 v{t2}, 7, v{vI}
    v_add_u32 v{t2}, s{sT0}, v{t2}
    v_mul_u32_u24 v{t2}, 2560, v{t2}
    v_lshrrev_b32 v{t3}, 3, v{vI}
    v_lshl_add_u32 v{t2}, v{t3}, 6, v{t2}
    v_and_b32 v{t3}, 1, v{vG}
    v_lshl_add_u32 v{t2}, v{t3}, 5, v{t2}
    v_lshrrev_b32 v{t3}, 1, v{vG}
    v_lshl_add_u32 v{t2}, v{t3}, 4, v{t2}
    s_lshl_b32 s{sT0}, s{sCG}, 7
    s_add_u32 s{sT0}, s{sT0}, 1280
    v_add_u32 v{t2}, s{sT0}, v{t2}
    s_cmp_eq_u32 s{sKH}, 0
    s_cbranch_scc1 L_b_red0
    """)
    def finish(keep):
        p("s_waitcnt lgkmcnt(0)\n s_barrier")
        for k in range(4):
            p(f"ds_read_b128 v[{OF+4*k}:{OF+4*k+3}], v{t1} offset:{1024*k}")
        for a2 in range(2):
            for mt in (2*a2, 2*a2 + 1):
                a = keep + 4*mt; b = OF + 4*mt
                p(f"s_waitcnt lgkmcnt({3-mt})")
                p(f"v_pk_add_f32 v[{a}:{a+1}], v[{a}:{a+1}], v[{b}:{b+1}]")
                p(f"v_pk_add_f32 v[{a+2}:{a+3}], v[{a+2}:{a+3}], v[{b+2}:{b+3}]")
            A = keep + 8*a2; B = A + 4; d = OF + 16 + 4*a2
            p(f"""
            v_cvt_pk_bf16_f32 v{d}, v{A}, v{A+1}
            v_cvt_pk_bf16_f32 v{d+1}, v{A+2}, v{A+3}
            v_cvt_pk_bf16_f32 v{d+2}, v{B}, v{B+1}
            v_cvt_pk_bf16_f32 v{d+3}, v{B+2}, v{B+3}
            v_permlane16_swap_b32 v{d}, v{d+2}
            v_permlane16_swap_b32 v{d+1}, v{d+3}
            """)
        d0 = OF + 16; d1 = OF + 20; r0 = OF + 24; r1 = OF + 28
        p(f"v_cmp_gt_u32 vcc, 8, v{vI}")
        for k in range(4):
            p(f"v_mov_b32_dpp v{r0+k}, v{d0+k} row_ror:8 row_mask:0xf bank_mask:0xf")
            p(f"v_mov_b32_dpp v{r1+k}, v{d1+k} row_ror:8 row_mask:0xf bank_mask:0xf")
        for k in range(4):
            p(f"v_cndmask_b32 v{r1+k}, v{r1+k}, v{d0+k}, vcc")
            p(f"v_cndmask_b32 v{r0+k}, v{d1+k}, v{r0+k}, vcc")
        MOD = 'sc1' if 'osc1' in OPT else ''
        p(f"s_mov_b32 s{sT0}, {8*2560}")
        p(f"buffer_store_dwordx4 v[{r1}:{r1+3}], v{t2}, s[{SRD_O}:{SRD_O+3}], 0 offen {MOD}")
        p(f"buffer_store_dwordx4 v[{r0}:{r0+3}], v{t2}, s[{SRD_O}:{SRD_O+3}], s{sT0} offen {MOD}")
    for k in range(4):
        p(f"ds_write_b128 v{t0}, v[{FAc+4*k}:{FAc+4*k+3}] offset:{1024*k}")
    finish(FAc + 16)
    p("s_branch L_b_done")
    p.label("L_b_red0")
    for k in range(4):
        p(f"ds_write_b128 v{t0}, v[{FAc+16+4*k}:{FAc+16+4*k+3}] offset:{1024*k}")
    finish(FAc)
    p.label("L_b_done")
    dbgmax(p, 9, t2, t3, sW)
    stamp(p, 11)
    if common.DIAG:
        p('s_waitcnt vmcnt(0)')
        stamp(p, 12)
        stamps_flush(p, t0, t1)
    return V
```
